```python
import torch

def _softmax(x, axis=-1):
    return torch.softmax(x, dim=axis)
def _gelu(x):
    return torch.nn.functional.gelu(x, approximate="tanh")
def _silu(x):
    return torch.nn.functional.silu(x)
def _sigmoid(x):
    return torch.sigmoid(x)
def _layernorm(x, axis=-1, eps=1e-5):
    m = x.mean(dim=axis, keepdim=True)
    v = x.var(dim=axis, keepdim=True, unbiased=False)
    return (x - m) / torch.sqrt(v + eps)
def _scatter_add(tgt, idx, src, axis=0):
    return tgt.clone().index_add_(axis, idx, src)
def _segment_sum(src, seg, n):
    out = torch.zeros((n,) + src.shape[1:], dtype=src.dtype)
    return out.index_add_(0, seg, src)
def _pad(x, pw):
    flat = tuple(v for pair in reversed(pw) for v in pair)
    return torch.nn.functional.pad(x, flat)

kernel_name = 'standalone__kv_cache_quant_int4_int2_kv_with_per_channel_or_per_token_scales__sampling'

def setup_inputs():

    _w = (lambda a: (lambda t: t.to(torch.bfloat16) if t.is_floating_point() else t)(torch.as_tensor(a)))
    B = 8
    Sq = 16
    Skv = 8192
    Hq = 32
    Hkv = 8
    Dh = 128
    bits = 4
    G = 128
    if G <= 0 or G >= Skv:
        G = max(1, Skv // 2)
    Skv = (Skv // G) * G
    ngk = Skv // G
    qmax = (1 << bits) - 1
    return {
        "q": _w((lambda *s: torch.randn(*s, dtype=torch.bfloat16) * 1.6)(B, Hq, Sq, Dh)),
        "qk": _w(torch.randint(0, qmax + 1, (B, Hkv, Skv, Dh)).to(torch.int32)),
        "qv": _w(torch.randint(0, qmax + 1, (B, Hkv, Skv, Dh)).to(torch.int32)),
        "k_scales": _w(torch.abs((lambda *s: torch.randn(*s, dtype=torch.bfloat16) * 1.6)(B, Hkv, ngk, Dh)) * 0.05 + 0.02),
        "k_zeros": _w((lambda *s: torch.randn(*s, dtype=torch.bfloat16) * 1.6)(B, Hkv, ngk, Dh) + float(qmax) / 2.0),
        "v_scales": _w(torch.abs((lambda *s: torch.randn(*s, dtype=torch.bfloat16) * 0.05)(B, Hkv, Skv, 1)) * 0.05 + 0.02),
        "v_zeros": _w((lambda *s: torch.randn(*s, dtype=torch.bfloat16) * 0.05)(B, Hkv, Skv, 1) + float(qmax) / 2.0),
    }

def reference(q, qk, qv, k_scales, k_zeros, v_scales, v_zeros):
    B, Hq, Sq, Dh = q.shape
    Hkv, Skv = qk.shape[1], qk.shape[2]
    ngk = k_scales.shape[2]
    G = Skv // ngk
    ks = (lambda x, n, axis: torch.repeat_interleave(x, n, dim=axis))(k_scales, G, axis=2)
    kz = (lambda x, n, axis: torch.repeat_interleave(x, n, dim=axis))(k_zeros, G, axis=2)
    k = ((lambda x, dt: x.to(dt))(qk, q.dtype) - kz) * ks
    v = ((lambda x, dt: x.to(dt))(qv, q.dtype) - v_zeros) * v_scales
    rep = Hq // Hkv
    if rep > 1:
        k = (lambda x, n, axis: torch.repeat_interleave(x, n, dim=axis))(k, rep, axis=1)
        v = (lambda x, n, axis: torch.repeat_interleave(x, n, dim=axis))(v, rep, axis=1)
    scale = float(Dh) ** -0.5
    logits = torch.einsum("bhqd,bhkd->bhqk", q, k) * scale
    p = _softmax(logits, axis=-1)
    o = torch.einsum("bhqk,bhkd->bhqd", p, v)
    return o
```

```python
import sys, struct, math
NAME = "standalone__kv_cache_quant_int4_int2_kv_with_per_channel_or_per_token_scales__sampling"
HDR = open("cdna_kernels/" + NAME + ".s.ref").read().split("; Override launch")[0]

def f32bits(x):
    return struct.unpack("<I", struct.pack("<f", x))[0]

class K:
    def __init__(self):
        self.L = []
    def __call__(self, s):
        self.L.append("    " + s)
    def label(self, s):
        self.L.append(s + ":")
    def c(self, s):
        self.L.append("    ; " + s)

def gen(path, D=16, AL=None, nstatic=12, mix=True, stamps=False, ntflag="nt", cstride=8, smallflag="", T=8.0):
    if AL is None: AL = D
    assert 1 <= D <= 32 and nstatic >= 4 and nstatic <= 16
    A = K()
    ROW = 272
    vLane, vOff, vKW, vKR, vSW, vSR, vO8, vO2 = 0, 1, 2, 3, 4, 5, 6, 7
    vM = [8, 9]; vL = [10, 11]; vAt = 12; vFl = 13; vMx = [14, 15]
    vKS = 16; vKC = 20; vKSr = 24; vKZr = 26; vVSr = 28; vVZr = 29; vT2 = 30
    vKP = 32; vSc = 40; vKA = 56; vS = 88; vTmp = 120; vRing = 128
    sK, sV, sKS, sKZ, sVS, sVZ, sQ, sDBG, sWS, sOUT = 8, 12, 16, 20, 24, 28, 32, 36, 40, 44
    sPair, sSplit, sGw, sIt, sCur, sNext, sT, sC, sThr, sDoff, sCoff, sDyn, sTile, sT2, sInit = 48, 49, 50, 51, 52, 53, 54, 55, 56, 57, 58, 59, 60, 61, 62
    sWave = 3
    def srd(r): return f"s[{r}:{r+3}]"
    def vr(r, n): return f"v[{r}:{r+n-1}]"
    def ar(r, n): return f"a[{r}:{r+n-1}]"
    LDS_ML = 131072
    LDS_FLAG = LDS_ML + 4096
    LDS_TOTAL = LDS_FLAG + 64
    WS_ML = 8 << 20
    WS_CTR = 16 << 20
    FLAG = 0x100
    stamp_n = [0]
    def stamp(i):
        if stamps:
            A(f"s_memrealtime s[{84+2*i}:{85+2*i}]")

    A.L.append(HDR.rstrip())
    A.L.append(f"; @launch grid=(256,1,1) block=(256,1,1) lds={LDS_TOTAL}")
    A.L.append('.amdgcn_target "amdgcn-amd-amdhsa--gfx950"')
    A.L.append(".text"); A.L.append(f".globl {NAME}_kernel"); A.L.append(".p2align 8")
    A.L.append(f".type {NAME}_kernel,@function"); A.label(f"{NAME}_kernel")
    A("s_cmp_ge_u32 s2, 256"); A("s_cbranch_scc1 L_end")
    stamp(0)
    A("s_load_dwordx16 s[64:79], s[0:1], 0")
    A("s_load_dwordx4 s[80:83], s[0:1], 64")
    A(f"v_lshrrev_b32 v1, 6, v0")
    A(f"v_and_b32 v{vLane}, 63, v0")
    A(f"v_readfirstlane_b32 s{sWave}, v1")
    A(f"s_lshr_b32 s{sPair}, s2, 2"); A(f"s_and_b32 s{sSplit}, s2, 3")
    A(f"v_lshlrev_b32 v{vOff}, 4, v{vLane}")
    A(f"v_and_b32 v{vTmp}, 31, v{vLane}")
    A(f"v_lshrrev_b32 v{vTmp+1}, 5, v{vLane}")
    A(f"v_lshlrev_b32 v{vO8}, 3, v{vTmp}")
    A(f"v_lshlrev_b32 v{vO2}, 1, v{vTmp}")
    A(f"s_lshl_b32 s{sGw}, s{sSplit}, 2"); A(f"s_add_u32 s{sGw}, s{sGw}, s{sWave}")
    A(f"s_lshl_b32 s{sT}, s{sWave}, 15")
    A(f"v_lshlrev_b32 v{vTmp+2}, 8, v{vTmp}")
    A(f"v_lshl_add_u32 v{vTmp+2}, v{vTmp+1}, 4, v{vTmp+2}")
    A(f"v_add_u32 v{vTmp+3}, 8192, v{vTmp+2}")
    A(f"v_mul_u32_u24 v{vKW}, {4*ROW}, v{vTmp+1}"); A(f"v_add3_u32 v{vKW}, v{vKW}, v{vO8}, s{sT}")
    A(f"v_mul_u32_u24 v{vKR}, {ROW}, v{vTmp}"); A(f"v_lshl_add_u32 v{vKR}, v{vTmp+1}, 4, v{vKR}"); A(f"v_add_u32 v{vKR}, s{sT}, v{vKR}")
    A(f"s_add_u32 s{sT2}, s{sT}, {32*ROW}")
    A(f"v_and_b32 v{vSW}, 1, v{vTmp}"); A(f"v_lshlrev_b32 v{vSW}, 7, v{vSW}")
    A(f"v_lshrrev_b32 v{vTmp+4}, 1, v{vTmp}"); A(f"v_lshl_add_u32 v{vSW}, v{vTmp+4}, 3, v{vSW}"); A(f"v_add_u32 v{vSW}, s{sT2}, v{vSW}")
    A(f"v_lshlrev_b32 v{vSR}, 7, v{vTmp+1}"); A(f"v_add_u32 v{vSR}, s{sT2}, v{vSR}")
    A("s_waitcnt lgkmcnt(0)")
    def mk(r, p, shift, size):
        A(f"s_lshl_b32 s{sT}, s{sPair}, {shift}")
        A(f"s_add_u32 s{r}, s{p}, s{sT}"); A(f"s_addc_u32 s{r+1}, s{p+1}, 0")
        A(f"s_mov_b32 s{r+2}, {size}"); A(f"s_mov_b32 s{r+3}, 0x20000")
    mk(sK, 66, 22, 1 << 22); mk(sV, 68, 22, 1 << 22)
    mk(sKS, 70, 14, 1 << 14); mk(sKZ, 72, 14, 1 << 14); mk(sVS, 74, 14, 1 << 14); mk(sVZ, 76, 14, 1 << 14)
    mk(sQ, 64, 14, 1 << 14); mk(sOUT, 78, 14, 1 << 14)
    A(f"s_mov_b32 s{sDBG}, s80"); A(f"s_mov_b32 s{sDBG+1}, s81"); A(f"s_mov_b32 s{sDBG+2}, 256"); A(f"s_mov_b32 s{sDBG+3}, 0x20000")
    A(f"s_mov_b32 s{sWS}, s82"); A(f"s_mov_b32 s{sWS+1}, s83"); A(f"s_mov_b32 s{sWS+2}, 0x40000000"); A(f"s_mov_b32 s{sWS+3}, 0x20000")
    A(f"s_lshl_b32 s{sDoff}, s{sPair}, 2")
    A(f"s_lshl_b32 s{sCoff}, s{sPair}, {cstride}"); A(f"s_add_u32 s{sCoff}, s{sCoff}, {WS_CTR}")
    A(f"s_mov_b32 s{sC}, {hex(f32bits(math.log2(math.e) / math.sqrt(128.0)))}")
    A(f"s_mov_b32 s{sThr}, {hex(f32bits(T))}")
    A(f"s_mov_b32 s{sDyn}, 0"); A(f"s_mov_b32 s{sIt}, 0")
    dyn = nstatic < 16
    if dyn:
        A.c("the first wave of split 0 zeroes this pair's ticket counter in d_ws")
        A(f"s_cmp_eq_u32 s{sGw}, 0"); A("s_cbranch_scc0 L_noinit")
        A("s_mov_b64 exec, 1"); A(f"v_mov_b32 v{vAt}, 0")
        A(f"buffer_atomic_swap v{vAt}, off, {srd(sWS)}, s{sCoff} sc0")
        A("s_mov_b64 exec, -1")
        A.label("L_noinit")

    def issue_small(soff_tile_reg):
        A(f"s_lshr_b32 s{sT}, s{soff_tile_reg}, 2"); A(f"s_lshl_b32 s{sT}, s{sT}, 8")
        A(f"s_lshl_b32 s{sT2}, s{soff_tile_reg}, 6")
        A(f"buffer_load_dwordx2 {vr(vKSr,2)}, v{vO8}, {srd(sKS)}, s{sT} offen {smallflag}")
        A(f"buffer_load_dwordx2 {vr(vKZr,2)}, v{vO8}, {srd(sKZ)}, s{sT} offen {smallflag}")
        A(f"buffer_load_ushort v{vVSr}, v{vO2}, {srd(sVS)}, s{sT2} offen {smallflag}")
        A(f"buffer_load_ushort v{vVZr}, v{vO2}, {srd(sVZ)}, s{sT2} offen {smallflag}")
    def issue_item(k, sbase):
        jj = k % 16
        s = sK if k < 16 else sV
        r = vRing + 4 * k
        if jj < 4:
            so = sbase
        else:
            A(f"s_add_u32 s{sT}, s{sbase}, {(jj//4)*4096}")
            so = sT
        A(f"buffer_load_dwordx4 {vr(r,4)}, v{vOff}, {srd(s)}, s{so} offen offset:{(jj%4)*1024} {ntflag}")

    A(f"s_mov_b32 s{sTile}, s{sGw}")
    A(f"s_lshl_b32 s{sCur}, s{sTile}, 14")
    issue_small(sTile)
    nq_before = min(D, 4)
    for k in range(nq_before): issue_item(k, sCur)
    A.c("Q fragments (B operand of S^T = K Q^T) straight into AGPRs")
    for qb in range(2):
        for s in range(8):
            A(f"buffer_load_dwordx4 {ar(128 + (qb*8+s)*4, 4)}, v{vTmp+2+qb}, {srd(sQ)}, 0 offen offset:{s*32}")
    for k in range(nq_before, D): issue_item(k, sCur)
    for i in range(128): A(f"v_accvgpr_write_b32 a{i}, 0")
    for qb in range(2):
        A(f"v_mov_b32 v{vM[qb]}, 0xf149f2ca")
        A(f"v_mov_b32 v{vL[qb]}, 0")

    def cnt_item(k, has_next, upto=None):
        if upto is None: upto = k
        last = upto - 1 + D
        n = 0
        for x in range(k + 1, last + 1):
            if x >= 32 and not has_next: break
            if x == 32: n += 4
            n += 1
        return n

    dec = 32 - D
    at_pos = (dec - AL) % 32
    def atomic_point():
        if not dyn: return
        lab = f"L_noat{len(A.L)}"
        A(f"s_cmp_lg_u32 s{sDyn}, 0"); A(f"s_cbranch_scc0 {lab}")
        A("s_mov_b64 exec, 1"); A(f"v_mov_b32 v{vAt}, 1")
        A(f"buffer_atomic_add v{vAt}, off, {srd(sWS)}, s{sCoff} sc0")
        A("s_mov_b64 exec, -1")
        A.label(lab)
    def decision():
        n_after = AL + (4 if AL == 32 else 0)
        if AL < 32 and False: pass
        A(f"s_add_u32 s{sIt}, s{sIt}, 1")
        if dyn:
            A(f"s_cmp_lt_u32 s{sIt}, {nstatic}"); A("s_cbranch_scc0 L_dynpick")
            A(f"s_cmp_eq_u32 s{sIt}, 1"); A("s_cbranch_scc1 L_setflag")
            A(f"s_cmp_eq_u32 s{sIt}, {nstatic-2}"); A("s_cbranch_scc1 L_ldflag")
            A(f"s_cmp_eq_u32 s{sIt}, {nstatic-1}"); A("s_cbranch_scc1 L_rdflag")
            A.label("L_static")
            A(f"s_lshl_b32 s{sTile}, s{sIt}, 4"); A(f"s_add_u32 s{sTile}, s{sTile}, s{sGw}")
            A.label("L_picked")
        else:
            A(f"s_cmp_lt_u32 s{sIt}, {nstatic}"); A("s_cbranch_scc0 L_last")
            A(f"s_lshl_b32 s{sTile}, s{sIt}, 4"); A(f"s_add_u32 s{sTile}, s{sTile}, s{sGw}")
        A(f"s_lshl_b32 s{sNext}, s{sTile}, 14")
        return n_after
    def refill(k, has_next):
        x = k + D
        if x < 32:
            if k == at_pos: atomic_point()
            issue_item(x, sCur)
        elif has_next:
            if k == at_pos: atomic_point()
            if x == 32: issue_small(sTile)
            issue_item(x - 32, sNext)

    def deq(r, s, c):
        if mix:
            A(f"v_fma_mix_f32 v{r}, v{r}, v{s}, v{c} op_sel_hi:[1,0,0]")
        else:
            A(f"v_cvt_f32_i32 v{r}, v{r}"); A(f"v_fma_f32 v{r}, v{r}, v{s}, v{c}")

    state = {"nafter": None}
    def body(k0, k1, has_next, tag):
        for k in range(k0, k1):
            r = vRing + 4 * k
            if k == 16:
                qk_softmax(tag)
            upto = k - 1 if (D == 32 and k >= 16 and k % 2 == 1) else k
            A(f"s_waitcnt vmcnt({cnt_item(k, has_next, upto)})")
            if k < 16:
                for j in range(4): deq(r + j, vKS + j, vKC + j)
                t = vKP + 2 * (k % 4)
                A(f"v_cvt_pk_bf16_f32 v{t}, v{r}, v{r+1}"); A(f"v_cvt_pk_bf16_f32 v{t+1}, v{r+2}, v{r+3}")
                A(f"ds_write_b64 v{vKW}, {vr(t,2)} offset:{(8*(k//4) + k%4)*ROW}")
                refill(k, has_next)
            else:
                n = k - 16
                if n == 0 or n == 8: A("s_waitcnt lgkmcnt(0)")
                if n < 8: sc = vSc + 2 * n
                else: sc = vS + 16 * ((n - 8) // 4) + 8 + 2 * ((n - 8) % 4)
                for j in range(4): deq(r + j, sc, sc + 1)
                if n % 2 == 1:
                    st = (n // 8) * 16
                    for j in range(4):
                        A(f"v_cvt_pk_bf16_f32 v{vKA + st + 4*j + (n//2)%4}, v{r-4+j}, v{r+j}")
                    if D == 32:
                        refill(k - 1, has_next)
                    refill(k, has_next)
                    if n % 8 == 7:
                        A("s_nop 1")
                        for qb in range(2):
                            for j in range(4):
                                o = (qb * 4 + j) * 16
                                A(f"v_mfma_f32_32x32x16_bf16 {ar(o,16)}, {vr(vKA+st+4*j,4)}, {vr(vS+16*qb+4*(n//8),4)}, {ar(o,16)}")
                else:
                    if D != 32: refill(k, has_next)

    def scale_prep():
        A.c("per-channel K scale/zero -> S=ks*2^24 (mix) , C=-kz*ks ; per-token V scale/zero -> LDS")
        for p in range(2):
            A(f"v_lshlrev_b32 v{vKS+2*p}, 16, v{vKSr+p}"); A(f"v_and_b32 v{vKS+2*p+1}, 0xffff0000, v{vKSr+p}")
            A(f"v_lshlrev_b32 v{vKC+2*p}, 16, v{vKZr+p}"); A(f"v_and_b32 v{vKC+2*p+1}, 0xffff0000, v{vKZr+p}")
        A(f"v_lshlrev_b32 v{vT2}, 16, v{vVSr}"); A(f"v_lshlrev_b32 v{vT2+1}, 16, v{vVZr}")
        for j in range(4): A(f"v_mul_f32 v{vKC+j}, -v{vKC+j}, v{vKS+j}")
        A(f"v_mul_f32 v{vT2+1}, -v{vT2+1}, v{vT2}")
        if mix:
            for j in range(4): A(f"v_mul_f32 v{vKS+j}, 0x4b800000, v{vKS+j}")
            A(f"v_mul_f32 v{vT2}, 0x4b800000, v{vT2}")
        A(f"ds_write_b64 v{vSW}, {vr(vT2,2)}")

    def qk_softmax(tag):
        A.c("S^T = K Q^T")
        for s in range(8): A(f"ds_read_b128 {vr(vKA+4*s,4)}, v{vKR} offset:{s*32}")
        for i in range(4): A(f"ds_read_b128 {vr(vSc+4*i,4)}, v{vSR} offset:{i*16}")
        for s in range(8):
            A(f"s_waitcnt lgkmcnt({11-s})")
            for qb in range(2):
                c = "0" if s == 0 else vr(vS+16*qb, 16)
                A(f"v_mfma_f32_32x32x16_bf16 {vr(vS+16*qb,16)}, {vr(vKA+4*s,4)}, {ar(128+(qb*8+s)*4,4)}, {c}")
        A("s_nop 10")
        for qb in range(2):
            b = vS + 16 * qb; m = vMx[qb]
            A(f"v_max3_f32 v{m}, v{b}, v{b+1}, v{b+2}")
            for i in range(3, 15, 2): A(f"v_max3_f32 v{m}, v{m}, v{b+i}, v{b+i+1}")
            A(f"v_max_f32 v{m}, v{m}, v{b+15}")
        A(f"v_fma_f32 v{vTmp}, v{vMx[0]}, s{sC}, -v{vM[0]}")
        A(f"v_fma_f32 v{vTmp+1}, v{vMx[1]}, s{sC}, -v{vM[1]}")
        A(f"v_max_f32 v{vTmp}, v{vTmp}, v{vTmp+1}")
        A(f"v_cmp_lt_f32 vcc, s{sThr}, v{vTmp}")
        A(f"s_cbranch_vccz L_norescale{tag}")
        A.c("rare path: running max rose by more than the threshold -> move to the true running max")
        for qb in range(2):
            m = vMx[qb]
            A(f"v_mov_b32 v{vTmp}, v{m}")
            A("s_nop 1")
            A(f"v_permlane32_swap_b32 v{vTmp}, v{m}")
            A("s_nop 1")
            A(f"v_max_f32 v{m}, v{m}, v{vTmp}")
            A(f"v_mul_f32 v{m}, s{sC}, v{m}")
            A(f"v_max_f32 v{m}, v{m}, v{vM[qb]}")
            A(f"v_sub_f32 v{vTmp}, v{vM[qb]}, v{m}")
            A(f"v_exp_f32 v{vTmp}, v{vTmp}")
            A(f"v_mov_b32 v{vM[qb]}, v{m}")
            A(f"v_mul_f32 v{vL[qb]}, v{vL[qb]}, v{vTmp}")
            for i in range(0, 64, 4):
                for u in range(4): A(f"v_accvgpr_read_b32 v{vTmp+2+u}, a{qb*64+i+u}")
                for u in range(4): A(f"v_mul_f32 v{vTmp+2+u}, v{vTmp+2+u}, v{vTmp}")
                for u in range(4): A(f"v_accvgpr_write_b32 a{qb*64+i+u}, v{vTmp+2+u}")
        A.label(f"L_norescale{tag}")
        for qb in range(2):
            b = vS + 16 * qb
            for i in range(16): A(f"v_fma_f32 v{b+i}, v{b+i}, s{sC}, -v{vM[qb]}")
            for i in range(16): A(f"v_exp_f32 v{b+i}, v{b+i}")
            A(f"v_add_f32 v{vTmp}, v{b}, v{b+1}"); A(f"v_add_f32 v{vTmp+1}, v{b+2}, v{b+3}")
            for i in range(4, 16, 2):
                A(f"v_add_f32 v{vTmp}, v{vTmp}, v{b+i}"); A(f"v_add_f32 v{vTmp+1}, v{vTmp+1}, v{b+i+1}")
            A(f"v_add_f32 v{vTmp}, v{vTmp}, v{vTmp+1}")
            A(f"v_add_f32 v{vL[qb]}, v{vL[qb]}, v{vTmp}")
            for i in range(8): A(f"v_cvt_pk_bf16_f32 v{b+i}, v{b+2*i}, v{b+2*i+1}")
            for i in range(2):
                A(f"ds_read_b128 {vr(b+8+4*i,4)}, v{vSR} offset:{64 + qb*32 + i*16}")

    A.label("L_loop")
    A(f"s_waitcnt vmcnt({cnt_item(0, True)})")
    scale_prep()
    body(0, dec, True, "a")
    n_after = decision()
    body(dec, 32, True, "b")
    A(f"s_mov_b32 s{sCur}, s{sNext}")
    A("s_branch L_loop")
    if dyn:
        A.label("L_setflag")
        A(f"s_cmp_eq_u32 s{sGw}, 0"); A("s_cbranch_scc0 L_static")
        A("s_mov_b64 exec, 1"); A(f"v_mov_b32 v{vFl}, {FLAG}")
        A(f"buffer_atomic_or v{vFl}, off, {srd(sDBG)}, s{sDoff}")
        A("s_mov_b64 exec, -1"); A("s_branch L_static")
        A.label("L_ldflag")
        A(f"buffer_load_dword v{vFl}, off, {srd(sDBG)}, s{sDoff} sc1")
        A("s_branch L_static")
        A.label("L_rdflag")
        A(f"v_readfirstlane_b32 s{sDyn}, v{vFl}")
        A("s_nop 3")
        A(f"s_and_b32 s{sDyn}, s{sDyn}, {FLAG}")
        A(f"s_cmp_eq_u32 s{sGw}, 0"); A(f"s_cselect_b32 s{sDyn}, 1, s{sDyn}")
        A("s_branch L_static")
        A.label("L_dynpick")
        A(f"s_cmp_lg_u32 s{sDyn}, 0"); A("s_cbranch_scc0 L_last")
        A(f"s_waitcnt vmcnt({n_after})")
        A(f"v_readfirstlane_b32 s{sTile}, v{vAt}")
        A("s_nop 3")
        A(f"s_add_u32 s{sTile}, s{sTile}, {nstatic*16}")
        A(f"s_cmp_lt_u32 s{sTile}, 256"); A("s_cbranch_scc1 L_picked")
    A.label("L_last")
    body(dec, 32, False, "c")
    stamp(1)

    A.c("in-workgroup reduction of the four waves' partial O, m, l")
    A(f"s_lshl_b32 s{sT}, s{sWave}, 15")
    A(f"v_add_u32 v{vTmp}, s{sT}, v{vOff}")
    A(f"s_lshl_b32 s{sT2}, s{sWave}, 10"); A(f"s_add_u32 s{sT2}, s{sT2}, {LDS_ML}")
    A(f"v_add_u32 v{vTmp+1}, s{sT2}, v{vOff}")
    A(f"ds_write_b128 v{vTmp+1}, {vr(8,4)}")
    A("s_nop 7")
    for k in range(32): A(f"ds_write_b128 v{vTmp}, {ar(4*k,4)} offset:{k*1024}")
    A(f"s_lshr_b32 s{sT}, s{sWave}, 1"); A(f"s_lshl_b32 s{sT}, s{sT}, 14")
    A(f"s_and_b32 s{sT2}, s{sWave}, 1"); A(f"s_lshl_b32 s{sT2}, s{sT2}, 11"); A(f"s_add_u32 s{sT}, s{sT}, s{sT2}")
    A(f"v_add_u32 v{vTmp}, s{sT}, v{vOff}"); A(f"v_add_u32 v{vTmp+1}, 0x10000, v{vTmp}")
    A(f"s_lshr_b32 s{sT}, s{sWave}, 1"); A(f"s_lshl_b32 s{sT}, s{sT}, 2"); A(f"s_add_u32 s{sT}, s{sT}, {LDS_ML}")
    A(f"v_add_u32 v{vTmp+2}, s{sT}, v{vOff}"); A(f"v_xor_b32 v{vTmp+3}, 512, v{vTmp+2}")
    A("s_waitcnt lgkmcnt(0)"); A("s_barrier")
    mw = 16; lw = 20; lo = 24; fw = 28
    for w in range(4):
        A(f"ds_read_b32 v{mw+w}, v{vTmp+2} offset:{w*1024}")
        A(f"ds_read_b32 v{lw+w}, v{vTmp+2} offset:{w*1024+8}")
        A(f"ds_read_b32 v{lo+w}, v{vTmp+3} offset:{w*1024+8}")
    R = vRing
    first = True
    for w in range(4):
        for j in range(4):
            for gg in range(2):
                q = j * 2 + gg
                A(f"ds_read_b128 {vr(R + w*32 + 4*q, 4)}, v{vTmp + (w>>1)} offset:{(w&1)*32768 + (j*4+gg)*1024}")
                if first:
                    pass
        if w == 0:
            A("s_waitcnt lgkmcnt(8)")
            vMM, vLL = 32, 33
            A(f"v_max3_f32 v{vMM}, v{mw}, v{mw+1}, v{mw+2}"); A(f"v_max_f32 v{vMM}, v{vMM}, v{mw+3}")
            for x in range(4): A(f"v_sub_f32 v{fw+x}, v{mw+x}, v{vMM}")
            for x in range(4): A(f"v_exp_f32 v{fw+x}, v{fw+x}")
            for x in range(4): A(f"v_add_f32 v{lw+x}, v{lw+x}, v{lo+x}")
            A(f"v_mul_f32 v{vLL}, v{lw}, v{fw}")
            for x in range(1, 4): A(f"v_fmac_f32 v{vLL}, v{lw+x}, v{fw+x}")
    O = 56
    for w in range(4):
        A(f"s_waitcnt lgkmcnt({min(15, (3-w)*8)})")
        for i in range(32):
            if w == 0: A(f"v_mul_f32 v{O+i}, v{R+i}, v{fw}")
            else: A(f"v_fmac_f32 v{O+i}, v{R+w*32+i}, v{fw+w}")
    stamp(2)
    A.c("publish this workgroup's partial (write-through), then take an arrival ticket")
    A(f"s_lshl_b32 s{sT}, s2, 15"); A(f"s_lshl_b32 s{sT2}, s{sWave}, 13"); A(f"s_add_u32 s{sT}, s{sT}, s{sT2}")
    A(f"s_add_u32 s{sT2}, s{sT}, 4096")
    for q in range(8):
        A(f"buffer_store_dwordx4 {vr(O+4*q,4)}, v{vOff}, {srd(sWS)}, s{sT if q < 4 else sT2} offen offset:{(q%4)*1024} sc0 sc1")
    A(f"v_lshlrev_b32 v{vTmp+4}, 3, v{vLane}")
    A(f"s_lshr_b32 s{sT}, s{sT}, 4"); A(f"s_add_u32 s{sT}, s{sT}, {WS_ML}")
    A(f"buffer_store_dwordx2 {vr(vMM,2)}, v{vTmp+4}, {srd(sWS)}, s{sT} offen sc0 sc1")
    A("s_waitcnt vmcnt(0)"); A("s_barrier")
    stamp(3)
    A(f"v_mov_b32 v{vTmp+5}, {LDS_FLAG}")
    A(f"s_cmp_eq_u32 s{sWave}, 0"); A("s_cbranch_scc0 L_noarr")
    A("s_mov_b64 exec, 1"); A(f"v_mov_b32 v{vAt}, 1")
    A(f"buffer_atomic_add v{vAt}, off, {srd(sDBG)}, s{sDoff} sc0")
    A("s_waitcnt vmcnt(0)")
    A(f"ds_write_b32 v{vTmp+5}, v{vAt}")
    A("s_mov_b64 exec, -1")
    A("s_waitcnt lgkmcnt(0)")
    A.label("L_noarr")
    A("s_barrier")
    A(f"ds_read_b32 v{vAt}, v{vTmp+5}")
    A("s_waitcnt lgkmcnt(0)")
    A(f"v_readfirstlane_b32 s{sT}, v{vAt}")
    A("s_nop 3")
    stamp(4)
    A(f"s_and_b32 s{sT}, s{sT}, 0xff"); A(f"s_cmp_eq_u32 s{sT}, 3"); A("s_cbranch_scc0 L_done")
    A.c("last arriver: merge the other three partials and write the output")
    ml = 16
    for x in range(1, 4):
        A(f"s_add_u32 s{sT}, s{sSplit}, {x}"); A(f"s_and_b32 s{sT}, s{sT}, 3")
        A(f"s_lshl_b32 s{sT2}, s{sPair}, 2"); A(f"s_add_u32 s{sT}, s{sT}, s{sT2}")
        A(f"s_lshl_b32 s{sT}, s{sT}, 15"); A(f"s_lshl_b32 s{sT2}, s{sWave}, 13"); A(f"s_add_u32 s{sT}, s{sT}, s{sT2}")
        A(f"s_lshr_b32 s{sT2}, s{sT}, 4"); A(f"s_add_u32 s{sT2}, s{sT2}, {WS_ML}")
        A(f"buffer_load_dwordx2 {vr(ml+2*(x-1),2)}, v{vTmp+4}, {srd(sWS)}, s{sT2} offen sc0 sc1")
        A(f"s_add_u32 s{sT2}, s{sT}, 4096")
        for q in range(8):
            A(f"buffer_load_dwordx4 {vr(R+(x-1)*32+4*q,4)}, v{vOff}, {srd(sWS)}, s{sT if q < 4 else sT2} offen offset:{(q%4)*1024} sc0 sc1")
    A(f"v_and_b32 v{vTmp}, 31, v{vLane}"); A(f"v_lshrrev_b32 v{vTmp+1}, 5, v{vLane}")
    A(f"v_lshlrev_b32 v{vTmp}, 8, v{vTmp}"); A(f"v_lshl_add_u32 v{vTmp}, v{vTmp+1}, 5, v{vTmp}")
    A(f"s_lshr_b32 s{sT}, s{sWave}, 1"); A(f"s_lshl_b32 s{sT}, s{sT}, 13")
    A(f"s_and_b32 s{sT2}, s{sWave}, 1"); A(f"s_lshl_b32 s{sT2}, s{sT2}, 7"); A(f"s_add_u32 s{sT}, s{sT}, s{sT2}")
    A("s_waitcnt vmcnt(8)")
    g = 24; MS = 28
    A(f"v_max3_f32 v{MS}, v{vMM}, v{ml}, v{ml+2}"); A(f"v_max_f32 v{MS}, v{MS}, v{ml+4}")
    A(f"v_sub_f32 v{g}, v{vMM}, v{MS}")
    for x in range(1, 4): A(f"v_sub_f32 v{g+x}, v{ml+2*(x-1)}, v{MS}")
    for x in range(4): A(f"v_exp_f32 v{g+x}, v{g+x}")
    A("s_nop 0")
    A(f"v_mul_f32 v{vLL}, v{vLL}, v{g}")
    for x in range(1, 4): A(f"v_fmac_f32 v{vLL}, v{ml+2*(x-1)+1}, v{g+x}")
    A(f"v_rcp_f32 v{vLL}, v{vLL}")
    A("s_nop 0")
    for x in range(4): A(f"v_mul_f32 v{g+x}, v{g+x}, v{vLL}")
    for i in range(32): A(f"v_mul_f32 v{O+i}, v{O+i}, v{g}")
    for x in range(1, 4):
        if x == 3: A("s_waitcnt vmcnt(0)")
        for i in range(32): A(f"v_fmac_f32 v{O+i}, v{R+(x-1)*32+i}, v{g+x}")
    P = 88
    for gg in range(2):
        for r in range(4):
            for jp in range(2):
                A(f"v_cvt_pk_bf16_f32 v{P+gg*8+2*r+jp}, v{O+4*((2*jp)*2+gg)+r}, v{O+4*((2*jp+1)*2+gg)+r}")
    for gg in range(2):
        for u in range(2):
            A(f"buffer_store_dwordx4 {vr(P+gg*8+4*u,4)}, v{vTmp}, {srd(sOUT)}, s{sT} offen offset:{gg*64+u*16}")
    A.label("L_done")
    if stamps:
        A("s_waitcnt vmcnt(0)")
        stamp(5)
        A(f"s_lshl_b32 s{sT}, s2, 2"); A(f"s_add_u32 s{sT}, s{sT}, s{sWave}"); A(f"s_lshl_b32 s{sT2}, s{sT}, 4")
        A(f"s_add_u32 s{sT2}, s{sT2}, 0x20000000")
        A(f"s_lshl_b32 s{sT}, s{sT}, 6"); A(f"s_add_u32 s{sT}, s{sT}, 0x21000000")
        A("s_waitcnt lgkmcnt(0)")
        for i in range(12): A(f"v_mov_b32 v{16+i}, s{84+i}")
        A(f"v_mov_b32 v28, s{sIt}"); A("s_getreg_b32 s4, hwreg(HW_REG_XCC_ID)"); A("v_mov_b32 v29, s4"); A("v_mov_b32 v30, 0"); A("v_mov_b32 v31, 0")
        A("v_mov_b32 v32, s84"); A("v_mov_b32 v33, s85"); A("v_mov_b32 v34, s94"); A("v_mov_b32 v35, s95")
        A("s_mov_b64 exec, 1")
        A(f"buffer_store_dwordx4 v[32:35], off, {srd(sWS)}, s{sT2}")
        for i in range(4): A(f"buffer_store_dwordx4 v[{16+4*i}:{19+4*i}], off, {srd(sWS)}, s{sT} offset:{16*i}")
    A.label("L_end")
    A("s_endpgm")
    A.L += ['.section .rodata,"a"', ".p2align 6", f".amdhsa_kernel {NAME}_kernel",
            "  .amdhsa_next_free_vgpr 448", "  .amdhsa_next_free_sgpr 102", "  .amdhsa_accum_offset 256",
            "  .amdhsa_group_segment_fixed_size 0", "  .amdhsa_kernarg_size 80", "  .amdhsa_user_sgpr_count 2",
            "  .amdhsa_user_sgpr_kernarg_segment_ptr 1", "  .amdhsa_system_sgpr_workgroup_id_x 1",
            "  .amdhsa_float_denorm_mode_32 3", "  .amdhsa_float_denorm_mode_16_64 3",
            ".end_amdhsa_kernel"]
    open(path, "w").write("\n".join(A.L) + "\n")

if __name__ == "__main__":
    import argparse
    ap = argparse.ArgumentParser()
    ap.add_argument("out")
    ap.add_argument("--D", type=int, default=16); ap.add_argument("--AL", type=int, default=None)
    ap.add_argument("--ns", type=int, default=12); ap.add_argument("--nomix", action="store_true")
    ap.add_argument("--stamps", action="store_true"); ap.add_argument("--cs", type=int, default=8)
    ap.add_argument("--nt", default="nt"); ap.add_argument("--small", default="")
    a = ap.parse_args()
    gen(a.out, D=a.D, AL=a.AL, nstatic=a.ns, mix=not a.nomix, stamps=a.stamps, cstride=a.cs, ntflag=a.nt, smallflag=a.small)
```

```python
import sys, struct, math
NAME = "standalone__kv_cache_quant_int4_int2_kv_with_per_channel_or_per_token_scales__sampling"
HDR = open("cdna_kernels/" + NAME + ".s.ref").read().split("; Override launch")[0]

def f32bits(x):
    return struct.unpack("<I", struct.pack("<f", x))[0]

def cost_of(s):
    op = s.split()[0]
    if op.startswith("v_mfma"): return 16
    if op in ("v_exp_f32", "v_rcp_f32"): return 8
    if op.startswith("v_"): return 4
    if op == "ds_write_b128": return 26
    if op == "ds_write_b64": return 10
    if op.startswith("ds_"): return 2
    if op == "s_barrier": return 40
    if op == "s_nop": return 4 * (int(s.split()[1]) + 1)
    return 2

class Stream:
    def __init__(self): self.I = []; self.lock = False
    def __call__(self, s, cost=None):
        self.I.append(dict(t="    " + s, c=(0 if self.lock == "rare" else (cost_of(s) if cost is None else cost)), ins=not self.lock))
    def label(self, s): self.I.append(dict(t=s + ":", c=0, ins=not self.lock))
    def c(self, s): self.I.append(dict(t="    ; " + s, c=0, ins=not self.lock))
    def mark(self, kind, k=None): self.I.append(dict(mark=kind, k=k, c=0, ins=not self.lock))

def gen(path, DL=20, AL=8, ns=12, stamps=False, nt="nt", qflag="nt", cstride=8, T=8.0, F=2, U=8, PF=8, uniform=True):
    dyn = ns < 16
    assert ns >= 4
    KROW = 288; JS = 544; OS = 2192
    LDS_MB = 0; LDS_TAB = 256; LDS_SC = LDS_TAB + 1024; LDS_K = LDS_SC + 1024; LDS_V = LDS_K + 128 * KROW
    LDS_TOTAL = LDS_V + 16 * OS
    WS_ML = 8 << 20; WS_CTR = 16 << 20; FLAG = 0x100
    vLane, vOff, vKW, vKR, vSW, vSR, vVW, vVR, vTK, vTV, vL4, vLin = range(12)
    vM, vL = 12, 13
    vAt, vFl, vMb, vMx = 14, 15, 16, 17
    vT2 = 18
    vKS, vKC = 20, 24; vKSr, vKZr, vVSr, vVZr = 28, 30, 32, 33
    vTmp = 34
    vKP = 40
    vVP = 48
    vO = 64; vS = 96; vRing = 128
    vSc = vS + 16
    aQ = 0; aSt = 16; NST = 12
    sK, sV, sSM, sQ, sDBG, sWS, sOUT = 8, 12, 16, 20, 24, 28, 32
    sPair, sSplit, sIt, sG, sT, sT2, sC, sThr, sDoff, sCoff, sDyn, sPost, sIni = range(36, 49)
    sO = 50
    sWave = 3
    srd = lambda r: f"s[{r}:{r+3}]"
    vr = lambda r, n: f"v[{r}:{r+n-1}]"
    ar = lambda r, n: f"a[{r}:{r+n-1}]"
    offs = [(jj // U) * (F * U) * 1024 + (jj % U) * 1024 for jj in range(16)]
    bases = sorted(set(o & ~4095 for o in offs)); assert len(bases) <= 8
    def item_text(k):
        jj = k % 16; o = offs[jj]
        return f"buffer_load_dwordx4 {vr(vRing+4*k,4)}, v{vOff}, {srd(sK if k < 16 else sV)}, s{sO+bases.index(o & ~4095)} offen offset:{o & 4095} {nt}"
    def set_tile(A):
        A(f"s_lshl_b32 s{sO}, s{sG}, 16")
        for i in range(1, len(bases)): A(f"s_add_u32 s{sO+i}, s{sO}, {bases[i]}")
        A(f"s_lshl_b32 s{sT}, s{sG}, 8")
    small_text = f"buffer_load_dword v{vL4}, {srd(sSM)}, s{sT} offen {nt} lds"

    A = Stream()
    def stamp(i):
        if stamps: A(f"s_memrealtime s[{84+2*i}:{85+2*i}]")
    A("s_cmp_ge_u32 s2, 256"); A("s_cbranch_scc1 L_end")
    stamp(0)
    A("s_load_dwordx16 s[64:79], s[0:1], 0")
    A("s_load_dwordx4 s[80:83], s[0:1], 64")
    A("v_lshrrev_b32 v1, 6, v0")
    A(f"v_and_b32 v{vLane}, 63, v0")
    A(f"v_readfirstlane_b32 s{sWave}, v1")
    A(f"s_lshr_b32 s{sPair}, s2, 2"); A(f"s_and_b32 s{sSplit}, s2, 3")
    c_, h_, m_, g_ = vTmp, vTmp + 1, vTmp + 2, vTmp + 3
    A(f"v_and_b32 v{c_}, 31, v{vLane}"); A(f"v_lshrrev_b32 v{h_}, 5, v{vLane}")
    A(f"v_and_b32 v{m_}, 15, v{vLane}"); A(f"v_lshrrev_b32 v{g_}, 4, v{vLane}")
    A(f"v_lshlrev_b32 v{vLin}, 4, v{vLane}"); A(f"v_lshlrev_b32 v{vL4}, 2, v{vLane}")
    A(f"s_and_b32 s{sT}, s{sWave}, {F-1}"); A(f"s_mul_i32 s{sT}, s{sT}, {U*1024}")
    A(f"s_andn2_b32 s{sT2}, s{sWave}, {F-1}"); A(f"s_lshl_b32 s{sT2}, s{sT2}, 14"); A(f"s_add_u32 s{sT}, s{sT}, s{sT2}")
    A(f"v_add_u32 v{vOff}, s{sT}, v{vLin}")
    A(f"v_lshlrev_b32 v{vTK}, 3, v{c_}"); A(f"v_add_u32 v{vTK}, {LDS_TAB}, v{vTK}")
    lg = (2 * U).bit_length() - 1
    A(f"v_lshrrev_b32 v{vTV}, {lg}, v{c_}"); A(f"v_mul_u32_u24 v{vTV}, {F*2*U}, v{vTV}")
    A(f"v_and_b32 v{vTmp+4}, {2*U-1}, v{c_}"); A(f"v_add_lshl_u32 v{vTV}, v{vTV}, v{vTmp+4}, 1")
    A(f"s_lshr_b32 s{sT}, s{sT}, 8"); A(f"s_add_u32 s{sT}, s{sT}, {LDS_TAB+512}"); A(f"v_add_u32 v{vTV}, s{sT}, v{vTV}")
    A(f"s_lshr_b32 s{sT}, s{sWave}, 1"); A(f"s_and_b32 s{sT2}, s{sWave}, 1")
    A(f"s_mul_i32 s{sT}, s{sT}, {32*KROW}"); A(f"s_mul_i32 s{sT2}, s{sT2}, {8*KROW}"); A(f"s_add_u32 s{sT}, s{sT}, s{sT2}")
    A(f"v_mul_u32_u24 v{vKW}, {4*KROW}, v{h_}"); A(f"v_lshl_add_u32 v{vKW}, v{c_}, 3, v{vKW}"); A(f"v_add_u32 v{vKW}, s{sT}, v{vKW}")
    A(f"v_mul_u32_u24 v{vKR}, {KROW}, v{m_}"); A(f"v_lshl_add_u32 v{vKR}, v{g_}, 4, v{vKR}")
    A(f"s_mul_i32 s{sT}, s{sWave}, {2*OS}"); A(f"s_add_u32 s{sT}, s{sT}, {LDS_V}")
    A(f"v_mul_u32_u24 v{vVW}, {OS}, v{h_}"); A(f"v_lshl_add_u32 v{vVW}, v{c_}, 4, v{vVW}"); A(f"v_add_u32 v{vVW}, s{sT}, v{vVW}")
    A(f"v_mul_u32_u24 v{vVR}, {OS}, v{g_}"); A(f"v_and_b32 v{vTmp+4}, 3, v{m_}"); A(f"v_mul_u32_u24 v{vTmp+4}, {JS}, v{vTmp+4}")
    A(f"v_lshrrev_b32 v{vTmp+5}, 2, v{m_}"); A(f"v_lshlrev_b32 v{vTmp+5}, 7, v{vTmp+5}")
    A(f"v_add3_u32 v{vVR}, v{vVR}, v{vTmp+4}, v{vTmp+5}"); A(f"v_add_u32 v{vVR}, {LDS_V}, v{vVR}")
    A(f"s_lshl_b32 s{sT}, s{sWave}, 8"); A(f"s_add_u32 s{sT2}, s{sT}, {LDS_SC}")
    A(f"v_and_b32 v{vSW}, 1, v{c_}"); A(f"v_lshlrev_b32 v{vSW}, 7, v{vSW}")
    A(f"v_lshrrev_b32 v{vTmp+4}, 1, v{c_}"); A(f"v_lshl_add_u32 v{vSW}, v{vTmp+4}, 3, v{vSW}"); A(f"v_add_u32 v{vSW}, s{sT2}, v{vSW}")
    A(f"v_lshlrev_b32 v{vSR}, 7, v{h_}"); A(f"v_add_u32 v{vSR}, s{sT2}, v{vSR}")
    A(f"s_add_u32 s{sT}, s{sT}, {LDS_TAB}"); A(f"s_mov_b32 m0, s{sT}")
    if stamps: A(f"s_mov_b32 s98, s{sT}")
    A(f"v_lshlrev_b32 v{vTmp+4}, 8, v{m_}"); A(f"v_lshl_add_u32 v{vTmp+4}, v{g_}, 4, v{vTmp+4}")
    A(f"v_mov_b32 v{vMb}, {LDS_MB}")
    A("s_waitcnt lgkmcnt(0)")
    def mk(r, p, shift, size):
        A(f"s_lshl_b32 s{sT}, s{sPair}, {shift}")
        A(f"s_add_u32 s{r}, s{p}, s{sT}"); A(f"s_addc_u32 s{r+1}, s{p+1}, 0")
        A(f"s_mov_b32 s{r+2}, {size}"); A(f"s_mov_b32 s{r+3}, 0x20000")
    A.c("wave w streams scale/zero array w (ks, kz, vs, vz) into the LDS table")
    A(f"s_cmp_eq_u32 s{sWave}, 1"); A("s_cselect_b64 s[4:5], s[72:73], s[70:71]")
    A(f"s_cmp_eq_u32 s{sWave}, 2"); A("s_cselect_b64 s[4:5], s[74:75], s[4:5]")
    A(f"s_cmp_eq_u32 s{sWave}, 3"); A("s_cselect_b64 s[4:5], s[76:77], s[4:5]")
    mk(sSM, 4, 14, 1 << 14); mk(sK, 66, 22, 1 << 22); mk(sV, 68, 22, 1 << 22); mk(sQ, 64, 14, 1 << 14)
    A(f"s_mov_b32 s{sWS}, s82"); A(f"s_mov_b32 s{sWS+1}, s83"); A(f"s_mov_b32 s{sWS+2}, 0x40000000"); A(f"s_mov_b32 s{sWS+3}, 0x20000")
    A(f"s_lshl_b32 s{sCoff}, s{sPair}, {cstride}"); A(f"s_add_u32 s{sCoff}, s{sCoff}, {WS_CTR}")
    A(f"s_or_b32 s{sIni}, s{sSplit}, s{sWave}")
    if dyn:
        A.c("wave 0 of split 0 zeroes this pair's ticket counter in d_ws")
        A(f"s_cmp_eq_u32 s{sIni}, 0"); A("s_cbranch_scc0 L_noinit")
        A("s_mov_b64 exec, 1"); A(f"v_mov_b32 v{vFl}, 0")
        A(f"buffer_atomic_swap v{vFl}, off, {srd(sWS)}, s{sCoff} sc0")
        A("s_mov_b64 exec, -1")
        A.label("L_noinit")
    A(f"s_mov_b32 s{sG}, s{sSplit}")
    set_tile(A)
    A(small_text)
    A(f"s_lshl_b32 s{sT}, s{sWave}, 12")
    for s4 in range(4): A(f"buffer_load_dwordx4 {ar(aQ+4*s4,4)}, v{vTmp+4}, {srd(sQ)}, s{sT} offen offset:{s4*64} {qflag}")
    for k in range(DL): A(item_text(k))
    mk(sOUT, 78, 14, 1 << 14)
    A(f"s_mov_b32 s{sDBG}, s80"); A(f"s_mov_b32 s{sDBG+1}, s81"); A(f"s_mov_b32 s{sDBG+2}, 256"); A(f"s_mov_b32 s{sDBG+3}, 0x20000")
    A(f"s_lshl_b32 s{sDoff}, s{sPair}, 2")
    A(f"s_mov_b32 s{sC}, {hex(f32bits(math.log2(math.e) / math.sqrt(128.0)))}")
    A(f"s_mov_b32 s{sThr}, {hex(f32bits(T))}")
    A(f"s_mov_b32 s{sDyn}, 0"); A(f"s_mov_b32 s{sPost}, 0"); A(f"s_mov_b32 s{sIt}, 0")
    for i in range(32): A(f"v_mov_b32 v{vO+i}, 0")
    A(f"v_mov_b32 v{vM}, 0xf149f2ca"); A(f"v_mov_b32 v{vL}, 0"); A(f"v_mov_b32 v{vAt}, 0x7fff")
    def table_reads(A):
        A(f"ds_read_b64 {vr(vKSr,2)}, v{vTK}"); A(f"ds_read_b64 {vr(vKZr,2)}, v{vTK} offset:256")
        A(f"ds_read_u16 v{vVSr}, v{vTV}"); A(f"ds_read_u16 v{vVZr}, v{vTV} offset:256")
    A(f"s_waitcnt vmcnt({4+DL})"); A("s_barrier")
    table_reads(A)
    pro = A

    B = Stream()
    def deq(r, s, c): B(f"v_fma_mix_f32 v{r}, v{r}, v{s}, v{c} op_sel_hi:[1,0,0]")
    B("s_waitcnt lgkmcnt(0)")
    B.c("K: S = ks*2^24, C = -kz*ks per channel ; V: the same per token, broadcast through LDS")
    for p in range(2):
        B(f"v_lshlrev_b32 v{vKS+2*p}, 16, v{vKSr+p}"); B(f"v_and_b32 v{vKS+2*p+1}, 0xffff0000, v{vKSr+p}")
        B(f"v_lshlrev_b32 v{vKC+2*p}, 16, v{vKZr+p}"); B(f"v_and_b32 v{vKC+2*p+1}, 0xffff0000, v{vKZr+p}")
    B(f"v_lshlrev_b32 v{vT2}, 16, v{vVSr}"); B(f"v_lshlrev_b32 v{vT2+1}, 16, v{vVZr}")
    for j in range(4): B(f"v_mul_f32 v{vKC+j}, -v{vKC+j}, v{vKS+j}")
    B(f"v_mul_f32 v{vT2+1}, -v{vT2+1}, v{vT2}")
    for j in range(4): B(f"v_mul_f32 v{vKS+j}, 0x4b800000, v{vKS+j}")
    B(f"v_mul_f32 v{vT2}, 0x4b800000, v{vT2}")
    B(f"ds_write_b64 v{vSW}, {vr(vT2,2)}")
    for k in range(16):
        r = vRing + 4 * k; t = vKP + 2 * (k % 4)
        B.mark("wait", k)
        for j in range(4): deq(r + j, vKS + j, vKC + j)
        B(f"v_cvt_pk_bf16_f32 v{t}, v{r}, v{r+1}"); B(f"v_cvt_pk_bf16_f32 v{t+1}, v{r+2}, v{r+3}")
        B.mark("free", k)
        B(f"ds_write_b64 v{vKW}, {vr(t,2)} offset:{LDS_K + ((k//8)*64 + ((k//4)%2)*16 + k%4)*KROW}")
    if dyn:
        B(f"s_cmp_lg_u32 s{sPost}, 0")
        B.lock = True
        B("s_cbranch_scc0 L_nopost")
        B.mark("postwait")
        B(f"ds_write_b32 v{vL4}, v{vAt} offset:{LDS_MB}")
        B.label("L_nopost")
        B.lock = False
    B("s_waitcnt lgkmcnt(0)"); B("s_barrier")
    B.c("S^T = K Q^T")
    B(f"ds_read_b32 v{vTmp}, v{vMb}")
    order = []
    for bp in range(4):
        for s4 in range(4):
            for u in range(2): order.append((2 * bp + u, s4))
    def kread(i):
        b, s4 = order[i]
        B(f"ds_read_b128 {ar(aSt+4*(i%NST),4)}, v{vKR} offset:{LDS_K + b*16*KROW + s4*64}")
    for i in range(PF): kread(i)
    for i in range(32):
        b, s4 = order[i]
        B(f"s_waitcnt lgkmcnt({min(PF-1, 31-i)})")
        cc = "0" if s4 == 0 else vr(vS+4*b, 4)
        B(f"v_mfma_f32_16x16x32_bf16 {vr(vS+4*b,4)}, {ar(aSt+4*(i%NST),4)}, {ar(aQ+4*s4,4)}, {cc}")
        if i + PF < 32: kread(i + PF)
        if i == 0:
            B.c("choose the next token group")
            B(f"s_add_u32 s{sIt}, s{sIt}, 1")
            B.lock = True
            B(f"s_lshl_b32 s{sG}, s{sIt}, 2"); B(f"s_add_u32 s{sG}, s{sG}, s{sSplit}")
            if dyn:
                B(f"s_cmp_lt_u32 s{sIt}, {ns}"); B("s_cbranch_scc0 L_dynpick")
                B(f"s_cmp_eq_u32 s{sWave}, 0"); B("s_cbranch_scc1 L_w0")
                B.label("L_picked")
            B.mark("decided")
            B.lock = False
    B("s_nop 3")
    B(f"v_max3_f32 v{vMx}, v{vS}, v{vS+1}, v{vS+2}"); B(f"v_max3_f32 v{vTmp+1}, v{vS+3}, v{vS+4}, v{vS+5}")
    for i in range(6, 30, 4):
        B(f"v_max3_f32 v{vMx}, v{vMx}, v{vS+i}, v{vS+i+1}"); B(f"v_max3_f32 v{vTmp+1}, v{vTmp+1}, v{vS+i+2}, v{vS+i+3}")
    B(f"v_max3_f32 v{vMx}, v{vMx}, v{vS+30}, v{vS+31}"); B(f"v_max_f32 v{vMx}, v{vMx}, v{vTmp+1}")
    B(f"v_fma_f32 v{vTmp+1}, v{vMx}, s{sC}, -v{vM}")
    B(f"v_cmp_lt_f32 vcc, s{sThr}, v{vTmp+1}")
    B.lock = True
    B("s_cbranch_vccnz L_rescale")
    B.label("L_rescaled")
    B.lock = False
    for half in range(2):
        b = vS + 16 * half
        for i in range(16): B(f"v_fma_f32 v{b+i}, v{b+i}, s{sC}, -v{vM}")
        for i in range(16): B(f"v_exp_f32 v{b+i}, v{b+i}")
        B(f"v_add_f32 v{vTmp+1}, v{b}, v{b+1}"); B(f"v_add_f32 v{vTmp+2}, v{b+2}, v{b+3}")
        for i in range(4, 16, 2):
            B(f"v_add_f32 v{vTmp+1}, v{vTmp+1}, v{b+i}"); B(f"v_add_f32 v{vTmp+2}, v{vTmp+2}, v{b+i+1}")
        B(f"v_add_f32 v{vL}, v{vL}, v{vTmp+1}"); B(f"v_add_f32 v{vL}, v{vL}, v{vTmp+2}")
        for i in range(8): B(f"v_cvt_pk_bf16_f32 v{vS+8*half+i}, v{b+2*i}, v{b+2*i+1}")
    for i in range(4): B(f"ds_read_b128 {vr(vSc+4*i,4)}, v{vSR} offset:{i*16}")
    def vphase(s):
        for n8 in range(8):
            n = 8 * s + n8; k = 16 + n; r = vRing + 4 * k; sc = vSc + 2 * n8
            B.mark("wait", k)
            if s == 0 and n8 % 2 == 0: B("s_waitcnt lgkmcnt(3)")
            for j in range(4): deq(r + j, sc, sc + 1)
            if n8 % 2 == 1:
                if s == 0: B(f"ds_read_b128 {vr(vSc+4*(n8//2),4)}, v{vSR} offset:{64 + (n8//2)*16}")
                for j in range(4): B(f"v_cvt_pk_bf16_f32 v{vVP+4*j+n8//2}, v{r-4+j}, v{r+j}")
                B.mark("free", k - 1); B.mark("free", k)
        for j in range(4): B(f"ds_write_b128 v{vVW}, {vr(vVP+4*j,4)} offset:{s*8*OS + j*JS}")
    def pv(s, extra=0):
        lst = [(2 * s + kk, db) for kk in range(2) for db in range(8)]
        def vread(i):
            ks, db = lst[i]
            B(f"ds_read_b128 {ar(aSt+4*(i%NST),4)}, v{vVR} offset:{ks*4*OS + db*16}")
        for i in range(PF): vread(i)
        for i in range(16):
            ks, db = lst[i]
            younger = min(PF - 1, 15 - i)
            if extra and i + PF >= 16 + 1: younger += extra
            B(f"s_waitcnt lgkmcnt({younger})")
            B(f"v_mfma_f32_16x16x32_bf16 {vr(vO+4*db,4)}, {ar(aSt+4*(i%NST),4)}, {vr(vS+4*ks,4)}, {vr(vO+4*db,4)}")
            if i + PF < 16: vread(i + PF)
            if extra and i + PF == 16: table_reads(B)
    vphase(0)
    B("s_waitcnt lgkmcnt(0)"); B("s_barrier")
    pv(0)
    vphase(1)
    B.mark("smallwait")
    B("s_waitcnt lgkmcnt(0)"); B("s_barrier")
    pv(1, extra=4)

    I = B.I
    tot = sum(x["c"] for x in I)
    pos = lambda kind, k=None: next(i for i, x in enumerate(I) if x.get("mark") == kind and x.get("k") == k)
    cum = []; a = 0
    for x in I: cum.append(a); a += x["c"]
    place = []
    prev = 0
    for x in range(32):
        y = x + DL
        t = (x + 0.3) * tot / 32
        p = next((i for i in range(len(I)) if cum[i] >= t), len(I) - 1)
        p = max(p, prev)
        if y >= 32: p = max(p, pos("free", y - 32) + 1, pos("decided") + 1)
        while not I[p]["ins"]: p += 1
        if y < 32: assert p < pos("wait", y), (x, y)
        place.append((p, y)); prev = p
    ev = []
    for p, y in place:
        if y == 32: ev.append((p, "small", None))
        ev.append((p, "item", y % 32))
    def younger(kind, item, at):
        j = next(i for i, e in enumerate(ev) if e[1] == kind and e[2] == item)
        nb = sum(1 for e in ev if e[0] <= at)
        return (nb - 1 - j) % len(ev)
    at_ev = None
    if dyn:
        nb = sum(1 for e in ev if e[0] <= pos("postwait"))
        at_ev = (nb - AL) % len(ev)
    out = []
    ei = 0
    info = []
    for i, x in enumerate(I):
        while ei < len(ev) and ev[ei][0] == i:
            if ei == at_ev:
                out += [f"    s_cmp_lg_u32 s{sDyn}, 0", "    s_cbranch_scc0 L_noat", "    s_mov_b64 exec, 1", f"    v_mov_b32 v{vAt}, 1",
                        f"    buffer_atomic_add v{vAt}, off, {srd(sWS)}, s{sCoff} sc0", "    s_mov_b64 exec, -1", "L_noat:"]
            if ev[ei][1] == "small":
                S2 = Stream(); set_tile(S2)
                S2(f"s_cmp_lt_u32 s{sG}, 64"); S2(f"s_cselect_b32 s{sK+2}, 0x400000, 0"); S2(f"s_cselect_b32 s{sV+2}, 0x400000, 0"); S2(f"s_cselect_b32 s{sSM+2}, 0x4000, 0"); S2(f"s_cselect_b32 s{sDyn}, s{sDyn}, 0")
                S2(small_text)
                out += [z["t"] for z in S2.I]
            else:
                out.append("    " + item_text(ev[ei][2]))
            ei += 1
        if "mark" in x:
            if x["mark"] == "wait":
                n = younger("item", x["k"], i); info.append(n); out.append(f"    s_waitcnt vmcnt({n})")
            elif x["mark"] == "smallwait": out.append(f"    s_waitcnt vmcnt({younger('small', None, i)})")
            elif x["mark"] == "postwait": out.append(f"    s_waitcnt vmcnt({AL})")
        else: out.append(x["t"])
    assert ei == len(ev)
    print("body cost", tot, "vmcnt per item", info, file=sys.stderr)

    E = Stream(); A = E
    E(f"s_cmp_lt_u32 s{sG}, 64"); E("s_cbranch_scc1 L_loop")
    def stampE(i):
        if stamps: E(f"s_memrealtime s[{84+2*i}:{85+2*i}]")
    stampE(1)
    E.c("row sum over the four lane groups")
    for sw in ("v_permlane32_swap_b32", "v_permlane16_swap_b32"):
        E(f"v_mov_b32 v{vTmp}, v{vL}"); E("s_nop 1"); E(f"{sw} v{vTmp}, v{vL}"); E("s_nop 1"); E(f"v_add_f32 v{vL}, v{vL}, v{vTmp}")
    stampE(2)
    E.c("publish this workgroup's partial (write-through), then take an arrival ticket")
    E(f"s_lshl_b32 s{sT}, s2, 15"); E(f"s_lshl_b32 s{sT2}, s{sWave}, 13"); E(f"s_add_u32 s{sT}, s{sT}, s{sT2}")
    E(f"s_add_u32 s{sT2}, s{sT}, 4096")
    for q in range(8):
        E(f"buffer_store_dwordx4 {vr(vO+4*q,4)}, v{vLin}, {srd(sWS)}, s{sT if q < 4 else sT2} offen offset:{(q%4)*1024} sc0 sc1")
    E(f"v_lshlrev_b32 v{vTmp+4}, 3, v{vLane}")
    E(f"s_lshr_b32 s{sT}, s{sT}, 4"); E(f"s_add_u32 s{sT}, s{sT}, {WS_ML}")
    E(f"buffer_store_dwordx2 {vr(vM,2)}, v{vTmp+4}, {srd(sWS)}, s{sT} offen sc0 sc1")
    E("s_waitcnt vmcnt(0) lgkmcnt(0)"); E("s_barrier")
    stampE(3)
    E(f"s_cmp_eq_u32 s{sWave}, 0"); E("s_cbranch_scc0 L_noarr")
    E("s_mov_b64 exec, 1"); E(f"v_mov_b32 v{vAt}, 1")
    E(f"buffer_atomic_add v{vAt}, off, {srd(sDBG)}, s{sDoff} sc0")
    E("s_waitcnt vmcnt(0)")
    E(f"ds_write_b32 v{vMb}, v{vAt}")
    E("s_mov_b64 exec, -1")
    E("s_waitcnt lgkmcnt(0)")
    E.label("L_noarr")
    E("s_barrier")
    E(f"ds_read_b32 v{vAt}, v{vMb}")
    E("s_waitcnt lgkmcnt(0)")
    E(f"v_readfirstlane_b32 s{sT}, v{vAt}")
    E("s_nop 3")
    stampE(4)
    E(f"s_and_b32 s{sT}, s{sT}, 0xff"); E(f"s_cmp_eq_u32 s{sT}, 3"); E("s_cbranch_scc0 L_done")
    E.c("last arriver: merge the other three partials and write the output")
    ml = 20; R = vRing
    for x in range(1, 4):
        E(f"s_add_u32 s{sT}, s{sSplit}, {x}"); E(f"s_and_b32 s{sT}, s{sT}, 3")
        E(f"s_lshl_b32 s{sT2}, s{sPair}, 2"); E(f"s_add_u32 s{sT}, s{sT}, s{sT2}")
        E(f"s_lshl_b32 s{sT}, s{sT}, 15"); E(f"s_lshl_b32 s{sT2}, s{sWave}, 13"); E(f"s_add_u32 s{sT}, s{sT}, s{sT2}")
        E(f"s_lshr_b32 s{sT2}, s{sT}, 4"); E(f"s_add_u32 s{sT2}, s{sT2}, {WS_ML}")
        E(f"buffer_load_dwordx2 {vr(ml+2*(x-1),2)}, v{vTmp+4}, {srd(sWS)}, s{sT2} offen sc0 sc1")
        E(f"s_add_u32 s{sT2}, s{sT}, 4096")
        for q in range(8):
            E(f"buffer_load_dwordx4 {vr(R+(x-1)*32+4*q,4)}, v{vLin}, {srd(sWS)}, s{sT if q < 4 else sT2} offen offset:{(q%4)*1024} sc0 sc1")
    E(f"v_and_b32 v{vTmp}, 15, v{vLane}"); E(f"v_lshrrev_b32 v{vTmp+1}, 4, v{vLane}")
    E(f"v_lshlrev_b32 v{vTmp}, 8, v{vTmp}"); E(f"v_lshl_add_u32 v{vTmp}, v{vTmp+1}, 6, v{vTmp}")
    E(f"s_lshl_b32 s{sT}, s{sWave}, 12")
    E("s_waitcnt vmcnt(8)")
    g = 28; MS = 32
    E(f"v_max3_f32 v{MS}, v{vM}, v{ml}, v{ml+2}"); E(f"v_max_f32 v{MS}, v{MS}, v{ml+4}")
    E(f"v_sub_f32 v{g}, v{vM}, v{MS}")
    for x in range(1, 4): E(f"v_sub_f32 v{g+x}, v{ml+2*(x-1)}, v{MS}")
    for x in range(4): E(f"v_exp_f32 v{g+x}, v{g+x}")
    E("s_nop 0")
    E(f"v_mul_f32 v{vL}, v{vL}, v{g}")
    for x in range(1, 4): E(f"v_fmac_f32 v{vL}, v{ml+2*(x-1)+1}, v{g+x}")
    E(f"v_rcp_f32 v{vL}, v{vL}")
    E("s_nop 0")
    for x in range(4): E(f"v_mul_f32 v{g+x}, v{g+x}, v{vL}")
    for i in range(32): E(f"v_mul_f32 v{vO+i}, v{vO+i}, v{g}")
    for x in range(1, 4):
        if x == 3: E("s_waitcnt vmcnt(0)")
        for i in range(32): E(f"v_fmac_f32 v{vO+i}, v{R+(x-1)*32+i}, v{g+x}")
    for i in range(16): E(f"v_cvt_pk_bf16_f32 v{vS+i}, v{vO+2*i}, v{vO+2*i+1}")
    for u in range(4): E(f"buffer_store_dwordx4 {vr(vS+4*u,4)}, v{vTmp}, {srd(sOUT)}, s{sT} offen offset:{u*16}")
    E.label("L_done")
    if stamps:
        E("s_waitcnt vmcnt(0)")
        stampE(5)
        E(f"s_lshl_b32 s{sT}, s2, 2"); E(f"s_add_u32 s{sT}, s{sT}, s{sWave}"); E(f"s_lshl_b32 s{sT2}, s{sT}, 4")
        E(f"s_lshl_b32 s4, s{sT}, 8"); E("s_add_u32 s4, s4, 0x22000000")
        E(f"s_add_u32 s{sT2}, s{sT2}, 0x20000000")
        E(f"s_lshl_b32 s{sT}, s{sT}, 6"); E(f"s_add_u32 s{sT}, s{sT}, 0x21000000")
        E("s_waitcnt lgkmcnt(0)")
        E(f"v_accvgpr_read_b32 v60, a95")
        for i in range(12): E(f"v_mov_b32 v{16+i}, s{84+i}")
        E(f"v_mov_b32 v28, s{sIt}"); E("s_getreg_b32 s5, hwreg(HW_REG_XCC_ID)"); E("v_mov_b32 v29, s5"); E("v_mov_b32 v30, 0"); E("v_mov_b32 v31, 0")
        E("v_mov_b32 v32, s84"); E("v_mov_b32 v33, s85"); E("v_mov_b32 v34, s94"); E("v_mov_b32 v35, s95")
        E(f"buffer_store_dword v60, v{vL4}, {srd(sWS)}, s4 offen")
        E("s_mov_b64 exec, 1")
        E(f"buffer_store_dwordx4 v[32:35], off, {srd(sWS)}, s{sT2}")
        for i in range(4): E(f"buffer_store_dwordx4 v[{16+4*i}:{19+4*i}], off, {srd(sWS)}, s{sT} offset:{16*i}")
    E.label("L_end")
    E("s_endpgm")
    E.c("rare path: the running max rose past the threshold -> move the reference to the true running max")
    E.label("L_rescale")
    for sw in ("v_permlane32_swap_b32", "v_permlane16_swap_b32"):
        E(f"v_mov_b32 v{vTmp+1}, v{vMx}"); E("s_nop 1"); E(f"{sw} v{vTmp+1}, v{vMx}"); E("s_nop 1"); E(f"v_max_f32 v{vMx}, v{vMx}, v{vTmp+1}")
    E(f"v_mul_f32 v{vMx}, s{sC}, v{vMx}"); E(f"v_max_f32 v{vMx}, v{vMx}, v{vM}")
    E(f"v_sub_f32 v{vTmp+1}, v{vM}, v{vMx}"); E(f"v_exp_f32 v{vTmp+1}, v{vTmp+1}"); E(f"v_mov_b32 v{vM}, v{vMx}")
    E(f"v_mul_f32 v{vL}, v{vL}, v{vTmp+1}")
    for i in range(32): E(f"v_mul_f32 v{vO+i}, v{vO+i}, v{vTmp+1}")
    E("s_branch L_rescaled")
    if dyn:
        E.label("L_dynpick")
        E(f"v_readfirstlane_b32 s{sG}, v{vTmp}"); E("s_nop 3"); E(f"s_add_u32 s{sG}, s{sG}, {4*ns}"); E("s_branch L_picked")
        E.label("L_w0")
        E(f"s_cmp_eq_u32 s{sIt}, 1"); E("s_cbranch_scc1 L_setflag")
        E(f"s_cmp_eq_u32 s{sIt}, {ns-2}"); E("s_cbranch_scc1 L_ldflag")
        E(f"s_cmp_eq_u32 s{sIt}, {ns-1}"); E("s_cbranch_scc0 L_picked")
        E(f"v_readfirstlane_b32 s{sDyn}, v{vFl}"); E(f"s_mov_b32 s{sPost}, 1"); E("s_nop 3")
        E(f"s_and_b32 s{sDyn}, s{sDyn}, {FLAG}")
        E(f"s_cmp_eq_u32 s{sIni}, 0"); E(f"s_cselect_b32 s{sDyn}, 1, s{sDyn}")
        E("s_branch L_picked")
        E.label("L_setflag")
        E(f"s_cmp_eq_u32 s{sIni}, 0"); E("s_cbranch_scc0 L_picked")
        E("s_mov_b64 exec, 1"); E(f"v_mov_b32 v{vFl}, {FLAG}")
        E(f"buffer_atomic_or v{vFl}, off, {srd(sDBG)}, s{sDoff}")
        E("s_mov_b64 exec, -1"); E("s_branch L_picked")
        E.label("L_ldflag")
        E(f"buffer_load_dword v{vFl}, off, {srd(sDBG)}, s{sDoff} sc1")
        E("s_branch L_picked")

    L = [HDR.rstrip(), f"; @launch grid=(256,1,1) block=(256,1,1) lds={LDS_TOTAL}", '.amdgcn_target "amdgcn-amd-amdhsa--gfx950"',
         ".text", f".globl {NAME}_kernel", ".p2align 8", f".type {NAME}_kernel,@function", f"{NAME}_kernel:"]
    L += [x["t"] for x in pro.I]
    L.append("L_loop:")
    if stamps:
        L += ["    s_memrealtime s[96:97]", f"    s_mov_b32 m0, s{sIt}", "    v_accvgpr_read_b32 v39, a95", "    s_waitcnt lgkmcnt(0)", "    v_writelane_b32 v39, s96, m0",
              "    s_mov_b32 m0, s98", "    v_accvgpr_write_b32 a95, v39"]
    L += out
    L += [x["t"] for x in E.I]
    L += ['.section .rodata,"a"', ".p2align 6", f".amdhsa_kernel {NAME}_kernel",
          "  .amdhsa_next_free_vgpr 352", "  .amdhsa_next_free_sgpr 102", "  .amdhsa_accum_offset 256",
          "  .amdhsa_group_segment_fixed_size 0", "  .amdhsa_kernarg_size 80", "  .amdhsa_user_sgpr_count 2",
          "  .amdhsa_user_sgpr_kernarg_segment_ptr 1", "  .amdhsa_system_sgpr_workgroup_id_x 1",
          "  .amdhsa_float_denorm_mode_32 3", "  .amdhsa_float_denorm_mode_16_64 3", ".end_amdhsa_kernel"]
    open(path, "w").write("\n".join(L) + "\n")

if __name__ == "__main__":
    import argparse
    ap = argparse.ArgumentParser()
    ap.add_argument("out")
    ap.add_argument("--DL", type=int, default=20); ap.add_argument("--AL", type=int, default=8)
    ap.add_argument("--ns", type=int, default=12); ap.add_argument("--stamps", action="store_true")
    ap.add_argument("--cs", type=int, default=8); ap.add_argument("--nt", default="nt"); ap.add_argument("--q", default="nt")
    ap.add_argument("--F", type=int, default=2); ap.add_argument("--U", type=int, default=8)
    a = ap.parse_args()
    gen(a.out, DL=a.DL, AL=a.AL, ns=a.ns, stamps=a.stamps, cstride=a.cs, nt=a.nt, qflag=a.q, F=a.F, U=a.U)
```

```python
import sys, struct, math
NAME = "standalone__kv_cache_quant_int4_int2_kv_with_per_channel_or_per_token_scales__sampling"
HDR = open("cdna_kernels/" + NAME + ".s.ref").read().split("; Override launch")[0]

def f32bits(x):
    return struct.unpack("<I", struct.pack("<f", x))[0]

def cost_of(s):
    op = s.split()[0]
    if op.startswith("v_mfma"): return 16
    if op in ("v_exp_f32", "v_rcp_f32"): return 8
    if op.startswith("v_"): return 4
    if op == "ds_write_b128": return 26
    if op == "ds_write_b64": return 10
    if op.startswith("ds_"): return 2
    if op == "s_barrier": return 40
    if op == "s_nop": return 4 * (int(s.split()[1]) + 1)
    return 2

class Stream:
    def __init__(self): self.I = []; self.lock = False
    def __call__(self, s, cost=None):
        self.I.append(dict(t="    " + s, c=(cost_of(s) if cost is None else cost), ins=not self.lock))
    def label(self, s): self.I.append(dict(t=s + ":", c=0, ins=not self.lock))
    def c(self, s): self.I.append(dict(t="    ; " + s, c=0, ins=not self.lock))
    def mark(self, kind, k=None): self.I.append(dict(mark=kind, k=k, c=0, ins=not self.lock))
    def text(self): return [x["t"] for x in self.I]

def gen(path, AL=8, ns=13, npf=12, nh=4, stamps=False, nt="sc0 sc1 nt", smf="nt", qflag="", cstride=8, T=8.0, PF=8,
        mix=0x11111111, nK1=9, vtail=0, noclear=False, itst=True, clrf='sc0 sc1', clrfirst=False, clrn=5):
    assert 9 <= ns <= 15 and 0 <= npf < ns and npf <= 15
    pool = 64 - 4 * ns; nf = pool - nh; nt_all = nf + 2 * nh
    assert nf >= 0
    KROW = 288; JS = 544; OS = 2192
    TABW = 17 * 256; DSLOT = 16 * 256
    LDS_MB = 0; LDS_SC = 256; LDS_TAB = LDS_SC + 1024; LDS_K = LDS_TAB + 4 * TABW; LDS_V = LDS_K + 128 * KROW
    LDS_TOTAL = LDS_V + 16 * OS
    assert LDS_K % 256 == 0 and LDS_K + 128 * KROW < 65536
    WS_SLOT = 1 << 20; WS_CTR = 16 << 20; FLAG = 0x100
    vLane, vOff, vKW, vKR, vSW, vSR, vVW, vVR, vTK, vTV, vL4, vLin = range(12)
    vM, vL, vAt, vFl = 12, 13, 14, 15
    vMb, vMx, vT2 = 16, 17, 18
    vKS, vKC = 20, 24; vKSr, vKZr, vVSr, vVZr = 28, 30, 32, 33
    vTmp = 34
    vMO = 39
    vKP = 40; vVP = 48; vO = 64; vS = 96; vRing = 128; vQ = 192; vSt = 208; NST = 12
    vSc = vS + 16
    sX, sY, sSM, sQ, sDBG, sWS, sOUT = 8, 12, 16, 20, 24, 28, 32
    sKb, sVb = 36, 38
    sPair, sSplit, sI, sJ, sG, sT, sT2, sC, sThr, sDoff, sCoff, sDyn, sIni, sKsl, sVsl, sHalf, sEnd, sWb, sH0 = range(40, 59)
    sO = 64
    sWave = 3
    srd = lambda r: f"s[{r}:{r+3}]"
    vr = lambda r, n: f"v[{r}:{r+n-1}]"
    def item_text(k):
        so, imm = (sO + k, 0) if k < 4 else (sO + 3 + k // 4, (k % 4) * 1024)
        return f"buffer_load_dwordx4 {vr(vRing+4*k,4)}, v{vOff}, {srd(sX if k < 8 else sY)}, s{so} offen offset:{imm} {nt}"
    def set_offs(A):
        for i, d in enumerate((1024, 2048, 3072, 4096, 16384, 20480)): A(f"s_add_u32 s{sO+1+i}, s{sO}, {d}")
    def set_static(A, sidx):
        A(f"s_lshl_b32 s{sO}, s{sidx}, 2"); A(f"s_add_u32 s{sO}, s{sO}, s{sSplit}"); A(f"s_lshl_b32 s{sO}, s{sO}, 16"); set_offs(A)
    def set_base(A, b):
        A(f"s_mov_b64 s[{sX}:{sX+1}], s[{b}:{b+1}]"); A(f"s_mov_b64 s[{sY}:{sY+1}], s[{b}:{b+1}]")

    A = Stream()
    A("s_cmp_ge_u32 s2, 256"); A("s_cbranch_scc1 L_end")
    if stamps: A("s_memrealtime s[84:85]")
    A("s_load_dwordx16 s[64:79], s[0:1], 0")
    A("s_load_dwordx4 s[80:83], s[0:1], 64")
    A("v_lshrrev_b32 v1, 6, v0")
    A(f"v_and_b32 v{vLane}, 63, v0")
    A(f"v_readfirstlane_b32 s{sWave}, v1")
    if mix:
        A.c("which (batch, kv head) pair / split this workgroup takes: a bijection of the id (placement affects speed only)")
        A(f"s_lshr_b32 s{sT}, s2, 3"); A(f"s_and_b32 s{sT}, s{sT}, 7"); A(f"s_lshl_b32 s{sT}, s{sT}, 2")
        A(f"s_lshr_b32 s{sT}, {hex(mix)}, s{sT}"); A(f"s_and_b32 s{sT}, s{sT}, 3"); A(f"s_and_b32 s{sT}, s{sT}, s2")
        A(f"s_bcnt1_i32_b32 s{sT}, s{sT}"); A(f"s_and_b32 s{sT}, s{sT}, 1"); A(f"s_lshl_b32 s{sT}, s{sT}, 2"); A(f"s_xor_b32 s2, s2, s{sT}")
    A(f"s_lshr_b32 s{sPair}, s2, 2"); A(f"s_and_b32 s{sSplit}, s2, 3")
    c_, h_, m_, g_ = vKS, vKS + 1, vKS + 2, vKS + 3
    t0, t1, vQo, vSo = vKC, vKC + 1, vKC + 2, vKC + 3
    A(f"v_and_b32 v{c_}, 31, v{vLane}"); A(f"v_lshrrev_b32 v{h_}, 5, v{vLane}")
    A(f"v_and_b32 v{m_}, 15, v{vLane}"); A(f"v_lshrrev_b32 v{g_}, 4, v{vLane}")
    A(f"v_lshlrev_b32 v{vLin}, 4, v{vLane}"); A(f"v_lshlrev_b32 v{vL4}, 2, v{vLane}")
    A(f"s_and_b32 s{sT}, s{sWave}, 1"); A(f"s_lshl_b32 s{sT}, s{sT}, 13")
    A(f"s_lshr_b32 s{sT2}, s{sWave}, 1"); A(f"s_lshl_b32 s{sT2}, s{sT2}, 15"); A(f"s_add_u32 s{sWb}, s{sT}, s{sT2}")
    A(f"v_add_u32 v{vOff}, s{sWb}, v{vLin}")
    A(f"v_lshlrev_b32 v{vSo}, 10, v{g_}"); A(f"v_lshl_add_u32 v{vSo}, v{m_}, 4, v{vSo}")
    A(f"v_lshlrev_b32 v{vQo}, 8, v{m_}"); A(f"v_lshl_add_u32 v{vQo}, v{g_}, 4, v{vQo}")
    A(f"v_lshlrev_b32 v{vTK}, 3, v{c_}")
    A(f"v_lshrrev_b32 v{vTV}, 4, v{c_}"); A(f"v_lshlrev_b32 v{vTV}, 5, v{vTV}")
    A(f"v_and_b32 v{t0}, 15, v{c_}"); A(f"v_add_lshl_u32 v{vTV}, v{vTV}, v{t0}, 1")
    A(f"s_lshr_b32 s{sT}, s{sWb}, 8"); A(f"v_add_u32 v{vTV}, s{sT}, v{vTV}")
    A(f"s_lshr_b32 s{sT}, s{sWave}, 1"); A(f"s_and_b32 s{sT2}, s{sWave}, 1")
    A(f"s_mul_i32 s{sT}, s{sT}, {32*KROW}"); A(f"s_mul_i32 s{sT2}, s{sT2}, {8*KROW}"); A(f"s_add_u32 s{sT}, s{sT}, s{sT2}")
    A(f"v_mul_u32_u24 v{vKW}, {4*KROW}, v{h_}"); A(f"v_lshl_add_u32 v{vKW}, v{c_}, 3, v{vKW}"); A(f"v_add_u32 v{vKW}, s{sT}, v{vKW}")
    A(f"v_mul_u32_u24 v{vKR}, {KROW}, v{m_}"); A(f"v_lshl_add_u32 v{vKR}, v{g_}, 4, v{vKR}")
    A(f"s_mul_i32 s{sT}, s{sWave}, {2*OS}"); A(f"s_add_u32 s{sT}, s{sT}, {LDS_V}")
    A(f"v_mul_u32_u24 v{vVW}, {OS}, v{h_}"); A(f"v_lshl_add_u32 v{vVW}, v{c_}, 4, v{vVW}"); A(f"v_add_u32 v{vVW}, s{sT}, v{vVW}")
    A(f"v_mul_u32_u24 v{vVR}, {OS}, v{g_}"); A(f"v_and_b32 v{t0}, 3, v{m_}"); A(f"v_mul_u32_u24 v{t0}, {JS}, v{t0}")
    A(f"v_lshrrev_b32 v{t1}, 2, v{m_}"); A(f"v_lshlrev_b32 v{t1}, 7, v{t1}")
    A(f"v_add3_u32 v{vVR}, v{vVR}, v{t0}, v{t1}"); A(f"v_add_u32 v{vVR}, {LDS_V}, v{vVR}")
    A(f"s_lshl_b32 s{sT}, s{sWave}, 8"); A(f"s_add_u32 s{sT2}, s{sT}, {LDS_SC}")
    A(f"v_and_b32 v{vSW}, 1, v{c_}"); A(f"v_lshlrev_b32 v{vSW}, 7, v{vSW}")
    A(f"v_lshrrev_b32 v{t0}, 1, v{c_}"); A(f"v_lshl_add_u32 v{vSW}, v{t0}, 3, v{vSW}"); A(f"v_add_u32 v{vSW}, s{sT2}, v{vSW}")
    A(f"v_lshlrev_b32 v{vSR}, 7, v{h_}"); A(f"v_add_u32 v{vSR}, s{sT2}, v{vSR}")
    A(f"v_mov_b32 v{vMb}, {LDS_MB}")
    A(f"s_mul_i32 s{sG}, s{sWave}, {TABW}"); A(f"s_add_u32 s{sG}, s{sG}, {LDS_TAB}"); A(f"s_mov_b32 m0, s{sG}")
    A("s_waitcnt lgkmcnt(0)")
    def own_slot(A):
        A(f"s_lshl_b32 s{sT}, s{sPair}, 2"); A(f"s_add_u32 s{sT}, s{sT}, s{sWave}"); A(f"s_lshl_b32 s{sT}, s{sT}, 2"); A(f"s_add_u32 s{sT}, s{sT}, s{sSplit}")
        A(f"s_lshl_b32 s{sT}, s{sT}, 13"); A(f"s_add_u32 s{sT}, s{sT}, {WS_SLOT}"); A(f"s_add_u32 s{sT2}, s{sT}, 4096")
    def clears():
        A(f"s_mov_b32 s{sWS}, s82"); A(f"s_mov_b32 s{sWS+1}, s83"); A(f"s_mov_b32 s{sWS+2}, 0x40000000"); A(f"s_mov_b32 s{sWS+3}, 0x20000")
        A(f"s_mov_b32 s{sDBG}, s80"); A(f"s_mov_b32 s{sDBG+1}, s81"); A(f"s_mov_b32 s{sDBG+2}, 256"); A(f"s_mov_b32 s{sDBG+3}, 0x20000")
        A.c("mark this wave's hand-off slot empty")
        own_slot(A)
        for i in range(4): A(f"v_mov_b32 v{vVP+i}, -1")
        if not noclear:
            A(f"buffer_store_dwordx4 {vr(vVP,4)}, v{vLin}, {srd(sWS)}, s{sT2} offen {clrf}")
            for q in range(clrn - 1): A(f"buffer_store_dwordx4 {vr(vVP,4)}, v{vLin}, {srd(sWS)}, s{sT} offen offset:{q*1024} {clrf}")
    if clrfirst: clears()
    A(f"s_lshl_b32 s{sT}, s{sPair}, 22")
    A(f"s_add_u32 s{sKb}, s66, s{sT}"); A(f"s_addc_u32 s{sKb+1}, s67, 0")
    A(f"s_add_u32 s{sVb}, s68, s{sT}"); A(f"s_addc_u32 s{sVb+1}, s69, 0")
    set_base(A, sKb)
    for r in (sX, sY): A(f"s_mov_b32 s{r+2}, 0x400000"); A(f"s_mov_b32 s{r+3}, 0x20000")
    A.c("wave w streams scale/zero array w (ks, kz, vs, vz) into the LDS table")
    A(f"s_cmp_eq_u32 s{sWave}, 1"); A("s_cselect_b64 s[4:5], s[72:73], s[70:71]")
    A(f"s_cmp_eq_u32 s{sWave}, 2"); A("s_cselect_b64 s[4:5], s[74:75], s[4:5]")
    A(f"s_cmp_eq_u32 s{sWave}, 3"); A("s_cselect_b64 s[4:5], s[76:77], s[4:5]")
    A(f"s_lshl_b32 s{sT}, s{sPair}, 14")
    def mk(r, p):
        A(f"s_add_u32 s{r}, s{p}, s{sT}"); A(f"s_addc_u32 s{r+1}, s{p+1}, 0"); A(f"s_mov_b32 s{r+2}, 0x4000"); A(f"s_mov_b32 s{r+3}, 0x20000")
    mk(sSM, 4); mk(sQ, 64); mk(sOUT, 78)
    A(f"s_lshl_b32 s{sT}, s{sSplit}, 8")
    nT = (ns + 3) // 4
    for u in range(nT):
        rows = min(4, ns - 4 * u)
        if rows < 4: A(f"s_bfm_b64 exec, {16*rows}, 0")
        A(f"buffer_load_dwordx4 v{vSo}, {srd(sSM)}, s{sT} offen {smf} lds")
        if rows < 4: A("s_mov_b64 exec, -1")
        if u + 1 < nT: A(f"s_add_u32 m0, m0, 1024"); A(f"s_add_u32 s{sT}, s{sT}, 4096")
    A(f"s_add_u32 s{sG}, s{sG}, {DSLOT}"); A(f"s_mov_b32 m0, s{sG}")
    if stamps: A(f"s_mov_b32 s98, s{sG}")
    A(f"s_lshl_b32 s{sT}, s{sWave}, 12")
    for s4 in range(4): A(f"buffer_load_dwordx4 {vr(vQ+4*s4,4)}, v{vQo}, {srd(sQ)}, s{sT} offen offset:{s4*64} {qflag}")
    A(f"s_lshl_b32 s{sO}, s{sSplit}, 16"); set_offs(A)
    for k in range(16): A(item_text(k))
    if not clrfirst: clears()
    A(f"s_lshl_b32 s{sCoff}, s{sPair}, {cstride}"); A(f"s_add_u32 s{sCoff}, s{sCoff}, {WS_CTR}")
    A(f"s_lshl_b32 s{sDoff}, s{sPair}, 2")
    A(f"s_mov_b32 s{sC}, {hex(f32bits(math.log2(math.e) / math.sqrt(128.0)))}")
    A(f"s_mov_b32 s{sThr}, {hex(f32bits(T))}")
    for r in (sDyn, sIni, sI, sJ, sKsl, sVsl, sHalf, sEnd): A(f"s_mov_b32 s{r}, 0")
    A(f"s_and_b32 s{sH0}, s{sPair}, 1"); A(f"s_add_u32 s{sH0}, s{sH0}, 1")
    for i in range(32): A(f"v_mov_b32 v{vO+i}, 0")
    A(f"v_mov_b32 v{vM}, 0xf149f2ca"); A(f"v_mov_b32 v{vMO}, 0xf149f2ca"); A(f"v_mov_b32 v{vL}, 0"); A(f"v_mov_b32 v{vAt}, 0"); A(f"v_mov_b32 v{vFl}, 0")
    def ktab_reads(S):
        S(f"v_add_u32 v{vTmp+4}, s{sKsl}, v{vTK}")
        S(f"ds_read_b64 {vr(vKSr,2)}, v{vTmp+4} offset:{LDS_TAB}"); S(f"ds_read_b64 {vr(vKZr,2)}, v{vTmp+4} offset:{LDS_TAB+TABW}")
    def vtab_reads(S):
        S(f"v_xor_b32 v{vTmp+4}, s{sVsl}, v{vTV}")
        S(f"ds_read_u16 v{vVSr}, v{vTmp+4} offset:{LDS_TAB+2*TABW}"); S(f"ds_read_u16 v{vVZr}, v{vTmp+4} offset:{LDS_TAB+3*TABW}")
    def prep_v(S):
        S(f"v_lshlrev_b32 v{vT2}, 16, v{vVSr}"); S(f"v_lshlrev_b32 v{vT2+1}, 16, v{vVZr}")
        S(f"v_mul_f32 v{vT2+1}, -v{vT2+1}, v{vT2}"); S(f"v_mul_f32 v{vT2}, 0x4b800000, v{vT2}")
        S(f"ds_write_b64 v{vSW}, {vr(vT2,2)}")
    def sc_lo_reads(S):
        for i in range(4): S(f"ds_read_b128 {vr(vSc+4*i,4)}, v{vSR} offset:{i*16}")
    A(f"s_waitcnt vmcnt({4+16})"); A("s_barrier")
    ktab_reads(A)
    pro = A

    def itstamp(S, idx_expr):
        if stamps and itst:
            S("s_memrealtime s[96:97]"); S(f"s_add_u32 m0, s{sI}, s{sJ}"); S("v_accvgpr_read_b32 v38, a255"); S("s_waitcnt lgkmcnt(0)")
            S("v_writelane_b32 v38, s96, m0"); S("s_mov_b32 m0, s98"); S("v_accvgpr_write_b32 a255, v38")

    def finish(B, targets, name, atomic_before=None):
        I = B.I
        pos = lambda kind, k=None: next(i for i, x in enumerate(I) if x.get("mark") == kind and x.get("k") == k)
        cum = []; a = 0
        for x in I: cum.append(a); a += x["c"]
        tg = targets(lambda kind, k=None: cum[pos(kind, k)], a)
        place = []; prev = pos("ready") + 1
        for k in range(16):
            p = next((i for i in range(len(I)) if cum[i] >= tg[k]), len(I) - 1)
            p = max(p, prev, pos("free", k) + 1)
            while not I[p]["ins"]: p += 1
            assert p <= pos("allissued"), (name, k)
            place.append(p); prev = p
        out = []; ei = 0; info = []
        for i, x in enumerate(I):
            while ei < 16 and place[ei] == i:
                if ei == atomic_before:
                    out += [f"    s_cmp_lg_u32 s{sDyn}, 0", "    s_cbranch_scc0 L_noat", "    s_mov_b64 exec, 1", f"    v_mov_b32 v{vAt}, 1",
                            f"    buffer_atomic_add v{vAt}, off, {srd(sWS)}, s{sCoff} sc0", "    s_mov_b64 exec, -1", "L_noat:"]
                out.append("    " + item_text(ei)); ei += 1
            if "mark" in x:
                if x["mark"] == "wait":
                    n = 15 - x["k"] + ei; info.append(n); out.append(f"    s_waitcnt vmcnt({n})")
                elif x["mark"] == "smallwait": out.append(f"    s_waitcnt vmcnt({ei})")
            else: out.append(x["t"])
        assert ei == 16
        gaps = [cum[place[k+1]] - cum[place[k]] for k in range(15)]
        print(name, "cost", a, "vmcnt", info, "first", cum[place[0]], "gaps", gaps, "last->end", a - cum[place[15]], file=sys.stderr)
        return out

    B = Stream()
    def deq(S, r, s, c): S(f"v_fma_mix_f32 v{r}, v{r}, v{s}, v{c} op_sel_hi:[1,0,0]")
    B.lock = True
    B.label("L_K")
    itstamp(B, None)
    B(f"s_add_u32 s{sI}, s{sI}, 1")
    if npf:
        B(f"s_cmp_le_u32 s{sI}, {npf}"); B("s_cbranch_scc1 L_k2p")
    set_base(B, sVb)
    B.label("L_k1")
    B(f"s_cmp_eq_u32 s{sWave}, 0"); B("s_cbranch_scc1 L_hook")
    B.label("L_k2")
    B.lock = False
    B.mark("ready")
    vtab_reads(B)
    B("s_waitcnt lgkmcnt(2)")
    B.c("K: S = ks*2^24, C = -kz*ks per channel (the int code is read as an f16 subnormal, code*2^-24)")
    for p in range(2):
        B(f"v_lshlrev_b32 v{vKS+2*p}, 16, v{vKSr+p}"); B(f"v_and_b32 v{vKS+2*p+1}, 0xffff0000, v{vKSr+p}")
        B(f"v_lshlrev_b32 v{vKC+2*p}, 16, v{vKZr+p}"); B(f"v_and_b32 v{vKC+2*p+1}, 0xffff0000, v{vKZr+p}")
    for j in range(4): B(f"v_mul_f32 v{vKC+j}, -v{vKC+j}, v{vKS+j}")
    for j in range(4): B(f"v_mul_f32 v{vKS+j}, 0x4b800000, v{vKS+j}")
    B("s_waitcnt lgkmcnt(0)")
    prep_v(B)
    for k in range(16):
        r = vRing + 4 * k; t = vKP + 2 * (k % 4)
        B.mark("wait", k)
        for j in range(4): deq(B, r + j, vKS + j, vKC + j)
        B(f"v_cvt_pk_bf16_f32 v{t}, v{r}, v{r+1}"); B(f"v_cvt_pk_bf16_f32 v{t+1}, v{r+2}, v{r+3}")
        B.mark("free", k)
        B(f"ds_write_b64 v{vKW}, {vr(t,2)} offset:{LDS_K + ((k//8)*64 + ((k//4)%2)*16 + k%4)*KROW}")
    B.mark("kdone")
    B("s_waitcnt lgkmcnt(0)"); B("s_barrier")
    B.c("S^T = K Q^T")
    order = [(2 * bp + u, s4) for bp in range(4) for s4 in range(4) for u in range(2)]
    def kread(i):
        b, s4 = order[i]
        B(f"ds_read_b128 {vr(vSt+4*(i%NST),4)}, v{vKR} offset:{LDS_K + b*16*KROW + s4*64}")
    for i in range(PF): kread(i)
    for i in range(32):
        b, s4 = order[i]
        B(f"s_waitcnt lgkmcnt({min(PF-1, 31-i)})")
        cc = "0" if s4 == 0 else vr(vS+4*b, 4)
        B(f"v_mfma_f32_16x16x32_bf16 {vr(vS+4*b,4)}, {vr(vSt+4*(i%NST),4)}, {vr(vQ+4*s4,4)}, {cc}")
        if i + PF < 32: kread(i + PF)
    ktab_reads(B)
    if nh:
        B(f"s_cmp_lg_u32 s{sHalf}, 0")
        B.lock = True
        B("s_cbranch_scc1 L_mask")
        B.label("L_masked")
        B.lock = False
    B(f"v_max3_f32 v{vMx}, v{vS}, v{vS+1}, v{vS+2}"); B(f"v_max3_f32 v{vTmp+1}, v{vS+3}, v{vS+4}, v{vS+5}")
    for i in range(6, 30, 4):
        B(f"v_max3_f32 v{vMx}, v{vMx}, v{vS+i}, v{vS+i+1}"); B(f"v_max3_f32 v{vTmp+1}, v{vTmp+1}, v{vS+i+2}, v{vS+i+3}")
    B(f"v_max3_f32 v{vMx}, v{vMx}, v{vS+30}, v{vS+31}"); B(f"v_max_f32 v{vMx}, v{vMx}, v{vTmp+1}")
    B(f"v_fma_f32 v{vTmp+1}, v{vMx}, s{sC}, -v{vM}")
    B(f"v_cmp_lt_f32 vcc, s{sThr}, v{vTmp+1}")
    B.lock = True
    B("s_cbranch_vccnz L_rescale")
    B.label("L_rescaled")
    B.lock = False
    for half in range(2):
        b = vS + 16 * half
        for i in range(16): B(f"v_fma_f32 v{b+i}, v{b+i}, s{sC}, -v{vM}")
        for i in range(16): B(f"v_exp_f32 v{b+i}, v{b+i}")
        B(f"v_add_f32 v{vTmp+1}, v{b}, v{b+1}"); B(f"v_add_f32 v{vTmp+2}, v{b+2}, v{b+3}")
        for i in range(4, 16, 2):
            B(f"v_add_f32 v{vTmp+1}, v{vTmp+1}, v{b+i}"); B(f"v_add_f32 v{vTmp+2}, v{vTmp+2}, v{b+i+1}")
        B(f"v_add_f32 v{vL}, v{vL}, v{vTmp+1}"); B(f"v_add_f32 v{vL}, v{vL}, v{vTmp+2}")
        for i in range(8): B(f"v_cvt_pk_bf16_f32 v{vS+8*half+i}, v{b+2*i}, v{b+2*i+1}")
    sc_lo_reads(B)
    B.mark("allissued")
    B.lock = True
    B(f"s_cmp_lg_u32 s{sDyn}, 0"); B("s_cbranch_scc0 L_nopost")
    B(f"s_waitcnt vmcnt({AL})")
    B(f"ds_write_b32 v{vL4}, v{vAt} offset:{LDS_MB}")
    B.label("L_nopost")
    if npf:
        B(f"s_cmp_le_u32 s{sI}, {npf}"); B("s_cbranch_scc1 L_save")
        B.label("L_saved")
    B("s_waitcnt lgkmcnt(0)"); B("s_barrier")
    if npf:
        B(f"s_cmp_lt_u32 s{sI}, {npf}"); B("s_cbranch_scc1 L_K")
    B.lock = False
    def ktg(P, tot):
        c0 = P("wait", 0); c1 = P("kdone"); c2 = P("allissued")
        return [c0 + (c1 - c0) * (k + 0.5) / nK1 for k in range(nK1)] + [c1 + (c2 - c1) * (k + 0.5) / (16 - nK1) for k in range(16 - nK1)]
    kbody = finish(B, ktg, "K", atomic_before=16 - AL)

    B = Stream()
    B.lock = True
    B.label("L_V")
    itstamp(B, None)
    B(f"s_add_u32 s{sJ}, s{sJ}, 1")
    B(f"s_cmp_lt_u32 s{sJ}, {ns}"); B("s_cbranch_scc1 L_vstatic")
    B.c("next token group from the pair's ticket counter")
    B(f"ds_read_b32 v{vTmp}, v{vMb}"); B("s_waitcnt lgkmcnt(0)"); B(f"v_readfirstlane_b32 s{sG}, v{vTmp}")
    set_base(B, sKb)
    B(f"s_mov_b32 s{sKsl}, {DSLOT}"); B(f"s_mov_b32 s{sVsl}, {DSLOT}")
    B(f"s_cmp_lt_u32 s{sG}, {nf}"); B("s_cbranch_scc0 L_late")
    B(f"s_add_u32 s{sG}, s{sG}, {4*ns}"); B(f"s_lshl_b32 s{sO}, s{sG}, 16")
    B.label("L_v0")
    set_offs(B)
    B(f"s_lshl_b32 s{sT}, s{sG}, 8")
    B(f"buffer_load_dword v{vL4}, {srd(sSM)}, s{sT} offen {smf} lds")
    B.label("L_v1")
    B.lock = False
    B.mark("ready")
    def vphase(s):
        for n8 in range(8):
            k = 8 * s + n8; r = vRing + 4 * k; sc = vSc + 2 * n8
            B.mark("wait", k)
            if s == 0 and n8 == 0: B("s_waitcnt lgkmcnt(0)")
            for j in range(4): deq(B, r + j, sc, sc + 1)
            if n8 % 2 == 1:
                if s == 0: B(f"ds_read_b128 {vr(vSc+4*(n8//2),4)}, v{vSR} offset:{64 + (n8//2)*16}")
                for j in range(4): B(f"v_cvt_pk_bf16_f32 v{vVP+4*j+n8//2}, v{r-4+j}, v{r+j}")
                B.mark("free", k - 1); B.mark("free", k)
        for j in range(4): B(f"ds_write_b128 v{vVW}, {vr(vVP+4*j,4)} offset:{s*8*OS + j*JS}")
    def pv(s, extra, nextra):
        lst = [(2 * s + kk, db) for kk in range(2) for db in range(8)]
        def vread(i):
            ks, db = lst[i]
            B(f"ds_read_b128 {vr(vSt+4*(i%NST),4)}, v{vVR} offset:{ks*4*OS + db*16}")
        for i in range(PF): vread(i)
        for i in range(16):
            ks, db = lst[i]
            younger = min(PF - 1, 15 - i)
            if i + PF >= 17: younger += nextra
            B(f"s_waitcnt lgkmcnt({younger})")
            B(f"v_mfma_f32_16x16x32_bf16 {vr(vO+4*db,4)}, {vr(vSt+4*(i%NST),4)}, {vr(vS+4*ks,4)}, {vr(vO+4*db,4)}")
            if i + PF < 16: vread(i + PF)
            if i + PF == 16: extra()
    vphase(0)
    if npf: vtab_reads(B)
    B("s_waitcnt lgkmcnt(0)"); B("s_barrier")
    if npf: prep_v(B)
    pv(0, lambda: None, 0)
    vphase(1)
    B.mark("vdone")
    B.mark("smallwait")
    B("s_waitcnt lgkmcnt(0)"); B("s_barrier")
    def ex():
        ktab_reads(B)
        if npf: sc_lo_reads(B)
    pv(1, ex, 6 if npf else 2)
    B.mark("allissued")
    B.lock = True
    if npf:
        B(f"s_cmp_lt_u32 s{sJ}, {npf}"); B("s_cbranch_scc1 L_V")
    B(f"s_cmp_eq_u32 s{sEnd}, 0"); B("s_cbranch_scc1 L_K")
    B.lock = False
    def vtg(P, tot):
        c0 = P("wait", 0); c1 = P("vdone") + vtail
        return [c0 + (c1 - c0) * (k + 0.9) / 16 for k in range(16)]
    vbody = finish(B, vtg, "V")

    E = Stream()
    def stampE(i):
        if stamps: E(f"s_memrealtime s[{84+2*i}:{85+2*i}]")
    stampE(1)
    if stamps: E("s_mov_b32 s99, 0")
    E.c("row sum over the four lane groups")
    for sw in ("v_permlane32_swap_b32", "v_permlane16_swap_b32"):
        E(f"v_mov_b32 v{vTmp}, v{vL}"); E("s_nop 1"); E(f"{sw} v{vTmp}, v{vL}"); E("s_nop 1"); E(f"v_add_f32 v{vL}, v{vL}, v{vTmp}")
    E("s_waitcnt lgkmcnt(0)")
    E(f"s_cmp_eq_u32 s{sEnd}, 2"); E("s_cbranch_scc1 L_merge0")
    E.c("not the last workgroup of this pair: hand the partial over (every dword differs from the empty mark)")
    own_slot(E)
    E(f"v_min_u32 v{vM}, -2, v{vM}"); E(f"v_min_u32 v{vL}, -2, v{vL}")
    E(f"buffer_store_dwordx4 {vr(vM,4)}, v{vLin}, {srd(sWS)}, s{sT2} offen sc0 sc1")
    for q in range(4):
        for i in range(4 * q, 4 * q + 4): E(f"v_cvt_pk_bf16_f32 v{vSt+i}, v{vO+2*i}, v{vO+2*i+1}")
        for i in range(4 * q, 4 * q + 4): E(f"v_min_u32 v{vSt+i}, -2, v{vSt+i}")
        E(f"buffer_store_dwordx4 {vr(vSt+4*q,4)}, v{vLin}, {srd(sWS)}, s{sT} offen offset:{q*1024} sc0 sc1")
    if stamps:
        for i in (2, 3, 4): stampE(i)
        E("s_branch L_done")
    else:
        E("s_endpgm")
    E.label("L_poll")
    if stamps: E("s_add_u32 s99, s99, 1")
    for k in range(16): E(item_text(k).replace(nt, "sc0 sc1"))
    E.label("L_merge0")
    E.c("last workgroup of the pair: merge the other three partials (re-read until all have arrived)")
    R = vSt; g = vKS; MS = vKC; LL = vKC + 1; tag = vKC + 2; u0 = vKP
    ml = lambda x: vRing + 4 * (x - 1)
    E("s_waitcnt vmcnt(13)")
    E(f"v_max3_f32 v{MS}, v{vM}, v{ml(1)}, v{ml(2)}"); E(f"v_max_f32 v{MS}, v{MS}, v{ml(3)}")
    gs = [vKSr, vKSr + 2, vKS, vKS + 2]
    E(f"v_sub_f32 v{gs[0]}, v{vM}, v{MS}")
    for x in range(1, 4): E(f"v_sub_f32 v{gs[x]}, v{ml(x)}, v{MS}")
    for x in range(4): E(f"v_exp_f32 v{gs[x]}, v{gs[x]}")
    E(f"v_max3_u32 v{tag}, v{ml(1)}, v{ml(1)+1}, v{ml(2)}"); E(f"v_max3_u32 v{tag}, v{tag}, v{ml(2)+1}, v{ml(3)}"); E(f"v_max_u32 v{tag}, v{tag}, v{ml(3)+1}")
    E(f"v_mul_f32 v{LL}, v{vL}, v{gs[0]}")
    for x in range(1, 4): E(f"v_fmac_f32 v{LL}, v{ml(x)+1}, v{gs[x]}")
    E(f"v_rcp_f32 v{LL}, v{LL}")
    E(f"v_and_b32 v{vTmp}, 15, v{vLane}"); E(f"v_lshrrev_b32 v{vTmp+1}, 4, v{vLane}")
    for x in range(4): E(f"v_mul_f32 v{gs[x]}, v{gs[x]}, v{LL}")
    E(f"v_lshlrev_b32 v{vTmp}, 8, v{vTmp}"); E(f"v_lshl_add_u32 v{vTmp}, v{vTmp+1}, 6, v{vTmp}")
    for i in range(16): E(f"v_pk_mul_f32 {vr(R+2*i,2)}, {vr(vO+2*i,2)}, {vr(gs[0],2)} op_sel_hi:[1,0]")
    for x in range(1, 4):
        for q in range(4):
            k = 4 * x + q; r = vRing + 4 * k
            E(f"s_waitcnt vmcnt({15-k})")
            E(f"v_max3_u32 v{tag}, v{tag}, v{r}, v{r+1}"); E(f"v_max3_u32 v{tag}, v{tag}, v{r+2}, v{r+3}")
            for i in range(4):
                E(f"v_lshlrev_b32 v{u0+2*i}, 16, v{r+i}"); E(f"v_and_b32 v{u0+2*i+1}, 0xffff0000, v{r+i}")
            for i in range(4):
                d = R + 2 * (4 * q + i)
                E(f"v_pk_fma_f32 {vr(d,2)}, {vr(u0+2*i,2)}, {vr(gs[x],2)}, {vr(d,2)} op_sel_hi:[1,0,1]")
    E(f"v_cmp_eq_u32 vcc, -1, v{tag}")
    E(f"s_lshl_b32 s{sT}, s{sWave}, 12")
    E("s_cbranch_vccnz L_poll")
    for i in (2, 3, 4): stampE(i)
    for u in range(4):
        for i in range(4 * u, 4 * u + 4): E(f"v_cvt_pk_bf16_f32 v{vS+i}, v{R+2*i}, v{R+2*i+1}")
        E(f"buffer_store_dwordx4 {vr(vS+4*u,4)}, v{vTmp}, {srd(sOUT)}, s{sT} offen offset:{u*16}")
    E.label("L_done")
    if stamps:
        E("s_waitcnt vmcnt(0)")
        stampE(5)
        E(f"s_lshl_b32 s{sT}, s2, 2"); E(f"s_add_u32 s{sT}, s{sT}, s{sWave}"); E(f"s_lshl_b32 s{sT2}, s{sT}, 4")
        E(f"s_lshl_b32 s4, s{sT}, 8"); E("s_add_u32 s4, s4, 0x22000000")
        E(f"s_add_u32 s{sT2}, s{sT2}, 0x20000000")
        E(f"s_lshl_b32 s{sT}, s{sT}, 6"); E(f"s_add_u32 s{sT}, s{sT}, 0x21000000")
        E("s_waitcnt lgkmcnt(0)")
        E(f"v_accvgpr_read_b32 v60, a255")
        for i in range(12): E(f"v_mov_b32 v{16+i}, s{84+i}")
        E(f"v_mov_b32 v28, s{sI}"); E("s_getreg_b32 s5, hwreg(HW_REG_XCC_ID)"); E("v_mov_b32 v29, s5"); E(f"v_mov_b32 v30, s{sEnd}"); E("v_mov_b32 v31, s99")
        E("v_mov_b32 v32, s84"); E("v_mov_b32 v33, s85"); E("v_mov_b32 v34, s94"); E("v_mov_b32 v35, s95")
        E(f"buffer_store_dword v60, v{vL4}, {srd(sWS)}, s4 offen")
        E("s_mov_b64 exec, 1")
        E(f"buffer_store_dwordx4 v[32:35], off, {srd(sWS)}, s{sT2}")
        for i in range(4): E(f"buffer_store_dwordx4 v[{16+4*i}:{19+4*i}], off, {srd(sWS)}, s{sT} offset:{16*i}")
    E.label("L_end")
    E("s_endpgm")

    E.c("late tickets: half groups, then the end of the pair's work")
    E.label("L_late")
    E(f"s_sub_u32 s{sG}, s{sG}, {nf}")
    if nh:
        E(f"s_cmp_lt_u32 s{sG}, {2*nh}"); E("s_cbranch_scc0 L_nomore")
        E(f"s_and_b32 s{sT}, s{sG}, 1"); E(f"s_lshr_b32 s{sG}, s{sG}, 1"); E(f"s_add_u32 s{sG}, s{sG}, {4*ns+nf}")
        E(f"s_lshl_b32 s{sO}, s{sG}, 16"); E(f"s_lshl_b32 s{sT2}, s{sT}, 14"); E(f"s_add_u32 s{sO}, s{sO}, s{sT2}")
        E(f"s_lshl_b32 s{sT}, s{sT}, 6"); E(f"s_add_u32 s{sVsl}, s{sVsl}, s{sT}")
        E(f"s_mov_b32 s{sHalf}, 1"); E(f"s_mov_b32 s{sY+2}, 0")
        E("s_branch L_v0")
        E.label("L_nomore")
    E(f"s_mov_b32 s{sEnd}, 1"); E(f"s_mov_b32 s{sX+2}, 0"); E(f"s_mov_b32 s{sY+2}, 0")
    E(f"s_cmp_eq_u32 s{sG}, {2*nh+3}"); E("s_cbranch_scc0 L_v1")
    E.c("fourth workgroup to run dry: its 'next unit' is the three other partials")
    E(f"s_mov_b32 s{sEnd}, 2"); set_base(E, sWS); E(f"s_mov_b32 s{sX+2}, 0x40000000"); E(f"s_mov_b32 s{sY+2}, 0x40000000")
    E(f"s_lshl_b32 s{sG}, s{sPair}, 2"); E(f"s_add_u32 s{sG}, s{sG}, s{sWave}"); E(f"s_lshl_b32 s{sG}, s{sG}, 15")
    E(f"s_add_u32 s{sG}, s{sG}, {WS_SLOT}"); E(f"s_sub_u32 s{sG}, s{sG}, s{sWb}")
    for x in range(1, 4):
        E(f"s_add_u32 s{sT}, s{sSplit}, {x}"); E(f"s_and_b32 s{sT}, s{sT}, 3"); E(f"s_lshl_b32 s{sT}, s{sT}, 13")
        E(f"s_add_u32 s{sO+3+x}, s{sG}, s{sT}"); E(f"s_add_u32 s{sO+x-1}, s{sO+3+x}, 4096")
    E(f"s_mov_b32 s{sO+3}, s{sO+2}")
    E("s_branch L_v1")

    E.label("L_vstatic")
    set_static(E, sJ)
    E(f"s_lshl_b32 s{sVsl}, s{sJ}, 8"); E(f"s_mov_b32 s{sKsl}, s{sVsl}")
    if npf:
        E(f"s_cmp_lt_u32 s{sJ}, {npf}"); E("s_cbranch_scc1 L_restore")
    set_base(E, sKb)
    if npf:
        E(f"s_cmp_le_u32 s{sJ}, {npf}"); E("s_cbranch_scc0 L_v1")
        E.label("L_restore")
        def tree(lo, hi, reg, pre, leaf):
            if lo == hi: leaf(lo); return
            mid = (lo + hi + 1) // 2
            E(f"s_cmp_ge_u32 s{reg}, {mid}"); E(f"s_cbranch_scc1 {pre}{mid}_{hi}")
            tree(lo, mid - 1, reg, pre, leaf)
            E.label(f"{pre}{mid}_{hi}")
            tree(mid, hi, reg, pre, leaf)
        def rleaf(j1):
            b = 17 * (j1 - 1)
            E(f"v_accvgpr_read_b32 v{vMx}, a{b+16}")
            for i in range(16): E(f"v_accvgpr_read_b32 v{vS+i}, a{b+i}")
            E("s_branch L_restored")
        tree(1, npf, sJ, "L_r", rleaf)
        E.label("L_restored")
        E(f"v_cmp_neq_f32 vcc, v{vMx}, v{vMO}")
        E("s_cbranch_vccz L_v1")
        E.c("this tile's P used a newer reference max than O holds: bring O up to it")
        E(f"v_sub_f32 v{vTmp+1}, v{vMO}, v{vMx}"); E(f"v_exp_f32 v{vTmp+1}, v{vTmp+1}"); E(f"v_mov_b32 v{vMO}, v{vMx}")
        for i in range(32): E(f"v_mul_f32 v{vO+i}, v{vO+i}, v{vTmp+1}")
        E("s_branch L_v1")
        E.label("L_save")
        def sleaf(i1):
            b = 17 * (i1 - 1)
            for i in range(16): E(f"v_accvgpr_write_b32 a{b+i}, v{vS+i}")
            E(f"v_accvgpr_write_b32 a{b+16}, v{vM}")
            E("s_branch L_saved")
        tree(1, npf, sI, "L_s", sleaf)
        E.label("L_k2p")
        E(f"s_cmp_lt_u32 s{sI}, {npf}"); E("s_cbranch_scc0 L_k2v")
        set_static(E, sI); E(f"s_lshl_b32 s{sKsl}, s{sI}, 8"); E("s_branch L_k1")
        E.label("L_k2v")
        E(f"s_lshl_b32 s{sO}, s{sSplit}, 16"); set_offs(E); set_base(E, sVb); E("s_branch L_k1")
    else:
        E("s_branch L_v1")

    if nh:
        E.label("L_mask")
        E("s_nop 7")
        for i in range(16, 32): E(f"v_mov_b32 v{vS+i}, 0xff800000")
        E("s_branch L_masked")

    E.c("rare path: the running max rose past the threshold -> move the reference to the true running max")
    E.label("L_rescale")
    for sw in ("v_permlane32_swap_b32", "v_permlane16_swap_b32"):
        E(f"v_mov_b32 v{vTmp+1}, v{vMx}"); E("s_nop 1"); E(f"{sw} v{vTmp+1}, v{vMx}"); E("s_nop 1"); E(f"v_max_f32 v{vMx}, v{vMx}, v{vTmp+1}")
    E(f"v_mul_f32 v{vMx}, s{sC}, v{vMx}"); E(f"v_max_f32 v{vMx}, v{vMx}, v{vM}")
    E(f"v_sub_f32 v{vTmp+1}, v{vM}, v{vMx}"); E(f"v_exp_f32 v{vTmp+1}, v{vTmp+1}"); E(f"v_mov_b32 v{vM}, v{vMx}")
    E(f"v_mul_f32 v{vL}, v{vL}, v{vTmp+1}")
    for i in range(32): E(f"v_mul_f32 v{vO+i}, v{vO+i}, v{vTmp+1}")
    E("s_branch L_rescaled")

    E.c("wave 0: the first workgroup of the pair to get here zeroes the ticket counter in d_ws and raises a flag in d_debug")
    E.label("L_hook")
    E(f"s_cmp_gt_u32 s{sI}, {ns}"); E("s_cbranch_scc1 L_k2")
    E(f"s_cmp_eq_u32 s{sI}, {ns}"); E("s_cbranch_scc1 L_h4")
    E(f"s_cmp_eq_u32 s{sI}, {ns-2}"); E("s_cbranch_scc1 L_h3")
    E(f"s_sub_u32 s{sT}, s{sI}, s{sH0}")
    E(f"s_cmp_eq_u32 s{sT}, 0"); E("s_cbranch_scc1 L_h0")
    E(f"s_cmp_eq_u32 s{sT}, 2"); E("s_cbranch_scc1 L_h1")
    E(f"s_cmp_eq_u32 s{sT}, 4"); E("s_cbranch_scc0 L_k2")
    E(f"s_cmp_lg_u32 s{sIni}, 0"); E("s_cbranch_scc0 L_k2")
    E("s_mov_b64 exec, 1"); E(f"v_mov_b32 v{vFl}, {FLAG}")
    E(f"buffer_atomic_or v{vFl}, off, {srd(sDBG)}, s{sDoff}")
    E("s_mov_b64 exec, -1"); E("s_branch L_k2")
    E.label("L_h0")
    E("s_mov_b64 exec, 1"); E(f"v_mov_b32 v{vFl}, 1")
    E(f"buffer_atomic_add v{vFl}, off, {srd(sDBG)}, s{sDoff} sc0")
    E("s_mov_b64 exec, -1"); E("s_branch L_k2")
    E.label("L_h1")
    E(f"v_readfirstlane_b32 s{sT}, v{vFl}"); E("s_nop 3")
    E(f"s_cmp_eq_u32 s{sT}, 0"); E("s_cbranch_scc0 L_k2")
    E(f"s_mov_b32 s{sIni}, 1")
    E("s_mov_b64 exec, 1")
    E(f"buffer_atomic_swap v{vFl}, off, {srd(sWS)}, s{sCoff} sc0")
    E("s_mov_b64 exec, -1"); E("s_branch L_k2")
    E.label("L_h3")
    E(f"buffer_load_dword v{vFl}, off, {srd(sDBG)}, s{sDoff} sc0 sc1")
    E("s_branch L_k2")
    E.label("L_h4")
    E(f"v_readfirstlane_b32 s{sT}, v{vFl}"); E(f"s_mov_b32 s{sDyn}, 1"); E("s_nop 3")
    E(f"s_bitcmp1_b32 s{sT}, 8"); E("s_cbranch_scc1 L_k2")
    E(f"buffer_load_dword v{vFl}, off, {srd(sDBG)}, s{sDoff} sc0 sc1")
    E("s_waitcnt vmcnt(0)"); E("s_branch L_h4")

    L = [HDR.rstrip(), f"; @launch grid=(256,1,1) block=(256,1,1) lds={LDS_TOTAL}", '.amdgcn_target "amdgcn-amd-amdhsa--gfx950"',
         ".text", f".globl {NAME}_kernel", ".p2align 8", f".type {NAME}_kernel,@function", f"{NAME}_kernel:"]
    L += pro.text() + kbody + vbody + E.text()
    L += ['.section .rodata,"a"', ".p2align 6", f".amdhsa_kernel {NAME}_kernel",
          "  .amdhsa_next_free_vgpr 512", "  .amdhsa_next_free_sgpr 102", "  .amdhsa_accum_offset 256",
          "  .amdhsa_group_segment_fixed_size 0", "  .amdhsa_kernarg_size 80", "  .amdhsa_user_sgpr_count 2",
          "  .amdhsa_user_sgpr_kernarg_segment_ptr 1", "  .amdhsa_system_sgpr_workgroup_id_x 1",
          "  .amdhsa_float_denorm_mode_32 3", "  .amdhsa_float_denorm_mode_16_64 3", ".end_amdhsa_kernel"]
    open(path, "w").write("\n".join(L) + "\n")

if __name__ == "__main__":
    import argparse
    ap = argparse.ArgumentParser()
    ap.add_argument("out")
    ap.add_argument("--AL", type=int, default=8); ap.add_argument("--ns", type=int, default=12); ap.add_argument("--np", type=int, default=11)
    ap.add_argument("--nh", type=int, default=0); ap.add_argument("--stamps", action="store_true")
    ap.add_argument("--cs", type=int, default=8); ap.add_argument("--nt", default="sc0 sc1 nt"); ap.add_argument("--q", default="")
    ap.add_argument("--smf", default="nt"); ap.add_argument("--mix", type=lambda x: int(x, 0), default=0x11111111)
    ap.add_argument("--nK1", type=int, default=9); ap.add_argument("--vtail", type=int, default=0); ap.add_argument("--T", type=float, default=8.0)
    ap.add_argument("--noclear", action="store_true"); ap.add_argument("--noit", action="store_true")
    ap.add_argument("--clrf", default="sc0 sc1"); ap.add_argument("--clrfirst", action="store_true"); ap.add_argument("--clrn", type=int, default=5)
    a = ap.parse_args()
    gen(a.out, AL=a.AL, ns=a.ns, npf=a.np, nh=a.nh, stamps=a.stamps, cstride=a.cs, nt=a.nt, qflag=a.q, smf=a.smf, mix=a.mix, nK1=a.nK1, vtail=a.vtail, T=a.T, noclear=a.noclear, itst=not a.noit, clrf=a.clrf, clrfirst=a.clrfirst, clrn=a.clrn)
```

```python
import sys, struct, math
NAME = "standalone__kv_cache_quant_int4_int2_kv_with_per_channel_or_per_token_scales__sampling"
HDR = open("cdna_kernels/" + NAME + ".s.ref").read().split("; Override launch")[0]

def f32bits(x):
    return struct.unpack("<I", struct.pack("<f", x))[0]

def cost_of(s):
    op = s.split()[0]
    if op.startswith("v_mfma"): return 16
    if op in ("v_exp_f32", "v_rcp_f32"): return 8
    if op.startswith("v_"): return 4
    if op == "ds_write_b128": return 26
    if op == "ds_write_b64": return 10
    if op.startswith("ds_"): return 2
    if op == "s_barrier": return 40
    if op == "s_nop": return 4 * (int(s.split()[1]) + 1)
    return 2

class Stream:
    def __init__(self): self.I = []; self.lock = False
    def __call__(self, s, cost=None):
        self.I.append(dict(t="    " + s, c=(cost_of(s) if cost is None else cost), ins=not self.lock))
    def label(self, s): self.I.append(dict(t=s + ":", c=0, ins=not self.lock))
    def c(self, s): self.I.append(dict(t="    ; " + s, c=0, ins=not self.lock))
    def mark(self, kind, k=None): self.I.append(dict(mark=kind, k=k, c=0, ins=not self.lock))
    def text(self): return [x["t"] for x in self.I]

def gen(path, AL=8, npf=12, stamps=False, nt="sc0 sc1 nt", smf="nt", qflag="", cstride=8, T=8.0, PF=8,
        mix=0x11111111, nK1=9, vtail=250, itst=False, outf="", htail=200, pubf="sc0 sc1", TM=32.0, cap=None, capH=None, capP=None):
    if capH is None: capH = cap
    if capP is None: capP = cap
    capn = lambda c, k: int(c[k % len(c)], 16) - 1
    assert 8 <= npf <= 15
    NH = 2 * (64 - 4 * npf)
    KROW = 288; JS = 576; OS = 2320
    TABW = 18 * 256; DSLOT = 16 * 256
    LDS_MB = 0; LDS_SC = 256; LDS_TAB = 1536; LDS_K = LDS_TAB + 4 * TABW; LDS_V = LDS_K + 128 * KROW
    LDS_TOTAL = LDS_V + 16 * OS
    assert LDS_K % 256 == 0 and LDS_K + 128 * KROW < 65536 and LDS_TAB % 512 == 0 and TABW % 512 == 0
    WS_SLOT = 1 << 20; WS_CTR = 16 << 20; FLAG = 0x100
    SPIN = 1 << 21
    vLane, vOff, vKW, vKR, vSW, vSR, vVW, vVR, vTK, vTV, vL4, vLin = range(12)
    vM, vL, vCk, vFl = 12, 13, 14, 15
    vMb, vMx, vT2 = 16, 17, 18
    vKS, vKC = 20, 24; vKSr, vKZr, vVSr, vVZr = 28, 30, 32, 33
    vTmp = 34
    vAt = 38; vMO = 39
    vKP = 40; vVP = 48; vO = 64; vS = 96; vRing = 128; vQ = 192; vSt = 208; NST = 12
    vSc = vS + 16
    sX, sY, sSM, sQ, sDBG, sWS, sOUT = 8, 12, 16, 20, 24, 28, 32
    sKb, sVb = 36, 38
    sPair, sSplit, sI, sJ, sG, sT, sT2, sC, sThr, sDoff, sCoff, sIni, sKsl, sVsl, sEnd, sWb, sH0, sPend, sSpin, sW0 = range(40, 60)
    sO = 64
    sCw = 72
    sWave = 3
    srd = lambda r: f"s[{r}:{r+3}]"
    vr = lambda r, n: f"v[{r}:{r+n-1}]"
    def item_text(k, fl=None):
        so, imm = (sO + k, 0) if k < 4 else (sO + 3 + k // 4, (k % 4) * 1024)
        return f"buffer_load_dwordx4 {vr(vRing+4*k,4)}, v{vOff}, {srd(sX if k < 8 else sY)}, s{so} offen offset:{imm} {nt if fl is None else fl}"
    def set_offs(A, half=False):
        for i, d in enumerate((1024, 2048, 3072, 4096) + ((0, 4096) if half else (16384, 20480))): A(f"s_add_u32 s{sO+1+i}, s{sO}, {d}")
    def set_static(A, sidx):
        A(f"s_lshl_b32 s{sO}, s{sidx}, 2"); A(f"s_add_u32 s{sO}, s{sO}, s{sSplit}"); A(f"s_lshl_b32 s{sO}, s{sO}, 16"); set_offs(A)
    def set_base(A, b, b2=None):
        if b2 is None: b2 = b
        A(f"s_mov_b64 s[{sX}:{sX+1}], s[{b}:{b+1}]"); A(f"s_mov_b64 s[{sY}:{sY+1}], s[{b2}:{b2+1}]")
    def set_half(A):
        A(f"s_and_b32 s{sT}, s{sG}, 1"); A(f"s_lshr_b32 s{sG}, s{sG}, 1"); A(f"s_add_u32 s{sG}, s{sG}, {4*npf}")
        A(f"s_lshl_b32 s{sO}, s{sG}, 16"); A(f"s_lshl_b32 s{sT2}, s{sT}, 14"); A(f"s_add_u32 s{sO}, s{sO}, s{sT2}")
        A(f"s_xor_b32 s{sKsl}, s{sKsl}, 256"); A("s_xor_b32 m0, m0, 256")
        A(f"s_lshl_b32 s{sT}, s{sT}, 6"); A(f"s_add_u32 s{sVsl}, s{sKsl}, s{sT}")
        set_offs(A, True)
        A(f"s_lshl_b32 s{sT}, s{sG}, 8")
        A(f"buffer_load_dword v{vL4}, {srd(sSM)}, s{sT} offen {smf} lds")

    A = Stream()
    A("s_cmp_ge_u32 s2, 256"); A("s_cbranch_scc1 L_end")
    if stamps: A("s_memrealtime s[84:85]")
    A("s_load_dwordx16 s[64:79], s[0:1], 0")
    A("s_load_dwordx4 s[80:83], s[0:1], 64")
    A("v_lshrrev_b32 v1, 6, v0")
    A(f"v_and_b32 v{vLane}, 63, v0")
    A(f"v_readfirstlane_b32 s{sWave}, v1")
    if mix:
        A.c("which (batch, kv head) pair / split this workgroup takes: a bijection of the id (placement affects speed only)")
        A(f"s_lshr_b32 s{sT}, s2, 3"); A(f"s_and_b32 s{sT}, s{sT}, 7"); A(f"s_lshl_b32 s{sT}, s{sT}, 2")
        A(f"s_lshr_b32 s{sT}, {hex(mix)}, s{sT}"); A(f"s_and_b32 s{sT}, s{sT}, 3"); A(f"s_and_b32 s{sT}, s{sT}, s2")
        A(f"s_bcnt1_i32_b32 s{sT}, s{sT}"); A(f"s_and_b32 s{sT}, s{sT}, 1"); A(f"s_lshl_b32 s{sT}, s{sT}, 2"); A(f"s_xor_b32 s2, s2, s{sT}")
    A(f"s_lshr_b32 s{sPair}, s2, 2"); A(f"s_and_b32 s{sSplit}, s2, 3")
    c_, h_, m_, g_ = vKS, vKS + 1, vKS + 2, vKS + 3
    t0, t1, vQo, vSo = vKC, vKC + 1, vKC + 2, vKC + 3
    A(f"v_and_b32 v{c_}, 31, v{vLane}"); A(f"v_lshrrev_b32 v{h_}, 5, v{vLane}")
    A(f"v_and_b32 v{m_}, 15, v{vLane}"); A(f"v_lshrrev_b32 v{g_}, 4, v{vLane}")
    A(f"v_lshlrev_b32 v{vLin}, 4, v{vLane}"); A(f"v_lshlrev_b32 v{vL4}, 2, v{vLane}")
    A(f"s_and_b32 s{sT}, s{sWave}, 1"); A(f"s_lshl_b32 s{sT}, s{sT}, 13")
    A(f"s_lshr_b32 s{sT2}, s{sWave}, 1"); A(f"s_lshl_b32 s{sT2}, s{sT2}, 15"); A(f"s_add_u32 s{sWb}, s{sT}, s{sT2}")
    A(f"v_add_u32 v{vOff}, s{sWb}, v{vLin}")
    A(f"v_lshlrev_b32 v{vSo}, 10, v{g_}"); A(f"v_lshl_add_u32 v{vSo}, v{m_}, 4, v{vSo}")
    A(f"v_lshlrev_b32 v{vQo}, 8, v{m_}"); A(f"v_lshl_add_u32 v{vQo}, v{g_}, 4, v{vQo}")
    for i in range(4): A(f"v_mov_b32 v{vVP+i}, -1")
    def own_slot(A):
        A(f"s_lshl_b32 s{sT}, s{sPair}, 2"); A(f"s_add_u32 s{sT}, s{sT}, s{sWave}"); A(f"s_lshl_b32 s{sT}, s{sT}, 2"); A(f"s_add_u32 s{sT}, s{sT}, s{sSplit}")
        A(f"s_lshl_b32 s{sT}, s{sT}, 13"); A(f"s_add_u32 s{sT}, s{sT}, {WS_SLOT}"); A(f"s_add_u32 s{sT2}, s{sT}, 4096")
    A(f"s_mul_i32 s{sG}, s{sWave}, {TABW}"); A(f"s_add_u32 s{sG}, s{sG}, {LDS_TAB}"); A(f"s_mov_b32 m0, s{sG}")
    own_slot(A)
    for r in (sX, sY): A(f"s_mov_b32 s{r+2}, 0x400000"); A(f"s_mov_b32 s{r+3}, 0x20000")
    A(f"s_mov_b32 s{sWS+2}, 0x40000000"); A(f"s_mov_b32 s{sWS+3}, 0x20000")
    A(f"s_lshl_b32 s{sT}, s{sPair}, 22")
    A("s_waitcnt lgkmcnt(0)")
    A.c("mark the header of this wave's hand-off slot empty")
    A(f"s_mov_b64 s[{sWS}:{sWS+1}], s[82:83]")
    A(f"buffer_store_dwordx4 {vr(vVP,4)}, v{vLin}, {srd(sWS)}, s{sT2} offen sc0 sc1")
    A(f"s_add_u32 s{sKb}, s66, s{sT}"); A(f"s_addc_u32 s{sKb+1}, s67, 0")
    A(f"s_add_u32 s{sVb}, s68, s{sT}"); A(f"s_addc_u32 s{sVb+1}, s69, 0")
    set_base(A, sKb)
    A.c("wave w streams scale/zero array w (ks, kz, vs, vz) into the LDS table")
    A(f"s_cmp_eq_u32 s{sWave}, 1"); A("s_cselect_b64 s[4:5], s[72:73], s[70:71]")
    A(f"s_cmp_eq_u32 s{sWave}, 2"); A("s_cselect_b64 s[4:5], s[74:75], s[4:5]")
    A(f"s_cmp_eq_u32 s{sWave}, 3"); A("s_cselect_b64 s[4:5], s[76:77], s[4:5]")
    A(f"s_lshl_b32 s{sT}, s{sPair}, 14")
    def mk(r, p):
        A(f"s_add_u32 s{r}, s{p}, s{sT}"); A(f"s_addc_u32 s{r+1}, s{p+1}, 0"); A(f"s_mov_b32 s{r+2}, 0x4000"); A(f"s_mov_b32 s{r+3}, 0x20000")
    mk(sSM, 4); mk(sQ, 64); mk(sOUT, 78)
    A(f"s_lshl_b32 s{sT}, s{sSplit}, 8")
    nT = (npf + 3) // 4
    for u in range(nT):
        rows = min(4, npf - 4 * u)
        if rows < 4: A(f"s_bfm_b64 exec, {16*rows}, 0")
        A(f"buffer_load_dwordx4 v{vSo}, {srd(sSM)}, s{sT} offen {smf} lds")
        if rows < 4: A("s_mov_b64 exec, -1")
        if u + 1 < nT: A(f"s_add_u32 m0, m0, 1024"); A(f"s_add_u32 s{sT}, s{sT}, 4096")
    A(f"s_add_u32 m0, s{sG}, {DSLOT}")
    A(f"s_lshl_b32 s{sT}, s{sWave}, 12")
    for s4 in range(4): A(f"buffer_load_dwordx4 {vr(vQ+4*s4,4)}, v{vQo}, {srd(sQ)}, s{sT} offen offset:{s4*64} {qflag}")
    A(f"s_lshl_b32 s{sO}, s{sSplit}, 16"); set_offs(A)
    npre = 16 if not capP else 4
    for k in range(npre): A(item_text(k))
    A(f"v_lshlrev_b32 v{vTK}, 3, v{c_}")
    A(f"v_lshrrev_b32 v{vTV}, 4, v{c_}"); A(f"v_lshlrev_b32 v{vTV}, 5, v{vTV}")
    A(f"v_and_b32 v{t0}, 15, v{c_}"); A(f"v_add_lshl_u32 v{vTV}, v{vTV}, v{t0}, 1")
    A(f"s_lshr_b32 s{sT}, s{sWb}, 8"); A(f"v_add_u32 v{vTV}, s{sT}, v{vTV}")
    A(f"s_lshr_b32 s{sT}, s{sWave}, 1"); A(f"s_and_b32 s{sT2}, s{sWave}, 1")
    A(f"s_mul_i32 s{sT}, s{sT}, {32*KROW}"); A(f"s_mul_i32 s{sT2}, s{sT2}, {8*KROW}"); A(f"s_add_u32 s{sT}, s{sT}, s{sT2}")
    A(f"v_mul_u32_u24 v{vKW}, {4*KROW}, v{h_}"); A(f"v_lshl_add_u32 v{vKW}, v{c_}, 3, v{vKW}"); A(f"v_add_u32 v{vKW}, s{sT}, v{vKW}")
    A(f"v_mul_u32_u24 v{vKR}, {KROW}, v{m_}"); A(f"v_lshl_add_u32 v{vKR}, v{g_}, 4, v{vKR}")
    A(f"s_mul_i32 s{sT}, s{sWave}, {2*OS}"); A(f"s_add_u32 s{sT}, s{sT}, {LDS_V}")
    A(f"v_mul_u32_u24 v{vVW}, {OS}, v{h_}"); A(f"v_lshl_add_u32 v{vVW}, v{c_}, 4, v{vVW}"); A(f"v_add_u32 v{vVW}, s{sT}, v{vVW}")
    A(f"v_mul_u32_u24 v{vVR}, {OS}, v{g_}"); A(f"v_and_b32 v{t0}, 3, v{m_}"); A(f"v_mul_u32_u24 v{t0}, {JS}, v{t0}")
    A(f"v_lshrrev_b32 v{t1}, 2, v{m_}"); A(f"v_lshlrev_b32 v{t1}, 5, v{t1}")
    A(f"v_add3_u32 v{vVR}, v{vVR}, v{t0}, v{t1}"); A(f"v_add_u32 v{vVR}, {LDS_V}, v{vVR}")
    A(f"s_lshl_b32 s{sT}, s{sWave}, 8"); A(f"s_add_u32 s{sT2}, s{sT}, {LDS_SC}")
    A(f"v_and_b32 v{vSW}, 1, v{c_}"); A(f"v_lshlrev_b32 v{vSW}, 7, v{vSW}")
    A(f"v_lshrrev_b32 v{t0}, 1, v{c_}"); A(f"v_lshl_add_u32 v{vSW}, v{t0}, 3, v{vSW}"); A(f"v_add_u32 v{vSW}, s{sT2}, v{vSW}")
    A(f"v_lshlrev_b32 v{vSR}, 7, v{h_}"); A(f"v_add_u32 v{vSR}, s{sT2}, v{vSR}")
    A(f"v_mov_b32 v{vMb}, {LDS_MB}")
    A(f"s_mov_b64 s[{sDBG}:{sDBG+1}], s[80:81]"); A(f"s_mov_b32 s{sDBG+2}, 256"); A(f"s_mov_b32 s{sDBG+3}, 0x20000")
    A(f"s_lshl_b32 s{sCoff}, s{sPair}, {cstride}"); A(f"s_add_u32 s{sCoff}, s{sCoff}, {WS_CTR}")
    A(f"s_lshl_b32 s{sDoff}, s{sPair}, 2")
    A(f"s_mov_b32 s{sC}, {hex(f32bits(math.log2(math.e) / math.sqrt(128.0)))}")
    A(f"s_mov_b32 s{sThr}, {hex(f32bits(T))}")
    for r in (sIni, sI, sJ, sKsl, sVsl, sEnd): A(f"s_mov_b32 s{r}, 0")
    A(f"s_mov_b32 s{sSpin}, {SPIN}")
    A(f"s_cmp_eq_u32 s{sWave}, 0"); A(f"s_cselect_b32 s{sW0}, 1, 0")
    for i, w in enumerate((0x9e37c2b3, 0x85eb6d2f, 0x27d4f1a9, 0x165753c5)): A(f"s_mov_b32 s{sCw+i}, {hex(w)}")
    A(f"s_and_b32 s{sH0}, s{sPair}, 1"); A(f"s_add_u32 s{sH0}, s{sH0}, 1")
    for i in range(32): A(f"v_mov_b32 v{vO+i}, 0")
    A(f"v_mov_b32 v{vM}, 0xf149f2ca"); A(f"v_mov_b32 v{vMO}, 0xf149f2ca"); A(f"v_mov_b32 v{vL}, 0"); A(f"v_mov_b32 v{vAt}, 0"); A(f"v_mov_b32 v{vFl}, 0")
    def ktab_reads(S):
        S(f"v_add_u32 v{vTmp+3}, s{sKsl}, v{vTK}")
        S(f"ds_read_b64 {vr(vKSr,2)}, v{vTmp+3} offset:{LDS_TAB}"); S(f"ds_read_b64 {vr(vKZr,2)}, v{vTmp+3} offset:{LDS_TAB+TABW}")
    def vtab_reads(S):
        S(f"v_xor_b32 v{vTmp+3}, s{sVsl}, v{vTV}")
        S(f"ds_read_u16 v{vVSr}, v{vTmp+3} offset:{LDS_TAB+2*TABW}"); S(f"ds_read_u16 v{vVZr}, v{vTmp+3} offset:{LDS_TAB+3*TABW}")
    def prep_v(S):
        S(f"v_lshlrev_b32 v{vT2}, 16, v{vVSr}"); S(f"v_lshlrev_b32 v{vT2+1}, 16, v{vVZr}")
        S(f"v_mul_f32 v{vT2+1}, -v{vT2+1}, v{vT2}"); S(f"v_mul_f32 v{vT2}, 0x4b800000, v{vT2}")
        S(f"ds_write_b64 v{vSW}, {vr(vT2,2)}")
    def prep_k(S):
        S.c("K: S = ks*2^24, C = -kz*ks per channel (the int code is read as an f16 subnormal, code*2^-24)")
        for p in range(2):
            S(f"v_lshlrev_b32 v{vKS+2*p}, 16, v{vKSr+p}"); S(f"v_and_b32 v{vKS+2*p+1}, 0xffff0000, v{vKSr+p}")
            S(f"v_lshlrev_b32 v{vKC+2*p}, 16, v{vKZr+p}"); S(f"v_and_b32 v{vKC+2*p+1}, 0xffff0000, v{vKZr+p}")
        for j in range(4): S(f"v_mul_f32 v{vKC+j}, -v{vKC+j}, v{vKS+j}")
        for j in range(4): S(f"v_mul_f32 v{vKS+j}, 0x4b800000, v{vKS+j}")
    def sc_lo_reads(S):
        for i in range(4): S(f"ds_read_b128 {vr(vSc+4*i,4)}, v{vSR} offset:{i*16}")
    for k in range(npre, 16):
        A(f"s_waitcnt vmcnt({capn(capP, k)})"); A(item_text(k))
    A(f"s_waitcnt vmcnt({4+16})"); A("s_barrier")
    ktab_reads(A); vtab_reads(A)
    A("s_waitcnt lgkmcnt(0)")
    prep_v(A)
    pro = A

    def itstamp(S):
        if stamps and itst:
            S("s_memrealtime s[96:97]"); S("s_mov_b32 s98, m0"); S(f"s_add_u32 m0, s{sI}, s{sJ}"); S(f"v_accvgpr_read_b32 v{vTmp+3}, a255"); S("s_waitcnt lgkmcnt(0)")
            S(f"v_writelane_b32 v{vTmp+3}, s96, m0"); S("s_mov_b32 m0, s98"); S(f"v_accvgpr_write_b32 a255, v{vTmp+3}")

    def finish(B, targets, name, atomic=False):
        I = B.I
        pos = lambda kind, k=None: next(i for i, x in enumerate(I) if x.get("mark") == kind and x.get("k") == k)
        cum = []; a = 0
        for x in I: cum.append(a); a += x["c"]
        tg = targets(lambda kind, k=None: cum[pos(kind, k)], a)
        place = []; prev = pos("ready") + 1
        for k in range(16):
            p = next((i for i in range(len(I)) if cum[i] >= tg[k]), len(I) - 1)
            p = max(p, prev, pos("free", k) + 1)
            while not I[p]["ins"]: p += 1
            assert p <= pos("allissued"), (name, k)
            place.append(p); prev = p
        at = None
        if atomic:
            nb = sum(1 for p in place if p <= pos("postwait")); at = nb - AL; assert at >= 0
        out = []; ei = 0; info = []
        for i, x in enumerate(I):
            while ei < 16 and place[ei] == i:
                if ei == at:
                    out += [f"    s_cmp_lg_u32 s{sW0}, 0", "    s_cbranch_scc0 L_noat", "    s_mov_b64 exec, 1", f"    v_mov_b32 v{vAt}, 1",
                            f"    buffer_atomic_add v{vAt}, off, {srd(sWS)}, s{sCoff} sc0", "    s_mov_b64 exec, -1", "L_noat:"]
                cc = capH if name == "H" else cap
                if cc: out.append(f"    s_waitcnt vmcnt({capn(cc, ei)})")
                out.append("    " + item_text(ei)); ei += 1
            if "mark" in x:
                if x["mark"] == "wait":
                    n = 15 - x["k"] + ei; info.append(n); out.append(f"    s_waitcnt vmcnt({n})")
                elif x["mark"] == "smallwait": out.append(f"    s_waitcnt vmcnt({ei})")
                elif x["mark"] == "postwait": out.append(f"    s_waitcnt vmcnt({AL})")
            else: out.append(x["t"])
        assert ei == 16
        gaps = [cum[place[k+1]] - cum[place[k]] for k in range(15)]
        print(name, "cost", a, "vmcnt", info, "first", cum[place[0]], "gaps", gaps, "last->end", a - cum[place[15]], "atomic before", at, file=sys.stderr)
        return out

    def deq(S, r, s, c): S(f"v_fma_mix_f32 v{r}, v{r}, v{s}, v{c} op_sel_hi:[1,0,0]")
    def kitems(B, n):
        for k in range(n):
            r = vRing + 4 * k; t = vKP + 2 * (k % 4)
            B.mark("wait", k)
            for j in range(4): deq(B, r + j, vKS + j, vKC + j)
            B(f"v_cvt_pk_bf16_f32 v{t}, v{r}, v{r+1}"); B(f"v_cvt_pk_bf16_f32 v{t+1}, v{r+2}, v{r+3}")
            B.mark("free", k)
            B(f"ds_write_b64 v{vKW}, {vr(t,2)} offset:{LDS_K + ((k//8)*64 + ((k//4)%2)*16 + k%4)*KROW}")
        B.mark("kdone")
    def qk(B, nblk):
        B.c("S^T = K Q^T")
        order = [(2 * bp + u, s4) for bp in range(nblk // 2) for s4 in range(4) for u in range(2)]
        n = len(order)
        def kread(i):
            b, s4 = order[i]
            B(f"ds_read_b128 {vr(vSt+4*(i%NST),4)}, v{vKR} offset:{LDS_K + b*16*KROW + s4*64}")
        for i in range(PF): kread(i)
        for i in range(n):
            b, s4 = order[i]
            B(f"s_waitcnt lgkmcnt({min(PF-1, n-1-i)})")
            cc = "0" if s4 == 0 else vr(vS+4*b, 4)
            B(f"v_mfma_f32_16x16x32_bf16 {vr(vS+4*b,4)}, {vr(vSt+4*(i%NST),4)}, {vr(vQ+4*s4,4)}, {cc}")
            if i + PF < n: kread(i + PF)
    def softmax(B, n, tag):
        B(f"v_max3_f32 v{vMx}, v{vS}, v{vS+1}, v{vS+2}"); B(f"v_max3_f32 v{vTmp+1}, v{vS+3}, v{vS+4}, v{vS+5}")
        for i in range(6, n - 2, 4):
            B(f"v_max3_f32 v{vMx}, v{vMx}, v{vS+i}, v{vS+i+1}"); B(f"v_max3_f32 v{vTmp+1}, v{vTmp+1}, v{vS+i+2}, v{vS+i+3}")
        B(f"v_max3_f32 v{vMx}, v{vMx}, v{vS+n-2}, v{vS+n-1}"); B(f"v_max_f32 v{vMx}, v{vMx}, v{vTmp+1}")
        B(f"v_fma_f32 v{vTmp+1}, v{vMx}, s{sC}, -v{vM}")
        B(f"v_cmp_lt_f32 vcc, s{sThr}, v{vTmp+1}")
        B.lock = True
        B(f"s_cbranch_vccnz L_rescale{tag}")
        B.label(f"L_rescaled{tag}")
        B.lock = False
        for half in range(n // 16):
            b = vS + 16 * half
            for i in range(16): B(f"v_fma_f32 v{b+i}, v{b+i}, s{sC}, -v{vM}")
            for i in range(16): B(f"v_exp_f32 v{b+i}, v{b+i}")
            B(f"v_add_f32 v{vTmp+1}, v{b}, v{b+1}"); B(f"v_add_f32 v{vTmp+2}, v{b+2}, v{b+3}")
            for i in range(4, 16, 2):
                B(f"v_add_f32 v{vTmp+1}, v{vTmp+1}, v{b+i}"); B(f"v_add_f32 v{vTmp+2}, v{vTmp+2}, v{b+i+1}")
            B(f"v_add_f32 v{vL}, v{vL}, v{vTmp+1}"); B(f"v_add_f32 v{vL}, v{vL}, v{vTmp+2}")
            for i in range(8): B(f"v_cvt_pk_bf16_f32 v{vS+8*half+i}, v{b+2*i}, v{b+2*i+1}")
    def vphase(B, k0, s, refill_hi):
        for n8 in range(8):
            k = k0 + n8; r = vRing + 4 * k; sc = vSc + 2 * n8
            B.mark("wait", k)
            if refill_hi and n8 == 0: B("s_waitcnt lgkmcnt(0)")
            for j in range(4): deq(B, r + j, sc, sc + 1)
            if n8 % 2 == 1:
                if refill_hi: B(f"ds_read_b128 {vr(vSc+4*(n8//2),4)}, v{vSR} offset:{64 + (n8//2)*16}")
                for j in range(4): B(f"v_cvt_pk_bf16_f32 v{vVP+4*j+n8//2}, v{r-4+j}, v{r+j}")
                B.mark("free", k - 1); B.mark("free", k)
        for j in range(4): B(f"ds_write_b128 v{vVW}, {vr(vVP+4*j,4)} offset:{s*8*OS + j*JS}")
    def pv(B, s, extra, nextra):
        lst = [(2 * s + kk, db) for kk in range(2) for db in range(8)]
        def vread(i):
            ks, db = lst[i]
            B(f"ds_read_b128 {vr(vSt+4*(i%NST),4)}, v{vVR} offset:{ks*4*OS + (db//2)*128 + (db%2)*16}")
        for i in range(PF): vread(i)
        for i in range(16):
            ks, db = lst[i]
            younger = min(PF - 1, 15 - i)
            if i + PF >= 17: younger += nextra
            assert younger <= 15
            B(f"s_waitcnt lgkmcnt({younger})")
            B(f"v_mfma_f32_16x16x32_bf16 {vr(vO+4*db,4)}, {vr(vSt+4*(i%NST),4)}, {vr(vS+4*ks,4)}, {vr(vO+4*db,4)}")
            if i + PF < 16: vread(i + PF)
            if i + PF == 16: extra()

    B = Stream()
    B.lock = True
    B.label("L_K")
    itstamp(B)
    B(f"s_add_u32 s{sI}, s{sI}, 1")
    B(f"s_cmp_lt_u32 s{sI}, {npf}"); B("s_cbranch_scc0 L_k2v")
    set_static(B, sI); B(f"s_lshl_b32 s{sKsl}, s{sI}, 8")
    B(f"s_cmp_lg_u32 s{sW0}, 0"); B("s_cbranch_scc1 L_hookK")
    B.label("L_k1")
    B.lock = False
    B.mark("ready")
    prep_k(B)
    kitems(B, 16)
    B("s_waitcnt lgkmcnt(0)"); B("s_barrier")
    qk(B, 8)
    ktab_reads(B)
    B("s_nop 0")
    softmax(B, 32, "K")
    B.mark("allissued")
    B.lock = True
    B("s_branch L_save")
    B.label("L_saved")
    B("s_waitcnt lgkmcnt(0)"); B("s_barrier")
    B(f"s_cmp_lt_u32 s{sI}, {npf}"); B("s_cbranch_scc1 L_K")
    sc_lo_reads(B)
    B.lock = False
    def ktg(P, tot):
        c0 = P("wait", 0); c1 = P("kdone"); c2 = P("allissued")
        return [c0 + (c1 - c0) * (k + 0.5) / nK1 for k in range(nK1)] + [c1 + (c2 - c1) * (k + 0.5) / (16 - nK1) for k in range(16 - nK1)]
    kbody = finish(B, ktg, "K")

    B = Stream()
    B.lock = True
    B.label("L_V")
    itstamp(B)
    B(f"s_add_u32 s{sJ}, s{sJ}, 1")
    B(f"s_cmp_lt_u32 s{sJ}, {npf}"); B("s_cbranch_scc0 L_v2h")
    set_static(B, sJ); B(f"s_lshl_b32 s{sVsl}, s{sJ}, 8")
    B.label("L_v0")
    B("s_branch L_restore")
    B.label("L_v1")
    B.lock = False
    B.mark("ready")
    vphase(B, 0, 0, True)
    vtab_reads(B)
    B("s_waitcnt lgkmcnt(0)"); B("s_barrier")
    prep_v(B)
    pv(B, 0, lambda: None, 0)
    vphase(B, 8, 1, False)
    B.mark("vdone")
    B.mark("smallwait")
    B("s_waitcnt lgkmcnt(0)"); B("s_barrier")
    pv(B, 1, lambda: sc_lo_reads(B), 4)
    B.mark("allissued")
    B.lock = True
    B(f"s_cmp_lt_u32 s{sJ}, {npf}"); B("s_cbranch_scc1 L_V")
    ktab_reads(B); vtab_reads(B)
    B.c("the first H unit's successor: ask for it now (one exposed round trip per workgroup)")
    B(f"s_cmp_lg_u32 s{sW0}, 0"); B("s_cbranch_scc0 L_first")
    B(f"ds_write_b32 v{vL4}, v{vAt} offset:{LDS_MB}")
    B.label("L_first")
    B("s_waitcnt lgkmcnt(0)"); B("s_barrier")
    B(f"ds_read_b32 v{vTmp}, v{vMb}")
    B.lock = False
    def vtg(P, tot):
        c0 = P("wait", 0); c1 = P("vdone") + vtail
        return [c0 + (c1 - c0) * (k + 0.9) / 16 for k in range(16)]
    vbody = finish(B, vtg, "V")

    B = Stream()
    B.lock = True
    B.label("L_H")
    itstamp(B)
    if stamps: B(f"s_add_u32 s{sI}, s{sI}, 1")
    B("s_waitcnt lgkmcnt(0)")
    B.c("next half group from the pair's ticket counter")
    B(f"v_readfirstlane_b32 s{sG}, v{vTmp}")
    prep_v(B)
    B(f"s_add_u32 s{sG}, s{sG}, 4")
    B(f"s_cmp_lt_u32 s{sG}, {NH}"); B("s_cbranch_scc0 L_nomore")
    set_half(B)
    B.label("L_h1")
    B.lock = False
    B.mark("ready")
    sc_lo_reads(B)
    prep_k(B)
    kitems(B, 8)
    B("s_waitcnt lgkmcnt(0)"); B("s_barrier")
    qk(B, 4)
    B("s_nop 5")
    softmax(B, 16, "H")
    B.mark("vstart")
    vphase(B, 8, 0, False)
    B.mark("vdone")
    B.mark("smallwait")
    B(f"s_cmp_lg_u32 s{sW0}, 0")
    B.lock = True
    B("s_cbranch_scc0 L_nopost")
    B.mark("postwait")
    B(f"ds_write_b32 v{vL4}, v{vAt} offset:{LDS_MB}")
    B.label("L_nopost")
    B.lock = False
    B("s_waitcnt lgkmcnt(0)"); B("s_barrier")
    def exH():
        B(f"ds_read_b32 v{vTmp}, v{vMb}"); ktab_reads(B); vtab_reads(B)
    pv(B, 0, exH, 5)
    B.mark("allissued")
    B.lock = True
    B(f"s_cmp_eq_u32 s{sEnd}, 0"); B("s_cbranch_scc1 L_H")
    B.lock = False
    def htg(P, tot):
        c0 = P("wait", 0); c1 = P("vstart"); c2 = P("vdone") + htail
        return [c0 + (c1 - c0) * (k + 0.3) / 8 for k in range(8)] + [c1 + (c2 - c1) * (k + 0.9) / 8 for k in range(8)]
    hbody = finish(B, htg, "H", atomic=True)

    E = Stream()
    def stampE(i):
        if stamps: E(f"s_memrealtime s[{84+2*i}:{85+2*i}]")
    stampE(1)
    if stamps: E("s_mov_b32 s99, 0")
    E.c("row sum over the four lane groups")
    for sw in ("v_permlane32_swap_b32", "v_permlane16_swap_b32"):
        E(f"v_mov_b32 v{vTmp+1}, v{vL}"); E("s_nop 1"); E(f"{sw} v{vTmp+1}, v{vL}"); E("s_nop 1"); E(f"v_add_f32 v{vL}, v{vL}, v{vTmp+1}")
    E("s_waitcnt lgkmcnt(0)")
    E(f"s_cmp_eq_u32 s{sEnd}, 2"); E("s_cbranch_scc1 L_merge")
    E.c("not the last workgroup of this pair: hand the partial over; header = (m, l, checksum), none equal to the empty mark")
    own_slot(E)
    for q in range(4):
        for i in range(4 * q, 4 * q + 4): E(f"v_cvt_pk_bf16_f32 v{vSt+i}, v{vO+2*i}, v{vO+2*i+1}")
        E(f"buffer_store_dwordx4 {vr(vSt+4*q,4)}, v{vLin}, {srd(sWS)}, s{sT} offen offset:{q*1024} {pubf}")
    for i in range(16): E(f"v_dot2_u32_u16 v{vCk}, v{vSt+i}, s{sCw + (i + i//4) % 4}, {'0' if i == 0 else 'v%d' % vCk}")
    E(f"v_min_u32 v{vM}, -2, v{vM}"); E(f"v_min_u32 v{vL}, -2, v{vL}"); E("s_nop 0"); E(f"v_min_u32 v{vCk}, -2, v{vCk}")
    E(f"buffer_store_dwordx4 {vr(vM,4)}, v{vLin}, {srd(sWS)}, s{sT2} offen {pubf}")
    if stamps:
        for i in (2, 3, 4): stampE(i)
        E("s_branch L_done")
    else:
        E("s_endpgm")
    E.label("L_merge")
    E.c("last workgroup of the pair: fold in the other three partials, re-reading those that have not fully arrived")
    ml = lambda x: vRing + 4 * (x - 1)
    dat = lambda x: vRing + 16 * x
    bb = vKS; u0 = vKP
    E(f"s_mov_b32 s{sPend}, 7"); E(f"s_mov_b32 s{sThr}, {hex(f32bits(TM))}")
    E.label("L_round")
    E("s_waitcnt vmcnt(0)")
    E(f"s_mov_b32 s{sG}, 0")
    for x in range(1, 4):
        E(f"s_bitcmp1_b32 s{sPend}, {x-1}"); E(f"s_cbranch_scc0 L_chk{x}")
        for i in range(16): E(f"v_dot2_u32_u16 v{vCk}, v{dat(x)+i}, s{sCw + (i + i//4) % 4}, {'0' if i == 0 else 'v%d' % vCk}")
        E(f"v_max_u32 v{vTmp+1}, v{ml(x)}, v{ml(x)+1}"); E(f"v_cmp_eq_u32 s[4:5], -1, v{vTmp+1}"); E("s_nop 0")
        E(f"v_min_u32 v{vCk}, -2, v{vCk}"); E(f"v_cmp_ne_u32 vcc, v{vCk}, v{ml(x)+2}")
        E("s_or_b64 vcc, vcc, s[4:5]"); E(f"s_cbranch_scc0 L_ok{x}")
        for k in (x - 1, 4 * x, 4 * x + 1, 4 * x + 2, 4 * x + 3): E(item_text(k, "sc0 sc1"))
        E(f"s_branch L_chk{x}")
        E.label(f"L_ok{x}")
        E(f"s_bitset1_b32 s{sG}, {x-1}")
        E.label(f"L_chk{x}")
    for x in range(1, 4):
        E(f"s_bitcmp1_b32 s{sG}, {x-1}"); E(f"s_cbranch_scc0 L_fold{x}")
        E(f"v_sub_f32 v{bb}, v{ml(x)}, v{vM}"); E(f"v_cmp_lt_f32 vcc, s{sThr}, v{bb}"); E(f"s_cbranch_vccz L_near{x}")
        E(f"v_max_f32 v{vMx}, v{vM}, v{ml(x)}"); E(f"v_sub_f32 v{vTmp+1}, v{vM}, v{vMx}"); E(f"v_exp_f32 v{vTmp+1}, v{vTmp+1}")
        E(f"v_mov_b32 v{vM}, v{vMx}"); E(f"v_sub_f32 v{bb}, v{ml(x)}, v{vMx}"); E(f"v_mul_f32 v{vL}, v{vL}, v{vTmp+1}")
        for i in range(32): E(f"v_mul_f32 v{vO+i}, v{vO+i}, v{vTmp+1}")
        E.label(f"L_near{x}")
        E(f"v_exp_f32 v{bb}, v{bb}")
        for q in range(4):
            r = dat(x) + 4 * q
            for i in range(4):
                E(f"v_lshlrev_b32 v{u0+2*i}, 16, v{r+i}"); E(f"v_and_b32 v{u0+2*i+1}, 0xffff0000, v{r+i}")
            for i in range(4):
                d = vO + 2 * (4 * q + i)
                E(f"v_pk_fma_f32 {vr(d,2)}, {vr(u0+2*i,2)}, {vr(bb,2)}, {vr(d,2)} op_sel_hi:[1,0,1]")
        E(f"v_fmac_f32 v{vL}, v{ml(x)+1}, v{bb}")
        E.label(f"L_fold{x}")
    if stamps: E("s_add_u32 s99, s99, 1")
    E(f"s_sub_u32 s{sSpin}, s{sSpin}, 1"); E(f"s_cselect_b32 s{sG}, 7, s{sG}")
    E(f"s_andn2_b32 s{sPend}, s{sPend}, s{sG}"); E("s_cbranch_scc1 L_round")
    for i in (2, 3, 4): stampE(i)
    E(f"v_rcp_f32 v{bb}, v{vL}")
    E(f"v_and_b32 v{vTmp}, 15, v{vLane}"); E(f"v_lshrrev_b32 v{vTmp+1}, 4, v{vLane}")
    E(f"v_lshlrev_b32 v{vTmp}, 8, v{vTmp}"); E(f"v_lshl_add_u32 v{vTmp}, v{vTmp+1}, 4, v{vTmp}")
    E(f"s_lshl_b32 s{sT}, s{sWave}, 12")
    for u in range(4):
        for i in range(4 * u, 4 * u + 4): E(f"v_pk_mul_f32 {vr(vO+2*i,2)}, {vr(vO+2*i,2)}, {vr(bb,2)} op_sel_hi:[1,0]")
        for i in range(4 * u, 4 * u + 4): E(f"v_cvt_pk_bf16_f32 v{vS+i}, v{vO+2*i}, v{vO+2*i+1}")
        E(f"buffer_store_dwordx4 {vr(vS+4*u,4)}, v{vTmp}, {srd(sOUT)}, s{sT} offen offset:{u*64} {outf}")
    E.label("L_done")
    if stamps:
        E("s_waitcnt vmcnt(0)")
        stampE(5)
        E(f"s_lshl_b32 s{sT}, s2, 2"); E(f"s_add_u32 s{sT}, s{sT}, s{sWave}"); E(f"s_lshl_b32 s{sT2}, s{sT}, 4")
        E(f"s_lshl_b32 s4, s{sT}, 8"); E("s_add_u32 s4, s4, 0x22000000")
        E(f"s_add_u32 s{sT2}, s{sT2}, 0x20000000")
        E(f"s_lshl_b32 s{sT}, s{sT}, 6"); E(f"s_add_u32 s{sT}, s{sT}, 0x21000000")
        E("s_waitcnt lgkmcnt(0)")
        E(f"v_accvgpr_read_b32 v60, a255")
        for i in range(12): E(f"v_mov_b32 v{16+i}, s{84+i}")
        E(f"v_mov_b32 v28, s{sI}"); E("s_getreg_b32 s5, hwreg(HW_REG_XCC_ID)"); E("v_mov_b32 v29, s5"); E(f"v_mov_b32 v30, s{sEnd}"); E("v_mov_b32 v31, s99")
        E("v_mov_b32 v32, s84"); E("v_mov_b32 v33, s85"); E("v_mov_b32 v34, s94"); E("v_mov_b32 v35, s95")
        E(f"buffer_store_dword v60, v{vL4}, {srd(sWS)}, s4 offen sc0 sc1")
        E("s_mov_b64 exec, 1")
        E(f"buffer_store_dwordx4 v[32:35], off, {srd(sWS)}, s{sT2} sc0 sc1")
        for i in range(4): E(f"buffer_store_dwordx4 v[{16+4*i}:{19+4*i}], off, {srd(sWS)}, s{sT} offset:{16*i} sc0 sc1")
    E.label("L_end")
    E("s_endpgm")

    E.c("the pair's pool is empty")
    E.label("L_nomore")
    E(f"s_mov_b32 s{sEnd}, 1"); E(f"s_mov_b32 s{sX+2}, 0"); E(f"s_mov_b32 s{sY+2}, 0"); E(f"s_mov_b32 s{sW0}, 0")
    E(f"s_cmp_eq_u32 s{sG}, {NH+3}"); E("s_cbranch_scc0 L_h1")
    E.c("fourth workgroup to run dry: its 'next unit' is the three other partials")
    E(f"s_mov_b32 s{sEnd}, 2"); set_base(E, sWS); E(f"s_mov_b32 s{sX+2}, 0x40000000"); E(f"s_mov_b32 s{sY+2}, 0x40000000")
    E(f"s_lshl_b32 s{sG}, s{sPair}, 2"); E(f"s_add_u32 s{sG}, s{sG}, s{sWave}"); E(f"s_lshl_b32 s{sG}, s{sG}, 15")
    E(f"s_add_u32 s{sG}, s{sG}, {WS_SLOT}"); E(f"s_sub_u32 s{sG}, s{sG}, s{sWb}")
    for x in range(1, 4):
        E(f"s_add_u32 s{sT}, s{sSplit}, {x}"); E(f"s_and_b32 s{sT}, s{sT}, 3"); E(f"s_lshl_b32 s{sT}, s{sT}, 13")
        E(f"s_add_u32 s{sO+3+x}, s{sG}, s{sT}"); E(f"s_add_u32 s{sO+x-1}, s{sO+3+x}, 4096")
    E(f"s_mov_b32 s{sO+3}, s{sO+2}")
    E("s_branch L_h1")

    E.label("L_k2v")
    E(f"s_lshl_b32 s{sO}, s{sSplit}, 16"); set_offs(E); set_base(E, sVb)
    E(f"s_cmp_lg_u32 s{sW0}, 0"); E("s_cbranch_scc0 L_k1")
    E(f"buffer_load_dword v{vFl}, off, {srd(sDBG)}, s{sDoff} sc0 sc1")
    E("s_branch L_k1")

    E.c("last V unit: the next unit is the first H unit; wave 0 checks that the ticket counter is live and takes the first ticket")
    E.label("L_v2h")
    E(f"s_cmp_lg_u32 s{sW0}, 0"); E("s_cbranch_scc0 L_v2h1")
    E.label("L_flag")
    E(f"v_readfirstlane_b32 s{sT}, v{vFl}"); E(f"s_sub_u32 s{sSpin}, s{sSpin}, 1"); E("s_cbranch_scc1 L_live"); E("s_nop 2")
    E(f"s_bitcmp1_b32 s{sT}, 8"); E("s_cbranch_scc1 L_live")
    E(f"buffer_load_dword v{vFl}, off, {srd(sDBG)}, s{sDoff} sc0 sc1")
    E("s_waitcnt vmcnt(0)"); E("s_branch L_flag")
    E.label("L_live")
    E("s_mov_b64 exec, 1"); E(f"v_mov_b32 v{vAt}, 1")
    E(f"buffer_atomic_add v{vAt}, off, {srd(sWS)}, s{sCoff} sc0")
    E("s_mov_b64 exec, -1")
    E.label("L_v2h1")
    set_base(E, sKb, sVb)
    E(f"s_mov_b32 s{sKsl}, {DSLOT}"); E(f"s_mov_b32 s{sG}, s{sSplit}")
    set_half(E)
    E("s_branch L_v0")

    def tree(lo, hi, reg, pre, leaf):
        if lo == hi: leaf(lo); return
        mid = (lo + hi + 1) // 2
        E(f"s_cmp_ge_u32 s{reg}, {mid}"); E(f"s_cbranch_scc1 {pre}{mid}_{hi}")
        tree(lo, mid - 1, reg, pre, leaf)
        E.label(f"{pre}{mid}_{hi}")
        tree(mid, hi, reg, pre, leaf)
    E.label("L_restore")
    def rleaf(j1):
        b = 17 * (j1 - 1)
        E(f"v_accvgpr_read_b32 v{vMx}, a{b+16}")
        for i in range(16): E(f"v_accvgpr_read_b32 v{vS+i}, a{b+i}")
        E("s_branch L_restored")
    tree(1, npf, sJ, "L_r", rleaf)
    E.label("L_restored")
    E(f"v_cmp_neq_f32 vcc, v{vMx}, v{vMO}")
    E("s_cbranch_vccz L_v1")
    E.c("this tile's P used a newer reference max than O holds: bring O up to it")
    E(f"v_sub_f32 v{vTmp+1}, v{vMO}, v{vMx}"); E(f"v_exp_f32 v{vTmp+1}, v{vTmp+1}"); E(f"v_mov_b32 v{vMO}, v{vMx}")
    for i in range(32): E(f"v_mul_f32 v{vO+i}, v{vO+i}, v{vTmp+1}")
    E("s_branch L_v1")
    E.label("L_save")
    def sleaf(i1):
        b = 17 * (i1 - 1)
        for i in range(16): E(f"v_accvgpr_write_b32 a{b+i}, v{vS+i}")
        E(f"v_accvgpr_write_b32 a{b+16}, v{vM}")
        E("s_branch L_saved")
    tree(1, npf, sI, "L_s", sleaf)

    E.c("rare path: the running max rose past the threshold -> move the reference to the true running max")
    for tag in ("K", "H"):
        E.label(f"L_rescale{tag}")
        for sw in ("v_permlane32_swap_b32", "v_permlane16_swap_b32"):
            E(f"v_mov_b32 v{vTmp+1}, v{vMx}"); E("s_nop 1"); E(f"{sw} v{vTmp+1}, v{vMx}"); E("s_nop 1"); E(f"v_max_f32 v{vMx}, v{vMx}, v{vTmp+1}")
        E(f"v_mul_f32 v{vMx}, s{sC}, v{vMx}"); E(f"v_max_f32 v{vMx}, v{vMx}, v{vM}")
        E(f"v_sub_f32 v{vTmp+1}, v{vM}, v{vMx}"); E(f"v_exp_f32 v{vTmp+1}, v{vTmp+1}"); E(f"v_mov_b32 v{vM}, v{vMx}")
        E(f"v_mul_f32 v{vL}, v{vL}, v{vTmp+1}")
        if tag == "H":
            for i in range(32): E(f"v_mul_f32 v{vO+i}, v{vO+i}, v{vTmp+1}")
        E(f"s_branch L_rescaled{tag}")

    E.c("wave 0: the first workgroup of the pair to get here zeroes the ticket counter in d_ws and raises a flag in d_debug")
    E.label("L_hookK")
    E(f"s_sub_u32 s{sT}, s{sI}, s{sH0}")
    E(f"s_cmp_eq_u32 s{sT}, 0"); E("s_cbranch_scc1 L_h0")
    E(f"s_cmp_eq_u32 s{sT}, 2"); E("s_cbranch_scc1 L_hk1")
    E(f"s_cmp_eq_u32 s{sT}, 4"); E("s_cbranch_scc0 L_k1")
    E(f"s_cmp_lg_u32 s{sIni}, 0"); E("s_cbranch_scc0 L_k1")
    E("s_mov_b64 exec, 1"); E(f"v_mov_b32 v{vFl}, {FLAG}")
    E(f"buffer_atomic_or v{vFl}, off, {srd(sDBG)}, s{sDoff}")
    E("s_mov_b64 exec, -1"); E("s_branch L_k1")
    E.label("L_h0")
    E("s_mov_b64 exec, 1"); E(f"v_mov_b32 v{vFl}, 1")
    E(f"buffer_atomic_add v{vFl}, off, {srd(sDBG)}, s{sDoff} sc0")
    E("s_mov_b64 exec, -1"); E("s_branch L_k1")
    E.label("L_hk1")
    E(f"v_readfirstlane_b32 s{sT}, v{vFl}"); E("s_nop 3")
    E(f"s_cmp_eq_u32 s{sT}, 0"); E("s_cbranch_scc0 L_k1")
    E(f"s_mov_b32 s{sIni}, 1")
    E("s_mov_b64 exec, 1")
    E(f"buffer_atomic_swap v{vFl}, off, {srd(sWS)}, s{sCoff} sc0")
    E("s_mov_b64 exec, -1"); E("s_branch L_k1")

    L = [HDR.rstrip(), f"; @launch grid=(256,1,1) block=(256,1,1) lds={LDS_TOTAL}", '.amdgcn_target "amdgcn-amd-amdhsa--gfx950"',
         ".text", f".globl {NAME}_kernel", ".p2align 8", f".type {NAME}_kernel,@function", f"{NAME}_kernel:"]
    L += pro.text() + kbody + vbody + hbody + E.text()
    L += ['.section .rodata,"a"', ".p2align 6", f".amdhsa_kernel {NAME}_kernel",
          "  .amdhsa_next_free_vgpr 512", "  .amdhsa_next_free_sgpr 102", "  .amdhsa_accum_offset 256",
          "  .amdhsa_group_segment_fixed_size 0", "  .amdhsa_kernarg_size 80", "  .amdhsa_user_sgpr_count 2",
          "  .amdhsa_user_sgpr_kernarg_segment_ptr 1", "  .amdhsa_system_sgpr_workgroup_id_x 1",
          "  .amdhsa_float_denorm_mode_32 3", "  .amdhsa_float_denorm_mode_16_64 3", ".end_amdhsa_kernel"]
    open(path, "w").write("\n".join(L) + "\n")

if __name__ == "__main__":
    import argparse
    ap = argparse.ArgumentParser()
    ap.add_argument("out")
    ap.add_argument("--AL", type=int, default=8); ap.add_argument("--np", type=int, default=12)
    ap.add_argument("--stamps", action="store_true"); ap.add_argument("--it", action="store_true")
    ap.add_argument("--cs", type=int, default=8); ap.add_argument("--nt", default="sc0 sc1 nt"); ap.add_argument("--q", default="")
    ap.add_argument("--smf", default="nt"); ap.add_argument("--mix", type=lambda x: int(x, 0), default=0x11111111)
    ap.add_argument("--nK1", type=int, default=9); ap.add_argument("--vtail", type=int, default=250); ap.add_argument("--htail", type=int, default=200)
    ap.add_argument("--T", type=float, default=8.0); ap.add_argument("--TM", type=float, default=32.0)
    ap.add_argument("--outf", default=""); ap.add_argument("--pubf", default="sc0 sc1")
    ap.add_argument("--cap", default=None); ap.add_argument("--capH", default=None); ap.add_argument("--capP", default=None)
    a = ap.parse_args()
    gen(a.out, AL=a.AL, npf=a.np, stamps=a.stamps, cstride=a.cs, nt=a.nt, qflag=a.q, smf=a.smf, mix=a.mix, nK1=a.nK1, vtail=a.vtail,
        T=a.T, itst=a.it, outf=a.outf, htail=a.htail, pubf=a.pubf, TM=a.TM, cap=a.cap, capH=a.capH, capP=a.capP)
```

```python
import sys, struct, math
NAME = "standalone__kv_cache_quant_int4_int2_kv_with_per_channel_or_per_token_scales__sampling"
HDR = open("cdna_kernels/" + NAME + ".s.ref").read().split("; Override launch")[0]

def f32bits(x):
    return struct.unpack("<I", struct.pack("<f", x))[0]

def cost_of(s):
    op = s.split()[0]
    if op.startswith("v_mfma"): return 16
    if op in ("v_exp_f32", "v_rcp_f32"): return 8
    if op.startswith("v_"): return 4
    if op == "ds_write_b128": return 26
    if op == "ds_write_b64": return 10
    if op.startswith("ds_"): return 2
    if op == "s_barrier": return 40
    if op == "s_nop": return 4 * (int(s.split()[1]) + 1)
    return 2

class Stream:
    def __init__(self): self.I = []; self.lock = False
    def __call__(self, s, cost=None):
        self.I.append(dict(t="    " + s, c=(cost_of(s) if cost is None else cost), ins=not self.lock))
    def label(self, s): self.I.append(dict(t=s + ":", c=0, ins=not self.lock))
    def c(self, s): self.I.append(dict(t="    ; " + s, c=0, ins=not self.lock))
    def mark(self, kind, k=None): self.I.append(dict(mark=kind, k=k, c=0, ins=not self.lock))
    def text(self): return [x["t"] for x in self.I]

def gen(path, AL=8, npf=12, stamps=False, nt="sc0 sc1 nt", smf="nt", qflag="", cstride=8, T=8.0, PF=8,
        mix=0x11111111, nK1=9, vtail=250, itst=False, outf="", htail=200, pubf="sc0 sc1", TM=32.0, cap=None, capH=None, capP=None, diagx=0):
    if capH is None: capH = cap
    if capP is None: capP = cap
    capn = lambda c, k: int(c[k % len(c)], 16) - 1
    assert 8 <= npf <= 15
    NH = 2 * (64 - 4 * npf)
    KROW = 288; JS = 576; OS = 2320
    TABW = 18 * 256; DSLOT = 16 * 256
    LDS_MB = 0; LDS_SC = 256; LDS_TAB = 1536; LDS_K = LDS_TAB + 4 * TABW; LDS_V = LDS_K + 128 * KROW
    LDS_TOTAL = LDS_V + 16 * OS
    assert LDS_K % 256 == 0 and LDS_K + 128 * KROW < 65536 and LDS_TAB % 512 == 0 and TABW % 512 == 0
    WS_SLOT = 1 << 20; WS_CTR = 16 << 20; FLAG = 0x100
    SPIN = 1 << 21
    vLane, vOff, vKW, vKR, vSW, vSR, vVW, vVR, vTK, vTV, vL4, vLin = range(12)
    vM, vL, vCk, vFl = 12, 13, 14, 15
    vMb, vMx, vT2 = 16, 17, 18
    vKS, vKC = 20, 24; vKSr, vKZr, vVSr, vVZr = 28, 30, 32, 33
    vTmp = 34
    vAt = 38; vMO = 39
    vKP = 40; vVP = 48; vO = 64; vS = 96; vRing = 128; vQ = 192; vSt = 208; NST = 12
    vSc = vS + 16
    sX, sY, sSM, sQ, sDBG, sWS, sOUT = 8, 12, 16, 20, 24, 28, 32
    sKb, sVb = 36, 38
    sPair, sSplit, sI, sJ, sG, sT, sT2, sC, sThr, sDoff, sCoff, sIni, sKsl, sVsl, sEnd, sWb, sH0, sPend, sSpin, sW0 = range(40, 60)
    sO = 64
    sCw = 72
    sWave = 3
    srd = lambda r: f"s[{r}:{r+3}]"
    vr = lambda r, n: f"v[{r}:{r+n-1}]"
    def item_text(k, fl=None):
        so, imm = (sO + k, 0) if k < 4 else (sO + 3 + k // 4, (k % 4) * 1024)
        return f"buffer_load_dwordx4 {vr(vRing+4*k,4)}, v{vOff}, {srd(sX if k < 8 else sY)}, s{so} offen offset:{imm} {nt if fl is None else fl}"
    def set_offs(A, half=False):
        for i, d in enumerate((1024, 2048, 3072, 4096) + ((0, 4096) if half else (16384, 20480))): A(f"s_add_u32 s{sO+1+i}, s{sO}, {d}")
    def set_static(A, sidx):
        A(f"s_lshl_b32 s{sO}, s{sidx}, 2"); A(f"s_add_u32 s{sO}, s{sO}, s{sSplit}"); A(f"s_lshl_b32 s{sO}, s{sO}, 16"); set_offs(A)
    def set_base(A, b, b2=None):
        if b2 is None: b2 = b
        A(f"s_mov_b64 s[{sX}:{sX+1}], s[{b}:{b+1}]"); A(f"s_mov_b64 s[{sY}:{sY+1}], s[{b2}:{b2+1}]")
    def set_half(A):
        A(f"s_and_b32 s{sT}, s{sG}, 1"); A(f"s_lshr_b32 s{sG}, s{sG}, 1"); A(f"s_add_u32 s{sG}, s{sG}, {4*npf}")
        A(f"s_lshl_b32 s{sO}, s{sG}, 16"); A(f"s_lshl_b32 s{sT2}, s{sT}, 14"); A(f"s_add_u32 s{sO}, s{sO}, s{sT2}")
        A(f"s_xor_b32 s{sKsl}, s{sKsl}, 256"); A("s_xor_b32 m0, m0, 256")
        A(f"s_lshl_b32 s{sT}, s{sT}, 6"); A(f"s_add_u32 s{sVsl}, s{sKsl}, s{sT}")
        set_offs(A, True)
        A(f"s_lshl_b32 s{sT}, s{sG}, 8")
        A(f"buffer_load_dword v{vL4}, {srd(sSM)}, s{sT} offen {smf} lds")

    A = Stream()
    A("s_cmp_ge_u32 s2, 256"); A("s_cbranch_scc1 L_end")
    if stamps or diagx: A("s_memrealtime s[84:85]")
    A("s_load_dwordx16 s[64:79], s[0:1], 0")
    A("s_load_dwordx4 s[80:83], s[0:1], 64")
    A("v_lshrrev_b32 v1, 6, v0")
    A(f"v_and_b32 v{vLane}, 63, v0")
    A(f"v_readfirstlane_b32 s{sWave}, v1")
    if mix:
        A.c("which (batch, kv head) pair / split this workgroup takes: a bijection of the id (placement affects speed only)")
        A(f"s_lshr_b32 s{sT}, s2, 3"); A(f"s_and_b32 s{sT}, s{sT}, 7"); A(f"s_lshl_b32 s{sT}, s{sT}, 2")
        A(f"s_lshr_b32 s{sT}, {hex(mix)}, s{sT}"); A(f"s_and_b32 s{sT}, s{sT}, 3"); A(f"s_and_b32 s{sT}, s{sT}, s2")
        A(f"s_bcnt1_i32_b32 s{sT}, s{sT}"); A(f"s_and_b32 s{sT}, s{sT}, 1"); A(f"s_lshl_b32 s{sT}, s{sT}, 2"); A(f"s_xor_b32 s2, s2, s{sT}")
    A(f"s_lshr_b32 s{sPair}, s2, 2"); A(f"s_and_b32 s{sSplit}, s2, 3")
    c_, h_, m_, g_ = vKS, vKS + 1, vKS + 2, vKS + 3
    t0, t1, vQo, vSo = vKC, vKC + 1, vKC + 2, vKC + 3
    A(f"v_and_b32 v{c_}, 31, v{vLane}"); A(f"v_lshrrev_b32 v{h_}, 5, v{vLane}")
    A(f"v_and_b32 v{m_}, 15, v{vLane}"); A(f"v_lshrrev_b32 v{g_}, 4, v{vLane}")
    A(f"v_lshlrev_b32 v{vLin}, 4, v{vLane}"); A(f"v_lshlrev_b32 v{vL4}, 2, v{vLane}")
    A(f"s_and_b32 s{sT}, s{sWave}, 1"); A(f"s_lshl_b32 s{sT}, s{sT}, 13")
    A(f"s_lshr_b32 s{sT2}, s{sWave}, 1"); A(f"s_lshl_b32 s{sT2}, s{sT2}, 15"); A(f"s_add_u32 s{sWb}, s{sT}, s{sT2}")
    A(f"v_add_u32 v{vOff}, s{sWb}, v{vLin}")
    A(f"v_lshlrev_b32 v{vSo}, 10, v{g_}"); A(f"v_lshl_add_u32 v{vSo}, v{m_}, 4, v{vSo}")
    A(f"v_lshlrev_b32 v{vQo}, 8, v{m_}"); A(f"v_lshl_add_u32 v{vQo}, v{g_}, 4, v{vQo}")
    for i in range(4): A(f"v_mov_b32 v{vVP+i}, -1")
    def own_slot(A):
        A(f"s_lshl_b32 s{sT}, s{sPair}, 2"); A(f"s_add_u32 s{sT}, s{sT}, s{sWave}"); A(f"s_lshl_b32 s{sT}, s{sT}, 2"); A(f"s_add_u32 s{sT}, s{sT}, s{sSplit}")
        A(f"s_lshl_b32 s{sT}, s{sT}, 13"); A(f"s_add_u32 s{sT}, s{sT}, {WS_SLOT}"); A(f"s_add_u32 s{sT2}, s{sT}, 4096")
    A(f"s_mul_i32 s{sG}, s{sWave}, {TABW}"); A(f"s_add_u32 s{sG}, s{sG}, {LDS_TAB}"); A(f"s_mov_b32 m0, s{sG}")
    own_slot(A)
    for r in (sX, sY): A(f"s_mov_b32 s{r+2}, 0x400000"); A(f"s_mov_b32 s{r+3}, 0x20000")
    A(f"s_mov_b32 s{sWS+2}, 0x40000000"); A(f"s_mov_b32 s{sWS+3}, 0x20000")
    A(f"s_lshl_b32 s{sT}, s{sPair}, 22")
    A("s_waitcnt lgkmcnt(0)")
    A.c("mark the header of this wave's hand-off slot empty")
    A(f"s_mov_b64 s[{sWS}:{sWS+1}], s[82:83]")
    A(f"buffer_store_dwordx4 {vr(vVP,4)}, v{vLin}, {srd(sWS)}, s{sT2} offen sc0 sc1")
    A(f"s_add_u32 s{sKb}, s66, s{sT}"); A(f"s_addc_u32 s{sKb+1}, s67, 0")
    A(f"s_add_u32 s{sVb}, s68, s{sT}"); A(f"s_addc_u32 s{sVb+1}, s69, 0")
    set_base(A, sKb)
    A.c("wave w streams scale/zero array w (ks, kz, vs, vz) into the LDS table")
    A(f"s_cmp_eq_u32 s{sWave}, 1"); A("s_cselect_b64 s[4:5], s[72:73], s[70:71]")
    A(f"s_cmp_eq_u32 s{sWave}, 2"); A("s_cselect_b64 s[4:5], s[74:75], s[4:5]")
    A(f"s_cmp_eq_u32 s{sWave}, 3"); A("s_cselect_b64 s[4:5], s[76:77], s[4:5]")
    A(f"s_lshl_b32 s{sT}, s{sPair}, 14")
    def mk(r, p):
        A(f"s_add_u32 s{r}, s{p}, s{sT}"); A(f"s_addc_u32 s{r+1}, s{p+1}, 0"); A(f"s_mov_b32 s{r+2}, 0x4000"); A(f"s_mov_b32 s{r+3}, 0x20000")
    mk(sSM, 4); mk(sQ, 64); mk(sOUT, 78)
    A(f"s_lshl_b32 s{sT}, s{sSplit}, 8")
    nT = (npf + 3) // 4
    for u in range(nT):
        rows = min(4, npf - 4 * u)
        if rows < 4: A(f"s_bfm_b64 exec, {16*rows}, 0")
        A(f"buffer_load_dwordx4 v{vSo}, {srd(sSM)}, s{sT} offen {smf} lds")
        if rows < 4: A("s_mov_b64 exec, -1")
        if u + 1 < nT: A(f"s_add_u32 m0, m0, 1024"); A(f"s_add_u32 s{sT}, s{sT}, 4096")
    A(f"s_add_u32 m0, s{sG}, {DSLOT}")
    A(f"s_lshl_b32 s{sT}, s{sWave}, 12")
    for s4 in range(4): A(f"buffer_load_dwordx4 {vr(vQ+4*s4,4)}, v{vQo}, {srd(sQ)}, s{sT} offen offset:{s4*64} {qflag}")
    A(f"s_lshl_b32 s{sO}, s{sSplit}, 16"); set_offs(A)
    npre = 16 if not capP else 4
    for k in range(npre): A(item_text(k))
    A(f"v_lshlrev_b32 v{vTK}, 3, v{c_}")
    A(f"v_lshrrev_b32 v{vTV}, 4, v{c_}"); A(f"v_lshlrev_b32 v{vTV}, 5, v{vTV}")
    A(f"v_and_b32 v{t0}, 15, v{c_}"); A(f"v_add_lshl_u32 v{vTV}, v{vTV}, v{t0}, 1")
    A(f"s_lshr_b32 s{sT}, s{sWb}, 8"); A(f"v_add_u32 v{vTV}, s{sT}, v{vTV}")
    A(f"s_lshr_b32 s{sT}, s{sWave}, 1"); A(f"s_and_b32 s{sT2}, s{sWave}, 1")
    A(f"s_mul_i32 s{sT}, s{sT}, {32*KROW}"); A(f"s_mul_i32 s{sT2}, s{sT2}, {8*KROW}"); A(f"s_add_u32 s{sT}, s{sT}, s{sT2}")
    A(f"v_mul_u32_u24 v{vKW}, {4*KROW}, v{h_}"); A(f"v_lshl_add_u32 v{vKW}, v{c_}, 3, v{vKW}"); A(f"v_add_u32 v{vKW}, s{sT}, v{vKW}")
    A(f"v_mul_u32_u24 v{vKR}, {KROW}, v{m_}"); A(f"v_lshl_add_u32 v{vKR}, v{g_}, 4, v{vKR}")
    A(f"s_mul_i32 s{sT}, s{sWave}, {2*OS}"); A(f"s_add_u32 s{sT}, s{sT}, {LDS_V}")
    A(f"v_mul_u32_u24 v{vVW}, {OS}, v{h_}"); A(f"v_lshl_add_u32 v{vVW}, v{c_}, 4, v{vVW}"); A(f"v_add_u32 v{vVW}, s{sT}, v{vVW}")
    A(f"v_mul_u32_u24 v{vVR}, {OS}, v{g_}"); A(f"v_and_b32 v{t0}, 3, v{m_}"); A(f"v_mul_u32_u24 v{t0}, {JS}, v{t0}")
    A(f"v_lshrrev_b32 v{t1}, 2, v{m_}"); A(f"v_lshlrev_b32 v{t1}, 5, v{t1}")
    A(f"v_add3_u32 v{vVR}, v{vVR}, v{t0}, v{t1}"); A(f"v_add_u32 v{vVR}, {LDS_V}, v{vVR}")
    A(f"s_lshl_b32 s{sT}, s{sWave}, 8"); A(f"s_add_u32 s{sT2}, s{sT}, {LDS_SC}")
    A(f"v_and_b32 v{vSW}, 1, v{c_}"); A(f"v_lshlrev_b32 v{vSW}, 7, v{vSW}")
    A(f"v_lshrrev_b32 v{t0}, 1, v{c_}"); A(f"v_lshl_add_u32 v{vSW}, v{t0}, 3, v{vSW}"); A(f"v_add_u32 v{vSW}, s{sT2}, v{vSW}")
    A(f"v_lshlrev_b32 v{vSR}, 7, v{h_}"); A(f"v_add_u32 v{vSR}, s{sT2}, v{vSR}")
    A(f"v_mov_b32 v{vMb}, {LDS_MB}")
    A(f"s_mov_b64 s[{sDBG}:{sDBG+1}], s[80:81]"); A(f"s_mov_b32 s{sDBG+2}, 256"); A(f"s_mov_b32 s{sDBG+3}, 0x20000")
    A(f"s_lshl_b32 s{sCoff}, s{sPair}, {cstride}"); A(f"s_add_u32 s{sCoff}, s{sCoff}, {WS_CTR}")
    A(f"s_lshl_b32 s{sDoff}, s{sPair}, 2")
    A(f"s_mov_b32 s{sC}, {hex(f32bits(math.log2(math.e) / math.sqrt(128.0)))}")
    A(f"s_mov_b32 s{sThr}, {hex(f32bits(T))}")
    for r in (sIni, sI, sJ, sKsl, sVsl, sEnd): A(f"s_mov_b32 s{r}, 0")
    A(f"s_mov_b32 s{sSpin}, {SPIN}")
    A(f"s_cmp_eq_u32 s{sWave}, 0"); A(f"s_cselect_b32 s{sW0}, 1, 0")
    for i, w in enumerate((0x9e37c2b3, 0x85eb6d2f, 0x27d4f1a9, 0x165753c5)): A(f"s_mov_b32 s{sCw+i}, {hex(w)}")
    A(f"s_and_b32 s{sH0}, s{sPair}, 1"); A(f"s_add_u32 s{sH0}, s{sH0}, 1")
    for i in range(32): A(f"v_mov_b32 v{vO+i}, 0")
    A(f"v_mov_b32 v{vM}, 0xf149f2ca"); A(f"v_mov_b32 v{vMO}, 0xf149f2ca"); A(f"v_mov_b32 v{vL}, 0"); A(f"v_mov_b32 v{vAt}, 0"); A(f"v_mov_b32 v{vFl}, 0")
    def ktab_reads(S):
        S(f"v_add_u32 v{vTmp+3}, s{sKsl}, v{vTK}")
        S(f"ds_read_b64 {vr(vKSr,2)}, v{vTmp+3} offset:{LDS_TAB}"); S(f"ds_read_b64 {vr(vKZr,2)}, v{vTmp+3} offset:{LDS_TAB+TABW}")
    def vtab_reads(S):
        S(f"v_xor_b32 v{vTmp+3}, s{sVsl}, v{vTV}")
        S(f"ds_read_u16 v{vVSr}, v{vTmp+3} offset:{LDS_TAB+2*TABW}"); S(f"ds_read_u16 v{vVZr}, v{vTmp+3} offset:{LDS_TAB+3*TABW}")
    def prep_v(S):
        S(f"v_lshlrev_b32 v{vT2}, 16, v{vVSr}"); S(f"v_lshlrev_b32 v{vT2+1}, 16, v{vVZr}")
        S(f"v_mul_f32 v{vT2+1}, -v{vT2+1}, v{vT2}"); S(f"v_mul_f32 v{vT2}, 0x4b800000, v{vT2}")
        S(f"ds_write_b64 v{vSW}, {vr(vT2,2)}")
    def prep_k(S):
        S.c("K: S = ks*2^24, C = -kz*ks per channel (the int code is read as an f16 subnormal, code*2^-24)")
        for p in range(2):
            S(f"v_lshlrev_b32 v{vKS+2*p}, 16, v{vKSr+p}"); S(f"v_and_b32 v{vKS+2*p+1}, 0xffff0000, v{vKSr+p}")
            S(f"v_lshlrev_b32 v{vKC+2*p}, 16, v{vKZr+p}"); S(f"v_and_b32 v{vKC+2*p+1}, 0xffff0000, v{vKZr+p}")
        for j in range(4): S(f"v_mul_f32 v{vKC+j}, -v{vKC+j}, v{vKS+j}")
        for j in range(4): S(f"v_mul_f32 v{vKS+j}, 0x4b800000, v{vKS+j}")
    def sc_lo_reads(S):
        for i in range(4): S(f"ds_read_b128 {vr(vSc+4*i,4)}, v{vSR} offset:{i*16}")
    for k in range(npre, 16):
        A(f"s_waitcnt vmcnt({capn(capP, k)})"); A(item_text(k))
    A(f"s_waitcnt vmcnt({4+16})"); A("s_barrier")
    ktab_reads(A); vtab_reads(A)
    A("s_waitcnt lgkmcnt(0)")
    prep_v(A)
    pro = A

    def itstamp(S):
        if stamps and itst:
            S("s_memrealtime s[96:97]"); S("s_mov_b32 s98, m0"); S(f"s_add_u32 m0, s{sI}, s{sJ}"); S(f"v_accvgpr_read_b32 v{vTmp+3}, a255"); S("s_waitcnt lgkmcnt(0)")
            S(f"v_writelane_b32 v{vTmp+3}, s96, m0"); S("s_mov_b32 m0, s98"); S(f"v_accvgpr_write_b32 a255, v{vTmp+3}")

    def finish(B, targets, name, atomic=False):
        I = B.I
        pos = lambda kind, k=None: next(i for i, x in enumerate(I) if x.get("mark") == kind and x.get("k") == k)
        cum = []; a = 0
        for x in I: cum.append(a); a += x["c"]
        tg = targets(lambda kind, k=None: cum[pos(kind, k)], a)
        place = []; prev = pos("ready") + 1
        for k in range(16):
            p = next((i for i in range(len(I)) if cum[i] >= tg[k]), len(I) - 1)
            p = max(p, prev, pos("free", k) + 1)
            while not I[p]["ins"]: p += 1
            assert p <= pos("allissued"), (name, k)
            place.append(p); prev = p
        at = None
        if atomic:
            nb = sum(1 for p in place if p <= pos("postwait")); at = nb - AL; assert at >= 0
        out = []; ei = 0; info = []
        for i, x in enumerate(I):
            while ei < 16 and place[ei] == i:
                if ei == at:
                    out += [f"    s_cmp_lg_u32 s{sW0}, 0", "    s_cbranch_scc0 L_noat", "    s_mov_b64 exec, 1", f"    v_mov_b32 v{vAt}, 1",
                            f"    buffer_atomic_add v{vAt}, off, {srd(sWS)}, s{sCoff} sc0", "    s_mov_b64 exec, -1", "L_noat:"]
                cc = capH if name == "H" else cap
                if cc: out.append(f"    s_waitcnt vmcnt({capn(cc, ei)})")
                out.append("    " + item_text(ei)); ei += 1
            if "mark" in x:
                if x["mark"] == "wait":
                    n = 15 - x["k"] + ei; info.append(n); out.append(f"    s_waitcnt vmcnt({n})")
                elif x["mark"] == "smallwait": out.append(f"    s_waitcnt vmcnt({ei})")
                elif x["mark"] == "postwait": out.append(f"    s_waitcnt vmcnt({AL})")
            else: out.append(x["t"])
        assert ei == 16
        gaps = [cum[place[k+1]] - cum[place[k]] for k in range(15)]
        print(name, "cost", a, "vmcnt", info, "first", cum[place[0]], "gaps", gaps, "last->end", a - cum[place[15]], "atomic before", at, file=sys.stderr)
        return out

    def deq(S, r, s, c): S(f"v_fma_mix_f32 v{r}, v{r}, v{s}, v{c} op_sel_hi:[1,0,0]")
    def kitems(B, n):
        for k in range(n):
            r = vRing + 4 * k; t = vKP + 2 * (k % 4)
            B.mark("wait", k)
            for j in range(4): deq(B, r + j, vKS + j, vKC + j)
            B(f"v_cvt_pk_bf16_f32 v{t}, v{r}, v{r+1}"); B(f"v_cvt_pk_bf16_f32 v{t+1}, v{r+2}, v{r+3}")
            B.mark("free", k)
            B(f"ds_write_b64 v{vKW}, {vr(t,2)} offset:{LDS_K + ((k//8)*64 + ((k//4)%2)*16 + k%4)*KROW}")
        B.mark("kdone")
    def qk(B, nblk):
        B.c("S^T = K Q^T")
        order = [(2 * bp + u, s4) for bp in range(nblk // 2) for s4 in range(4) for u in range(2)]
        n = len(order)
        def kread(i):
            b, s4 = order[i]
            B(f"ds_read_b128 {vr(vSt+4*(i%NST),4)}, v{vKR} offset:{LDS_K + b*16*KROW + s4*64}")
        for i in range(PF): kread(i)
        for i in range(n):
            b, s4 = order[i]
            B(f"s_waitcnt lgkmcnt({min(PF-1, n-1-i)})")
            cc = "0" if s4 == 0 else vr(vS+4*b, 4)
            B(f"v_mfma_f32_16x16x32_bf16 {vr(vS+4*b,4)}, {vr(vSt+4*(i%NST),4)}, {vr(vQ+4*s4,4)}, {cc}")
            if i + PF < n: kread(i + PF)
    def softmax(B, n, tag):
        B(f"v_max3_f32 v{vMx}, v{vS}, v{vS+1}, v{vS+2}"); B(f"v_max3_f32 v{vTmp+1}, v{vS+3}, v{vS+4}, v{vS+5}")
        for i in range(6, n - 2, 4):
            B(f"v_max3_f32 v{vMx}, v{vMx}, v{vS+i}, v{vS+i+1}"); B(f"v_max3_f32 v{vTmp+1}, v{vTmp+1}, v{vS+i+2}, v{vS+i+3}")
        B(f"v_max3_f32 v{vMx}, v{vMx}, v{vS+n-2}, v{vS+n-1}"); B(f"v_max_f32 v{vMx}, v{vMx}, v{vTmp+1}")
        B(f"v_fma_f32 v{vTmp+1}, v{vMx}, s{sC}, -v{vM}")
        B(f"v_cmp_lt_f32 vcc, s{sThr}, v{vTmp+1}")
        B.lock = True
        B(f"s_cbranch_vccnz L_rescale{tag}")
        B.label(f"L_rescaled{tag}")
        B.lock = False
        for half in range(n // 16):
            b = vS + 16 * half
            for i in range(16): B(f"v_fma_f32 v{b+i}, v{b+i}, s{sC}, -v{vM}")
            for i in range(16): B(f"v_exp_f32 v{b+i}, v{b+i}")
            B(f"v_add_f32 v{vTmp+1}, v{b}, v{b+1}"); B(f"v_add_f32 v{vTmp+2}, v{b+2}, v{b+3}")
            for i in range(4, 16, 2):
                B(f"v_add_f32 v{vTmp+1}, v{vTmp+1}, v{b+i}"); B(f"v_add_f32 v{vTmp+2}, v{vTmp+2}, v{b+i+1}")
            B(f"v_add_f32 v{vL}, v{vL}, v{vTmp+1}"); B(f"v_add_f32 v{vL}, v{vL}, v{vTmp+2}")
            for i in range(8): B(f"v_cvt_pk_bf16_f32 v{vS+8*half+i}, v{b+2*i}, v{b+2*i+1}")
    def vphase(B, k0, s, refill_hi):
        for n8 in range(8):
            k = k0 + n8; r = vRing + 4 * k; sc = vSc + 2 * n8
            B.mark("wait", k)
            if refill_hi and n8 == 0: B("s_waitcnt lgkmcnt(0)")
            for j in range(4): deq(B, r + j, sc, sc + 1)
            if n8 % 2 == 1:
                if refill_hi: B(f"ds_read_b128 {vr(vSc+4*(n8//2),4)}, v{vSR} offset:{64 + (n8//2)*16}")
                for j in range(4): B(f"v_cvt_pk_bf16_f32 v{vVP+4*j+n8//2}, v{r-4+j}, v{r+j}")
                B.mark("free", k - 1); B.mark("free", k)
        for j in range(4): B(f"ds_write_b128 v{vVW}, {vr(vVP+4*j,4)} offset:{s*8*OS + j*JS}")
    def pv(B, s, extra, nextra):
        lst = [(2 * s + kk, db) for kk in range(2) for db in range(8)]
        def vread(i):
            ks, db = lst[i]
            B(f"ds_read_b128 {vr(vSt+4*(i%NST),4)}, v{vVR} offset:{ks*4*OS + (db//2)*128 + (db%2)*16}")
        for i in range(PF): vread(i)
        for i in range(16):
            ks, db = lst[i]
            younger = min(PF - 1, 15 - i)
            if i + PF >= 17: younger += nextra
            assert younger <= 15
            B(f"s_waitcnt lgkmcnt({younger})")
            B(f"v_mfma_f32_16x16x32_bf16 {vr(vO+4*db,4)}, {vr(vSt+4*(i%NST),4)}, {vr(vS+4*ks,4)}, {vr(vO+4*db,4)}")
            if i + PF < 16: vread(i + PF)
            if i + PF == 16: extra()

    B = Stream()
    B.lock = True
    B.label("L_K")
    itstamp(B)
    B(f"s_add_u32 s{sI}, s{sI}, 1")
    B(f"s_cmp_lt_u32 s{sI}, {npf}"); B("s_cbranch_scc0 L_k2v")
    set_static(B, sI); B(f"s_lshl_b32 s{sKsl}, s{sI}, 8")
    B(f"s_cmp_lg_u32 s{sW0}, 0"); B("s_cbranch_scc1 L_hookK")
    B.label("L_k1")
    B.lock = False
    B.mark("ready")
    prep_k(B)
    kitems(B, 16)
    B("s_waitcnt lgkmcnt(0)"); B("s_barrier")
    qk(B, 8)
    ktab_reads(B)
    B("s_nop 0")
    softmax(B, 32, "K")
    B.mark("allissued")
    B.lock = True
    B("s_branch L_save")
    B.label("L_saved")
    B("s_waitcnt lgkmcnt(0)"); B("s_barrier")
    B(f"s_cmp_lt_u32 s{sI}, {npf}"); B("s_cbranch_scc1 L_K")
    sc_lo_reads(B)
    B.lock = False
    def ktg(P, tot):
        c0 = P("wait", 0); c1 = P("kdone"); c2 = P("allissued")
        return [c0 + (c1 - c0) * (k + 0.5) / nK1 for k in range(nK1)] + [c1 + (c2 - c1) * (k + 0.5) / (16 - nK1) for k in range(16 - nK1)]
    kbody = finish(B, ktg, "K")

    B = Stream()
    B.lock = True
    B.label("L_V")
    itstamp(B)
    B(f"s_add_u32 s{sJ}, s{sJ}, 1")
    B(f"s_cmp_lt_u32 s{sJ}, {npf}"); B("s_cbranch_scc0 L_v2h")
    set_static(B, sJ); B(f"s_lshl_b32 s{sVsl}, s{sJ}, 8")
    B.label("L_v0")
    B("s_branch L_restore")
    B.label("L_v1")
    B.lock = False
    B.mark("ready")
    vphase(B, 0, 0, True)
    vtab_reads(B)
    B("s_waitcnt lgkmcnt(0)"); B("s_barrier")
    prep_v(B)
    pv(B, 0, lambda: None, 0)
    vphase(B, 8, 1, False)
    B.mark("vdone")
    B.mark("smallwait")
    B("s_waitcnt lgkmcnt(0)"); B("s_barrier")
    pv(B, 1, lambda: sc_lo_reads(B), 4)
    B.mark("allissued")
    B.lock = True
    B(f"s_cmp_lt_u32 s{sJ}, {npf}"); B("s_cbranch_scc1 L_V")
    ktab_reads(B); vtab_reads(B)
    B.c("the first H unit's successor: ask for it now (one exposed round trip per workgroup)")
    B(f"s_cmp_lg_u32 s{sW0}, 0"); B("s_cbranch_scc0 L_first")
    B(f"ds_write_b32 v{vL4}, v{vAt} offset:{LDS_MB}")
    B.label("L_first")
    B("s_waitcnt lgkmcnt(0)"); B("s_barrier")
    B(f"ds_read_b32 v{vTmp}, v{vMb}")
    B.lock = False
    def vtg(P, tot):
        c0 = P("wait", 0); c1 = P("vdone") + vtail
        return [c0 + (c1 - c0) * (k + 0.9) / 16 for k in range(16)]
    vbody = finish(B, vtg, "V")

    B = Stream()
    B.lock = True
    B.label("L_H")
    itstamp(B)
    if stamps: B(f"s_add_u32 s{sI}, s{sI}, 1")
    B("s_waitcnt lgkmcnt(0)")
    B.c("next half group from the pair's ticket counter")
    B(f"v_readfirstlane_b32 s{sG}, v{vTmp}")
    prep_v(B)
    B(f"s_add_u32 s{sG}, s{sG}, 4")
    B(f"s_cmp_lt_u32 s{sG}, {NH}"); B("s_cbranch_scc0 L_nomore")
    set_half(B)
    B.label("L_h1")
    B.lock = False
    B.mark("ready")
    sc_lo_reads(B)
    prep_k(B)
    kitems(B, 8)
    B("s_waitcnt lgkmcnt(0)"); B("s_barrier")
    qk(B, 4)
    B("s_nop 5")
    softmax(B, 16, "H")
    B.mark("vstart")
    vphase(B, 8, 0, False)
    B.mark("vdone")
    B.mark("smallwait")
    B(f"s_cmp_lg_u32 s{sW0}, 0")
    B.lock = True
    B("s_cbranch_scc0 L_nopost")
    B.mark("postwait")
    B(f"ds_write_b32 v{vL4}, v{vAt} offset:{LDS_MB}")
    B.label("L_nopost")
    B.lock = False
    B("s_waitcnt lgkmcnt(0)"); B("s_barrier")
    def exH():
        B(f"ds_read_b32 v{vTmp}, v{vMb}"); ktab_reads(B); vtab_reads(B)
    pv(B, 0, exH, 5)
    B.mark("allissued")
    B.lock = True
    B(f"s_cmp_eq_u32 s{sEnd}, 0"); B("s_cbranch_scc1 L_H")
    B.lock = False
    def htg(P, tot):
        c0 = P("wait", 0); c1 = P("vstart"); c2 = P("vdone") + htail
        return [c0 + (c1 - c0) * (k + 0.3) / 8 for k in range(8)] + [c1 + (c2 - c1) * (k + 0.9) / 8 for k in range(8)]
    hbody = finish(B, htg, "H", atomic=True)

    E = Stream()
    def stampE(i):
        if stamps: E(f"s_memrealtime s[{84+2*i}:{85+2*i}]")
    stampE(1)
    if stamps: E("s_mov_b32 s99, 0")
    E.c("row sum over the four lane groups")
    for sw in ("v_permlane32_swap_b32", "v_permlane16_swap_b32"):
        E(f"v_mov_b32 v{vTmp+1}, v{vL}"); E("s_nop 1"); E(f"{sw} v{vTmp+1}, v{vL}"); E("s_nop 1"); E(f"v_add_f32 v{vL}, v{vL}, v{vTmp+1}")
    E("s_waitcnt lgkmcnt(0)")
    E(f"s_cmp_eq_u32 s{sEnd}, 2"); E("s_cbranch_scc1 L_merge")
    E.c("not the last workgroup of this pair: hand the partial over; header = (m, l, checksum), none equal to the empty mark")
    own_slot(E)
    for q in range(4):
        for i in range(4 * q, 4 * q + 4): E(f"v_cvt_pk_bf16_f32 v{vSt+i}, v{vO+2*i}, v{vO+2*i+1}")
        E(f"buffer_store_dwordx4 {vr(vSt+4*q,4)}, v{vLin}, {srd(sWS)}, s{sT} offen offset:{q*1024} {pubf}")
    for i in range(16): E(f"v_dot2_u32_u16 v{vCk}, v{vSt+i}, s{sCw + (i + i//4) % 4}, {'0' if i == 0 else 'v%d' % vCk}")
    E(f"v_min_u32 v{vM}, -2, v{vM}"); E(f"v_min_u32 v{vL}, -2, v{vL}"); E("s_nop 0"); E(f"v_min_u32 v{vCk}, -2, v{vCk}")
    E(f"buffer_store_dwordx4 {vr(vM,4)}, v{vLin}, {srd(sWS)}, s{sT2} offen {pubf}")
    if stamps:
        for i in (2, 3, 4): stampE(i)
        E("s_branch L_done")
    else:
        E("s_endpgm")
    E.label("L_merge")
    E.c("last workgroup of the pair: fold in the other three partials, re-reading those that have not fully arrived")
    ml = lambda x: vRing + 4 * (x - 1)
    dat = lambda x: vRing + 16 * x
    bb = vKS; u0 = vKP
    E(f"s_mov_b32 s{sPend}, 7"); E(f"s_mov_b32 s{sThr}, {hex(f32bits(TM))}")
    E.label("L_round")
    E("s_waitcnt vmcnt(0)")
    E(f"s_mov_b32 s{sG}, 0")
    for x in range(1, 4):
        E(f"s_bitcmp1_b32 s{sPend}, {x-1}"); E(f"s_cbranch_scc0 L_chk{x}")
        for i in range(16): E(f"v_dot2_u32_u16 v{vCk}, v{dat(x)+i}, s{sCw + (i + i//4) % 4}, {'0' if i == 0 else 'v%d' % vCk}")
        E(f"v_max_u32 v{vTmp+1}, v{ml(x)}, v{ml(x)+1}"); E(f"v_cmp_eq_u32 s[4:5], -1, v{vTmp+1}"); E("s_nop 0")
        E(f"v_min_u32 v{vCk}, -2, v{vCk}"); E(f"v_cmp_ne_u32 vcc, v{vCk}, v{ml(x)+2}")
        E("s_or_b64 vcc, vcc, s[4:5]"); E(f"s_cbranch_scc0 L_ok{x}")
        for k in (x - 1, 4 * x, 4 * x + 1, 4 * x + 2, 4 * x + 3): E(item_text(k, "sc0 sc1"))
        E(f"s_branch L_chk{x}")
        E.label(f"L_ok{x}")
        E(f"s_bitset1_b32 s{sG}, {x-1}")
        E.label(f"L_chk{x}")
    for x in range(1, 4):
        E(f"s_bitcmp1_b32 s{sG}, {x-1}"); E(f"s_cbranch_scc0 L_fold{x}")
        E(f"v_sub_f32 v{bb}, v{ml(x)}, v{vM}"); E(f"v_cmp_lt_f32 vcc, s{sThr}, v{bb}"); E(f"s_cbranch_vccz L_near{x}")
        E(f"v_max_f32 v{vMx}, v{vM}, v{ml(x)}"); E(f"v_sub_f32 v{vTmp+1}, v{vM}, v{vMx}"); E(f"v_exp_f32 v{vTmp+1}, v{vTmp+1}")
        E(f"v_mov_b32 v{vM}, v{vMx}"); E(f"v_sub_f32 v{bb}, v{ml(x)}, v{vMx}"); E(f"v_mul_f32 v{vL}, v{vL}, v{vTmp+1}")
        for i in range(32): E(f"v_mul_f32 v{vO+i}, v{vO+i}, v{vTmp+1}")
        E.label(f"L_near{x}")
        E(f"v_exp_f32 v{bb}, v{bb}")
        for q in range(4):
            r = dat(x) + 4 * q
            for i in range(4):
                E(f"v_lshlrev_b32 v{u0+2*i}, 16, v{r+i}"); E(f"v_and_b32 v{u0+2*i+1}, 0xffff0000, v{r+i}")
            for i in range(4):
                d = vO + 2 * (4 * q + i)
                E(f"v_pk_fma_f32 {vr(d,2)}, {vr(u0+2*i,2)}, {vr(bb,2)}, {vr(d,2)} op_sel_hi:[1,0,1]")
        E(f"v_fmac_f32 v{vL}, v{ml(x)+1}, v{bb}")
        E.label(f"L_fold{x}")
    if stamps: E("s_add_u32 s99, s99, 1")
    E(f"s_sub_u32 s{sSpin}, s{sSpin}, 1"); E(f"s_cselect_b32 s{sG}, 7, s{sG}")
    E(f"s_andn2_b32 s{sPend}, s{sPend}, s{sG}"); E("s_cbranch_scc1 L_round")
    for i in (2, 3, 4): stampE(i)
    if diagx:
        E("s_memrealtime s[86:87]"); E("s_waitcnt lgkmcnt(0)"); E("s_sub_u32 s86, s86, s84")
        E(f"s_cmp_gt_u32 s86, {abs(diagx)}"); E("s_cbranch_scc0 L_dx" if diagx > 0 else "s_cbranch_scc1 L_dx")
        E(f"v_cvt_f32_u32 v{vL}, s86"); E(f"v_rcp_f32 v{vL}, v{vL}"); E("s_nop 1")
        for i in range(32): E(f"v_mov_b32 v{vO+i}, 1.0")
        E.label("L_dx")
    E(f"v_rcp_f32 v{bb}, v{vL}")
    E(f"v_and_b32 v{vTmp}, 15, v{vLane}"); E(f"v_lshrrev_b32 v{vTmp+1}, 4, v{vLane}")
    E(f"v_lshlrev_b32 v{vTmp}, 8, v{vTmp}"); E(f"v_lshl_add_u32 v{vTmp}, v{vTmp+1}, 4, v{vTmp}")
    E(f"s_lshl_b32 s{sT}, s{sWave}, 12")
    for u in range(4):
        for i in range(4 * u, 4 * u + 4): E(f"v_pk_mul_f32 {vr(vO+2*i,2)}, {vr(vO+2*i,2)}, {vr(bb,2)} op_sel_hi:[1,0]")
        for i in range(4 * u, 4 * u + 4): E(f"v_cvt_pk_bf16_f32 v{vS+i}, v{vO+2*i}, v{vO+2*i+1}")
        E(f"buffer_store_dwordx4 {vr(vS+4*u,4)}, v{vTmp}, {srd(sOUT)}, s{sT} offen offset:{u*64} {outf}")
    E.label("L_done")
    if stamps:
        E("s_waitcnt vmcnt(0)")
        stampE(5)
        E(f"s_lshl_b32 s{sT}, s2, 2"); E(f"s_add_u32 s{sT}, s{sT}, s{sWave}"); E(f"s_lshl_b32 s{sT2}, s{sT}, 4")
        E(f"s_lshl_b32 s4, s{sT}, 8"); E("s_add_u32 s4, s4, 0x22000000")
        E(f"s_add_u32 s{sT2}, s{sT2}, 0x20000000")
        E(f"s_lshl_b32 s{sT}, s{sT}, 6"); E(f"s_add_u32 s{sT}, s{sT}, 0x21000000")
        E("s_waitcnt lgkmcnt(0)")
        E(f"v_accvgpr_read_b32 v60, a255")
        for i in range(12): E(f"v_mov_b32 v{16+i}, s{84+i}")
        E(f"v_mov_b32 v28, s{sI}"); E("s_getreg_b32 s5, hwreg(HW_REG_XCC_ID)"); E("v_mov_b32 v29, s5"); E(f"v_mov_b32 v30, s{sEnd}"); E("v_mov_b32 v31, s99")
        E("v_mov_b32 v32, s84"); E("v_mov_b32 v33, s85"); E("v_mov_b32 v34, s94"); E("v_mov_b32 v35, s95")
        E(f"buffer_store_dword v60, v{vL4}, {srd(sWS)}, s4 offen sc0 sc1")
        E("s_mov_b64 exec, 1")
        E(f"buffer_store_dwordx4 v[32:35], off, {srd(sWS)}, s{sT2} sc0 sc1")
        for i in range(4): E(f"buffer_store_dwordx4 v[{16+4*i}:{19+4*i}], off, {srd(sWS)}, s{sT} offset:{16*i} sc0 sc1")
    E.label("L_end")
    E("s_endpgm")

    E.c("the pair's pool is empty")
    E.label("L_nomore")
    E(f"s_mov_b32 s{sEnd}, 1"); E(f"s_mov_b32 s{sX+2}, 0"); E(f"s_mov_b32 s{sY+2}, 0"); E(f"s_mov_b32 s{sW0}, 0")
    E(f"s_cmp_eq_u32 s{sG}, {NH+3}"); E("s_cbranch_scc0 L_h1")
    E.c("fourth workgroup to run dry: its 'next unit' is the three other partials")
    E(f"s_mov_b32 s{sEnd}, 2"); set_base(E, sWS); E(f"s_mov_b32 s{sX+2}, 0x40000000"); E(f"s_mov_b32 s{sY+2}, 0x40000000")
    E(f"s_lshl_b32 s{sG}, s{sPair}, 2"); E(f"s_add_u32 s{sG}, s{sG}, s{sWave}"); E(f"s_lshl_b32 s{sG}, s{sG}, 15")
    E(f"s_add_u32 s{sG}, s{sG}, {WS_SLOT}"); E(f"s_sub_u32 s{sG}, s{sG}, s{sWb}")
    for x in range(1, 4):
        E(f"s_add_u32 s{sT}, s{sSplit}, {x}"); E(f"s_and_b32 s{sT}, s{sT}, 3"); E(f"s_lshl_b32 s{sT}, s{sT}, 13")
        E(f"s_add_u32 s{sO+3+x}, s{sG}, s{sT}"); E(f"s_add_u32 s{sO+x-1}, s{sO+3+x}, 4096")
    E(f"s_mov_b32 s{sO+3}, s{sO+2}")
    E("s_branch L_h1")

    E.label("L_k2v")
    E(f"s_lshl_b32 s{sO}, s{sSplit}, 16"); set_offs(E); set_base(E, sVb)
    E(f"s_cmp_lg_u32 s{sW0}, 0"); E("s_cbranch_scc0 L_k1")
    E(f"buffer_load_dword v{vFl}, off, {srd(sDBG)}, s{sDoff} sc0 sc1")
    E("s_branch L_k1")

    E.c("last V unit: the next unit is the first H unit; wave 0 checks that the ticket counter is live and takes the first ticket")
    E.label("L_v2h")
    E(f"s_cmp_lg_u32 s{sW0}, 0"); E("s_cbranch_scc0 L_v2h1")
    E.label("L_flag")
    E(f"v_readfirstlane_b32 s{sT}, v{vFl}"); E(f"s_sub_u32 s{sSpin}, s{sSpin}, 1"); E("s_cbranch_scc1 L_live"); E("s_nop 2")
    E(f"s_bitcmp1_b32 s{sT}, 8"); E("s_cbranch_scc1 L_live")
    E(f"buffer_load_dword v{vFl}, off, {srd(sDBG)}, s{sDoff} sc0 sc1")
    E("s_waitcnt vmcnt(0)"); E("s_branch L_flag")
    E.label("L_live")
    E("s_mov_b64 exec, 1"); E(f"v_mov_b32 v{vAt}, 1")
    E(f"buffer_atomic_add v{vAt}, off, {srd(sWS)}, s{sCoff} sc0")
    E("s_mov_b64 exec, -1")
    E.label("L_v2h1")
    set_base(E, sKb, sVb)
    E(f"s_mov_b32 s{sKsl}, {DSLOT}"); E(f"s_mov_b32 s{sG}, s{sSplit}")
    set_half(E)
    E("s_branch L_v0")

    def tree(lo, hi, reg, pre, leaf):
        if lo == hi: leaf(lo); return
        mid = (lo + hi + 1) // 2
        E(f"s_cmp_ge_u32 s{reg}, {mid}"); E(f"s_cbranch_scc1 {pre}{mid}_{hi}")
        tree(lo, mid - 1, reg, pre, leaf)
        E.label(f"{pre}{mid}_{hi}")
        tree(mid, hi, reg, pre, leaf)
    E.label("L_restore")
    def rleaf(j1):
        b = 17 * (j1 - 1)
        E(f"v_accvgpr_read_b32 v{vMx}, a{b+16}")
        for i in range(16): E(f"v_accvgpr_read_b32 v{vS+i}, a{b+i}")
        E("s_branch L_restored")
    tree(1, npf, sJ, "L_r", rleaf)
    E.label("L_restored")
    E(f"v_cmp_neq_f32 vcc, v{vMx}, v{vMO}")
    E("s_cbranch_vccz L_v1")
    E.c("this tile's P used a newer reference max than O holds: bring O up to it")
    E(f"v_sub_f32 v{vTmp+1}, v{vMO}, v{vMx}"); E(f"v_exp_f32 v{vTmp+1}, v{vTmp+1}"); E(f"v_mov_b32 v{vMO}, v{vMx}")
    for i in range(32): E(f"v_mul_f32 v{vO+i}, v{vO+i}, v{vTmp+1}")
    E("s_branch L_v1")
    E.label("L_save")
    def sleaf(i1):
        b = 17 * (i1 - 1)
        for i in range(16): E(f"v_accvgpr_write_b32 a{b+i}, v{vS+i}")
        E(f"v_accvgpr_write_b32 a{b+16}, v{vM}")
        E("s_branch L_saved")
    tree(1, npf, sI, "L_s", sleaf)

    E.c("rare path: the running max rose past the threshold -> move the reference to the true running max")
    for tag in ("K", "H"):
        E.label(f"L_rescale{tag}")
        for sw in ("v_permlane32_swap_b32", "v_permlane16_swap_b32"):
            E(f"v_mov_b32 v{vTmp+1}, v{vMx}"); E("s_nop 1"); E(f"{sw} v{vTmp+1}, v{vMx}"); E("s_nop 1"); E(f"v_max_f32 v{vMx}, v{vMx}, v{vTmp+1}")
        E(f"v_mul_f32 v{vMx}, s{sC}, v{vMx}"); E(f"v_max_f32 v{vMx}, v{vMx}, v{vM}")
        E(f"v_sub_f32 v{vTmp+1}, v{vM}, v{vMx}"); E(f"v_exp_f32 v{vTmp+1}, v{vTmp+1}"); E(f"v_mov_b32 v{vM}, v{vMx}")
        E(f"v_mul_f32 v{vL}, v{vL}, v{vTmp+1}")
        if tag == "H":
            for i in range(32): E(f"v_mul_f32 v{vO+i}, v{vO+i}, v{vTmp+1}")
        E(f"s_branch L_rescaled{tag}")

    E.c("wave 0: the first workgroup of the pair to get here zeroes the ticket counter in d_ws and raises a flag in d_debug")
    E.label("L_hookK")
    E(f"s_sub_u32 s{sT}, s{sI}, s{sH0}")
    E(f"s_cmp_eq_u32 s{sT}, 0"); E("s_cbranch_scc1 L_h0")
    E(f"s_cmp_eq_u32 s{sT}, 2"); E("s_cbranch_scc1 L_hk1")
    E(f"s_cmp_eq_u32 s{sT}, 4"); E("s_cbranch_scc0 L_k1")
    E(f"s_cmp_lg_u32 s{sIni}, 0"); E("s_cbranch_scc0 L_k1")
    E("s_mov_b64 exec, 1"); E(f"v_mov_b32 v{vFl}, {FLAG}")
    E(f"buffer_atomic_or v{vFl}, off, {srd(sDBG)}, s{sDoff}")
    E("s_mov_b64 exec, -1"); E("s_branch L_k1")
    E.label("L_h0")
    E("s_mov_b64 exec, 1"); E(f"v_mov_b32 v{vFl}, 1")
    E(f"buffer_atomic_add v{vFl}, off, {srd(sDBG)}, s{sDoff} sc0")
    E("s_mov_b64 exec, -1"); E("s_branch L_k1")
    E.label("L_hk1")
    E(f"v_readfirstlane_b32 s{sT}, v{vFl}"); E("s_nop 3")
    E(f"s_cmp_eq_u32 s{sT}, 0"); E("s_cbranch_scc0 L_k1")
    E(f"s_mov_b32 s{sIni}, 1")
    E("s_mov_b64 exec, 1")
    E(f"buffer_atomic_swap v{vFl}, off, {srd(sWS)}, s{sCoff} sc0")
    E("s_mov_b64 exec, -1"); E("s_branch L_k1")

    L = [HDR.rstrip(), f"; @launch grid=(256,1,1) block=(256,1,1) lds={LDS_TOTAL}", '.amdgcn_target "amdgcn-amd-amdhsa--gfx950"',
         ".text", f".globl {NAME}_kernel", ".p2align 8", f".type {NAME}_kernel,@function", f"{NAME}_kernel:"]
    L += pro.text() + kbody + vbody + hbody + E.text()
    L += ['.section .rodata,"a"', ".p2align 6", f".amdhsa_kernel {NAME}_kernel",
          "  .amdhsa_next_free_vgpr 512", "  .amdhsa_next_free_sgpr 102", "  .amdhsa_accum_offset 256",
          "  .amdhsa_group_segment_fixed_size 0", "  .amdhsa_kernarg_size 80", "  .amdhsa_user_sgpr_count 2",
          "  .amdhsa_user_sgpr_kernarg_segment_ptr 1", "  .amdhsa_system_sgpr_workgroup_id_x 1",
          "  .amdhsa_float_denorm_mode_32 3", "  .amdhsa_float_denorm_mode_16_64 3", ".end_amdhsa_kernel"]
    open(path, "w").write("\n".join(L) + "\n")

if __name__ == "__main__":
    import argparse
    ap = argparse.ArgumentParser()
    ap.add_argument("out")
    ap.add_argument("--AL", type=int, default=8); ap.add_argument("--np", type=int, default=12)
    ap.add_argument("--stamps", action="store_true"); ap.add_argument("--it", action="store_true")
    ap.add_argument("--cs", type=int, default=8); ap.add_argument("--nt", default="sc0 sc1 nt"); ap.add_argument("--q", default="")
    ap.add_argument("--smf", default="nt"); ap.add_argument("--mix", type=lambda x: int(x, 0), default=0x11111111)
    ap.add_argument("--nK1", type=int, default=9); ap.add_argument("--vtail", type=int, default=250); ap.add_argument("--htail", type=int, default=200)
    ap.add_argument("--T", type=float, default=8.0); ap.add_argument("--TM", type=float, default=32.0)
    ap.add_argument("--outf", default=""); ap.add_argument("--pubf", default="sc0 sc1")
    ap.add_argument("--cap", default=None); ap.add_argument("--capH", default=None); ap.add_argument("--capP", default=None)
    ap.add_argument("--diagx", type=int, default=0)
    a = ap.parse_args()
    gen(a.out, AL=a.AL, npf=a.np, stamps=a.stamps, cstride=a.cs, nt=a.nt, qflag=a.q, smf=a.smf, mix=a.mix, nK1=a.nK1, vtail=a.vtail,
        T=a.T, itst=a.it, outf=a.outf, htail=a.htail, pubf=a.pubf, TM=a.TM, cap=a.cap, capH=a.capH, capP=a.capP, diagx=a.diagx)
```

```python
import sys, struct, math
NAME = "standalone__kv_cache_quant_int4_int2_kv_with_per_channel_or_per_token_scales__sampling"
HDR = open("cdna_kernels/" + NAME + ".s.ref").read().split("; Override launch")[0]

def f32bits(x):
    return struct.unpack("<I", struct.pack("<f", x))[0]

def cost_of(s):
    op = s.split()[0]
    if op.startswith("v_mfma"): return 16
    if op in ("v_exp_f32", "v_rcp_f32"): return 8
    if op.startswith("v_"): return 4
    if op == "ds_write_b128": return 26
    if op == "ds_write_b64": return 10
    if op.startswith("ds_"): return 2
    if op == "s_barrier": return 40
    if op == "s_nop": return 4 * (int(s.split()[1]) + 1)
    return 2

class Stream:
    def __init__(self): self.I = []; self.lock = False
    def __call__(self, s, cost=None):
        self.I.append(dict(t="    " + s, c=(cost_of(s) if cost is None else cost), ins=not self.lock))
    def label(self, s): self.I.append(dict(t=s + ":", c=0, ins=not self.lock))
    def c(self, s): self.I.append(dict(t="    ; " + s, c=0, ins=not self.lock))
    def mark(self, kind, k=None): self.I.append(dict(mark=kind, k=k, c=0, ins=not self.lock))
    def text(self): return [x["t"] for x in self.I]

def gen(path, AL=8, npf=12, stamps=False, nt="sc0 sc1 nt", smf="nt", qflag="", cstride=8, T=8.0, PF=8,
        mix=0x11111111, nK1=9, vtail=250, itst=False, outf="", htail=200, pubf="sc0 sc1", TM=32.0, cap=None, capH=None, capP=None, diagx=0, pfcode=0, pftlb=0, prost=False, pfearly=False):
    if capH is None: capH = cap
    if capP is None: capP = cap
    capn = lambda c, k: int(c[k % len(c)], 16) - 1
    assert 8 <= npf <= 15
    NH = 2 * (64 - 4 * npf)
    KROW = 288; JS = 576; OS = 2320
    TABW = 18 * 256; DSLOT = 16 * 256
    LDS_MB = 0; LDS_SC = 256; LDS_TAB = 1536; LDS_K = LDS_TAB + 4 * TABW; LDS_V = LDS_K + 128 * KROW
    LDS_TOTAL = LDS_V + 16 * OS
    assert LDS_K % 256 == 0 and LDS_K + 128 * KROW < 65536 and LDS_TAB % 512 == 0 and TABW % 512 == 0
    WS_SLOT = 1 << 20; WS_CTR = 16 << 20; FLAG = 0x100
    SPIN = 1 << 21
    vLane, vOff, vKW, vKR, vSW, vSR, vVW, vVR, vTK, vTV, vL4, vLin = range(12)
    vM, vL, vCk, vFl = 12, 13, 14, 15
    vMb, vMx, vT2 = 16, 17, 18
    vKS, vKC = 20, 24; vKSr, vKZr, vVSr, vVZr = 28, 30, 32, 33
    vTmp = 34
    vAt = 38; vMO = 39
    vKP = 40; vVP = 48; vO = 64; vS = 96; vRing = 128; vQ = 192; vSt = 208; NST = 12
    vSc = vS + 16
    sX, sY, sSM, sQ, sDBG, sWS, sOUT = 8, 12, 16, 20, 24, 28, 32
    sKb, sVb = 36, 38
    sPair, sSplit, sI, sJ, sG, sT, sT2, sC, sThr, sDoff, sCoff, sIni, sKsl, sVsl, sEnd, sWb, sH0, sPend, sSpin, sW0 = range(40, 60)
    sO = 64
    sCw = 72
    sWave = 3
    srd = lambda r: f"s[{r}:{r+3}]"
    vr = lambda r, n: f"v[{r}:{r+n-1}]"
    def item_text(k, fl=None):
        so, imm = (sO + k, 0) if k < 4 else (sO + 3 + k // 4, (k % 4) * 1024)
        return f"buffer_load_dwordx4 {vr(vRing+4*k,4)}, v{vOff}, {srd(sX if k < 8 else sY)}, s{so} offen offset:{imm} {nt if fl is None else fl}"
    def set_offs(A, half=False):
        for i, d in enumerate((1024, 2048, 3072, 4096) + ((0, 4096) if half else (16384, 20480))): A(f"s_add_u32 s{sO+1+i}, s{sO}, {d}")
    def set_static(A, sidx):
        A(f"s_lshl_b32 s{sO}, s{sidx}, 2"); A(f"s_add_u32 s{sO}, s{sO}, s{sSplit}"); A(f"s_lshl_b32 s{sO}, s{sO}, 16"); set_offs(A)
    def set_base(A, b, b2=None):
        if b2 is None: b2 = b
        A(f"s_mov_b64 s[{sX}:{sX+1}], s[{b}:{b+1}]"); A(f"s_mov_b64 s[{sY}:{sY+1}], s[{b2}:{b2+1}]")
    def set_half(A):
        A(f"s_and_b32 s{sT}, s{sG}, 1"); A(f"s_lshr_b32 s{sG}, s{sG}, 1"); A(f"s_add_u32 s{sG}, s{sG}, {4*npf}")
        A(f"s_lshl_b32 s{sO}, s{sG}, 16"); A(f"s_lshl_b32 s{sT2}, s{sT}, 14"); A(f"s_add_u32 s{sO}, s{sO}, s{sT2}")
        A(f"s_xor_b32 s{sKsl}, s{sKsl}, 256"); A("s_xor_b32 m0, m0, 256")
        A(f"s_lshl_b32 s{sT}, s{sT}, 6"); A(f"s_add_u32 s{sVsl}, s{sKsl}, s{sT}")
        set_offs(A, True)
        A(f"s_lshl_b32 s{sT}, s{sG}, 8")
        A(f"buffer_load_dword v{vL4}, {srd(sSM)}, s{sT} offen {smf} lds")

    A = Stream()
    A("s_cmp_ge_u32 s2, 256"); A("s_cbranch_scc1 L_end")
    if stamps or diagx: A("s_memrealtime s[84:85]")
    A("s_load_dwordx16 s[64:79], s[0:1], 0")
    A("s_load_dwordx4 s[80:83], s[0:1], 64")
    def pf_code():
        A.c("pull this kernel's code into L2 with strided loads (speed only; the values are unused)")
        A("s_getpc_b64 s[92:93]"); A("s_and_b32 s92, s92, 0xffffff00"); A("s_mov_b32 s94, L_codeend-L_pf"); A("s_mov_b32 s95, 0x20000")
        A.label("L_pf")
        if pfearly: A(f"v_lshlrev_b32 v{vTmp}, 7, v0")
        else: A(f"v_lshlrev_b32 v{vTmp}, 7, v{vLane}"); A(f"s_lshl_b32 s{sT}, s{sWave}, 13"); A(f"v_add_u32 v{vTmp}, s{sT}, v{vTmp}")
        A(f"s_lshr_b32 s{sT2}, s2, 3"); A(f"s_and_b32 s{sT2}, s{sT2}, {pfcode-1}"); A(f"s_cselect_b32 s94, 0, s94")
        A(f"buffer_load_dword v{vTmp}, v{vTmp}, s[92:95], 0 offen")
    if pfcode and pfearly: pf_code()
    A("v_lshrrev_b32 v1, 6, v0")
    A(f"v_and_b32 v{vLane}, 63, v0")
    A(f"v_readfirstlane_b32 s{sWave}, v1")
    if mix:
        A.c("which (batch, kv head) pair / split this workgroup takes: a bijection of the id (placement affects speed only)")
        A(f"s_lshr_b32 s{sT}, s2, 3"); A(f"s_and_b32 s{sT}, s{sT}, 7"); A(f"s_lshl_b32 s{sT}, s{sT}, 2")
        A(f"s_lshr_b32 s{sT}, {hex(mix)}, s{sT}"); A(f"s_and_b32 s{sT}, s{sT}, 3"); A(f"s_and_b32 s{sT}, s{sT}, s2")
        A(f"s_bcnt1_i32_b32 s{sT}, s{sT}"); A(f"s_and_b32 s{sT}, s{sT}, 1"); A(f"s_lshl_b32 s{sT}, s{sT}, 2"); A(f"s_xor_b32 s2, s2, s{sT}")
    A(f"s_lshr_b32 s{sPair}, s2, 2"); A(f"s_and_b32 s{sSplit}, s2, 3")
    c_, h_, m_, g_ = vKS, vKS + 1, vKS + 2, vKS + 3
    t0, t1, vQo, vSo = vKC, vKC + 1, vKC + 2, vKC + 3
    A(f"v_and_b32 v{c_}, 31, v{vLane}"); A(f"v_lshrrev_b32 v{h_}, 5, v{vLane}")
    A(f"v_and_b32 v{m_}, 15, v{vLane}"); A(f"v_lshrrev_b32 v{g_}, 4, v{vLane}")
    A(f"v_lshlrev_b32 v{vLin}, 4, v{vLane}"); A(f"v_lshlrev_b32 v{vL4}, 2, v{vLane}")
    A(f"s_and_b32 s{sT}, s{sWave}, 1"); A(f"s_lshl_b32 s{sT}, s{sT}, 13")
    A(f"s_lshr_b32 s{sT2}, s{sWave}, 1"); A(f"s_lshl_b32 s{sT2}, s{sT2}, 15"); A(f"s_add_u32 s{sWb}, s{sT}, s{sT2}")
    A(f"v_add_u32 v{vOff}, s{sWb}, v{vLin}")
    A(f"v_lshlrev_b32 v{vSo}, 10, v{g_}"); A(f"v_lshl_add_u32 v{vSo}, v{m_}, 4, v{vSo}")
    A(f"v_lshlrev_b32 v{vQo}, 8, v{m_}"); A(f"v_lshl_add_u32 v{vQo}, v{g_}, 4, v{vQo}")
    for i in range(4): A(f"v_mov_b32 v{vVP+i}, -1")
    def own_slot(A):
        A(f"s_lshl_b32 s{sT}, s{sPair}, 2"); A(f"s_add_u32 s{sT}, s{sT}, s{sWave}"); A(f"s_lshl_b32 s{sT}, s{sT}, 2"); A(f"s_add_u32 s{sT}, s{sT}, s{sSplit}")
        A(f"s_lshl_b32 s{sT}, s{sT}, 13"); A(f"s_add_u32 s{sT}, s{sT}, {WS_SLOT}"); A(f"s_add_u32 s{sT2}, s{sT}, 4096")
    A(f"s_mul_i32 s{sG}, s{sWave}, {TABW}"); A(f"s_add_u32 s{sG}, s{sG}, {LDS_TAB}"); A(f"s_mov_b32 m0, s{sG}")
    own_slot(A)
    for r in (sX, sY): A(f"s_mov_b32 s{r+2}, 0x400000"); A(f"s_mov_b32 s{r+3}, 0x20000")
    A(f"s_mov_b32 s{sWS+2}, 0x40000000"); A(f"s_mov_b32 s{sWS+3}, 0x20000")
    A(f"s_lshl_b32 s{sT}, s{sPair}, 22")
    A("s_waitcnt lgkmcnt(0)")
    A.c("mark the header of this wave's hand-off slot empty")
    A(f"s_mov_b64 s[{sWS}:{sWS+1}], s[82:83]")
    A(f"buffer_store_dwordx4 {vr(vVP,4)}, v{vLin}, {srd(sWS)}, s{sT2} offen sc0 sc1")
    A(f"s_add_u32 s{sKb}, s66, s{sT}"); A(f"s_addc_u32 s{sKb+1}, s67, 0")
    A(f"s_add_u32 s{sVb}, s68, s{sT}"); A(f"s_addc_u32 s{sVb+1}, s69, 0")
    set_base(A, sKb)
    A.c("wave w streams scale/zero array w (ks, kz, vs, vz) into the LDS table")
    A(f"s_cmp_eq_u32 s{sWave}, 1"); A("s_cselect_b64 s[4:5], s[72:73], s[70:71]")
    A(f"s_cmp_eq_u32 s{sWave}, 2"); A("s_cselect_b64 s[4:5], s[74:75], s[4:5]")
    A(f"s_cmp_eq_u32 s{sWave}, 3"); A("s_cselect_b64 s[4:5], s[76:77], s[4:5]")
    A(f"s_lshl_b32 s{sT}, s{sPair}, 14")
    def mk(r, p):
        A(f"s_add_u32 s{r}, s{p}, s{sT}"); A(f"s_addc_u32 s{r+1}, s{p+1}, 0"); A(f"s_mov_b32 s{r+2}, 0x4000"); A(f"s_mov_b32 s{r+3}, 0x20000")
    mk(sSM, 4); mk(sQ, 64); mk(sOUT, 78)
    A(f"s_lshl_b32 s{sT}, s{sSplit}, 8")
    nT = (npf + 3) // 4
    for u in range(nT):
        rows = min(4, npf - 4 * u)
        if rows < 4: A(f"s_bfm_b64 exec, {16*rows}, 0")
        A(f"buffer_load_dwordx4 v{vSo}, {srd(sSM)}, s{sT} offen {smf} lds")
        if rows < 4: A("s_mov_b64 exec, -1")
        if u + 1 < nT: A(f"s_add_u32 m0, m0, 1024"); A(f"s_add_u32 s{sT}, s{sT}, 4096")
    A(f"s_add_u32 m0, s{sG}, {DSLOT}")
    A(f"s_lshl_b32 s{sT}, s{sWave}, 12")
    for s4 in range(4): A(f"buffer_load_dwordx4 {vr(vQ+4*s4,4)}, v{vQo}, {srd(sQ)}, s{sT} offen offset:{s4*64} {qflag}")
    A(f"s_lshl_b32 s{sO}, s{sSplit}, 16"); set_offs(A)
    if prost: A("s_memrealtime s[88:89]")
    npre = 16 if not capP else 4
    for k in range(npre): A(item_text(k))
    if pfcode and not pfearly: pf_code()
    if pftlb:
        A.c("touch the pages this workgroup will stream later")
        A(f"v_lshlrev_b32 v{vTmp+1}, {pftlb}, v{vLane}")
        A(f"s_mov_b64 s[4:5], s[{sVb}:{sVb+1}]"); A(f"s_cmp_eq_u32 s{sWave}, 1"); A(f"s_cselect_b64 s[4:5], s[{sKb}:{sKb+1}], s[4:5]")
        A(f"s_cmp_lt_u32 s{sWave}, 2"); A("s_cselect_b32 s6, 0x400000, 0"); A("s_mov_b32 s7, 0x20000")
        A(f"buffer_load_dword v{vTmp+1}, v{vTmp+1}, s[4:7], 0 offen nt")
    A(f"v_lshlrev_b32 v{vTK}, 3, v{c_}")
    A(f"v_lshrrev_b32 v{vTV}, 4, v{c_}"); A(f"v_lshlrev_b32 v{vTV}, 5, v{vTV}")
    A(f"v_and_b32 v{t0}, 15, v{c_}"); A(f"v_add_lshl_u32 v{vTV}, v{vTV}, v{t0}, 1")
    A(f"s_lshr_b32 s{sT}, s{sWb}, 8"); A(f"v_add_u32 v{vTV}, s{sT}, v{vTV}")
    A(f"s_lshr_b32 s{sT}, s{sWave}, 1"); A(f"s_and_b32 s{sT2}, s{sWave}, 1")
    A(f"s_mul_i32 s{sT}, s{sT}, {32*KROW}"); A(f"s_mul_i32 s{sT2}, s{sT2}, {8*KROW}"); A(f"s_add_u32 s{sT}, s{sT}, s{sT2}")
    A(f"v_mul_u32_u24 v{vKW}, {4*KROW}, v{h_}"); A(f"v_lshl_add_u32 v{vKW}, v{c_}, 3, v{vKW}"); A(f"v_add_u32 v{vKW}, s{sT}, v{vKW}")
    A(f"v_mul_u32_u24 v{vKR}, {KROW}, v{m_}"); A(f"v_lshl_add_u32 v{vKR}, v{g_}, 4, v{vKR}")
    A(f"s_mul_i32 s{sT}, s{sWave}, {2*OS}"); A(f"s_add_u32 s{sT}, s{sT}, {LDS_V}")
    A(f"v_mul_u32_u24 v{vVW}, {OS}, v{h_}"); A(f"v_lshl_add_u32 v{vVW}, v{c_}, 4, v{vVW}"); A(f"v_add_u32 v{vVW}, s{sT}, v{vVW}")
    A(f"v_mul_u32_u24 v{vVR}, {OS}, v{g_}"); A(f"v_and_b32 v{t0}, 3, v{m_}"); A(f"v_mul_u32_u24 v{t0}, {JS}, v{t0}")
    A(f"v_lshrrev_b32 v{t1}, 2, v{m_}"); A(f"v_lshlrev_b32 v{t1}, 5, v{t1}")
    A(f"v_add3_u32 v{vVR}, v{vVR}, v{t0}, v{t1}"); A(f"v_add_u32 v{vVR}, {LDS_V}, v{vVR}")
    A(f"s_lshl_b32 s{sT}, s{sWave}, 8"); A(f"s_add_u32 s{sT2}, s{sT}, {LDS_SC}")
    A(f"v_and_b32 v{vSW}, 1, v{c_}"); A(f"v_lshlrev_b32 v{vSW}, 7, v{vSW}")
    A(f"v_lshrrev_b32 v{t0}, 1, v{c_}"); A(f"v_lshl_add_u32 v{vSW}, v{t0}, 3, v{vSW}"); A(f"v_add_u32 v{vSW}, s{sT2}, v{vSW}")
    A(f"v_lshlrev_b32 v{vSR}, 7, v{h_}"); A(f"v_add_u32 v{vSR}, s{sT2}, v{vSR}")
    A(f"v_mov_b32 v{vMb}, {LDS_MB}")
    A(f"s_mov_b64 s[{sDBG}:{sDBG+1}], s[80:81]"); A(f"s_mov_b32 s{sDBG+2}, 256"); A(f"s_mov_b32 s{sDBG+3}, 0x20000")
    A(f"s_lshl_b32 s{sCoff}, s{sPair}, {cstride}"); A(f"s_add_u32 s{sCoff}, s{sCoff}, {WS_CTR}")
    A(f"s_lshl_b32 s{sDoff}, s{sPair}, 2")
    A(f"s_mov_b32 s{sC}, {hex(f32bits(math.log2(math.e) / math.sqrt(128.0)))}")
    A(f"s_mov_b32 s{sThr}, {hex(f32bits(T))}")
    for r in (sIni, sI, sJ, sKsl, sVsl, sEnd): A(f"s_mov_b32 s{r}, 0")
    A(f"s_mov_b32 s{sSpin}, {SPIN}")
    A(f"s_cmp_eq_u32 s{sWave}, 0"); A(f"s_cselect_b32 s{sW0}, 1, 0")
    for i, w in enumerate((0x9e37c2b3, 0x85eb6d2f, 0x27d4f1a9, 0x165753c5)): A(f"s_mov_b32 s{sCw+i}, {hex(w)}")
    A(f"s_and_b32 s{sH0}, s{sPair}, 1"); A(f"s_add_u32 s{sH0}, s{sH0}, 1")
    for i in range(32): A(f"v_mov_b32 v{vO+i}, 0")
    A(f"v_mov_b32 v{vM}, 0xf149f2ca"); A(f"v_mov_b32 v{vMO}, 0xf149f2ca"); A(f"v_mov_b32 v{vL}, 0"); A(f"v_mov_b32 v{vAt}, 0"); A(f"v_mov_b32 v{vFl}, 0")
    def ktab_reads(S):
        S(f"v_add_u32 v{vTmp+3}, s{sKsl}, v{vTK}")
        S(f"ds_read_b64 {vr(vKSr,2)}, v{vTmp+3} offset:{LDS_TAB}"); S(f"ds_read_b64 {vr(vKZr,2)}, v{vTmp+3} offset:{LDS_TAB+TABW}")
    def vtab_reads(S):
        S(f"v_xor_b32 v{vTmp+3}, s{sVsl}, v{vTV}")
        S(f"ds_read_u16 v{vVSr}, v{vTmp+3} offset:{LDS_TAB+2*TABW}"); S(f"ds_read_u16 v{vVZr}, v{vTmp+3} offset:{LDS_TAB+3*TABW}")
    def prep_v(S):
        S(f"v_lshlrev_b32 v{vT2}, 16, v{vVSr}"); S(f"v_lshlrev_b32 v{vT2+1}, 16, v{vVZr}")
        S(f"v_mul_f32 v{vT2+1}, -v{vT2+1}, v{vT2}"); S(f"v_mul_f32 v{vT2}, 0x4b800000, v{vT2}")
        S(f"ds_write_b64 v{vSW}, {vr(vT2,2)}")
    def prep_k(S):
        S.c("K: S = ks*2^24, C = -kz*ks per channel (the int code is read as an f16 subnormal, code*2^-24)")
        for p in range(2):
            S(f"v_lshlrev_b32 v{vKS+2*p}, 16, v{vKSr+p}"); S(f"v_and_b32 v{vKS+2*p+1}, 0xffff0000, v{vKSr+p}")
            S(f"v_lshlrev_b32 v{vKC+2*p}, 16, v{vKZr+p}"); S(f"v_and_b32 v{vKC+2*p+1}, 0xffff0000, v{vKZr+p}")
        for j in range(4): S(f"v_mul_f32 v{vKC+j}, -v{vKC+j}, v{vKS+j}")
        for j in range(4): S(f"v_mul_f32 v{vKS+j}, 0x4b800000, v{vKS+j}")
    def sc_lo_reads(S):
        for i in range(4): S(f"ds_read_b128 {vr(vSc+4*i,4)}, v{vSR} offset:{i*16}")
    for k in range(npre, 16):
        A(f"s_waitcnt vmcnt({capn(capP, k)})"); A(item_text(k))
    A(f"s_waitcnt vmcnt({4+16})"); A("s_barrier")
    if prost: A("s_memrealtime s[90:91]")
    ktab_reads(A); vtab_reads(A)
    A("s_waitcnt lgkmcnt(0)")
    prep_v(A)
    pro = A

    def itstamp(S):
        if stamps and itst:
            S("s_memrealtime s[96:97]"); S("s_mov_b32 s98, m0"); S(f"s_add_u32 m0, s{sI}, s{sJ}"); S(f"v_accvgpr_read_b32 v{vTmp+3}, a255"); S("s_waitcnt lgkmcnt(0)")
            S(f"v_writelane_b32 v{vTmp+3}, s96, m0"); S("s_mov_b32 m0, s98"); S(f"v_accvgpr_write_b32 a255, v{vTmp+3}")

    def finish(B, targets, name, atomic=False):
        I = B.I
        pos = lambda kind, k=None: next(i for i, x in enumerate(I) if x.get("mark") == kind and x.get("k") == k)
        cum = []; a = 0
        for x in I: cum.append(a); a += x["c"]
        tg = targets(lambda kind, k=None: cum[pos(kind, k)], a)
        place = []; prev = pos("ready") + 1
        for k in range(16):
            p = next((i for i in range(len(I)) if cum[i] >= tg[k]), len(I) - 1)
            p = max(p, prev, pos("free", k) + 1)
            while not I[p]["ins"]: p += 1
            assert p <= pos("allissued"), (name, k)
            place.append(p); prev = p
        at = None
        if atomic:
            nb = sum(1 for p in place if p <= pos("postwait")); at = nb - AL; assert at >= 0
        out = []; ei = 0; info = []
        for i, x in enumerate(I):
            while ei < 16 and place[ei] == i:
                if ei == at:
                    out += [f"    s_cmp_lg_u32 s{sW0}, 0", "    s_cbranch_scc0 L_noat", "    s_mov_b64 exec, 1", f"    v_mov_b32 v{vAt}, 1",
                            f"    buffer_atomic_add v{vAt}, off, {srd(sWS)}, s{sCoff} sc0", "    s_mov_b64 exec, -1", "L_noat:"]
                cc = capH if name == "H" else cap
                if cc: out.append(f"    s_waitcnt vmcnt({capn(cc, ei)})")
                out.append("    " + item_text(ei)); ei += 1
            if "mark" in x:
                if x["mark"] == "wait":
                    n = 15 - x["k"] + ei; info.append(n); out.append(f"    s_waitcnt vmcnt({n})")
                elif x["mark"] == "smallwait": out.append(f"    s_waitcnt vmcnt({ei})")
                elif x["mark"] == "postwait": out.append(f"    s_waitcnt vmcnt({AL})")
            else: out.append(x["t"])
        assert ei == 16
        gaps = [cum[place[k+1]] - cum[place[k]] for k in range(15)]
        print(name, "cost", a, "vmcnt", info, "first", cum[place[0]], "gaps", gaps, "last->end", a - cum[place[15]], "atomic before", at, file=sys.stderr)
        return out

    def deq(S, r, s, c): S(f"v_fma_mix_f32 v{r}, v{r}, v{s}, v{c} op_sel_hi:[1,0,0]")
    def kitems(B, n):
        for k in range(n):
            r = vRing + 4 * k; t = vKP + 2 * (k % 4)
            B.mark("wait", k)
            for j in range(4): deq(B, r + j, vKS + j, vKC + j)
            B(f"v_cvt_pk_bf16_f32 v{t}, v{r}, v{r+1}"); B(f"v_cvt_pk_bf16_f32 v{t+1}, v{r+2}, v{r+3}")
            B.mark("free", k)
            B(f"ds_write_b64 v{vKW}, {vr(t,2)} offset:{LDS_K + ((k//8)*64 + ((k//4)%2)*16 + k%4)*KROW}")
        B.mark("kdone")
    def qk(B, nblk):
        B.c("S^T = K Q^T")
        order = [(2 * bp + u, s4) for bp in range(nblk // 2) for s4 in range(4) for u in range(2)]
        n = len(order)
        def kread(i):
            b, s4 = order[i]
            B(f"ds_read_b128 {vr(vSt+4*(i%NST),4)}, v{vKR} offset:{LDS_K + b*16*KROW + s4*64}")
        for i in range(PF): kread(i)
        for i in range(n):
            b, s4 = order[i]
            B(f"s_waitcnt lgkmcnt({min(PF-1, n-1-i)})")
            cc = "0" if s4 == 0 else vr(vS+4*b, 4)
            B(f"v_mfma_f32_16x16x32_bf16 {vr(vS+4*b,4)}, {vr(vSt+4*(i%NST),4)}, {vr(vQ+4*s4,4)}, {cc}")
            if i + PF < n: kread(i + PF)
    def softmax(B, n, tag):
        B(f"v_max3_f32 v{vMx}, v{vS}, v{vS+1}, v{vS+2}"); B(f"v_max3_f32 v{vTmp+1}, v{vS+3}, v{vS+4}, v{vS+5}")
        for i in range(6, n - 2, 4):
            B(f"v_max3_f32 v{vMx}, v{vMx}, v{vS+i}, v{vS+i+1}"); B(f"v_max3_f32 v{vTmp+1}, v{vTmp+1}, v{vS+i+2}, v{vS+i+3}")
        B(f"v_max3_f32 v{vMx}, v{vMx}, v{vS+n-2}, v{vS+n-1}"); B(f"v_max_f32 v{vMx}, v{vMx}, v{vTmp+1}")
        B(f"v_fma_f32 v{vTmp+1}, v{vMx}, s{sC}, -v{vM}")
        B(f"v_cmp_lt_f32 vcc, s{sThr}, v{vTmp+1}")
        B.lock = True
        B(f"s_cbranch_vccnz L_rescale{tag}")
        B.label(f"L_rescaled{tag}")
        B.lock = False
        for half in range(n // 16):
            b = vS + 16 * half
            for i in range(16): B(f"v_fma_f32 v{b+i}, v{b+i}, s{sC}, -v{vM}")
            for i in range(16): B(f"v_exp_f32 v{b+i}, v{b+i}")
            B(f"v_add_f32 v{vTmp+1}, v{b}, v{b+1}"); B(f"v_add_f32 v{vTmp+2}, v{b+2}, v{b+3}")
            for i in range(4, 16, 2):
                B(f"v_add_f32 v{vTmp+1}, v{vTmp+1}, v{b+i}"); B(f"v_add_f32 v{vTmp+2}, v{vTmp+2}, v{b+i+1}")
            B(f"v_add_f32 v{vL}, v{vL}, v{vTmp+1}"); B(f"v_add_f32 v{vL}, v{vL}, v{vTmp+2}")
            for i in range(8): B(f"v_cvt_pk_bf16_f32 v{vS+8*half+i}, v{b+2*i}, v{b+2*i+1}")
    def vphase(B, k0, s, refill_hi):
        for n8 in range(8):
            k = k0 + n8; r = vRing + 4 * k; sc = vSc + 2 * n8
            B.mark("wait", k)
            if refill_hi and n8 == 0: B("s_waitcnt lgkmcnt(0)")
            for j in range(4): deq(B, r + j, sc, sc + 1)
            if n8 % 2 == 1:
                if refill_hi: B(f"ds_read_b128 {vr(vSc+4*(n8//2),4)}, v{vSR} offset:{64 + (n8//2)*16}")
                for j in range(4): B(f"v_cvt_pk_bf16_f32 v{vVP+4*j+n8//2}, v{r-4+j}, v{r+j}")
                B.mark("free", k - 1); B.mark("free", k)
        for j in range(4): B(f"ds_write_b128 v{vVW}, {vr(vVP+4*j,4)} offset:{s*8*OS + j*JS}")
    def pv(B, s, extra, nextra):
        lst = [(2 * s + kk, db) for kk in range(2) for db in range(8)]
        def vread(i):
            ks, db = lst[i]
            B(f"ds_read_b128 {vr(vSt+4*(i%NST),4)}, v{vVR} offset:{ks*4*OS + (db//2)*128 + (db%2)*16}")
        for i in range(PF): vread(i)
        for i in range(16):
            ks, db = lst[i]
            younger = min(PF - 1, 15 - i)
            if i + PF >= 17: younger += nextra
            assert younger <= 15
            B(f"s_waitcnt lgkmcnt({younger})")
            B(f"v_mfma_f32_16x16x32_bf16 {vr(vO+4*db,4)}, {vr(vSt+4*(i%NST),4)}, {vr(vS+4*ks,4)}, {vr(vO+4*db,4)}")
            if i + PF < 16: vread(i + PF)
            if i + PF == 16: extra()

    B = Stream()
    B.lock = True
    B.label("L_K")
    itstamp(B)
    B(f"s_add_u32 s{sI}, s{sI}, 1")
    B(f"s_cmp_lt_u32 s{sI}, {npf}"); B("s_cbranch_scc0 L_k2v")
    set_static(B, sI); B(f"s_lshl_b32 s{sKsl}, s{sI}, 8")
    B(f"s_cmp_lg_u32 s{sW0}, 0"); B("s_cbranch_scc1 L_hookK")
    B.label("L_k1")
    B.lock = False
    B.mark("ready")
    prep_k(B)
    kitems(B, 16)
    B("s_waitcnt lgkmcnt(0)"); B("s_barrier")
    qk(B, 8)
    ktab_reads(B)
    B("s_nop 0")
    softmax(B, 32, "K")
    B.mark("allissued")
    B.lock = True
    B("s_branch L_save")
    B.label("L_saved")
    B("s_waitcnt lgkmcnt(0)"); B("s_barrier")
    B(f"s_cmp_lt_u32 s{sI}, {npf}"); B("s_cbranch_scc1 L_K")
    sc_lo_reads(B)
    B.lock = False
    def ktg(P, tot):
        c0 = P("wait", 0); c1 = P("kdone"); c2 = P("allissued")
        return [c0 + (c1 - c0) * (k + 0.5) / nK1 for k in range(nK1)] + [c1 + (c2 - c1) * (k + 0.5) / (16 - nK1) for k in range(16 - nK1)]
    kbody = finish(B, ktg, "K")

    B = Stream()
    B.lock = True
    B.label("L_V")
    itstamp(B)
    B(f"s_add_u32 s{sJ}, s{sJ}, 1")
    B(f"s_cmp_lt_u32 s{sJ}, {npf}"); B("s_cbranch_scc0 L_v2h")
    set_static(B, sJ); B(f"s_lshl_b32 s{sVsl}, s{sJ}, 8")
    B.label("L_v0")
    B("s_branch L_restore")
    B.label("L_v1")
    B.lock = False
    B.mark("ready")
    vphase(B, 0, 0, True)
    vtab_reads(B)
    B("s_waitcnt lgkmcnt(0)"); B("s_barrier")
    prep_v(B)
    pv(B, 0, lambda: None, 0)
    vphase(B, 8, 1, False)
    B.mark("vdone")
    B.mark("smallwait")
    B("s_waitcnt lgkmcnt(0)"); B("s_barrier")
    pv(B, 1, lambda: sc_lo_reads(B), 4)
    B.mark("allissued")
    B.lock = True
    B(f"s_cmp_lt_u32 s{sJ}, {npf}"); B("s_cbranch_scc1 L_V")
    ktab_reads(B); vtab_reads(B)
    B.c("the first H unit's successor: ask for it now (one exposed round trip per workgroup)")
    B(f"s_cmp_lg_u32 s{sW0}, 0"); B("s_cbranch_scc0 L_first")
    B(f"ds_write_b32 v{vL4}, v{vAt} offset:{LDS_MB}")
    B.label("L_first")
    B("s_waitcnt lgkmcnt(0)"); B("s_barrier")
    B(f"ds_read_b32 v{vTmp}, v{vMb}")
    B.lock = False
    def vtg(P, tot):
        c0 = P("wait", 0); c1 = P("vdone") + vtail
        return [c0 + (c1 - c0) * (k + 0.9) / 16 for k in range(16)]
    vbody = finish(B, vtg, "V")

    B = Stream()
    B.lock = True
    B.label("L_H")
    itstamp(B)
    if stamps: B(f"s_add_u32 s{sI}, s{sI}, 1")
    B("s_waitcnt lgkmcnt(0)")
    B.c("next half group from the pair's ticket counter")
    B(f"v_readfirstlane_b32 s{sG}, v{vTmp}")
    prep_v(B)
    B(f"s_add_u32 s{sG}, s{sG}, 4")
    B(f"s_cmp_lt_u32 s{sG}, {NH}"); B("s_cbranch_scc0 L_nomore")
    set_half(B)
    B.label("L_h1")
    B.lock = False
    B.mark("ready")
    sc_lo_reads(B)
    prep_k(B)
    kitems(B, 8)
    B("s_waitcnt lgkmcnt(0)"); B("s_barrier")
    qk(B, 4)
    B("s_nop 5")
    softmax(B, 16, "H")
    B.mark("vstart")
    vphase(B, 8, 0, False)
    B.mark("vdone")
    B.mark("smallwait")
    B(f"s_cmp_lg_u32 s{sW0}, 0")
    B.lock = True
    B("s_cbranch_scc0 L_nopost")
    B.mark("postwait")
    B(f"ds_write_b32 v{vL4}, v{vAt} offset:{LDS_MB}")
    B.label("L_nopost")
    B.lock = False
    B("s_waitcnt lgkmcnt(0)"); B("s_barrier")
    def exH():
        B(f"ds_read_b32 v{vTmp}, v{vMb}"); ktab_reads(B); vtab_reads(B)
    pv(B, 0, exH, 5)
    B.mark("allissued")
    B.lock = True
    B(f"s_cmp_eq_u32 s{sEnd}, 0"); B("s_cbranch_scc1 L_H")
    B.lock = False
    def htg(P, tot):
        c0 = P("wait", 0); c1 = P("vstart"); c2 = P("vdone") + htail
        return [c0 + (c1 - c0) * (k + 0.3) / 8 for k in range(8)] + [c1 + (c2 - c1) * (k + 0.9) / 8 for k in range(8)]
    hbody = finish(B, htg, "H", atomic=True)

    E = Stream()
    def stampE(i):
        if stamps and not (prost and i in (2, 3)): E(f"s_memrealtime s[{84+2*i}:{85+2*i}]")
    stampE(1)
    if stamps: E("s_mov_b32 s99, 0")
    E.c("row sum over the four lane groups")
    for sw in ("v_permlane32_swap_b32", "v_permlane16_swap_b32"):
        E(f"v_mov_b32 v{vTmp+1}, v{vL}"); E("s_nop 1"); E(f"{sw} v{vTmp+1}, v{vL}"); E("s_nop 1"); E(f"v_add_f32 v{vL}, v{vL}, v{vTmp+1}")
    E("s_waitcnt lgkmcnt(0)")
    E(f"s_cmp_eq_u32 s{sEnd}, 2"); E("s_cbranch_scc1 L_merge")
    E.c("not the last workgroup of this pair: hand the partial over; header = (m, l, checksum), none equal to the empty mark")
    own_slot(E)
    for q in range(4):
        for i in range(4 * q, 4 * q + 4): E(f"v_cvt_pk_bf16_f32 v{vSt+i}, v{vO+2*i}, v{vO+2*i+1}")
        E(f"buffer_store_dwordx4 {vr(vSt+4*q,4)}, v{vLin}, {srd(sWS)}, s{sT} offen offset:{q*1024} {pubf}")
    for i in range(16): E(f"v_dot2_u32_u16 v{vCk}, v{vSt+i}, s{sCw + (i + i//4) % 4}, {'0' if i == 0 else 'v%d' % vCk}")
    E(f"v_min_u32 v{vM}, -2, v{vM}"); E(f"v_min_u32 v{vL}, -2, v{vL}"); E("s_nop 0"); E(f"v_min_u32 v{vCk}, -2, v{vCk}")
    E(f"buffer_store_dwordx4 {vr(vM,4)}, v{vLin}, {srd(sWS)}, s{sT2} offen {pubf}")
    if stamps:
        for i in (2, 3, 4): stampE(i)
        E("s_branch L_done")
    else:
        E("s_endpgm")
    E.label("L_merge")
    E.c("last workgroup of the pair: fold in the other three partials, re-reading those that have not fully arrived")
    ml = lambda x: vRing + 4 * (x - 1)
    dat = lambda x: vRing + 16 * x
    bb = vKS; u0 = vKP
    E(f"s_mov_b32 s{sPend}, 7"); E(f"s_mov_b32 s{sThr}, {hex(f32bits(TM))}")
    E.label("L_round")
    E("s_waitcnt vmcnt(0)")
    E(f"s_mov_b32 s{sG}, 0")
    for x in range(1, 4):
        E(f"s_bitcmp1_b32 s{sPend}, {x-1}"); E(f"s_cbranch_scc0 L_chk{x}")
        for i in range(16): E(f"v_dot2_u32_u16 v{vCk}, v{dat(x)+i}, s{sCw + (i + i//4) % 4}, {'0' if i == 0 else 'v%d' % vCk}")
        E(f"v_max_u32 v{vTmp+1}, v{ml(x)}, v{ml(x)+1}"); E(f"v_cmp_eq_u32 s[4:5], -1, v{vTmp+1}"); E("s_nop 0")
        E(f"v_min_u32 v{vCk}, -2, v{vCk}"); E(f"v_cmp_ne_u32 vcc, v{vCk}, v{ml(x)+2}")
        E("s_or_b64 vcc, vcc, s[4:5]"); E(f"s_cbranch_scc0 L_ok{x}")
        for k in (x - 1, 4 * x, 4 * x + 1, 4 * x + 2, 4 * x + 3): E(item_text(k, "sc0 sc1"))
        E(f"s_branch L_chk{x}")
        E.label(f"L_ok{x}")
        E(f"s_bitset1_b32 s{sG}, {x-1}")
        E.label(f"L_chk{x}")
    for x in range(1, 4):
        E(f"s_bitcmp1_b32 s{sG}, {x-1}"); E(f"s_cbranch_scc0 L_fold{x}")
        E(f"v_sub_f32 v{bb}, v{ml(x)}, v{vM}"); E(f"v_cmp_lt_f32 vcc, s{sThr}, v{bb}"); E(f"s_cbranch_vccz L_near{x}")
        E(f"v_max_f32 v{vMx}, v{vM}, v{ml(x)}"); E(f"v_sub_f32 v{vTmp+1}, v{vM}, v{vMx}"); E(f"v_exp_f32 v{vTmp+1}, v{vTmp+1}")
        E(f"v_mov_b32 v{vM}, v{vMx}"); E(f"v_sub_f32 v{bb}, v{ml(x)}, v{vMx}"); E(f"v_mul_f32 v{vL}, v{vL}, v{vTmp+1}")
        for i in range(32): E(f"v_mul_f32 v{vO+i}, v{vO+i}, v{vTmp+1}")
        E.label(f"L_near{x}")
        E(f"v_exp_f32 v{bb}, v{bb}")
        for q in range(4):
            r = dat(x) + 4 * q
            for i in range(4):
                E(f"v_lshlrev_b32 v{u0+2*i}, 16, v{r+i}"); E(f"v_and_b32 v{u0+2*i+1}, 0xffff0000, v{r+i}")
            for i in range(4):
                d = vO + 2 * (4 * q + i)
                E(f"v_pk_fma_f32 {vr(d,2)}, {vr(u0+2*i,2)}, {vr(bb,2)}, {vr(d,2)} op_sel_hi:[1,0,1]")
        E(f"v_fmac_f32 v{vL}, v{ml(x)+1}, v{bb}")
        E.label(f"L_fold{x}")
    if stamps: E("s_add_u32 s99, s99, 1")
    E(f"s_sub_u32 s{sSpin}, s{sSpin}, 1"); E(f"s_cselect_b32 s{sG}, 7, s{sG}")
    E(f"s_andn2_b32 s{sPend}, s{sPend}, s{sG}"); E("s_cbranch_scc1 L_round")
    for i in (2, 3, 4): stampE(i)
    if diagx:
        E("s_memrealtime s[86:87]"); E("s_waitcnt lgkmcnt(0)"); E("s_sub_u32 s86, s86, s84")
        E(f"s_cmp_gt_u32 s86, {abs(diagx)}"); E("s_cbranch_scc0 L_dx" if diagx > 0 else "s_cbranch_scc1 L_dx")
        E(f"v_cvt_f32_u32 v{vL}, s86"); E(f"v_rcp_f32 v{vL}, v{vL}"); E("s_nop 1")
        for i in range(32): E(f"v_mov_b32 v{vO+i}, 1.0")
        E.label("L_dx")
    E(f"v_rcp_f32 v{bb}, v{vL}")
    E(f"v_and_b32 v{vTmp}, 15, v{vLane}"); E(f"v_lshrrev_b32 v{vTmp+1}, 4, v{vLane}")
    E(f"v_lshlrev_b32 v{vTmp}, 8, v{vTmp}"); E(f"v_lshl_add_u32 v{vTmp}, v{vTmp+1}, 4, v{vTmp}")
    E(f"s_lshl_b32 s{sT}, s{sWave}, 12")
    for u in range(4):
        for i in range(4 * u, 4 * u + 4): E(f"v_pk_mul_f32 {vr(vO+2*i,2)}, {vr(vO+2*i,2)}, {vr(bb,2)} op_sel_hi:[1,0]")
        for i in range(4 * u, 4 * u + 4): E(f"v_cvt_pk_bf16_f32 v{vS+i}, v{vO+2*i}, v{vO+2*i+1}")
        E(f"buffer_store_dwordx4 {vr(vS+4*u,4)}, v{vTmp}, {srd(sOUT)}, s{sT} offen offset:{u*64} {outf}")
    E.label("L_done")
    if stamps:
        E("s_waitcnt vmcnt(0)")
        stampE(5)
        E(f"s_lshl_b32 s{sT}, s2, 2"); E(f"s_add_u32 s{sT}, s{sT}, s{sWave}"); E(f"s_lshl_b32 s{sT2}, s{sT}, 4")
        E(f"s_lshl_b32 s4, s{sT}, 8"); E("s_add_u32 s4, s4, 0x22000000")
        E(f"s_add_u32 s{sT2}, s{sT2}, 0x20000000")
        E(f"s_lshl_b32 s{sT}, s{sT}, 6"); E(f"s_add_u32 s{sT}, s{sT}, 0x21000000")
        E("s_waitcnt lgkmcnt(0)")
        E(f"v_accvgpr_read_b32 v60, a255")
        for i in range(12): E(f"v_mov_b32 v{16+i}, s{84+i}")
        E(f"v_mov_b32 v28, s{sI}"); E("s_getreg_b32 s5, hwreg(HW_REG_XCC_ID)"); E("v_mov_b32 v29, s5"); E(f"v_mov_b32 v30, s{sEnd}"); E("v_mov_b32 v31, s99")
        E("v_mov_b32 v32, s84"); E("v_mov_b32 v33, s85"); E("v_mov_b32 v34, s94"); E("v_mov_b32 v35, s95")
        E(f"buffer_store_dword v60, v{vL4}, {srd(sWS)}, s4 offen sc0 sc1")
        E("s_mov_b64 exec, 1")
        E(f"buffer_store_dwordx4 v[32:35], off, {srd(sWS)}, s{sT2} sc0 sc1")
        for i in range(4): E(f"buffer_store_dwordx4 v[{16+4*i}:{19+4*i}], off, {srd(sWS)}, s{sT} offset:{16*i} sc0 sc1")
    E.label("L_end")
    E("s_endpgm")

    E.c("the pair's pool is empty")
    E.label("L_nomore")
    E(f"s_mov_b32 s{sEnd}, 1"); E(f"s_mov_b32 s{sX+2}, 0"); E(f"s_mov_b32 s{sY+2}, 0"); E(f"s_mov_b32 s{sW0}, 0")
    E(f"s_cmp_eq_u32 s{sG}, {NH+3}"); E("s_cbranch_scc0 L_h1")
    E.c("fourth workgroup to run dry: its 'next unit' is the three other partials")
    E(f"s_mov_b32 s{sEnd}, 2"); set_base(E, sWS); E(f"s_mov_b32 s{sX+2}, 0x40000000"); E(f"s_mov_b32 s{sY+2}, 0x40000000")
    E(f"s_lshl_b32 s{sG}, s{sPair}, 2"); E(f"s_add_u32 s{sG}, s{sG}, s{sWave}"); E(f"s_lshl_b32 s{sG}, s{sG}, 15")
    E(f"s_add_u32 s{sG}, s{sG}, {WS_SLOT}"); E(f"s_sub_u32 s{sG}, s{sG}, s{sWb}")
    for x in range(1, 4):
        E(f"s_add_u32 s{sT}, s{sSplit}, {x}"); E(f"s_and_b32 s{sT}, s{sT}, 3"); E(f"s_lshl_b32 s{sT}, s{sT}, 13")
        E(f"s_add_u32 s{sO+3+x}, s{sG}, s{sT}"); E(f"s_add_u32 s{sO+x-1}, s{sO+3+x}, 4096")
    E(f"s_mov_b32 s{sO+3}, s{sO+2}")
    E("s_branch L_h1")

    E.label("L_k2v")
    E(f"s_lshl_b32 s{sO}, s{sSplit}, 16"); set_offs(E); set_base(E, sVb)
    E(f"s_cmp_lg_u32 s{sW0}, 0"); E("s_cbranch_scc0 L_k1")
    E(f"buffer_load_dword v{vFl}, off, {srd(sDBG)}, s{sDoff} sc0 sc1")
    E("s_branch L_k1")

    E.c("last V unit: the next unit is the first H unit; wave 0 checks that the ticket counter is live and takes the first ticket")
    E.label("L_v2h")
    E(f"s_cmp_lg_u32 s{sW0}, 0"); E("s_cbranch_scc0 L_v2h1")
    E.label("L_flag")
    E(f"v_readfirstlane_b32 s{sT}, v{vFl}"); E(f"s_sub_u32 s{sSpin}, s{sSpin}, 1"); E("s_cbranch_scc1 L_live"); E("s_nop 2")
    E(f"s_bitcmp1_b32 s{sT}, 8"); E("s_cbranch_scc1 L_live")
    E(f"buffer_load_dword v{vFl}, off, {srd(sDBG)}, s{sDoff} sc0 sc1")
    E("s_waitcnt vmcnt(0)"); E("s_branch L_flag")
    E.label("L_live")
    E("s_mov_b64 exec, 1"); E(f"v_mov_b32 v{vAt}, 1")
    E(f"buffer_atomic_add v{vAt}, off, {srd(sWS)}, s{sCoff} sc0")
    E("s_mov_b64 exec, -1")
    E.label("L_v2h1")
    set_base(E, sKb, sVb)
    E(f"s_mov_b32 s{sKsl}, {DSLOT}"); E(f"s_mov_b32 s{sG}, s{sSplit}")
    set_half(E)
    E("s_branch L_v0")

    def tree(lo, hi, reg, pre, leaf):
        if lo == hi: leaf(lo); return
        mid = (lo + hi + 1) // 2
        E(f"s_cmp_ge_u32 s{reg}, {mid}"); E(f"s_cbranch_scc1 {pre}{mid}_{hi}")
        tree(lo, mid - 1, reg, pre, leaf)
        E.label(f"{pre}{mid}_{hi}")
        tree(mid, hi, reg, pre, leaf)
    E.label("L_restore")
    def rleaf(j1):
        b = 17 * (j1 - 1)
        E(f"v_accvgpr_read_b32 v{vMx}, a{b+16}")
        for i in range(16): E(f"v_accvgpr_read_b32 v{vS+i}, a{b+i}")
        E("s_branch L_restored")
    tree(1, npf, sJ, "L_r", rleaf)
    E.label("L_restored")
    E(f"v_cmp_neq_f32 vcc, v{vMx}, v{vMO}")
    E("s_cbranch_vccz L_v1")
    E.c("this tile's P used a newer reference max than O holds: bring O up to it")
    E(f"v_sub_f32 v{vTmp+1}, v{vMO}, v{vMx}"); E(f"v_exp_f32 v{vTmp+1}, v{vTmp+1}"); E(f"v_mov_b32 v{vMO}, v{vMx}")
    for i in range(32): E(f"v_mul_f32 v{vO+i}, v{vO+i}, v{vTmp+1}")
    E("s_branch L_v1")
    E.label("L_save")
    def sleaf(i1):
        b = 17 * (i1 - 1)
        for i in range(16): E(f"v_accvgpr_write_b32 a{b+i}, v{vS+i}")
        E(f"v_accvgpr_write_b32 a{b+16}, v{vM}")
        E("s_branch L_saved")
    tree(1, npf, sI, "L_s", sleaf)

    E.c("rare path: the running max rose past the threshold -> move the reference to the true running max")
    for tag in ("K", "H"):
        E.label(f"L_rescale{tag}")
        for sw in ("v_permlane32_swap_b32", "v_permlane16_swap_b32"):
            E(f"v_mov_b32 v{vTmp+1}, v{vMx}"); E("s_nop 1"); E(f"{sw} v{vTmp+1}, v{vMx}"); E("s_nop 1"); E(f"v_max_f32 v{vMx}, v{vMx}, v{vTmp+1}")
        E(f"v_mul_f32 v{vMx}, s{sC}, v{vMx}"); E(f"v_max_f32 v{vMx}, v{vMx}, v{vM}")
        E(f"v_sub_f32 v{vTmp+1}, v{vM}, v{vMx}"); E(f"v_exp_f32 v{vTmp+1}, v{vTmp+1}"); E(f"v_mov_b32 v{vM}, v{vMx}")
        E(f"v_mul_f32 v{vL}, v{vL}, v{vTmp+1}")
        if tag == "H":
            for i in range(32): E(f"v_mul_f32 v{vO+i}, v{vO+i}, v{vTmp+1}")
        E(f"s_branch L_rescaled{tag}")

    E.c("wave 0: the first workgroup of the pair to get here zeroes the ticket counter in d_ws and raises a flag in d_debug")
    E.label("L_hookK")
    E(f"s_sub_u32 s{sT}, s{sI}, s{sH0}")
    E(f"s_cmp_eq_u32 s{sT}, 0"); E("s_cbranch_scc1 L_h0")
    E(f"s_cmp_eq_u32 s{sT}, 2"); E("s_cbranch_scc1 L_hk1")
    E(f"s_cmp_eq_u32 s{sT}, 4"); E("s_cbranch_scc0 L_k1")
    E(f"s_cmp_lg_u32 s{sIni}, 0"); E("s_cbranch_scc0 L_k1")
    E("s_mov_b64 exec, 1"); E(f"v_mov_b32 v{vFl}, {FLAG}")
    E(f"buffer_atomic_or v{vFl}, off, {srd(sDBG)}, s{sDoff}")
    E("s_mov_b64 exec, -1"); E("s_branch L_k1")
    E.label("L_h0")
    E("s_mov_b64 exec, 1"); E(f"v_mov_b32 v{vFl}, 1")
    E(f"buffer_atomic_add v{vFl}, off, {srd(sDBG)}, s{sDoff} sc0")
    E("s_mov_b64 exec, -1"); E("s_branch L_k1")
    E.label("L_hk1")
    E(f"v_readfirstlane_b32 s{sT}, v{vFl}"); E("s_nop 3")
    E(f"s_cmp_eq_u32 s{sT}, 0"); E("s_cbranch_scc0 L_k1")
    E(f"s_mov_b32 s{sIni}, 1")
    E("s_mov_b64 exec, 1")
    E(f"buffer_atomic_swap v{vFl}, off, {srd(sWS)}, s{sCoff} sc0")
    E("s_mov_b64 exec, -1"); E("s_branch L_k1")

    L = [HDR.rstrip(), f"; @launch grid=(256,1,1) block=(256,1,1) lds={LDS_TOTAL}", '.amdgcn_target "amdgcn-amd-amdhsa--gfx950"',
         ".text", f".globl {NAME}_kernel", ".p2align 8", f".type {NAME}_kernel,@function", f"{NAME}_kernel:"]
    L += pro.text() + kbody + vbody + hbody + E.text() + ["L_codeend:"]
    L += ['.section .rodata,"a"', ".p2align 6", f".amdhsa_kernel {NAME}_kernel",
          "  .amdhsa_next_free_vgpr 512", "  .amdhsa_next_free_sgpr 102", "  .amdhsa_accum_offset 256",
          "  .amdhsa_group_segment_fixed_size 0", "  .amdhsa_kernarg_size 80", "  .amdhsa_user_sgpr_count 2",
          "  .amdhsa_user_sgpr_kernarg_segment_ptr 1", "  .amdhsa_system_sgpr_workgroup_id_x 1",
          "  .amdhsa_float_denorm_mode_32 3", "  .amdhsa_float_denorm_mode_16_64 3", ".end_amdhsa_kernel"]
    open(path, "w").write("\n".join(L) + "\n")

if __name__ == "__main__":
    import argparse
    ap = argparse.ArgumentParser()
    ap.add_argument("out")
    ap.add_argument("--AL", type=int, default=8); ap.add_argument("--np", type=int, default=12)
    ap.add_argument("--stamps", action="store_true"); ap.add_argument("--it", action="store_true")
    ap.add_argument("--cs", type=int, default=8); ap.add_argument("--nt", default="sc0 sc1 nt"); ap.add_argument("--q", default="")
    ap.add_argument("--smf", default="nt"); ap.add_argument("--mix", type=lambda x: int(x, 0), default=0x11111111)
    ap.add_argument("--nK1", type=int, default=9); ap.add_argument("--vtail", type=int, default=250); ap.add_argument("--htail", type=int, default=200)
    ap.add_argument("--T", type=float, default=8.0); ap.add_argument("--TM", type=float, default=32.0)
    ap.add_argument("--outf", default=""); ap.add_argument("--pubf", default="sc0 sc1")
    ap.add_argument("--cap", default=None); ap.add_argument("--capH", default=None); ap.add_argument("--capP", default=None)
    ap.add_argument("--diagx", type=int, default=0)
    ap.add_argument("--pfcode", type=int, default=0); ap.add_argument("--pftlb", type=int, default=0)
    ap.add_argument("--prost", action="store_true"); ap.add_argument("--pfearly", action="store_true")
    a = ap.parse_args()
    gen(a.out, AL=a.AL, npf=a.np, stamps=a.stamps, cstride=a.cs, nt=a.nt, qflag=a.q, smf=a.smf, mix=a.mix, nK1=a.nK1, vtail=a.vtail,
        T=a.T, itst=a.it, outf=a.outf, htail=a.htail, pubf=a.pubf, TM=a.TM, cap=a.cap, capH=a.capH, capP=a.capP, diagx=a.diagx, pfcode=a.pfcode, pftlb=a.pftlb, prost=a.prost, pfearly=a.pfearly)
```

```python
import sys, struct, math
NAME = "standalone__kv_cache_quant_int4_int2_kv_with_per_channel_or_per_token_scales__sampling"
HDR = open("cdna_kernels/" + NAME + ".s.ref").read().split("; Override launch")[0]

def f32bits(x):
    return struct.unpack("<I", struct.pack("<f", x))[0]

def cost_of(s):
    op = s.split()[0]
    if op.startswith("v_mfma"): return 16
    if op in ("v_exp_f32", "v_rcp_f32"): return 8
    if op.startswith("v_"): return 4
    if op == "ds_write_b128": return 26
    if op == "ds_write_b64": return 10
    if op.startswith("ds_"): return 2
    if op == "s_barrier": return 40
    if op == "s_nop": return 4 * (int(s.split()[1]) + 1)
    return 2

class Stream:
    def __init__(self): self.I = []; self.lock = False
    def __call__(self, s, cost=None):
        self.I.append(dict(t="    " + s, c=(cost_of(s) if cost is None else cost), ins=not self.lock))
    def label(self, s): self.I.append(dict(t=s + ":", c=0, ins=not self.lock))
    def c(self, s): self.I.append(dict(t="    ; " + s, c=0, ins=not self.lock))
    def mark(self, kind, k=None): self.I.append(dict(mark=kind, k=k, c=0, ins=not self.lock))
    def text(self): return [x["t"] for x in self.I]

def gen(path, AL=8, npf=12, stamps=False, nt="sc0 sc1 nt", smf="nt", qflag="", cstride=8, T=8.0, PF=8,
        mix=0x11111111, nK1=9, vtail=250, itst=False, outf="", htail=200, pubf="sc0 sc1", TM=32.0, cap=None, capH=None, capP=None, diagx=0, pfcode=0, pftlb=0, prost=False, pfearly=False, ctg=True, capV=None, nH1=7, hspread=8, early=True, flagf='', ctspan=0.6, hv=1, hk=1.0, porder='C A T Q K4', qlate=15):
    if capV is None: capV = cap
    if capH is None: capH = cap
    if capP is None: capP = cap
    capn = lambda c, k: int(c[k % len(c)], 16) - 1
    assert 8 <= npf <= 15
    NH = 2 * (64 - 4 * npf)
    KROW = 288; JS = 576; OS = 2320
    TABW = 18 * 256; DSLOT = 16 * 256
    LDS_MB = 0; LDS_SC = 256; LDS_TAB = 1536; LDS_K = LDS_TAB + 4 * TABW; LDS_V = LDS_K + 128 * KROW
    LDS_TOTAL = LDS_V + 16 * OS
    assert LDS_K % 256 == 0 and LDS_K + 128 * KROW < 65536 and LDS_TAB % 512 == 0 and TABW % 512 == 0
    WS_SLOT = 1 << 20; WS_CTR = 16 << 20; FLAG = 0x100
    SPIN = 1 << 21
    vLane, vOff, vKW, vKR, vSW, vSR, vVW, vVR, vTK, vTV, vL4, vLin = range(12)
    vM, vL, vCk, vFl = 12, 13, 14, 15
    vMb, vMx, vT2 = 16, 17, 18
    vKS, vKC = 20, 24; vKSr, vKZr, vVSr, vVZr = 28, 30, 32, 33
    vTmp = 34
    vAt = 38; vMO = 39
    vKP = 40; vVP = 48; vO = 64; vS = 96; vRing = 128; vQ = 192; vSt = 208; NST = 12
    vSc = vS + 16
    sX, sY, sSM, sQ, sDBG, sWS, sOUT = 8, 12, 16, 20, 24, 28, 32
    sKb, sVb = 36, 38
    sPair, sSplit, sI, sJ, sG, sT, sT2, sC, sThr, sDoff, sCoff, sIni, sKsl, sVsl, sEnd, sWb, sH0, sPend, sSpin, sW0 = range(40, 60)
    sO = 60
    sPo = 76
    sCw = 72
    sWave = 3
    srd = lambda r: f"s[{r}:{r+3}]"
    vr = lambda r, n: f"v[{r}:{r+n-1}]"
    def item_text(k, fl=None):
        so, imm = (sO + k, 0) if k < 4 else (sO + 3 + k // 4, (k % 4) * 1024)
        return f"buffer_load_dwordx4 {vr(vRing+4*k,4)}, v{vOff}, {srd(sX if k < 8 else sY)}, s{so} offen offset:{imm} {nt if fl is None else fl}"
    def set_offs(A, half=False):
        for i, d in enumerate((1024, 2048, 3072, 4096) + ((0, 4096) if half else (16384, 20480))): A(f"s_add_u32 s{sO+1+i}, s{sO}, {d}")
    SB = 20 if ctg else 16
    def set_static(A, sidx):
        if ctg: A(f"s_add_u32 s{sO}, s{sO}, 0x10000")
        else: A(f"s_add_u32 s{sO}, s{sO}, 0x40000")
        set_offs(A)
    def set_base(A, b, b2=None):
        if b2 is None: b2 = b
        A(f"s_mov_b64 s[{sX}:{sX+1}], s[{b}:{b+1}]"); A(f"s_mov_b64 s[{sY}:{sY+1}], s[{b2}:{b2+1}]")
    def set_half(A):
        A(f"s_and_b32 s{sT}, s{sG}, 1")
        if ctg:
            A(f"s_bfe_u32 s{sT2}, s{sG}, 0x20001"); A(f"s_lshl_b32 s{sT2}, s{sT2}, 4"); A(f"s_lshr_b32 s{sG}, s{sG}, 3")
            A(f"s_add_u32 s{sG}, s{sG}, s{sT2}"); A(f"s_add_u32 s{sG}, s{sG}, {npf}")
        else:
            A(f"s_lshr_b32 s{sG}, s{sG}, 1"); A(f"s_add_u32 s{sG}, s{sG}, {4*npf}")
        A(f"s_lshl_b32 s{sO}, s{sG}, 16"); A(f"s_lshl_b32 s{sT2}, s{sT}, 14"); A(f"s_add_u32 s{sO}, s{sO}, s{sT2}")
        A(f"s_xor_b32 s{sKsl}, s{sKsl}, 256"); A("s_xor_b32 m0, m0, 256")
        A(f"s_lshl_b32 s{sT}, s{sT}, 6"); A(f"s_add_u32 s{sVsl}, s{sKsl}, s{sT}")
        set_offs(A, True)
        A(f"s_lshl_b32 s{sT}, s{sG}, 8")
        A(f"buffer_load_dword v{vL4}, {srd(sSM)}, s{sT} offen {smf} lds")

    A = Stream()
    A("s_cmp_ge_u32 s2, 256"); A("s_cbranch_scc1 L_end")
    if stamps or diagx: A("s_memrealtime s[84:85]")
    A("s_load_dwordx16 s[68:83], s[0:1], 0")
    A("s_load_dwordx4 s[4:7], s[0:1], 64")
    def pf_code():
        A.c("pull this kernel's code into L2 with strided loads (speed only; the values are unused)")
        A("s_getpc_b64 s[92:93]"); A("s_and_b32 s92, s92, 0xffffff00"); A("s_mov_b32 s94, L_codeend-L_pf"); A("s_mov_b32 s95, 0x20000")
        A.label("L_pf")
        if pfearly: A(f"v_lshlrev_b32 v{vTmp}, 7, v0")
        else: A(f"v_lshlrev_b32 v{vTmp}, 7, v{vLane}"); A(f"s_lshl_b32 s{sT}, s{sWave}, 13"); A(f"v_add_u32 v{vTmp}, s{sT}, v{vTmp}")
        A(f"s_lshr_b32 s{sT2}, s2, 3"); A(f"s_and_b32 s{sT2}, s{sT2}, {pfcode-1}"); A(f"s_cselect_b32 s94, 0, s94")
        A(f"buffer_load_dword v{vTmp}, v{vTmp}, s[92:95], 0 offen")
    if pfcode and pfearly: pf_code()
    A("v_lshrrev_b32 v1, 6, v0")
    A(f"v_and_b32 v{vLane}, 63, v0")
    A(f"v_readfirstlane_b32 s{sWave}, v1")
    if mix:
        A.c("which (batch, kv head) pair / split this workgroup takes: a bijection of the id (placement affects speed only)")
        A(f"s_lshr_b32 s{sT}, s2, 3"); A(f"s_and_b32 s{sT}, s{sT}, 7"); A(f"s_lshl_b32 s{sT}, s{sT}, 2")
        A(f"s_lshr_b32 s{sT}, {hex(mix)}, s{sT}"); A(f"s_and_b32 s{sT}, s{sT}, 3"); A(f"s_and_b32 s{sT}, s{sT}, s2")
        A(f"s_bcnt1_i32_b32 s{sT}, s{sT}"); A(f"s_and_b32 s{sT}, s{sT}, 1"); A(f"s_lshl_b32 s{sT}, s{sT}, 2"); A(f"s_xor_b32 s2, s2, s{sT}")
    A(f"s_lshr_b32 s{sPair}, s2, 2"); A(f"s_and_b32 s{sSplit}, s2, 3")
    c_, h_, m_, g_ = vKS, vKS + 1, vKS + 2, vKS + 3
    t0, t1, vQo, vSo = vKC, vKC + 1, vKC + 2, vKC + 3
    A(f"v_and_b32 v{c_}, 31, v{vLane}"); A(f"v_lshrrev_b32 v{h_}, 5, v{vLane}")
    A(f"v_and_b32 v{m_}, 15, v{vLane}"); A(f"v_lshrrev_b32 v{g_}, 4, v{vLane}")
    A(f"v_lshlrev_b32 v{vLin}, 4, v{vLane}"); A(f"v_lshlrev_b32 v{vL4}, 2, v{vLane}")
    A(f"s_and_b32 s{sT}, s{sWave}, 1"); A(f"s_lshl_b32 s{sT}, s{sT}, 13")
    A(f"s_lshr_b32 s{sT2}, s{sWave}, 1"); A(f"s_lshl_b32 s{sT2}, s{sT2}, 15"); A(f"s_add_u32 s{sWb}, s{sT}, s{sT2}")
    A(f"v_add_u32 v{vOff}, s{sWb}, v{vLin}")
    A(f"v_lshlrev_b32 v{vSo}, 10, v{g_}"); A(f"v_lshl_add_u32 v{vSo}, v{m_}, 4, v{vSo}")
    A(f"v_lshlrev_b32 v{vQo}, 8, v{m_}"); A(f"v_lshl_add_u32 v{vQo}, v{g_}, 4, v{vQo}")
    for i in range(4): A(f"v_mov_b32 v{vVP+i}, -1")
    def own_slot(A):
        A(f"s_lshl_b32 s{sT}, s{sPair}, 2"); A(f"s_add_u32 s{sT}, s{sT}, s{sWave}"); A(f"s_lshl_b32 s{sT}, s{sT}, 2"); A(f"s_add_u32 s{sT}, s{sT}, s{sSplit}")
        A(f"s_lshl_b32 s{sT}, s{sT}, 13"); A(f"s_add_u32 s{sT}, s{sT}, {WS_SLOT}"); A(f"s_add_u32 s{sT2}, s{sT}, 4096")
    A(f"s_mul_i32 s{sG}, s{sWave}, {TABW}"); A(f"s_add_u32 s{sG}, s{sG}, {LDS_TAB}"); A(f"s_mov_b32 m0, s{sG}")
    own_slot(A)
    for r in (sX, sY): A(f"s_mov_b32 s{r+2}, 0x400000"); A(f"s_mov_b32 s{r+3}, 0x20000")
    A(f"s_mov_b32 s{sWS+2}, 0x40000000"); A(f"s_mov_b32 s{sWS+3}, 0x20000")
    A(f"s_lshl_b32 s{sT}, s{sPair}, 22")
    A(f"s_mov_b32 s{sDBG+2}, 256"); A(f"s_mov_b32 s{sDBG+3}, 0x20000"); A(f"s_lshl_b32 s{sDoff}, s{sPair}, 2"); A(f"v_mov_b32 v{vFl}, 1")
    A(f"s_lshl_b32 s{sO}, s{sSplit}, {SB}"); set_offs(A)
    for r in (sSM, sQ, sOUT): A(f"s_mov_b32 s{r+2}, 0x4000"); A(f"s_mov_b32 s{r+3}, 0x20000")
    A(f"s_lshl_b32 s{sPend}, s{sPair}, 14")
    A("s_waitcnt lgkmcnt(0)")
    def mk(r, p): A(f"s_add_u32 s{r}, s{p}, s{sPend}"); A(f"s_addc_u32 s{r+1}, s{p+1}, 0")
    A(f"s_add_u32 s{sKb}, s70, s{sT}"); A(f"s_addc_u32 s{sKb+1}, s71, 0")
    set_base(A, sKb)
    A(f"s_add_u32 s{sVb}, s72, s{sT}"); A(f"s_addc_u32 s{sVb+1}, s73, 0")
    kq = [0]; seq = []
    def pK(n):
        for _ in range(n):
            if prost and kq[0] == 0: A("s_memrealtime s[88:89]")
            A(item_text(kq[0])); kq[0] += 1; seq.append("K")
    def pC():
        A.c("mark the header of this wave's hand-off slot empty")
        A(f"s_mov_b64 s[{sWS}:{sWS+1}], s[6:7]")
        A(f"buffer_store_dwordx4 {vr(vVP,4)}, v{vLin}, {srd(sWS)}, s{sT2} offen sc0 sc1"); seq.append("c")
    def pA():
        A.c("wave 0 asks d_debug whether this is the pair's first workgroup to start")
        A(f"s_mov_b64 s[{sDBG}:{sDBG+1}], s[4:5]")
        A(f"s_cmp_eq_u32 s{sWave}, 0"); A("s_cbranch_scc0 L_noel")
        A("s_mov_b64 exec, 1")
        A(f"buffer_atomic_add v{vFl}, off, {srd(sDBG)}, s{sDoff} sc0")
        A("s_mov_b64 exec, -1")
        A.label("L_noel"); seq.append("a")
    def pT():
        A.c("wave w streams scale/zero array w (ks, kz, vs, vz) into the LDS table")
        A(f"s_cmp_eq_u32 s{sWave}, 1"); A(f"s_cselect_b64 s[{sSM}:{sSM+1}], s[76:77], s[74:75]")
        A(f"s_cmp_eq_u32 s{sWave}, 2"); A(f"s_cselect_b64 s[{sSM}:{sSM+1}], s[78:79], s[{sSM}:{sSM+1}]")
        A(f"s_cmp_eq_u32 s{sWave}, 3"); A(f"s_cselect_b64 s[{sSM}:{sSM+1}], s[80:81], s[{sSM}:{sSM+1}]")
        mk(sSM, sSM)
        A(f"s_lshl_b32 s{sT}, s{sSplit}, {SB-8}")
        nT = (npf + 3) // 4
        for u in range(nT):
            rows = min(4, npf - 4 * u)
            if rows < 4: A(f"s_bfm_b64 exec, {16*rows}, 0")
            A(f"buffer_load_dwordx4 v{vLin if ctg else vSo}, {srd(sSM)}, s{sT} offen {smf} lds"); seq.append("T")
            if rows < 4: A("s_mov_b64 exec, -1")
            if u + 1 < nT: A(f"s_add_u32 m0, m0, 1024"); A(f"s_add_u32 s{sT}, s{sT}, {1024 if ctg else 4096}")
        A(f"s_add_u32 m0, s{sG}, {DSLOT}")
    def pQ():
        mk(sQ, 68)
        A(f"s_lshl_b32 s{sT}, s{sWave}, 12")
        for s4 in range(4): A(f"buffer_load_dwordx4 {vr(vQ+4*s4,4)}, v{vQo}, {srd(sQ)}, s{sT} offen offset:{s4*64} {qflag}"); seq.append("Q")
    def pQc(first):
        if first: mk(sQ, 68)
        A(f"s_lshl_b32 s{sT}, s{sWave}, 12")
        A(f"s_cmp_eq_u32 s{sSplit}, 0"); A(f"s_cbranch_scc{0 if first else 1} L_q{int(first)}")
        for s4 in range(4): A(f"buffer_load_dwordx4 {vr(vQ+4*s4,4)}, v{vQo}, {srd(sQ)}, s{sT} offen offset:{s4*64} {qflag}")
        A.label(f"L_q{int(first)}")
    for tok in porder.split():
        if tok == "E": pQc(True)
        elif tok[0] == "K": pK(int(tok[1:]))
        else:
            n0 = len(A.I); dict(C=pC, A=pA, T=pT, Q=pQ)[tok.upper()]()
            if tok.islower():
                A.I[n0:] = [x for x in A.I[n0:] if "buffer_" not in x["t"]]
                if tok == "q": seq[:] = [x for x in seq if x != "Q"]
    npre = kq[0]; assert npre < 16
    mk(sOUT, 82)
    A(f"v_lshlrev_b32 v{vTK}, 3, v{c_}")
    A(f"v_lshrrev_b32 v{vTV}, 4, v{c_}"); A(f"v_lshlrev_b32 v{vTV}, 5, v{vTV}")
    A(f"v_and_b32 v{t0}, 15, v{c_}"); A(f"v_add_lshl_u32 v{vTV}, v{vTV}, v{t0}, 1")
    A(f"s_lshr_b32 s{sT}, s{sWb}, 8"); A(f"v_add_u32 v{vTV}, s{sT}, v{vTV}")
    A(f"s_lshr_b32 s{sT}, s{sWave}, 1"); A(f"s_and_b32 s{sT2}, s{sWave}, 1")
    A(f"s_mul_i32 s{sT}, s{sT}, {32*KROW}"); A(f"s_mul_i32 s{sT2}, s{sT2}, {8*KROW}"); A(f"s_add_u32 s{sT}, s{sT}, s{sT2}")
    A(f"v_mul_u32_u24 v{vKW}, {4*KROW}, v{h_}"); A(f"v_lshl_add_u32 v{vKW}, v{c_}, 3, v{vKW}"); A(f"v_add_u32 v{vKW}, s{sT}, v{vKW}")
    A(f"v_mul_u32_u24 v{vKR}, {KROW}, v{m_}"); A(f"v_lshl_add_u32 v{vKR}, v{g_}, 4, v{vKR}")
    A(f"s_mul_i32 s{sT}, s{sWave}, {2*OS}"); A(f"s_add_u32 s{sT}, s{sT}, {LDS_V}")
    A(f"v_mul_u32_u24 v{vVW}, {OS}, v{h_}"); A(f"v_lshl_add_u32 v{vVW}, v{c_}, 4, v{vVW}"); A(f"v_add_u32 v{vVW}, s{sT}, v{vVW}")
    A(f"v_mul_u32_u24 v{vVR}, {OS}, v{g_}"); A(f"v_and_b32 v{t0}, 3, v{m_}"); A(f"v_mul_u32_u24 v{t0}, {JS}, v{t0}")
    A(f"v_lshrrev_b32 v{t1}, 2, v{m_}"); A(f"v_lshlrev_b32 v{t1}, 5, v{t1}")
    A(f"v_add3_u32 v{vVR}, v{vVR}, v{t0}, v{t1}"); A(f"v_add_u32 v{vVR}, {LDS_V}, v{vVR}")
    A(f"s_lshl_b32 s{sT}, s{sWave}, 8"); A(f"s_add_u32 s{sT2}, s{sT}, {LDS_SC}")
    A(f"v_and_b32 v{vSW}, 1, v{c_}"); A(f"v_lshlrev_b32 v{vSW}, 7, v{vSW}")
    A(f"v_lshrrev_b32 v{t0}, 1, v{c_}"); A(f"v_lshl_add_u32 v{vSW}, v{t0}, 3, v{vSW}"); A(f"v_add_u32 v{vSW}, s{sT2}, v{vSW}")
    A(f"v_lshlrev_b32 v{vSR}, 7, v{h_}"); A(f"v_add_u32 v{vSR}, s{sT2}, v{vSR}")
    A(f"v_mov_b32 v{vMb}, {LDS_MB}")
    A(f"s_lshl_b32 s{sCoff}, s{sPair}, {cstride}"); A(f"s_add_u32 s{sCoff}, s{sCoff}, {WS_CTR}")
    A(f"s_mov_b32 s{sC}, {hex(f32bits(math.log2(math.e) / math.sqrt(128.0)))}")
    A(f"s_mov_b32 s{sThr}, {hex(f32bits(T))}")
    for r in (sIni, sI, sJ, sKsl, sVsl, sEnd): A(f"s_mov_b32 s{r}, 0")
    A(f"s_mov_b32 s{sSpin}, {SPIN}")
    A(f"s_cmp_eq_u32 s{sWave}, 0"); A(f"s_cselect_b32 s{sW0}, 1, 0")
    for i, w in enumerate((0x9e37c2b3, 0x85eb6d2f, 0x27d4f1a9, 0x165753c5)): A(f"s_mov_b32 s{sCw+i}, {hex(w)}")
    assert hspread + 4 < npf
    if early: A(f"s_mov_b32 s{sH0}, -1")
    else: A(f"s_and_b32 s{sH0}, s{sPair}, {hspread-1}"); A(f"s_add_u32 s{sH0}, s{sH0}, 1")
    for i in range(32): A(f"v_mov_b32 v{vO+i}, 0")
    A(f"v_mov_b32 v{vM}, 0xf149f2ca"); A(f"v_mov_b32 v{vMO}, 0xf149f2ca"); A(f"v_mov_b32 v{vL}, 0"); A(f"v_mov_b32 v{vAt}, 0")
    def ktab_reads(S):
        S(f"v_add_u32 v{vTmp+3}, s{sKsl}, v{vTK}")
        S(f"ds_read_b64 {vr(vKSr,2)}, v{vTmp+3} offset:{LDS_TAB}"); S(f"ds_read_b64 {vr(vKZr,2)}, v{vTmp+3} offset:{LDS_TAB+TABW}")
    def vtab_reads(S):
        S(f"v_xor_b32 v{vTmp+3}, s{sVsl}, v{vTV}")
        S(f"ds_read_u16 v{vVSr}, v{vTmp+3} offset:{LDS_TAB+2*TABW}"); S(f"ds_read_u16 v{vVZr}, v{vTmp+3} offset:{LDS_TAB+3*TABW}")
    def prep_v(S):
        S(f"v_lshlrev_b32 v{vT2}, 16, v{vVSr}"); S(f"v_lshlrev_b32 v{vT2+1}, 16, v{vVZr}")
        S(f"v_mul_f32 v{vT2+1}, -v{vT2+1}, v{vT2}"); S(f"v_mul_f32 v{vT2}, 0x4b800000, v{vT2}")
        S(f"ds_write_b64 v{vSW}, {vr(vT2,2)}")
    def prep_k(S):
        S.c("K: S = ks*2^24, C = -kz*ks per channel (the int code is read as an f16 subnormal, code*2^-24)")
        for p in range(2):
            S(f"v_lshlrev_b32 v{vKS+2*p}, 16, v{vKSr+p}"); S(f"v_and_b32 v{vKS+2*p+1}, 0xffff0000, v{vKSr+p}")
            S(f"v_lshlrev_b32 v{vKC+2*p}, 16, v{vKZr+p}"); S(f"v_and_b32 v{vKC+2*p+1}, 0xffff0000, v{vKZr+p}")
        for j in range(4): S(f"v_mul_f32 v{vKC+j}, -v{vKC+j}, v{vKS+j}")
        for j in range(4): S(f"v_mul_f32 v{vKS+j}, 0x4b800000, v{vKS+j}")
    def sc_lo_reads(S):
        for i in range(4): S(f"ds_read_b128 {vr(vSc+4*i,4)}, v{vSR} offset:{i*16}")
    for k in range(npre, 16):
        if "E" in porder and k == qlate: pQc(False)
        A(f"s_waitcnt vmcnt({capn(capP, k)})"); A(item_text(k)); seq.append("K")
    lastneed = max(i for i, x in enumerate(seq) if x in "Ta")
    A(f"s_waitcnt vmcnt({sum(1 for x in seq[lastneed+1:] if x in 'KQ')})"); A("s_barrier")
    if prost: A("s_memrealtime s[90:91]")
    ktab_reads(A); vtab_reads(A)
    A("s_waitcnt lgkmcnt(0)")
    prep_v(A)
    pro = A

    def itstamp(S):
        if stamps and itst:
            S("s_memrealtime s[96:97]"); S("s_mov_b32 s98, m0"); S(f"s_add_u32 m0, s{sI}, s{sJ}"); S(f"v_accvgpr_read_b32 v{vTmp+3}, a255"); S("s_waitcnt lgkmcnt(0)")
            S(f"v_writelane_b32 v{vTmp+3}, s96, m0"); S("s_mov_b32 m0, s98"); S(f"v_accvgpr_write_b32 a255, v{vTmp+3}")

    def finish(B, targets, name, atomic=False):
        I = B.I
        pos = lambda kind, k=None: next(i for i, x in enumerate(I) if x.get("mark") == kind and x.get("k") == k)
        cum = []; a = 0
        for x in I: cum.append(a); a += x["c"]
        tg = targets(lambda kind, k=None: cum[pos(kind, k)], a)
        place = []; prev = pos("ready") + 1
        for k in range(16):
            p = next((i for i in range(len(I)) if cum[i] >= tg[k]), len(I) - 1)
            p = max(p, prev, pos("free", k) + 1)
            while not I[p]["ins"]: p += 1
            assert p <= pos("allissued"), (name, k)
            place.append(p); prev = p
        at = None
        if atomic:
            nb = sum(1 for p in place if p <= pos("postwait")); at = nb - AL; assert at >= 0
        out = []; ei = 0; info = []
        for i, x in enumerate(I):
            while ei < 16 and place[ei] == i:
                if ei == at:
                    out += [f"    s_cmp_lg_u32 s{sW0}, 0", "    s_cbranch_scc0 L_noat", "    s_mov_b64 exec, 1", f"    v_mov_b32 v{vAt}, 1",
                            f"    buffer_atomic_add v{vAt}, off, {srd(sWS)}, s{sCoff} sc0", "    s_mov_b64 exec, -1", "L_noat:"]
                cc = capH if name == "H" else (capV if name == "V" else cap)
                if cc: out.append(f"    s_waitcnt vmcnt({capn(cc, ei)})")
                out.append("    " + item_text(ei)); ei += 1
            if "mark" in x:
                if x["mark"] == "wait":
                    n = 15 - x["k"] + ei; info.append(n); out.append(f"    s_waitcnt vmcnt({n})")
                elif x["mark"] == "smallwait": out.append(f"    s_waitcnt vmcnt({ei})")
                elif x["mark"] == "postwait": out.append(f"    s_waitcnt vmcnt({AL})")
            else: out.append(x["t"])
        assert ei == 16
        gaps = [cum[place[k+1]] - cum[place[k]] for k in range(15)]
        print(name, "cost", a, "vmcnt", info, "first", cum[place[0]], "gaps", gaps, "last->end", a - cum[place[15]], "atomic before", at, file=sys.stderr)
        return out

    def deq(S, r, s, c): S(f"v_fma_mix_f32 v{r}, v{r}, v{s}, v{c} op_sel_hi:[1,0,0]")
    def kitems(B, n):
        for k in range(n):
            r = vRing + 4 * k; t = vKP + 2 * (k % 4)
            B.mark("wait", k)
            for j in range(4): deq(B, r + j, vKS + j, vKC + j)
            B(f"v_cvt_pk_bf16_f32 v{t}, v{r}, v{r+1}"); B(f"v_cvt_pk_bf16_f32 v{t+1}, v{r+2}, v{r+3}")
            B.mark("free", k)
            B(f"ds_write_b64 v{vKW}, {vr(t,2)} offset:{LDS_K + ((k//8)*64 + ((k//4)%2)*16 + k%4)*KROW}")
        B.mark("kdone")
    def qk(B, nblk, after_first=None):
        B.c("S^T = K Q^T")
        order = [(2 * bp + u, s4) for bp in range(nblk // 2) for s4 in range(4) for u in range(2)]
        n = len(order)
        def kread(i):
            b, s4 = order[i]
            B(f"ds_read_b128 {vr(vSt+4*(i%NST),4)}, v{vKR} offset:{LDS_K + b*16*KROW + s4*64}")
        for i in range(PF): kread(i)
        for i in range(n):
            b, s4 = order[i]
            B(f"s_waitcnt lgkmcnt({min(PF-1, n-1-i)})")
            cc = "0" if s4 == 0 else vr(vS+4*b, 4)
            B(f"v_mfma_f32_16x16x32_bf16 {vr(vS+4*b,4)}, {vr(vSt+4*(i%NST),4)}, {vr(vQ+4*s4,4)}, {cc}")
            if i + PF < n: kread(i + PF)
            if i == 0 and after_first: after_first()
    def softmax(B, n, tag):
        B(f"v_max3_f32 v{vMx}, v{vS}, v{vS+1}, v{vS+2}"); B(f"v_max3_f32 v{vTmp+1}, v{vS+3}, v{vS+4}, v{vS+5}")
        for i in range(6, n - 2, 4):
            B(f"v_max3_f32 v{vMx}, v{vMx}, v{vS+i}, v{vS+i+1}"); B(f"v_max3_f32 v{vTmp+1}, v{vTmp+1}, v{vS+i+2}, v{vS+i+3}")
        B(f"v_max3_f32 v{vMx}, v{vMx}, v{vS+n-2}, v{vS+n-1}"); B(f"v_max_f32 v{vMx}, v{vMx}, v{vTmp+1}")
        B(f"v_fma_f32 v{vTmp+1}, v{vMx}, s{sC}, -v{vM}")
        B(f"v_cmp_lt_f32 vcc, s{sThr}, v{vTmp+1}")
        B.lock = True
        B(f"s_cbranch_vccnz L_rescale{tag}")
        B.label(f"L_rescaled{tag}")
        B.lock = False
        for half in range(n // 16):
            b = vS + 16 * half
            for i in range(16): B(f"v_fma_f32 v{b+i}, v{b+i}, s{sC}, -v{vM}")
            for i in range(16): B(f"v_exp_f32 v{b+i}, v{b+i}")
            B(f"v_add_f32 v{vTmp+1}, v{b}, v{b+1}"); B(f"v_add_f32 v{vTmp+2}, v{b+2}, v{b+3}")
            for i in range(4, 16, 2):
                B(f"v_add_f32 v{vTmp+1}, v{vTmp+1}, v{b+i}"); B(f"v_add_f32 v{vTmp+2}, v{vTmp+2}, v{b+i+1}")
            B(f"v_add_f32 v{vL}, v{vL}, v{vTmp+1}"); B(f"v_add_f32 v{vL}, v{vL}, v{vTmp+2}")
            for i in range(8): B(f"v_cvt_pk_bf16_f32 v{vS+8*half+i}, v{b+2*i}, v{b+2*i+1}")
    def vphase(B, k0, s, refill_hi):
        for n8 in range(8):
            k = k0 + n8; r = vRing + 4 * k; sc = vSc + 2 * n8
            B.mark("wait", k)
            if refill_hi and n8 == 0: B("s_waitcnt lgkmcnt(0)")
            for j in range(4): deq(B, r + j, sc, sc + 1)
            if n8 % 2 == 1:
                if refill_hi: B(f"ds_read_b128 {vr(vSc+4*(n8//2),4)}, v{vSR} offset:{64 + (n8//2)*16}")
                for j in range(4): B(f"v_cvt_pk_bf16_f32 v{vVP+4*j+n8//2}, v{r-4+j}, v{r+j}")
                B.mark("free", k - 1); B.mark("free", k)
        for j in range(4): B(f"ds_write_b128 v{vVW}, {vr(vVP+4*j,4)} offset:{s*8*OS + j*JS}")
    def pv(B, s, extra, nextra):
        lst = [(2 * s + kk, db) for kk in range(2) for db in range(8)]
        def vread(i):
            ks, db = lst[i]
            B(f"ds_read_b128 {vr(vSt+4*(i%NST),4)}, v{vVR} offset:{ks*4*OS + (db//2)*128 + (db%2)*16}")
        for i in range(PF): vread(i)
        for i in range(16):
            ks, db = lst[i]
            younger = min(PF - 1, 15 - i)
            if i + PF >= 17: younger += nextra
            assert younger <= 15
            B(f"s_waitcnt lgkmcnt({younger})")
            B(f"v_mfma_f32_16x16x32_bf16 {vr(vO+4*db,4)}, {vr(vSt+4*(i%NST),4)}, {vr(vS+4*ks,4)}, {vr(vO+4*db,4)}")
            if i + PF < 16: vread(i + PF)
            if i + PF == 16: extra()

    B = Stream()
    B.lock = True
    B.label("L_K")
    itstamp(B)
    B(f"s_add_u32 s{sI}, s{sI}, 1")
    B(f"s_cmp_lt_u32 s{sI}, {npf}"); B("s_cbranch_scc0 L_k2v")
    set_static(B, sI); B(f"s_lshl_b32 s{sKsl}, s{sI}, 8")
    B(f"s_cmp_lg_u32 s{sW0}, 0"); B("s_cbranch_scc1 L_hookK")
    B.label("L_k1")
    B.lock = False
    B.mark("ready")
    prep_k(B)
    kitems(B, 16)
    B("s_waitcnt lgkmcnt(0)"); B("s_barrier")
    qk(B, 8)
    ktab_reads(B)
    B("s_nop 0")
    softmax(B, 32, "K")
    B.mark("allissued")
    B.lock = True
    B("s_branch L_save")
    B.label("L_saved")
    B("s_waitcnt lgkmcnt(0)"); B("s_barrier")
    B(f"s_cmp_lt_u32 s{sI}, {npf}"); B("s_cbranch_scc1 L_K")
    sc_lo_reads(B)
    B.lock = False
    def ktg(P, tot):
        c0 = P("wait", 0); c1 = P("kdone"); c2 = P("allissued")
        return [c0 + (c1 - c0) * (k + 0.5) / nK1 for k in range(nK1)] + [c1 + (c2 - c1) * (k + 0.5) / (16 - nK1) for k in range(16 - nK1)]
    kbody = finish(B, ktg, "K")

    B = Stream()
    B.lock = True
    B.label("L_V")
    itstamp(B)
    B(f"s_add_u32 s{sJ}, s{sJ}, 1")
    B(f"s_cmp_lt_u32 s{sJ}, {npf}"); B("s_cbranch_scc0 L_v2h")
    set_static(B, sJ); B(f"s_lshl_b32 s{sVsl}, s{sJ}, 8")
    B.label("L_v0")
    B("s_branch L_restore")
    B.label("L_v1")
    B.lock = False
    B.mark("ready")
    vphase(B, 0, 0, True)
    vtab_reads(B)
    B("s_waitcnt lgkmcnt(0)"); B("s_barrier")
    prep_v(B)
    pv(B, 0, lambda: None, 0)
    vphase(B, 8, 1, False)
    B.mark("vdone")
    B.mark("smallwait")
    B("s_waitcnt lgkmcnt(0)"); B("s_barrier")
    pv(B, 1, lambda: sc_lo_reads(B), 4)
    B.mark("allissued")
    B.lock = True
    B(f"s_cmp_lt_u32 s{sJ}, {npf}"); B("s_cbranch_scc1 L_V")
    ktab_reads(B); vtab_reads(B)
    B.c("first H unit: all its rows were requested by the last V body, and its successor's ticket too")
    itstamp(B)
    if stamps: B(f"s_add_u32 s{sI}, s{sI}, 1")
    B("s_waitcnt lgkmcnt(0)")
    prep_v(B); sc_lo_reads(B); prep_k(B)
    F_ = Stream(); kitems(F_, 8)
    for x in F_.I:
        if "mark" in x:
            if x["mark"] == "wait": B(f"s_waitcnt vmcnt({15 - x['k']})", 0)
        else: B(x["t"].strip(), 0)
    B(f"s_cmp_lg_u32 s{sW0}, 0"); B("s_cbranch_scc1 L_post"); B("s_branch L_nopost")
    B.lock = False
    def vtg(P, tot):
        c0 = P("wait", 0); c1 = P("vdone") + vtail
        return [c0 + (c1 - c0) * (k + 0.9) / 16 for k in range(16)]
    vbody = finish(B, vtg, "V")

    B = Stream()
    B.label("L_H")
    itstamp(B)
    if stamps: B(f"s_add_u32 s{sI}, s{sI}, 1")
    B.mark("start")
    B("s_waitcnt lgkmcnt(0)")
    prep_v(B)
    sc_lo_reads(B)
    prep_k(B)
    kitems(B, 8)
    B(f"s_cmp_lg_u32 s{sW0}, 0")
    B.lock = True
    B("s_cbranch_scc0 L_nopost")
    B.mark("postwait")
    B.label("L_post")
    B(f"ds_write_b32 v{vL4}, v{vAt} offset:{LDS_MB}")
    B.label("L_nopost")
    B.lock = False
    B("s_waitcnt lgkmcnt(0)"); B("s_barrier")
    B(f"ds_read_b32 v{vTmp}, v{vMb}")
    def decide():
        B.c("next half group from the pair's ticket counter")
        B(f"v_readfirstlane_b32 s{sG}, v{vTmp}")
        B.lock = True
        B("s_nop 3")
        B(f"s_add_u32 s{sG}, s{sG}, 4")
        B(f"s_cmp_lt_u32 s{sG}, {NH}"); B("s_cbranch_scc0 L_nomore")
        set_half(B)
        B.label("L_h1")
        B.mark("decided")
        B.lock = False
    qk(B, 4, decide)
    B("s_nop 5")
    softmax(B, 16, "H")
    B(f"s_cmp_eq_u32 s{sEnd}, 2")
    B.lock = True
    B("s_cbranch_scc1 L_ctail")
    B.mark("vstart")
    B.lock = False
    vphase(B, 8, 0, False)
    B.mark("vdone")
    B.mark("smallwait")
    B("s_waitcnt lgkmcnt(0)"); B("s_barrier")
    def exH():
        ktab_reads(B); vtab_reads(B)
    pv(B, 0, exH, 4)
    B.mark("allissued")
    B.lock = True
    B(f"s_cmp_eq_u32 s{sEnd}, 0"); B("s_cbranch_scc1 L_H")
    B.lock = False
    I = B.I
    pos = lambda kind, k=None: next(i for i, x in enumerate(I) if x.get("mark") == kind and x.get("k") == k)
    cum = []; a_ = 0
    for x in I: cum.append(a_); a_ += x["c"]
    place = []
    for j in range(8):
        if j < hv:
            t = cum[pos("start")] + (cum[pos("wait", 0)] - cum[pos("start")]) * j / hv
            place.append(max(pos("start"), next(i for i in range(len(I)) if cum[i] >= t)))
        else: place.append(pos("wait", j - hv + 1))
    c0 = cum[pos("decided")]; c1 = c0 + (cum[pos("wait", 15)] - c0) * hk
    prev = pos("decided") + 1
    for j in range(8):
        t = c0 + (c1 - c0) * j / (nH1 - 0.5) if j < nH1 else cum[pos("vdone")] + htail * (j - nH1 + 1) / max(1, 8 - nH1)
        p = max(prev, next(i for i in range(len(I)) if cum[i] >= t))
        while not I[p]["ins"]: p += 1
        assert p <= pos("allissued")
        place.append(p); prev = p
    at = (8 - AL) % 16; assert AL <= 16
    hbody = []; ei = 0; info = []; nd = None
    for i, x in enumerate(I):
        while ei < 16 and place[ei] == i:
            if ei == at:
                hbody += [f"    s_cmp_lg_u32 s{sW0}, 0", "    s_cbranch_scc0 L_noat", "    s_mov_b64 exec, 1", f"    v_mov_b32 v{vAt}, 1",
                          f"    buffer_atomic_add v{vAt}, off, {srd(sWS)}, s{sCoff} sc0", "    s_mov_b64 exec, -1", "L_noat:"]
            if capH: hbody.append(f"    s_waitcnt vmcnt({capn(capH, ei)})")
            hbody.append("    " + item_text((ei + 8) % 16)); ei += 1
        if "mark" in x:
            if x["mark"] == "wait":
                k = x["k"]
                if k >= 8: assert ei >= 8
                n = (7 - k + ei) if k < 8 else (15 - k + ei - 8); info.append(n); hbody.append(f"    s_waitcnt vmcnt({n})")
            elif x["mark"] == "smallwait": hbody.append(f"    s_waitcnt vmcnt({ei-8})")
            elif x["mark"] == "postwait": assert ei == 8; hbody.append(f"    s_waitcnt vmcnt({AL})")
            elif x["mark"] == "vstart": nd = ei - 8
        else: hbody.append(x["t"])
    assert ei == 16
    print("H cost", a_, "vmcnt", info, "issue at", [cum[p] for p in place], "nd", nd, file=sys.stderr)

    E = Stream()
    def stampE(i):
        if stamps and not (prost and i in (2, 3)): E(f"s_memrealtime s[{84+2*i}:{85+2*i}]")
    def lsum():
        stampE(1)
        if stamps: E("s_mov_b32 s99, 0")
        E.c("row sum over the four lane groups")
        for sw in ("v_permlane32_swap_b32", "v_permlane16_swap_b32"):
            E(f"v_mov_b32 v{vTmp+1}, v{vL}"); E("s_nop 1"); E(f"{sw} v{vTmp+1}, v{vL}"); E("s_nop 1"); E(f"v_add_f32 v{vL}, v{vL}, v{vTmp+1}")
    lsum()
    E.c("not the last workgroup of this pair: hand the partial over; header = (m, l, checksum), none equal to the empty mark")
    own_slot(E)
    for q in range(4):
        for i in range(4 * q, 4 * q + 4): E(f"v_cvt_pk_bf16_f32 v{vSt+i}, v{vO+2*i}, v{vO+2*i+1}")
        E(f"buffer_store_dwordx4 {vr(vSt+4*q,4)}, v{vLin}, {srd(sWS)}, s{sT} offen offset:{q*1024} {pubf}")
    for i in range(16): E(f"v_dot2_u32_u16 v{vCk}, v{vSt+i}, s{sCw + (i + i//4) % 4}, {'0' if i == 0 else 'v%d' % vCk}")
    E(f"v_min_u32 v{vM}, -2, v{vM}"); E(f"v_min_u32 v{vL}, -2, v{vL}"); E("s_nop 0"); E(f"v_min_u32 v{vCk}, -2, v{vCk}")
    E(f"buffer_store_dwordx4 {vr(vM,4)}, v{vLin}, {srd(sWS)}, s{sT2} offen {pubf}")
    if stamps:
        for i in (2, 3, 4): stampE(i)
        E("s_branch L_done")
    else:
        E("s_endpgm")
    ml = lambda x: (vS + 8, vS + 12, vKP)[x - 1]
    dat = lambda x: (vRing, vRing + 16, vQ)[x - 1]
    bb = vKSr; u0 = vKS
    def part_loads(x, hdr=True, body=True):
        if hdr: E(f"buffer_load_dwordx4 {vr(ml(x),4)}, v{vLin}, {srd(sWS)}, s{sO+x-1} offen sc0 sc1")
        if body:
            for q in range(4): E(f"buffer_load_dwordx4 {vr(dat(x)+4*q,4)}, v{vLin}, {srd(sWS)}, s{sPo+x-1} offen offset:{q*1024} sc0 sc1")
    E.c("last workgroup of the pair: fetch the other three partials while finishing the last unit")
    E.label("L_ctail")
    P_ = Stream(); Esave = E
    pl = []
    for x in range(1, 4):
        pl.append(f"buffer_load_dwordx4 {vr(ml(x),4)}, v{vLin}, {srd(sWS)}, s{sO+x-1} offen sc0 sc1")
        pl += [f"buffer_load_dwordx4 {vr(dat(x)+4*q,4)}, v{vLin}, {srd(sWS)}, s{sPo+x-1} offen offset:{q*1024} sc0 sc1" for q in range(4)]
    T_ = Stream()
    vphase(T_, 8, 0, False)
    T_("s_waitcnt lgkmcnt(0)"); T_("s_barrier")
    pv(T_, 0, lambda: None, 0)
    tot = sum(x["c"] for x in T_.I); cum_ = 0; ni = 0
    for x in T_.I:
        while ni < 15 and cum_ >= tot * ctspan * ni / 15:
            E(pl[ni]); ni += 1
        if "mark" in x:
            if x["mark"] == "wait": E(f"s_waitcnt vmcnt({15 - x['k'] + nd + ni})")
        else: E.I.append(x)
        cum_ += x["c"]
    assert ni == 15
    lsum()
    E.c("fold them in, re-reading those that have not fully arrived")
    E(f"s_mov_b32 s{sPend}, 7"); E(f"s_mov_b32 s{sThr}, {hex(f32bits(TM))}")
    E.label("L_round")
    for x in range(1, 4):
        E(f"s_bitcmp1_b32 s{sPend}, {x-1}"); E(f"s_cbranch_scc0 L_fold{x}")
        E(f"s_waitcnt vmcnt({5*(3-x)})")
        for i in range(16): E(f"v_dot2_u32_u16 v{vCk}, v{dat(x)+i}, s{sCw + (i + i//4) % 4}, {'0' if i == 0 else 'v%d' % vCk}")
        E(f"v_max_u32 v{vTmp+1}, v{ml(x)}, v{ml(x)+1}"); E(f"v_cmp_eq_u32 s[4:5], -1, v{vTmp+1}")
        E(f"v_sub_f32 v{bb}, v{ml(x)}, v{vM}")
        E(f"v_min_u32 v{vCk}, -2, v{vCk}"); E(f"v_cmp_ne_u32 vcc, v{vCk}, v{ml(x)+2}")
        E("s_or_b64 vcc, vcc, s[4:5]"); E(f"s_cbranch_scc1 L_miss{x}")
        E(f"s_bitset0_b32 s{sPend}, {x-1}")
        E(f"v_cmp_lt_f32 vcc, s{sThr}, v{bb}"); E(f"s_cbranch_vccnz L_far{x}")
        E.label(f"L_near{x}")
        E(f"v_exp_f32 v{bb}, v{bb}")
        for q in range(4):
            r = dat(x) + 4 * q
            for i in range(4):
                E(f"v_lshlrev_b32 v{u0+2*i}, 16, v{r+i}"); E(f"v_and_b32 v{u0+2*i+1}, 0xffff0000, v{r+i}")
            for i in range(4):
                d = vO + 2 * (4 * q + i)
                E(f"v_pk_fma_f32 {vr(d,2)}, {vr(u0+2*i,2)}, {vr(bb,2)}, {vr(d,2)} op_sel_hi:[1,0,1]")
        E(f"v_fmac_f32 v{vL}, v{ml(x)+1}, v{bb}")
        E.label(f"L_fold{x}")
    if stamps: E("s_add_u32 s99, s99, 1")
    E(f"s_cmp_lg_u32 s{sPend}, 0"); E("s_cbranch_scc1 L_again")
    E.label("L_merged")
    for i in (2, 3, 4): stampE(i)
    if diagx:
        E("s_memrealtime s[86:87]"); E("s_waitcnt lgkmcnt(0)"); E("s_sub_u32 s86, s86, s84")
        E(f"s_cmp_gt_u32 s86, {abs(diagx)}"); E("s_cbranch_scc0 L_dx" if diagx > 0 else "s_cbranch_scc1 L_dx")
        E(f"v_cvt_f32_u32 v{vL}, s86"); E(f"v_rcp_f32 v{vL}, v{vL}"); E("s_nop 1")
        for i in range(32): E(f"v_mov_b32 v{vO+i}, 1.0")
        E.label("L_dx")
    E(f"v_rcp_f32 v{bb}, v{vL}")
    E(f"v_and_b32 v{vTmp}, 15, v{vLane}"); E(f"v_lshrrev_b32 v{vTmp+1}, 4, v{vLane}")
    E(f"v_lshlrev_b32 v{vTmp}, 8, v{vTmp}"); E(f"v_lshl_add_u32 v{vTmp}, v{vTmp+1}, 4, v{vTmp}")
    E(f"s_lshl_b32 s{sT}, s{sWave}, 12")
    for u in range(4):
        for i in range(4 * u, 4 * u + 4): E(f"v_pk_mul_f32 {vr(vO+2*i,2)}, {vr(vO+2*i,2)}, {vr(bb,2)} op_sel_hi:[1,0]")
        for i in range(4 * u, 4 * u + 4): E(f"v_cvt_pk_bf16_f32 v{vS+i}, v{vO+2*i}, v{vO+2*i+1}")
        E(f"buffer_store_dwordx4 {vr(vS+4*u,4)}, v{vTmp}, {srd(sOUT)}, s{sT} offen offset:{u*64} {outf}")
    E.label("L_done")
    if stamps:
        E("s_waitcnt vmcnt(0)")
        stampE(5)
        E(f"s_lshl_b32 s{sT}, s2, 2"); E(f"s_add_u32 s{sT}, s{sT}, s{sWave}"); E(f"s_lshl_b32 s{sT2}, s{sT}, 4")
        E(f"s_lshl_b32 s4, s{sT}, 8"); E("s_add_u32 s4, s4, 0x22000000")
        E(f"s_add_u32 s{sT2}, s{sT2}, 0x20000000")
        E(f"s_lshl_b32 s{sT}, s{sT}, 6"); E(f"s_add_u32 s{sT}, s{sT}, 0x21000000")
        E("s_waitcnt lgkmcnt(0)")
        E(f"v_accvgpr_read_b32 v60, a255")
        for i in range(12): E(f"v_mov_b32 v{16+i}, s{84+i}")
        E(f"v_mov_b32 v28, s{sI}"); E("s_getreg_b32 s5, hwreg(HW_REG_XCC_ID)"); E("v_mov_b32 v29, s5"); E(f"v_mov_b32 v30, s{sEnd}"); E("v_mov_b32 v31, s99")
        E("v_mov_b32 v32, s84"); E("v_mov_b32 v33, s85"); E("v_mov_b32 v34, s94"); E("v_mov_b32 v35, s95")
        E(f"buffer_store_dword v60, v{vL4}, {srd(sWS)}, s4 offen sc0 sc1")
        E("s_mov_b64 exec, 1")
        E(f"buffer_store_dwordx4 v[32:35], off, {srd(sWS)}, s{sT2} sc0 sc1")
        for i in range(4): E(f"buffer_store_dwordx4 v[{16+4*i}:{19+4*i}], off, {srd(sWS)}, s{sT} offset:{16*i} sc0 sc1")
    E.label("L_end")
    E("s_endpgm")

    E.label("L_again")
    E("s_waitcnt vmcnt(0)")
    E(f"s_sub_u32 s{sSpin}, s{sSpin}, 1"); E("s_cbranch_scc0 L_round"); E("s_branch L_merged")
    for x in range(1, 4):
        E.label(f"L_miss{x}")
        for t in pl[5*(x-1):5*x]: E(t)
        E(f"s_branch L_fold{x}")
    for x in range(1, 4):
        E.label(f"L_far{x}")
        E(f"v_max_f32 v{vMx}, v{vM}, v{ml(x)}"); E(f"v_sub_f32 v{vTmp+1}, v{vM}, v{vMx}"); E(f"v_exp_f32 v{vTmp+1}, v{vTmp+1}")
        E(f"v_mov_b32 v{vM}, v{vMx}"); E(f"v_sub_f32 v{bb}, v{ml(x)}, v{vMx}"); E(f"v_mul_f32 v{vL}, v{vL}, v{vTmp+1}")
        for i in range(32): E(f"v_mul_f32 v{vO+i}, v{vO+i}, v{vTmp+1}")
        E(f"s_branch L_near{x}")
    E.c("the pair's pool is empty")
    E.label("L_nomore")
    E(f"s_mov_b32 s{sEnd}, 1"); E(f"s_mov_b32 s{sX+2}, 0"); E(f"s_mov_b32 s{sW0}, 0")
    E(f"s_cmp_eq_u32 s{sG}, {NH+3}"); E("s_cbranch_scc0 L_h1")
    E.c("fourth workgroup to run dry: it merges")
    E(f"s_mov_b32 s{sEnd}, 2")
    E(f"s_lshl_b32 s{sG}, s{sPair}, 2"); E(f"s_add_u32 s{sG}, s{sG}, s{sWave}"); E(f"s_lshl_b32 s{sG}, s{sG}, 15")
    E(f"s_add_u32 s{sG}, s{sG}, {WS_SLOT}")
    for x in range(1, 4):
        E(f"s_add_u32 s{sT}, s{sSplit}, {x}"); E(f"s_and_b32 s{sT}, s{sT}, 3"); E(f"s_lshl_b32 s{sT}, s{sT}, 13")
        E(f"s_add_u32 s{sPo+x-1}, s{sG}, s{sT}"); E(f"s_add_u32 s{sO+x-1}, s{sPo+x-1}, 4096")
    E("s_branch L_h1")

    E.label("L_k2v")
    E(f"s_lshl_b32 s{sO}, s{sSplit}, {SB}"); set_offs(E); set_base(E, sVb)
    E(f"s_cmp_lg_u32 s{sW0}, 0"); E("s_cbranch_scc0 L_k1")
    E(f"buffer_load_dword v{vFl}, off, {srd(sDBG)}, s{sDoff} {flagf}")
    E("s_branch L_k1")

    E.c("last V unit: the next unit is the first H unit; wave 0 checks that the ticket counter is live")
    E.label("L_v2h")
    E(f"s_cmp_lg_u32 s{sW0}, 0"); E("s_cbranch_scc0 L_v2h1")
    E.label("L_flag")
    E(f"v_readfirstlane_b32 s{sT}, v{vFl}"); E(f"s_sub_u32 s{sSpin}, s{sSpin}, 1"); E("s_cbranch_scc1 L_live"); E("s_nop 2")
    E(f"s_bitcmp1_b32 s{sT}, 8"); E("s_cbranch_scc1 L_live")
    E(f"buffer_load_dword v{vFl}, off, {srd(sDBG)}, s{sDoff} sc0 sc1")
    E("s_waitcnt vmcnt(0)"); E("s_branch L_flag")
    E.label("L_live")
    E("s_mov_b64 exec, 1"); E(f"v_mov_b32 v{vAt}, 1")
    E(f"buffer_atomic_add v{vAt}, off, {srd(sWS)}, s{sCoff} sc0")
    E("s_mov_b64 exec, -1")
    E.label("L_v2h1")
    set_base(E, sKb, sVb)
    E(f"s_mov_b32 s{sKsl}, {DSLOT}"); E(f"s_mov_b32 s{sG}, s{sSplit}")
    set_half(E)
    E("s_branch L_v0")

    def tree(lo, hi, reg, pre, leaf):
        if lo == hi: leaf(lo); return
        mid = (lo + hi + 1) // 2
        E(f"s_cmp_ge_u32 s{reg}, {mid}"); E(f"s_cbranch_scc1 {pre}{mid}_{hi}")
        tree(lo, mid - 1, reg, pre, leaf)
        E.label(f"{pre}{mid}_{hi}")
        tree(mid, hi, reg, pre, leaf)
    E.label("L_restore")
    def rleaf(j1):
        b = 17 * (j1 - 1)
        E(f"v_accvgpr_read_b32 v{vMx}, a{b+16}")
        for i in range(16): E(f"v_accvgpr_read_b32 v{vS+i}, a{b+i}")
        E("s_branch L_restored")
    tree(1, npf, sJ, "L_r", rleaf)
    E.label("L_restored")
    E(f"v_cmp_neq_f32 vcc, v{vMx}, v{vMO}")
    E("s_cbranch_vccz L_v1")
    E.c("this tile's P used a newer reference max than O holds: bring O up to it")
    E(f"v_sub_f32 v{vTmp+1}, v{vMO}, v{vMx}"); E(f"v_exp_f32 v{vTmp+1}, v{vTmp+1}"); E(f"v_mov_b32 v{vMO}, v{vMx}")
    for i in range(32): E(f"v_mul_f32 v{vO+i}, v{vO+i}, v{vTmp+1}")
    E("s_branch L_v1")
    E.label("L_save")
    def sleaf(i1):
        b = 17 * (i1 - 1)
        for i in range(16): E(f"v_accvgpr_write_b32 a{b+i}, v{vS+i}")
        E(f"v_accvgpr_write_b32 a{b+16}, v{vM}")
        E("s_branch L_saved")
    tree(1, npf, sI, "L_s", sleaf)

    E.c("rare path: the running max rose past the threshold -> move the reference to the true running max")
    for tag in ("K", "H"):
        E.label(f"L_rescale{tag}")
        for sw in ("v_permlane32_swap_b32", "v_permlane16_swap_b32"):
            E(f"v_mov_b32 v{vTmp+1}, v{vMx}"); E("s_nop 1"); E(f"{sw} v{vTmp+1}, v{vMx}"); E("s_nop 1"); E(f"v_max_f32 v{vMx}, v{vMx}, v{vTmp+1}")
        E(f"v_mul_f32 v{vMx}, s{sC}, v{vMx}"); E(f"v_max_f32 v{vMx}, v{vMx}, v{vM}")
        E(f"v_sub_f32 v{vTmp+1}, v{vM}, v{vMx}"); E(f"v_exp_f32 v{vTmp+1}, v{vTmp+1}"); E(f"v_mov_b32 v{vM}, v{vMx}")
        E(f"v_mul_f32 v{vL}, v{vL}, v{vTmp+1}")
        if tag == "H":
            for i in range(32): E(f"v_mul_f32 v{vO+i}, v{vO+i}, v{vTmp+1}")
        E(f"s_branch L_rescaled{tag}")

    E.c("wave 0: the first workgroup of the pair to get here zeroes the ticket counter in d_ws and raises a flag in d_debug")
    E.label("L_hookK")
    E(f"s_sub_u32 s{sT}, s{sI}, s{sH0}")
    E(f"s_cmp_eq_u32 s{sT}, 0"); E("s_cbranch_scc1 L_h0")
    E(f"s_cmp_eq_u32 s{sT}, 2"); E("s_cbranch_scc1 L_hk1")
    E(f"s_cmp_eq_u32 s{sT}, 4"); E("s_cbranch_scc0 L_k1")
    E(f"s_cmp_lg_u32 s{sIni}, 0"); E("s_cbranch_scc0 L_k1")
    E("s_mov_b64 exec, 1"); E(f"v_mov_b32 v{vFl}, {FLAG}")
    E(f"buffer_atomic_or v{vFl}, off, {srd(sDBG)}, s{sDoff}")
    E("s_mov_b64 exec, -1"); E("s_branch L_k1")
    E.label("L_h0")
    E("s_mov_b64 exec, 1"); E(f"v_mov_b32 v{vFl}, 1")
    E(f"buffer_atomic_add v{vFl}, off, {srd(sDBG)}, s{sDoff} sc0")
    E("s_mov_b64 exec, -1"); E("s_branch L_k1")
    E.label("L_hk1")
    E(f"v_readfirstlane_b32 s{sT}, v{vFl}"); E("s_nop 3")
    E(f"s_cmp_eq_u32 s{sT}, 0"); E("s_cbranch_scc0 L_k1")
    E(f"s_mov_b32 s{sIni}, 1")
    E("s_mov_b64 exec, 1")
    E(f"buffer_atomic_swap v{vFl}, off, {srd(sWS)}, s{sCoff} sc0")
    E("s_mov_b64 exec, -1"); E("s_branch L_k1")

    L = [HDR.rstrip(), f"; @launch grid=(256,1,1) block=(256,1,1) lds={LDS_TOTAL}", '.amdgcn_target "amdgcn-amd-amdhsa--gfx950"',
         ".text", f".globl {NAME}_kernel", ".p2align 8", f".type {NAME}_kernel,@function", f"{NAME}_kernel:"]
    L += pro.text() + kbody + vbody + hbody + E.text() + ["L_codeend:"]
    L += ['.section .rodata,"a"', ".p2align 6", f".amdhsa_kernel {NAME}_kernel",
          "  .amdhsa_next_free_vgpr 512", "  .amdhsa_next_free_sgpr 102", "  .amdhsa_accum_offset 256",
          "  .amdhsa_group_segment_fixed_size 0", "  .amdhsa_kernarg_size 80", "  .amdhsa_user_sgpr_count 2",
          "  .amdhsa_user_sgpr_kernarg_segment_ptr 1", "  .amdhsa_system_sgpr_workgroup_id_x 1",
          "  .amdhsa_float_denorm_mode_32 3", "  .amdhsa_float_denorm_mode_16_64 3", ".end_amdhsa_kernel"]
    open(path, "w").write("\n".join(L) + "\n")

if __name__ == "__main__":
    import argparse
    ap = argparse.ArgumentParser()
    ap.add_argument("out")
    ap.add_argument("--AL", type=int, default=10); ap.add_argument("--np", type=int, default=14)
    ap.add_argument("--stamps", action="store_true"); ap.add_argument("--it", action="store_true")
    ap.add_argument("--cs", type=int, default=8); ap.add_argument("--nt", default="nt"); ap.add_argument("--q", default="")
    ap.add_argument("--smf", default="nt"); ap.add_argument("--mix", type=lambda x: int(x, 0), default=0x11111111)
    ap.add_argument("--nK1", type=int, default=9); ap.add_argument("--vtail", type=int, default=250); ap.add_argument("--htail", type=int, default=200)
    ap.add_argument("--T", type=float, default=8.0); ap.add_argument("--TM", type=float, default=32.0)
    ap.add_argument("--outf", default="sc0 sc1"); ap.add_argument("--pubf", default="sc0 sc1")
    ap.add_argument("--cap", default="56"); ap.add_argument("--capH", default="c"); ap.add_argument("--capP", default="8")
    ap.add_argument("--diagx", type=int, default=0)
    ap.add_argument("--pfcode", type=int, default=4); ap.add_argument("--pftlb", type=int, default=0)
    ap.add_argument("--prost", action="store_true"); ap.add_argument("--pfearly", action="store_true")
    ap.add_argument("--noctg", action="store_true"); ap.add_argument("--capV", default=None)
    ap.add_argument("--nH1", type=int, default=8); ap.add_argument("--hs", type=int, default=2)
    ap.add_argument("--late", action="store_true"); ap.add_argument("--flagf", default="")
    ap.add_argument("--ct", type=float, default=0.6)
    ap.add_argument("--hv", type=int, default=4); ap.add_argument("--hk", type=float, default=0.8)
    ap.add_argument("--po", default="K6 T Q C A")
    ap.add_argument("--qlate", type=int, default=15)
    a = ap.parse_args()
    gen(a.out, AL=a.AL, npf=a.np, stamps=a.stamps, cstride=a.cs, nt=a.nt, qflag=a.q, smf=a.smf, mix=a.mix, nK1=a.nK1, vtail=a.vtail,
        T=a.T, itst=a.it, outf=a.outf, htail=a.htail, pubf=a.pubf, TM=a.TM, cap=a.cap, capH=a.capH, capP=a.capP, diagx=a.diagx, pfcode=a.pfcode, pftlb=a.pftlb, prost=a.prost, pfearly=True, ctg=not a.noctg, capV=a.capV, nH1=a.nH1, hspread=a.hs, early=not a.late, flagf=a.flagf, ctspan=a.ct, hv=a.hv, hk=a.hk, porder=a.po, qlate=a.qlate)
```

```python
import sys, struct, math
NAME = "standalone__kv_cache_quant_int4_int2_kv_with_per_channel_or_per_token_scales__sampling"
HDR = open("cdna_kernels/" + NAME + ".s.ref").read().split("; Override launch")[0]

def f32bits(x):
    return struct.unpack("<I", struct.pack("<f", x))[0]

def cost_of(s):
    op = s.split()[0]
    if op.startswith("v_mfma"): return 16
    if op in ("v_exp_f32", "v_rcp_f32"): return 8
    if op.startswith("v_"): return 4
    if op == "ds_write_b128": return 26
    if op == "ds_write_b64": return 10
    if op.startswith("ds_"): return 2
    if op == "s_barrier": return 40
    if op == "s_nop": return 4 * (int(s.split()[1]) + 1)
    return 2

class Stream:
    def __init__(self): self.I = []; self.lock = False
    def __call__(self, s, cost=None):
        self.I.append(dict(t="    " + s, c=(cost_of(s) if cost is None else cost), ins=not self.lock))
    def label(self, s): self.I.append(dict(t=s + ":", c=0, ins=not self.lock))
    def c(self, s): self.I.append(dict(t="    ; " + s, c=0, ins=not self.lock))
    def mark(self, kind, k=None): self.I.append(dict(mark=kind, k=k, c=0, ins=not self.lock))
    def text(self): return [x["t"] for x in self.I]

def gen(path, AL=8, npf=12, stamps=False, nt="sc0 sc1 nt", smf="nt", qflag="", cstride=8, T=8.0, PF=8,
        mix=0x11111111, nK1=9, vtail=250, itst=False, outf="", htail=200, pubf="sc0 sc1", TM=32.0, cap=None, capH=None, capP=None, diagx=0, pfcode=0, pftlb=0, prost=False, pfearly=False, ctg=True, capV=None, nH1=7, hspread=8, early=True, flagf='', ctspan=0.6, hv=1, hk=1.0, porder='C A T Q K4', qlate=15, dbgspan=False):
    if capV is None: capV = cap
    if capH is None: capH = cap
    if capP is None: capP = cap
    capn = lambda c, k: int(c[k % len(c)], 16) - 1
    assert 8 <= npf <= 15
    NH = 2 * (64 - 4 * npf)
    KROW = 288; JS = 576; OS = 2320
    TABW = 18 * 256; DSLOT = 16 * 256
    LDS_MB = 0; LDS_SC = 256; LDS_TAB = 1536; LDS_K = LDS_TAB + 4 * TABW; LDS_V = LDS_K + 128 * KROW
    LDS_TOTAL = LDS_V + 16 * OS
    assert LDS_K % 256 == 0 and LDS_K + 128 * KROW < 65536 and LDS_TAB % 512 == 0 and TABW % 512 == 0
    WS_SLOT = 1 << 20; WS_CTR = 16 << 20; FLAG = 0x100
    SPIN = 1 << 21
    vLane, vOff, vKW, vKR, vSW, vSR, vVW, vVR, vTK, vTV, vL4, vLin = range(12)
    vM, vL, vCk, vFl = 12, 13, 14, 15
    vMb, vMx, vT2 = 16, 17, 18
    vKS, vKC = 20, 24; vKSr, vKZr, vVSr, vVZr = 28, 30, 32, 33
    vTmp = 34
    vAt = 38; vMO = 39
    vKP = 40; vVP = 48; vO = 64; vS = 96; vRing = 128; vQ = 192; vSt = 208; NST = 12
    vSc = vS + 16
    sX, sY, sSM, sQ, sDBG, sWS, sOUT = 8, 12, 16, 20, 24, 28, 32
    sKb, sVb = 36, 38
    sPair, sSplit, sI, sJ, sG, sT, sT2, sC, sThr, sDoff, sCoff, sIni, sKsl, sVsl, sEnd, sWb, sH0, sPend, sSpin, sW0 = range(40, 60)
    sO = 60
    sPo = 76
    sCw = 72
    sWave = 3
    srd = lambda r: f"s[{r}:{r+3}]"
    vr = lambda r, n: f"v[{r}:{r+n-1}]"
    def item_text(k, fl=None):
        so, imm = (sO + k, 0) if k < 4 else (sO + 3 + k // 4, (k % 4) * 1024)
        return f"buffer_load_dwordx4 {vr(vRing+4*k,4)}, v{vOff}, {srd(sX if k < 8 else sY)}, s{so} offen offset:{imm} {nt if fl is None else fl}"
    def set_offs(A, half=False):
        for i, d in enumerate((1024, 2048, 3072, 4096) + ((0, 4096) if half else (16384, 20480))): A(f"s_add_u32 s{sO+1+i}, s{sO}, {d}")
    SB = 20 if ctg else 16
    def set_static(A, sidx):
        if ctg: A(f"s_add_u32 s{sO}, s{sO}, 0x10000")
        else: A(f"s_add_u32 s{sO}, s{sO}, 0x40000")
        set_offs(A)
    def set_base(A, b, b2=None):
        if b2 is None: b2 = b
        A(f"s_mov_b64 s[{sX}:{sX+1}], s[{b}:{b+1}]"); A(f"s_mov_b64 s[{sY}:{sY+1}], s[{b2}:{b2+1}]")
    def set_half(A):
        A(f"s_and_b32 s{sT}, s{sG}, 1")
        if ctg:
            A(f"s_bfe_u32 s{sT2}, s{sG}, 0x20001"); A(f"s_lshl_b32 s{sT2}, s{sT2}, 4"); A(f"s_lshr_b32 s{sG}, s{sG}, 3")
            A(f"s_add_u32 s{sG}, s{sG}, s{sT2}"); A(f"s_add_u32 s{sG}, s{sG}, {npf}")
        else:
            A(f"s_lshr_b32 s{sG}, s{sG}, 1"); A(f"s_add_u32 s{sG}, s{sG}, {4*npf}")
        A(f"s_lshl_b32 s{sO}, s{sG}, 16"); A(f"s_lshl_b32 s{sT2}, s{sT}, 14"); A(f"s_add_u32 s{sO}, s{sO}, s{sT2}")
        A(f"s_xor_b32 s{sKsl}, s{sKsl}, 256"); A("s_xor_b32 m0, m0, 256")
        A(f"s_lshl_b32 s{sT}, s{sT}, 6"); A(f"s_add_u32 s{sVsl}, s{sKsl}, s{sT}")
        set_offs(A, True)
        A(f"s_lshl_b32 s{sT}, s{sG}, 8")
        A(f"buffer_load_dword v{vL4}, {srd(sSM)}, s{sT} offen {smf} lds")

    A = Stream()
    A("s_cmp_ge_u32 s2, 256"); A("s_cbranch_scc1 L_end")
    if stamps or diagx or dbgspan: A("s_memrealtime s[84:85]")
    A("s_load_dwordx16 s[68:83], s[0:1], 0")
    A("s_load_dwordx4 s[4:7], s[0:1], 64")
    def pf_code():
        A.c("pull this kernel's code into L2 with strided loads (speed only; the values are unused)")
        A("s_getpc_b64 s[92:93]"); A("s_and_b32 s92, s92, 0xffffff00"); A("s_mov_b32 s94, L_codeend-L_pf"); A("s_mov_b32 s95, 0x20000")
        A.label("L_pf")
        if pfearly: A(f"v_lshlrev_b32 v{vTmp}, 7, v0")
        else: A(f"v_lshlrev_b32 v{vTmp}, 7, v{vLane}"); A(f"s_lshl_b32 s{sT}, s{sWave}, 13"); A(f"v_add_u32 v{vTmp}, s{sT}, v{vTmp}")
        A(f"s_lshr_b32 s{sT2}, s2, 3"); A(f"s_and_b32 s{sT2}, s{sT2}, {pfcode-1}"); A(f"s_cselect_b32 s94, 0, s94")
        A(f"buffer_load_dword v{vTmp}, v{vTmp}, s[92:95], 0 offen")
    if pfcode and pfearly: pf_code()
    A("v_lshrrev_b32 v1, 6, v0")
    A(f"v_and_b32 v{vLane}, 63, v0")
    A(f"v_readfirstlane_b32 s{sWave}, v1")
    if mix:
        A.c("which (batch, kv head) pair / split this workgroup takes: a bijection of the id (placement affects speed only)")
        A(f"s_lshr_b32 s{sT}, s2, 3"); A(f"s_and_b32 s{sT}, s{sT}, 7"); A(f"s_lshl_b32 s{sT}, s{sT}, 2")
        A(f"s_lshr_b32 s{sT}, {hex(mix)}, s{sT}"); A(f"s_and_b32 s{sT}, s{sT}, 3"); A(f"s_and_b32 s{sT}, s{sT}, s2")
        A(f"s_bcnt1_i32_b32 s{sT}, s{sT}"); A(f"s_and_b32 s{sT}, s{sT}, 1"); A(f"s_lshl_b32 s{sT}, s{sT}, 2"); A(f"s_xor_b32 s2, s2, s{sT}")
    A(f"s_lshr_b32 s{sPair}, s2, 2"); A(f"s_and_b32 s{sSplit}, s2, 3")
    c_, h_, m_, g_ = vKS, vKS + 1, vKS + 2, vKS + 3
    t0, t1, vQo, vSo = vKC, vKC + 1, vKC + 2, vKC + 3
    A(f"v_and_b32 v{c_}, 31, v{vLane}"); A(f"v_lshrrev_b32 v{h_}, 5, v{vLane}")
    A(f"v_and_b32 v{m_}, 15, v{vLane}"); A(f"v_lshrrev_b32 v{g_}, 4, v{vLane}")
    A(f"v_lshlrev_b32 v{vLin}, 4, v{vLane}"); A(f"v_lshlrev_b32 v{vL4}, 2, v{vLane}")
    A(f"s_and_b32 s{sT}, s{sWave}, 1"); A(f"s_lshl_b32 s{sT}, s{sT}, 13")
    A(f"s_lshr_b32 s{sT2}, s{sWave}, 1"); A(f"s_lshl_b32 s{sT2}, s{sT2}, 15"); A(f"s_add_u32 s{sWb}, s{sT}, s{sT2}")
    A(f"v_add_u32 v{vOff}, s{sWb}, v{vLin}")
    A(f"v_lshlrev_b32 v{vSo}, 10, v{g_}"); A(f"v_lshl_add_u32 v{vSo}, v{m_}, 4, v{vSo}")
    A(f"v_lshlrev_b32 v{vQo}, 8, v{m_}"); A(f"v_lshl_add_u32 v{vQo}, v{g_}, 4, v{vQo}")
    for i in range(4): A(f"v_mov_b32 v{vVP+i}, -1")
    def own_slot(A):
        A(f"s_lshl_b32 s{sT}, s{sPair}, 2"); A(f"s_add_u32 s{sT}, s{sT}, s{sWave}"); A(f"s_lshl_b32 s{sT}, s{sT}, 2"); A(f"s_add_u32 s{sT}, s{sT}, s{sSplit}")
        A(f"s_lshl_b32 s{sT}, s{sT}, 13"); A(f"s_add_u32 s{sT}, s{sT}, {WS_SLOT}"); A(f"s_add_u32 s{sT2}, s{sT}, 4096")
    A(f"s_mul_i32 s{sG}, s{sWave}, {TABW}"); A(f"s_add_u32 s{sG}, s{sG}, {LDS_TAB}"); A(f"s_mov_b32 m0, s{sG}")
    own_slot(A)
    for r in (sX, sY): A(f"s_mov_b32 s{r+2}, 0x400000"); A(f"s_mov_b32 s{r+3}, 0x20000")
    A(f"s_mov_b32 s{sWS+2}, 0x40000000"); A(f"s_mov_b32 s{sWS+3}, 0x20000")
    A(f"s_lshl_b32 s{sT}, s{sPair}, 22")
    A(f"s_mov_b32 s{sDBG+2}, 256"); A(f"s_mov_b32 s{sDBG+3}, 0x20000"); A(f"s_lshl_b32 s{sDoff}, s{sPair}, 2"); A(f"v_mov_b32 v{vFl}, 1")
    A(f"s_lshl_b32 s{sO}, s{sSplit}, {SB}"); set_offs(A)
    for r in (sSM, sQ, sOUT): A(f"s_mov_b32 s{r+2}, 0x4000"); A(f"s_mov_b32 s{r+3}, 0x20000")
    A(f"s_lshl_b32 s{sPend}, s{sPair}, 14")
    A("s_waitcnt lgkmcnt(0)")
    def mk(r, p): A(f"s_add_u32 s{r}, s{p}, s{sPend}"); A(f"s_addc_u32 s{r+1}, s{p+1}, 0")
    A(f"s_add_u32 s{sKb}, s70, s{sT}"); A(f"s_addc_u32 s{sKb+1}, s71, 0")
    set_base(A, sKb)
    A(f"s_add_u32 s{sVb}, s72, s{sT}"); A(f"s_addc_u32 s{sVb+1}, s73, 0")
    kq = [0]; seq = []
    def pK(n):
        for _ in range(n):
            if prost and kq[0] == 0: A("s_memrealtime s[88:89]")
            A(item_text(kq[0])); kq[0] += 1; seq.append("K")
    def pC():
        A.c("mark the header of this wave's hand-off slot empty")
        A(f"s_mov_b64 s[{sWS}:{sWS+1}], s[6:7]")
        A(f"buffer_store_dwordx4 {vr(vVP,4)}, v{vLin}, {srd(sWS)}, s{sT2} offen sc0 sc1"); seq.append("c")
    def pA():
        A.c("wave 0 asks d_debug whether this is the pair's first workgroup to start")
        A(f"s_mov_b64 s[{sDBG}:{sDBG+1}], s[4:5]")
        A(f"s_cmp_eq_u32 s{sWave}, 0"); A("s_cbranch_scc0 L_noel")
        A("s_mov_b64 exec, 1")
        A(f"buffer_atomic_add v{vFl}, off, {srd(sDBG)}, s{sDoff} sc0")
        A("s_mov_b64 exec, -1")
        A.label("L_noel"); seq.append("a")
    def pT():
        A.c("wave w streams scale/zero array w (ks, kz, vs, vz) into the LDS table")
        A(f"s_cmp_eq_u32 s{sWave}, 1"); A(f"s_cselect_b64 s[{sSM}:{sSM+1}], s[76:77], s[74:75]")
        A(f"s_cmp_eq_u32 s{sWave}, 2"); A(f"s_cselect_b64 s[{sSM}:{sSM+1}], s[78:79], s[{sSM}:{sSM+1}]")
        A(f"s_cmp_eq_u32 s{sWave}, 3"); A(f"s_cselect_b64 s[{sSM}:{sSM+1}], s[80:81], s[{sSM}:{sSM+1}]")
        mk(sSM, sSM)
        A(f"s_lshl_b32 s{sT}, s{sSplit}, {SB-8}")
        nT = (npf + 3) // 4
        for u in range(nT):
            rows = min(4, npf - 4 * u)
            if rows < 4: A(f"s_bfm_b64 exec, {16*rows}, 0")
            A(f"buffer_load_dwordx4 v{vLin if ctg else vSo}, {srd(sSM)}, s{sT} offen {smf} lds"); seq.append("T")
            if rows < 4: A("s_mov_b64 exec, -1")
            if u + 1 < nT: A(f"s_add_u32 m0, m0, 1024"); A(f"s_add_u32 s{sT}, s{sT}, {1024 if ctg else 4096}")
        A(f"s_add_u32 m0, s{sG}, {DSLOT}")
    def pQ():
        mk(sQ, 68)
        A(f"s_lshl_b32 s{sT}, s{sWave}, 12")
        for s4 in range(4): A(f"buffer_load_dwordx4 {vr(vQ+4*s4,4)}, v{vQo}, {srd(sQ)}, s{sT} offen offset:{s4*64} {qflag}"); seq.append("Q")
    def pQc(first):
        if first: mk(sQ, 68)
        A(f"s_lshl_b32 s{sT}, s{sWave}, 12")
        A(f"s_cmp_eq_u32 s{sSplit}, 0"); A(f"s_cbranch_scc{0 if first else 1} L_q{int(first)}")
        for s4 in range(4): A(f"buffer_load_dwordx4 {vr(vQ+4*s4,4)}, v{vQo}, {srd(sQ)}, s{sT} offen offset:{s4*64} {qflag}")
        A.label(f"L_q{int(first)}")
    for tok in porder.split():
        if tok == "E": pQc(True)
        elif tok[0] == "K": pK(int(tok[1:]))
        else:
            n0 = len(A.I); dict(C=pC, A=pA, T=pT, Q=pQ)[tok.upper()]()
            if tok.islower():
                A.I[n0:] = [x for x in A.I[n0:] if "buffer_" not in x["t"]]
                if tok == "q": seq[:] = [x for x in seq if x != "Q"]
    npre = kq[0]; assert npre < 16
    mk(sOUT, 82)
    A(f"v_lshlrev_b32 v{vTK}, 3, v{c_}")
    A(f"v_lshrrev_b32 v{vTV}, 4, v{c_}"); A(f"v_lshlrev_b32 v{vTV}, 5, v{vTV}")
    A(f"v_and_b32 v{t0}, 15, v{c_}"); A(f"v_add_lshl_u32 v{vTV}, v{vTV}, v{t0}, 1")
    A(f"s_lshr_b32 s{sT}, s{sWb}, 8"); A(f"v_add_u32 v{vTV}, s{sT}, v{vTV}")
    A(f"s_lshr_b32 s{sT}, s{sWave}, 1"); A(f"s_and_b32 s{sT2}, s{sWave}, 1")
    A(f"s_mul_i32 s{sT}, s{sT}, {32*KROW}"); A(f"s_mul_i32 s{sT2}, s{sT2}, {8*KROW}"); A(f"s_add_u32 s{sT}, s{sT}, s{sT2}")
    A(f"v_mul_u32_u24 v{vKW}, {4*KROW}, v{h_}"); A(f"v_lshl_add_u32 v{vKW}, v{c_}, 3, v{vKW}"); A(f"v_add_u32 v{vKW}, s{sT}, v{vKW}")
    A(f"v_mul_u32_u24 v{vKR}, {KROW}, v{m_}"); A(f"v_lshl_add_u32 v{vKR}, v{g_}, 4, v{vKR}")
    A(f"s_mul_i32 s{sT}, s{sWave}, {2*OS}"); A(f"s_add_u32 s{sT}, s{sT}, {LDS_V}")
    A(f"v_mul_u32_u24 v{vVW}, {OS}, v{h_}"); A(f"v_lshl_add_u32 v{vVW}, v{c_}, 4, v{vVW}"); A(f"v_add_u32 v{vVW}, s{sT}, v{vVW}")
    A(f"v_mul_u32_u24 v{vVR}, {OS}, v{g_}"); A(f"v_and_b32 v{t0}, 3, v{m_}"); A(f"v_mul_u32_u24 v{t0}, {JS}, v{t0}")
    A(f"v_lshrrev_b32 v{t1}, 2, v{m_}"); A(f"v_lshlrev_b32 v{t1}, 5, v{t1}")
    A(f"v_add3_u32 v{vVR}, v{vVR}, v{t0}, v{t1}"); A(f"v_add_u32 v{vVR}, {LDS_V}, v{vVR}")
    A(f"s_lshl_b32 s{sT}, s{sWave}, 8"); A(f"s_add_u32 s{sT2}, s{sT}, {LDS_SC}")
    A(f"v_and_b32 v{vSW}, 1, v{c_}"); A(f"v_lshlrev_b32 v{vSW}, 7, v{vSW}")
    A(f"v_lshrrev_b32 v{t0}, 1, v{c_}"); A(f"v_lshl_add_u32 v{vSW}, v{t0}, 3, v{vSW}"); A(f"v_add_u32 v{vSW}, s{sT2}, v{vSW}")
    A(f"v_lshlrev_b32 v{vSR}, 7, v{h_}"); A(f"v_add_u32 v{vSR}, s{sT2}, v{vSR}")
    A(f"v_mov_b32 v{vMb}, {LDS_MB}")
    A(f"s_lshl_b32 s{sCoff}, s{sPair}, {cstride}"); A(f"s_add_u32 s{sCoff}, s{sCoff}, {WS_CTR}")
    A(f"s_mov_b32 s{sC}, {hex(f32bits(math.log2(math.e) / math.sqrt(128.0)))}")
    A(f"s_mov_b32 s{sThr}, {hex(f32bits(T))}")
    for r in (sIni, sI, sJ, sKsl, sVsl, sEnd): A(f"s_mov_b32 s{r}, 0")
    A(f"s_mov_b32 s{sSpin}, {SPIN}")
    A(f"s_cmp_eq_u32 s{sWave}, 0"); A(f"s_cselect_b32 s{sW0}, 1, 0")
    for i, w in enumerate((0x9e37c2b3, 0x85eb6d2f, 0x27d4f1a9, 0x165753c5)): A(f"s_mov_b32 s{sCw+i}, {hex(w)}")
    assert hspread + 4 < npf
    if early: A(f"s_mov_b32 s{sH0}, -1")
    else: A(f"s_and_b32 s{sH0}, s{sPair}, {hspread-1}"); A(f"s_add_u32 s{sH0}, s{sH0}, 1")
    for i in range(32): A(f"v_mov_b32 v{vO+i}, 0")
    A(f"v_mov_b32 v{vM}, 0xf149f2ca"); A(f"v_mov_b32 v{vMO}, 0xf149f2ca"); A(f"v_mov_b32 v{vL}, 0"); A(f"v_mov_b32 v{vAt}, 0")
    def ktab_reads(S):
        S(f"v_add_u32 v{vTmp+3}, s{sKsl}, v{vTK}")
        S(f"ds_read_b64 {vr(vKSr,2)}, v{vTmp+3} offset:{LDS_TAB}"); S(f"ds_read_b64 {vr(vKZr,2)}, v{vTmp+3} offset:{LDS_TAB+TABW}")
    def vtab_reads(S):
        S(f"v_xor_b32 v{vTmp+3}, s{sVsl}, v{vTV}")
        S(f"ds_read_u16 v{vVSr}, v{vTmp+3} offset:{LDS_TAB+2*TABW}"); S(f"ds_read_u16 v{vVZr}, v{vTmp+3} offset:{LDS_TAB+3*TABW}")
    def prep_v(S):
        S(f"v_lshlrev_b32 v{vT2}, 16, v{vVSr}"); S(f"v_lshlrev_b32 v{vT2+1}, 16, v{vVZr}")
        S(f"v_mul_f32 v{vT2+1}, -v{vT2+1}, v{vT2}"); S(f"v_mul_f32 v{vT2}, 0x4b800000, v{vT2}")
        S(f"ds_write_b64 v{vSW}, {vr(vT2,2)}")
    def prep_k(S):
        S.c("K: S = ks*2^24, C = -kz*ks per channel (the int code is read as an f16 subnormal, code*2^-24)")
        for p in range(2):
            S(f"v_lshlrev_b32 v{vKS+2*p}, 16, v{vKSr+p}"); S(f"v_and_b32 v{vKS+2*p+1}, 0xffff0000, v{vKSr+p}")
            S(f"v_lshlrev_b32 v{vKC+2*p}, 16, v{vKZr+p}"); S(f"v_and_b32 v{vKC+2*p+1}, 0xffff0000, v{vKZr+p}")
        for j in range(4): S(f"v_mul_f32 v{vKC+j}, -v{vKC+j}, v{vKS+j}")
        for j in range(4): S(f"v_mul_f32 v{vKS+j}, 0x4b800000, v{vKS+j}")
    def sc_lo_reads(S):
        for i in range(4): S(f"ds_read_b128 {vr(vSc+4*i,4)}, v{vSR} offset:{i*16}")
    for k in range(npre, 16):
        if "E" in porder and k == qlate: pQc(False)
        A(f"s_waitcnt vmcnt({capn(capP, k)})"); A(item_text(k)); seq.append("K")
    lastneed = max(i for i, x in enumerate(seq) if x in "Ta")
    A(f"s_waitcnt vmcnt({sum(1 for x in seq[lastneed+1:] if x in 'KQ')})"); A("s_barrier")
    if prost: A("s_memrealtime s[90:91]")
    ktab_reads(A); vtab_reads(A)
    A("s_waitcnt lgkmcnt(0)")
    prep_v(A)
    pro = A

    def itstamp(S):
        if stamps and itst:
            S("s_memrealtime s[96:97]"); S("s_mov_b32 s98, m0"); S(f"s_add_u32 m0, s{sI}, s{sJ}"); S(f"v_accvgpr_read_b32 v{vTmp+3}, a255"); S("s_waitcnt lgkmcnt(0)")
            S(f"v_writelane_b32 v{vTmp+3}, s96, m0"); S("s_mov_b32 m0, s98"); S(f"v_accvgpr_write_b32 a255, v{vTmp+3}")

    def finish(B, targets, name, atomic=False):
        I = B.I
        pos = lambda kind, k=None: next(i for i, x in enumerate(I) if x.get("mark") == kind and x.get("k") == k)
        cum = []; a = 0
        for x in I: cum.append(a); a += x["c"]
        tg = targets(lambda kind, k=None: cum[pos(kind, k)], a)
        place = []; prev = pos("ready") + 1
        for k in range(16):
            p = next((i for i in range(len(I)) if cum[i] >= tg[k]), len(I) - 1)
            p = max(p, prev, pos("free", k) + 1)
            while not I[p]["ins"]: p += 1
            assert p <= pos("allissued"), (name, k)
            place.append(p); prev = p
        at = None
        if atomic:
            nb = sum(1 for p in place if p <= pos("postwait")); at = nb - AL; assert at >= 0
        out = []; ei = 0; info = []
        for i, x in enumerate(I):
            while ei < 16 and place[ei] == i:
                if ei == at:
                    out += [f"    s_cmp_lg_u32 s{sW0}, 0", "    s_cbranch_scc0 L_noat", "    s_mov_b64 exec, 1", f"    v_mov_b32 v{vAt}, 1",
                            f"    buffer_atomic_add v{vAt}, off, {srd(sWS)}, s{sCoff} sc0", "    s_mov_b64 exec, -1", "L_noat:"]
                cc = capH if name == "H" else (capV if name == "V" else cap)
                if cc: out.append(f"    s_waitcnt vmcnt({capn(cc, ei)})")
                out.append("    " + item_text(ei)); ei += 1
            if "mark" in x:
                if x["mark"] == "wait":
                    n = 15 - x["k"] + ei; info.append(n); out.append(f"    s_waitcnt vmcnt({n})")
                elif x["mark"] == "smallwait": out.append(f"    s_waitcnt vmcnt({ei})")
                elif x["mark"] == "postwait": out.append(f"    s_waitcnt vmcnt({AL})")
            else: out.append(x["t"])
        assert ei == 16
        gaps = [cum[place[k+1]] - cum[place[k]] for k in range(15)]
        print(name, "cost", a, "vmcnt", info, "first", cum[place[0]], "gaps", gaps, "last->end", a - cum[place[15]], "atomic before", at, file=sys.stderr)
        return out

    def deq(S, r, s, c): S(f"v_fma_mix_f32 v{r}, v{r}, v{s}, v{c} op_sel_hi:[1,0,0]")
    def kitems(B, n):
        for k in range(n):
            r = vRing + 4 * k; t = vKP + 2 * (k % 4)
            B.mark("wait", k)
            for j in range(4): deq(B, r + j, vKS + j, vKC + j)
            B(f"v_cvt_pk_bf16_f32 v{t}, v{r}, v{r+1}"); B(f"v_cvt_pk_bf16_f32 v{t+1}, v{r+2}, v{r+3}")
            B.mark("free", k)
            B(f"ds_write_b64 v{vKW}, {vr(t,2)} offset:{LDS_K + ((k//8)*64 + ((k//4)%2)*16 + k%4)*KROW}")
        B.mark("kdone")
    def qk(B, nblk, after_first=None):
        B.c("S^T = K Q^T")
        order = [(2 * bp + u, s4) for bp in range(nblk // 2) for s4 in range(4) for u in range(2)]
        n = len(order)
        def kread(i):
            b, s4 = order[i]
            B(f"ds_read_b128 {vr(vSt+4*(i%NST),4)}, v{vKR} offset:{LDS_K + b*16*KROW + s4*64}")
        for i in range(PF): kread(i)
        for i in range(n):
            b, s4 = order[i]
            B(f"s_waitcnt lgkmcnt({min(PF-1, n-1-i)})")
            cc = "0" if s4 == 0 else vr(vS+4*b, 4)
            B(f"v_mfma_f32_16x16x32_bf16 {vr(vS+4*b,4)}, {vr(vSt+4*(i%NST),4)}, {vr(vQ+4*s4,4)}, {cc}")
            if i + PF < n: kread(i + PF)
            if i == 0 and after_first: after_first()
    def softmax(B, n, tag):
        B(f"v_max3_f32 v{vMx}, v{vS}, v{vS+1}, v{vS+2}"); B(f"v_max3_f32 v{vTmp+1}, v{vS+3}, v{vS+4}, v{vS+5}")
        for i in range(6, n - 2, 4):
            B(f"v_max3_f32 v{vMx}, v{vMx}, v{vS+i}, v{vS+i+1}"); B(f"v_max3_f32 v{vTmp+1}, v{vTmp+1}, v{vS+i+2}, v{vS+i+3}")
        B(f"v_max3_f32 v{vMx}, v{vMx}, v{vS+n-2}, v{vS+n-1}"); B(f"v_max_f32 v{vMx}, v{vMx}, v{vTmp+1}")
        B(f"v_fma_f32 v{vTmp+1}, v{vMx}, s{sC}, -v{vM}")
        B(f"v_cmp_lt_f32 vcc, s{sThr}, v{vTmp+1}")
        B.lock = True
        B(f"s_cbranch_vccnz L_rescale{tag}")
        B.label(f"L_rescaled{tag}")
        B.lock = False
        for half in range(n // 16):
            b = vS + 16 * half
            for i in range(16): B(f"v_fma_f32 v{b+i}, v{b+i}, s{sC}, -v{vM}")
            for i in range(16): B(f"v_exp_f32 v{b+i}, v{b+i}")
            B(f"v_add_f32 v{vTmp+1}, v{b}, v{b+1}"); B(f"v_add_f32 v{vTmp+2}, v{b+2}, v{b+3}")
            for i in range(4, 16, 2):
                B(f"v_add_f32 v{vTmp+1}, v{vTmp+1}, v{b+i}"); B(f"v_add_f32 v{vTmp+2}, v{vTmp+2}, v{b+i+1}")
            B(f"v_add_f32 v{vL}, v{vL}, v{vTmp+1}"); B(f"v_add_f32 v{vL}, v{vL}, v{vTmp+2}")
            for i in range(8): B(f"v_cvt_pk_bf16_f32 v{vS+8*half+i}, v{b+2*i}, v{b+2*i+1}")
    def vphase(B, k0, s, refill_hi):
        for n8 in range(8):
            k = k0 + n8; r = vRing + 4 * k; sc = vSc + 2 * n8
            B.mark("wait", k)
            if refill_hi and n8 == 0: B("s_waitcnt lgkmcnt(0)")
            for j in range(4): deq(B, r + j, sc, sc + 1)
            if n8 % 2 == 1:
                if refill_hi: B(f"ds_read_b128 {vr(vSc+4*(n8//2),4)}, v{vSR} offset:{64 + (n8//2)*16}")
                for j in range(4): B(f"v_cvt_pk_bf16_f32 v{vVP+4*j+n8//2}, v{r-4+j}, v{r+j}")
                B.mark("free", k - 1); B.mark("free", k)
        for j in range(4): B(f"ds_write_b128 v{vVW}, {vr(vVP+4*j,4)} offset:{s*8*OS + j*JS}")
    def pv(B, s, extra, nextra):
        lst = [(2 * s + kk, db) for kk in range(2) for db in range(8)]
        def vread(i):
            ks, db = lst[i]
            B(f"ds_read_b128 {vr(vSt+4*(i%NST),4)}, v{vVR} offset:{ks*4*OS + (db//2)*128 + (db%2)*16}")
        for i in range(PF): vread(i)
        for i in range(16):
            ks, db = lst[i]
            younger = min(PF - 1, 15 - i)
            if i + PF >= 17: younger += nextra
            assert younger <= 15
            B(f"s_waitcnt lgkmcnt({younger})")
            B(f"v_mfma_f32_16x16x32_bf16 {vr(vO+4*db,4)}, {vr(vSt+4*(i%NST),4)}, {vr(vS+4*ks,4)}, {vr(vO+4*db,4)}")
            if i + PF < 16: vread(i + PF)
            if i + PF == 16: extra()

    B = Stream()
    B.lock = True
    B.label("L_K")
    itstamp(B)
    B(f"s_add_u32 s{sI}, s{sI}, 1")
    B(f"s_cmp_lt_u32 s{sI}, {npf}"); B("s_cbranch_scc0 L_k2v")
    set_static(B, sI); B(f"s_lshl_b32 s{sKsl}, s{sI}, 8")
    B(f"s_cmp_lg_u32 s{sW0}, 0"); B("s_cbranch_scc1 L_hookK")
    B.label("L_k1")
    B.lock = False
    B.mark("ready")
    prep_k(B)
    kitems(B, 16)
    B("s_waitcnt lgkmcnt(0)"); B("s_barrier")
    qk(B, 8)
    ktab_reads(B)
    B("s_nop 0")
    softmax(B, 32, "K")
    B.mark("allissued")
    B.lock = True
    B("s_branch L_save")
    B.label("L_saved")
    B("s_waitcnt lgkmcnt(0)"); B("s_barrier")
    B(f"s_cmp_lt_u32 s{sI}, {npf}"); B("s_cbranch_scc1 L_K")
    sc_lo_reads(B)
    B.lock = False
    def ktg(P, tot):
        c0 = P("wait", 0); c1 = P("kdone"); c2 = P("allissued")
        return [c0 + (c1 - c0) * (k + 0.5) / nK1 for k in range(nK1)] + [c1 + (c2 - c1) * (k + 0.5) / (16 - nK1) for k in range(16 - nK1)]
    kbody = finish(B, ktg, "K")

    B = Stream()
    B.lock = True
    B.label("L_V")
    itstamp(B)
    B(f"s_add_u32 s{sJ}, s{sJ}, 1")
    B(f"s_cmp_lt_u32 s{sJ}, {npf}"); B("s_cbranch_scc0 L_v2h")
    set_static(B, sJ); B(f"s_lshl_b32 s{sVsl}, s{sJ}, 8")
    B.label("L_v0")
    B("s_branch L_restore")
    B.label("L_v1")
    B.lock = False
    B.mark("ready")
    vphase(B, 0, 0, True)
    vtab_reads(B)
    B("s_waitcnt lgkmcnt(0)"); B("s_barrier")
    prep_v(B)
    pv(B, 0, lambda: None, 0)
    vphase(B, 8, 1, False)
    B.mark("vdone")
    B.mark("smallwait")
    B("s_waitcnt lgkmcnt(0)"); B("s_barrier")
    pv(B, 1, lambda: sc_lo_reads(B), 4)
    B.mark("allissued")
    B.lock = True
    B(f"s_cmp_lt_u32 s{sJ}, {npf}"); B("s_cbranch_scc1 L_V")
    ktab_reads(B); vtab_reads(B)
    B.c("first H unit: all its rows were requested by the last V body, and its successor's ticket too")
    itstamp(B)
    if stamps: B(f"s_add_u32 s{sI}, s{sI}, 1")
    B("s_waitcnt lgkmcnt(0)")
    prep_v(B); sc_lo_reads(B); prep_k(B)
    F_ = Stream(); kitems(F_, 8)
    for x in F_.I:
        if "mark" in x:
            if x["mark"] == "wait": B(f"s_waitcnt vmcnt({15 - x['k']})", 0)
        else: B(x["t"].strip(), 0)
    B(f"s_cmp_lg_u32 s{sW0}, 0"); B("s_cbranch_scc1 L_post"); B("s_branch L_nopost")
    B.lock = False
    def vtg(P, tot):
        c0 = P("wait", 0); c1 = P("vdone") + vtail
        return [c0 + (c1 - c0) * (k + 0.9) / 16 for k in range(16)]
    vbody = finish(B, vtg, "V")

    B = Stream()
    B.label("L_H")
    itstamp(B)
    if stamps: B(f"s_add_u32 s{sI}, s{sI}, 1")
    B.mark("start")
    B("s_waitcnt lgkmcnt(0)")
    prep_v(B)
    sc_lo_reads(B)
    prep_k(B)
    kitems(B, 8)
    B(f"s_cmp_lg_u32 s{sW0}, 0")
    B.lock = True
    B("s_cbranch_scc0 L_nopost")
    B.mark("postwait")
    B.label("L_post")
    B(f"ds_write_b32 v{vL4}, v{vAt} offset:{LDS_MB}")
    B.label("L_nopost")
    B.lock = False
    B("s_waitcnt lgkmcnt(0)"); B("s_barrier")
    B(f"ds_read_b32 v{vTmp}, v{vMb}")
    def decide():
        B.c("next half group from the pair's ticket counter")
        B(f"v_readfirstlane_b32 s{sG}, v{vTmp}")
        B.lock = True
        B("s_nop 3")
        B(f"s_add_u32 s{sG}, s{sG}, 4")
        B(f"s_cmp_lt_u32 s{sG}, {NH}"); B("s_cbranch_scc0 L_nomore")
        set_half(B)
        B.label("L_h1")
        B.mark("decided")
        B.lock = False
    qk(B, 4, decide)
    B("s_nop 5")
    softmax(B, 16, "H")
    B(f"s_cmp_eq_u32 s{sEnd}, 2")
    B.lock = True
    B("s_cbranch_scc1 L_ctail")
    B.mark("vstart")
    B.lock = False
    vphase(B, 8, 0, False)
    B.mark("vdone")
    B.mark("smallwait")
    B("s_waitcnt lgkmcnt(0)"); B("s_barrier")
    def exH():
        ktab_reads(B); vtab_reads(B)
    pv(B, 0, exH, 4)
    B.mark("allissued")
    B.lock = True
    B(f"s_cmp_eq_u32 s{sEnd}, 0"); B("s_cbranch_scc1 L_H")
    B.lock = False
    I = B.I
    pos = lambda kind, k=None: next(i for i, x in enumerate(I) if x.get("mark") == kind and x.get("k") == k)
    cum = []; a_ = 0
    for x in I: cum.append(a_); a_ += x["c"]
    place = []
    for j in range(8):
        if j < hv:
            t = cum[pos("start")] + (cum[pos("wait", 0)] - cum[pos("start")]) * j / hv
            place.append(max(pos("start"), next(i for i in range(len(I)) if cum[i] >= t)))
        else: place.append(pos("wait", j - hv + 1))
    c0 = cum[pos("decided")]; c1 = c0 + (cum[pos("wait", 15)] - c0) * hk
    prev = pos("decided") + 1
    for j in range(8):
        t = c0 + (c1 - c0) * j / (nH1 - 0.5) if j < nH1 else cum[pos("vdone")] + htail * (j - nH1 + 1) / max(1, 8 - nH1)
        p = max(prev, next(i for i in range(len(I)) if cum[i] >= t))
        while not I[p]["ins"]: p += 1
        assert p <= pos("allissued")
        place.append(p); prev = p
    at = (8 - AL) % 16; assert AL <= 16
    hbody = []; ei = 0; info = []; nd = None
    for i, x in enumerate(I):
        while ei < 16 and place[ei] == i:
            if ei == at:
                hbody += [f"    s_cmp_lg_u32 s{sW0}, 0", "    s_cbranch_scc0 L_noat", "    s_mov_b64 exec, 1", f"    v_mov_b32 v{vAt}, 1",
                          f"    buffer_atomic_add v{vAt}, off, {srd(sWS)}, s{sCoff} sc0", "    s_mov_b64 exec, -1", "L_noat:"]
            if capH: hbody.append(f"    s_waitcnt vmcnt({capn(capH, ei)})")
            hbody.append("    " + item_text((ei + 8) % 16)); ei += 1
        if "mark" in x:
            if x["mark"] == "wait":
                k = x["k"]
                if k >= 8: assert ei >= 8
                n = (7 - k + ei) if k < 8 else (15 - k + ei - 8); info.append(n); hbody.append(f"    s_waitcnt vmcnt({n})")
            elif x["mark"] == "smallwait": hbody.append(f"    s_waitcnt vmcnt({ei-8})")
            elif x["mark"] == "postwait": assert ei == 8; hbody.append(f"    s_waitcnt vmcnt({AL})")
            elif x["mark"] == "vstart": nd = ei - 8
        else: hbody.append(x["t"])
    assert ei == 16
    print("H cost", a_, "vmcnt", info, "issue at", [cum[p] for p in place], "nd", nd, file=sys.stderr)

    E = Stream()
    def stampE(i):
        if stamps and not (prost and i in (2, 3)): E(f"s_memrealtime s[{84+2*i}:{85+2*i}]")
    def lsum():
        stampE(1)
        if stamps: E("s_mov_b32 s99, 0")
        E.c("row sum over the four lane groups")
        for sw in ("v_permlane32_swap_b32", "v_permlane16_swap_b32"):
            E(f"v_mov_b32 v{vTmp+1}, v{vL}"); E("s_nop 1"); E(f"{sw} v{vTmp+1}, v{vL}"); E("s_nop 1"); E(f"v_add_f32 v{vL}, v{vL}, v{vTmp+1}")
    lsum()
    E.c("not the last workgroup of this pair: hand the partial over; header = (m, l, checksum), none equal to the empty mark")
    own_slot(E)
    for q in range(4):
        for i in range(4 * q, 4 * q + 4): E(f"v_cvt_pk_bf16_f32 v{vSt+i}, v{vO+2*i}, v{vO+2*i+1}")
        E(f"buffer_store_dwordx4 {vr(vSt+4*q,4)}, v{vLin}, {srd(sWS)}, s{sT} offen offset:{q*1024} {pubf}")
    for i in range(16): E(f"v_dot2_u32_u16 v{vCk}, v{vSt+i}, s{sCw + (i + i//4) % 4}, {'0' if i == 0 else 'v%d' % vCk}")
    E(f"v_min_u32 v{vM}, -2, v{vM}"); E(f"v_min_u32 v{vL}, -2, v{vL}"); E("s_nop 0"); E(f"v_min_u32 v{vCk}, -2, v{vCk}")
    E(f"buffer_store_dwordx4 {vr(vM,4)}, v{vLin}, {srd(sWS)}, s{sT2} offen {pubf}")
    if stamps:
        for i in (2, 3, 4): stampE(i)
        E("s_branch L_done")
    else:
        E("s_endpgm")
    ml = lambda x: (vS + 8, vS + 12, vKP)[x - 1]
    dat = lambda x: (vRing, vRing + 16, vQ)[x - 1]
    bb = vKSr; u0 = vKS
    def part_loads(x, hdr=True, body=True):
        if hdr: E(f"buffer_load_dwordx4 {vr(ml(x),4)}, v{vLin}, {srd(sWS)}, s{sO+x-1} offen sc0 sc1")
        if body:
            for q in range(4): E(f"buffer_load_dwordx4 {vr(dat(x)+4*q,4)}, v{vLin}, {srd(sWS)}, s{sPo+x-1} offen offset:{q*1024} sc0 sc1")
    E.c("last workgroup of the pair: fetch the other three partials while finishing the last unit")
    E.label("L_ctail")
    P_ = Stream(); Esave = E
    pl = []
    for x in range(1, 4):
        pl.append(f"buffer_load_dwordx4 {vr(ml(x),4)}, v{vLin}, {srd(sWS)}, s{sO+x-1} offen sc0 sc1")
        pl += [f"buffer_load_dwordx4 {vr(dat(x)+4*q,4)}, v{vLin}, {srd(sWS)}, s{sPo+x-1} offen offset:{q*1024} sc0 sc1" for q in range(4)]
    T_ = Stream()
    vphase(T_, 8, 0, False)
    T_("s_waitcnt lgkmcnt(0)"); T_("s_barrier")
    pv(T_, 0, lambda: None, 0)
    tot = sum(x["c"] for x in T_.I); cum_ = 0; ni = 0
    for x in T_.I:
        while ni < 15 and cum_ >= tot * ctspan * ni / 15:
            E(pl[ni]); ni += 1
        if "mark" in x:
            if x["mark"] == "wait": E(f"s_waitcnt vmcnt({15 - x['k'] + nd + ni})")
        else: E.I.append(x)
        cum_ += x["c"]
    assert ni == 15
    lsum()
    E.c("fold them in, re-reading those that have not fully arrived")
    E(f"s_mov_b32 s{sPend}, 7"); E(f"s_mov_b32 s{sThr}, {hex(f32bits(TM))}")
    E.label("L_round")
    for x in range(1, 4):
        E(f"s_bitcmp1_b32 s{sPend}, {x-1}"); E(f"s_cbranch_scc0 L_fold{x}")
        E(f"s_waitcnt vmcnt({5*(3-x)})")
        for i in range(16): E(f"v_dot2_u32_u16 v{vCk}, v{dat(x)+i}, s{sCw + (i + i//4) % 4}, {'0' if i == 0 else 'v%d' % vCk}")
        E(f"v_max_u32 v{vTmp+1}, v{ml(x)}, v{ml(x)+1}"); E(f"v_cmp_eq_u32 s[4:5], -1, v{vTmp+1}")
        E(f"v_sub_f32 v{bb}, v{ml(x)}, v{vM}")
        E(f"v_min_u32 v{vCk}, -2, v{vCk}"); E(f"v_cmp_ne_u32 vcc, v{vCk}, v{ml(x)+2}")
        E("s_or_b64 vcc, vcc, s[4:5]"); E(f"s_cbranch_scc1 L_miss{x}")
        E(f"s_bitset0_b32 s{sPend}, {x-1}")
        E(f"v_cmp_lt_f32 vcc, s{sThr}, v{bb}"); E(f"s_cbranch_vccnz L_far{x}")
        E.label(f"L_near{x}")
        E(f"v_exp_f32 v{bb}, v{bb}")
        for q in range(4):
            r = dat(x) + 4 * q
            for i in range(4):
                E(f"v_lshlrev_b32 v{u0+2*i}, 16, v{r+i}"); E(f"v_and_b32 v{u0+2*i+1}, 0xffff0000, v{r+i}")
            for i in range(4):
                d = vO + 2 * (4 * q + i)
                E(f"v_pk_fma_f32 {vr(d,2)}, {vr(u0+2*i,2)}, {vr(bb,2)}, {vr(d,2)} op_sel_hi:[1,0,1]")
        E(f"v_fmac_f32 v{vL}, v{ml(x)+1}, v{bb}")
        E.label(f"L_fold{x}")
    if stamps: E("s_add_u32 s99, s99, 1")
    E(f"s_cmp_lg_u32 s{sPend}, 0"); E("s_cbranch_scc1 L_again")
    E.label("L_merged")
    for i in (2, 3, 4): stampE(i)
    if diagx:
        E("s_memrealtime s[86:87]"); E("s_waitcnt lgkmcnt(0)"); E("s_sub_u32 s86, s86, s84")
        E(f"s_cmp_gt_u32 s86, {abs(diagx)}"); E("s_cbranch_scc0 L_dx" if diagx > 0 else "s_cbranch_scc1 L_dx")
        E(f"v_cvt_f32_u32 v{vL}, s86"); E(f"v_rcp_f32 v{vL}, v{vL}"); E("s_nop 1")
        for i in range(32): E(f"v_mov_b32 v{vO+i}, 1.0")
        E.label("L_dx")
    E(f"v_rcp_f32 v{bb}, v{vL}")
    E(f"v_and_b32 v{vTmp}, 15, v{vLane}"); E(f"v_lshrrev_b32 v{vTmp+1}, 4, v{vLane}")
    E(f"v_lshlrev_b32 v{vTmp}, 8, v{vTmp}"); E(f"v_lshl_add_u32 v{vTmp}, v{vTmp+1}, 4, v{vTmp}")
    E(f"s_lshl_b32 s{sT}, s{sWave}, 12")
    for u in range(4):
        for i in range(4 * u, 4 * u + 4): E(f"v_pk_mul_f32 {vr(vO+2*i,2)}, {vr(vO+2*i,2)}, {vr(bb,2)} op_sel_hi:[1,0]")
        for i in range(4 * u, 4 * u + 4): E(f"v_cvt_pk_bf16_f32 v{vS+i}, v{vO+2*i}, v{vO+2*i+1}")
        E(f"buffer_store_dwordx4 {vr(vS+4*u,4)}, v{vTmp}, {srd(sOUT)}, s{sT} offen offset:{u*64} {outf}")
    if dbgspan:
        E("s_memrealtime s[86:87]"); E("s_waitcnt lgkmcnt(0)")
        E(f"s_cmp_eq_u32 s{sWave}, 0"); E("s_cbranch_scc0 L_done")
        E("s_sub_u32 s86, s86, s84"); E("s_mul_i32 s86, s86, 100000"); E("s_mov_b64 exec, 1"); E(f"v_mov_b32 v{vAt}, s86")
        E(f"buffer_atomic_add v{vAt}, off, {srd(sDBG)}, s{sDoff}")
    E.label("L_done")
    if stamps:
        E("s_waitcnt vmcnt(0)")
        stampE(5)
        E(f"s_lshl_b32 s{sT}, s2, 2"); E(f"s_add_u32 s{sT}, s{sT}, s{sWave}"); E(f"s_lshl_b32 s{sT2}, s{sT}, 4")
        E(f"s_lshl_b32 s4, s{sT}, 8"); E("s_add_u32 s4, s4, 0x22000000")
        E(f"s_add_u32 s{sT2}, s{sT2}, 0x20000000")
        E(f"s_lshl_b32 s{sT}, s{sT}, 6"); E(f"s_add_u32 s{sT}, s{sT}, 0x21000000")
        E("s_waitcnt lgkmcnt(0)")
        E(f"v_accvgpr_read_b32 v60, a255")
        for i in range(12): E(f"v_mov_b32 v{16+i}, s{84+i}")
        E(f"v_mov_b32 v28, s{sI}"); E("s_getreg_b32 s5, hwreg(HW_REG_XCC_ID)"); E("v_mov_b32 v29, s5"); E(f"v_mov_b32 v30, s{sEnd}"); E("v_mov_b32 v31, s99")
        E("v_mov_b32 v32, s84"); E("v_mov_b32 v33, s85"); E("v_mov_b32 v34, s94"); E("v_mov_b32 v35, s95")
        E(f"buffer_store_dword v60, v{vL4}, {srd(sWS)}, s4 offen sc0 sc1")
        E("s_mov_b64 exec, 1")
        E(f"buffer_store_dwordx4 v[32:35], off, {srd(sWS)}, s{sT2} sc0 sc1")
        for i in range(4): E(f"buffer_store_dwordx4 v[{16+4*i}:{19+4*i}], off, {srd(sWS)}, s{sT} offset:{16*i} sc0 sc1")
    E.label("L_end")
    E("s_endpgm")

    E.label("L_again")
    E("s_waitcnt vmcnt(0)")
    E(f"s_sub_u32 s{sSpin}, s{sSpin}, 1"); E("s_cbranch_scc0 L_round"); E("s_branch L_merged")
    for x in range(1, 4):
        E.label(f"L_miss{x}")
        for t in pl[5*(x-1):5*x]: E(t)
        E(f"s_branch L_fold{x}")
    for x in range(1, 4):
        E.label(f"L_far{x}")
        E(f"v_max_f32 v{vMx}, v{vM}, v{ml(x)}"); E(f"v_sub_f32 v{vTmp+1}, v{vM}, v{vMx}"); E(f"v_exp_f32 v{vTmp+1}, v{vTmp+1}")
        E(f"v_mov_b32 v{vM}, v{vMx}"); E(f"v_sub_f32 v{bb}, v{ml(x)}, v{vMx}"); E(f"v_mul_f32 v{vL}, v{vL}, v{vTmp+1}")
        for i in range(32): E(f"v_mul_f32 v{vO+i}, v{vO+i}, v{vTmp+1}")
        E(f"s_branch L_near{x}")
    E.c("the pair's pool is empty")
    E.label("L_nomore")
    E(f"s_mov_b32 s{sEnd}, 1"); E(f"s_mov_b32 s{sX+2}, 0"); E(f"s_mov_b32 s{sW0}, 0")
    E(f"s_cmp_eq_u32 s{sG}, {NH+3}"); E("s_cbranch_scc0 L_h1")
    E.c("fourth workgroup to run dry: it merges")
    E(f"s_mov_b32 s{sEnd}, 2")
    E(f"s_lshl_b32 s{sG}, s{sPair}, 2"); E(f"s_add_u32 s{sG}, s{sG}, s{sWave}"); E(f"s_lshl_b32 s{sG}, s{sG}, 15")
    E(f"s_add_u32 s{sG}, s{sG}, {WS_SLOT}")
    for x in range(1, 4):
        E(f"s_add_u32 s{sT}, s{sSplit}, {x}"); E(f"s_and_b32 s{sT}, s{sT}, 3"); E(f"s_lshl_b32 s{sT}, s{sT}, 13")
        E(f"s_add_u32 s{sPo+x-1}, s{sG}, s{sT}"); E(f"s_add_u32 s{sO+x-1}, s{sPo+x-1}, 4096")
    E("s_branch L_h1")

    E.label("L_k2v")
    E(f"s_lshl_b32 s{sO}, s{sSplit}, {SB}"); set_offs(E); set_base(E, sVb)
    E(f"s_cmp_lg_u32 s{sW0}, 0"); E("s_cbranch_scc0 L_k1")
    E(f"buffer_load_dword v{vFl}, off, {srd(sDBG)}, s{sDoff} {flagf}")
    E("s_branch L_k1")

    E.c("last V unit: the next unit is the first H unit; wave 0 checks that the ticket counter is live")
    E.label("L_v2h")
    E(f"s_cmp_lg_u32 s{sW0}, 0"); E("s_cbranch_scc0 L_v2h1")
    E.label("L_flag")
    E(f"v_readfirstlane_b32 s{sT}, v{vFl}"); E(f"s_sub_u32 s{sSpin}, s{sSpin}, 1"); E("s_cbranch_scc1 L_live"); E("s_nop 2")
    E(f"s_bitcmp1_b32 s{sT}, 8"); E("s_cbranch_scc1 L_live")
    E(f"buffer_load_dword v{vFl}, off, {srd(sDBG)}, s{sDoff} sc0 sc1")
    E("s_waitcnt vmcnt(0)"); E("s_branch L_flag")
    E.label("L_live")
    E("s_mov_b64 exec, 1"); E(f"v_mov_b32 v{vAt}, 1")
    E(f"buffer_atomic_add v{vAt}, off, {srd(sWS)}, s{sCoff} sc0")
    E("s_mov_b64 exec, -1")
    E.label("L_v2h1")
    set_base(E, sKb, sVb)
    E(f"s_mov_b32 s{sKsl}, {DSLOT}"); E(f"s_mov_b32 s{sG}, s{sSplit}")
    set_half(E)
    E("s_branch L_v0")

    def tree(lo, hi, reg, pre, leaf):
        if lo == hi: leaf(lo); return
        mid = (lo + hi + 1) // 2
        E(f"s_cmp_ge_u32 s{reg}, {mid}"); E(f"s_cbranch_scc1 {pre}{mid}_{hi}")
        tree(lo, mid - 1, reg, pre, leaf)
        E.label(f"{pre}{mid}_{hi}")
        tree(mid, hi, reg, pre, leaf)
    E.label("L_restore")
    def rleaf(j1):
        b = 17 * (j1 - 1)
        E(f"v_accvgpr_read_b32 v{vMx}, a{b+16}")
        for i in range(16): E(f"v_accvgpr_read_b32 v{vS+i}, a{b+i}")
        E("s_branch L_restored")
    tree(1, npf, sJ, "L_r", rleaf)
    E.label("L_restored")
    E(f"v_cmp_neq_f32 vcc, v{vMx}, v{vMO}")
    E("s_cbranch_vccz L_v1")
    E.c("this tile's P used a newer reference max than O holds: bring O up to it")
    E(f"v_sub_f32 v{vTmp+1}, v{vMO}, v{vMx}"); E(f"v_exp_f32 v{vTmp+1}, v{vTmp+1}"); E(f"v_mov_b32 v{vMO}, v{vMx}")
    for i in range(32): E(f"v_mul_f32 v{vO+i}, v{vO+i}, v{vTmp+1}")
    E("s_branch L_v1")
    E.label("L_save")
    def sleaf(i1):
        b = 17 * (i1 - 1)
        for i in range(16): E(f"v_accvgpr_write_b32 a{b+i}, v{vS+i}")
        E(f"v_accvgpr_write_b32 a{b+16}, v{vM}")
        E("s_branch L_saved")
    tree(1, npf, sI, "L_s", sleaf)

    E.c("rare path: the running max rose past the threshold -> move the reference to the true running max")
    for tag in ("K", "H"):
        E.label(f"L_rescale{tag}")
        for sw in ("v_permlane32_swap_b32", "v_permlane16_swap_b32"):
            E(f"v_mov_b32 v{vTmp+1}, v{vMx}"); E("s_nop 1"); E(f"{sw} v{vTmp+1}, v{vMx}"); E("s_nop 1"); E(f"v_max_f32 v{vMx}, v{vMx}, v{vTmp+1}")
        E(f"v_mul_f32 v{vMx}, s{sC}, v{vMx}"); E(f"v_max_f32 v{vMx}, v{vMx}, v{vM}")
        E(f"v_sub_f32 v{vTmp+1}, v{vM}, v{vMx}"); E(f"v_exp_f32 v{vTmp+1}, v{vTmp+1}"); E(f"v_mov_b32 v{vM}, v{vMx}")
        E(f"v_mul_f32 v{vL}, v{vL}, v{vTmp+1}")
        if tag == "H":
            for i in range(32): E(f"v_mul_f32 v{vO+i}, v{vO+i}, v{vTmp+1}")
        E(f"s_branch L_rescaled{tag}")

    E.c("wave 0: the first workgroup of the pair to get here zeroes the ticket counter in d_ws and raises a flag in d_debug")
    E.label("L_hookK")
    E(f"s_sub_u32 s{sT}, s{sI}, s{sH0}")
    E(f"s_cmp_eq_u32 s{sT}, 0"); E("s_cbranch_scc1 L_h0")
    E(f"s_cmp_eq_u32 s{sT}, 2"); E("s_cbranch_scc1 L_hk1")
    E(f"s_cmp_eq_u32 s{sT}, 4"); E("s_cbranch_scc0 L_k1")
    E(f"s_cmp_lg_u32 s{sIni}, 0"); E("s_cbranch_scc0 L_k1")
    E("s_mov_b64 exec, 1"); E(f"v_mov_b32 v{vFl}, {FLAG}")
    E(f"buffer_atomic_or v{vFl}, off, {srd(sDBG)}, s{sDoff}")
    E("s_mov_b64 exec, -1"); E("s_branch L_k1")
    E.label("L_h0")
    E("s_mov_b64 exec, 1"); E(f"v_mov_b32 v{vFl}, 1")
    E(f"buffer_atomic_add v{vFl}, off, {srd(sDBG)}, s{sDoff} sc0")
    E("s_mov_b64 exec, -1"); E("s_branch L_k1")
    E.label("L_hk1")
    E(f"v_readfirstlane_b32 s{sT}, v{vFl}"); E("s_nop 3")
    E(f"s_cmp_eq_u32 s{sT}, 0"); E("s_cbranch_scc0 L_k1")
    E(f"s_mov_b32 s{sIni}, 1")
    E("s_mov_b64 exec, 1")
    E(f"buffer_atomic_swap v{vFl}, off, {srd(sWS)}, s{sCoff} sc0")
    E("s_mov_b64 exec, -1"); E("s_branch L_k1")

    L = [HDR.rstrip(), f"; @launch grid=(256,1,1) block=(256,1,1) lds={LDS_TOTAL}", '.amdgcn_target "amdgcn-amd-amdhsa--gfx950"',
         ".text", f".globl {NAME}_kernel", ".p2align 8", f".type {NAME}_kernel,@function", f"{NAME}_kernel:"]
    L += pro.text() + kbody + vbody + hbody + E.text() + ["L_codeend:"]
    L += ['.section .rodata,"a"', ".p2align 6", f".amdhsa_kernel {NAME}_kernel",
          "  .amdhsa_next_free_vgpr 512", "  .amdhsa_next_free_sgpr 102", "  .amdhsa_accum_offset 256",
          "  .amdhsa_group_segment_fixed_size 0", "  .amdhsa_kernarg_size 80", "  .amdhsa_user_sgpr_count 2",
          "  .amdhsa_user_sgpr_kernarg_segment_ptr 1", "  .amdhsa_system_sgpr_workgroup_id_x 1",
          "  .amdhsa_float_denorm_mode_32 3", "  .amdhsa_float_denorm_mode_16_64 3", ".end_amdhsa_kernel"]
    open(path, "w").write("\n".join(L) + "\n")

if __name__ == "__main__":
    import argparse
    ap = argparse.ArgumentParser()
    ap.add_argument("out")
    ap.add_argument("--AL", type=int, default=10); ap.add_argument("--np", type=int, default=14)
    ap.add_argument("--stamps", action="store_true"); ap.add_argument("--it", action="store_true")
    ap.add_argument("--cs", type=int, default=8); ap.add_argument("--nt", default="nt"); ap.add_argument("--q", default="")
    ap.add_argument("--smf", default="nt"); ap.add_argument("--mix", type=lambda x: int(x, 0), default=0x11111111)
    ap.add_argument("--nK1", type=int, default=9); ap.add_argument("--vtail", type=int, default=250); ap.add_argument("--htail", type=int, default=200)
    ap.add_argument("--T", type=float, default=8.0); ap.add_argument("--TM", type=float, default=32.0)
    ap.add_argument("--outf", default="sc0 sc1"); ap.add_argument("--pubf", default="sc0 sc1")
    ap.add_argument("--cap", default="566"); ap.add_argument("--capH", default="c"); ap.add_argument("--capP", default="8")
    ap.add_argument("--diagx", type=int, default=0)
    ap.add_argument("--pfcode", type=int, default=4); ap.add_argument("--pftlb", type=int, default=0)
    ap.add_argument("--prost", action="store_true"); ap.add_argument("--pfearly", action="store_true")
    ap.add_argument("--noctg", action="store_true"); ap.add_argument("--capV", default="56")
    ap.add_argument("--nH1", type=int, default=8); ap.add_argument("--hs", type=int, default=2)
    ap.add_argument("--late", action="store_true"); ap.add_argument("--flagf", default="")
    ap.add_argument("--ct", type=float, default=0.6)
    ap.add_argument("--hv", type=int, default=4); ap.add_argument("--hk", type=float, default=0.8)
    ap.add_argument("--po", default="K6 T Q C A")
    ap.add_argument("--qlate", type=int, default=15)
    ap.add_argument("--dbgspan", action="store_true")
    a = ap.parse_args()
    gen(a.out, AL=a.AL, npf=a.np, stamps=a.stamps, cstride=a.cs, nt=a.nt, qflag=a.q, smf=a.smf, mix=a.mix, nK1=a.nK1, vtail=a.vtail,
        T=a.T, itst=a.it, outf=a.outf, htail=a.htail, pubf=a.pubf, TM=a.TM, cap=a.cap, capH=a.capH, capP=a.capP, diagx=a.diagx, pfcode=a.pfcode, pftlb=a.pftlb, prost=a.prost, pfearly=True, ctg=not a.noctg, capV=a.capV, nH1=a.nH1, hspread=a.hs, early=not a.late, flagf=a.flagf, ctspan=a.ct, hv=a.hv, hk=a.hk, porder=a.po, qlate=a.qlate, dbgspan=a.dbgspan)
```

```python
import sys, struct, math, re
NAME = "standalone__kv_cache_quant_int4_int2_kv_with_per_channel_or_per_token_scales__sampling"
HDR = open("cdna_kernels/" + NAME + ".s.ref").read().split("; Override launch")[0]

def f32bits(x):
    return struct.unpack("<I", struct.pack("<f", x))[0]

def cost_of(s):
    op = s.split()[0]
    if op.startswith("v_mfma"): return 8
    if op in ("v_exp_f32", "v_rcp_f32"): return 8
    if op in ("ds_write_b128", "ds_write2_b64"): return 28
    if op.startswith("ds_write"): return 20
    if op == "s_barrier": return 70
    if op == "s_nop": return 4 * (int(s.split()[1]) + 1)
    return 4

class Stream:
    def __init__(self): self.I = []; self.lock = False; self.nds = 0
    def __call__(self, s, cost=None):
        self.I.append(dict(t="    " + s, c=(cost_of(s) if cost is None else cost), ins=not self.lock))
        if s.startswith("ds_"): self.nds += 1
        return self.nds
    def waitds(self, i):
        n = self.nds - i; assert 0 <= n <= 15
        self(f"s_waitcnt lgkmcnt({n})")
    def label(self, s): self.I.append(dict(t=s + ":", c=0, ins=not self.lock))
    def c(self, s): self.I.append(dict(t="    ; " + s, c=0, ins=not self.lock))
    def mark(self, kind, k=None): self.I.append(dict(mark=kind, k=k, c=0, ins=not self.lock))
    def text(self): return [x["t"] for x in self.I]

INLINE = re.compile(r"^-?(\d+|0x[0-9a-f]+)$")
def has_literal(ops):
    for o in ops:
        if INLINE.match(o):
            v = int(o, 0)
            if not -16 <= v <= 64 and (v & 0x7fffffff) not in (0x3f000000, 0x3f800000, 0x40000000, 0x40800000): return True
        elif re.match(r"^L_\w+-L_\w+$", o): return True
    return False
VOP12 = ("v_mov_b32", "v_exp_f32", "v_rcp_f32", "v_add_f32", "v_sub_f32", "v_mul_f32", "v_max_f32", "v_lshlrev_b32", "v_lshrrev_b32", "v_and_b32",
         "v_xor_b32", "v_add_u32", "v_mul_u32_u24", "v_min_u32", "v_max_u32", "v_fmac_f32", "v_cvt_f32_u32")
def isize(line):
    s = line.split(";")[0].strip()
    if not s or s.endswith(":") or s.startswith("."): return 0, None
    op, _, rest = s.partition(" ")
    ops = [o.strip() for o in rest.split(",")] if rest else []
    if op.startswith(("s_load", "s_memrealtime", "ds_", "buffer_")): return 8, None
    if op.startswith("s_"):
        if op in ("s_waitcnt", "s_nop", "s_barrier", "s_endpgm", "s_branch", "s_getreg_b32") or op.startswith("s_cbranch"): return 4, None
        return (8 if has_literal(ops) else 4), None
    if op in ("v_readfirstlane_b32", "v_permlane32_swap_b32", "v_permlane16_swap_b32"): return 4, None
    if op.startswith("v_cmp"):
        return (4 + 4 * has_literal(ops[1:]) if ops[0] == "vcc" else 8), None
    if op in VOP12:
        if any(o.startswith("-v") for o in ops): return 8, "valu"
        if has_literal(ops[1:]): return 8, "valu"
        return 4, "grow"
    if op.startswith("v_mfma"): return 8, None
    return 8, "valu"
def align_pass(L):
    out = []; par = 0; last = None
    for i, line in enumerate(L):
        sz, kind = isize(line)
        if sz == 8 and par and last is not None:
            j = last; op = out[j].split()[0]
            out[j] = out[j].replace(op, op + "_e64", 1); par = 0
        elif sz == 8 and par:
            n = 0
            for l2 in L[i:]:
                s2, k2 = isize(l2)
                if s2 == 4: break
                n += k2 == "valu"
            if n >= 7: out.append("    s_nop 0"); par = 0
        if sz == 8: last = None
        if sz == 4:
            par ^= 1
            if kind == "grow": last = len(out)
        out.append(line)
    return out

def regs_of(tok):
    m = re.match(r"^-?v\[(\d+):(\d+)\]$", tok)
    if m: return set(range(int(m.group(1)), int(m.group(2)) + 1))
    m = re.match(r"^-?v(\d+)$", tok)
    return {int(m.group(1))} if m else set()
def hazard_check(L):
    hist = []
    for line in L:
        s = line.split(";")[0].strip()
        if not s or s.endswith(":") or s.startswith("."): continue
        op, _, rest = s.partition(" ")
        toks = [o.strip().split(" ")[0] for o in rest.split(",")] if rest else []
        if op in ("s_branch", "s_endpgm"): hist = []; continue
        st = int(toks[0]) + 1 if op == "s_nop" else 1
        allr = [regs_of(t) for t in toks]
        isv = op.startswith("v_"); mf = op.startswith("v_mfma")
        store = op.startswith(("ds_write", "buffer_store", "buffer_atomic"))
        dst = set() if (store or not allr or op.startswith(("v_cmp", "v_readfirstlane"))) else allr[0]
        src = set().union(*(allr if store or op.startswith(("v_cmp", "v_permlane", "v_fmac")) else allr[1:])) if allr else set()
        if op.startswith("v_permlane"): dst = src
        d = 0
        for (pop, pdst, psrcC, pst) in reversed(hist):
            need = 0
            if pop.startswith("v_mfma"):
                if mf:
                    if pdst & (allr[1] | allr[2]): need = 8
                    elif pdst & allr[3] and pdst != allr[3]: need = 6
                elif pdst & (src | dst): need = 8
                elif isv and psrcC & dst: need = 3
            elif pop.startswith("v_"):
                if mf and pdst & src: need = 2
                if op.startswith("v_permlane") and pdst & src: need = 2
                if op == "v_readfirstlane_b32" and pdst & src: need = 1
                if pop.split("_e64")[0] in ("v_exp_f32", "v_rcp_f32") and isv and op.split("_e64")[0] not in ("v_exp_f32", "v_rcp_f32") and pdst & src: need = max(need, 1)
                if pop.startswith("v_dot") and op != pop and pdst & (src | dst): need = 3
            elif pop.startswith("buffer_store_dwordx4") and isv and psrcC & dst: need = 2
            assert d >= need, f"hazard: {pop} -> {s} distance {d} < {need}"
            d += pst
            if d >= 8: break
        hist.append((op, dst, (allr[3] if mf else (allr[0] if op.startswith("buffer_store") else set())), st))

def gen(path, AL=8, npf=14, stamps=False, nt="nt", smf="nt", qflag="", cstride=8, T=8.0, TM=32.0, mix=0x31031031, nK1=9, vtail=1.0,
        itst=False, outf="sc0 sc1", pubf="sc0 sc1", cap="56", capV="556", capH=None, capP="8", pfcode=4, ctspan=0.95, ct0=0.15,
        hv=4, hk=0.9, hp=4, hq=0.9, npre=6, dry=False, hst=0, align=True):
    assert 8 <= npf <= 15
    capn = lambda c, k: int(c[k % len(c)], 16) - 1
    NH = 2 * (64 - 4 * npf)
    KROW = 288; JS = 576; OS = 2320
    TABW = 18 * 256; DSLOT = 16 * 256
    LDS_MB = 0; LDS_SC = 256; LDS_TAB = 1536; LDS_K = LDS_TAB + 4 * TABW; LDS_V = LDS_K + 128 * KROW
    LDS_TOTAL = LDS_V + 16 * OS
    assert LDS_K % 256 == 0 and LDS_K + 128 * KROW < 65536 and LDS_TAB % 512 == 0 and TABW % 512 == 0
    WS_SLOT = 1 << 20; WS_CTR = 16 << 20; FLAG = 0x100
    SPIN = 1 << 20
    PF = 8
    vLane, vOff, vMb, vKR, vSW, vSR, vVW, vVR, vTK, vTV, vL4, vLin = range(12)
    vHd = 12
    vCk, vFl = 14, 15
    vL = 16
    vT2 = 18
    vKS, vKC = 20, 24; vKSr, vKZr, vVSr, vVZr = 28, 30, 32, 33
    vTmp = 34
    vMx, vAt, vMO = 37, 38, 39
    vKP = 40; vVP = 48; vO = 64; vS = 96; vRing = 128; vQ = 192; vSt = 208; NST = 10
    vNM = 248; vKW = 252
    vSc = vS + 16
    sX, sY, sSM, sQ, sDBG, sWS, sOUT = 8, 12, 16, 20, 24, 28, 32
    sKb, sVb = 36, 38
    sPair, sSplit, sI, sJ, sG, sT, sT2, sFlo, sThr, sDoff, sCoff, sIni, sKsl, sVsl, sWb, sPend, sSpin, sW0, sHk = range(40, 59)
    sO = 60
    sK1, sK2 = 64, 66
    sCw = 72
    sPo = 76
    sWave = 3
    srd = lambda r: f"s[{r}:{r+3}]"
    vr = lambda r, n: f"v[{r}:{r+n-1}]"
    def item_text(k):
        return f"buffer_load_dwordx4 {vr(vRing+4*k,4)}, v{vOff}, {srd(sX if k < 8 else sY)}, s{sO + k//4} offen offset:{(k%4)*1024} {nt}"
    def set_offs(A, half=False):
        for i, d in enumerate((4096,) + ((0, 4096) if half else (16384, 20480))): A(f"s_add_u32 s{sO+1+i}, s{sO}, {d}")
    def next_static(A):
        for i in range(4): A(f"s_add_u32 s{sO+i}, s{sO+i}, 0x10000")
    def set_base(A, b, b2=None):
        if b2 is None: b2 = b
        A(f"s_mov_b64 s[{sX}:{sX+1}], s[{b}:{b+1}]"); A(f"s_mov_b64 s[{sY}:{sY+1}], s[{b2}:{b2+1}]")
    def half_ops():
        S = Stream()
        S(f"s_and_b32 s{sT}, s{sG}, 1"); S(f"s_bfe_u32 s{sT2}, s{sG}, 0x20001"); S(f"s_lshr_b32 s{sG}, s{sG}, 3")
        S(f"s_lshl4_add_u32 s{sG}, s{sT2}, s{sG}"); S(f"s_add_u32 s{sG}, s{sG}, {npf}")
        S(f"s_lshl2_add_u32 s{sO}, s{sG}, s{sT}"); S(f"s_lshl_b32 s{sO}, s{sO}, 14")
        set_offs(S, True)
        S(f"s_xor_b32 s{sKsl}, s{sKsl}, 256"); S("s_xor_b32 m0, m0, 256")
        S(f"s_lshl_b32 s{sT}, s{sT}, 6"); S(f"s_add_u32 s{sVsl}, s{sKsl}, s{sT}")
        S(f"s_lshl_b32 s{sT}, s{sG}, 8")
        S(f"buffer_load_dword v{vL4}, {srd(sSM)}, s{sT} offen {smf} lds")
        return [x["t"].strip() for x in S.I]

    A = Stream()
    A("s_cmp_ge_u32 s2, 256"); A("s_cbranch_scc1 L_end")
    if stamps: A("s_memrealtime s[84:85]")
    A("s_load_dwordx16 s[68:83], s[0:1], 0")
    A("s_load_dwordx4 s[4:7], s[0:1], 64")
    if pfcode:
        A.c("pull this kernel's code into L2 with strided loads (speed only; the values are unused)")
        A("s_getpc_b64 s[92:93]"); A("s_and_b32 s92, s92, 0xffffff00"); A("s_mov_b32 s94, L_codeend-L_pf"); A("s_mov_b32 s95, 0x20000")
        A.label("L_pf")
        A(f"v_lshlrev_b32 v{vTmp}, 7, v0")
        A(f"s_lshr_b32 s{sT2}, s2, 3"); A(f"s_and_b32 s{sT2}, s{sT2}, {pfcode-1}"); A(f"s_cselect_b32 s94, 0, s94")
        A(f"buffer_load_dword v{vTmp}, v{vTmp}, s[92:95], 0 offen")
    A("v_lshrrev_b32 v1, 6, v0")
    A(f"v_and_b32 v{vLane}, 63, v0")
    A(f"v_readfirstlane_b32 s{sWave}, v1")
    if mix:
        A.c("which (batch, kv head) pair / split this workgroup takes: a bijection of the id (placement affects speed only)")
        A(f"s_lshr_b32 s{sT}, s2, 3"); A(f"s_and_b32 s{sT}, s{sT}, 7"); A(f"s_lshl_b32 s{sT}, s{sT}, 2")
        A(f"s_lshr_b32 s{sT}, {hex(mix)}, s{sT}"); A(f"s_and_b32 s{sT}, s{sT}, 3"); A(f"s_and_b32 s{sT}, s{sT}, s2")
        A(f"s_bcnt1_i32_b32 s{sT}, s{sT}"); A(f"s_and_b32 s{sT}, s{sT}, 1"); A(f"s_lshl_b32 s{sT}, s{sT}, 2"); A(f"s_xor_b32 s2, s2, s{sT}")
    A(f"s_lshr_b32 s{sPair}, s2, 2"); A(f"s_and_b32 s{sSplit}, s2, 3")
    c_, h_, m_, g_ = vKS, vKS + 1, vKS + 2, vKS + 3
    t0, t1, vQo = vKC, vKC + 1, vKC + 2
    A(f"v_and_b32 v{c_}, 31, v{vLane}"); A(f"v_lshrrev_b32 v{h_}, 5, v{vLane}")
    A(f"v_and_b32 v{m_}, 15, v{vLane}"); A(f"v_lshrrev_b32 v{g_}, 4, v{vLane}")
    A(f"v_lshlrev_b32 v{vLin}, 4, v{vLane}"); A(f"v_lshlrev_b32 v{vL4}, 2, v{vLane}")
    A(f"s_and_b32 s{sT}, s{sWave}, 1"); A(f"s_lshl_b32 s{sT}, s{sT}, 13")
    A(f"s_lshr_b32 s{sT2}, s{sWave}, 1"); A(f"s_lshl_b32 s{sT2}, s{sT2}, 15"); A(f"s_add_u32 s{sWb}, s{sT}, s{sT2}")
    A(f"v_add_u32 v{vOff}, s{sWb}, v{vLin}")
    A(f"v_lshlrev_b32 v{vQo}, 8, v{m_}"); A(f"v_lshl_add_u32 v{vQo}, v{g_}, 4, v{vQo}")
    for i in range(4): A(f"v_mov_b32 v{vVP+i}, -1")
    def own_slot(A):
        A(f"s_lshl2_add_u32 s{sT}, s{sPair}, s{sWave}"); A(f"s_lshl2_add_u32 s{sT}, s{sT}, s{sSplit}")
        A(f"s_lshl_b32 s{sT}, s{sT}, 13"); A(f"s_add_u32 s{sT}, s{sT}, {WS_SLOT}"); A(f"s_add_u32 s{sT2}, s{sT}, 4096")
    A(f"s_mul_i32 s{sG}, s{sWave}, {TABW}"); A(f"s_add_u32 s{sG}, s{sG}, {LDS_TAB}"); A(f"s_mov_b32 m0, s{sG}")
    own_slot(A)
    for r in (sX, sY): A(f"s_mov_b32 s{r+2}, {0 if dry else 0x400000}"); A(f"s_mov_b32 s{r+3}, 0x20000")
    A(f"s_mov_b32 s{sWS+2}, 0x40000000"); A(f"s_mov_b32 s{sWS+3}, 0x20000")
    A(f"s_lshl_b32 s{sT}, s{sPair}, 22")
    A(f"s_mov_b32 s{sDBG+2}, 256"); A(f"s_mov_b32 s{sDBG+3}, 0x20000"); A(f"s_lshl_b32 s{sDoff}, s{sPair}, 2"); A(f"v_mov_b32 v{vFl}, 1")
    A(f"s_lshl_b32 s{sO}, s{sSplit}, 20"); set_offs(A)
    for r in (sSM, sQ, sOUT): A(f"s_mov_b32 s{r+2}, 0x4000"); A(f"s_mov_b32 s{r+3}, 0x20000")
    A(f"s_lshl_b32 s{sPend}, s{sPair}, 14")
    A("s_waitcnt lgkmcnt(0)")
    def mk(r, p): A(f"s_add_u32 s{r}, s{p}, s{sPend}"); A(f"s_addc_u32 s{r+1}, s{p+1}, 0")
    A(f"s_add_u32 s{sKb}, s70, s{sT}"); A(f"s_addc_u32 s{sKb+1}, s71, 0")
    set_base(A, sKb)
    for k in range(npre): A(item_text(k))
    A(f"s_add_u32 s{sVb}, s72, s{sT}"); A(f"s_addc_u32 s{sVb+1}, s73, 0")
    A.c("wave w streams scale/zero array w (ks, kz, vs, vz) into the LDS table")
    A(f"s_cmp_eq_u32 s{sWave}, 1"); A(f"s_cselect_b64 s[{sSM}:{sSM+1}], s[76:77], s[74:75]")
    A(f"s_cmp_eq_u32 s{sWave}, 2"); A(f"s_cselect_b64 s[{sSM}:{sSM+1}], s[78:79], s[{sSM}:{sSM+1}]")
    A(f"s_cmp_eq_u32 s{sWave}, 3"); A(f"s_cselect_b64 s[{sSM}:{sSM+1}], s[80:81], s[{sSM}:{sSM+1}]")
    mk(sSM, sSM)
    A(f"s_lshl_b32 s{sT}, s{sSplit}, 12")
    nT = (npf + 3) // 4
    for u in range(nT):
        rows = min(4, npf - 4 * u)
        if rows < 4: A(f"s_bfm_b64 exec, {16*rows}, 0")
        A(f"buffer_load_dwordx4 v{vLin}, {srd(sSM)}, s{sT} offen offset:{u*1024} {smf} lds")
        if rows < 4: A("s_mov_b64 exec, -1")
    A(f"s_add_u32 m0, s{sG}, {DSLOT}")
    mk(sQ, 68)
    A(f"s_lshl_b32 s{sT}, s{sWave}, 12")
    for s4 in range(4): A(f"buffer_load_dwordx4 {vr(vQ+4*s4,4)}, v{vQo}, {srd(sQ)}, s{sT} offen offset:{s4*64} {qflag}")
    A.c("mark the header of this wave's hand-off slot empty")
    A(f"s_mov_b64 s[{sWS}:{sWS+1}], s[6:7]")
    A(f"buffer_store_dwordx4 {vr(vVP,4)}, v{vLin}, {srd(sWS)}, s{sT2} offen sc0 sc1")
    A.c("wave 0 asks d_debug whether this is the pair's first workgroup to start")
    A(f"s_mov_b64 s[{sDBG}:{sDBG+1}], s[4:5]")
    A(f"s_cmp_eq_u32 s{sWave}, 0"); A(f"s_cselect_b32 s{sW0}, 1, 0"); A(f"s_cselect_b32 s{sHk}, 3, 0"); A("s_cbranch_scc0 L_noel")
    A("s_mov_b64 exec, 1")
    A(f"buffer_atomic_add v{vFl}, off, {srd(sDBG)}, s{sDoff} sc0")
    A("s_mov_b64 exec, -1")
    A.label("L_noel")
    mk(sOUT, 82)
    A(f"v_lshlrev_b32 v{vTK}, 3, v{c_}")
    A(f"v_lshrrev_b32 v{vTV}, 4, v{c_}"); A(f"v_lshlrev_b32 v{vTV}, 5, v{vTV}")
    A(f"v_and_b32 v{t0}, 15, v{c_}"); A(f"v_add_lshl_u32 v{vTV}, v{vTV}, v{t0}, 1")
    A(f"s_lshr_b32 s{sT}, s{sWb}, 8"); A(f"v_add_u32 v{vTV}, s{sT}, v{vTV}")
    A(f"s_lshr_b32 s{sT}, s{sWave}, 1"); A(f"s_and_b32 s{sT2}, s{sWave}, 1")
    A(f"s_mul_i32 s{sT}, s{sT}, {32*KROW}"); A(f"s_mul_i32 s{sT2}, s{sT2}, {8*KROW}"); A(f"s_add_u32 s{sT}, s{sT}, s{sT2}"); A(f"s_add_u32 s{sT}, s{sT}, {LDS_K}")
    A(f"v_mul_u32_u24 v{vKW}, {4*KROW}, v{h_}"); A(f"v_lshl_add_u32 v{vKW}, v{c_}, 3, v{vKW}"); A(f"v_add_u32 v{vKW}, s{sT}, v{vKW}")
    for u, rows in ((1, 16), (2, 64), (3, 80)): A(f"v_add_u32 v{vKW+u}, {rows*KROW}, v{vKW}")
    A(f"v_mul_u32_u24 v{vKR}, {KROW}, v{m_}"); A(f"v_lshl_add_u32 v{vKR}, v{g_}, 4, v{vKR}")
    A(f"s_mul_i32 s{sT}, s{sWave}, {2*OS}"); A(f"s_add_u32 s{sT}, s{sT}, {LDS_V}")
    A(f"v_mul_u32_u24 v{vVW}, {OS}, v{h_}"); A(f"v_lshl_add_u32 v{vVW}, v{c_}, 4, v{vVW}"); A(f"v_add_u32 v{vVW}, s{sT}, v{vVW}")
    A(f"v_mul_u32_u24 v{vVR}, {OS}, v{g_}"); A(f"v_and_b32 v{t0}, 3, v{m_}"); A(f"v_mul_u32_u24 v{t0}, {JS}, v{t0}")
    A(f"v_lshrrev_b32 v{t1}, 2, v{m_}"); A(f"v_lshlrev_b32 v{t1}, 5, v{t1}")
    A(f"v_add3_u32 v{vVR}, v{vVR}, v{t0}, v{t1}"); A(f"v_add_u32 v{vVR}, {LDS_V}, v{vVR}")
    A(f"s_lshl_b32 s{sT}, s{sWave}, 8"); A(f"s_add_u32 s{sT2}, s{sT}, {LDS_SC}")
    A(f"v_and_b32 v{vSW}, 1, v{c_}"); A(f"v_lshlrev_b32 v{vSW}, 7, v{vSW}")
    A(f"v_lshrrev_b32 v{t0}, 1, v{c_}"); A(f"v_lshl_add_u32 v{vSW}, v{t0}, 3, v{vSW}"); A(f"v_add_u32 v{vSW}, s{sT2}, v{vSW}")
    A(f"v_lshlrev_b32 v{vSR}, 7, v{h_}"); A(f"v_add_u32 v{vSR}, s{sT2}, v{vSR}")
    A(f"v_mov_b32 v{vMb}, {LDS_MB}")
    A(f"s_lshl_b32 s{sCoff}, s{sPair}, {cstride}"); A(f"s_add_u32 s{sCoff}, s{sCoff}, {WS_CTR}")
    cc = math.log2(math.e) / math.sqrt(128.0)
    for i in range(2): A(f"s_mov_b32 s{sK1+i}, {hex(f32bits(cc * 2.0**24))}"); A(f"s_mov_b32 s{sK2+i}, {hex(f32bits(-2.0**-24))}")
    A.c("the first tile always takes the rescale path, which sets the reference to that tile's true row max")
    A(f"s_mov_b32 s{sThr}, 0xff800000"); A(f"s_mov_b32 s{sFlo}, 0xff800000")
    for r in (sIni, sI, sJ, sKsl, sVsl): A(f"s_mov_b32 s{r}, 0")
    A(f"s_mov_b32 s{sSpin}, {SPIN}")
    for i, w in enumerate((0x9e37c2b3, 0x85eb6d2f, 0x27d4f1a9, 0x165753c5)): A(f"s_mov_b32 s{sCw+i}, {hex(w)}")
    for i in range(32): A(f"v_mov_b32 v{vO+i}, 0")
    for i in range(4): A(f"v_mov_b32 v{vNM+i}, 0")
    A(f"v_mov_b32 v{vMO}, 0x7149f2ca"); A(f"v_mov_b32 v{vL}, 0"); A(f"v_mov_b32 v{vL+1}, 0"); A(f"v_mov_b32 v{vAt}, 0")
    def ktab_reads(S):
        S(f"v_add_u32 v{vTmp+2}, s{sKsl}, v{vTK}")
        S(f"ds_read_b64 {vr(vKSr,2)}, v{vTmp+2} offset:{LDS_TAB}"); S(f"ds_read_b64 {vr(vKZr,2)}, v{vTmp+2} offset:{LDS_TAB+TABW}")
    def vtab_reads(S):
        S(f"v_xor_b32 v{vTmp+2}, s{sVsl}, v{vTV}")
        S(f"ds_read_u16 v{vVSr}, v{vTmp+2} offset:{LDS_TAB+2*TABW}"); S(f"ds_read_u16 v{vVZr}, v{vTmp+2} offset:{LDS_TAB+3*TABW}")
    def prep_v(S):
        S.c("V: S = vs*2^24, C = -vz*vs per token, broadcast through LDS")
        S(f"v_lshlrev_b32 v{vT2}, 16, v{vVSr}"); S(f"v_lshlrev_b32 v{vT2+1}, 16, v{vVZr}")
        S(f"v_mul_f32 v{vT2+1}, -v{vT2+1}, v{vT2}"); S(f"v_mul_f32 v{vT2}, 0x4b800000, v{vT2}")
        S(f"ds_write_b64 v{vSW}, {vr(vT2,2)}")
    def prep_k(S):
        S.c("K: S = ks*c*2^24, C = -kz*ks*c per channel, c = log2(e)/sqrt(128) (the int code is read as an f16 subnormal, code*2^-24)")
        for p in range(2): S(f"v_lshlrev_b32 v{vKS+2*p}, 16, v{vKSr+p}"); S(f"v_lshlrev_b32 v{vKC+2*p}, 16, v{vKZr+p}")
        for p in range(2): S(f"v_and_b32 v{vKS+2*p+1}, 0xffff0000, v{vKSr+p}"); S(f"v_and_b32 v{vKC+2*p+1}, 0xffff0000, v{vKZr+p}")
        for p in range(2): S(f"v_pk_mul_f32 {vr(vKS+2*p,2)}, {vr(vKS+2*p,2)}, s[{sK1}:{sK1+1}]")
        for p in range(2): S(f"v_pk_mul_f32 {vr(vKC+2*p,2)}, {vr(vKC+2*p,2)}, s[{sK2}:{sK2+1}]")
        for p in range(2): S(f"v_pk_mul_f32 {vr(vKC+2*p,2)}, {vr(vKC+2*p,2)}, {vr(vKS+2*p,2)}")
    def sc_lo_reads(S):
        for i in range(4): S(f"ds_read_b128 {vr(vSc+4*i,4)}, v{vSR} offset:{i*16}")
    for k in range(npre, 16):
        A(f"s_waitcnt vmcnt({capn(capP, k)})"); A(item_text(k))
    ENTRY = 15 - max(capn(cap, 15), capn(capV, 15))
    assert 16 - ENTRY <= 16 - npre
    A(f"s_waitcnt vmcnt({16 - ENTRY})"); A("s_barrier")
    ktab_reads(A); vtab_reads(A)
    A("s_waitcnt lgkmcnt(0)")
    prep_v(A)
    pro = A

    def itstamp(S):
        if stamps and itst:
            S("s_memrealtime s[96:97]"); S("s_mov_b32 s98, m0"); S(f"s_add_u32 m0, s{sI}, s{sJ}"); S(f"v_accvgpr_read_b32 v{vTmp+2}, a255"); S("s_waitcnt lgkmcnt(0)")
            S(f"v_writelane_b32 v{vTmp+2}, s96, m0"); S("s_mov_b32 m0, s98"); S(f"v_accvgpr_write_b32 a255, v{vTmp+2}")

    def emit(B, items, place, seq0, done0, caps, name, at=None):
        out = []; ei = 0; done = done0; info = []; marks = {}
        def wait(n):
            nonlocal done
            if ei - n > done: out.append(f"    s_waitcnt vmcnt({n})"); done = ei - n; return True
            return False
        for i, x in enumerate(B.I):
            while ei < len(items) and place[ei] == i:
                if ei == at:
                    out.extend([f"    s_cmp_lg_u32 s{sW0}, 0", "    s_cbranch_scc0 L_noat", "    s_mov_b64 exec, 1", f"    v_mov_b32 v{vAt}, 1",
                                f"    buffer_atomic_add v{vAt}, off, {srd(sWS)}, s{sCoff} sc0", "    s_mov_b64 exec, -1", "L_noat:"])
                if caps: wait(capn(caps, ei))
                out.append("    " + items[ei]); ei += 1
            if "mark" in x:
                marks[(x["mark"], x["k"])] = (ei, done)
                if x["mark"] == "wait":
                    n = ei - 1 - seq0[x["k"]]; assert n >= 0
                    info.append((x["k"], n, wait(n)))
                elif x["mark"] == "smallwait": wait(ei - x["k"])
                elif x["mark"] == "postwait": out.append(f"    s_waitcnt vmcnt({AL})")
            else: out.append(x["t"])
        assert ei == len(items)
        print(name, "cost", sum(x["c"] for x in B.I), "waits", [(k, n) for k, n, w in info if w], "lead", min(n for k, n, w in info), file=sys.stderr)
        return out, marks
    class Pos:
        def __init__(self, B):
            self.I = B.I; self.cum = []; a = 0
            for x in B.I: self.cum.append(a); a += x["c"]
            self.tot = a
        def i(self, kind, k=None): return next(i for i, x in enumerate(self.I) if x.get("mark") == kind and x.get("k") == k)
        def c(self, kind, k=None): return self.cum[self.i(kind, k)]
        def at(self, t, lo):
            p = max(lo, next((i for i in range(len(self.I)) if self.cum[i] >= t), len(self.I) - 1))
            while not self.I[p]["ins"]: p += 1
            return p

    def deq(S, r, s, c): S(f"v_fma_mix_f32 v{r}, v{r}, v{s}, v{c} op_sel_hi:[1,0,0]")
    def kitems(B, n):
        for k in range(0, n, 2):
            r = vRing + 4 * k; t = vKP + 4 * ((k // 2) % 2)
            B.mark("wait", k + 1)
            for u in range(2):
                for j in range(4): deq(B, r + 4 * u + j, vKS + j, vKC + j)
            for u in range(4): B(f"v_cvt_pk_bf16_f32 v{t+u}, v{r+2*u}, v{r+2*u+1}")
            B.mark("free", k); B.mark("free", k + 1)
            B(f"ds_write2_b64 v{vKW + k//4}, {vr(t,2)}, {vr(t+2,2)} offset0:{(k%4)*KROW//8} offset1:{(k%4+1)*KROW//8}")
        B.mark("kdone")
    def mfma_loop(B, reads, mfmas, fill, start=0, ids=None, after=None):
        n = len(mfmas)
        if ids is None:
            ids = {}
            for i in range(PF): ids[i] = B(reads[i])
            for t in fill.get(-1, []): B(t)
        for i in range(start, n):
            if i % 2 == 0 or i == start: B.waitds(ids[min(n - 1, i | 1)])
            B(mfmas[i])
            if i + PF < n: ids[i + PF] = B(reads[i + PF])
            for t in fill.get(i, []): B(t)
            if after and i in after: after[i](dict(ids))
    def qk_lists(nblk):
        order = [(2 * bp + u, s4) for bp in range(nblk // 2) for s4 in range(4) for u in range(2)]
        rd = [f"ds_read_b128 {vr(vSt+4*(i%NST),4)}, v{vKR} offset:{LDS_K + b*16*KROW + s4*64}" for i, (b, s4) in enumerate(order)]
        mf = [f"v_mfma_f32_16x16x32_bf16 {vr(vS+4*b,4)}, {vr(vSt+4*(i%NST),4)}, {vr(vQ+4*s4,4)}, {vr(vNM,4) if s4 == 0 else vr(vS+4*b,4)}" for i, (b, s4) in enumerate(order)]
        return rd, mf
    def max_ops(bp):
        b = vS + 8 * bp
        if bp == 0: return [f"v_max3_f32 v{vMx}, v{b}, v{b+1}, v{b+2}", f"v_max3_f32 v{vMx}, v{vMx}, v{b+3}, v{b+4}", f"v_max3_f32 v{vMx}, v{vMx}, v{b+5}, v{b+6}", f"v_max_f32 v{vMx}, v{vMx}, v{b+7}"]
        return [f"v_max3_f32 v{vMx}, v{vMx}, v{b+2*u}, v{b+2*u+1}" for u in range(4)]
    def qk_fill(nblk):
        f = {}
        for bp in range(nblk // 2 - 1):
            last = bp + 2 == nblk // 2
            slots = (4, 5, 6, 7) if last else (3, 5, 7, 7)
            for s_, t in zip(slots, max_ops(bp)): f.setdefault(8 * (bp + 1) + s_, []).append(t)
        return f
    def check_max(B, nblk, tag, pre):
        for t in pre: B(t)
        if len(pre) < 6: B(f"s_nop {5 - len(pre)}")
        for t in max_ops(nblk // 2 - 1): B(t)
        B(f"v_cmp_lt_f32 vcc, s{sThr}, v{vMx}")
        B.lock = True
        B(f"s_cbranch_vccnz L_rescale{tag}")
        B.label(f"L_rescaled{tag}")
        B.lock = False
    exp_op = lambda i: f"v_exp_f32 v{vS+i}, v{vS+i}"
    sum_cvt = lambda i: [f"v_pk_add_f32 {vr(vL,2)}, {vr(vL,2)}, {vr(vS+2*i,2)}", f"v_cvt_pk_bf16_f32 v{vS+i}, v{vS+2*i}, v{vS+2*i+1}"]
    def vphase(B, k0, s, refill_hi):
        rg = lambda n8: vRing + 4 * (k0 + n8)
        for n8 in (0, 2):
            B.mark("wait", k0 + n8 + 1)
            for u in range(2):
                for j in range(4): deq(B, rg(n8 + u) + j, vSc + 2 * (n8 + u), vSc + 2 * (n8 + u) + 1)
            if refill_hi: B(f"ds_read_b128 {vr(vSc+4*(n8//2),4)}, v{vSR} offset:{64 + (n8//2)*16}")
            for j in range(4): B(f"v_cvt_pk_bf16_f32 v{vVP+4*j+n8//2}, v{rg(n8)+j}, v{rg(n8+1)+j}")
            B.mark("free", k0 + n8); B.mark("free", k0 + n8 + 1)
        B.mark("wait", k0 + 7)
        for j in range(4):
            for n8 in range(4, 8): deq(B, rg(n8) + j, vSc + 2 * n8, vSc + 2 * n8 + 1)
            for n8 in (4, 6): B(f"v_cvt_pk_bf16_f32 v{vVP+4*j+n8//2}, v{rg(n8)+j}, v{rg(n8+1)+j}")
            if j == 3:
                for n8 in range(4, 8): B.mark("free", k0 + n8)
            B(f"ds_write_b128 v{vVW}, {vr(vVP+4*j,4)} offset:{s*8*OS + j*JS}")
        if refill_hi:
            for u in (2, 3): B(f"ds_read_b128 {vr(vSc+4*u,4)}, v{vSR} offset:{64 + u*16}")
    def pv_lists(s):
        lst = [(2 * s + kk, db) for kk in range(2) for db in range(8)]
        rd = [f"ds_read_b128 {vr(vSt+4*(i%NST),4)}, v{vVR} offset:{ks*4*OS + (db//2)*128 + (db%2)*16}" for i, (ks, db) in enumerate(lst)]
        mf = [f"v_mfma_f32_16x16x32_bf16 {vr(vO+4*db,4)}, {vr(vSt+4*(i%NST),4)}, {vr(vS+4*ks,4)}, {vr(vO+4*db,4)}" for i, (ks, db) in enumerate(lst)]
        return rd, mf
    def ops_of(f):
        S = Stream(); f(S); return [x["t"].strip() for x in S.I if not x["t"].strip().startswith(";")]
    def spread(ops, first, per=1):
        f = {}
        for n, t in enumerate(ops): f.setdefault(first + n // per, []).append(t)
        return f
    def save_ops(i0):
        return [f"v_accvgpr_write_b32 a{17*i0+i}, v{vS+i}" for i in range(16)] + [f"v_accvgpr_write_b32 a{17*i0+16}, v{vNM}"]
    unit_items = [item_text(k) for k in range(16)]
    unit_seq = {k: k - 16 for k in range(16)}

    B = Stream()
    B.lock = True
    B.label("L_K")
    itstamp(B)
    B(f"s_add_u32 s{sI}, s{sI}, 1")
    B(f"s_cmp_lt_u32 s{sI}, {npf}"); B("s_cbranch_scc0 L_k2v")
    next_static(B); B(f"s_lshl_b32 s{sKsl}, s{sI}, 8")
    B(f"s_cmp_le_u32 s{sI}, s{sHk}"); B("s_cbranch_scc1 L_hookK")
    B.label("L_k1")
    B("s_waitcnt lgkmcnt(0)")
    B.lock = False
    B.mark("ready")
    prep_k(B)
    kitems(B, 16)
    B.c("park the previous tile's P while the K rows settle in LDS")
    B("s_branch L_save", 150)
    B.lock = True
    B.label("L_saved")
    B.lock = False
    B("s_waitcnt lgkmcnt(0)"); B("s_barrier", 20)
    B.c("S^T - m = K Q^T - m (log2 units)")
    rd, mf = qk_lists(8)
    mfma_loop(B, rd, mf, qk_fill(8))
    B("s_barrier", 10)
    check_max(B, 8, "K", ops_of(ktab_reads))
    for half in range(2):
        for i in range(16): B(exp_op(16 * half + i))
        for i in range(8):
            for t in sum_cvt(8 * half + i): B(t)
    B.mark("allissued")
    B.lock = True
    B(f"s_cmp_lt_u32 s{sI}, {npf}"); B("s_cbranch_scc1 L_K")
    sc_lo_reads(B)
    for t in save_ops(npf - 1): B(t)
    B.lock = False
    P = Pos(B); c0 = P.c("free", 0); c1 = P.c("kdone"); c2 = P.c("allissued")
    tg = [c0 + (c1 - c0) * k / (nK1 - 1) for k in range(nK1)] + [c1 + (c2 - c1) * (k + 1) / (16 - nK1) - 8 for k in range(16 - nK1)]
    pl = []
    for k in range(16): pl.append(P.at(tg[k], max(pl[-1] if pl else 0, P.i("free", k) + 1))); assert pl[-1] <= P.i("allissued")
    kbody, _ = emit(B, unit_items, pl, unit_seq, ENTRY - 16, cap, "K")
    print("  K issue", [P.cum[p] for p in pl], file=sys.stderr)

    B = Stream()
    B.lock = True
    B.label("L_V")
    itstamp(B)
    B(f"s_add_u32 s{sJ}, s{sJ}, 1")
    B(f"s_cmp_lt_u32 s{sJ}, {npf}"); B("s_cbranch_scc0 L_v2h")
    next_static(B); B(f"s_lshl_b32 s{sVsl}, s{sJ}, 8")
    B.label("L_v1")
    B("s_waitcnt lgkmcnt(0)")
    B.lock = False
    B.mark("ready")
    vphase(B, 0, 0, True)
    vtab_reads(B)
    B.c("fetch this tile's P back while the V rows settle in LDS")
    B("s_branch L_restore", 150)
    B.lock = True
    B.label("L_restored")
    B.lock = False
    B("s_waitcnt lgkmcnt(0)"); B("s_barrier", 20)
    rd, mf = pv_lists(0)
    pvv = ops_of(prep_v)
    mfma_loop(B, rd, mf, {-1: pvv[:4], 9: pvv[4:]})
    vphase(B, 8, 1, False)
    B.mark("smallwait", 0)
    B("s_waitcnt lgkmcnt(0)"); B("s_barrier")
    rd, mf = pv_lists(1)
    mfma_loop(B, rd, mf, spread(ops_of(sc_lo_reads), 8))
    B.mark("allissued")
    B.lock = True
    B(f"s_cmp_lt_u32 s{sJ}, {npf}"); B("s_cbranch_scc1 L_V")
    B.c("first H unit: all its rows were requested by the last V body, and its successor's ticket too")
    ktab_reads(B); vtab_reads(B)
    itstamp(B)
    if stamps: B(f"s_add_u32 s{sI}, s{sI}, 1")
    B("s_waitcnt lgkmcnt(0)")
    prep_v(B); sc_lo_reads(B); prep_k(B)
    assert ENTRY >= 8
    F_ = Stream(); kitems(F_, 8)
    for x in F_.I:
        if "mark" not in x: B(x["t"].strip(), 0)
    B(f"s_cmp_lg_u32 s{sW0}, 0"); B("s_cbranch_scc1 L_post"); B("s_branch L_nopost")
    B.lock = False
    P = Pos(B); c0 = P.c("free", 0); c1 = c0 + (P.c("allissued") - c0) * vtail
    pl = []
    for k in range(16): pl.append(P.at(c0 + (c1 - c0) * k / 15 - 8, max(pl[-1] if pl else 0, P.i("free", k) + 1))); assert pl[-1] <= P.i("allissued")
    vbody, _ = emit(B, unit_items, pl, unit_seq, ENTRY - 16, capV, "V")
    print("  V issue", [P.cum[p] for p in pl], file=sys.stderr)

    def h_rest(B, tag, ids, fill):
        rd, mf = qk_lists(4)
        f = qk_fill(4)
        for i, t in fill.items(): f[i] = t + f.get(i, [])
        mfma_loop(B, rd, mf, f, start=2, ids=ids, after=({max(fill): lambda ids: B.mark("decided")} if fill else None))
        B.mark("qkdone")
        check_max(B, 4, tag, [])
        for i in range(8): B(exp_op(i))
    def h_tail(B, extra, small):
        if hst == 1: B("s_memrealtime s[92:93]")
        if hst == 2: B("s_memrealtime s[88:89]")
        vphase(B, 8, 0, False)
        for i in range(8, 16): B(exp_op(i))
        if small is not None: B.mark("smallwait", small)
        if hst == 2: B("s_memrealtime s[90:91]")
        B("s_waitcnt lgkmcnt(0)"); B("s_barrier", 20)
        rd, mf = pv_lists(0)
        f = {-1: [t for i in range(8) for t in sum_cvt(i)]}
        f.update(extra if isinstance(extra, dict) else spread(extra, 8))
        mfma_loop(B, rd, mf, f)
    nv = 8 - hp
    B = Stream()
    B.label("L_H")
    itstamp(B)
    if stamps: B(f"s_add_u32 s{sI}, s{sI}, 1")
    if hst == 1: B("s_memrealtime s[88:89]")
    B.mark("start")
    B("s_waitcnt lgkmcnt(0)")
    prep_v(B); sc_lo_reads(B); prep_k(B)
    kitems(B, 8)
    B(f"s_cmp_lg_u32 s{sW0}, 0")
    B.lock = True
    B("s_cbranch_scc0 L_nopost")
    B.mark("postwait")
    B.label("L_post")
    B(f"ds_write_b32 v{vL4}, v{vAt} offset:{LDS_MB}")
    B.label("L_nopost")
    if hst == 1: B("s_memrealtime s[90:91]")
    B("s_waitcnt lgkmcnt(0)"); B("s_barrier")
    B(f"ds_read_b32 v{vTmp}, v{vMb}")
    rd, mf = qk_lists(4)
    ids = {}
    for i in range(PF): ids[i] = B(rd[i])
    B.waitds(ids[1])
    B.c("next half group from the pair's ticket counter")
    B(mf[0]); ids[8] = B(rd[8]); B(f"v_readfirstlane_b32 s{sG}, v{vTmp}")
    B(mf[1]); ids[9] = B(rd[9])
    B("s_nop 0")
    B(f"s_add_u32 s{sG}, s{sG}, 4")
    B(f"s_cmp_lt_u32 s{sG}, {NH}"); B("s_cbranch_scc0 L_nomore")
    ids_end = dict(ids); nds_end = B.nds
    B.lock = False
    h_rest(B, "H", ids, spread(half_ops(), 2, 3))
    B.mark("vstart")
    h_tail(B, ops_of(ktab_reads) + ops_of(vtab_reads), nv)
    B.mark("allissued")
    B.lock = True
    B("s_branch L_H")
    B.lock = False
    P = Pos(B)
    pl = []
    for j in range(nv):
        if j < hv: pl.append(P.at(P.c("start") + (P.c("wait", 1) - P.c("start")) * j / hv, P.i("start")))
        else: pl.append(P.i("wait", min(7, 2 * (j - hv) + 3)))
    c0 = P.c("decided"); c1 = c0 + (P.c("wait", 15) - c0) * hk
    for j in range(8): pl.append(P.at(c0 + (c1 - c0) * j / 7.5, max(pl[-1] if pl else 0, P.i("decided") + 1)))
    c2 = P.c("free", 9); c3 = c2 + (P.c("allissued") - c2) * hq
    for j in range(hp): pl.append(P.at(c2 + (c3 - c2) * j / hp, max(pl[-1], P.i("free", 8 + j) + 1))); assert pl[-1] <= P.i("allissued")
    hitems = [item_text(8 + j) for j in range(hp, 8)] + [item_text(k) for k in range(8)] + [item_text(8 + j) for j in range(hp)]
    hseq = {k: k - 8 - hp for k in range(16)}
    hbody, hm = emit(B, hitems, pl, hseq, -100, capH, "H", at=(nv - AL) % 16)
    assert hm[("postwait", None)][0] == nv
    print("  H issue", [P.cum[p] for p in pl], file=sys.stderr)

    E = Stream()
    def stampE(i):
        if stamps and not (hst == 1 and i in (2, 3, 4)) and not (hst == 2 and i in (2, 3)): E(f"s_memrealtime s[{84+2*i}:{85+2*i}]")
    def lsum():
        stampE(1)
        if stamps: E("s_mov_b32 s99, 0")
    lops = [f"v_add_f32 v{vHd+1}, v{vL}, v{vL+1}"]
    for sw in ("v_permlane32_swap_b32", "v_permlane16_swap_b32"):
        lops += [f"v_mov_b32 v{vTmp+1}, v{vHd+1}", f"{sw} v{vTmp+1}, v{vHd+1}", f"v_add_f32 v{vHd+1}, v{vHd+1}, v{vTmp+1}"]
    lfill = {1 + 2 * n: [t] for n, t in enumerate(lops)}
    def tail(tag, loads, fill):
        T_ = Stream(); T_.nds = nds_end
        h_rest(T_, tag, dict(ids_end), fill)
        h_tail(T_, lfill, None)
        Pt = Pos(T_); pl = []
        for n in range(len(loads)):
            lo = Pt.i("decided") + 1 if n < 10 else Pt.i("qkdone") + 1
            pl.append(Pt.at(Pt.tot * (ct0 + (ctspan - ct0) * n / (len(loads) - 1)), max(lo, pl[-1] if pl else 0)))
        out, _ = emit(T_, loads, pl, {k: k - 16 for k in range(16)}, -100, None, "tail")
        print("  tail issue", [Pt.cum[p] for p in pl], file=sys.stderr)
        for t in out: E.I.append(dict(t=t, c=0, ins=True))
    E.c("the pair's pool is empty: finish the last unit without further streaming")
    E.label("L_nomore")
    E(f"s_cmp_eq_u32 s{sG}, {NH+3}"); E("s_cbranch_scc1 L_ctail")
    if stamps: E("s_mov_b32 s100, 1")
    tail("E", [], spread(ops_of(own_slot), 3))
    lsum()
    E.c("not the last workgroup of this pair: hand the partial over; header = (-m, l, checksum), none equal to the empty mark")
    for q in range(4):
        for i in range(4 * q, 4 * q + 4): E(f"v_cvt_pk_bf16_f32 v{vSt+i}, v{vO+2*i}, v{vO+2*i+1}")
        E(f"buffer_store_dwordx4 {vr(vSt+4*q,4)}, v{vLin}, {srd(sWS)}, s{sT} offen offset:{q*1024} {pubf}")
    dots = lambda r: [f"v_dot2_u32_u16 v{vCk}, v{r+i}, s{sCw + (i + i//4) % 4}, {'0' if i == 0 else 'v%d' % vCk}" for i in range(16)]
    for t in dots(vSt): E(t)
    E(f"v_min_u32 v{vHd}, -2, v{vNM}"); E(f"v_min_u32 v{vHd+1}, -2, v{vHd+1}"); E("s_nop 0"); E(f"v_min_u32 v{vCk}, -2, v{vCk}")
    E(f"buffer_store_dwordx4 {vr(vHd,4)}, v{vLin}, {srd(sWS)}, s{sT2} offen {pubf}")
    if stamps:
        for i in (2, 3, 4): stampE(i)
        E("s_branch L_done")
    else:
        E("s_endpgm")
    ml = lambda x: (vKP, vKP + 4, vKS)[x - 1]
    dat = lambda x: (vRing, vRing + 16, vQ)[x - 1]
    bb = vKSr; u0 = vVP
    E.c("fourth workgroup of the pair to run dry: fetch the other three partials while finishing the last unit")
    E.label("L_ctail")
    if stamps: E("s_mov_b32 s100, 2")
    def slots(S):
        S(f"s_lshl2_add_u32 s{sG}, s{sPair}, s{sWave}"); S(f"s_lshl_b32 s{sG}, s{sG}, 15"); S(f"s_add_u32 s{sG}, s{sG}, {WS_SLOT}")
        for x in range(1, 4):
            S(f"s_xor_b32 s{sT}, s{sSplit}, {x}"); S(f"s_lshl_b32 s{sT}, s{sT}, 13")
            S(f"s_add_u32 s{sPo+x-1}, s{sG}, s{sT}"); S(f"s_add_u32 s{sPo+2+x}, s{sPo+x-1}, 4096")
    pl_ = []
    for x in range(1, 4):
        pl_.append(f"buffer_load_dwordx4 {vr(ml(x),4)}, v{vLin}, {srd(sWS)}, s{sPo+2+x} offen sc0 sc1")
        pl_ += [f"buffer_load_dwordx4 {vr(dat(x)+4*q,4)}, v{vLin}, {srd(sWS)}, s{sPo+x-1} offen offset:{q*1024} sc0 sc1" for q in range(4)]
    tail("C", pl_, spread(ops_of(slots), 2, 3))
    lsum()
    E.c("fold them in, re-reading those that have not fully arrived")
    E(f"s_mov_b32 s{sPend}, 7"); E(f"s_mov_b32 s{sThr}, {hex(f32bits(TM))}")
    E.label("L_round")
    for x in range(1, 4):
        E(f"s_bitcmp1_b32 s{sPend}, {x-1}"); E(f"s_cbranch_scc0 L_fold{x}")
        E(f"s_waitcnt vmcnt({5*(3-x)})")
        E(f"v_sub_f32 v{bb}, v{vNM}, v{ml(x)}")
        for t in dots(dat(x)): E(t)
        E(f"v_max_u32 v{vTmp+1}, v{ml(x)}, v{ml(x)+1}"); E(f"v_cmp_eq_u32 s[4:5], -1, v{vTmp+1}")
        E(f"v_cmp_lt_f32 s[6:7], s{sThr}, v{bb}")
        E(f"v_min_u32 v{vCk}, -2, v{vCk}"); E(f"v_cmp_ne_u32 vcc, v{vCk}, v{ml(x)+2}")
        E("s_or_b64 vcc, vcc, s[4:5]"); E(f"s_cbranch_scc1 L_miss{x}")
        E(f"s_bitset0_b32 s{sPend}, {x-1}")
        E(f"s_cmp_lg_u64 s[6:7], 0"); E(f"s_cbranch_scc1 L_far{x}")
        E.label(f"L_near{x}")
        E(f"v_exp_f32 v{bb}, v{bb}")
        for q in range(2):
            r = dat(x) + 8 * q
            for i in range(8): E(f"v_lshlrev_b32 v{u0+2*i}, 16, v{r+i}")
            for i in range(8): E(f"v_and_b32 v{u0+2*i+1}, 0xffff0000, v{r+i}")
            for i in range(8):
                d = vO + 2 * (8 * q + i)
                E(f"v_pk_fma_f32 {vr(d,2)}, {vr(u0+2*i,2)}, {vr(bb,2)}, {vr(d,2)} op_sel_hi:[1,0,1]")
        E(f"v_fmac_f32 v{vHd+1}, v{ml(x)+1}, v{bb}")
        E.label(f"L_fold{x}")
    if stamps: E("s_add_u32 s99, s99, 1")
    E(f"s_cmp_lg_u32 s{sPend}, 0"); E("s_cbranch_scc1 L_again")
    E.label("L_merged")
    for i in (2, 3, 4): stampE(i)
    E(f"v_rcp_f32 v{bb}, v{vHd+1}")
    E(f"v_and_b32 v{vTmp}, 15, v{vLane}"); E(f"v_lshrrev_b32 v{vTmp+1}, 4, v{vLane}")
    E(f"v_lshlrev_b32 v{vTmp}, 8, v{vTmp}"); E(f"v_lshl_add_u32 v{vTmp}, v{vTmp+1}, 4, v{vTmp}")
    E(f"s_lshl_b32 s{sT}, s{sWave}, 12")
    for u in range(4):
        for i in range(4 * u, 4 * u + 4): E(f"v_pk_mul_f32 {vr(vO+2*i,2)}, {vr(vO+2*i,2)}, {vr(bb,2)} op_sel_hi:[1,0]")
        for i in range(4 * u, 4 * u + 4): E(f"v_cvt_pk_bf16_f32 v{vS+i}, v{vO+2*i}, v{vO+2*i+1}")
        E(f"buffer_store_dwordx4 {vr(vS+4*u,4)}, v{vTmp}, {srd(sOUT)}, s{sT} offen offset:{u*64} {outf}")
    E.label("L_done")
    if stamps:
        E("s_waitcnt vmcnt(0)")
        stampE(5)
        E(f"s_lshl_b32 s{sT}, s2, 2"); E(f"s_add_u32 s{sT}, s{sT}, s{sWave}"); E(f"s_lshl_b32 s{sT2}, s{sT}, 4")
        E(f"s_lshl_b32 s4, s{sT}, 8"); E("s_add_u32 s4, s4, 0x22000000")
        E(f"s_add_u32 s{sT2}, s{sT2}, 0x20000000")
        E(f"s_lshl_b32 s{sT}, s{sT}, 6"); E(f"s_add_u32 s{sT}, s{sT}, 0x21000000")
        E("s_waitcnt lgkmcnt(0)")
        E(f"v_accvgpr_read_b32 v60, a255")
        for i in range(12): E(f"v_mov_b32 v{16+i}, s{84+i}")
        E(f"v_mov_b32 v28, s{sI}"); E("s_getreg_b32 s5, hwreg(HW_REG_XCC_ID)"); E("v_mov_b32 v29, s5"); E(f"v_mov_b32 v30, s100"); E("v_mov_b32 v31, s99")
        E("v_mov_b32 v32, s84"); E("v_mov_b32 v33, s85"); E("v_mov_b32 v34, s94"); E("v_mov_b32 v35, s95")
        E(f"buffer_store_dword v60, v{vL4}, {srd(sWS)}, s4 offen sc0 sc1")
        E("s_mov_b64 exec, 1")
        E(f"buffer_store_dwordx4 v[32:35], off, {srd(sWS)}, s{sT2} sc0 sc1")
        for i in range(4): E(f"buffer_store_dwordx4 v[{16+4*i}:{19+4*i}], off, {srd(sWS)}, s{sT} offset:{16*i} sc0 sc1")
    E.label("L_end")
    E("s_endpgm")

    E.label("L_again")
    E("s_waitcnt vmcnt(0)")
    E(f"s_sub_u32 s{sSpin}, s{sSpin}, 1"); E("s_cbranch_scc0 L_round"); E("s_branch L_merged")
    for x in range(1, 4):
        E.label(f"L_miss{x}")
        for t in pl_[5*(x-1):5*x]: E(t)
        E(f"s_branch L_fold{x}")
    def scale_O(r):
        for i in range(16): E(f"v_pk_mul_f32 {vr(vO+2*i,2)}, {vr(vO+2*i,2)}, {vr(r,2)} op_sel_hi:[1,0]")
    for x in range(1, 4):
        E.label(f"L_far{x}")
        E.c("that partial's reference max is far above ours: move ours up first")
        E(f"v_max_f32 v{vMx}, 0, v{bb}"); E(f"v_sub_f32 v{vNM}, v{vNM}, v{vMx}"); E(f"v_sub_f32 v{bb}, v{bb}, v{vMx}")
        E(f"v_exp_f32 v{vTmp}, -v{vMx}"); E("s_nop 0"); E(f"v_mul_f32 v{vHd+1}, v{vHd+1}, v{vTmp}")
        scale_O(vTmp)
        E(f"s_branch L_near{x}")

    E.label("L_k2v")
    E(f"s_lshl_b32 s{sO}, s{sSplit}, 20"); set_offs(E); set_base(E, sVb)
    E(f"s_cmp_lg_u32 s{sW0}, 0"); E("s_cbranch_scc0 L_k1")
    E(f"buffer_load_dword v{vFl}, off, {srd(sDBG)}, s{sDoff} sc0 sc1")
    E("s_branch L_k1")

    E.c("last V unit: the next unit is the first H unit; wave 0 checks that the ticket counter is live and takes a ticket")
    E.label("L_v2h")
    E(f"s_cmp_lg_u32 s{sW0}, 0"); E("s_cbranch_scc0 L_v2h1")
    E("s_mov_b64 exec, 1")
    E.label("L_flag")
    E(f"v_readfirstlane_b32 s{sT}, v{vFl}"); E(f"s_sub_u32 s{sSpin}, s{sSpin}, 1"); E("s_cbranch_scc1 L_live"); E("s_nop 2")
    E(f"s_bitcmp1_b32 s{sT}, 8"); E("s_cbranch_scc1 L_live")
    E(f"v_mov_b32 v{vFl}, 0")
    E(f"buffer_atomic_or v{vFl}, off, {srd(sDBG)}, s{sDoff} sc0")
    E("s_waitcnt vmcnt(0)"); E("s_branch L_flag")
    E.label("L_live")
    E(f"v_mov_b32 v{vAt}, 1")
    E(f"buffer_atomic_add v{vAt}, off, {srd(sWS)}, s{sCoff} sc0")
    E("s_mov_b64 exec, -1")
    E.label("L_v2h1")
    set_base(E, sKb, sVb)
    E(f"s_mov_b32 s{sKsl}, {DSLOT}"); E(f"s_mov_b32 s{sG}, s{sSplit}")
    for t in half_ops(): E(t)
    E("s_branch L_v1")

    def tree(lo, hi, reg, pre, leaf):
        if lo == hi: leaf(lo); return
        mid = (lo + hi + 1) // 2
        E(f"s_cmp_ge_u32 s{reg}, {mid}"); E(f"s_cbranch_scc1 {pre}{mid}_{hi}")
        tree(lo, mid - 1, reg, pre, leaf)
        E.label(f"{pre}{mid}_{hi}")
        tree(mid, hi, reg, pre, leaf)
    E.label("L_restore")
    def rleaf(j1):
        b = 17 * (j1 - 1)
        E(f"v_accvgpr_read_b32 v{vMx}, a{b+16}")
        for i in range(16): E(f"v_accvgpr_read_b32 v{vS+i}, a{b+i}")
        E(f"v_cmp_neq_f32 vcc, v{vMx}, v{vMO}"); E("s_cbranch_vccz L_restored"); E("s_branch L_oldref")
    tree(1, npf, sJ, "L_r", rleaf)
    E.c("this tile's P used a newer reference max than O holds: bring O up to it")
    E.label("L_oldref")
    E(f"v_sub_f32 v{vTmp}, v{vMx}, v{vMO}"); E(f"v_exp_f32 v{vTmp}, v{vTmp}"); E(f"v_mov_b32 v{vMO}, v{vMx}")
    scale_O(vTmp)
    E("s_branch L_restored")
    E.label("L_save")
    def sleaf(i1):
        if i1 >= 2:
            for t in save_ops(i1 - 2): E(t)
        E("s_branch L_saved")
    tree(1, npf, sI, "L_s", sleaf)

    E.c("rare path: the running max rose past the threshold -> move the reference to the true running max")
    for tag, n in (("K", 32), ("H", 16), ("E", 16), ("C", 16)):
        E.label(f"L_rescale{tag}")
        for sw in ("v_permlane32_swap_b32", "v_permlane16_swap_b32"):
            E(f"v_mov_b32 v{vTmp}, v{vMx}"); E("s_nop 1"); E(f"{sw} v{vTmp}, v{vMx}"); E("s_nop 1"); E(f"v_max_f32 v{vMx}, v{vMx}, v{vTmp}")
        E(f"v_max_f32 v{vTmp}, 0, v{vMx}"); E(f"v_max_f32 v{vT2}, s{sFlo}, v{vMx}")
        E(f"v_exp_f32 v{vTmp}, -v{vTmp}")
        E(f"s_mov_b32 s{sThr}, {hex(f32bits(T))}"); E(f"s_mov_b32 s{sFlo}, 0")
        for r in [vNM, vNM + 2] + [vS + i for i in range(0, n, 2)]:
            E(f"v_pk_add_f32 {vr(r,2)}, {vr(r,2)}, {vr(vT2,2)} op_sel_hi:[1,0] neg_lo:[0,1] neg_hi:[0,1]")
        E(f"v_pk_mul_f32 {vr(vL,2)}, {vr(vL,2)}, {vr(vTmp,2)} op_sel_hi:[1,0]")
        if tag != "K": scale_O(vTmp)
        E(f"s_branch L_rescaled{tag}")

    E.c("wave 0 of the pair's first workgroup zeroes the ticket counter in d_ws, then raises a flag in d_debug")
    E.label("L_hookK")
    E(f"s_cmp_eq_u32 s{sI}, 1"); E("s_cbranch_scc1 L_hk1")
    E(f"s_cmp_eq_u32 s{sI}, 3"); E("s_cbranch_scc0 L_k1")
    E("s_mov_b64 exec, 1"); E(f"v_mov_b32 v{vFl}, {FLAG}")
    E(f"buffer_atomic_or v{vFl}, off, {srd(sDBG)}, s{sDoff}")
    E("s_mov_b64 exec, -1"); E("s_branch L_k1")
    E.label("L_hk1")
    E(f"v_readfirstlane_b32 s{sT}, v{vFl}"); E("s_nop 3")
    E(f"s_cmp_eq_u32 s{sT}, 0"); E(f"s_cselect_b32 s{sHk}, 3, 0"); E("s_cbranch_scc0 L_k1")
    E("s_mov_b64 exec, 1")
    E(f"buffer_atomic_swap v{vFl}, off, {srd(sWS)}, s{sCoff} sc0")
    E("s_mov_b64 exec, -1"); E("s_branch L_k1")

    code = pro.text() + kbody + vbody + hbody + [x["t"] for x in E.I if "mark" not in x] + ["L_codeend:"]
    if align: code = align_pass(code)
    hazard_check(code)
    L = [HDR.rstrip(), f"; @launch grid=(256,1,1) block=(256,1,1) lds={LDS_TOTAL}", '.amdgcn_target "amdgcn-amd-amdhsa--gfx950"',
         ".text", f".globl {NAME}_kernel", ".p2align 8", f".type {NAME}_kernel,@function", f"{NAME}_kernel:"]
    L += code
    L += ['.section .rodata,"a"', ".p2align 6", f".amdhsa_kernel {NAME}_kernel",
          "  .amdhsa_next_free_vgpr 512", "  .amdhsa_next_free_sgpr 102", "  .amdhsa_accum_offset 256",
          "  .amdhsa_group_segment_fixed_size 0", "  .amdhsa_kernarg_size 80", "  .amdhsa_user_sgpr_count 2",
          "  .amdhsa_user_sgpr_kernarg_segment_ptr 1", "  .amdhsa_system_sgpr_workgroup_id_x 1",
          "  .amdhsa_float_denorm_mode_32 3", "  .amdhsa_float_denorm_mode_16_64 3", ".end_amdhsa_kernel"]
    open(path, "w").write("\n".join(L) + "\n")

if __name__ == "__main__":
    import argparse
    ap = argparse.ArgumentParser()
    ap.add_argument("out")
    for n, t, d in (("AL", int, 8), ("np", int, 14), ("cs", int, 8), ("nK1", int, 8), ("vtail", float, 1.0), ("T", float, 8.0), ("TM", float, 32.0),
                    ("pfcode", int, 4), ("ct", float, 0.95), ("ct0", float, 0.3), ("hv", int, 4), ("hk", float, 0.9), ("hp", int, 4), ("hq", float, 0.9), ("npre", int, 6), ("hst", int, 0),
                    ("nt", str, "nt"), ("q", str, ""), ("smf", str, "nt"), ("outf", str, "sc0 sc1"), ("pubf", str, "sc0 sc1"),
                    ("cap", str, "556"), ("capV", str, "5556"), ("capH", str, None), ("capP", str, "8")):
        ap.add_argument("--" + n, type=t, default=d)
    ap.add_argument("--mix", type=lambda x: int(x, 0), default=0x31031031)
    for n in ("stamps", "it", "dry", "noalign"): ap.add_argument("--" + n, action="store_true")
    a = ap.parse_args()
    gen(a.out, AL=a.AL, npf=a.np, stamps=a.stamps, nt=a.nt, smf=a.smf, qflag=a.q, cstride=a.cs, T=a.T, TM=a.TM, mix=a.mix, nK1=a.nK1, vtail=a.vtail,
        itst=a.it, outf=a.outf, pubf=a.pubf, cap=a.cap, capV=a.capV, capH=a.capH, capP=a.capP, pfcode=a.pfcode, ctspan=a.ct, ct0=a.ct0,
        hv=a.hv, hk=a.hk, hp=a.hp, hq=a.hq, npre=a.npre, dry=a.dry, hst=a.hst, align=not a.noalign)
```

```python
import sys, struct, math, re
NAME = "standalone__kv_cache_quant_int4_int2_kv_with_per_channel_or_per_token_scales__sampling"
HDR = open("cdna_kernels/" + NAME + ".s.ref").read().split("; Override launch")[0]

def f32bits(x):
    return struct.unpack("<I", struct.pack("<f", x))[0]

def cost_of(s):
    op = s.split()[0]
    if op.startswith("v_mfma"): return 8
    if op in ("v_exp_f32", "v_rcp_f32"): return 8
    if op in ("ds_write_b128", "ds_write2_b64"): return 28
    if op.startswith("ds_write"): return 20
    if op == "s_barrier": return 70
    if op == "s_nop": return 4 * (int(s.split()[1]) + 1)
    return 4

class Stream:
    def __init__(self): self.I = []; self.lock = False; self.nds = 0
    def __call__(self, s, cost=None):
        self.I.append(dict(t="    " + s, c=(cost_of(s) if cost is None else cost), ins=not self.lock))
        if s.startswith("ds_"): self.nds += 1
        return self.nds
    def waitds(self, i):
        n = self.nds - i; assert 0 <= n <= 15
        self(f"s_waitcnt lgkmcnt({n})")
    def label(self, s): self.I.append(dict(t=s + ":", c=0, ins=not self.lock))
    def c(self, s): self.I.append(dict(t="    ; " + s, c=0, ins=not self.lock))
    def mark(self, kind, k=None): self.I.append(dict(mark=kind, k=k, c=0, ins=not self.lock))
    def text(self): return [x["t"] for x in self.I]

INLINE = re.compile(r"^-?(\d+|0x[0-9a-f]+)$")
def has_literal(ops):
    for o in ops:
        if INLINE.match(o):
            v = int(o, 0)
            if not -16 <= v <= 64 and (v & 0x7fffffff) not in (0x3f000000, 0x3f800000, 0x40000000, 0x40800000): return True
        elif re.match(r"^L_\w+-L_\w+$", o): return True
    return False
VOP12 = ("v_mov_b32", "v_exp_f32", "v_rcp_f32", "v_add_f32", "v_sub_f32", "v_mul_f32", "v_max_f32", "v_lshlrev_b32", "v_lshrrev_b32", "v_and_b32",
         "v_xor_b32", "v_add_u32", "v_mul_u32_u24", "v_min_u32", "v_max_u32", "v_fmac_f32", "v_cvt_f32_u32")
def isize(line):
    s = line.split(";")[0].strip()
    if not s or s.endswith(":") or s.startswith("."): return 0, None
    op, _, rest = s.partition(" ")
    ops = [o.strip() for o in rest.split(",")] if rest else []
    if op.startswith(("s_load", "s_memrealtime", "ds_", "buffer_")): return 8, None
    if op.startswith("s_"):
        if op in ("s_waitcnt", "s_nop", "s_barrier", "s_endpgm", "s_branch", "s_getreg_b32") or op.startswith("s_cbranch"): return 4, None
        return (8 if has_literal(ops) else 4), None
    if op in ("v_readfirstlane_b32", "v_permlane32_swap_b32", "v_permlane16_swap_b32"): return 4, None
    if op.startswith("v_cmp"):
        return (4 + 4 * has_literal(ops[1:]) if ops[0] == "vcc" else 8), None
    if op in VOP12:
        if any(o.startswith("-v") for o in ops): return 8, "valu"
        if has_literal(ops[1:]): return 8, "valu"
        return 4, "grow"
    if op.startswith("v_mfma"): return 8, None
    return 8, "valu"
def align_pass(L):
    out = []; par = 0; last = None
    for i, line in enumerate(L):
        sz, kind = isize(line)
        if sz == 8 and par and last is not None:
            j = last; op = out[j].split()[0]
            out[j] = out[j].replace(op, op + "_e64", 1); par = 0
        elif sz == 8 and par:
            n = 0
            for l2 in L[i:]:
                s2, k2 = isize(l2)
                if s2 == 4: break
                n += k2 == "valu"
            if n >= 7: out.append("    s_nop 0"); par = 0
        if sz == 8: last = None
        if sz == 4:
            par ^= 1
            if kind == "grow": last = len(out)
        out.append(line)
    return out

def regs_of(tok):
    m = re.match(r"^-?v\[(\d+):(\d+)\]$", tok)
    if m: return set(range(int(m.group(1)), int(m.group(2)) + 1))
    m = re.match(r"^-?v(\d+)$", tok)
    return {int(m.group(1))} if m else set()
def hazard_check(L):
    hist = []
    for line in L:
        s = line.split(";")[0].strip()
        if not s or s.endswith(":") or s.startswith("."): continue
        op, _, rest = s.partition(" ")
        toks = [o.strip().split(" ")[0] for o in rest.split(",")] if rest else []
        if op in ("s_branch", "s_endpgm"): hist = []; continue
        st = int(toks[0]) + 1 if op == "s_nop" else 1
        allr = [regs_of(t) for t in toks]
        isv = op.startswith("v_"); mf = op.startswith("v_mfma")
        store = op.startswith(("ds_write", "buffer_store", "buffer_atomic"))
        dst = set() if (store or not allr or op.startswith(("v_cmp", "v_readfirstlane"))) else allr[0]
        src = set().union(*(allr if store or op.startswith(("v_cmp", "v_permlane", "v_fmac")) else allr[1:])) if allr else set()
        if op.startswith("v_permlane"): dst = src
        d = 0
        for (pop, pdst, psrcC, pst) in reversed(hist):
            need = 0
            if pop.startswith("v_mfma"):
                if mf:
                    if pdst & (allr[1] | allr[2]): need = 8
                    elif pdst & allr[3] and pdst != allr[3]: need = 6
                elif pdst & (src | dst): need = 8
                elif isv and psrcC & dst: need = 3
            elif pop.startswith("v_"):
                if mf and pdst & src: need = 2
                if op.startswith("v_permlane") and pdst & src: need = 2
                if op == "v_readfirstlane_b32" and pdst & src: need = 1
                if pop.split("_e64")[0] in ("v_exp_f32", "v_rcp_f32") and isv and op.split("_e64")[0] not in ("v_exp_f32", "v_rcp_f32") and pdst & src: need = max(need, 1)
                if pop.startswith("v_dot") and op != pop and pdst & (src | dst): need = 3
            elif pop.startswith("buffer_store_dwordx4") and isv and psrcC & dst: need = 2
            assert d >= need, f"hazard: {pop} -> {s} distance {d} < {need}"
            d += pst
            if d >= 8: break
        hist.append((op, dst, (allr[3] if mf else (allr[0] if op.startswith("buffer_store") else set())), st))

def gen(path, AL=8, npf=14, stamps=False, nt="nt", smf="nt", qflag="", cstride=8, T=8.0, TM=32.0, mix=0x31031031, nK1=9, vtail=1.0,
        itst=False, outf="sc0 sc1", pubf="sc0 sc1", cap="56", capV="556", capH=None, capP="8", pfcode=4, ctspan=0.95, ct0=0.15,
        hv=4, hk=0.9, hp=4, hq=0.9, npre=6, dry=False, hst=0, align=True, nocomp=0, abl=0, capC=None, uth=4, pollmax=False, grp=0, flagf='', capF='7', capS='45', tabs=None, ms=(5, 11), shards=4, shb=3, cols=None, ldf='sc0 sc1', wb=False, wto=0, nolocal=False, pb=100, jr=3, pa=1, pw=1, noearly=0):
    npf = 16
    capn = lambda c, k: int(c[k % len(c)], 16) - 1
    KROW = 288; JS = 576; OS = 2320
    TABW = 16 * 256
    LDS_MB = 0; LDS_SC = 256; LDS_TAB = 1536; LDS_K = LDS_TAB + 4 * TABW; LDS_V = LDS_K + 128 * KROW
    LDS_TOTAL = LDS_V + 16 * OS
    assert LDS_K % 256 == 0 and LDS_K + 128 * KROW < 65536 and LDS_TAB % 512 == 0 and TABW % 512 == 0
    WS_SLOT = 1 << 20; WS_CTR = 16 << 20; FLAG = 0x100
    SPIN = 1 << 20
    PF = 8
    vLane, vOff, vMb, vKR, vSW, vSR, vVW, vVR, vTK, vTV, vL4, vLin = range(12)
    vHd = 12
    vCk, vFl = 14, 15
    vL = 16
    vT2 = 18
    vKS, vKC = 20, 24; vKSr, vKZr, vVSr, vVZr = 28, 30, 32, 33
    vTmp = 34
    vMx, vAt, vMO = 37, 38, 39
    vKP = 40; vVP = 48; vO = 64; vS = 96; vRing = 128; vQ = 192; vSt = 208; NST = 10
    vNM = 248; vKW = 252
    vSc = vS + 16
    sX, sY, sSM, sQ, sDBG, sWS, sOUT = 8, 12, 16, 20, 24, 28, 32
    sKb, sVb = 36, 38
    sPair, sSplit, sI, sJ, sG, sT, sT2, sFlo, sThr, sDoff, sCoff, sIni, sKsl, sVsl, sWb, sPend, sSpin, sW0, sHk, sMode = range(40, 60)
    sAt = 49; sShard = 82; sCnt = 83; sXc = 71
    sO = 60
    sK1, sK2 = 64, 66
    sCw = 72
    sPo = 76
    sWave = 3
    srd = lambda r: f"s[{r}:{r+3}]"
    vr = lambda r, n: f"v[{r}:{r+n-1}]"
    def item_text(k):
        return f"buffer_load_dwordx4 {vr(vRing+4*k,4)}, v{vOff}, {srd(sX if k < 8 else sY)}, s{sO + k//4} offen offset:{(k%4)*1024} {nt}"
    sXm = 101 if not stamps else 59 + 40
    sXm = 2
    def unit_offs(A, idx, slot):
        if idx is None: A(f"s_mov_b32 s{sO}, s{sXm}")
        else: A(f"s_lshl_b32 s{sO}, s{idx}, 16"); A(f"s_xor_b32 s{sO}, s{sO}, s{sXm}")
        A(f"s_add_u32 s{sO+1}, s{sO}, 4096"); A(f"s_xor_b32 s{sO+2}, s{sO}, 0x4000"); A(f"s_xor_b32 s{sO+3}, s{sO+1}, 0x4000")
        if slot is not None: A(f"s_bfe_u32 s{slot}, s{sO}, 0xc0008")
    def set_base(A, b, b2=None):
        if b2 is None: b2 = b
        A(f"s_mov_b64 s[{sX}:{sX+1}], s[{b}:{b+1}]"); A(f"s_mov_b64 s[{sY}:{sY+1}], s[{b2}:{b2+1}]")
    A = Stream()
    A("s_cmp_ge_u32 s2, 256"); A("s_cbranch_scc1 L_end")
    if stamps: A("s_memrealtime s[84:85]"); A("s_mov_b32 s101, 0")
    A("s_load_dwordx16 s[68:83], s[0:1], 0")
    A("s_load_dwordx4 s[4:7], s[0:1], 64")
    if pfcode:
        A.c("pull this kernel's code into L2 with strided loads (speed only; the values are unused)")
        A("s_getpc_b64 s[92:93]"); A("s_and_b32 s92, s92, 0xffffff00"); A("s_mov_b32 s94, L_codeend-L_pf"); A("s_mov_b32 s95, 0x20000")
        A.label("L_pf")
        A(f"v_lshlrev_b32 v{vTmp}, 7, v0")
        A(f"s_lshr_b32 s{sT2}, s2, 3"); A(f"s_and_b32 s{sT2}, s{sT2}, {pfcode-1}"); A(f"s_cselect_b32 s94, 0, s94")
        A(f"buffer_load_dword v{vTmp}, v{vTmp}, s[92:95], 0 offen")
    A("v_lshrrev_b32 v1, 6, v0")
    A(f"v_and_b32 v{vLane}, 63, v0")
    A(f"v_readfirstlane_b32 s{sWave}, v1")
    A(f"s_bfe_u32 s{sIni}, s2, {hex((int(math.log2(shards)) << 16) | shb)}")
    A.c("workgroup id -> (pair, split) and the order in which it walks its token groups: a bijection (placement affects speed only)")
    A(f"s_lshl_b32 s{sT2}, s2, 20")
    for i, c in enumerate(cols):
        x = c ^ (1 << (20 + i))
        if x: A(f"s_bitcmp1_b32 s2, {i}"); A(f"s_cselect_b32 s{sT}, {hex(x)}, 0"); A(f"s_xor_b32 s{sT2}, s{sT2}, s{sT}")
    if mix:
        A(f"s_lshr_b32 s{sT}, s2, 3"); A(f"s_and_b32 s{sT}, s{sT}, 7"); A(f"s_lshl_b32 s{sT}, s{sT}, 2")
        A(f"s_lshr_b32 s{sT}, {hex(mix)}, s{sT}"); A(f"s_and_b32 s{sT}, s{sT}, 3"); A(f"s_and_b32 s{sT}, s{sT}, s2")
        A(f"s_bcnt1_i32_b32 s{sT}, s{sT}"); A(f"s_and_b32 s{sT}, s{sT}, 1"); A(f"s_lshl_b32 s{sT}, s{sT}, 22"); A(f"s_xor_b32 s{sT2}, s{sT2}, s{sT}")
    def idmap(w):
        v = 0
        for i, c in enumerate(cols):
            if w >> i & 1: v ^= c
        if mix: v ^= (bin((mix >> (4 * ((w >> 3) & 7))) & 3 & w).count("1") & 1) << 22
        return v
    assert len(set(idmap(w) >> 20 for w in range(256))) == 256 and all(idmap(w) & ~0xfff4000 == 0 for w in range(256)) and idmap(0) == 0
    A(f"s_mov_b32 s{sMode}, s2")
    A(f"s_lshr_b32 s{sPair}, s{sT2}, 22"); A(f"s_bfe_u32 s{sSplit}, s{sT2}, 0x20014"); A(f"s_and_b32 s{sXm}, s{sT2}, 0x3fffff")
    c_, h_, m_, g_ = vKS, vKS + 1, vKS + 2, vKS + 3
    t0, t1, vQo = vKC, vKC + 1, vKC + 2
    A(f"v_and_b32 v{c_}, 31, v{vLane}"); A(f"v_lshrrev_b32 v{h_}, 5, v{vLane}")
    A(f"v_and_b32 v{m_}, 15, v{vLane}"); A(f"v_lshrrev_b32 v{g_}, 4, v{vLane}")
    A(f"v_lshlrev_b32 v{vLin}, 4, v{vLane}"); A(f"v_lshlrev_b32 v{vL4}, 2, v{vLane}")
    A(f"s_and_b32 s{sT}, s{sWave}, 1"); A(f"s_lshl_b32 s{sT}, s{sT}, 13")
    A(f"s_lshr_b32 s{sT2}, s{sWave}, 1"); A(f"s_lshl_b32 s{sT2}, s{sT2}, 15"); A(f"s_add_u32 s{sWb}, s{sT}, s{sT2}")
    A(f"v_add_u32 v{vOff}, s{sWb}, v{vLin}")
    A(f"v_lshlrev_b32 v{vQo}, 8, v{m_}"); A(f"v_lshl_add_u32 v{vQo}, v{g_}, 4, v{vQo}")
    for i in range(4): A(f"v_mov_b32 v{vVP+i}, -1")
    def own_slot(A):
        A(f"s_lshl2_add_u32 s{sT}, s{sPair}, s{sWave}"); A(f"s_lshl2_add_u32 s{sT}, s{sT}, s{sSplit}")
        A(f"s_lshl_b32 s{sT}, s{sT}, 13"); A(f"s_add_u32 s{sT}, s{sT}, {WS_SLOT}"); A(f"s_add_u32 s{sT2}, s{sT}, 4096")
    A(f"s_mul_i32 s{sG}, s{sWave}, {TABW}"); A(f"s_add_u32 s{sG}, s{sG}, {LDS_TAB}"); A(f"s_mov_b32 m0, s{sG}")
    own_slot(A)
    for r in (sX, sY): A(f"s_mov_b32 s{r+2}, {0 if dry else 0x400000}"); A(f"s_mov_b32 s{r+3}, 0x20000")
    A(f"s_mov_b32 s{sWS+2}, 0x40000000"); A(f"s_mov_b32 s{sWS+3}, 0x20000")
    A(f"s_lshl_b32 s{sT}, s{sPair}, 22")
    A(f"s_mov_b32 s{sDBG+2}, 256"); A(f"s_mov_b32 s{sDBG+3}, 0x20000"); A(f"v_mov_b32 v{vFl}, 1")
    unit_offs(A, None, sVsl); A(f"s_andn2_b32 s{sKsl}, s{sVsl}, 255")
    for r in (sSM, sQ, sOUT): A(f"s_mov_b32 s{r+2}, 0x4000"); A(f"s_mov_b32 s{r+3}, 0x20000")
    A(f"s_lshl_b32 s{sPend}, s{sPair}, 14")
    A("s_waitcnt lgkmcnt(0)")
    def mk(r, p): A(f"s_add_u32 s{r}, s{p}, s{sPend}"); A(f"s_addc_u32 s{r+1}, s{p+1}, 0")
    A(f"s_add_u32 s{sKb}, s70, s{sT}"); A(f"s_addc_u32 s{sKb+1}, s71, 0")
    set_base(A, sKb)
    for k in range(npre): A(item_text(k))
    A(f"s_add_u32 s{sVb}, s72, s{sT}"); A(f"s_addc_u32 s{sVb+1}, s73, 0")
    A.c("wave w streams scale/zero array w (ks, kz, vs, vz) into the LDS table")
    A(f"s_cmp_eq_u32 s{sWave}, 1"); A(f"s_cselect_b64 s[{sSM}:{sSM+1}], s[76:77], s[74:75]")
    A(f"s_cmp_eq_u32 s{sWave}, 2"); A(f"s_cselect_b64 s[{sSM}:{sSM+1}], s[78:79], s[{sSM}:{sSM+1}]")
    A(f"s_cmp_eq_u32 s{sWave}, 3"); A(f"s_cselect_b64 s[{sSM}:{sSM+1}], s[80:81], s[{sSM}:{sSM+1}]")
    mk(sSM, sSM)
    A(f"s_lshl_b32 s{sT}, s{sSplit}, 12")
    nT = (npf + 3) // 4
    for u in range(nT):
        rows = min(4, npf - 4 * u)
        if rows < 4: A(f"s_bfm_b64 exec, {16*rows}, 0")
        A(f"buffer_load_dwordx4 v{vLin}, {srd(sSM)}, s{sT} offen offset:{u*1024} {smf} lds")
        if rows < 4: A("s_mov_b64 exec, -1")
    mk(sQ, 68)
    A(f"s_lshl_b32 s{sT}, s{sWave}, 12")
    for s4 in range(4): A(f"buffer_load_dwordx4 {vr(vQ+4*s4,4)}, v{vQo}, {srd(sQ)}, s{sT} offen offset:{s4*64} {qflag}")
    A.c("mark the header of this wave's hand-off slot empty")
    A(f"s_mov_b64 s[{sWS}:{sWS+1}], s[6:7]")
    A(f"buffer_store_dwordx4 {vr(vVP,4)}, v{vLin}, {srd(sWS)}, s{sT2} offen sc0 sc1")
    A.c("workgroup 0 claims the job of zeroing the ticket counters (any workgroup takes it over later if nobody has)")
    A(f"s_mov_b64 s[{sDBG}:{sDBG+1}], s[4:5]")
    A(f"s_cmp_eq_u32 s{sWave}, 0"); A(f"s_cselect_b32 s{sW0}, 1, 0")
    A(f"s_or_b32 s{sT}, s{sMode}, {'1' if noearly else 's%d' % sWave}"); A(f"s_cselect_b32 s{sHk}, 0, 3"); A("s_cbranch_scc1 L_noel")
    A("s_mov_b64 exec, 1")
    A(f"buffer_atomic_add v{vFl}, off, {srd(sDBG)}, 0 sc0")
    A("s_mov_b64 exec, -1")
    A.label("L_noel")
    mk(sOUT, 82)
    A(f"v_lshlrev_b32 v{vTK}, 3, v{c_}")
    A(f"v_lshrrev_b32 v{vTV}, 4, v{c_}"); A(f"v_lshlrev_b32 v{vTV}, 5, v{vTV}")
    A(f"v_and_b32 v{t0}, 15, v{c_}"); A(f"v_add_lshl_u32 v{vTV}, v{vTV}, v{t0}, 1")
    A(f"s_lshr_b32 s{sT}, s{sWb}, 8"); A(f"v_add_u32 v{vTV}, s{sT}, v{vTV}")
    A(f"s_lshr_b32 s{sT}, s{sWave}, 1"); A(f"s_and_b32 s{sT2}, s{sWave}, 1")
    A(f"s_mul_i32 s{sT}, s{sT}, {32*KROW}"); A(f"s_mul_i32 s{sT2}, s{sT2}, {8*KROW}"); A(f"s_add_u32 s{sT}, s{sT}, s{sT2}"); A(f"s_add_u32 s{sT}, s{sT}, {LDS_K}")
    A(f"v_mul_u32_u24 v{vKW}, {4*KROW}, v{h_}"); A(f"v_lshl_add_u32 v{vKW}, v{c_}, 3, v{vKW}"); A(f"v_add_u32 v{vKW}, s{sT}, v{vKW}")
    for u, rows in ((1, 16), (2, 64), (3, 80)): A(f"v_add_u32 v{vKW+u}, {rows*KROW}, v{vKW}")
    A(f"v_mul_u32_u24 v{vKR}, {KROW}, v{m_}"); A(f"v_lshl_add_u32 v{vKR}, v{g_}, 4, v{vKR}")
    A(f"s_mul_i32 s{sT}, s{sWave}, {2*OS}"); A(f"s_add_u32 s{sT}, s{sT}, {LDS_V}")
    A(f"v_mul_u32_u24 v{vVW}, {OS}, v{h_}"); A(f"v_lshl_add_u32 v{vVW}, v{c_}, 4, v{vVW}"); A(f"v_add_u32 v{vVW}, s{sT}, v{vVW}")
    A(f"v_mul_u32_u24 v{vVR}, {OS}, v{g_}"); A(f"v_and_b32 v{t0}, 3, v{m_}"); A(f"v_mul_u32_u24 v{t0}, {JS}, v{t0}")
    A(f"v_lshrrev_b32 v{t1}, 2, v{m_}"); A(f"v_lshlrev_b32 v{t1}, 5, v{t1}")
    A(f"v_add3_u32 v{vVR}, v{vVR}, v{t0}, v{t1}"); A(f"v_add_u32 v{vVR}, {LDS_V}, v{vVR}")
    A(f"s_lshl_b32 s{sT}, s{sWave}, 8"); A(f"s_add_u32 s{sT2}, s{sT}, {LDS_SC}")
    A(f"v_and_b32 v{vSW}, 1, v{c_}"); A(f"v_lshlrev_b32 v{vSW}, 7, v{vSW}")
    A(f"v_lshrrev_b32 v{t0}, 1, v{c_}"); A(f"v_lshl_add_u32 v{vSW}, v{t0}, 3, v{vSW}"); A(f"v_add_u32 v{vSW}, s{sT2}, v{vSW}")
    A(f"v_lshlrev_b32 v{vSR}, 7, v{h_}"); A(f"v_add_u32 v{vSR}, s{sT2}, v{vSR}")
    A(f"v_mov_b32 v{vMb}, {LDS_MB}")
    A(f"s_mov_b32 s{sCoff}, {WS_CTR}")
    cc = math.log2(math.e) / math.sqrt(128.0)
    for i in range(2): A(f"s_mov_b32 s{sK1+i}, {hex(f32bits(cc * 2.0**24))}"); A(f"s_mov_b32 s{sK2+i}, {hex(f32bits(-2.0**-24))}")
    A.c("the first tile always takes the rescale path, which sets the reference to that tile's true row max")
    A(f"s_mov_b32 s{sThr}, 0xff800000"); A(f"s_mov_b32 s{sFlo}, 0xff800000")
    for r in (sAt, sMode, sCnt, sI, sJ): A(f"s_mov_b32 s{r}, 0")
    A(f"s_mov_b32 s{sShard}, s{sIni}")
    if not nolocal: A(f"s_getreg_b32 s{sXc}, hwreg(HW_REG_XCC_ID, 0, 3)"); A(f"s_mul_i32 s{sXc}, s{sXc}, 3"); A(f"s_add_u32 s{sXc}, s{sXc}, 8")
    A(f"s_mov_b32 s{sSpin}, {SPIN}")
    for i, w in enumerate((0x9e37c2b3, 0x85eb6d2f, 0x27d4f1a9, 0x165753c5)): A(f"s_mov_b32 s{sCw+i}, {hex(w)}")
    for i in range(32): A(f"v_mov_b32 v{vO+i}, 0")
    for i in range(4): A(f"v_mov_b32 v{vNM+i}, 0")
    A(f"v_mov_b32 v{vMO}, 0x7149f2ca"); A(f"v_mov_b32 v{vL}, 0"); A(f"v_mov_b32 v{vL+1}, 0"); A(f"v_mov_b32 v{vAt}, 0")
    def ktab_reads(S):
        S(f"v_add_u32 v{vTmp+2}, s{sKsl}, v{vTK}")
        S(f"ds_read_b64 {vr(vKSr,2)}, v{vTmp+2} offset:{LDS_TAB}"); S(f"ds_read_b64 {vr(vKZr,2)}, v{vTmp+2} offset:{LDS_TAB+TABW}")
    def vtab_reads(S):
        S(f"v_xor_b32 v{vTmp+2}, s{sVsl}, v{vTV}")
        S(f"ds_read_u16 v{vVSr}, v{vTmp+2} offset:{LDS_TAB+2*TABW}"); S(f"ds_read_u16 v{vVZr}, v{vTmp+2} offset:{LDS_TAB+3*TABW}")
    def prep_v(S):
        S.c("V: S = vs*2^24, C = -vz*vs per token, broadcast through LDS")
        S(f"v_lshlrev_b32 v{vT2}, 16, v{vVSr}"); S(f"v_lshlrev_b32 v{vT2+1}, 16, v{vVZr}")
        S(f"v_mul_f32 v{vT2+1}, -v{vT2+1}, v{vT2}"); S(f"v_mul_f32 v{vT2}, 0x4b800000, v{vT2}")
        S(f"ds_write_b64 v{vSW}, {vr(vT2,2)}")
    def prep_k(S):
        S.c("K: S = ks*c*2^24, C = -kz*ks*c per channel, c = log2(e)/sqrt(128) (the int code is read as an f16 subnormal, code*2^-24)")
        for p in range(2): S(f"v_lshlrev_b32 v{vKS+2*p}, 16, v{vKSr+p}"); S(f"v_lshlrev_b32 v{vKC+2*p}, 16, v{vKZr+p}")
        for p in range(2): S(f"v_and_b32 v{vKS+2*p+1}, 0xffff0000, v{vKSr+p}"); S(f"v_and_b32 v{vKC+2*p+1}, 0xffff0000, v{vKZr+p}")
        for p in range(2): S(f"v_pk_mul_f32 {vr(vKS+2*p,2)}, {vr(vKS+2*p,2)}, s[{sK1}:{sK1+1}]")
        for p in range(2): S(f"v_pk_mul_f32 {vr(vKC+2*p,2)}, {vr(vKC+2*p,2)}, s[{sK2}:{sK2+1}]")
        for p in range(2): S(f"v_pk_mul_f32 {vr(vKC+2*p,2)}, {vr(vKC+2*p,2)}, {vr(vKS+2*p,2)}")
    def sc_lo_reads(S):
        for i in range(4): S(f"ds_read_b128 {vr(vSc+4*i,4)}, v{vSR} offset:{i*16}")
    for k in range(npre, 16):
        A(f"s_waitcnt vmcnt({capn(capP, k)})"); A(item_text(k))
    ENTRYV = 15 - max(capn(c, 15) for c in (cap, capV, capF, capS))
    ENTRY = 15 - capn(cap, 15)
    assert 16 - ENTRY <= 16 - npre
    A(f"s_waitcnt vmcnt({16 - ENTRY})"); A("s_barrier")
    ktab_reads(A); vtab_reads(A)
    A("s_waitcnt lgkmcnt(0)")
    prep_v(A)
    pro = A

    def itstamp(S):
        if stamps and itst:
            S("s_memrealtime s[96:97]"); S("s_mov_b32 s98, m0"); S(f"s_add_u32 m0, s{sI}, s{sJ}"); S(f"v_accvgpr_read_b32 v{vTmp+2}, a255"); S("s_waitcnt lgkmcnt(0)")
            S(f"v_writelane_b32 v{vTmp+2}, s96, m0"); S("s_mov_b32 m0, s98"); S(f"v_accvgpr_write_b32 a255, v{vTmp+2}")

    def emit(B, items, place, seq0, done0, caps, name, at=None):
        out = []; ei = 0; done = done0; info = []; marks = {}
        def wait(n):
            nonlocal done
            if ei - n > done: out.append(f"    s_waitcnt vmcnt({n})"); done = ei - n; return True
            return False
        for i, x in enumerate(B.I):
            while ei < len(items) and place[ei] == i:
                if ei == at:
                    out.extend([f"    s_cmp_lg_u32 s{sAt}, 0", "    s_cbranch_scc0 L_noat", "    s_mov_b64 exec, 1", f"    v_mov_b32 v{vAt}, 1",
                                f"    buffer_atomic_add v{vAt}, off, {srd(sWS)}, s{sCoff} sc0", "    s_mov_b64 exec, -1", "L_noat:"])
                if caps: wait(capn(caps, ei))
                out.append("    " + items[ei]); ei += 1
            if "mark" in x:
                marks[(x["mark"], x["k"])] = (ei, done)
                if x["mark"] == "wait":
                    n = ei - 1 - seq0[x["k"]]; assert n >= 0
                    info.append((x["k"], n, wait(n)))
                elif x["mark"] == "smallwait": wait(ei - x["k"])
                elif x["mark"] == "postwait": out.append(f"    s_waitcnt vmcnt({AL})")
            else: out.append(x["t"])
        assert ei == len(items)
        print(name, "cost", sum(x["c"] for x in B.I), "waits", [(k, n) for k, n, w in info if w], "lead", min(n for k, n, w in info), file=sys.stderr)
        return out, marks
    class Pos:
        def __init__(self, B):
            self.I = B.I; self.cum = []; a = 0
            for x in B.I: self.cum.append(a); a += x["c"]
            self.tot = a
        def i(self, kind, k=None): return next(i for i, x in enumerate(self.I) if x.get("mark") == kind and x.get("k") == k)
        def c(self, kind, k=None): return self.cum[self.i(kind, k)]
        def at(self, t, lo):
            p = max(lo, next((i for i in range(len(self.I)) if self.cum[i] >= t), len(self.I) - 1))
            while not self.I[p]["ins"]: p += 1
            return p

    def deq(S, r, s, c): S(f"v_fma_mix_f32 v{r}, v{r}, v{s}, v{c} op_sel_hi:[1,0,0]")
    def kitems(B, n):
        for k in range(0, n, 2):
            r = vRing + 4 * k; t = vKP + 4 * ((k // 2) % 2)
            B.mark("wait", k + 1)
            for u in range(2):
                for j in range(4): deq(B, r + 4 * u + j, vKS + j, vKC + j)
            for u in range(4): B(f"v_cvt_pk_bf16_f32 v{t+u}, v{r+2*u}, v{r+2*u+1}")
            B.mark("free", k); B.mark("free", k + 1)
            B(f"ds_write2_b64 v{vKW + k//4}, {vr(t,2)}, {vr(t+2,2)} offset0:{(k%4)*KROW//8} offset1:{(k%4+1)*KROW//8}")
        B.mark("kdone")
    def mfma_loop(B, reads, mfmas, fill, start=0, ids=None, after=None):
        n = len(mfmas)
        if ids is None:
            ids = {}
            for i in range(PF): ids[i] = B(reads[i])
            for t in fill.get(-1, []): B(t)
        for i in range(start, n):
            if i % 2 == 0 or i == start: B.waitds(ids[min(n - 1, i | 1)])
            B(mfmas[i])
            if i + PF < n: ids[i + PF] = B(reads[i + PF])
            for t in fill.get(i, []): B(t)
            if after and i in after: after[i](dict(ids))
    def qk_lists(nblk):
        order = [(2 * bp + u, s4) for bp in range(nblk // 2) for s4 in range(4) for u in range(2)]
        rd = [f"ds_read_b128 {vr(vSt+4*(i%NST),4)}, v{vKR} offset:{LDS_K + b*16*KROW + s4*64}" for i, (b, s4) in enumerate(order)]
        mf = [f"v_mfma_f32_16x16x32_bf16 {vr(vS+4*b,4)}, {vr(vSt+4*(i%NST),4)}, {vr(vQ+4*s4,4)}, {vr(vNM,4) if s4 == 0 else vr(vS+4*b,4)}" for i, (b, s4) in enumerate(order)]
        return rd, mf
    def max_ops(bp):
        b = vS + 8 * bp
        if bp == 0: return [f"v_max3_f32 v{vMx}, v{b}, v{b+1}, v{b+2}", f"v_max3_f32 v{vMx}, v{vMx}, v{b+3}, v{b+4}", f"v_max3_f32 v{vMx}, v{vMx}, v{b+5}, v{b+6}", f"v_max_f32 v{vMx}, v{vMx}, v{b+7}"]
        return [f"v_max3_f32 v{vMx}, v{vMx}, v{b+2*u}, v{b+2*u+1}" for u in range(4)]
    def qk_fill(nblk):
        f = {}
        for bp in range(nblk // 2 - 1):
            last = bp + 2 == nblk // 2
            slots = (4, 5, 6, 7) if last else (3, 5, 7, 7)
            for s_, t in zip(slots, max_ops(bp)): f.setdefault(8 * (bp + 1) + s_, []).append(t)
        return f
    def check_max(B, nblk, tag, pre):
        for t in pre: B(t)
        if len(pre) < 6: B(f"s_nop {5 - len(pre)}")
        for t in max_ops(nblk // 2 - 1): B(t)
        B(f"v_cmp_lt_f32 vcc, s{sThr}, v{vMx}")
        B.lock = True
        B(f"s_cbranch_vccnz L_rescale{tag}")
        B.label(f"L_rescaled{tag}")
        B.lock = False
    exp_op = lambda i: f"v_exp_f32 v{vS+i}, v{vS+i}"
    sum_cvt = lambda i: [f"v_pk_add_f32 {vr(vL,2)}, {vr(vL,2)}, {vr(vS+2*i,2)}", f"v_cvt_pk_bf16_f32 v{vS+i}, v{vS+2*i}, v{vS+2*i+1}"]
    def vphase(B, k0, s, refill_hi):
        rg = lambda n8: vRing + 4 * (k0 + n8)
        for n8 in (0, 2):
            B.mark("wait", k0 + n8 + 1)
            for u in range(2):
                for j in range(4): deq(B, rg(n8 + u) + j, vSc + 2 * (n8 + u), vSc + 2 * (n8 + u) + 1)
            if refill_hi: B(f"ds_read_b128 {vr(vSc+4*(n8//2),4)}, v{vSR} offset:{64 + (n8//2)*16}")
            for j in range(4): B(f"v_cvt_pk_bf16_f32 v{vVP+4*j+n8//2}, v{rg(n8)+j}, v{rg(n8+1)+j}")
            B.mark("free", k0 + n8); B.mark("free", k0 + n8 + 1)
        B.mark("wait", k0 + 7)
        for j in range(4):
            for n8 in range(4, 8): deq(B, rg(n8) + j, vSc + 2 * n8, vSc + 2 * n8 + 1)
            for n8 in (4, 6): B(f"v_cvt_pk_bf16_f32 v{vVP+4*j+n8//2}, v{rg(n8)+j}, v{rg(n8+1)+j}")
            if j == 3:
                for n8 in range(4, 8): B.mark("free", k0 + n8)
            B(f"ds_write_b128 v{vVW}, {vr(vVP+4*j,4)} offset:{s*8*OS + j*JS}")
        if refill_hi:
            for u in (2, 3): B(f"ds_read_b128 {vr(vSc+4*u,4)}, v{vSR} offset:{64 + u*16}")
    def pv_lists(s):
        lst = [(2 * s + kk, db) for kk in range(2) for db in range(8)]
        rd = [f"ds_read_b128 {vr(vSt+4*(i%NST),4)}, v{vVR} offset:{ks*4*OS + (db//2)*128 + (db%2)*16}" for i, (ks, db) in enumerate(lst)]
        mf = [f"v_mfma_f32_16x16x32_bf16 {vr(vO+4*db,4)}, {vr(vSt+4*(i%NST),4)}, {vr(vS+4*ks,4)}, {vr(vO+4*db,4)}" for i, (ks, db) in enumerate(lst)]
        return rd, mf
    def ops_of(f):
        S = Stream(); f(S); return [x["t"].strip() for x in S.I if not x["t"].strip().startswith(";")]
    def spread(ops, first, per=1):
        f = {}
        for n, t in enumerate(ops): f.setdefault(first + n // per, []).append(t)
        return f
    def save_ops(i0):
        return [f"v_accvgpr_write_b32 a{17*i0+i}, v{vS+i}" for i in range(16)] + [f"v_accvgpr_write_b32 a{17*i0+16}, v{vNM}"]
    unit_items = [item_text(k) for k in range(16)]
    unit_seq = {k: k - 16 for k in range(16)}

    B = Stream()
    B.lock = True
    B.label("L_K")
    itstamp(B)
    B(f"s_add_u32 s{sI}, s{sI}, 1")
    B(f"s_cmp_lt_u32 s{sI}, {npf}"); B("s_cbranch_scc0 L_k2v")
    unit_offs(B, sI, sKsl); B(f"s_andn2_b32 s{sKsl}, s{sKsl}, 255")
    B(f"s_cmp_le_u32 s{sI}, s{sHk}"); B("s_cbranch_scc1 L_hookK")
    B.label("L_k1")
    B("s_waitcnt lgkmcnt(0)")
    B.lock = False
    B.mark("ready")
    prep_k(B)
    kitems(B, 16)
    B.c("park the previous tile's P while the K rows settle in LDS")
    B("s_branch L_save", 150)
    B.lock = True
    B.label("L_saved")
    B.lock = False
    B("s_waitcnt lgkmcnt(0)"); B("s_barrier", 20)
    B.c("S^T - m = K Q^T - m (log2 units)")
    rd, mf = qk_lists(8)
    mfma_loop(B, rd, mf, qk_fill(8))
    B("s_barrier", 10)
    check_max(B, 8, "K", ops_of(ktab_reads))
    for half in range(2):
        for i in range(16): B(exp_op(16 * half + i))
        for i in range(8):
            for t in sum_cvt(8 * half + i): B(t)
    B.mark("allissued")
    B.lock = True
    B(f"s_cmp_lt_u32 s{sI}, {npf}"); B("s_cbranch_scc1 L_K")
    sc_lo_reads(B)
    B.c("the last tile's P waits in the Q registers; l is final: sum it over the four lane groups")
    for i in range(16): B(f"v_mov_b32 v{vQ+i}, v{vS+i}")
    B(f"v_add_f32 v{vHd+1}, v{vL}, v{vL+1}")
    for sw in ("v_permlane32_swap_b32", "v_permlane16_swap_b32"):
        B(f"v_mov_b32 v{vTmp+1}, v{vHd+1}"); B("s_nop 1"); B(f"{sw} v{vTmp+1}, v{vHd+1}"); B("s_nop 1"); B(f"v_add_f32 v{vHd+1}, v{vHd+1}, v{vTmp+1}")
    B.lock = False
    P = Pos(B); c0 = P.c("free", 0); c1 = P.c("kdone"); c2 = P.c("allissued")
    tg = [c0 + (c1 - c0) * k / (nK1 - 1) for k in range(nK1)] + [c1 + (c2 - c1) * (k + 1) / (16 - nK1) - 8 for k in range(16 - nK1)]
    pl = []
    for k in range(16): pl.append(P.at(tg[k], max(pl[-1] if pl else 0, P.i("free", k) + 1))); assert pl[-1] <= P.i("allissued")
    kbody, _ = emit(B, unit_items, pl, unit_seq, ENTRY - 16, cap, "K")
    print("  K issue", [P.cum[p] for p in pl], file=sys.stderr)

    sig = sorted(m + 1 for m in ms) + [15]
    assert jr <= sig[0] and jr < 14
    events = sorted(set(sig) | set(x + 1 for x in sig) | {jr})
    D_ = Stream()
    D_.label("L_V")
    itstamp(D_)
    D_(f"s_add_u32 s{sJ}, s{sJ}, 1")
    D_(f"s_bitcmp1_b32 {hex(sum(1 << e for e in events))}, s{sJ}")
    D_("s_waitcnt lgkmcnt(0)")
    D_("s_cbranch_scc1 L_ctl")
    D_.label("L_v0")
    unit_offs(D_, sJ, sVsl)
    D_(f"s_cmp_lg_u32 s{sMode}, 0"); D_("s_cbranch_scc1 L_vdisp")
    def make_V(tag, caps):
        B = Stream()
        B.label(f"L_V{tag}_")
        B.mark("ready")
        vphase(B, 0, 0, True)
        vtab_reads(B)
        B.c("fetch this tile's P back while the V rows settle in LDS")
        B("s_branch L_restore", 150)
        B.lock = True
        if tag == "":
            B.label("L_restored")
            B(f"s_cmp_lg_u32 s{sMode}, 0"); B("s_cbranch_scc1 L_rdisp")
        B.label(f"L_rest{tag}_")
        B.lock = False
        B("s_waitcnt lgkmcnt(0)"); B("s_barrier", 20)
        rd, mf = pv_lists(0)
        pvv = ops_of(prep_v)
        mfma_loop(B, rd, mf, {-1: pvv[:4], 9: pvv[4:]})
        vphase(B, 8, 1, False)
        B(f"s_cmp_lg_u32 s{sAt}, 0")
        B.lock = True
        B(f"s_cbranch_scc0 L_nopost{tag}")
        B.mark("postwait")
        B(f"ds_write_b32 v{vL4}, v{vAt} offset:{LDS_MB}")
        B.label(f"L_nopost{tag}")
        B.lock = False
        B("s_waitcnt lgkmcnt(0)"); B("s_barrier")
        rd, mf = pv_lists(1)
        mfma_loop(B, rd, mf, spread(ops_of(sc_lo_reads) + [f"ds_read_b32 v{vTmp}, v{vMb}"], 8))
        B.mark("allissued")
        B.lock = True
        B("s_branch L_V")
        B.lock = False
        P = Pos(B); c0 = P.c("free", 0); c1 = c0 + (P.c("allissued") - c0) * vtail
        pl = []
        for k in range(16): pl.append(P.at(c0 + (c1 - c0) * k / 15 - 8, max(pl[-1] if pl else 0, P.i("free", k) + 1))); assert pl[-1] <= P.i("allissued")
        nb = sum(1 for p in pl if p <= P.i("postwait")); assert nb >= AL
        body, _ = emit(B, unit_items, pl, unit_seq, ENTRYV - 16, caps, "V" + tag, at=nb - AL)
        print("  V issue", [P.cum[p] for p in pl], "atomic before", nb - AL, file=sys.stderr)
        return [l.replace("L_noat", "L_noat" + tag) for l in body]
    vbody = D_.text() + make_V("", capV) + make_V("f", capF) + make_V("s", capS)
    hbody = []

    E = Stream()
    def stampE(i):
        if stamps and not (hst == 1 and i in (2, 3, 4)) and not (hst == 2 and i in (2, 3)): E(f"s_memrealtime s[{84+2*i}:{85+2*i}]")
    def lsum():
        stampE(1)
        if stamps: E("s_mov_b32 s99, 0")
    ml = lambda x: (vKP, vKP + 4, vKS)[x - 1]
    dat = lambda x: (vRing, vRing + 16, vQ)[x - 1]
    bb = vKSr; u0 = vVP; vPo = vKC; vPv = vKC + 1; sLd = sCnt; sNew = sMode
    pl_ = []
    for x in range(1, 4):
        pl_.append(f"buffer_load_dwordx4 {vr(ml(x),4)}, v{vLin}, {srd(sWS)}, s{sPo+2+x} offen {ldf}")
        pl_ += [f"buffer_load_dwordx4 {vr(dat(x)+4*q,4)}, v{vLin}, {srd(sWS)}, s{sPo+x-1} offen offset:{q*1024} {ldf}" for q in range(4)]
    poll = f"buffer_load_dword v{vPv}, v{vPo}, {srd(sWS)}, s{sG} offen {ldf}"
    def tail(tag):
        T_ = Stream()
        if hst == 1: T_("s_memrealtime s[88:89]")
        vphase(T_, 0, 0, True)
        T_(f"v_cmp_neq_f32 vcc, v{vNM}, v{vMO}")
        for i in range(16): T_(f"v_mov_b32 v{vS+i}, v{vQ+i}")
        T_.lock = True
        T_(f"s_cbranch_vccnz L_oldref{tag}")
        T_.label(f"L_newref{tag}")
        T_.lock = False
        if hst == 1: T_("s_memrealtime s[90:91]")
        T_("s_waitcnt lgkmcnt(0)"); T_("s_barrier", 20)
        rd, mf = pv_lists(0); mfma_loop(T_, rd, mf, {})
        T_.mark("pv0")
        vphase(T_, 8, 1, False)
        if hst == 1: T_("s_memrealtime s[92:93]")
        T_("s_waitcnt lgkmcnt(0)"); T_("s_barrier")
        rd, mf = pv_lists(1); mfma_loop(T_, rd, mf, {})
        Pt = Pos(T_)
        if tag == "C":
            w = Pt.i("wait", 15); c0 = Pt.cum[w]; ins = {}
            for n in range(15):
                p = Pt.at(c0 + 8 + (Pt.tot - c0) * ctspan * n / 15, w + 1)
                ins.setdefault(p, []).extend(([f"    s_bitcmp1_b32 s{sLd}, {n//5+1}"] if n % 5 == 0 else []) + [f"    s_cbranch_scc0 L_sk{n}", "    " + pl_[n], f"L_sk{n}:"])
            I2 = []
            for i, x in enumerate(T_.I):
                for t in ins.get(i, []): I2.append(dict(t=t, c=0, ins=True))
                I2.append(x)
                if i == w:
                    for t in ("s_waitcnt vmcnt(0)", f"v_cmp_ne_u32 vcc, -1, v{vPv}", f"s_and_b32 s{sLd}, vcc_lo, 14"): I2.append(dict(t="    " + t, c=0, ins=True))
            T_.I = I2; Pt = Pos(T_)
            pp = ([0] if pa else []) + [Pt.at(Pt.c("pv0") - pb, 1)]
            out, _ = emit(T_, [poll] * len(pp), pp, unit_seq, ENTRYV - 16, None, "tail")
        else:
            out, _ = emit(T_, [], [], unit_seq, ENTRYV - 16, None, "tail")
        for t in out: E.I.append(dict(t=t, c=0, ins=True))
    E.c("last unit; the count tells the finishing order within the pair")
    E.label("L_last")
    if not nolocal: E(f"s_lshr_b32 s{sMode}, s{sG}, s{sXc}"); E(f"s_and_b32 s{sMode}, s{sMode}, 7"); E(f"s_and_b32 s{sG}, s{sG}, 255")
    E(f"s_cmp_eq_u32 s{sG}, 3"); E("s_cbranch_scc1 L_ctail")
    if stamps: E("s_mov_b32 s100, 1")
    own_slot(E)
    E(f"v_min_u32 v{vHd}, -2, v{vNM}"); E(f"v_min_u32 v{vHd+1}, -2, v{vHd+1}")
    tail("E")
    lsum()
    E.c("not the last workgroup of this pair: hand the partial over; header = (-m, l, checksum), none equal to the empty mark")
    dots = lambda r: [f"v_dot2_u32_u16 v{vCk}, v{r+i}, s{sCw + (i + i//4) % 4}, {'0' if i == 0 else 'v%d' % vCk}" for i in range(16)]
    def publish(df, hf, wait):
        for q in range(4):
            for i in range(4 * q, 4 * q + 4): E(f"v_cvt_pk_bf16_f32 v{vSt+i}, v{vO+2*i}, v{vO+2*i+1}")
            E(f"buffer_store_dwordx4 {vr(vSt+4*q,4)}, v{vLin}, {srd(sWS)}, s{sT} offen offset:{q*1024} {df}")
        for t in dots(vSt): E(t)
        E("s_nop 2"); E(f"v_min_u32 v{vCk}, -2, v{vCk}")
        if wait: E("s_waitcnt vmcnt(0)")
        E(f"buffer_store_dwordx4 {vr(vHd,4)}, v{vLin}, {srd(sWS)}, s{sT2} offen {hf}")
        if stamps:
            for i in (2, 3, 4): stampE(i)
            E("s_branch L_done")
        else:
            E("s_endpgm")
    if not nolocal:
        E(f"s_cmp_eq_u32 s{sMode}, 4"); E("s_cbranch_scc0 L_pubfar")
        if wto:
            E(f"s_cmp_lt_u32 s{sG}, {wto}"); E("s_cbranch_scc1 L_pubearly")
        publish("", "", False)
        if wto:
            E.label("L_pubearly")
            publish("sc0 sc1", "", pw)
        E.label("L_pubfar")
    publish(pubf, pubf, False)
    E.c("fourth workgroup of the pair to get here: it merges")
    E.label("L_ctail")
    if stamps: E("s_mov_b32 s100, 2")
    E(f"s_lshl2_add_u32 s{sG}, s{sPair}, s{sWave}"); E(f"s_lshl_b32 s{sG}, s{sG}, 15"); E(f"s_add_u32 s{sG}, s{sG}, {WS_SLOT}")
    E(f"v_and_b32 v{vPo}, 3, v{vLane}"); E(f"v_xor_b32 v{vPo}, s{sSplit}, v{vPo}"); E(f"v_lshlrev_b32 v{vPo}, 13, v{vPo}"); E(f"v_add_u32 v{vPo}, 4096, v{vPo}")
    for x in range(1, 4):
        E(f"s_xor_b32 s{sT}, s{sSplit}, {x}"); E(f"s_lshl_b32 s{sT}, s{sT}, 13")
        E(f"s_add_u32 s{sPo+x-1}, s{sG}, s{sT}"); E(f"s_add_u32 s{sPo+2+x}, s{sPo+x-1}, 4096")
    tail("C")
    lsum()
    E.c("fold in what has been fetched (if header and checksum hold), keep looking for the rest")
    E(f"s_mov_b32 s{sPend}, 14"); E(f"s_mov_b32 s{sThr}, {hex(f32bits(TM))}")
    E.label("L_round")
    E(f"s_andn2_b32 s{sNew}, s{sPend}, s{sLd}"); E("s_cbranch_scc1 L_look")
    E("s_waitcnt vmcnt(0)")
    E.label("L_looked")
    for x in range(1, 4):
        E(f"s_bitcmp1_b32 s{sLd}, {x}"); E(f"s_cbranch_scc0 L_fold{x}")
        E(f"v_sub_f32 v{bb}, v{vNM}, v{ml(x)}")
        for t in dots(dat(x)): E(t)
        E(f"v_max_u32 v{vTmp+1}, v{ml(x)}, v{ml(x)+1}"); E(f"v_cmp_eq_u32 s[4:5], -1, v{vTmp+1}")
        E(f"v_cmp_lt_f32 s[6:7], s{sThr}, v{bb}")
        E(f"v_min_u32 v{vCk}, -2, v{vCk}"); E(f"v_cmp_ne_u32 vcc, v{vCk}, v{ml(x)+2}")
        E("s_or_b64 vcc, vcc, s[4:5]"); E(f"s_cbranch_scc1 L_fold{x}")
        E(f"s_bitset0_b32 s{sPend}, {x}")
        E(f"s_cmp_lg_u64 s[6:7], 0"); E(f"s_cbranch_scc1 L_far{x}")
        E.label(f"L_near{x}")
        E(f"v_exp_f32 v{bb}, v{bb}")
        for q in range(2):
            r = dat(x) + 8 * q
            for i in range(8): E(f"v_lshlrev_b32 v{u0+2*i}, 16, v{r+i}")
            for i in range(8): E(f"v_and_b32 v{u0+2*i+1}, 0xffff0000, v{r+i}")
            for i in range(8):
                d = vO + 2 * (8 * q + i)
                E(f"v_pk_fma_f32 {vr(d,2)}, {vr(u0+2*i,2)}, {vr(bb,2)}, {vr(d,2)} op_sel_hi:[1,0,1]")
        E(f"v_fmac_f32 v{vHd+1}, v{ml(x)+1}, v{bb}")
        E.label(f"L_fold{x}")
    if stamps: E("s_add_u32 s99, s99, 1")
    E(f"s_mov_b32 s{sLd}, s{sNew}")
    E(f"s_cmp_lg_u32 s{sPend}, 0"); E("s_cbranch_scc1 L_again")
    E.label("L_merged")
    for i in (2, 3, 4): stampE(i)
    E(f"v_rcp_f32 v{bb}, v{vHd+1}")
    E(f"v_and_b32 v{vTmp}, 15, v{vLane}"); E(f"v_lshrrev_b32 v{vTmp+1}, 4, v{vLane}")
    E(f"v_lshlrev_b32 v{vTmp}, 8, v{vTmp}"); E(f"v_lshl_add_u32 v{vTmp}, v{vTmp+1}, 4, v{vTmp}")
    E(f"s_lshl_b32 s{sT}, s{sWave}, 12")
    for u in range(4):
        for i in range(4 * u, 4 * u + 4): E(f"v_pk_mul_f32 {vr(vO+2*i,2)}, {vr(vO+2*i,2)}, {vr(bb,2)} op_sel_hi:[1,0]")
        for i in range(4 * u, 4 * u + 4): E(f"v_cvt_pk_bf16_f32 v{vS+i}, v{vO+2*i}, v{vO+2*i+1}")
        E(f"buffer_store_dwordx4 {vr(vS+4*u,4)}, v{vTmp}, {srd(sOUT)}, s{sT} offen offset:{u*64} {outf}")
    if pollmax:
        E(f"s_sub_u32 s{sT}, {SPIN}, s{sSpin}"); E(f"s_cmp_gt_u32 s{sT}, 6"); E("s_cbranch_scc0 L_done")
        E("s_mov_b64 exec, 1"); E(f"v_mov_b32 v{vAt}, s{sT}"); E(f"s_mov_b32 s{sT2}, 0x23000000")
        E(f"buffer_atomic_umax v{vAt}, off, {srd(sWS)}, s{sT2}")
        E(f"v_mov_b32 v{vFl}, 1"); E(f"buffer_atomic_add v{vFl}, off, {srd(sWS)}, s{sT2} offset:4")
    E.label("L_done")
    if stamps:
        E("s_waitcnt vmcnt(0)")
        stampE(5)
        E(f"s_lshl2_add_u32 s{sT}, s{sPair}, s{sSplit}"); E(f"s_lshl2_add_u32 s{sT}, s{sT}, s{sWave}"); E(f"s_lshl_b32 s{sT2}, s{sT}, 4")
        E(f"s_lshl_b32 s4, s{sT}, 8"); E("s_add_u32 s4, s4, 0x22000000")
        E(f"s_add_u32 s{sT2}, s{sT2}, 0x20000000")
        E(f"s_lshl_b32 s{sT}, s{sT}, 6"); E(f"s_add_u32 s{sT}, s{sT}, 0x21000000")
        E("s_waitcnt lgkmcnt(0)")
        E(f"v_accvgpr_read_b32 v60, a255")
        for i in range(12): E(f"v_mov_b32 v{16+i}, s{84+i}")
        E(f"v_mov_b32 v28, s101"); E("s_getreg_b32 s5, hwreg(HW_REG_XCC_ID)"); E("v_mov_b32 v29, s5"); E(f"v_mov_b32 v30, s100"); E("v_mov_b32 v31, s99")
        E("v_mov_b32 v32, s84"); E("v_mov_b32 v33, s85"); E("v_mov_b32 v34, s94"); E("v_mov_b32 v35, s95")
        E(f"buffer_store_dword v60, v{vL4}, {srd(sWS)}, s4 offen sc0 sc1")
        E("s_mov_b64 exec, 1")
        E(f"buffer_store_dwordx4 v[32:35], off, {srd(sWS)}, s{sT2} sc0 sc1")
        for i in range(4): E(f"buffer_store_dwordx4 v[{16+4*i}:{19+4*i}], off, {srd(sWS)}, s{sT} offset:{16*i} sc0 sc1")
    E.label("L_end")
    E("s_endpgm")

    E.label("L_again")
    E(f"s_sub_u32 s{sSpin}, s{sSpin}, 1"); E("s_cbranch_scc0 L_round"); E("s_branch L_merged")
    E.label("L_look")
    E(poll); E("s_waitcnt vmcnt(0)")
    E(f"v_cmp_ne_u32 vcc, -1, v{vPv}"); E(f"s_and_b32 s{sNew}, s{sNew}, vcc_lo"); E("s_cbranch_scc0 L_looked")
    for x in range(1, 4):
        E(f"s_bitcmp1_b32 s{sNew}, {x}"); E(f"s_cbranch_scc0 L_get{x}")
        for t in pl_[5*(x-1):5*x]: E(t)
        E.label(f"L_get{x}")
    E("s_branch L_looked")
    def scale_O(r):
        for i in range(16): E(f"v_pk_mul_f32 {vr(vO+2*i,2)}, {vr(vO+2*i,2)}, {vr(r,2)} op_sel_hi:[1,0]")
    for x in range(1, 4):
        E.label(f"L_far{x}")
        E.c("that partial's reference max is far above ours: move ours up first")
        E(f"v_max_f32 v{vMx}, 0, v{bb}"); E(f"v_sub_f32 v{vNM}, v{vNM}, v{vMx}"); E(f"v_sub_f32 v{bb}, v{bb}, v{vMx}")
        E(f"v_exp_f32 v{vTmp}, -v{vMx}"); E("s_nop 0"); E(f"v_mul_f32 v{vHd+1}, v{vHd+1}, v{vTmp}")
        scale_O(vTmp)
        E(f"s_branch L_near{x}")

    E.label("L_k2v")
    unit_offs(E, None, None); set_base(E, sVb)
    E(f"s_cmp_lg_u32 s{sW0}, 0"); E("s_cbranch_scc0 L_k1")
    E(f"buffer_load_dword v{vFl}, off, {srd(sDBG)}, 0 offset:4 {flagf}")
    E("s_branch L_k1")

    E.label("L_vdisp")
    E(f"s_sub_u32 s{sCnt}, s{sCnt}, 1"); E(f"s_cselect_b32 s{sMode}, 0, s{sMode}"); E("s_cbranch_scc1 L_V_")
    E(f"s_cmp_eq_u32 s{sMode}, 1"); E("s_cbranch_scc1 L_Vf_"); E("s_branch L_Vs_")
    E.label("L_rdisp")
    E(f"s_cmp_eq_u32 s{sMode}, 1"); E("s_cbranch_scc1 L_restf_"); E("s_branch L_rests_")
    E.c("progress counts: read the last one, arm the next one")
    E.label("L_ctl")
    E(f"v_readfirstlane_b32 s{sG}, v{vTmp}"); E(f"s_mov_b32 s{sAt}, 0")
    E(f"s_cmp_eq_u32 s{sJ}, 16"); E("s_nop 1"); E("s_cbranch_scc1 L_last")
    E(f"s_bitcmp1_b32 {hex(sum(1 << (x + 1) for x in sig))}, s{sJ}"); E("s_cbranch_scc0 L_arm")
    if stamps: E("s_lshl_b32 s101, s101, 8"); E(f"s_or_b32 s101, s101, s{sG}")
    E.c("rank among the workgroups of this count -> how many units to run with more (late) or fewer (early) loads in flight")
    def enc(tb):
        assert len(tb) == 16
        v = sum(((8 | -d) if d < 0 else d) << (4 * i) for i, d in enumerate(tb)); return v & 0xffffffff, v >> 32
    for n in range(len(sig) - 1):
        lo, hi = enc(tabs[n])
        if n == 0: E(f"s_mov_b32 s4, {hex(lo)}"); E(f"s_mov_b32 s5, {hex(hi)}")
        else: E(f"s_cmp_eq_u32 s{sJ}, {sig[n]+1}"); E(f"s_cselect_b32 s4, {hex(lo)}, s4"); E(f"s_cselect_b32 s5, {hex(hi)}, s5")
    if len(sig) > 1:
        sh = int(math.log2(256 // shards)) - 4
        E(f"s_lshr_b32 s{sT}, s{sG}, {sh}"); E(f"s_min_u32 s{sT}, s{sT}, 15"); E(f"s_lshl_b32 s{sT}, s{sT}, 2"); E(f"s_lshr_b64 s[4:5], s[4:5], s{sT}")
        E(f"s_and_b32 s{sCnt}, s4, 7"); E("s_bitcmp1_b32 s4, 3"); E(f"s_cselect_b32 s{sMode}, 2, 1")
    E.label("L_arm")
    E(f"s_bitcmp1_b32 {hex(sum(1 << x for x in sig))}, s{sJ}"); E(f"s_cselect_b32 s{sAt}, s{sW0}, 0")
    E(f"s_mul_i32 s{sT}, s{sJ}, {shards}"); E(f"s_add_u32 s{sT}, s{sT}, s{sShard}"); E(f"s_and_b32 s{sT}, s{sT}, 63")
    E(f"s_lshl_b32 s{sT}, s{sT}, {cstride}"); E(f"s_add_u32 s{sT}, s{sT}, 4"); E(f"s_lshl_b32 s{sT2}, s{sPair}, {cstride}")
    E(f"s_cmp_eq_u32 s{sJ}, 15"); E(f"s_cselect_b32 s{sT}, s{sT2}, s{sT}"); E(f"s_add_u32 s{sCoff}, s{sT}, {WS_CTR}")
    assert len(set((x * shards + h) % 64 for x in sig[:-1] for h in range(shards))) == shards * (len(sig) - 1)
    E.c("before the first count: wave 0 checks that the counters are live")
    E(f"s_cmp_eq_u32 s{sJ}, {jr}"); E(f"s_cselect_b32 s{sT}, s{sW0}, 0"); E(f"s_cmp_lg_u32 s{sT}, 0"); E("s_cbranch_scc0 L_v0")
    def zero_counters():
        E(f"v_lshlrev_b32 v{vTmp}, {cstride}, v{vLane}"); E(f"v_mov_b32 v{vCk}, 0"); E(f"v_mov_b32 v{vFl}, 0"); E(f"s_mov_b32 s{sT}, {WS_CTR}")
        E(f"buffer_atomic_swap_x2 {vr(vCk,2)}, v{vTmp}, {srd(sWS)}, s{sT} offen sc0")
    E(f"v_readfirstlane_b32 s{sT}, v{vFl}"); E("s_mov_b64 exec, 1"); E("s_nop 2")
    E(f"s_cmp_lg_u32 s{sT}, 0"); E("s_cbranch_scc1 L_live")
    E.c("not seen live yet: claim the job if it is free, otherwise wait for the (running) workgroup that holds it")
    E(f"v_mov_b32 v{vFl}, 1")
    E(f"buffer_atomic_add v{vFl}, off, {srd(sDBG)}, 0 sc0")
    E("s_waitcnt vmcnt(0)"); E(f"v_readfirstlane_b32 s{sT}, v{vFl}"); E("s_nop 3")
    E(f"s_cmp_eq_u32 s{sT}, 0"); E("s_cbranch_scc0 L_flag")
    E("s_mov_b64 exec, -1"); zero_counters(); E("s_mov_b64 exec, 1")
    E("s_waitcnt vmcnt(0)"); E(f"v_mov_b32 v{vFl}, 1")
    E(f"buffer_atomic_or v{vFl}, off, {srd(sDBG)}, 0 offset:4")
    E("s_branch L_live")
    E.label("L_flag")
    E(f"v_mov_b32 v{vFl}, 0")
    E(f"buffer_atomic_or v{vFl}, off, {srd(sDBG)}, 0 offset:4 sc0")
    E("s_waitcnt vmcnt(0)"); E(f"v_readfirstlane_b32 s{sT}, v{vFl}"); E(f"s_sub_u32 s{sSpin}, s{sSpin}, 1"); E("s_cbranch_scc1 L_live"); E("s_nop 2")
    E(f"s_cmp_lg_u32 s{sT}, 0"); E("s_cbranch_scc0 L_flag")
    E.label("L_live")
    if not nolocal:
        E.c("note this workgroup's XCD in the pair's word")
        E(f"s_lshl_b32 s{sT}, 1, s{sXc}"); E(f"v_mov_b32 v{vFl}, s{sT}"); E(f"s_lshl_b32 s{sT}, s{sPair}, {cstride}"); E(f"s_add_u32 s{sT}, s{sT}, {WS_CTR}")
        E(f"buffer_atomic_add v{vFl}, off, {srd(sWS)}, s{sT}")
    E("s_mov_b64 exec, -1")
    E("s_branch L_v0")

    def tree(lo, hi, reg, pre, leaf):
        if lo == hi: leaf(lo); return
        mid = (lo + hi + 1) // 2
        E(f"s_cmp_ge_u32 s{reg}, {mid}"); E(f"s_cbranch_scc1 {pre}{mid}_{hi}")
        tree(lo, mid - 1, reg, pre, leaf)
        E.label(f"{pre}{mid}_{hi}")
        tree(mid, hi, reg, pre, leaf)
    E.label("L_restore")
    def rleaf(j1):
        b = 17 * (j1 - 1)
        E(f"v_accvgpr_read_b32 v{vMx}, a{b+16}")
        for i in range(16): E(f"v_accvgpr_read_b32 v{vS+i}, a{b+i}")
        E(f"v_cmp_neq_f32 vcc, v{vMx}, v{vMO}"); E("s_cbranch_vccz L_restored"); E("s_branch L_oldref")
    tree(1, npf - 1, sJ, "L_r", rleaf)
    E.c("this tile's P used a newer reference max than O holds: bring O up to it")
    E.label("L_oldref")
    E(f"v_sub_f32 v{vTmp}, v{vMx}, v{vMO}"); E(f"v_exp_f32 v{vTmp}, v{vTmp}"); E(f"v_mov_b32 v{vMO}, v{vMx}")
    scale_O(vTmp)
    E("s_branch L_restored")
    for tag in "EC":
        E.label(f"L_oldref{tag}")
        E(f"v_sub_f32 v{vTmp}, v{vNM}, v{vMO}"); E(f"v_exp_f32 v{vTmp}, v{vTmp}"); E("s_nop 0")
        scale_O(vTmp)
        E(f"s_branch L_newref{tag}")
    E.label("L_save")
    def sleaf(i1):
        if i1 >= 2:
            for t in save_ops(i1 - 2): E(t)
        E("s_branch L_saved")
    tree(1, npf, sI, "L_s", sleaf)

    E.c("rare path: the running max rose past the threshold -> move the reference to the true running max")
    for tag, n in (("K", 32),):
        E.label(f"L_rescale{tag}")
        for sw in ("v_permlane32_swap_b32", "v_permlane16_swap_b32"):
            E(f"v_mov_b32 v{vTmp}, v{vMx}"); E("s_nop 1"); E(f"{sw} v{vTmp}, v{vMx}"); E("s_nop 1"); E(f"v_max_f32 v{vMx}, v{vMx}, v{vTmp}")
        E(f"v_max_f32 v{vTmp}, 0, v{vMx}"); E(f"v_max_f32 v{vT2}, s{sFlo}, v{vMx}")
        E(f"v_exp_f32 v{vTmp}, -v{vTmp}")
        E(f"s_mov_b32 s{sThr}, {hex(f32bits(T))}"); E(f"s_mov_b32 s{sFlo}, 0")
        for r in [vNM, vNM + 2] + [vS + i for i in range(0, n, 2)]:
            E(f"v_pk_add_f32 {vr(r,2)}, {vr(r,2)}, {vr(vT2,2)} op_sel_hi:[1,0] neg_lo:[0,1] neg_hi:[0,1]")
        E(f"v_pk_mul_f32 {vr(vL,2)}, {vr(vL,2)}, {vr(vTmp,2)} op_sel_hi:[1,0]")
        if tag != "K": scale_O(vTmp)
        E(f"s_branch L_rescaled{tag}")

    E.c("workgroup 0, wave 0: zero the 64 ticket counters in d_ws, then raise the flag in d_debug")
    E.label("L_hookK")
    E(f"s_cmp_eq_u32 s{sI}, 1"); E("s_cbranch_scc1 L_hk1")
    E(f"s_cmp_eq_u32 s{sI}, 3"); E("s_cbranch_scc0 L_k1")
    E("s_mov_b64 exec, 1"); E(f"v_mov_b32 v{vFl}, 1")
    E(f"buffer_atomic_or v{vFl}, off, {srd(sDBG)}, 0 offset:4")
    E("s_mov_b64 exec, -1"); E("s_branch L_k1")
    E.label("L_hk1")
    E(f"v_readfirstlane_b32 s{sT}, v{vFl}"); E("s_nop 3")
    E(f"s_cmp_eq_u32 s{sT}, 0"); E(f"s_cselect_b32 s{sHk}, 3, 0"); E("s_cbranch_scc0 L_k1")
    zero_counters()
    E("s_branch L_k1")

    code = pro.text() + kbody + vbody + hbody + [x["t"] for x in E.I if "mark" not in x] + ["L_codeend:"]
    if nocomp:
        kill = ("v_fma_mix", "v_cvt_pk", "v_mfma", "v_exp", "v_pk_", "v_max3", "ds_write2", "ds_write_b128", "ds_read_b128", "v_accvgpr_write_b32 a1", "v_accvgpr_read_b32 v9", "v_accvgpr_read_b32 v10", "s_cbranch_vccnz L_resc")
        a0 = code.index("L_K:"); a1 = code.index("L_round:"); c2 = []
        for i, l in enumerate(code):
            if a0 < i < a1:
                if l.strip().startswith(kill): continue
                if "lgkmcnt" in l:
                    l = "    s_waitcnt lgkmcnt(0)"
                    if c2[-1] == l: continue
            c2.append(l)
        code = c2
    if abl:
        a0 = code.index("L_last:"); a1 = code.index("L_merged:"); c2 = []
        for i, l in enumerate(code):
            if a0 < i < a1:
                if abl & 1 and "buffer_store" in l: continue
                if abl & 2 and "buffer_load" in l: continue
                if "s_cbranch_scc1 L_miss" in l: continue
                if abl & 2 and "vmcnt" in l: l = "    s_waitcnt vmcnt(0)"
            c2.append(l)
        code = c2
    if align: code = align_pass(code)
    if not nocomp and not abl: hazard_check(code)
    L = [HDR.rstrip(), f"; @launch grid=(256,1,1) block=(256,1,1) lds={LDS_TOTAL}", '.amdgcn_target "amdgcn-amd-amdhsa--gfx950"',
         ".text", f".globl {NAME}_kernel", ".p2align 8", f".type {NAME}_kernel,@function", f"{NAME}_kernel:"]
    L += code
    L += ['.section .rodata,"a"', ".p2align 6", f".amdhsa_kernel {NAME}_kernel",
          "  .amdhsa_next_free_vgpr 512", "  .amdhsa_next_free_sgpr 102", "  .amdhsa_accum_offset 256",
          "  .amdhsa_group_segment_fixed_size 0", "  .amdhsa_kernarg_size 80", "  .amdhsa_user_sgpr_count 2",
          "  .amdhsa_user_sgpr_kernarg_segment_ptr 1", "  .amdhsa_system_sgpr_workgroup_id_x 1",
          "  .amdhsa_float_denorm_mode_32 3", "  .amdhsa_float_denorm_mode_16_64 3", ".end_amdhsa_kernel"]
    open(path, "w").write("\n".join(L) + "\n")

if __name__ == "__main__":
    import argparse
    ap = argparse.ArgumentParser()
    ap.add_argument("out")
    for n, t, d in (("AL", int, 7), ("np", int, 14), ("cs", int, 8), ("nK1", int, 7), ("vtail", float, 1.0), ("T", float, 8.0), ("TM", float, 32.0),
                    ("pfcode", int, 4), ("ct", float, 0.6), ("ct0", float, 0.3), ("hv", int, 4), ("hk", float, 0.9), ("hp", int, 4), ("hq", float, 0.9), ("npre", int, 6), ("hst", int, 0), ("nocomp", int, 0), ("abl", int, 0), ("capC", str, None), ("uth", int, 4), ("grp", int, 0), ("flagf", str, ""), ("capF", str, "7"), ("capS", str, "45"), ("tabs", str, "dcbbaa0001112234,cbbaaa0000112223"), ("ms", str, "6,11"), ("shards", int, 4), ("shb", int, 3), ("ldf", str, "sc0 sc1"), ("wb", int, 0), ("wto", int, 0), ("nolocal", int, 1), ("pb", int, 100), ("jr", int, 3), ("pa", int, 0), ("pw", int, 1), ("noearly", int, 0), ("cols", str, "1000,800,4000,2000,100,240,4b0,8044"),
                    ("nt", str, "nt"), ("q", str, ""), ("smf", str, "nt"), ("outf", str, "sc0 sc1"), ("pubf", str, "sc0 sc1"),
                    ("cap", str, "5"), ("capV", str, "5"), ("capH", str, None), ("capP", str, "8")):
        ap.add_argument("--" + n, type=t, default=d)
    ap.add_argument("--mix", type=lambda x: int(x, 0), default=0)
    for n in ("stamps", "it", "dry", "noalign", "pollmax"): ap.add_argument("--" + n, action="store_true")
    a = ap.parse_args()
    gen(a.out, AL=a.AL, npf=a.np, stamps=a.stamps, nt=a.nt, smf=a.smf, qflag=a.q, cstride=a.cs, T=a.T, TM=a.TM, mix=a.mix, nK1=a.nK1, vtail=a.vtail,
        itst=a.it, outf=a.outf, pubf=a.pubf, cap=a.cap, capV=a.capV, capH=a.capH, capP=a.capP, pfcode=a.pfcode, ctspan=a.ct, ct0=a.ct0,
        hv=a.hv, hk=a.hk, hp=a.hp, hq=a.hq, npre=a.npre, dry=a.dry, hst=a.hst, align=not a.noalign, nocomp=a.nocomp, abl=a.abl, capC=a.capC, uth=a.uth, pollmax=a.pollmax, grp=a.grp, flagf=a.flagf, capF=a.capF, capS=a.capS, tabs=[[(int(c) if c.isdigit() else -(ord(c) - 96)) for c in t] for t in a.tabs.split(',')], ms=tuple(int(x) for x in a.ms.split(',') if x), shards=a.shards, shb=a.shb, ldf=a.ldf, wb=a.wb, wto=a.wto, nolocal=a.nolocal, pb=a.pb, jr=a.jr, pa=a.pa, pw=a.pw, noearly=a.noearly, cols=[int(x, 16) << 12 for x in a.cols.split(',')])
```

```python
import sys, struct, math, re
NAME = "standalone__kv_cache_quant_int4_int2_kv_with_per_channel_or_per_token_scales__sampling"
HDR = open("cdna_kernels/" + NAME + ".s.ref").read().split("; Override launch")[0]

def f32bits(x):
    return struct.unpack("<I", struct.pack("<f", x))[0]

def cost_of(s):
    op = s.split()[0]
    if op.startswith("v_mfma"): return 8
    if op in ("v_exp_f32", "v_rcp_f32"): return 8
    if op in ("ds_write_b128", "ds_write2_b64"): return 28
    if op.startswith("ds_write"): return 20
    if op == "s_barrier": return 70
    if op == "s_nop": return 4 * (int(s.split()[1]) + 1)
    return 4

class Stream:
    def __init__(self): self.I = []; self.lock = False; self.nds = 0
    def __call__(self, s, cost=None):
        self.I.append(dict(t="    " + s, c=(cost_of(s) if cost is None else cost), ins=not self.lock))
        if s.startswith("ds_"): self.nds += 1
        return self.nds
    def waitds(self, i):
        n = self.nds - i; assert 0 <= n <= 15
        self(f"s_waitcnt lgkmcnt({n})")
    def label(self, s): self.I.append(dict(t=s + ":", c=0, ins=not self.lock))
    def c(self, s): self.I.append(dict(t="    ; " + s, c=0, ins=not self.lock))
    def mark(self, kind, k=None): self.I.append(dict(mark=kind, k=k, c=0, ins=not self.lock))
    def text(self): return [x["t"] for x in self.I]

INLINE = re.compile(r"^-?(\d+|0x[0-9a-f]+)$")
def has_literal(ops):
    for o in ops:
        if INLINE.match(o):
            v = int(o, 0)
            if not -16 <= v <= 64 and (v & 0x7fffffff) not in (0x3f000000, 0x3f800000, 0x40000000, 0x40800000): return True
        elif re.match(r"^L_\w+-L_\w+$", o): return True
    return False
VOP12 = ("v_mov_b32", "v_exp_f32", "v_rcp_f32", "v_add_f32", "v_sub_f32", "v_mul_f32", "v_max_f32", "v_lshlrev_b32", "v_lshrrev_b32", "v_and_b32",
         "v_xor_b32", "v_add_u32", "v_mul_u32_u24", "v_min_u32", "v_max_u32", "v_fmac_f32", "v_cvt_f32_u32")
def isize(line):
    s = line.split(";")[0].strip()
    if not s or s.endswith(":") or s.startswith("."): return 0, None
    op, _, rest = s.partition(" ")
    ops = [o.strip() for o in rest.split(",")] if rest else []
    if op.startswith(("s_load", "s_memrealtime", "ds_", "buffer_")): return 8, None
    if op.startswith("s_"):
        if op in ("s_waitcnt", "s_nop", "s_barrier", "s_endpgm", "s_branch", "s_getreg_b32") or op.startswith("s_cbranch"): return 4, None
        return (8 if has_literal(ops) else 4), None
    if op in ("v_readfirstlane_b32", "v_permlane32_swap_b32", "v_permlane16_swap_b32"): return 4, None
    if op.startswith("v_cmp"):
        return (4 + 4 * has_literal(ops[1:]) if ops[0] == "vcc" else 8), None
    if op in VOP12:
        if any(o.startswith("-v") for o in ops): return 8, "valu"
        if has_literal(ops[1:]): return 8, "valu"
        return 4, "grow"
    if op.startswith("v_mfma"): return 8, None
    return 8, "valu"
def align_pass(L):
    out = []; par = 0; last = None
    for i, line in enumerate(L):
        sz, kind = isize(line)
        if sz == 8 and par and last is not None:
            j = last; op = out[j].split()[0]
            out[j] = out[j].replace(op, op + "_e64", 1); par = 0
        elif sz == 8 and par:
            n = 0
            for l2 in L[i:]:
                s2, k2 = isize(l2)
                if s2 == 4: break
                n += k2 == "valu"
            if n >= 7: out.append("    s_nop 0"); par = 0
        if sz == 8: last = None
        if sz == 4:
            par ^= 1
            if kind == "grow": last = len(out)
        out.append(line)
    return out

def regs_of(tok):
    m = re.match(r"^-?v\[(\d+):(\d+)\]$", tok)
    if m: return set(range(int(m.group(1)), int(m.group(2)) + 1))
    m = re.match(r"^-?v(\d+)$", tok)
    return {int(m.group(1))} if m else set()
def hazard_check(L):
    hist = []
    for line in L:
        s = line.split(";")[0].strip()
        if not s or s.endswith(":") or s.startswith("."): continue
        op, _, rest = s.partition(" ")
        toks = [o.strip().split(" ")[0] for o in rest.split(",")] if rest else []
        if op in ("s_branch", "s_endpgm"): hist = []; continue
        st = int(toks[0]) + 1 if op == "s_nop" else 1
        allr = [regs_of(t) for t in toks]
        isv = op.startswith("v_"); mf = op.startswith("v_mfma")
        store = op.startswith(("ds_write", "buffer_store", "buffer_atomic"))
        dst = set() if (store or not allr or op.startswith(("v_cmp", "v_readfirstlane"))) else allr[0]
        src = set().union(*(allr if store or op.startswith(("v_cmp", "v_permlane", "v_fmac")) else allr[1:])) if allr else set()
        if op.startswith("v_permlane"): dst = src
        d = 0
        for (pop, pdst, psrcC, pst) in reversed(hist):
            need = 0
            if pop.startswith("v_mfma"):
                if mf:
                    if pdst & (allr[1] | allr[2]): need = 8
                    elif pdst & allr[3] and pdst != allr[3]: need = 6
                elif pdst & (src | dst): need = 8
                elif isv and psrcC & dst: need = 3
            elif pop.startswith("v_"):
                if mf and pdst & src: need = 2
                if op.startswith("v_permlane") and pdst & src: need = 2
                if op == "v_readfirstlane_b32" and pdst & src: need = 1
                if pop.split("_e64")[0] in ("v_exp_f32", "v_rcp_f32") and isv and op.split("_e64")[0] not in ("v_exp_f32", "v_rcp_f32") and pdst & src: need = max(need, 1)
                if pop.startswith("v_dot") and op != pop and pdst & (src | dst): need = 3
            elif pop.startswith("buffer_store_dwordx4") and isv and psrcC & dst: need = 2
            assert d >= need, f"hazard: {pop} -> {s} distance {d} < {need}"
            d += pst
            if d >= 8: break
        hist.append((op, dst, (allr[3] if mf else (allr[0] if op.startswith("buffer_store") else set())), st))

def gen(path, AL=8, npf=14, stamps=False, nt="nt", smf="nt", qflag="", cstride=8, T=8.0, TM=32.0, mix=0x31031031, nK1=9, vtail=1.0,
        itst=False, outf="sc0 sc1", pubf="sc0 sc1", cap="56", capV="556", capH=None, capP="8", pfcode=4, ctspan=0.95, ct0=0.15,
        hv=4, hk=0.9, hp=4, hq=0.9, npre=6, dry=False, hst=0, align=True, nocomp=0, abl=0, capC=None, uth=4, pollmax=False, grp=0, flagf='', capF='7', capS='45', tabs=None, ms=(5, 11), shards=4, shb=3, cols=None, ldf='sc0 sc1', wb=False, wto=0, nolocal=False, pb=100, jr=3, pa=1, pw=1):
    npf = 16
    capn = lambda c, k: int(c[k % len(c)], 16) - 1
    KROW = 288; JS = 576; OS = 2320
    TABW = 16 * 256
    LDS_MB = 0; LDS_SC = 256; LDS_TAB = 1536; LDS_K = LDS_TAB + 4 * TABW; LDS_V = LDS_K + 128 * KROW
    LDS_TOTAL = LDS_V + 16 * OS
    assert LDS_K % 256 == 0 and LDS_K + 128 * KROW < 65536 and LDS_TAB % 512 == 0 and TABW % 512 == 0
    WS_SLOT = 1 << 20; WS_CTR = 16 << 20; FLAG = 0x100
    SPIN = 1 << 20
    PF = 8
    vLane, vOff, vMb, vKR, vSW, vSR, vVW, vVR, vTK, vTV, vL4, vLin = range(12)
    vHd = 12
    vCk, vFl = 14, 15
    vL = 16
    vT2 = 18
    vKS, vKC = 20, 24; vKSr, vKZr, vVSr, vVZr = 28, 30, 32, 33
    vTmp = 34
    vMx, vAt, vMO = 37, 38, 39
    vKP = 40; vVP = 48; vO = 64; vS = 96; vRing = 128; vQ = 192; vSt = 208; NST = 10
    vNM = 248; vKW = 252
    vSc = vS + 16
    sX, sY, sSM, sQ, sDBG, sWS, sOUT = 8, 12, 16, 20, 24, 28, 32
    sKb, sVb = 36, 38
    sPair, sSplit, sI, sJ, sG, sT, sT2, sFlo, sThr, sDoff, sCoff, sIni, sKsl, sVsl, sWb, sPend, sSpin, sW0, sHk, sMode = range(40, 60)
    sAt = 49; sShard = 82; sCnt = 83; sXc = 71
    sO = 60
    sK1, sK2 = 64, 66
    sCw = 72
    sPo = 76
    sWave = 3
    srd = lambda r: f"s[{r}:{r+3}]"
    vr = lambda r, n: f"v[{r}:{r+n-1}]"
    def item_text(k):
        return f"buffer_load_dwordx4 {vr(vRing+4*k,4)}, v{vOff}, {srd(sX if k < 8 else sY)}, s{sO + k//4} offen offset:{(k%4)*1024} {nt}"
    sXm = 101 if not stamps else 59 + 40
    sXm = 2
    def unit_offs(A, idx, slot):
        if idx is None: A(f"s_mov_b32 s{sO}, s{sXm}")
        else: A(f"s_lshl_b32 s{sO}, s{idx}, 16"); A(f"s_xor_b32 s{sO}, s{sO}, s{sXm}")
        A(f"s_add_u32 s{sO+1}, s{sO}, 4096"); A(f"s_xor_b32 s{sO+2}, s{sO}, 0x4000"); A(f"s_xor_b32 s{sO+3}, s{sO+1}, 0x4000")
        if slot is not None: A(f"s_bfe_u32 s{slot}, s{sO}, 0xc0008")
    def set_base(A, b, b2=None):
        if b2 is None: b2 = b
        A(f"s_mov_b64 s[{sX}:{sX+1}], s[{b}:{b+1}]"); A(f"s_mov_b64 s[{sY}:{sY+1}], s[{b2}:{b2+1}]")
    A = Stream()
    A("s_cmp_ge_u32 s2, 256"); A("s_cbranch_scc1 L_end")
    if stamps: A("s_memrealtime s[84:85]"); A("s_mov_b32 s101, 0")
    A("s_load_dwordx16 s[68:83], s[0:1], 0")
    A("s_load_dwordx4 s[4:7], s[0:1], 64")
    if pfcode:
        A.c("pull this kernel's code into L2 with strided loads (speed only; the values are unused)")
        A("s_getpc_b64 s[92:93]"); A("s_and_b32 s92, s92, 0xffffff00"); A("s_mov_b32 s94, L_codeend-L_pf"); A("s_mov_b32 s95, 0x20000")
        A.label("L_pf")
        A(f"v_lshlrev_b32 v{vTmp}, 7, v0")
        A(f"s_lshr_b32 s{sT2}, s2, 3"); A(f"s_and_b32 s{sT2}, s{sT2}, {pfcode-1}"); A(f"s_cselect_b32 s94, 0, s94")
        A(f"buffer_load_dword v{vTmp}, v{vTmp}, s[92:95], 0 offen")
    A("v_lshrrev_b32 v1, 6, v0")
    A(f"v_and_b32 v{vLane}, 63, v0")
    A(f"v_readfirstlane_b32 s{sWave}, v1")
    A(f"s_bfe_u32 s{sIni}, s2, {hex((int(math.log2(shards)) << 16) | shb)}")
    A.c("workgroup id -> (pair, split) and the order in which it walks its token groups: a bijection (placement affects speed only)")
    A(f"s_lshl_b32 s{sT2}, s2, 20")
    for i, c in enumerate(cols):
        x = c ^ (1 << (20 + i))
        if x: A(f"s_bitcmp1_b32 s2, {i}"); A(f"s_cselect_b32 s{sT}, {hex(x)}, 0"); A(f"s_xor_b32 s{sT2}, s{sT2}, s{sT}")
    if mix:
        A(f"s_lshr_b32 s{sT}, s2, 3"); A(f"s_and_b32 s{sT}, s{sT}, 7"); A(f"s_lshl_b32 s{sT}, s{sT}, 2")
        A(f"s_lshr_b32 s{sT}, {hex(mix)}, s{sT}"); A(f"s_and_b32 s{sT}, s{sT}, 3"); A(f"s_and_b32 s{sT}, s{sT}, s2")
        A(f"s_bcnt1_i32_b32 s{sT}, s{sT}"); A(f"s_and_b32 s{sT}, s{sT}, 1"); A(f"s_lshl_b32 s{sT}, s{sT}, 22"); A(f"s_xor_b32 s{sT2}, s{sT2}, s{sT}")
    def idmap(w):
        v = 0
        for i, c in enumerate(cols):
            if w >> i & 1: v ^= c
        if mix: v ^= (bin((mix >> (4 * ((w >> 3) & 7))) & 3 & w).count("1") & 1) << 22
        return v
    assert len(set(idmap(w) >> 20 for w in range(256))) == 256 and all(idmap(w) & ~0xfff4000 == 0 for w in range(256)) and idmap(0) == 0
    A(f"s_mov_b32 s{sMode}, s2")
    A(f"s_lshr_b32 s{sPair}, s{sT2}, 22"); A(f"s_bfe_u32 s{sSplit}, s{sT2}, 0x20014"); A(f"s_and_b32 s{sXm}, s{sT2}, 0x3fffff")
    c_, h_, m_, g_ = vKS, vKS + 1, vKS + 2, vKS + 3
    t0, t1, vQo = vKC, vKC + 1, vKC + 2
    A(f"v_and_b32 v{c_}, 31, v{vLane}"); A(f"v_lshrrev_b32 v{h_}, 5, v{vLane}")
    A(f"v_and_b32 v{m_}, 15, v{vLane}"); A(f"v_lshrrev_b32 v{g_}, 4, v{vLane}")
    A(f"v_lshlrev_b32 v{vLin}, 4, v{vLane}"); A(f"v_lshlrev_b32 v{vL4}, 2, v{vLane}")
    A(f"s_and_b32 s{sT}, s{sWave}, 1"); A(f"s_lshl_b32 s{sT}, s{sT}, 13")
    A(f"s_lshr_b32 s{sT2}, s{sWave}, 1"); A(f"s_lshl_b32 s{sT2}, s{sT2}, 15"); A(f"s_add_u32 s{sWb}, s{sT}, s{sT2}")
    A(f"v_add_u32 v{vOff}, s{sWb}, v{vLin}")
    A(f"v_lshlrev_b32 v{vQo}, 8, v{m_}"); A(f"v_lshl_add_u32 v{vQo}, v{g_}, 4, v{vQo}")
    for i in range(4): A(f"v_mov_b32 v{vVP+i}, -1")
    def own_slot(A):
        A(f"s_lshl2_add_u32 s{sT}, s{sPair}, s{sWave}"); A(f"s_lshl2_add_u32 s{sT}, s{sT}, s{sSplit}")
        A(f"s_lshl_b32 s{sT}, s{sT}, 13"); A(f"s_add_u32 s{sT}, s{sT}, {WS_SLOT}"); A(f"s_add_u32 s{sT2}, s{sT}, 4096")
    A(f"s_mul_i32 s{sG}, s{sWave}, {TABW}"); A(f"s_add_u32 s{sG}, s{sG}, {LDS_TAB}"); A(f"s_mov_b32 m0, s{sG}")
    own_slot(A)
    for r in (sX, sY): A(f"s_mov_b32 s{r+2}, {0 if dry else 0x400000}"); A(f"s_mov_b32 s{r+3}, 0x20000")
    A(f"s_mov_b32 s{sWS+2}, 0x40000000"); A(f"s_mov_b32 s{sWS+3}, 0x20000")
    A(f"s_lshl_b32 s{sT}, s{sPair}, 22")
    A(f"s_mov_b32 s{sDBG+2}, 256"); A(f"s_mov_b32 s{sDBG+3}, 0x20000"); A(f"v_mov_b32 v{vFl}, 1")
    unit_offs(A, None, sVsl); A(f"s_andn2_b32 s{sKsl}, s{sVsl}, 255")
    for r in (sSM, sQ, sOUT): A(f"s_mov_b32 s{r+2}, 0x4000"); A(f"s_mov_b32 s{r+3}, 0x20000")
    A(f"s_lshl_b32 s{sPend}, s{sPair}, 14")
    A("s_waitcnt lgkmcnt(0)")
    def mk(r, p): A(f"s_add_u32 s{r}, s{p}, s{sPend}"); A(f"s_addc_u32 s{r+1}, s{p+1}, 0")
    A(f"s_add_u32 s{sKb}, s70, s{sT}"); A(f"s_addc_u32 s{sKb+1}, s71, 0")
    set_base(A, sKb)
    for k in range(npre): A(item_text(k))
    A(f"s_add_u32 s{sVb}, s72, s{sT}"); A(f"s_addc_u32 s{sVb+1}, s73, 0")
    A.c("wave w streams scale/zero array w (ks, kz, vs, vz) into the LDS table")
    A(f"s_cmp_eq_u32 s{sWave}, 1"); A(f"s_cselect_b64 s[{sSM}:{sSM+1}], s[76:77], s[74:75]")
    A(f"s_cmp_eq_u32 s{sWave}, 2"); A(f"s_cselect_b64 s[{sSM}:{sSM+1}], s[78:79], s[{sSM}:{sSM+1}]")
    A(f"s_cmp_eq_u32 s{sWave}, 3"); A(f"s_cselect_b64 s[{sSM}:{sSM+1}], s[80:81], s[{sSM}:{sSM+1}]")
    mk(sSM, sSM)
    A(f"s_lshl_b32 s{sT}, s{sSplit}, 12")
    nT = (npf + 3) // 4
    for u in range(nT):
        rows = min(4, npf - 4 * u)
        if rows < 4: A(f"s_bfm_b64 exec, {16*rows}, 0")
        A(f"buffer_load_dwordx4 v{vLin}, {srd(sSM)}, s{sT} offen offset:{u*1024} {smf} lds")
        if rows < 4: A("s_mov_b64 exec, -1")
    mk(sQ, 68)
    A(f"s_lshl_b32 s{sT}, s{sWave}, 12")
    for s4 in range(4): A(f"buffer_load_dwordx4 {vr(vQ+4*s4,4)}, v{vQo}, {srd(sQ)}, s{sT} offen offset:{s4*64} {qflag}")
    A.c("mark the header of this wave's hand-off slot empty")
    A(f"s_mov_b64 s[{sWS}:{sWS+1}], s[6:7]")
    A(f"buffer_store_dwordx4 {vr(vVP,4)}, v{vLin}, {srd(sWS)}, s{sT2} offen sc0 sc1")
    A.c("workgroup 0 claims the job of zeroing the ticket counters (any workgroup takes it over later if nobody has)")
    A(f"s_mov_b64 s[{sDBG}:{sDBG+1}], s[4:5]")
    A(f"s_cmp_eq_u32 s{sWave}, 0"); A(f"s_cselect_b32 s{sW0}, 1, 0")
    A(f"s_or_b32 s{sT}, s{sMode}, s{sWave}"); A(f"s_cselect_b32 s{sHk}, 0, 3"); A("s_cbranch_scc1 L_noel")
    A("s_mov_b64 exec, 1")
    A(f"buffer_atomic_add v{vFl}, off, {srd(sDBG)}, 0 sc0")
    A("s_mov_b64 exec, -1")
    A.label("L_noel")
    mk(sOUT, 82)
    A(f"v_lshlrev_b32 v{vTK}, 3, v{c_}")
    A(f"v_lshrrev_b32 v{vTV}, 4, v{c_}"); A(f"v_lshlrev_b32 v{vTV}, 5, v{vTV}")
    A(f"v_and_b32 v{t0}, 15, v{c_}"); A(f"v_add_lshl_u32 v{vTV}, v{vTV}, v{t0}, 1")
    A(f"s_lshr_b32 s{sT}, s{sWb}, 8"); A(f"v_add_u32 v{vTV}, s{sT}, v{vTV}")
    A(f"s_lshr_b32 s{sT}, s{sWave}, 1"); A(f"s_and_b32 s{sT2}, s{sWave}, 1")
    A(f"s_mul_i32 s{sT}, s{sT}, {32*KROW}"); A(f"s_mul_i32 s{sT2}, s{sT2}, {8*KROW}"); A(f"s_add_u32 s{sT}, s{sT}, s{sT2}"); A(f"s_add_u32 s{sT}, s{sT}, {LDS_K}")
    A(f"v_mul_u32_u24 v{vKW}, {4*KROW}, v{h_}"); A(f"v_lshl_add_u32 v{vKW}, v{c_}, 3, v{vKW}"); A(f"v_add_u32 v{vKW}, s{sT}, v{vKW}")
    for u, rows in ((1, 16), (2, 64), (3, 80)): A(f"v_add_u32 v{vKW+u}, {rows*KROW}, v{vKW}")
    A(f"v_mul_u32_u24 v{vKR}, {KROW}, v{m_}"); A(f"v_lshl_add_u32 v{vKR}, v{g_}, 4, v{vKR}")
    A(f"s_mul_i32 s{sT}, s{sWave}, {2*OS}"); A(f"s_add_u32 s{sT}, s{sT}, {LDS_V}")
    A(f"v_mul_u32_u24 v{vVW}, {OS}, v{h_}"); A(f"v_lshl_add_u32 v{vVW}, v{c_}, 4, v{vVW}"); A(f"v_add_u32 v{vVW}, s{sT}, v{vVW}")
    A(f"v_mul_u32_u24 v{vVR}, {OS}, v{g_}"); A(f"v_and_b32 v{t0}, 3, v{m_}"); A(f"v_mul_u32_u24 v{t0}, {JS}, v{t0}")
    A(f"v_lshrrev_b32 v{t1}, 2, v{m_}"); A(f"v_lshlrev_b32 v{t1}, 5, v{t1}")
    A(f"v_add3_u32 v{vVR}, v{vVR}, v{t0}, v{t1}"); A(f"v_add_u32 v{vVR}, {LDS_V}, v{vVR}")
    A(f"s_lshl_b32 s{sT}, s{sWave}, 8"); A(f"s_add_u32 s{sT2}, s{sT}, {LDS_SC}")
    A(f"v_and_b32 v{vSW}, 1, v{c_}"); A(f"v_lshlrev_b32 v{vSW}, 7, v{vSW}")
    A(f"v_lshrrev_b32 v{t0}, 1, v{c_}"); A(f"v_lshl_add_u32 v{vSW}, v{t0}, 3, v{vSW}"); A(f"v_add_u32 v{vSW}, s{sT2}, v{vSW}")
    A(f"v_lshlrev_b32 v{vSR}, 7, v{h_}"); A(f"v_add_u32 v{vSR}, s{sT2}, v{vSR}")
    A(f"v_mov_b32 v{vMb}, {LDS_MB}")
    A(f"s_mov_b32 s{sCoff}, {WS_CTR}")
    cc = math.log2(math.e) / math.sqrt(128.0)
    for i in range(2): A(f"s_mov_b32 s{sK1+i}, {hex(f32bits(cc * 2.0**24))}"); A(f"s_mov_b32 s{sK2+i}, {hex(f32bits(-2.0**-24))}")
    A.c("the first tile always takes the rescale path, which sets the reference to that tile's true row max")
    A(f"s_mov_b32 s{sThr}, 0xff800000"); A(f"s_mov_b32 s{sFlo}, 0xff800000")
    for r in (sAt, sMode, sCnt, sI, sJ): A(f"s_mov_b32 s{r}, 0")
    A(f"s_mov_b32 s{sShard}, s{sIni}")
    if not nolocal: A(f"s_getreg_b32 s{sXc}, hwreg(HW_REG_XCC_ID, 0, 3)"); A(f"s_mul_i32 s{sXc}, s{sXc}, 3"); A(f"s_add_u32 s{sXc}, s{sXc}, 8")
    A(f"s_mov_b32 s{sSpin}, {SPIN}")
    for i, w in enumerate((0x9e37c2b3, 0x85eb6d2f, 0x27d4f1a9, 0x165753c5)): A(f"s_mov_b32 s{sCw+i}, {hex(w)}")
    for i in range(32): A(f"v_mov_b32 v{vO+i}, 0")
    for i in range(4): A(f"v_mov_b32 v{vNM+i}, 0")
    A(f"v_mov_b32 v{vMO}, 0x7149f2ca"); A(f"v_mov_b32 v{vL}, 0"); A(f"v_mov_b32 v{vL+1}, 0"); A(f"v_mov_b32 v{vAt}, 0")
    def ktab_reads(S):
        S(f"v_add_u32 v{vTmp+2}, s{sKsl}, v{vTK}")
        S(f"ds_read_b64 {vr(vKSr,2)}, v{vTmp+2} offset:{LDS_TAB}"); S(f"ds_read_b64 {vr(vKZr,2)}, v{vTmp+2} offset:{LDS_TAB+TABW}")
    def vtab_reads(S):
        S(f"v_xor_b32 v{vTmp+2}, s{sVsl}, v{vTV}")
        S(f"ds_read_u16 v{vVSr}, v{vTmp+2} offset:{LDS_TAB+2*TABW}"); S(f"ds_read_u16 v{vVZr}, v{vTmp+2} offset:{LDS_TAB+3*TABW}")
    def prep_v(S):
        S.c("V: S = vs*2^24, C = -vz*vs per token, broadcast through LDS")
        S(f"v_lshlrev_b32 v{vT2}, 16, v{vVSr}"); S(f"v_lshlrev_b32 v{vT2+1}, 16, v{vVZr}")
        S(f"v_mul_f32 v{vT2+1}, -v{vT2+1}, v{vT2}"); S(f"v_mul_f32 v{vT2}, 0x4b800000, v{vT2}")
        S(f"ds_write_b64 v{vSW}, {vr(vT2,2)}")
    def prep_k(S):
        S.c("K: S = ks*c*2^24, C = -kz*ks*c per channel, c = log2(e)/sqrt(128) (the int code is read as an f16 subnormal, code*2^-24)")
        for p in range(2): S(f"v_lshlrev_b32 v{vKS+2*p}, 16, v{vKSr+p}"); S(f"v_lshlrev_b32 v{vKC+2*p}, 16, v{vKZr+p}")
        for p in range(2): S(f"v_and_b32 v{vKS+2*p+1}, 0xffff0000, v{vKSr+p}"); S(f"v_and_b32 v{vKC+2*p+1}, 0xffff0000, v{vKZr+p}")
        for p in range(2): S(f"v_pk_mul_f32 {vr(vKS+2*p,2)}, {vr(vKS+2*p,2)}, s[{sK1}:{sK1+1}]")
        for p in range(2): S(f"v_pk_mul_f32 {vr(vKC+2*p,2)}, {vr(vKC+2*p,2)}, s[{sK2}:{sK2+1}]")
        for p in range(2): S(f"v_pk_mul_f32 {vr(vKC+2*p,2)}, {vr(vKC+2*p,2)}, {vr(vKS+2*p,2)}")
    def sc_lo_reads(S):
        for i in range(4): S(f"ds_read_b128 {vr(vSc+4*i,4)}, v{vSR} offset:{i*16}")
    for k in range(npre, 16):
        A(f"s_waitcnt vmcnt({capn(capP, k)})"); A(item_text(k))
    ENTRYV = 15 - max(capn(c, 15) for c in (cap, capV, capF, capS))
    ENTRY = 15 - capn(cap, 15)
    assert 16 - ENTRY <= 16 - npre
    A(f"s_waitcnt vmcnt({16 - ENTRY})"); A("s_barrier")
    ktab_reads(A); vtab_reads(A)
    A("s_waitcnt lgkmcnt(0)")
    prep_v(A)
    pro = A

    def itstamp(S):
        if stamps and itst:
            S("s_memrealtime s[96:97]"); S("s_mov_b32 s98, m0"); S(f"s_add_u32 m0, s{sI}, s{sJ}"); S(f"v_accvgpr_read_b32 v{vTmp+2}, a255"); S("s_waitcnt lgkmcnt(0)")
            S(f"v_writelane_b32 v{vTmp+2}, s96, m0"); S("s_mov_b32 m0, s98"); S(f"v_accvgpr_write_b32 a255, v{vTmp+2}")

    def emit(B, items, place, seq0, done0, caps, name, at=None):
        out = []; ei = 0; done = done0; info = []; marks = {}
        def wait(n):
            nonlocal done
            if ei - n > done: out.append(f"    s_waitcnt vmcnt({n})"); done = ei - n; return True
            return False
        for i, x in enumerate(B.I):
            while ei < len(items) and place[ei] == i:
                if ei == at:
                    out.extend([f"    s_cmp_lg_u32 s{sAt}, 0", "    s_cbranch_scc0 L_noat", "    s_mov_b64 exec, 1", f"    v_mov_b32 v{vAt}, 1",
                                f"    buffer_atomic_add v{vAt}, off, {srd(sWS)}, s{sCoff} sc0", "    s_mov_b64 exec, -1", "L_noat:"])
                if caps: wait(capn(caps, ei))
                out.append("    " + items[ei]); ei += 1
            if "mark" in x:
                marks[(x["mark"], x["k"])] = (ei, done)
                if x["mark"] == "wait":
                    n = ei - 1 - seq0[x["k"]]; assert n >= 0
                    info.append((x["k"], n, wait(n)))
                elif x["mark"] == "smallwait": wait(ei - x["k"])
                elif x["mark"] == "postwait": out.append(f"    s_waitcnt vmcnt({AL})")
            else: out.append(x["t"])
        assert ei == len(items)
        print(name, "cost", sum(x["c"] for x in B.I), "waits", [(k, n) for k, n, w in info if w], "lead", min(n for k, n, w in info), file=sys.stderr)
        return out, marks
    class Pos:
        def __init__(self, B):
            self.I = B.I; self.cum = []; a = 0
            for x in B.I: self.cum.append(a); a += x["c"]
            self.tot = a
        def i(self, kind, k=None): return next(i for i, x in enumerate(self.I) if x.get("mark") == kind and x.get("k") == k)
        def c(self, kind, k=None): return self.cum[self.i(kind, k)]
        def at(self, t, lo):
            p = max(lo, next((i for i in range(len(self.I)) if self.cum[i] >= t), len(self.I) - 1))
            while not self.I[p]["ins"]: p += 1
            return p

    def deq(S, r, s, c): S(f"v_fma_mix_f32 v{r}, v{r}, v{s}, v{c} op_sel_hi:[1,0,0]")
    def kitems(B, n):
        for k in range(0, n, 2):
            r = vRing + 4 * k; t = vKP + 4 * ((k // 2) % 2)
            B.mark("wait", k + 1)
            for u in range(2):
                for j in range(4): deq(B, r + 4 * u + j, vKS + j, vKC + j)
            for u in range(4): B(f"v_cvt_pk_bf16_f32 v{t+u}, v{r+2*u}, v{r+2*u+1}")
            B.mark("free", k); B.mark("free", k + 1)
            B(f"ds_write2_b64 v{vKW + k//4}, {vr(t,2)}, {vr(t+2,2)} offset0:{(k%4)*KROW//8} offset1:{(k%4+1)*KROW//8}")
        B.mark("kdone")
    def mfma_loop(B, reads, mfmas, fill, start=0, ids=None, after=None):
        n = len(mfmas)
        if ids is None:
            ids = {}
            for i in range(PF): ids[i] = B(reads[i])
            for t in fill.get(-1, []): B(t)
        for i in range(start, n):
            if i % 2 == 0 or i == start: B.waitds(ids[min(n - 1, i | 1)])
            B(mfmas[i])
            if i + PF < n: ids[i + PF] = B(reads[i + PF])
            for t in fill.get(i, []): B(t)
            if after and i in after: after[i](dict(ids))
    def qk_lists(nblk):
        order = [(2 * bp + u, s4) for bp in range(nblk // 2) for s4 in range(4) for u in range(2)]
        rd = [f"ds_read_b128 {vr(vSt+4*(i%NST),4)}, v{vKR} offset:{LDS_K + b*16*KROW + s4*64}" for i, (b, s4) in enumerate(order)]
        mf = [f"v_mfma_f32_16x16x32_bf16 {vr(vS+4*b,4)}, {vr(vSt+4*(i%NST),4)}, {vr(vQ+4*s4,4)}, {vr(vNM,4) if s4 == 0 else vr(vS+4*b,4)}" for i, (b, s4) in enumerate(order)]
        return rd, mf
    def max_ops(bp):
        b = vS + 8 * bp
        if bp == 0: return [f"v_max3_f32 v{vMx}, v{b}, v{b+1}, v{b+2}", f"v_max3_f32 v{vMx}, v{vMx}, v{b+3}, v{b+4}", f"v_max3_f32 v{vMx}, v{vMx}, v{b+5}, v{b+6}", f"v_max_f32 v{vMx}, v{vMx}, v{b+7}"]
        return [f"v_max3_f32 v{vMx}, v{vMx}, v{b+2*u}, v{b+2*u+1}" for u in range(4)]
    def qk_fill(nblk):
        f = {}
        for bp in range(nblk // 2 - 1):
            last = bp + 2 == nblk // 2
            slots = (4, 5, 6, 7) if last else (3, 5, 7, 7)
            for s_, t in zip(slots, max_ops(bp)): f.setdefault(8 * (bp + 1) + s_, []).append(t)
        return f
    def check_max(B, nblk, tag, pre):
        for t in pre: B(t)
        if len(pre) < 6: B(f"s_nop {5 - len(pre)}")
        for t in max_ops(nblk // 2 - 1): B(t)
        B(f"v_cmp_lt_f32 vcc, s{sThr}, v{vMx}")
        B.lock = True
        B(f"s_cbranch_vccnz L_rescale{tag}")
        B.label(f"L_rescaled{tag}")
        B.lock = False
    exp_op = lambda i: f"v_exp_f32 v{vS+i}, v{vS+i}"
    sum_cvt = lambda i: [f"v_pk_add_f32 {vr(vL,2)}, {vr(vL,2)}, {vr(vS+2*i,2)}", f"v_cvt_pk_bf16_f32 v{vS+i}, v{vS+2*i}, v{vS+2*i+1}"]
    def vphase(B, k0, s, refill_hi):
        rg = lambda n8: vRing + 4 * (k0 + n8)
        for n8 in (0, 2):
            B.mark("wait", k0 + n8 + 1)
            for u in range(2):
                for j in range(4): deq(B, rg(n8 + u) + j, vSc + 2 * (n8 + u), vSc + 2 * (n8 + u) + 1)
            if refill_hi: B(f"ds_read_b128 {vr(vSc+4*(n8//2),4)}, v{vSR} offset:{64 + (n8//2)*16}")
            for j in range(4): B(f"v_cvt_pk_bf16_f32 v{vVP+4*j+n8//2}, v{rg(n8)+j}, v{rg(n8+1)+j}")
            B.mark("free", k0 + n8); B.mark("free", k0 + n8 + 1)
        B.mark("wait", k0 + 7)
        for j in range(4):
            for n8 in range(4, 8): deq(B, rg(n8) + j, vSc + 2 * n8, vSc + 2 * n8 + 1)
            for n8 in (4, 6): B(f"v_cvt_pk_bf16_f32 v{vVP+4*j+n8//2}, v{rg(n8)+j}, v{rg(n8+1)+j}")
            if j == 3:
                for n8 in range(4, 8): B.mark("free", k0 + n8)
            B(f"ds_write_b128 v{vVW}, {vr(vVP+4*j,4)} offset:{s*8*OS + j*JS}")
        if refill_hi:
            for u in (2, 3): B(f"ds_read_b128 {vr(vSc+4*u,4)}, v{vSR} offset:{64 + u*16}")
    def pv_lists(s):
        lst = [(2 * s + kk, db) for kk in range(2) for db in range(8)]
        rd = [f"ds_read_b128 {vr(vSt+4*(i%NST),4)}, v{vVR} offset:{ks*4*OS + (db//2)*128 + (db%2)*16}" for i, (ks, db) in enumerate(lst)]
        mf = [f"v_mfma_f32_16x16x32_bf16 {vr(vO+4*db,4)}, {vr(vSt+4*(i%NST),4)}, {vr(vS+4*ks,4)}, {vr(vO+4*db,4)}" for i, (ks, db) in enumerate(lst)]
        return rd, mf
    def ops_of(f):
        S = Stream(); f(S); return [x["t"].strip() for x in S.I if not x["t"].strip().startswith(";")]
    def spread(ops, first, per=1):
        f = {}
        for n, t in enumerate(ops): f.setdefault(first + n // per, []).append(t)
        return f
    def save_ops(i0):
        return [f"v_accvgpr_write_b32 a{17*i0+i}, v{vS+i}" for i in range(16)] + [f"v_accvgpr_write_b32 a{17*i0+16}, v{vNM}"]
    unit_items = [item_text(k) for k in range(16)]
    unit_seq = {k: k - 16 for k in range(16)}

    B = Stream()
    B.lock = True
    B.label("L_K")
    itstamp(B)
    B(f"s_add_u32 s{sI}, s{sI}, 1")
    B(f"s_cmp_lt_u32 s{sI}, {npf}"); B("s_cbranch_scc0 L_k2v")
    unit_offs(B, sI, sKsl); B(f"s_andn2_b32 s{sKsl}, s{sKsl}, 255")
    B(f"s_cmp_le_u32 s{sI}, s{sHk}"); B("s_cbranch_scc1 L_hookK")
    B.label("L_k1")
    B("s_waitcnt lgkmcnt(0)")
    B.lock = False
    B.mark("ready")
    prep_k(B)
    kitems(B, 16)
    B.c("park the previous tile's P while the K rows settle in LDS")
    B("s_branch L_save", 150)
    B.lock = True
    B.label("L_saved")
    B.lock = False
    B("s_waitcnt lgkmcnt(0)"); B("s_barrier", 20)
    B.c("S^T - m = K Q^T - m (log2 units)")
    rd, mf = qk_lists(8)
    mfma_loop(B, rd, mf, qk_fill(8))
    B("s_barrier", 10)
    check_max(B, 8, "K", ops_of(ktab_reads))
    for half in range(2):
        for i in range(16): B(exp_op(16 * half + i))
        for i in range(8):
            for t in sum_cvt(8 * half + i): B(t)
    B.mark("allissued")
    B.lock = True
    B(f"s_cmp_lt_u32 s{sI}, {npf}"); B("s_cbranch_scc1 L_K")
    sc_lo_reads(B)
    B.c("the last tile's P waits in the Q registers; l is final: sum it over the four lane groups")
    for i in range(16): B(f"v_mov_b32 v{vQ+i}, v{vS+i}")
    B(f"v_add_f32 v{vHd+1}, v{vL}, v{vL+1}")
    for sw in ("v_permlane32_swap_b32", "v_permlane16_swap_b32"):
        B(f"v_mov_b32 v{vTmp+1}, v{vHd+1}"); B("s_nop 1"); B(f"{sw} v{vTmp+1}, v{vHd+1}"); B("s_nop 1"); B(f"v_add_f32 v{vHd+1}, v{vHd+1}, v{vTmp+1}")
    B.lock = False
    P = Pos(B); c0 = P.c("free", 0); c1 = P.c("kdone"); c2 = P.c("allissued")
    tg = [c0 + (c1 - c0) * k / (nK1 - 1) for k in range(nK1)] + [c1 + (c2 - c1) * (k + 1) / (16 - nK1) - 8 for k in range(16 - nK1)]
    pl = []
    for k in range(16): pl.append(P.at(tg[k], max(pl[-1] if pl else 0, P.i("free", k) + 1))); assert pl[-1] <= P.i("allissued")
    kbody, _ = emit(B, unit_items, pl, unit_seq, ENTRY - 16, cap, "K")
    print("  K issue", [P.cum[p] for p in pl], file=sys.stderr)

    sig = sorted(m + 1 for m in ms) + [15]
    assert jr <= sig[0] and jr < 14
    events = sorted(set(sig) | set(x + 1 for x in sig) | {jr})
    D_ = Stream()
    D_.label("L_V")
    itstamp(D_)
    D_(f"s_add_u32 s{sJ}, s{sJ}, 1")
    D_(f"s_bitcmp1_b32 {hex(sum(1 << e for e in events))}, s{sJ}")
    D_("s_waitcnt lgkmcnt(0)")
    D_("s_cbranch_scc1 L_ctl")
    D_.label("L_v0")
    unit_offs(D_, sJ, sVsl)
    D_(f"s_cmp_lg_u32 s{sMode}, 0"); D_("s_cbranch_scc1 L_vdisp")
    def make_V(tag, caps):
        B = Stream()
        B.label(f"L_V{tag}_")
        B.mark("ready")
        vphase(B, 0, 0, True)
        vtab_reads(B)
        B.c("fetch this tile's P back while the V rows settle in LDS")
        B("s_branch L_restore", 150)
        B.lock = True
        if tag == "":
            B.label("L_restored")
            B(f"s_cmp_lg_u32 s{sMode}, 0"); B("s_cbranch_scc1 L_rdisp")
        B.label(f"L_rest{tag}_")
        B.lock = False
        B("s_waitcnt lgkmcnt(0)"); B("s_barrier", 20)
        rd, mf = pv_lists(0)
        pvv = ops_of(prep_v)
        mfma_loop(B, rd, mf, {-1: pvv[:4], 9: pvv[4:]})
        vphase(B, 8, 1, False)
        B(f"s_cmp_lg_u32 s{sAt}, 0")
        B.lock = True
        B(f"s_cbranch_scc0 L_nopost{tag}")
        B.mark("postwait")
        B(f"ds_write_b32 v{vL4}, v{vAt} offset:{LDS_MB}")
        B.label(f"L_nopost{tag}")
        B.lock = False
        B("s_waitcnt lgkmcnt(0)"); B("s_barrier")
        rd, mf = pv_lists(1)
        mfma_loop(B, rd, mf, spread(ops_of(sc_lo_reads) + [f"ds_read_b32 v{vTmp}, v{vMb}"], 8))
        B.mark("allissued")
        B.lock = True
        B("s_branch L_V")
        B.lock = False
        P = Pos(B); c0 = P.c("free", 0); c1 = c0 + (P.c("allissued") - c0) * vtail
        pl = []
        for k in range(16): pl.append(P.at(c0 + (c1 - c0) * k / 15 - 8, max(pl[-1] if pl else 0, P.i("free", k) + 1))); assert pl[-1] <= P.i("allissued")
        nb = sum(1 for p in pl if p <= P.i("postwait")); assert nb >= AL
        body, _ = emit(B, unit_items, pl, unit_seq, ENTRYV - 16, caps, "V" + tag, at=nb - AL)
        print("  V issue", [P.cum[p] for p in pl], "atomic before", nb - AL, file=sys.stderr)
        return [l.replace("L_noat", "L_noat" + tag) for l in body]
    vbody = D_.text() + make_V("", capV) + make_V("f", capF) + make_V("s", capS)
    hbody = []

    E = Stream()
    def stampE(i):
        if stamps and not (hst == 1 and i in (2, 3, 4)) and not (hst == 2 and i in (2, 3)): E(f"s_memrealtime s[{84+2*i}:{85+2*i}]")
    def lsum():
        stampE(1)
        if stamps: E("s_mov_b32 s99, 0")
    ml = lambda x: (vKP, vKP + 4, vKS)[x - 1]
    dat = lambda x: (vRing, vRing + 16, vQ)[x - 1]
    bb = vKSr; u0 = vVP; vPo = vKC; vPv = vKC + 1; sLd = sCnt; sNew = sMode
    pl_ = []
    for x in range(1, 4):
        pl_.append(f"buffer_load_dwordx4 {vr(ml(x),4)}, v{vLin}, {srd(sWS)}, s{sPo+2+x} offen {ldf}")
        pl_ += [f"buffer_load_dwordx4 {vr(dat(x)+4*q,4)}, v{vLin}, {srd(sWS)}, s{sPo+x-1} offen offset:{q*1024} {ldf}" for q in range(4)]
    poll = f"buffer_load_dword v{vPv}, v{vPo}, {srd(sWS)}, s{sG} offen {ldf}"
    def tail(tag):
        T_ = Stream()
        if hst == 1: T_("s_memrealtime s[88:89]")
        vphase(T_, 0, 0, True)
        T_(f"v_cmp_neq_f32 vcc, v{vNM}, v{vMO}")
        for i in range(16): T_(f"v_mov_b32 v{vS+i}, v{vQ+i}")
        T_.lock = True
        T_(f"s_cbranch_vccnz L_oldref{tag}")
        T_.label(f"L_newref{tag}")
        T_.lock = False
        if hst == 1: T_("s_memrealtime s[90:91]")
        T_("s_waitcnt lgkmcnt(0)"); T_("s_barrier", 20)
        rd, mf = pv_lists(0); mfma_loop(T_, rd, mf, {})
        T_.mark("pv0")
        vphase(T_, 8, 1, False)
        if hst == 1: T_("s_memrealtime s[92:93]")
        T_("s_waitcnt lgkmcnt(0)"); T_("s_barrier")
        rd, mf = pv_lists(1); mfma_loop(T_, rd, mf, {})
        Pt = Pos(T_)
        if tag == "C":
            w = Pt.i("wait", 15); c0 = Pt.cum[w]; ins = {}
            for n in range(15):
                p = Pt.at(c0 + 8 + (Pt.tot - c0) * ctspan * n / 15, w + 1)
                ins.setdefault(p, []).extend(([f"    s_bitcmp1_b32 s{sLd}, {n//5+1}"] if n % 5 == 0 else []) + [f"    s_cbranch_scc0 L_sk{n}", "    " + pl_[n], f"L_sk{n}:"])
            I2 = []
            for i, x in enumerate(T_.I):
                for t in ins.get(i, []): I2.append(dict(t=t, c=0, ins=True))
                I2.append(x)
                if i == w:
                    for t in ("s_waitcnt vmcnt(0)", f"v_cmp_ne_u32 vcc, -1, v{vPv}", f"s_and_b32 s{sLd}, vcc_lo, 14"): I2.append(dict(t="    " + t, c=0, ins=True))
            T_.I = I2; Pt = Pos(T_)
            pp = ([0] if pa else []) + [Pt.at(Pt.c("pv0") - pb, 1)]
            out, _ = emit(T_, [poll] * len(pp), pp, unit_seq, ENTRYV - 16, None, "tail")
        else:
            out, _ = emit(T_, [], [], unit_seq, ENTRYV - 16, None, "tail")
        for t in out: E.I.append(dict(t=t, c=0, ins=True))
    E.c("last unit; the count tells the finishing order within the pair")
    E.label("L_last")
    if not nolocal: E(f"s_lshr_b32 s{sMode}, s{sG}, s{sXc}"); E(f"s_and_b32 s{sMode}, s{sMode}, 7"); E(f"s_and_b32 s{sG}, s{sG}, 255")
    E(f"s_cmp_eq_u32 s{sG}, 3"); E("s_cbranch_scc1 L_ctail")
    if stamps: E("s_mov_b32 s100, 1")
    own_slot(E)
    E(f"v_min_u32 v{vHd}, -2, v{vNM}"); E(f"v_min_u32 v{vHd+1}, -2, v{vHd+1}")
    tail("E")
    lsum()
    E.c("not the last workgroup of this pair: hand the partial over; header = (-m, l, checksum), none equal to the empty mark")
    dots = lambda r: [f"v_dot2_u32_u16 v{vCk}, v{r+i}, s{sCw + (i + i//4) % 4}, {'0' if i == 0 else 'v%d' % vCk}" for i in range(16)]
    def publish(df, hf, wait):
        for q in range(4):
            for i in range(4 * q, 4 * q + 4): E(f"v_cvt_pk_bf16_f32 v{vSt+i}, v{vO+2*i}, v{vO+2*i+1}")
            E(f"buffer_store_dwordx4 {vr(vSt+4*q,4)}, v{vLin}, {srd(sWS)}, s{sT} offen offset:{q*1024} {df}")
        for t in dots(vSt): E(t)
        E("s_nop 2"); E(f"v_min_u32 v{vCk}, -2, v{vCk}")
        if wait: E("s_waitcnt vmcnt(0)")
        E(f"buffer_store_dwordx4 {vr(vHd,4)}, v{vLin}, {srd(sWS)}, s{sT2} offen {hf}")
        if stamps:
            for i in (2, 3, 4): stampE(i)
            E("s_branch L_done")
        else:
            E("s_endpgm")
    if not nolocal:
        E(f"s_cmp_eq_u32 s{sMode}, 4"); E("s_cbranch_scc0 L_pubfar")
        if wto:
            E(f"s_cmp_lt_u32 s{sG}, {wto}"); E("s_cbranch_scc1 L_pubearly")
        publish("", "", False)
        if wto:
            E.label("L_pubearly")
            publish("sc0 sc1", "", pw)
        E.label("L_pubfar")
    publish(pubf, pubf, False)
    E.c("fourth workgroup of the pair to get here: it merges")
    E.label("L_ctail")
    if stamps: E("s_mov_b32 s100, 2")
    E(f"s_lshl2_add_u32 s{sG}, s{sPair}, s{sWave}"); E(f"s_lshl_b32 s{sG}, s{sG}, 15"); E(f"s_add_u32 s{sG}, s{sG}, {WS_SLOT}")
    E(f"v_and_b32 v{vPo}, 3, v{vLane}"); E(f"v_xor_b32 v{vPo}, s{sSplit}, v{vPo}"); E(f"v_lshlrev_b32 v{vPo}, 13, v{vPo}"); E(f"v_add_u32 v{vPo}, 4096, v{vPo}")
    for x in range(1, 4):
        E(f"s_xor_b32 s{sT}, s{sSplit}, {x}"); E(f"s_lshl_b32 s{sT}, s{sT}, 13")
        E(f"s_add_u32 s{sPo+x-1}, s{sG}, s{sT}"); E(f"s_add_u32 s{sPo+2+x}, s{sPo+x-1}, 4096")
    tail("C")
    lsum()
    E.c("fold in what has been fetched (if header and checksum hold), keep looking for the rest")
    E(f"s_mov_b32 s{sPend}, 14"); E(f"s_mov_b32 s{sThr}, {hex(f32bits(TM))}")
    E.label("L_round")
    E(f"s_andn2_b32 s{sNew}, s{sPend}, s{sLd}"); E("s_cbranch_scc1 L_look")
    E("s_waitcnt vmcnt(0)")
    E.label("L_looked")
    for x in range(1, 4):
        E(f"s_bitcmp1_b32 s{sLd}, {x}"); E(f"s_cbranch_scc0 L_fold{x}")
        E(f"v_sub_f32 v{bb}, v{vNM}, v{ml(x)}")
        for t in dots(dat(x)): E(t)
        E(f"v_max_u32 v{vTmp+1}, v{ml(x)}, v{ml(x)+1}"); E(f"v_cmp_eq_u32 s[4:5], -1, v{vTmp+1}")
        E(f"v_cmp_lt_f32 s[6:7], s{sThr}, v{bb}")
        E(f"v_min_u32 v{vCk}, -2, v{vCk}"); E(f"v_cmp_ne_u32 vcc, v{vCk}, v{ml(x)+2}")
        E("s_or_b64 vcc, vcc, s[4:5]"); E(f"s_cbranch_scc1 L_fold{x}")
        E(f"s_bitset0_b32 s{sPend}, {x}")
        E(f"s_cmp_lg_u64 s[6:7], 0"); E(f"s_cbranch_scc1 L_far{x}")
        E.label(f"L_near{x}")
        E(f"v_exp_f32 v{bb}, v{bb}")
        for q in range(2):
            r = dat(x) + 8 * q
            for i in range(8): E(f"v_lshlrev_b32 v{u0+2*i}, 16, v{r+i}")
            for i in range(8): E(f"v_and_b32 v{u0+2*i+1}, 0xffff0000, v{r+i}")
            for i in range(8):
                d = vO + 2 * (8 * q + i)
                E(f"v_pk_fma_f32 {vr(d,2)}, {vr(u0+2*i,2)}, {vr(bb,2)}, {vr(d,2)} op_sel_hi:[1,0,1]")
        E(f"v_fmac_f32 v{vHd+1}, v{ml(x)+1}, v{bb}")
        E.label(f"L_fold{x}")
    if stamps: E("s_add_u32 s99, s99, 1")
    E(f"s_mov_b32 s{sLd}, s{sNew}")
    E(f"s_cmp_lg_u32 s{sPend}, 0"); E("s_cbranch_scc1 L_again")
    E.label("L_merged")
    for i in (2, 3, 4): stampE(i)
    E(f"v_rcp_f32 v{bb}, v{vHd+1}")
    E(f"v_and_b32 v{vTmp}, 15, v{vLane}"); E(f"v_lshrrev_b32 v{vTmp+1}, 4, v{vLane}")
    E(f"v_lshlrev_b32 v{vTmp}, 8, v{vTmp}"); E(f"v_lshl_add_u32 v{vTmp}, v{vTmp+1}, 4, v{vTmp}")
    E(f"s_lshl_b32 s{sT}, s{sWave}, 12")
    for u in range(4):
        for i in range(4 * u, 4 * u + 4): E(f"v_pk_mul_f32 {vr(vO+2*i,2)}, {vr(vO+2*i,2)}, {vr(bb,2)} op_sel_hi:[1,0]")
        for i in range(4 * u, 4 * u + 4): E(f"v_cvt_pk_bf16_f32 v{vS+i}, v{vO+2*i}, v{vO+2*i+1}")
        E(f"buffer_store_dwordx4 {vr(vS+4*u,4)}, v{vTmp}, {srd(sOUT)}, s{sT} offen offset:{u*64} {outf}")
    if pollmax:
        E(f"s_sub_u32 s{sT}, {SPIN}, s{sSpin}"); E(f"s_cmp_gt_u32 s{sT}, 6"); E("s_cbranch_scc0 L_done")
        E("s_mov_b64 exec, 1"); E(f"v_mov_b32 v{vAt}, s{sT}"); E(f"s_mov_b32 s{sT2}, 0x23000000")
        E(f"buffer_atomic_umax v{vAt}, off, {srd(sWS)}, s{sT2}")
        E(f"v_mov_b32 v{vFl}, 1"); E(f"buffer_atomic_add v{vFl}, off, {srd(sWS)}, s{sT2} offset:4")
    E.label("L_done")
    if stamps:
        E("s_waitcnt vmcnt(0)")
        stampE(5)
        E(f"s_lshl2_add_u32 s{sT}, s{sPair}, s{sSplit}"); E(f"s_lshl2_add_u32 s{sT}, s{sT}, s{sWave}"); E(f"s_lshl_b32 s{sT2}, s{sT}, 4")
        E(f"s_lshl_b32 s4, s{sT}, 8"); E("s_add_u32 s4, s4, 0x22000000")
        E(f"s_add_u32 s{sT2}, s{sT2}, 0x20000000")
        E(f"s_lshl_b32 s{sT}, s{sT}, 6"); E(f"s_add_u32 s{sT}, s{sT}, 0x21000000")
        E("s_waitcnt lgkmcnt(0)")
        E(f"v_accvgpr_read_b32 v60, a255")
        for i in range(12): E(f"v_mov_b32 v{16+i}, s{84+i}")
        E(f"v_mov_b32 v28, s101"); E("s_getreg_b32 s5, hwreg(HW_REG_XCC_ID)"); E("v_mov_b32 v29, s5"); E(f"v_mov_b32 v30, s100"); E("v_mov_b32 v31, s99")
        E("v_mov_b32 v32, s84"); E("v_mov_b32 v33, s85"); E("v_mov_b32 v34, s94"); E("v_mov_b32 v35, s95")
        E(f"buffer_store_dword v60, v{vL4}, {srd(sWS)}, s4 offen sc0 sc1")
        E("s_mov_b64 exec, 1")
        E(f"buffer_store_dwordx4 v[32:35], off, {srd(sWS)}, s{sT2} sc0 sc1")
        for i in range(4): E(f"buffer_store_dwordx4 v[{16+4*i}:{19+4*i}], off, {srd(sWS)}, s{sT} offset:{16*i} sc0 sc1")
    E.label("L_end")
    E("s_endpgm")

    E.label("L_again")
    E(f"s_sub_u32 s{sSpin}, s{sSpin}, 1"); E("s_cbranch_scc0 L_round"); E("s_branch L_merged")
    E.label("L_look")
    E(poll); E("s_waitcnt vmcnt(0)")
    E(f"v_cmp_ne_u32 vcc, -1, v{vPv}"); E(f"s_and_b32 s{sNew}, s{sNew}, vcc_lo"); E("s_cbranch_scc0 L_looked")
    for x in range(1, 4):
        E(f"s_bitcmp1_b32 s{sNew}, {x}"); E(f"s_cbranch_scc0 L_get{x}")
        for t in pl_[5*(x-1):5*x]: E(t)
        E.label(f"L_get{x}")
    E("s_branch L_looked")
    def scale_O(r):
        for i in range(16): E(f"v_pk_mul_f32 {vr(vO+2*i,2)}, {vr(vO+2*i,2)}, {vr(r,2)} op_sel_hi:[1,0]")
    for x in range(1, 4):
        E.label(f"L_far{x}")
        E.c("that partial's reference max is far above ours: move ours up first")
        E(f"v_max_f32 v{vMx}, 0, v{bb}"); E(f"v_sub_f32 v{vNM}, v{vNM}, v{vMx}"); E(f"v_sub_f32 v{bb}, v{bb}, v{vMx}")
        E(f"v_exp_f32 v{vTmp}, -v{vMx}"); E("s_nop 0"); E(f"v_mul_f32 v{vHd+1}, v{vHd+1}, v{vTmp}")
        scale_O(vTmp)
        E(f"s_branch L_near{x}")

    E.label("L_k2v")
    unit_offs(E, None, None); set_base(E, sVb)
    E(f"s_cmp_lg_u32 s{sW0}, 0"); E("s_cbranch_scc0 L_k1")
    E(f"buffer_load_dword v{vFl}, off, {srd(sDBG)}, 0 offset:4 {flagf}")
    E("s_branch L_k1")

    E.label("L_vdisp")
    E(f"s_sub_u32 s{sCnt}, s{sCnt}, 1"); E(f"s_cselect_b32 s{sMode}, 0, s{sMode}"); E("s_cbranch_scc1 L_V_")
    E(f"s_cmp_eq_u32 s{sMode}, 1"); E("s_cbranch_scc1 L_Vf_"); E("s_branch L_Vs_")
    E.label("L_rdisp")
    E(f"s_cmp_eq_u32 s{sMode}, 1"); E("s_cbranch_scc1 L_restf_"); E("s_branch L_rests_")
    E.c("progress counts: read the last one, arm the next one")
    E.label("L_ctl")
    E(f"v_readfirstlane_b32 s{sG}, v{vTmp}"); E(f"s_mov_b32 s{sAt}, 0")
    E(f"s_cmp_eq_u32 s{sJ}, 16"); E("s_nop 1"); E("s_cbranch_scc1 L_last")
    E(f"s_bitcmp1_b32 {hex(sum(1 << (x + 1) for x in sig))}, s{sJ}"); E("s_cbranch_scc0 L_arm")
    if stamps: E("s_lshl_b32 s101, s101, 8"); E(f"s_or_b32 s101, s101, s{sG}")
    E.c("rank among the workgroups of this count -> how many units to run with more (late) or fewer (early) loads in flight")
    def enc(tb):
        assert len(tb) == 16
        v = sum(((8 | -d) if d < 0 else d) << (4 * i) for i, d in enumerate(tb)); return v & 0xffffffff, v >> 32
    for n in range(len(sig) - 1):
        lo, hi = enc(tabs[n])
        if n == 0: E(f"s_mov_b32 s4, {hex(lo)}"); E(f"s_mov_b32 s5, {hex(hi)}")
        else: E(f"s_cmp_eq_u32 s{sJ}, {sig[n]+1}"); E(f"s_cselect_b32 s4, {hex(lo)}, s4"); E(f"s_cselect_b32 s5, {hex(hi)}, s5")
    if len(sig) > 1:
        sh = int(math.log2(256 // shards)) - 4
        E(f"s_lshr_b32 s{sT}, s{sG}, {sh}"); E(f"s_min_u32 s{sT}, s{sT}, 15"); E(f"s_lshl_b32 s{sT}, s{sT}, 2"); E(f"s_lshr_b64 s[4:5], s[4:5], s{sT}")
        E(f"s_and_b32 s{sCnt}, s4, 7"); E("s_bitcmp1_b32 s4, 3"); E(f"s_cselect_b32 s{sMode}, 2, 1")
    E.label("L_arm")
    E(f"s_bitcmp1_b32 {hex(sum(1 << x for x in sig))}, s{sJ}"); E(f"s_cselect_b32 s{sAt}, s{sW0}, 0")
    E(f"s_mul_i32 s{sT}, s{sJ}, {shards}"); E(f"s_add_u32 s{sT}, s{sT}, s{sShard}"); E(f"s_and_b32 s{sT}, s{sT}, 63")
    E(f"s_lshl_b32 s{sT}, s{sT}, {cstride}"); E(f"s_add_u32 s{sT}, s{sT}, 4"); E(f"s_lshl_b32 s{sT2}, s{sPair}, {cstride}")
    E(f"s_cmp_eq_u32 s{sJ}, 15"); E(f"s_cselect_b32 s{sT}, s{sT2}, s{sT}"); E(f"s_add_u32 s{sCoff}, s{sT}, {WS_CTR}")
    assert len(set((x * shards + h) % 64 for x in sig[:-1] for h in range(shards))) == shards * (len(sig) - 1)
    E.c("before the first count: wave 0 checks that the counters are live")
    E(f"s_cmp_eq_u32 s{sJ}, {jr}"); E(f"s_cselect_b32 s{sT}, s{sW0}, 0"); E(f"s_cmp_lg_u32 s{sT}, 0"); E("s_cbranch_scc0 L_v0")
    def zero_counters():
        E(f"v_lshlrev_b32 v{vTmp}, {cstride}, v{vLane}"); E(f"v_mov_b32 v{vCk}, 0"); E(f"v_mov_b32 v{vFl}, 0"); E(f"s_mov_b32 s{sT}, {WS_CTR}")
        E(f"buffer_atomic_swap_x2 {vr(vCk,2)}, v{vTmp}, {srd(sWS)}, s{sT} offen sc0")
    E(f"v_readfirstlane_b32 s{sT}, v{vFl}"); E("s_mov_b64 exec, 1"); E("s_nop 2")
    E(f"s_cmp_lg_u32 s{sT}, 0"); E("s_cbranch_scc1 L_live")
    E.c("not seen live yet: claim the job if it is free, otherwise wait for the (running) workgroup that holds it")
    E(f"v_mov_b32 v{vFl}, 1")
    E(f"buffer_atomic_add v{vFl}, off, {srd(sDBG)}, 0 sc0")
    E("s_waitcnt vmcnt(0)"); E(f"v_readfirstlane_b32 s{sT}, v{vFl}"); E("s_nop 3")
    E(f"s_cmp_eq_u32 s{sT}, 0"); E("s_cbranch_scc0 L_flag")
    E("s_mov_b64 exec, -1"); zero_counters(); E("s_mov_b64 exec, 1")
    E("s_waitcnt vmcnt(0)"); E(f"v_mov_b32 v{vFl}, 1")
    E(f"buffer_atomic_or v{vFl}, off, {srd(sDBG)}, 0 offset:4")
    E("s_branch L_live")
    E.label("L_flag")
    E(f"v_mov_b32 v{vFl}, 0")
    E(f"buffer_atomic_or v{vFl}, off, {srd(sDBG)}, 0 offset:4 sc0")
    E("s_waitcnt vmcnt(0)"); E(f"v_readfirstlane_b32 s{sT}, v{vFl}"); E(f"s_sub_u32 s{sSpin}, s{sSpin}, 1"); E("s_cbranch_scc1 L_live"); E("s_nop 2")
    E(f"s_cmp_lg_u32 s{sT}, 0"); E("s_cbranch_scc0 L_flag")
    E.label("L_live")
    if not nolocal:
        E.c("note this workgroup's XCD in the pair's word")
        E(f"s_lshl_b32 s{sT}, 1, s{sXc}"); E(f"v_mov_b32 v{vFl}, s{sT}"); E(f"s_lshl_b32 s{sT}, s{sPair}, {cstride}"); E(f"s_add_u32 s{sT}, s{sT}, {WS_CTR}")
        E(f"buffer_atomic_add v{vFl}, off, {srd(sWS)}, s{sT}")
    E("s_mov_b64 exec, -1")
    E("s_branch L_v0")

    def tree(lo, hi, reg, pre, leaf):
        if lo == hi: leaf(lo); return
        mid = (lo + hi + 1) // 2
        E(f"s_cmp_ge_u32 s{reg}, {mid}"); E(f"s_cbranch_scc1 {pre}{mid}_{hi}")
        tree(lo, mid - 1, reg, pre, leaf)
        E.label(f"{pre}{mid}_{hi}")
        tree(mid, hi, reg, pre, leaf)
    E.label("L_restore")
    def rleaf(j1):
        b = 17 * (j1 - 1)
        E(f"v_accvgpr_read_b32 v{vMx}, a{b+16}")
        for i in range(16): E(f"v_accvgpr_read_b32 v{vS+i}, a{b+i}")
        E(f"v_cmp_neq_f32 vcc, v{vMx}, v{vMO}"); E("s_cbranch_vccz L_restored"); E("s_branch L_oldref")
    tree(1, npf - 1, sJ, "L_r", rleaf)
    E.c("this tile's P used a newer reference max than O holds: bring O up to it")
    E.label("L_oldref")
    E(f"v_sub_f32 v{vTmp}, v{vMx}, v{vMO}"); E(f"v_exp_f32 v{vTmp}, v{vTmp}"); E(f"v_mov_b32 v{vMO}, v{vMx}")
    scale_O(vTmp)
    E("s_branch L_restored")
    for tag in "EC":
        E.label(f"L_oldref{tag}")
        E(f"v_sub_f32 v{vTmp}, v{vNM}, v{vMO}"); E(f"v_exp_f32 v{vTmp}, v{vTmp}"); E("s_nop 0")
        scale_O(vTmp)
        E(f"s_branch L_newref{tag}")
    E.label("L_save")
    def sleaf(i1):
        if i1 >= 2:
            for t in save_ops(i1 - 2): E(t)
        E("s_branch L_saved")
    tree(1, npf, sI, "L_s", sleaf)

    E.c("rare path: the running max rose past the threshold -> move the reference to the true running max")
    for tag, n in (("K", 32),):
        E.label(f"L_rescale{tag}")
        for sw in ("v_permlane32_swap_b32", "v_permlane16_swap_b32"):
            E(f"v_mov_b32 v{vTmp}, v{vMx}"); E("s_nop 1"); E(f"{sw} v{vTmp}, v{vMx}"); E("s_nop 1"); E(f"v_max_f32 v{vMx}, v{vMx}, v{vTmp}")
        E(f"v_max_f32 v{vTmp}, 0, v{vMx}"); E(f"v_max_f32 v{vT2}, s{sFlo}, v{vMx}")
        E(f"v_exp_f32 v{vTmp}, -v{vTmp}")
        E(f"s_mov_b32 s{sThr}, {hex(f32bits(T))}"); E(f"s_mov_b32 s{sFlo}, 0")
        for r in [vNM, vNM + 2] + [vS + i for i in range(0, n, 2)]:
            E(f"v_pk_add_f32 {vr(r,2)}, {vr(r,2)}, {vr(vT2,2)} op_sel_hi:[1,0] neg_lo:[0,1] neg_hi:[0,1]")
        E(f"v_pk_mul_f32 {vr(vL,2)}, {vr(vL,2)}, {vr(vTmp,2)} op_sel_hi:[1,0]")
        if tag != "K": scale_O(vTmp)
        E(f"s_branch L_rescaled{tag}")

    E.c("workgroup 0, wave 0: zero the 64 ticket counters in d_ws, then raise the flag in d_debug")
    E.label("L_hookK")
    E(f"s_cmp_eq_u32 s{sI}, 1"); E("s_cbranch_scc1 L_hk1")
    E(f"s_cmp_eq_u32 s{sI}, 3"); E("s_cbranch_scc0 L_k1")
    E("s_mov_b64 exec, 1"); E(f"v_mov_b32 v{vFl}, 1")
    E(f"buffer_atomic_or v{vFl}, off, {srd(sDBG)}, 0 offset:4")
    E("s_mov_b64 exec, -1"); E("s_branch L_k1")
    E.label("L_hk1")
    E(f"v_readfirstlane_b32 s{sT}, v{vFl}"); E("s_nop 3")
    E(f"s_cmp_eq_u32 s{sT}, 0"); E(f"s_cselect_b32 s{sHk}, 3, 0"); E("s_cbranch_scc0 L_k1")
    zero_counters()
    E("s_branch L_k1")

    code = pro.text() + kbody + vbody + hbody + [x["t"] for x in E.I if "mark" not in x] + ["L_codeend:"]
    if nocomp:
        kill = ("v_fma_mix", "v_cvt_pk", "v_mfma", "v_exp", "v_pk_", "v_max3", "ds_write2", "ds_write_b128", "ds_read_b128", "v_accvgpr_write_b32 a1", "v_accvgpr_read_b32 v9", "v_accvgpr_read_b32 v10", "s_cbranch_vccnz L_resc")
        a0 = code.index("L_K:"); a1 = code.index("L_round:"); c2 = []
        for i, l in enumerate(code):
            if a0 < i < a1:
                if l.strip().startswith(kill): continue
                if "lgkmcnt" in l:
                    l = "    s_waitcnt lgkmcnt(0)"
                    if c2[-1] == l: continue
            c2.append(l)
        code = c2
    if abl:
        a0 = code.index("L_last:"); a1 = code.index("L_merged:"); c2 = []
        for i, l in enumerate(code):
            if a0 < i < a1:
                if abl & 1 and "buffer_store" in l: continue
                if abl & 2 and "buffer_load" in l: continue
                if "s_cbranch_scc1 L_miss" in l: continue
                if abl & 2 and "vmcnt" in l: l = "    s_waitcnt vmcnt(0)"
            c2.append(l)
        code = c2
    if align: code = align_pass(code)
    if not nocomp and not abl: hazard_check(code)
    L = [HDR.rstrip(), f"; @launch grid=(256,1,1) block=(256,1,1) lds={LDS_TOTAL}", '.amdgcn_target "amdgcn-amd-amdhsa--gfx950"',
         ".text", f".globl {NAME}_kernel", ".p2align 8", f".type {NAME}_kernel,@function", f"{NAME}_kernel:"]
    L += code
    L += ['.section .rodata,"a"', ".p2align 6", f".amdhsa_kernel {NAME}_kernel",
          "  .amdhsa_next_free_vgpr 512", "  .amdhsa_next_free_sgpr 102", "  .amdhsa_accum_offset 256",
          "  .amdhsa_group_segment_fixed_size 0", "  .amdhsa_kernarg_size 80", "  .amdhsa_user_sgpr_count 2",
          "  .amdhsa_user_sgpr_kernarg_segment_ptr 1", "  .amdhsa_system_sgpr_workgroup_id_x 1",
          "  .amdhsa_float_denorm_mode_32 3", "  .amdhsa_float_denorm_mode_16_64 3", ".end_amdhsa_kernel"]
    open(path, "w").write("\n".join(L) + "\n")

if __name__ == "__main__":
    import argparse
    ap = argparse.ArgumentParser()
    ap.add_argument("out")
    for n, t, d in (("AL", int, 7), ("np", int, 14), ("cs", int, 8), ("nK1", int, 7), ("vtail", float, 1.0), ("T", float, 8.0), ("TM", float, 32.0),
                    ("pfcode", int, 4), ("ct", float, 0.6), ("ct0", float, 0.3), ("hv", int, 4), ("hk", float, 0.9), ("hp", int, 4), ("hq", float, 0.9), ("npre", int, 6), ("hst", int, 0), ("nocomp", int, 0), ("abl", int, 0), ("capC", str, None), ("uth", int, 4), ("grp", int, 0), ("flagf", str, ""), ("capF", str, "7"), ("capS", str, "45"), ("tabs", str, "dcbbaa0001112234,cbbaaa0000112223"), ("ms", str, "6,11"), ("shards", int, 4), ("shb", int, 3), ("ldf", str, "sc0 sc1"), ("wb", int, 0), ("wto", int, 0), ("nolocal", int, 1), ("pb", int, 100), ("jr", int, 3), ("pa", int, 0), ("pw", int, 1), ("cols", str, "1000,800,4000,2000,100,240,4b0,8044"),
                    ("nt", str, "nt"), ("q", str, ""), ("smf", str, "nt"), ("outf", str, "sc0 sc1"), ("pubf", str, "sc0 sc1"),
                    ("cap", str, "5"), ("capV", str, "5"), ("capH", str, None), ("capP", str, "8")):
        ap.add_argument("--" + n, type=t, default=d)
    ap.add_argument("--mix", type=lambda x: int(x, 0), default=0)
    for n in ("stamps", "it", "dry", "noalign", "pollmax"): ap.add_argument("--" + n, action="store_true")
    a = ap.parse_args()
    gen(a.out, AL=a.AL, npf=a.np, stamps=a.stamps, nt=a.nt, smf=a.smf, qflag=a.q, cstride=a.cs, T=a.T, TM=a.TM, mix=a.mix, nK1=a.nK1, vtail=a.vtail,
        itst=a.it, outf=a.outf, pubf=a.pubf, cap=a.cap, capV=a.capV, capH=a.capH, capP=a.capP, pfcode=a.pfcode, ctspan=a.ct, ct0=a.ct0,
        hv=a.hv, hk=a.hk, hp=a.hp, hq=a.hq, npre=a.npre, dry=a.dry, hst=a.hst, align=not a.noalign, nocomp=a.nocomp, abl=a.abl, capC=a.capC, uth=a.uth, pollmax=a.pollmax, grp=a.grp, flagf=a.flagf, capF=a.capF, capS=a.capS, tabs=[[(int(c) if c.isdigit() else -(ord(c) - 96)) for c in t] for t in a.tabs.split(',')], ms=tuple(int(x) for x in a.ms.split(',') if x), shards=a.shards, shb=a.shb, ldf=a.ldf, wb=a.wb, wto=a.wto, nolocal=a.nolocal, pb=a.pb, jr=a.jr, pa=a.pa, pw=a.pw, cols=[int(x, 16) << 12 for x in a.cols.split(',')])
```

```python
import sys, struct, math, re
NAME = "standalone__kv_cache_quant_int4_int2_kv_with_per_channel_or_per_token_scales__sampling"
HDR = open("cdna_kernels/" + NAME + ".s.ref").read().split("; Override launch")[0]

def f32bits(x):
    return struct.unpack("<I", struct.pack("<f", x))[0]

def cost_of(s):
    op = s.split()[0]
    if op.startswith("v_mfma"): return 8
    if op in ("v_exp_f32", "v_rcp_f32"): return 8
    if op in ("ds_write_b128", "ds_write2_b64"): return 28
    if op.startswith("ds_write"): return 20
    if op == "s_barrier": return 70
    if op == "s_nop": return 4 * (int(s.split()[1]) + 1)
    return 4

class Stream:
    def __init__(self): self.I = []; self.lock = False; self.nds = 0
    def __call__(self, s, cost=None):
        self.I.append(dict(t="    " + s, c=(cost_of(s) if cost is None else cost), ins=not self.lock))
        if s.startswith("ds_"): self.nds += 1
        return self.nds
    def waitds(self, i):
        n = self.nds - i; assert 0 <= n <= 15
        self(f"s_waitcnt lgkmcnt({n})")
    def label(self, s): self.I.append(dict(t=s + ":", c=0, ins=not self.lock))
    def c(self, s): self.I.append(dict(t="    ; " + s, c=0, ins=not self.lock))
    def mark(self, kind, k=None): self.I.append(dict(mark=kind, k=k, c=0, ins=not self.lock))
    def text(self): return [x["t"] for x in self.I]

INLINE = re.compile(r"^-?(\d+|0x[0-9a-f]+)$")
def has_literal(ops):
    for o in ops:
        if INLINE.match(o):
            v = int(o, 0)
            if not -16 <= v <= 64 and (v & 0x7fffffff) not in (0x3f000000, 0x3f800000, 0x40000000, 0x40800000): return True
        elif re.match(r"^L_\w+-L_\w+$", o): return True
    return False
VOP12 = ("v_mov_b32", "v_exp_f32", "v_rcp_f32", "v_add_f32", "v_sub_f32", "v_mul_f32", "v_max_f32", "v_lshlrev_b32", "v_lshrrev_b32", "v_and_b32",
         "v_xor_b32", "v_add_u32", "v_mul_u32_u24", "v_min_u32", "v_max_u32", "v_fmac_f32", "v_cvt_f32_u32", "v_not_b32")
def isize(line):
    s = line.split(";")[0].strip()
    if not s or s.endswith(":") or s.startswith("."): return 0, None
    op, _, rest = s.partition(" ")
    ops = [o.strip() for o in rest.split(",")] if rest else []
    if op.startswith(("s_load", "s_memrealtime", "ds_", "buffer_")): return 8, None
    if op.startswith("s_"):
        if op in ("s_waitcnt", "s_nop", "s_barrier", "s_endpgm", "s_branch", "s_getreg_b32") or op.startswith("s_cbranch"): return 4, None
        return (8 if has_literal(ops) else 4), None
    if op in ("v_readfirstlane_b32", "v_permlane32_swap_b32", "v_permlane16_swap_b32"): return 4, None
    if op.startswith("v_cmp"):
        return (4 + 4 * has_literal(ops[1:]) if ops[0] == "vcc" else 8), None
    if op in VOP12:
        if any(o.startswith("-v") for o in ops): return 8, "valu"
        if has_literal(ops[1:]): return 8, "valu"
        return 4, "grow"
    if op.startswith("v_mfma"): return 8, None
    return 8, "valu"
def align_pass(L):
    out = []; par = 0; last = None
    for i, line in enumerate(L):
        sz, kind = isize(line)
        if sz == 8 and par and last is not None:
            j = last; op = out[j].split()[0]
            out[j] = out[j].replace(op, op + "_e64", 1); par = 0
        elif sz == 8 and par:
            n = 0
            for l2 in L[i:]:
                s2, k2 = isize(l2)
                if s2 == 4: break
                n += k2 == "valu"
            if n >= 7: out.append("    s_nop 0"); par = 0
        if sz == 8: last = None
        if sz == 4:
            par ^= 1
            if kind == "grow": last = len(out)
        out.append(line)
    return out

def regs_of(tok):
    m = re.match(r"^-?v\[(\d+):(\d+)\]$", tok)
    if m: return set(range(int(m.group(1)), int(m.group(2)) + 1))
    m = re.match(r"^-?v(\d+)$", tok)
    return {int(m.group(1))} if m else set()
def hazard_check(L):
    hist = []
    for line in L:
        s = line.split(";")[0].strip()
        if not s or s.endswith(":") or s.startswith("."): continue
        op, _, rest = s.partition(" ")
        toks = [o.strip().split(" ")[0] for o in rest.split(",")] if rest else []
        if op in ("s_branch", "s_endpgm"): hist = []; continue
        st = int(toks[0]) + 1 if op == "s_nop" else 1
        allr = [regs_of(t) for t in toks]
        isv = op.startswith("v_"); mf = op.startswith("v_mfma")
        store = op.startswith(("ds_write", "buffer_store", "buffer_atomic"))
        dst = set() if (store or not allr or op.startswith(("v_cmp", "v_readfirstlane"))) else allr[0]
        src = set().union(*(allr if store or op.startswith(("v_cmp", "v_permlane", "v_fmac")) else allr[1:])) if allr else set()
        if op.startswith("v_permlane"): dst = src
        d = 0
        for (pop, pdst, psrcC, pst) in reversed(hist):
            need = 0
            if pop.startswith("v_mfma"):
                if mf:
                    if pdst & (allr[1] | allr[2]): need = 8
                    elif pdst & allr[3] and pdst != allr[3]: need = 6
                elif pdst & (src | dst): need = 8
                elif isv and psrcC & dst: need = 3
            elif pop.startswith("v_"):
                if mf and pdst & src: need = 2
                if op.startswith("v_permlane") and pdst & src: need = 2
                if op == "v_readfirstlane_b32" and pdst & src: need = 1
                if pop.split("_e64")[0] in ("v_exp_f32", "v_rcp_f32") and isv and op.split("_e64")[0] not in ("v_exp_f32", "v_rcp_f32") and pdst & src: need = max(need, 1)
                if pop.startswith("v_dot") and op != pop and pdst & (src | dst): need = 3
            elif pop.startswith("buffer_store_dwordx4") and isv and psrcC & dst: need = 2
            assert d >= need, f"hazard: {pop} -> {s} distance {d} < {need}"
            d += pst
            if d >= 8: break
        hist.append((op, dst, (allr[3] if mf else (allr[0] if op.startswith("buffer_store") else set())), st))

def gen(path, AL=8, npf=14, stamps=False, nt="nt", smf="nt", qflag="", cstride=8, T=8.0, TM=32.0, mix=0x31031031, nK1=9, vtail=1.0,
        itst=False, outf="sc0 sc1", pubf="sc0 sc1", cap="56", capV="556", capH=None, capP="8", pfcode=4, ctspan=0.95, ct0=0.15,
        hv=4, hk=0.9, hp=4, hq=0.9, npre=6, dry=False, hst=0, align=True, nocomp=0, abl=0, capC=None, uth=4, pollmax=False, grp=0, flagf='', capF='7', capS='45', tabs=None, ms=(5, 11), shards=4, shb=3, cols=None, ldf='sc0 sc1', wb=False, wto=0, nolocal=False, pb=100, jr=3, pa=1, pw=1, noearly=0, diags=0, diagm=0):
    npf = 16
    capn = lambda c, k: int(c[k % len(c)], 16) - 1
    KROW = 288; JS = 576; OS = 2320
    TABW = 16 * 256
    LDS_MB = 0; LDS_SC = 256; LDS_TAB = 1536; LDS_K = LDS_TAB + 4 * TABW; LDS_V = LDS_K + 128 * KROW
    LDS_TOTAL = LDS_V + 16 * OS
    assert LDS_K % 256 == 0 and LDS_K + 128 * KROW < 65536 and LDS_TAB % 512 == 0 and TABW % 512 == 0
    WS_SLOT = 1 << 20; WS_CTR = 16 << 20; FLAG = 0x100
    SPIN = 1 << 20
    PF = 8
    vLane, vOff, vMb, vKR, vSW, vSR, vVW, vVR, vTK, vTV, vL4, vLin = range(12)
    vHd = 12
    vCk, vFl = 14, 15
    vL = 16
    vT2 = 18
    vKS, vKC = 20, 24; vKSr, vKZr, vVSr, vVZr = 28, 30, 32, 33
    vTmp = 34
    vMx, vAt, vMO = 37, 38, 39
    vKP = 40; vVP = 48; vO = 64; vS = 96; vRing = 128; vQ = 192; vSt = 208; NST = 10
    vNM = 248; vKW = 252
    vSc = vS + 16
    sX, sY, sSM, sQ, sDBG, sWS, sOUT = 8, 12, 16, 20, 24, 28, 32
    sKb, sVb = 36, 38
    sPair, sSplit, sI, sJ, sG, sT, sT2, sFlo, sThr, sDoff, sCoff, sIni, sKsl, sVsl, sWb, sPend, sSpin, sW0, sHk, sMode = range(40, 60)
    sAt = 49; sShard = 82; sCnt = 83; sXc = 71
    sO = 60
    sK1, sK2 = 64, 66
    sCw = 72
    sPo = 76
    sWave = 3
    srd = lambda r: f"s[{r}:{r+3}]"
    vr = lambda r, n: f"v[{r}:{r+n-1}]"
    def item_text(k):
        return f"buffer_load_dwordx4 {vr(vRing+4*k,4)}, v{vOff}, {srd(sX if k < 8 else sY)}, s{sO + k//4} offen offset:{(k%4)*1024} {nt}"
    sXm = 101 if not stamps else 59 + 40
    sXm = 2
    def unit_offs(A, idx, slot):
        if idx is None: A(f"s_mov_b32 s{sO}, s{sXm}")
        else: A(f"s_lshl_b32 s{sO}, s{idx}, 16"); A(f"s_xor_b32 s{sO}, s{sO}, s{sXm}")
        A(f"s_add_u32 s{sO+1}, s{sO}, 4096"); A(f"s_xor_b32 s{sO+2}, s{sO}, 0x4000"); A(f"s_xor_b32 s{sO+3}, s{sO+1}, 0x4000")
        if slot is not None: A(f"s_bfe_u32 s{slot}, s{sO}, 0xc0008")
    def set_base(A, b, b2=None):
        if b2 is None: b2 = b
        A(f"s_mov_b64 s[{sX}:{sX+1}], s[{b}:{b+1}]"); A(f"s_mov_b64 s[{sY}:{sY+1}], s[{b2}:{b2+1}]")
    A = Stream()
    A("s_cmp_ge_u32 s2, 256"); A("s_cbranch_scc1 L_end")
    if stamps: A("s_memrealtime s[84:85]"); A("s_mov_b32 s101, 0")
    if diags: A("s_memrealtime s[84:85]")
    A("s_load_dwordx16 s[68:83], s[0:1], 0")
    A("s_load_dwordx4 s[4:7], s[0:1], 64")
    if pfcode:
        A.c("pull this kernel's code into L2 with strided loads (speed only; the values are unused)")
        A("s_getpc_b64 s[92:93]"); A("s_and_b32 s92, s92, 0xffffff00"); A("s_mov_b32 s94, L_codeend-L_pf"); A("s_mov_b32 s95, 0x20000")
        A.label("L_pf")
        A(f"v_lshlrev_b32 v{vTmp}, 7, v0")
        A(f"s_lshr_b32 s{sT2}, s2, 3"); A(f"s_and_b32 s{sT2}, s{sT2}, {pfcode-1}"); A(f"s_cselect_b32 s94, 0, s94")
        A(f"buffer_load_dword v{vTmp}, v{vTmp}, s[92:95], 0 offen")
    A("v_lshrrev_b32 v1, 6, v0")
    A(f"v_and_b32 v{vLane}, 63, v0")
    A(f"v_readfirstlane_b32 s{sWave}, v1")
    A(f"s_bfe_u32 s{sIni}, s2, {hex((int(math.log2(shards)) << 16) | shb)}")
    A.c("workgroup id -> (pair, split) and the order in which it walks its token groups: a bijection (placement affects speed only)")
    A(f"s_lshl_b32 s{sT2}, s2, 20")
    for i, c in enumerate(cols):
        x = c ^ (1 << (20 + i))
        if x: A(f"s_bitcmp1_b32 s2, {i}"); A(f"s_cselect_b32 s{sT}, {hex(x)}, 0"); A(f"s_xor_b32 s{sT2}, s{sT2}, s{sT}")
    if mix:
        A(f"s_lshr_b32 s{sT}, s2, 3"); A(f"s_and_b32 s{sT}, s{sT}, 7"); A(f"s_lshl_b32 s{sT}, s{sT}, 2")
        A(f"s_lshr_b32 s{sT}, {hex(mix)}, s{sT}"); A(f"s_and_b32 s{sT}, s{sT}, 3"); A(f"s_and_b32 s{sT}, s{sT}, s2")
        A(f"s_bcnt1_i32_b32 s{sT}, s{sT}"); A(f"s_and_b32 s{sT}, s{sT}, 1"); A(f"s_lshl_b32 s{sT}, s{sT}, 22"); A(f"s_xor_b32 s{sT2}, s{sT2}, s{sT}")
    def idmap(w):
        v = 0
        for i, c in enumerate(cols):
            if w >> i & 1: v ^= c
        if mix: v ^= (bin((mix >> (4 * ((w >> 3) & 7))) & 3 & w).count("1") & 1) << 22
        return v
    assert len(set(idmap(w) >> 20 for w in range(256))) == 256 and all(idmap(w) & ~0xfff4000 == 0 for w in range(256)) and idmap(0) == 0
    A(f"s_mov_b32 s{sMode}, s2")
    A(f"s_lshr_b32 s{sPair}, s{sT2}, 22"); A(f"s_bfe_u32 s{sSplit}, s{sT2}, 0x20014"); A(f"s_and_b32 s{sXm}, s{sT2}, 0x3fffff")
    c_, h_, m_, g_ = vKS, vKS + 1, vKS + 2, vKS + 3
    t0, t1, vQo = vKC, vKC + 1, vKC + 2
    A(f"v_and_b32 v{c_}, 31, v{vLane}"); A(f"v_lshrrev_b32 v{h_}, 5, v{vLane}")
    A(f"v_and_b32 v{m_}, 15, v{vLane}"); A(f"v_lshrrev_b32 v{g_}, 4, v{vLane}")
    A(f"v_lshlrev_b32 v{vLin}, 4, v{vLane}"); A(f"v_lshlrev_b32 v{vL4}, 2, v{vLane}")
    A(f"s_and_b32 s{sT}, s{sWave}, 1"); A(f"s_lshl_b32 s{sT}, s{sT}, 13")
    A(f"s_lshr_b32 s{sT2}, s{sWave}, 1"); A(f"s_lshl_b32 s{sT2}, s{sT2}, 15"); A(f"s_add_u32 s{sWb}, s{sT}, s{sT2}")
    A(f"v_add_u32 v{vOff}, s{sWb}, v{vLin}")
    A(f"v_lshlrev_b32 v{vQo}, 8, v{m_}"); A(f"v_lshl_add_u32 v{vQo}, v{g_}, 4, v{vQo}")
    for i in range(4): A(f"v_mov_b32 v{vVP+i}, -1")
    def own_slot(A):
        A(f"s_lshl2_add_u32 s{sT}, s{sPair}, s{sWave}"); A(f"s_lshl2_add_u32 s{sT}, s{sT}, s{sSplit}")
        A(f"s_lshl_b32 s{sT}, s{sT}, 13"); A(f"s_add_u32 s{sT}, s{sT}, {WS_SLOT}"); A(f"s_add_u32 s{sT2}, s{sT}, 4096")
    A(f"s_mul_i32 s{sG}, s{sWave}, {TABW}"); A(f"s_add_u32 s{sG}, s{sG}, {LDS_TAB}"); A(f"s_mov_b32 m0, s{sG}")
    own_slot(A)
    for r in (sX, sY): A(f"s_mov_b32 s{r+2}, {0 if dry else 0x400000}"); A(f"s_mov_b32 s{r+3}, 0x20000")
    A(f"s_mov_b32 s{sWS+2}, 0x40000000"); A(f"s_mov_b32 s{sWS+3}, 0x20000")
    A(f"s_lshl_b32 s{sT}, s{sPair}, 22")
    A(f"s_mov_b32 s{sDBG+2}, 256"); A(f"s_mov_b32 s{sDBG+3}, 0x20000"); A(f"v_mov_b32 v{vFl}, 1")
    unit_offs(A, None, sVsl); A(f"s_andn2_b32 s{sKsl}, s{sVsl}, 255")
    for r in (sSM, sQ, sOUT): A(f"s_mov_b32 s{r+2}, 0x4000"); A(f"s_mov_b32 s{r+3}, 0x20000")
    A(f"s_lshl_b32 s{sPend}, s{sPair}, 14")
    A("s_waitcnt lgkmcnt(0)")
    def mk(r, p): A(f"s_add_u32 s{r}, s{p}, s{sPend}"); A(f"s_addc_u32 s{r+1}, s{p+1}, 0")
    A(f"s_add_u32 s{sKb}, s70, s{sT}"); A(f"s_addc_u32 s{sKb+1}, s71, 0")
    set_base(A, sKb)
    for k in range(npre): A(item_text(k))
    A(f"s_add_u32 s{sVb}, s72, s{sT}"); A(f"s_addc_u32 s{sVb+1}, s73, 0")
    A.c("wave w streams scale/zero array w (ks, kz, vs, vz) into the LDS table")
    A(f"s_cmp_eq_u32 s{sWave}, 1"); A(f"s_cselect_b64 s[{sSM}:{sSM+1}], s[76:77], s[74:75]")
    A(f"s_cmp_eq_u32 s{sWave}, 2"); A(f"s_cselect_b64 s[{sSM}:{sSM+1}], s[78:79], s[{sSM}:{sSM+1}]")
    A(f"s_cmp_eq_u32 s{sWave}, 3"); A(f"s_cselect_b64 s[{sSM}:{sSM+1}], s[80:81], s[{sSM}:{sSM+1}]")
    mk(sSM, sSM)
    A(f"s_lshl_b32 s{sT}, s{sSplit}, 12")
    nT = (npf + 3) // 4
    for u in range(nT):
        rows = min(4, npf - 4 * u)
        if rows < 4: A(f"s_bfm_b64 exec, {16*rows}, 0")
        A(f"buffer_load_dwordx4 v{vLin}, {srd(sSM)}, s{sT} offen offset:{u*1024} {smf} lds")
        if rows < 4: A("s_mov_b64 exec, -1")
    mk(sQ, 68)
    A(f"s_lshl_b32 s{sT}, s{sWave}, 12")
    for s4 in range(4): A(f"buffer_load_dwordx4 {vr(vQ+4*s4,4)}, v{vQo}, {srd(sQ)}, s{sT} offen offset:{s4*64} {qflag}")
    A.c("mark the header of this wave's hand-off slot empty")
    A(f"s_mov_b64 s[{sWS}:{sWS+1}], s[6:7]")
    A(f"buffer_store_dwordx4 {vr(vVP,4)}, v{vLin}, {srd(sWS)}, s{sT2} offen sc0 sc1")
    A.c("workgroup 0 claims the job of zeroing the ticket counters (any workgroup takes it over later if nobody has)")
    A(f"s_mov_b64 s[{sDBG}:{sDBG+1}], s[4:5]")
    A(f"s_cmp_eq_u32 s{sWave}, 0"); A(f"s_cselect_b32 s{sW0}, 1, 0")
    A(f"s_or_b32 s{sT}, s{sMode}, {'1' if noearly else 's%d' % sWave}"); A(f"s_cselect_b32 s{sHk}, 0, 3"); A("s_cbranch_scc1 L_noel")
    A("s_mov_b64 exec, 1")
    A(f"buffer_atomic_add v{vFl}, off, {srd(sDBG)}, 0 sc0")
    A("s_mov_b64 exec, -1")
    A.label("L_noel")
    mk(sOUT, 82)
    A(f"v_lshlrev_b32 v{vTK}, 3, v{c_}")
    A(f"v_lshrrev_b32 v{vTV}, 4, v{c_}"); A(f"v_lshlrev_b32 v{vTV}, 5, v{vTV}")
    A(f"v_and_b32 v{t0}, 15, v{c_}"); A(f"v_add_lshl_u32 v{vTV}, v{vTV}, v{t0}, 1")
    A(f"s_lshr_b32 s{sT}, s{sWb}, 8"); A(f"v_add_u32 v{vTV}, s{sT}, v{vTV}")
    A(f"s_lshr_b32 s{sT}, s{sWave}, 1"); A(f"s_and_b32 s{sT2}, s{sWave}, 1")
    A(f"s_mul_i32 s{sT}, s{sT}, {32*KROW}"); A(f"s_mul_i32 s{sT2}, s{sT2}, {8*KROW}"); A(f"s_add_u32 s{sT}, s{sT}, s{sT2}"); A(f"s_add_u32 s{sT}, s{sT}, {LDS_K}")
    A(f"v_mul_u32_u24 v{vKW}, {4*KROW}, v{h_}"); A(f"v_lshl_add_u32 v{vKW}, v{c_}, 3, v{vKW}"); A(f"v_add_u32 v{vKW}, s{sT}, v{vKW}")
    for u, rows in ((1, 16), (2, 64), (3, 80)): A(f"v_add_u32 v{vKW+u}, {rows*KROW}, v{vKW}")
    A(f"v_mul_u32_u24 v{vKR}, {KROW}, v{m_}"); A(f"v_lshl_add_u32 v{vKR}, v{g_}, 4, v{vKR}")
    A(f"s_mul_i32 s{sT}, s{sWave}, {2*OS}"); A(f"s_add_u32 s{sT}, s{sT}, {LDS_V}")
    A(f"v_mul_u32_u24 v{vVW}, {OS}, v{h_}"); A(f"v_lshl_add_u32 v{vVW}, v{c_}, 4, v{vVW}"); A(f"v_add_u32 v{vVW}, s{sT}, v{vVW}")
    A(f"v_mul_u32_u24 v{vVR}, {OS}, v{g_}"); A(f"v_and_b32 v{t0}, 3, v{m_}"); A(f"v_mul_u32_u24 v{t0}, {JS}, v{t0}")
    A(f"v_lshrrev_b32 v{t1}, 2, v{m_}"); A(f"v_lshlrev_b32 v{t1}, 5, v{t1}")
    A(f"v_add3_u32 v{vVR}, v{vVR}, v{t0}, v{t1}"); A(f"v_add_u32 v{vVR}, {LDS_V}, v{vVR}")
    A(f"s_lshl_b32 s{sT}, s{sWave}, 8"); A(f"s_add_u32 s{sT2}, s{sT}, {LDS_SC}")
    A(f"v_and_b32 v{vSW}, 1, v{c_}"); A(f"v_lshlrev_b32 v{vSW}, 7, v{vSW}")
    A(f"v_lshrrev_b32 v{t0}, 1, v{c_}"); A(f"v_lshl_add_u32 v{vSW}, v{t0}, 3, v{vSW}"); A(f"v_add_u32 v{vSW}, s{sT2}, v{vSW}")
    A(f"v_lshlrev_b32 v{vSR}, 7, v{h_}"); A(f"v_add_u32 v{vSR}, s{sT2}, v{vSR}")
    A(f"v_mov_b32 v{vMb}, {LDS_MB}")
    A(f"s_mov_b32 s{sCoff}, {WS_CTR}")
    cc = math.log2(math.e) / math.sqrt(128.0)
    for i in range(2): A(f"s_mov_b32 s{sK1+i}, {hex(f32bits(cc * 2.0**24))}"); A(f"s_mov_b32 s{sK2+i}, {hex(f32bits(-2.0**-24))}")
    A.c("the first tile always takes the rescale path, which sets the reference to that tile's true row max")
    A(f"s_mov_b32 s{sThr}, 0xff800000"); A(f"s_mov_b32 s{sFlo}, 0xff800000")
    for r in (sAt, sMode, sCnt, sI, sJ): A(f"s_mov_b32 s{r}, 0")
    A(f"s_mov_b32 s{sShard}, s{sIni}")
    if not nolocal: A(f"s_getreg_b32 s{sXc}, hwreg(HW_REG_XCC_ID, 0, 3)"); A(f"s_mul_i32 s{sXc}, s{sXc}, 3"); A(f"s_add_u32 s{sXc}, s{sXc}, 8")
    A(f"s_mov_b32 s{sSpin}, {SPIN}")
    for i, w in enumerate((0x9e37c2b3, 0x85eb6d2f, 0x27d4f1a9, 0x165753c5)): A(f"s_mov_b32 s{sCw+i}, {hex(w)}")
    for i in range(32): A(f"v_mov_b32 v{vO+i}, 0")
    for i in range(4): A(f"v_mov_b32 v{vNM+i}, 0")
    A(f"v_mov_b32 v{vMO}, 0x7149f2ca"); A(f"v_mov_b32 v{vL}, 0"); A(f"v_mov_b32 v{vL+1}, 0"); A(f"v_mov_b32 v{vAt}, 0")
    def ktab_reads(S):
        S(f"v_add_u32 v{vTmp+2}, s{sKsl}, v{vTK}")
        S(f"ds_read_b64 {vr(vKSr,2)}, v{vTmp+2} offset:{LDS_TAB}"); S(f"ds_read_b64 {vr(vKZr,2)}, v{vTmp+2} offset:{LDS_TAB+TABW}")
    def vtab_reads(S):
        S(f"v_xor_b32 v{vTmp+2}, s{sVsl}, v{vTV}")
        S(f"ds_read_u16 v{vVSr}, v{vTmp+2} offset:{LDS_TAB+2*TABW}"); S(f"ds_read_u16 v{vVZr}, v{vTmp+2} offset:{LDS_TAB+3*TABW}")
    def prep_v(S):
        S.c("V: S = vs*2^24, C = -vz*vs per token, broadcast through LDS")
        S(f"v_lshlrev_b32 v{vT2}, 16, v{vVSr}"); S(f"v_lshlrev_b32 v{vT2+1}, 16, v{vVZr}")
        S(f"v_mul_f32 v{vT2+1}, -v{vT2+1}, v{vT2}"); S(f"v_mul_f32 v{vT2}, 0x4b800000, v{vT2}")
        S(f"ds_write_b64 v{vSW}, {vr(vT2,2)}")
    def prep_k(S):
        S.c("K: S = ks*c*2^24, C = -kz*ks*c per channel, c = log2(e)/sqrt(128) (the int code is read as an f16 subnormal, code*2^-24)")
        for p in range(2): S(f"v_lshlrev_b32 v{vKS+2*p}, 16, v{vKSr+p}"); S(f"v_lshlrev_b32 v{vKC+2*p}, 16, v{vKZr+p}")
        for p in range(2): S(f"v_and_b32 v{vKS+2*p+1}, 0xffff0000, v{vKSr+p}"); S(f"v_and_b32 v{vKC+2*p+1}, 0xffff0000, v{vKZr+p}")
        for p in range(2): S(f"v_pk_mul_f32 {vr(vKS+2*p,2)}, {vr(vKS+2*p,2)}, s[{sK1}:{sK1+1}]")
        for p in range(2): S(f"v_pk_mul_f32 {vr(vKC+2*p,2)}, {vr(vKC+2*p,2)}, s[{sK2}:{sK2+1}]")
        for p in range(2): S(f"v_pk_mul_f32 {vr(vKC+2*p,2)}, {vr(vKC+2*p,2)}, {vr(vKS+2*p,2)}")
    def sc_lo_reads(S):
        for i in range(4): S(f"ds_read_b128 {vr(vSc+4*i,4)}, v{vSR} offset:{i*16}")
    for k in range(npre, 16):
        A(f"s_waitcnt vmcnt({capn(capP, k)})"); A(item_text(k))
    ENTRYV = 15 - max(capn(c, 15) for c in (cap, capV, capF, capS))
    ENTRY = 15 - capn(cap, 15)
    assert 16 - ENTRY <= 16 - npre
    A(f"s_waitcnt vmcnt({16 - ENTRY})"); A("s_barrier")
    ktab_reads(A); vtab_reads(A)
    A("s_waitcnt lgkmcnt(0)")
    prep_v(A)
    pro = A

    def itstamp(S):
        if stamps and itst:
            S("s_memrealtime s[96:97]"); S("s_mov_b32 s98, m0"); S(f"s_add_u32 m0, s{sI}, s{sJ}"); S(f"v_accvgpr_read_b32 v{vTmp+2}, a255"); S("s_waitcnt lgkmcnt(0)")
            S(f"v_writelane_b32 v{vTmp+2}, s96, m0"); S("s_mov_b32 m0, s98"); S(f"v_accvgpr_write_b32 a255, v{vTmp+2}")

    def emit(B, items, place, seq0, done0, caps, name, at=None):
        out = []; ei = 0; done = done0; info = []; marks = {}
        def wait(n):
            nonlocal done
            if ei - n > done: out.append(f"    s_waitcnt vmcnt({n})"); done = ei - n; return True
            return False
        for i, x in enumerate(B.I):
            while ei < len(items) and place[ei] == i:
                if ei == at:
                    out.extend([f"    s_cmp_lg_u32 s{sAt}, 0", "    s_cbranch_scc0 L_noat", "    s_mov_b64 exec, 1", f"    v_mov_b32 v{vAt}, 1",
                                f"    buffer_atomic_add v{vAt}, off, {srd(sWS)}, s{sCoff} sc0", "    s_mov_b64 exec, -1", "L_noat:"])
                if caps: wait(capn(caps, ei))
                out.append("    " + items[ei]); ei += 1
            if "mark" in x:
                marks[(x["mark"], x["k"])] = (ei, done)
                if x["mark"] == "wait":
                    n = ei - 1 - seq0[x["k"]]; assert n >= 0
                    info.append((x["k"], n, wait(n)))
                elif x["mark"] == "smallwait": wait(ei - x["k"])
                elif x["mark"] == "postwait": out.append(f"    s_waitcnt vmcnt({AL})")
            else: out.append(x["t"])
        assert ei == len(items)
        print(name, "cost", sum(x["c"] for x in B.I), "waits", [(k, n) for k, n, w in info if w], "lead", min(n for k, n, w in info), file=sys.stderr)
        return out, marks
    class Pos:
        def __init__(self, B):
            self.I = B.I; self.cum = []; a = 0
            for x in B.I: self.cum.append(a); a += x["c"]
            self.tot = a
        def i(self, kind, k=None): return next(i for i, x in enumerate(self.I) if x.get("mark") == kind and x.get("k") == k)
        def c(self, kind, k=None): return self.cum[self.i(kind, k)]
        def at(self, t, lo):
            p = max(lo, next((i for i in range(len(self.I)) if self.cum[i] >= t), len(self.I) - 1))
            while not self.I[p]["ins"]: p += 1
            return p

    def deq(S, r, s, c): S(f"v_fma_mix_f32 v{r}, v{r}, v{s}, v{c} op_sel_hi:[1,0,0]")
    def kitems(B, n):
        for k in range(0, n, 2):
            r = vRing + 4 * k; t = vKP + 4 * ((k // 2) % 2)
            B.mark("wait", k + 1)
            for u in range(2):
                for j in range(4): deq(B, r + 4 * u + j, vKS + j, vKC + j)
            for u in range(4): B(f"v_cvt_pk_bf16_f32 v{t+u}, v{r+2*u}, v{r+2*u+1}")
            B.mark("free", k); B.mark("free", k + 1)
            B(f"ds_write2_b64 v{vKW + k//4}, {vr(t,2)}, {vr(t+2,2)} offset0:{(k%4)*KROW//8} offset1:{(k%4+1)*KROW//8}")
        B.mark("kdone")
    def mfma_loop(B, reads, mfmas, fill, start=0, ids=None, after=None):
        n = len(mfmas)
        if ids is None:
            ids = {}
            for i in range(PF): ids[i] = B(reads[i])
            for t in fill.get(-1, []): B(t)
        for i in range(start, n):
            if i % 2 == 0 or i == start: B.waitds(ids[min(n - 1, i | 1)])
            B(mfmas[i])
            if i + PF < n: ids[i + PF] = B(reads[i + PF])
            for t in fill.get(i, []): B(t)
            if after and i in after: after[i](dict(ids))
    def qk_lists(nblk):
        order = [(2 * bp + u, s4) for bp in range(nblk // 2) for s4 in range(4) for u in range(2)]
        rd = [f"ds_read_b128 {vr(vSt+4*(i%NST),4)}, v{vKR} offset:{LDS_K + b*16*KROW + s4*64}" for i, (b, s4) in enumerate(order)]
        mf = [f"v_mfma_f32_16x16x32_bf16 {vr(vS+4*b,4)}, {vr(vSt+4*(i%NST),4)}, {vr(vQ+4*s4,4)}, {vr(vNM,4) if s4 == 0 else vr(vS+4*b,4)}" for i, (b, s4) in enumerate(order)]
        return rd, mf
    def max_ops(bp):
        b = vS + 8 * bp
        if bp == 0: return [f"v_max3_f32 v{vMx}, v{b}, v{b+1}, v{b+2}", f"v_max3_f32 v{vMx}, v{vMx}, v{b+3}, v{b+4}", f"v_max3_f32 v{vMx}, v{vMx}, v{b+5}, v{b+6}", f"v_max_f32 v{vMx}, v{vMx}, v{b+7}"]
        return [f"v_max3_f32 v{vMx}, v{vMx}, v{b+2*u}, v{b+2*u+1}" for u in range(4)]
    def qk_fill(nblk):
        f = {}
        for bp in range(nblk // 2 - 1):
            last = bp + 2 == nblk // 2
            slots = (4, 5, 6, 7) if last else (3, 5, 7, 7)
            for s_, t in zip(slots, max_ops(bp)): f.setdefault(8 * (bp + 1) + s_, []).append(t)
        return f
    def check_max(B, nblk, tag, pre):
        for t in pre: B(t)
        if len(pre) < 6: B(f"s_nop {5 - len(pre)}")
        for t in max_ops(nblk // 2 - 1): B(t)
        B(f"v_cmp_lt_f32 vcc, s{sThr}, v{vMx}")
        B.lock = True
        B(f"s_cbranch_vccnz L_rescale{tag}")
        B.label(f"L_rescaled{tag}")
        B.lock = False
    exp_op = lambda i: f"v_exp_f32 v{vS+i}, v{vS+i}"
    sum_cvt = lambda i: [f"v_pk_add_f32 {vr(vL,2)}, {vr(vL,2)}, {vr(vS+2*i,2)}", f"v_cvt_pk_bf16_f32 v{vS+i}, v{vS+2*i}, v{vS+2*i+1}"]
    def vphase(B, k0, s, refill_hi):
        rg = lambda n8: vRing + 4 * (k0 + n8)
        for n8 in (0, 2):
            B.mark("wait", k0 + n8 + 1)
            for u in range(2):
                for j in range(4): deq(B, rg(n8 + u) + j, vSc + 2 * (n8 + u), vSc + 2 * (n8 + u) + 1)
            if refill_hi: B(f"ds_read_b128 {vr(vSc+4*(n8//2),4)}, v{vSR} offset:{64 + (n8//2)*16}")
            for j in range(4): B(f"v_cvt_pk_bf16_f32 v{vVP+4*j+n8//2}, v{rg(n8)+j}, v{rg(n8+1)+j}")
            B.mark("free", k0 + n8); B.mark("free", k0 + n8 + 1)
        B.mark("wait", k0 + 7)
        for j in range(4):
            for n8 in range(4, 8): deq(B, rg(n8) + j, vSc + 2 * n8, vSc + 2 * n8 + 1)
            for n8 in (4, 6): B(f"v_cvt_pk_bf16_f32 v{vVP+4*j+n8//2}, v{rg(n8)+j}, v{rg(n8+1)+j}")
            if j == 3:
                for n8 in range(4, 8): B.mark("free", k0 + n8)
            B(f"ds_write_b128 v{vVW}, {vr(vVP+4*j,4)} offset:{s*8*OS + j*JS}")
        if refill_hi:
            for u in (2, 3): B(f"ds_read_b128 {vr(vSc+4*u,4)}, v{vSR} offset:{64 + u*16}")
    def pv_lists(s):
        lst = [(2 * s + kk, db) for kk in range(2) for db in range(8)]
        rd = [f"ds_read_b128 {vr(vSt+4*(i%NST),4)}, v{vVR} offset:{ks*4*OS + (db//2)*128 + (db%2)*16}" for i, (ks, db) in enumerate(lst)]
        mf = [f"v_mfma_f32_16x16x32_bf16 {vr(vO+4*db,4)}, {vr(vSt+4*(i%NST),4)}, {vr(vS+4*ks,4)}, {vr(vO+4*db,4)}" for i, (ks, db) in enumerate(lst)]
        return rd, mf
    def ops_of(f):
        S = Stream(); f(S); return [x["t"].strip() for x in S.I if not x["t"].strip().startswith(";")]
    def spread(ops, first, per=1):
        f = {}
        for n, t in enumerate(ops): f.setdefault(first + n // per, []).append(t)
        return f
    def save_ops(i0):
        return [f"v_accvgpr_write_b32 a{17*i0+i}, v{vS+i}" for i in range(16)] + [f"v_accvgpr_write_b32 a{17*i0+16}, v{vNM}"]
    unit_items = [item_text(k) for k in range(16)]
    unit_seq = {k: k - 16 for k in range(16)}

    B = Stream()
    B.lock = True
    B.label("L_K")
    itstamp(B)
    B(f"s_add_u32 s{sI}, s{sI}, 1")
    B(f"s_cmp_lt_u32 s{sI}, {npf}"); B("s_cbranch_scc0 L_k2v")
    unit_offs(B, sI, sKsl); B(f"s_andn2_b32 s{sKsl}, s{sKsl}, 255")
    B(f"s_cmp_le_u32 s{sI}, s{sHk}"); B("s_cbranch_scc1 L_hookK")
    B.label("L_k1")
    B("s_waitcnt lgkmcnt(0)")
    B.lock = False
    B.mark("ready")
    prep_k(B)
    kitems(B, 16)
    B.c("park the previous tile's P while the K rows settle in LDS")
    B("s_branch L_save", 150)
    B.lock = True
    B.label("L_saved")
    B.lock = False
    B("s_waitcnt lgkmcnt(0)"); B("s_barrier", 20)
    B.c("S^T - m = K Q^T - m (log2 units)")
    rd, mf = qk_lists(8)
    mfma_loop(B, rd, mf, qk_fill(8))
    B("s_barrier", 10)
    check_max(B, 8, "K", ops_of(ktab_reads))
    for half in range(2):
        for i in range(16): B(exp_op(16 * half + i))
        for i in range(8):
            for t in sum_cvt(8 * half + i): B(t)
    B.mark("allissued")
    B.lock = True
    B(f"s_cmp_lt_u32 s{sI}, {npf}"); B("s_cbranch_scc1 L_K")
    sc_lo_reads(B)
    B.c("the last tile's P waits in the Q registers; l is final: sum it over the four lane groups")
    for i in range(16): B(f"v_mov_b32 v{vQ+i}, v{vS+i}")
    B(f"v_add_f32 v{vHd+1}, v{vL}, v{vL+1}")
    for sw in ("v_permlane32_swap_b32", "v_permlane16_swap_b32"):
        B(f"v_mov_b32 v{vTmp+1}, v{vHd+1}"); B("s_nop 1"); B(f"{sw} v{vTmp+1}, v{vHd+1}"); B("s_nop 1"); B(f"v_add_f32 v{vHd+1}, v{vHd+1}, v{vTmp+1}")
    B.lock = False
    P = Pos(B); c0 = P.c("free", 0); c1 = P.c("kdone"); c2 = P.c("allissued")
    tg = [c0 + (c1 - c0) * k / (nK1 - 1) for k in range(nK1)] + [c1 + (c2 - c1) * (k + 1) / (16 - nK1) - 8 for k in range(16 - nK1)]
    pl = []
    for k in range(16): pl.append(P.at(tg[k], max(pl[-1] if pl else 0, P.i("free", k) + 1))); assert pl[-1] <= P.i("allissued")
    kbody, _ = emit(B, unit_items, pl, unit_seq, ENTRY - 16, cap, "K")
    print("  K issue", [P.cum[p] for p in pl], file=sys.stderr)

    sig = sorted(m + 1 for m in ms) + [15]
    assert jr <= sig[0] and jr < 14
    events = sorted(set(sig) | set(x + 1 for x in sig) | {jr})
    D_ = Stream()
    D_.label("L_V")
    itstamp(D_)
    D_(f"s_add_u32 s{sJ}, s{sJ}, 1")
    D_(f"s_bitcmp1_b32 {hex(sum(1 << e for e in events))}, s{sJ}")
    D_("s_waitcnt lgkmcnt(0)")
    D_("s_cbranch_scc1 L_ctl")
    D_.label("L_v0")
    unit_offs(D_, sJ, sVsl)
    D_(f"s_cmp_lg_u32 s{sMode}, 0"); D_("s_cbranch_scc1 L_vdisp")
    def make_V(tag, caps):
        B = Stream()
        B.label(f"L_V{tag}_")
        B.mark("ready")
        vphase(B, 0, 0, True)
        vtab_reads(B)
        B.c("fetch this tile's P back while the V rows settle in LDS")
        B("s_branch L_restore", 150)
        B.lock = True
        if tag == "":
            B.label("L_restored")
            B(f"s_cmp_lg_u32 s{sMode}, 0"); B("s_cbranch_scc1 L_rdisp")
        B.label(f"L_rest{tag}_")
        B.lock = False
        B("s_waitcnt lgkmcnt(0)"); B("s_barrier", 20)
        rd, mf = pv_lists(0)
        pvv = ops_of(prep_v)
        mfma_loop(B, rd, mf, {-1: pvv[:4], 9: pvv[4:]})
        vphase(B, 8, 1, False)
        B(f"s_cmp_lg_u32 s{sAt}, 0")
        B.lock = True
        B(f"s_cbranch_scc0 L_nopost{tag}")
        B.mark("postwait")
        B(f"ds_write_b32 v{vL4}, v{vAt} offset:{LDS_MB}")
        B.label(f"L_nopost{tag}")
        B.lock = False
        B("s_waitcnt lgkmcnt(0)"); B("s_barrier")
        rd, mf = pv_lists(1)
        mfma_loop(B, rd, mf, spread(ops_of(sc_lo_reads) + [f"ds_read_b32 v{vTmp}, v{vMb}"], 8))
        B.mark("allissued")
        B.lock = True
        B("s_branch L_V")
        B.lock = False
        P = Pos(B); c0 = P.c("free", 0); c1 = c0 + (P.c("allissued") - c0) * vtail
        pl = []
        for k in range(16): pl.append(P.at(c0 + (c1 - c0) * k / 15 - 8, max(pl[-1] if pl else 0, P.i("free", k) + 1))); assert pl[-1] <= P.i("allissued")
        nb = sum(1 for p in pl if p <= P.i("postwait")); assert nb >= AL
        body, _ = emit(B, unit_items, pl, unit_seq, ENTRYV - 16, caps, "V" + tag, at=nb - AL)
        print("  V issue", [P.cum[p] for p in pl], "atomic before", nb - AL, file=sys.stderr)
        return [l.replace("L_noat", "L_noat" + tag) for l in body]
    vbody = D_.text() + make_V("", capV) + make_V("f", capF) + make_V("s", capS)
    hbody = []

    E = Stream()
    def stampE(i):
        if stamps and not (hst == 1 and i in (2, 3, 4)) and not (hst == 2 and i in (2, 3)): E(f"s_memrealtime s[{84+2*i}:{85+2*i}]")
    def lsum():
        stampE(1)
        if stamps: E("s_mov_b32 s99, 0")
    ml = lambda x: (vKP, vKP + 4, vKS)[x - 1]
    dat = lambda x: (vRing, vRing + 16, vQ)[x - 1]
    bb = vKSr; u0 = vVP; vPo = vKC; vPv = vKC + 1; sLd = sCnt; sNew = sMode
    pl_ = []
    for x in range(1, 4):
        pl_.append(f"buffer_load_dwordx4 {vr(ml(x),4)}, v{vLin}, {srd(sWS)}, s{sPo+2+x} offen {ldf}")
        pl_ += [f"buffer_load_dwordx4 {vr(dat(x)+4*q,4)}, v{vLin}, {srd(sWS)}, s{sPo+x-1} offen offset:{q*1024} {ldf}" for q in range(4)]
    poll = f"buffer_load_dword v{vPv}, v{vPo}, {srd(sWS)}, s{sG} offen {ldf}"
    def tail(tag):
        T_ = Stream()
        if hst == 1: T_("s_memrealtime s[88:89]")
        vphase(T_, 0, 0, True)
        T_(f"v_cmp_neq_f32 vcc, v{vNM}, v{vMO}")
        for i in range(16): T_(f"v_mov_b32 v{vS+i}, v{vQ+i}")
        T_.lock = True
        T_(f"s_cbranch_vccnz L_oldref{tag}")
        T_.label(f"L_newref{tag}")
        T_.lock = False
        if hst == 1: T_("s_memrealtime s[90:91]")
        T_("s_waitcnt lgkmcnt(0)"); T_("s_barrier", 20)
        rd, mf = pv_lists(0); mfma_loop(T_, rd, mf, {})
        T_.mark("pv0")
        vphase(T_, 8, 1, False)
        if hst == 1: T_("s_memrealtime s[92:93]")
        T_("s_waitcnt lgkmcnt(0)"); T_("s_barrier")
        rd, mf = pv_lists(1); mfma_loop(T_, rd, mf, {})
        Pt = Pos(T_)
        if tag == "C":
            w = Pt.i("wait", 15); c0 = Pt.cum[w]; ins = {}
            for n in range(15):
                p = Pt.at(c0 + 8 + (Pt.tot - c0) * ctspan * n / 15, w + 1)
                ins.setdefault(p, []).extend(([f"    s_bitcmp1_b32 s{sLd}, {n//5+1}"] if n % 5 == 0 else []) + [f"    s_cbranch_scc0 L_sk{n}", "    " + pl_[n], f"L_sk{n}:"])
            I2 = []
            for i, x in enumerate(T_.I):
                for t in ins.get(i, []): I2.append(dict(t=t, c=0, ins=True))
                I2.append(x)
                if i == w:
                    for t in ("s_waitcnt vmcnt(0)", f"v_cmp_ne_u32 vcc, -1, v{vPv}", f"s_and_b32 s{sLd}, vcc_lo, 14"): I2.append(dict(t="    " + t, c=0, ins=True))
            T_.I = I2; Pt = Pos(T_)
            pp = ([0] if pa else []) + [Pt.at(Pt.c("pv0") - pb, 1)]
            out, _ = emit(T_, [poll] * len(pp), pp, unit_seq, ENTRYV - 16, None, "tail")
        else:
            out, _ = emit(T_, [], [], unit_seq, ENTRYV - 16, None, "tail")
        for t in out: E.I.append(dict(t=t, c=0, ins=True))
    E.c("last unit; the count tells the finishing order within the pair")
    E.label("L_last")
    if not nolocal: E(f"s_lshr_b32 s{sMode}, s{sG}, s{sXc}"); E(f"s_and_b32 s{sMode}, s{sMode}, 7"); E(f"s_and_b32 s{sG}, s{sG}, 255")
    E(f"s_cmp_eq_u32 s{sG}, 3"); E("s_cbranch_scc1 L_ctail")
    if stamps: E("s_mov_b32 s100, 1")
    own_slot(E)
    E(f"v_min_u32 v{vHd}, -2, v{vNM}"); E(f"v_min_u32 v{vHd+1}, -2, v{vHd+1}")
    tail("E")
    lsum()
    E.c("not the last workgroup of this pair: hand the partial over; header = (-m, l, checksum), none equal to the empty mark")
    dots = lambda r: [f"v_dot2_u32_u16 v{vCk}, v{r+i}, s{sCw + (i + i//4) % 4}, {'0' if i == 0 else 'v%d' % vCk}" for i in range(16)]
    def publish(df, hf, wait):
        for q in range(4):
            for i in range(4 * q, 4 * q + 4): E(f"v_cvt_pk_bf16_f32 v{vSt+i}, v{vO+2*i}, v{vO+2*i+1}")
            E(f"buffer_store_dwordx4 {vr(vSt+4*q,4)}, v{vLin}, {srd(sWS)}, s{sT} offen offset:{q*1024} {df}")
        for t in dots(vSt): E(t)
        E("s_nop 2"); E(f"v_min_u32 v{vCk}, -2, v{vCk}")
        if wait: E("s_waitcnt vmcnt(0)")
        E(f"buffer_store_dwordx4 {vr(vHd,4)}, v{vLin}, {srd(sWS)}, s{sT2} offen {hf}")
        if stamps:
            for i in (2, 3, 4): stampE(i)
            E("s_branch L_done")
        else:
            E("s_endpgm")
    if not nolocal:
        E(f"s_cmp_eq_u32 s{sMode}, 4"); E("s_cbranch_scc0 L_pubfar")
        if wto:
            E(f"s_cmp_lt_u32 s{sG}, {wto}"); E("s_cbranch_scc1 L_pubearly")
        publish("", "", False)
        if wto:
            E.label("L_pubearly")
            publish("sc0 sc1", "", pw)
        E.label("L_pubfar")
    publish(pubf, pubf, False)
    E.c("fourth workgroup of the pair to get here: it merges")
    E.label("L_ctail")
    if stamps: E("s_mov_b32 s100, 2")
    E(f"s_lshl2_add_u32 s{sG}, s{sPair}, s{sWave}"); E(f"s_lshl_b32 s{sG}, s{sG}, 15"); E(f"s_add_u32 s{sG}, s{sG}, {WS_SLOT}")
    E(f"v_and_b32 v{vPo}, 3, v{vLane}"); E(f"v_xor_b32 v{vPo}, s{sSplit}, v{vPo}"); E(f"v_lshlrev_b32 v{vPo}, 13, v{vPo}"); E(f"v_add_u32 v{vPo}, 4096, v{vPo}")
    for x in range(1, 4):
        E(f"s_xor_b32 s{sT}, s{sSplit}, {x}"); E(f"s_lshl_b32 s{sT}, s{sT}, 13")
        E(f"s_add_u32 s{sPo+x-1}, s{sG}, s{sT}"); E(f"s_add_u32 s{sPo+2+x}, s{sPo+x-1}, 4096")
    tail("C")
    lsum()
    E.c("fold in what has been fetched (if header and checksum hold), keep looking for the rest")
    E(f"s_mov_b32 s{sPend}, 14"); E(f"s_mov_b32 s{sThr}, {hex(f32bits(TM))}")
    E.label("L_round")
    E(f"s_andn2_b32 s{sNew}, s{sPend}, s{sLd}"); E("s_cbranch_scc1 L_look")
    E("s_waitcnt vmcnt(0)")
    E.label("L_looked")
    for x in range(1, 4):
        E(f"s_bitcmp1_b32 s{sLd}, {x}"); E(f"s_cbranch_scc0 L_fold{x}")
        E(f"v_sub_f32 v{bb}, v{vNM}, v{ml(x)}")
        for t in dots(dat(x)): E(t)
        E(f"v_max_u32 v{vTmp+1}, v{ml(x)}, v{ml(x)+1}"); E(f"v_cmp_eq_u32 s[4:5], -1, v{vTmp+1}")
        E(f"v_cmp_lt_f32 s[6:7], s{sThr}, v{bb}")
        E(f"v_min_u32 v{vCk}, -2, v{vCk}"); E(f"v_cmp_ne_u32 vcc, v{vCk}, v{ml(x)+2}")
        E("s_or_b64 vcc, vcc, s[4:5]"); E(f"s_cbranch_scc1 L_fold{x}")
        E(f"s_bitset0_b32 s{sPend}, {x}")
        E(f"s_cmp_lg_u64 s[6:7], 0"); E(f"s_cbranch_scc1 L_far{x}")
        E.label(f"L_near{x}")
        E(f"v_exp_f32 v{bb}, v{bb}")
        for q in range(2):
            r = dat(x) + 8 * q
            for i in range(8): E(f"v_lshlrev_b32 v{u0+2*i}, 16, v{r+i}")
            for i in range(8): E(f"v_and_b32 v{u0+2*i+1}, 0xffff0000, v{r+i}")
            for i in range(8):
                d = vO + 2 * (8 * q + i)
                E(f"v_pk_fma_f32 {vr(d,2)}, {vr(u0+2*i,2)}, {vr(bb,2)}, {vr(d,2)} op_sel_hi:[1,0,1]")
        E(f"v_fmac_f32 v{vHd+1}, v{ml(x)+1}, v{bb}")
        E.label(f"L_fold{x}")
    if stamps: E("s_add_u32 s99, s99, 1")
    E(f"s_mov_b32 s{sLd}, s{sNew}")
    E(f"s_cmp_lg_u32 s{sPend}, 0"); E("s_cbranch_scc1 L_again")
    E.label("L_merged")
    for i in (2, 3, 4): stampE(i)
    if diags:
        E("s_memrealtime s[86:87]")
        E(f"buffer_load_dwordx2 {vr(vT2,2)}, off, {srd(sDBG)}, 0 offset:128 sc0 sc1"); E("s_waitcnt vmcnt(0) lgkmcnt(0)")
        E(f"v_readfirstlane_b32 s88, v{vT2}"); E(f"v_readfirstlane_b32 s89, v{vT2+1}"); E("s_nop 3"); E("s_not_b32 s89, s89")
        E("s_sub_u32 s88, s88, s89"); E("s_sub_u32 s86, s86, s89")
        E(f"s_cmp_gt_u32 s{86 if diagm else 88}, {diags}"); E("s_cbranch_scc0 L_dx")
        E(f"v_cvt_f32_u32 v{vHd+1}, s{86 if diagm else 88}"); E(f"v_rcp_f32 v{vHd+1}, v{vHd+1}"); E("s_nop 1")
        for i in range(32): E(f"v_mov_b32 v{vO+i}, 1.0")
        E.label("L_dx")
    E(f"v_rcp_f32 v{bb}, v{vHd+1}")
    E(f"v_and_b32 v{vTmp}, 15, v{vLane}"); E(f"v_lshrrev_b32 v{vTmp+1}, 4, v{vLane}")
    E(f"v_lshlrev_b32 v{vTmp}, 8, v{vTmp}"); E(f"v_lshl_add_u32 v{vTmp}, v{vTmp+1}, 4, v{vTmp}")
    E(f"s_lshl_b32 s{sT}, s{sWave}, 12")
    for u in range(4):
        for i in range(4 * u, 4 * u + 4): E(f"v_pk_mul_f32 {vr(vO+2*i,2)}, {vr(vO+2*i,2)}, {vr(bb,2)} op_sel_hi:[1,0]")
        for i in range(4 * u, 4 * u + 4): E(f"v_cvt_pk_bf16_f32 v{vS+i}, v{vO+2*i}, v{vO+2*i+1}")
        E(f"buffer_store_dwordx4 {vr(vS+4*u,4)}, v{vTmp}, {srd(sOUT)}, s{sT} offen offset:{u*64} {outf}")
    if pollmax:
        E(f"s_sub_u32 s{sT}, {SPIN}, s{sSpin}"); E(f"s_cmp_gt_u32 s{sT}, 6"); E("s_cbranch_scc0 L_done")
        E("s_mov_b64 exec, 1"); E(f"v_mov_b32 v{vAt}, s{sT}"); E(f"s_mov_b32 s{sT2}, 0x23000000")
        E(f"buffer_atomic_umax v{vAt}, off, {srd(sWS)}, s{sT2}")
        E(f"v_mov_b32 v{vFl}, 1"); E(f"buffer_atomic_add v{vFl}, off, {srd(sWS)}, s{sT2} offset:4")
    E.label("L_done")
    if stamps:
        E("s_waitcnt vmcnt(0)")
        stampE(5)
        E(f"s_lshl2_add_u32 s{sT}, s{sPair}, s{sSplit}"); E(f"s_lshl2_add_u32 s{sT}, s{sT}, s{sWave}"); E(f"s_lshl_b32 s{sT2}, s{sT}, 4")
        E(f"s_lshl_b32 s4, s{sT}, 8"); E("s_add_u32 s4, s4, 0x22000000")
        E(f"s_add_u32 s{sT2}, s{sT2}, 0x20000000")
        E(f"s_lshl_b32 s{sT}, s{sT}, 6"); E(f"s_add_u32 s{sT}, s{sT}, 0x21000000")
        E("s_waitcnt lgkmcnt(0)")
        E(f"v_accvgpr_read_b32 v60, a255")
        for i in range(12): E(f"v_mov_b32 v{16+i}, s{84+i}")
        E(f"v_mov_b32 v28, s101"); E("s_getreg_b32 s5, hwreg(HW_REG_XCC_ID)"); E("v_mov_b32 v29, s5"); E(f"v_mov_b32 v30, s100"); E("v_mov_b32 v31, s99")
        E("v_mov_b32 v32, s84"); E("v_mov_b32 v33, s85"); E("v_mov_b32 v34, s94"); E("v_mov_b32 v35, s95")
        E(f"buffer_store_dword v60, v{vL4}, {srd(sWS)}, s4 offen sc0 sc1")
        E("s_mov_b64 exec, 1")
        E(f"buffer_store_dwordx4 v[32:35], off, {srd(sWS)}, s{sT2} sc0 sc1")
        for i in range(4): E(f"buffer_store_dwordx4 v[{16+4*i}:{19+4*i}], off, {srd(sWS)}, s{sT} offset:{16*i} sc0 sc1")
    E.label("L_end")
    E("s_endpgm")

    E.label("L_again")
    E(f"s_sub_u32 s{sSpin}, s{sSpin}, 1"); E("s_cbranch_scc0 L_round"); E("s_branch L_merged")
    E.label("L_look")
    E(poll); E("s_waitcnt vmcnt(0)")
    E(f"v_cmp_ne_u32 vcc, -1, v{vPv}"); E(f"s_and_b32 s{sNew}, s{sNew}, vcc_lo"); E("s_cbranch_scc0 L_looked")
    for x in range(1, 4):
        E(f"s_bitcmp1_b32 s{sNew}, {x}"); E(f"s_cbranch_scc0 L_get{x}")
        for t in pl_[5*(x-1):5*x]: E(t)
        E.label(f"L_get{x}")
    E("s_branch L_looked")
    def scale_O(r):
        for i in range(16): E(f"v_pk_mul_f32 {vr(vO+2*i,2)}, {vr(vO+2*i,2)}, {vr(r,2)} op_sel_hi:[1,0]")
    for x in range(1, 4):
        E.label(f"L_far{x}")
        E.c("that partial's reference max is far above ours: move ours up first")
        E(f"v_max_f32 v{vMx}, 0, v{bb}"); E(f"v_sub_f32 v{vNM}, v{vNM}, v{vMx}"); E(f"v_sub_f32 v{bb}, v{bb}, v{vMx}")
        E(f"v_exp_f32 v{vTmp}, -v{vMx}"); E("s_nop 0"); E(f"v_mul_f32 v{vHd+1}, v{vHd+1}, v{vTmp}")
        scale_O(vTmp)
        E(f"s_branch L_near{x}")

    E.label("L_k2v")
    unit_offs(E, None, None); set_base(E, sVb)
    E(f"s_cmp_lg_u32 s{sW0}, 0"); E("s_cbranch_scc0 L_k1")
    if diags:
        E("s_mov_b64 exec, 1"); E(f"v_mov_b32 v{vTmp}, s84"); E(f"v_not_b32 v{vTmp+1}, v{vTmp}")
        E(f"buffer_atomic_umax v{vTmp}, off, {srd(sDBG)}, 0 offset:128"); E(f"buffer_atomic_umax v{vTmp+1}, off, {srd(sDBG)}, 0 offset:132"); E("s_mov_b64 exec, -1")
    E(f"buffer_load_dword v{vFl}, off, {srd(sDBG)}, 0 offset:4 {flagf}")
    E("s_branch L_k1")

    E.label("L_vdisp")
    E(f"s_sub_u32 s{sCnt}, s{sCnt}, 1"); E(f"s_cselect_b32 s{sMode}, 0, s{sMode}"); E("s_cbranch_scc1 L_V_")
    E(f"s_cmp_eq_u32 s{sMode}, 1"); E("s_cbranch_scc1 L_Vf_"); E("s_branch L_Vs_")
    E.label("L_rdisp")
    E(f"s_cmp_eq_u32 s{sMode}, 1"); E("s_cbranch_scc1 L_restf_"); E("s_branch L_rests_")
    E.c("progress counts: read the last one, arm the next one")
    E.label("L_ctl")
    E(f"v_readfirstlane_b32 s{sG}, v{vTmp}"); E(f"s_mov_b32 s{sAt}, 0")
    E(f"s_cmp_eq_u32 s{sJ}, 16"); E("s_nop 1"); E("s_cbranch_scc1 L_last")
    E(f"s_bitcmp1_b32 {hex(sum(1 << (x + 1) for x in sig))}, s{sJ}"); E("s_cbranch_scc0 L_arm")
    if stamps: E("s_lshl_b32 s101, s101, 8"); E(f"s_or_b32 s101, s101, s{sG}")
    E.c("rank among the workgroups of this count -> how many units to run with more (late) or fewer (early) loads in flight")
    def enc(tb):
        assert len(tb) == 16
        v = sum(((8 | -d) if d < 0 else d) << (4 * i) for i, d in enumerate(tb)); return v & 0xffffffff, v >> 32
    for n in range(len(sig) - 1):
        lo, hi = enc(tabs[n])
        if n == 0: E(f"s_mov_b32 s4, {hex(lo)}"); E(f"s_mov_b32 s5, {hex(hi)}")
        else: E(f"s_cmp_eq_u32 s{sJ}, {sig[n]+1}"); E(f"s_cselect_b32 s4, {hex(lo)}, s4"); E(f"s_cselect_b32 s5, {hex(hi)}, s5")
    if len(sig) > 1:
        sh = int(math.log2(256 // shards)) - 4
        E(f"s_lshr_b32 s{sT}, s{sG}, {sh}"); E(f"s_min_u32 s{sT}, s{sT}, 15"); E(f"s_lshl_b32 s{sT}, s{sT}, 2"); E(f"s_lshr_b64 s[4:5], s[4:5], s{sT}")
        E(f"s_and_b32 s{sCnt}, s4, 7"); E("s_bitcmp1_b32 s4, 3"); E(f"s_cselect_b32 s{sMode}, 2, 1")
    E.label("L_arm")
    E(f"s_bitcmp1_b32 {hex(sum(1 << x for x in sig))}, s{sJ}"); E(f"s_cselect_b32 s{sAt}, s{sW0}, 0")
    E(f"s_mul_i32 s{sT}, s{sJ}, {shards}"); E(f"s_add_u32 s{sT}, s{sT}, s{sShard}"); E(f"s_and_b32 s{sT}, s{sT}, 63")
    E(f"s_lshl_b32 s{sT}, s{sT}, {cstride}"); E(f"s_add_u32 s{sT}, s{sT}, 4"); E(f"s_lshl_b32 s{sT2}, s{sPair}, {cstride}")
    E(f"s_cmp_eq_u32 s{sJ}, 15"); E(f"s_cselect_b32 s{sT}, s{sT2}, s{sT}"); E(f"s_add_u32 s{sCoff}, s{sT}, {WS_CTR}")
    assert len(set((x * shards + h) % 64 for x in sig[:-1] for h in range(shards))) == shards * (len(sig) - 1)
    E.c("before the first count: wave 0 checks that the counters are live")
    E(f"s_cmp_eq_u32 s{sJ}, {jr}"); E(f"s_cselect_b32 s{sT}, s{sW0}, 0"); E(f"s_cmp_lg_u32 s{sT}, 0"); E("s_cbranch_scc0 L_v0")
    def zero_counters():
        E(f"v_lshlrev_b32 v{vTmp}, {cstride}, v{vLane}"); E(f"v_mov_b32 v{vCk}, 0"); E(f"v_mov_b32 v{vFl}, 0"); E(f"s_mov_b32 s{sT}, {WS_CTR}")
        E(f"buffer_atomic_swap_x2 {vr(vCk,2)}, v{vTmp}, {srd(sWS)}, s{sT} offen sc0")
    E(f"v_readfirstlane_b32 s{sT}, v{vFl}"); E("s_mov_b64 exec, 1"); E("s_nop 2")
    E(f"s_cmp_lg_u32 s{sT}, 0"); E("s_cbranch_scc1 L_live")
    E.c("not seen live yet: claim the job if it is free, otherwise wait for the (running) workgroup that holds it")
    E(f"v_mov_b32 v{vFl}, 1")
    E(f"buffer_atomic_add v{vFl}, off, {srd(sDBG)}, 0 sc0")
    E("s_waitcnt vmcnt(0)"); E(f"v_readfirstlane_b32 s{sT}, v{vFl}"); E("s_nop 3")
    E(f"s_cmp_eq_u32 s{sT}, 0"); E("s_cbranch_scc0 L_flag")
    E("s_mov_b64 exec, -1"); zero_counters(); E("s_mov_b64 exec, 1")
    E("s_waitcnt vmcnt(0)"); E(f"v_mov_b32 v{vFl}, 1")
    E(f"buffer_atomic_or v{vFl}, off, {srd(sDBG)}, 0 offset:4")
    E("s_branch L_live")
    E.label("L_flag")
    E(f"v_mov_b32 v{vFl}, 0")
    E(f"buffer_atomic_or v{vFl}, off, {srd(sDBG)}, 0 offset:4 sc0")
    E("s_waitcnt vmcnt(0)"); E(f"v_readfirstlane_b32 s{sT}, v{vFl}"); E(f"s_sub_u32 s{sSpin}, s{sSpin}, 1"); E("s_cbranch_scc1 L_live"); E("s_nop 2")
    E(f"s_cmp_lg_u32 s{sT}, 0"); E("s_cbranch_scc0 L_flag")
    E.label("L_live")
    if not nolocal:
        E.c("note this workgroup's XCD in the pair's word")
        E(f"s_lshl_b32 s{sT}, 1, s{sXc}"); E(f"v_mov_b32 v{vFl}, s{sT}"); E(f"s_lshl_b32 s{sT}, s{sPair}, {cstride}"); E(f"s_add_u32 s{sT}, s{sT}, {WS_CTR}")
        E(f"buffer_atomic_add v{vFl}, off, {srd(sWS)}, s{sT}")
    E("s_mov_b64 exec, -1")
    E("s_branch L_v0")

    def tree(lo, hi, reg, pre, leaf):
        if lo == hi: leaf(lo); return
        mid = (lo + hi + 1) // 2
        E(f"s_cmp_ge_u32 s{reg}, {mid}"); E(f"s_cbranch_scc1 {pre}{mid}_{hi}")
        tree(lo, mid - 1, reg, pre, leaf)
        E.label(f"{pre}{mid}_{hi}")
        tree(mid, hi, reg, pre, leaf)
    E.label("L_restore")
    def rleaf(j1):
        b = 17 * (j1 - 1)
        E(f"v_accvgpr_read_b32 v{vMx}, a{b+16}")
        for i in range(16): E(f"v_accvgpr_read_b32 v{vS+i}, a{b+i}")
        E(f"v_cmp_neq_f32 vcc, v{vMx}, v{vMO}"); E("s_cbranch_vccz L_restored"); E("s_branch L_oldref")
    tree(1, npf - 1, sJ, "L_r", rleaf)
    E.c("this tile's P used a newer reference max than O holds: bring O up to it")
    E.label("L_oldref")
    E(f"v_sub_f32 v{vTmp}, v{vMx}, v{vMO}"); E(f"v_exp_f32 v{vTmp}, v{vTmp}"); E(f"v_mov_b32 v{vMO}, v{vMx}")
    scale_O(vTmp)
    E("s_branch L_restored")
    for tag in "EC":
        E.label(f"L_oldref{tag}")
        E(f"v_sub_f32 v{vTmp}, v{vNM}, v{vMO}"); E(f"v_exp_f32 v{vTmp}, v{vTmp}"); E("s_nop 0")
        scale_O(vTmp)
        E(f"s_branch L_newref{tag}")
    E.label("L_save")
    def sleaf(i1):
        if i1 >= 2:
            for t in save_ops(i1 - 2): E(t)
        E("s_branch L_saved")
    tree(1, npf, sI, "L_s", sleaf)

    E.c("rare path: the running max rose past the threshold -> move the reference to the true running max")
    for tag, n in (("K", 32),):
        E.label(f"L_rescale{tag}")
        for sw in ("v_permlane32_swap_b32", "v_permlane16_swap_b32"):
            E(f"v_mov_b32 v{vTmp}, v{vMx}"); E("s_nop 1"); E(f"{sw} v{vTmp}, v{vMx}"); E("s_nop 1"); E(f"v_max_f32 v{vMx}, v{vMx}, v{vTmp}")
        E(f"v_max_f32 v{vTmp}, 0, v{vMx}"); E(f"v_max_f32 v{vT2}, s{sFlo}, v{vMx}")
        E(f"v_exp_f32 v{vTmp}, -v{vTmp}")
        E(f"s_mov_b32 s{sThr}, {hex(f32bits(T))}"); E(f"s_mov_b32 s{sFlo}, 0")
        for r in [vNM, vNM + 2] + [vS + i for i in range(0, n, 2)]:
            E(f"v_pk_add_f32 {vr(r,2)}, {vr(r,2)}, {vr(vT2,2)} op_sel_hi:[1,0] neg_lo:[0,1] neg_hi:[0,1]")
        E(f"v_pk_mul_f32 {vr(vL,2)}, {vr(vL,2)}, {vr(vTmp,2)} op_sel_hi:[1,0]")
        if tag != "K": scale_O(vTmp)
        E(f"s_branch L_rescaled{tag}")

    E.c("workgroup 0, wave 0: zero the 64 ticket counters in d_ws, then raise the flag in d_debug")
    E.label("L_hookK")
    E(f"s_cmp_eq_u32 s{sI}, 1"); E("s_cbranch_scc1 L_hk1")
    E(f"s_cmp_eq_u32 s{sI}, 3"); E("s_cbranch_scc0 L_k1")
    E("s_mov_b64 exec, 1"); E(f"v_mov_b32 v{vFl}, 1")
    E(f"buffer_atomic_or v{vFl}, off, {srd(sDBG)}, 0 offset:4")
    E("s_mov_b64 exec, -1"); E("s_branch L_k1")
    E.label("L_hk1")
    E(f"v_readfirstlane_b32 s{sT}, v{vFl}"); E("s_nop 3")
    E(f"s_cmp_eq_u32 s{sT}, 0"); E(f"s_cselect_b32 s{sHk}, 3, 0"); E("s_cbranch_scc0 L_k1")
    zero_counters()
    E("s_branch L_k1")

    code = pro.text() + kbody + vbody + hbody + [x["t"] for x in E.I if "mark" not in x] + ["L_codeend:"]
    if nocomp:
        kill = ("v_fma_mix", "v_cvt_pk", "v_mfma", "v_exp", "v_pk_", "v_max3", "ds_write2", "ds_write_b128", "ds_read_b128", "v_accvgpr_write_b32 a1", "v_accvgpr_read_b32 v9", "v_accvgpr_read_b32 v10", "s_cbranch_vccnz L_resc")
        a0 = code.index("L_K:"); a1 = code.index("L_round:"); c2 = []
        for i, l in enumerate(code):
            if a0 < i < a1:
                if l.strip().startswith(kill): continue
                if "lgkmcnt" in l:
                    l = "    s_waitcnt lgkmcnt(0)"
                    if c2[-1] == l: continue
            c2.append(l)
        code = c2
    if abl:
        a0 = code.index("L_last:"); a1 = code.index("L_merged:"); c2 = []
        for i, l in enumerate(code):
            if a0 < i < a1:
                if abl & 1 and "buffer_store" in l: continue
                if abl & 2 and "buffer_load" in l: continue
                if "s_cbranch_scc1 L_miss" in l: continue
                if abl & 2 and "vmcnt" in l: l = "    s_waitcnt vmcnt(0)"
            c2.append(l)
        code = c2
    if align: code = align_pass(code)
    if not nocomp and not abl: hazard_check(code)
    L = [HDR.rstrip(), f"; @launch grid=(256,1,1) block=(256,1,1) lds={LDS_TOTAL}", '.amdgcn_target "amdgcn-amd-amdhsa--gfx950"',
         ".text", f".globl {NAME}_kernel", ".p2align 8", f".type {NAME}_kernel,@function", f"{NAME}_kernel:"]
    L += code
    L += ['.section .rodata,"a"', ".p2align 6", f".amdhsa_kernel {NAME}_kernel",
          "  .amdhsa_next_free_vgpr 512", "  .amdhsa_next_free_sgpr 102", "  .amdhsa_accum_offset 256",
          "  .amdhsa_group_segment_fixed_size 0", "  .amdhsa_kernarg_size 80", "  .amdhsa_user_sgpr_count 2",
          "  .amdhsa_user_sgpr_kernarg_segment_ptr 1", "  .amdhsa_system_sgpr_workgroup_id_x 1",
          "  .amdhsa_float_denorm_mode_32 3", "  .amdhsa_float_denorm_mode_16_64 3", ".end_amdhsa_kernel"]
    open(path, "w").write("\n".join(L) + "\n")

if __name__ == "__main__":
    import argparse
    ap = argparse.ArgumentParser()
    ap.add_argument("out")
    for n, t, d in (("AL", int, 7), ("np", int, 14), ("cs", int, 8), ("nK1", int, 7), ("vtail", float, 1.0), ("T", float, 8.0), ("TM", float, 32.0),
                    ("pfcode", int, 4), ("ct", float, 0.6), ("ct0", float, 0.3), ("hv", int, 4), ("hk", float, 0.9), ("hp", int, 4), ("hq", float, 0.9), ("npre", int, 6), ("hst", int, 0), ("nocomp", int, 0), ("abl", int, 0), ("capC", str, None), ("uth", int, 4), ("grp", int, 0), ("flagf", str, ""), ("capF", str, "7"), ("capS", str, "45"), ("tabs", str, "dcbbaa0001112234,cbbaaa0000112223"), ("ms", str, "6,11"), ("shards", int, 4), ("shb", int, 3), ("ldf", str, "sc0 sc1"), ("wb", int, 0), ("wto", int, 0), ("nolocal", int, 1), ("pb", int, 100), ("jr", int, 3), ("pa", int, 0), ("pw", int, 1), ("noearly", int, 0), ("diags", int, 0), ("diagm", int, 0), ("cols", str, "1000,800,4000,2000,100,240,4b0,8044"),
                    ("nt", str, "nt"), ("q", str, ""), ("smf", str, "nt"), ("outf", str, "sc0 sc1"), ("pubf", str, "sc0 sc1"),
                    ("cap", str, "5"), ("capV", str, "5"), ("capH", str, None), ("capP", str, "8")):
        ap.add_argument("--" + n, type=t, default=d)
    ap.add_argument("--mix", type=lambda x: int(x, 0), default=0)
    for n in ("stamps", "it", "dry", "noalign", "pollmax"): ap.add_argument("--" + n, action="store_true")
    a = ap.parse_args()
    gen(a.out, AL=a.AL, npf=a.np, stamps=a.stamps, nt=a.nt, smf=a.smf, qflag=a.q, cstride=a.cs, T=a.T, TM=a.TM, mix=a.mix, nK1=a.nK1, vtail=a.vtail,
        itst=a.it, outf=a.outf, pubf=a.pubf, cap=a.cap, capV=a.capV, capH=a.capH, capP=a.capP, pfcode=a.pfcode, ctspan=a.ct, ct0=a.ct0,
        hv=a.hv, hk=a.hk, hp=a.hp, hq=a.hq, npre=a.npre, dry=a.dry, hst=a.hst, align=not a.noalign, nocomp=a.nocomp, abl=a.abl, capC=a.capC, uth=a.uth, pollmax=a.pollmax, grp=a.grp, flagf=a.flagf, capF=a.capF, capS=a.capS, tabs=[[(int(c) if c.isdigit() else -(ord(c) - 96)) for c in t] for t in a.tabs.split(',')], ms=tuple(int(x) for x in a.ms.split(',') if x), shards=a.shards, shb=a.shb, ldf=a.ldf, wb=a.wb, wto=a.wto, nolocal=a.nolocal, pb=a.pb, jr=a.jr, pa=a.pa, pw=a.pw, noearly=a.noearly, diags=a.diags, diagm=a.diagm, cols=[int(x, 16) << 12 for x in a.cols.split(',')])
```

```python
import sys, struct, math, re
NAME = "standalone__kv_cache_quant_int4_int2_kv_with_per_channel_or_per_token_scales__sampling"
HDR = open("cdna_kernels/" + NAME + ".s.ref").read().split("; Override launch")[0]

def f32bits(x):
    return struct.unpack("<I", struct.pack("<f", x))[0]

def cost_of(s):
    op = s.split()[0]
    if op.startswith("v_mfma"): return 8
    if op in ("v_exp_f32", "v_rcp_f32"): return 8
    if op in ("ds_write_b128", "ds_write2_b64"): return 28
    if op.startswith("ds_write"): return 20
    if op == "s_barrier": return 70
    if op == "s_nop": return 4 * (int(s.split()[1]) + 1)
    return 4

class Stream:
    def __init__(self): self.I = []; self.lock = False; self.nds = 0
    def __call__(self, s, cost=None):
        self.I.append(dict(t="    " + s, c=(cost_of(s) if cost is None else cost), ins=not self.lock))
        if s.startswith("ds_"): self.nds += 1
        return self.nds
    def waitds(self, i):
        n = self.nds - i; assert 0 <= n <= 15
        self(f"s_waitcnt lgkmcnt({n})")
    def label(self, s): self.I.append(dict(t=s + ":", c=0, ins=not self.lock))
    def c(self, s): self.I.append(dict(t="    ; " + s, c=0, ins=not self.lock))
    def mark(self, kind, k=None): self.I.append(dict(mark=kind, k=k, c=0, ins=not self.lock))
    def text(self): return [x["t"] for x in self.I]

INLINE = re.compile(r"^-?(\d+|0x[0-9a-f]+)$")
def has_literal(ops):
    for o in ops:
        if INLINE.match(o):
            v = int(o, 0)
            if not -16 <= v <= 64 and (v & 0x7fffffff) not in (0x3f000000, 0x3f800000, 0x40000000, 0x40800000): return True
        elif re.match(r"^L_\w+-L_\w+$", o): return True
    return False
VOP12 = ("v_mov_b32", "v_exp_f32", "v_rcp_f32", "v_add_f32", "v_sub_f32", "v_mul_f32", "v_max_f32", "v_lshlrev_b32", "v_lshrrev_b32", "v_and_b32",
         "v_xor_b32", "v_add_u32", "v_mul_u32_u24", "v_min_u32", "v_max_u32", "v_fmac_f32", "v_cvt_f32_u32", "v_not_b32")
def isize(line):
    s = line.split(";")[0].strip()
    if not s or s.endswith(":") or s.startswith("."): return 0, None
    op, _, rest = s.partition(" ")
    ops = [o.strip() for o in rest.split(",")] if rest else []
    if op.startswith(("s_load", "s_memrealtime", "ds_", "buffer_")): return 8, None
    if op.startswith("s_"):
        if op in ("s_waitcnt", "s_nop", "s_barrier", "s_endpgm", "s_branch", "s_getreg_b32") or op.startswith("s_cbranch"): return 4, None
        return (8 if has_literal(ops) else 4), None
    if op in ("v_cndmask_b32", "v_readfirstlane_b32", "v_permlane32_swap_b32", "v_permlane16_swap_b32"): return 4, None
    if op.startswith("v_cmp"):
        return (4 + 4 * has_literal(ops[1:]) if ops[0] == "vcc" else 8), None
    if op in VOP12:
        if any(o.startswith("-v") for o in ops): return 8, "valu"
        if has_literal(ops[1:]): return 8, "valu"
        return 4, "grow"
    if op.startswith("v_mfma"): return 8, None
    return 8, "valu"
def align_pass(L):
    out = []; par = 0; last = None
    for i, line in enumerate(L):
        sz, kind = isize(line)
        if sz == 8 and par and last is not None:
            j = last; op = out[j].split()[0]
            out[j] = out[j].replace(op, op + "_e64", 1); par = 0
        elif sz == 8 and par:
            n = 0
            for l2 in L[i:]:
                s2, k2 = isize(l2)
                if s2 == 4: break
                n += k2 == "valu"
            if n >= 7: out.append("    s_nop 0"); par = 0
        if sz == 8: last = None
        if sz == 4:
            par ^= 1
            if kind == "grow": last = len(out)
        out.append(line)
    return out

def regs_of(tok):
    m = re.match(r"^-?v\[(\d+):(\d+)\]$", tok)
    if m: return set(range(int(m.group(1)), int(m.group(2)) + 1))
    m = re.match(r"^-?v(\d+)$", tok)
    return {int(m.group(1))} if m else set()
def hazard_check(L):
    hist = []
    for line in L:
        s = line.split(";")[0].strip()
        if not s or s.endswith(":") or s.startswith("."): continue
        op, _, rest = s.partition(" ")
        toks = [o.strip().split(" ")[0] for o in rest.split(",")] if rest else []
        if op in ("s_branch", "s_endpgm"): hist = []; continue
        st = int(toks[0]) + 1 if op == "s_nop" else 1
        allr = [regs_of(t) for t in toks]
        isv = op.startswith("v_"); mf = op.startswith("v_mfma")
        store = op.startswith(("ds_write", "buffer_store", "buffer_atomic"))
        dst = set() if (store or not allr or op.startswith(("v_cmp", "v_readfirstlane"))) else allr[0]
        src = set().union(*(allr if store or op.startswith(("v_cmp", "v_permlane", "v_fmac")) else allr[1:])) if allr else set()
        if op.startswith("v_permlane"): dst = src
        d = 0
        for (pop, pdst, psrcC, pst) in reversed(hist):
            need = 0
            if pop.startswith("v_mfma"):
                if mf:
                    if pdst & (allr[1] | allr[2]): need = 8
                    elif pdst & allr[3] and pdst != allr[3]: need = 6
                elif pdst & (src | dst): need = 8
                elif isv and psrcC & dst: need = 3
            elif pop.startswith("v_"):
                if mf and pdst & src: need = 2
                if op.startswith("v_permlane") and pdst & src: need = 2
                if op == "v_readfirstlane_b32" and pdst & src: need = 1
                if pop.split("_e64")[0] in ("v_exp_f32", "v_rcp_f32") and isv and op.split("_e64")[0] not in ("v_exp_f32", "v_rcp_f32") and pdst & src: need = max(need, 1)
                if pop.startswith("v_dot") and op != pop and pdst & (src | dst): need = 3
            elif pop.startswith("buffer_store_dwordx4") and isv and psrcC & dst: need = 2
            assert d >= need, f"hazard: {pop} -> {s} distance {d} < {need}"
            d += pst
            if d >= 8: break
        hist.append((op, dst, (allr[3] if mf else (allr[0] if op.startswith("buffer_store") else set())), st))

def gen(path, AL=8, npf=14, stamps=False, nt="nt", smf="nt", qflag="", cstride=8, T=8.0, TM=32.0, mix=0x31031031, nK1=9, vtail=1.0,
        itst=False, outf="sc0 sc1", pubf="sc0 sc1", cap="56", capV="556", capH=None, capP="8", pfcode=4, ctspan=0.95, ct0=0.15,
        hv=4, hk=0.9, hp=4, hq=0.9, npre=6, dry=False, hst=0, align=True, nocomp=0, abl=0, capC=None, uth=4, pollmax=False, grp=0, flagf='', capF='7', capS='45', tabs=None, ms=(5, 11), shards=4, shb=3, cols=None, ldf='sc0 sc1', wb=False, wto=0, nolocal=False, pb=100, jr=3, pa=1, pw=1, noearly=0, diags=0, diagm=0, p2f=-1, jo=15, om='----', chk=-1, apoll=0):
    npf = 16
    capn = lambda c, k: int(c[k % len(c)], 16) - 1
    KROW = 288; JS = 576; OS = 2320
    TABW = 16 * 256
    LDS_MB = 0; LDS_SC = 256; LDS_TAB = 1536; LDS_K = LDS_TAB + 4 * TABW; LDS_V = LDS_K + 128 * KROW
    LDS_TOTAL = LDS_V + 16 * OS
    assert LDS_K % 256 == 0 and LDS_K + 128 * KROW < 65536 and LDS_TAB % 512 == 0 and TABW % 512 == 0
    WS_SLOT = 1 << 20; WS_CTR = 16 << 20; FLAG = 0x100
    SPIN = 1 << 20
    PF = 8
    vLane, vOff, vMb, vKR, vSW, vSR, vVW, vVR, vTK, vTV, vL4, vLin = range(12)
    vHd = 12
    vCk, vFl = 14, 15
    vL = 16
    vT2 = 18
    vKS, vKC = 20, 24; vKSr, vKZr, vVSr, vVZr = 28, 30, 32, 33
    vTmp = 34
    vMx, vAt, vMO = 37, 38, 39
    vKP = 40; vVP = 48; vO = 64; vS = 96; vRing = 128; vQ = 192; vSt = 208; NST = 10
    vNM = 248; vKW = 252
    vSc = vS + 16
    sX, sY, sSM, sQ, sDBG, sWS, sOUT = 8, 12, 16, 20, 24, 28, 32
    sKb, sVb = 36, 38
    sPair, sSplit, sI, sJ, sG, sT, sT2, sFlo, sThr, sDoff, sCoff, sIni, sKsl, sVsl, sWb, sPend, sSpin, sW0, sHk, sMode = range(40, 60)
    sAt = 49; sShard = 82; sCnt = 83; sXc = 71
    sO = 60
    sK1, sK2 = 64, 66
    sCw = 72
    sPo = 76
    sWave = 3
    srd = lambda r: f"s[{r}:{r+3}]"
    vr = lambda r, n: f"v[{r}:{r+n-1}]"
    def item_text(k):
        return f"buffer_load_dwordx4 {vr(vRing+4*k,4)}, v{vOff}, {srd(sX if k < 8 else sY)}, s{sO + k//4} offen offset:{(k%4)*1024} {nt}"
    sXm = 101 if not stamps else 59 + 40
    sXm = 2
    def unit_offs(A, idx, slot):
        if idx is None: A(f"s_mov_b32 s{sO}, s{sXm}")
        else: A(f"s_lshl_b32 s{sO}, s{idx}, 16"); A(f"s_xor_b32 s{sO}, s{sO}, s{sXm}")
        A(f"s_add_u32 s{sO+1}, s{sO}, 4096"); A(f"s_xor_b32 s{sO+2}, s{sO}, 0x4000"); A(f"s_xor_b32 s{sO+3}, s{sO+1}, 0x4000")
        if slot is not None: A(f"s_bfe_u32 s{slot}, s{sO}, 0xc0008")
    def set_base(A, b, b2=None):
        if b2 is None: b2 = b
        A(f"s_mov_b64 s[{sX}:{sX+1}], s[{b}:{b+1}]"); A(f"s_mov_b64 s[{sY}:{sY+1}], s[{b2}:{b2+1}]")
    A = Stream()
    A("s_cmp_ge_u32 s2, 256"); A("s_cbranch_scc1 L_end")
    if stamps: A("s_memrealtime s[84:85]"); A("s_mov_b32 s101, 0")
    if diags: A("s_memrealtime s[84:85]")
    A("s_load_dwordx16 s[68:83], s[0:1], 0")
    A("s_load_dwordx4 s[4:7], s[0:1], 64")
    if pfcode:
        A.c("pull this kernel's code into L2 with strided loads (speed only; the values are unused)")
        A("s_getpc_b64 s[92:93]"); A("s_and_b32 s92, s92, 0xffffff00"); A("s_mov_b32 s94, L_codeend-L_pf"); A("s_mov_b32 s95, 0x20000")
        A.label("L_pf")
        A(f"v_lshlrev_b32 v{vTmp}, 7, v0")
        A(f"s_lshr_b32 s{sT2}, s2, 3"); A(f"s_and_b32 s{sT2}, s{sT2}, {pfcode-1}"); A(f"s_cselect_b32 s94, 0, s94")
        A(f"buffer_load_dword v{vTmp}, v{vTmp}, s[92:95], 0 offen")
    A("v_lshrrev_b32 v1, 6, v0")
    A(f"v_and_b32 v{vLane}, 63, v0")
    A(f"v_readfirstlane_b32 s{sWave}, v1")
    A(f"s_bfe_u32 s{sIni}, s2, {hex((int(math.log2(shards)) << 16) | shb)}")
    A.c("workgroup id -> (pair, split) and the order in which it walks its token groups: a bijection (placement affects speed only)")
    A(f"s_lshl_b32 s{sT2}, s2, 20")
    for i, c in enumerate(cols):
        x = c ^ (1 << (20 + i))
        if x: A(f"s_bitcmp1_b32 s2, {i}"); A(f"s_cselect_b32 s{sT}, {hex(x)}, 0"); A(f"s_xor_b32 s{sT2}, s{sT2}, s{sT}")
    if mix:
        A(f"s_lshr_b32 s{sT}, s2, 3"); A(f"s_and_b32 s{sT}, s{sT}, 7"); A(f"s_lshl_b32 s{sT}, s{sT}, 2")
        A(f"s_lshr_b32 s{sT}, {hex(mix)}, s{sT}"); A(f"s_and_b32 s{sT}, s{sT}, 3"); A(f"s_and_b32 s{sT}, s{sT}, s2")
        A(f"s_bcnt1_i32_b32 s{sT}, s{sT}"); A(f"s_and_b32 s{sT}, s{sT}, 1"); A(f"s_lshl_b32 s{sT}, s{sT}, 22"); A(f"s_xor_b32 s{sT2}, s{sT2}, s{sT}")
    def idmap(w):
        v = 0
        for i, c in enumerate(cols):
            if w >> i & 1: v ^= c
        if mix: v ^= (bin((mix >> (4 * ((w >> 3) & 7))) & 3 & w).count("1") & 1) << 22
        return v
    assert len(set(idmap(w) >> 20 for w in range(256))) == 256 and all(idmap(w) & ~0xfff4000 == 0 for w in range(256)) and idmap(0) == 0
    A(f"s_mov_b32 s{sMode}, s2")
    A(f"s_lshr_b32 s{sPair}, s{sT2}, 22"); A(f"s_bfe_u32 s{sSplit}, s{sT2}, 0x20014"); A(f"s_and_b32 s{sXm}, s{sT2}, 0x3fffff")
    c_, h_, m_, g_ = vKS, vKS + 1, vKS + 2, vKS + 3
    t0, t1, vQo = vKC, vKC + 1, vKC + 2
    A(f"v_and_b32 v{c_}, 31, v{vLane}"); A(f"v_lshrrev_b32 v{h_}, 5, v{vLane}")
    A(f"v_and_b32 v{m_}, 15, v{vLane}"); A(f"v_lshrrev_b32 v{g_}, 4, v{vLane}")
    A(f"v_lshlrev_b32 v{vLin}, 4, v{vLane}"); A(f"v_lshlrev_b32 v{vL4}, 2, v{vLane}")
    A(f"s_and_b32 s{sT}, s{sWave}, 1"); A(f"s_lshl_b32 s{sT}, s{sT}, 13")
    A(f"s_lshr_b32 s{sT2}, s{sWave}, 1"); A(f"s_lshl_b32 s{sT2}, s{sT2}, 15"); A(f"s_add_u32 s{sWb}, s{sT}, s{sT2}")
    A(f"v_add_u32 v{vOff}, s{sWb}, v{vLin}")
    A(f"v_lshlrev_b32 v{vQo}, 8, v{m_}"); A(f"v_lshl_add_u32 v{vQo}, v{g_}, 4, v{vQo}")
    for i in range(4): A(f"v_mov_b32 v{vVP+i}, -1")
    def own_slot(A):
        A(f"s_lshl2_add_u32 s{sT}, s{sPair}, s{sWave}"); A(f"s_lshl2_add_u32 s{sT}, s{sT}, s{sSplit}")
        A(f"s_lshl_b32 s{sT}, s{sT}, 13"); A(f"s_add_u32 s{sT}, s{sT}, {WS_SLOT}"); A(f"s_add_u32 s{sT2}, s{sT}, 4096")
    A(f"s_mul_i32 s{sG}, s{sWave}, {TABW}"); A(f"s_add_u32 s{sG}, s{sG}, {LDS_TAB}"); A(f"s_mov_b32 m0, s{sG}")
    own_slot(A)
    for r in (sX, sY): A(f"s_mov_b32 s{r+2}, {0 if dry else 0x400000}"); A(f"s_mov_b32 s{r+3}, 0x20000")
    A(f"s_mov_b32 s{sWS+2}, 0x40000000"); A(f"s_mov_b32 s{sWS+3}, 0x20000")
    A(f"s_lshl_b32 s{sT}, s{sPair}, 22")
    A(f"s_mov_b32 s{sDBG+2}, 256"); A(f"s_mov_b32 s{sDBG+3}, 0x20000"); A(f"v_mov_b32 v{vFl}, 1")
    unit_offs(A, None, sVsl); A(f"s_andn2_b32 s{sKsl}, s{sVsl}, 255")
    for r in (sSM, sQ, sOUT): A(f"s_mov_b32 s{r+2}, 0x4000"); A(f"s_mov_b32 s{r+3}, 0x20000")
    A(f"s_lshl_b32 s{sPend}, s{sPair}, 14")
    A("s_waitcnt lgkmcnt(0)")
    def mk(r, p): A(f"s_add_u32 s{r}, s{p}, s{sPend}"); A(f"s_addc_u32 s{r+1}, s{p+1}, 0")
    A(f"s_add_u32 s{sKb}, s70, s{sT}"); A(f"s_addc_u32 s{sKb+1}, s71, 0")
    set_base(A, sKb)
    for k in range(npre): A(item_text(k))
    A(f"s_add_u32 s{sVb}, s72, s{sT}"); A(f"s_addc_u32 s{sVb+1}, s73, 0")
    A.c("wave w streams scale/zero array w (ks, kz, vs, vz) into the LDS table")
    A(f"s_cmp_eq_u32 s{sWave}, 1"); A(f"s_cselect_b64 s[{sSM}:{sSM+1}], s[76:77], s[74:75]")
    A(f"s_cmp_eq_u32 s{sWave}, 2"); A(f"s_cselect_b64 s[{sSM}:{sSM+1}], s[78:79], s[{sSM}:{sSM+1}]")
    A(f"s_cmp_eq_u32 s{sWave}, 3"); A(f"s_cselect_b64 s[{sSM}:{sSM+1}], s[80:81], s[{sSM}:{sSM+1}]")
    mk(sSM, sSM)
    A(f"s_lshl_b32 s{sT}, s{sSplit}, 12")
    nT = (npf + 3) // 4
    for u in range(nT):
        rows = min(4, npf - 4 * u)
        if rows < 4: A(f"s_bfm_b64 exec, {16*rows}, 0")
        A(f"buffer_load_dwordx4 v{vLin}, {srd(sSM)}, s{sT} offen offset:{u*1024} {smf} lds")
        if rows < 4: A("s_mov_b64 exec, -1")
    mk(sQ, 68)
    A(f"s_lshl_b32 s{sT}, s{sWave}, 12")
    for s4 in range(4): A(f"buffer_load_dwordx4 {vr(vQ+4*s4,4)}, v{vQo}, {srd(sQ)}, s{sT} offen offset:{s4*64} {qflag}")
    A.c("mark the header of this wave's hand-off slot empty")
    A(f"s_mov_b64 s[{sWS}:{sWS+1}], s[6:7]")
    A(f"buffer_store_dwordx4 {vr(vVP,4)}, v{vLin}, {srd(sWS)}, s{sT2} offen sc0 sc1")
    A.c("workgroup 0 claims the job of zeroing the ticket counters (any workgroup takes it over later if nobody has)")
    A(f"s_mov_b64 s[{sDBG}:{sDBG+1}], s[4:5]")
    A(f"s_cmp_eq_u32 s{sWave}, 0"); A(f"s_cselect_b32 s{sW0}, 1, 0")
    A(f"s_or_b32 s{sT}, s{sMode}, {'1' if noearly else 's%d' % sWave}"); A(f"s_cselect_b32 s{sHk}, 0, 3"); A("s_cbranch_scc1 L_noel")
    A("s_mov_b64 exec, 1")
    A(f"buffer_atomic_add v{vFl}, off, {srd(sDBG)}, 0 sc0")
    A("s_mov_b64 exec, -1")
    A.label("L_noel")
    mk(sOUT, 82)
    A(f"v_lshlrev_b32 v{vTK}, 3, v{c_}")
    A(f"v_lshrrev_b32 v{vTV}, 4, v{c_}"); A(f"v_lshlrev_b32 v{vTV}, 5, v{vTV}")
    A(f"v_and_b32 v{t0}, 15, v{c_}"); A(f"v_add_lshl_u32 v{vTV}, v{vTV}, v{t0}, 1")
    A(f"s_lshr_b32 s{sT}, s{sWb}, 8"); A(f"v_add_u32 v{vTV}, s{sT}, v{vTV}")
    A(f"s_lshr_b32 s{sT}, s{sWave}, 1"); A(f"s_and_b32 s{sT2}, s{sWave}, 1")
    A(f"s_mul_i32 s{sT}, s{sT}, {32*KROW}"); A(f"s_mul_i32 s{sT2}, s{sT2}, {8*KROW}"); A(f"s_add_u32 s{sT}, s{sT}, s{sT2}"); A(f"s_add_u32 s{sT}, s{sT}, {LDS_K}")
    A(f"v_mul_u32_u24 v{vKW}, {4*KROW}, v{h_}"); A(f"v_lshl_add_u32 v{vKW}, v{c_}, 3, v{vKW}"); A(f"v_add_u32 v{vKW}, s{sT}, v{vKW}")
    for u, rows in ((1, 16), (2, 64), (3, 80)): A(f"v_add_u32 v{vKW+u}, {rows*KROW}, v{vKW}")
    A(f"v_mul_u32_u24 v{vKR}, {KROW}, v{m_}"); A(f"v_lshl_add_u32 v{vKR}, v{g_}, 4, v{vKR}")
    A(f"s_mul_i32 s{sT}, s{sWave}, {2*OS}"); A(f"s_add_u32 s{sT}, s{sT}, {LDS_V}")
    A(f"v_mul_u32_u24 v{vVW}, {OS}, v{h_}"); A(f"v_lshl_add_u32 v{vVW}, v{c_}, 4, v{vVW}"); A(f"v_add_u32 v{vVW}, s{sT}, v{vVW}")
    A(f"v_mul_u32_u24 v{vVR}, {OS}, v{g_}"); A(f"v_and_b32 v{t0}, 3, v{m_}"); A(f"v_mul_u32_u24 v{t0}, {JS}, v{t0}")
    A(f"v_lshrrev_b32 v{t1}, 2, v{m_}"); A(f"v_lshlrev_b32 v{t1}, 5, v{t1}")
    A(f"v_add3_u32 v{vVR}, v{vVR}, v{t0}, v{t1}"); A(f"v_add_u32 v{vVR}, {LDS_V}, v{vVR}")
    A(f"s_lshl_b32 s{sT}, s{sWave}, 8"); A(f"s_add_u32 s{sT2}, s{sT}, {LDS_SC}")
    A(f"v_and_b32 v{vSW}, 1, v{c_}"); A(f"v_lshlrev_b32 v{vSW}, 7, v{vSW}")
    A(f"v_lshrrev_b32 v{t0}, 1, v{c_}"); A(f"v_lshl_add_u32 v{vSW}, v{t0}, 3, v{vSW}"); A(f"v_add_u32 v{vSW}, s{sT2}, v{vSW}")
    A(f"v_lshlrev_b32 v{vSR}, 7, v{h_}"); A(f"v_add_u32 v{vSR}, s{sT2}, v{vSR}")
    A(f"v_mov_b32 v{vMb}, {LDS_MB}")
    A(f"s_mov_b32 s{sCoff}, {WS_CTR}")
    cc = math.log2(math.e) / math.sqrt(128.0)
    for i in range(2): A(f"s_mov_b32 s{sK1+i}, {hex(f32bits(cc * 2.0**24))}"); A(f"s_mov_b32 s{sK2+i}, {hex(f32bits(-2.0**-24))}")
    A.c("the first tile always takes the rescale path, which sets the reference to that tile's true row max")
    A(f"s_mov_b32 s{sThr}, 0xff800000"); A(f"s_mov_b32 s{sFlo}, 0xff800000")
    for r in (sAt, sMode, sCnt, sI, sJ): A(f"s_mov_b32 s{r}, 0")
    A(f"s_mov_b32 s{sShard}, s{sIni}")
    if not nolocal: A(f"s_getreg_b32 s{sXc}, hwreg(HW_REG_XCC_ID, 0, 3)"); A(f"s_mul_i32 s{sXc}, s{sXc}, 3"); A(f"s_add_u32 s{sXc}, s{sXc}, 8")
    A(f"s_mov_b32 s{sSpin}, {SPIN}")
    for i, w in enumerate((0x9e37c2b3, 0x85eb6d2f, 0x27d4f1a9, 0x165753c5)): A(f"s_mov_b32 s{sCw+i}, {hex(w)}")
    for i in range(32): A(f"v_mov_b32 v{vO+i}, 0")
    for i in range(4): A(f"v_mov_b32 v{vNM+i}, 0")
    A(f"v_mov_b32 v{vMO}, 0x7149f2ca"); A(f"v_mov_b32 v{vL}, 0"); A(f"v_mov_b32 v{vL+1}, 0"); A(f"v_mov_b32 v{vAt}, 0")
    def ktab_reads(S):
        S(f"v_add_u32 v{vTmp+2}, s{sKsl}, v{vTK}")
        S(f"ds_read_b64 {vr(vKSr,2)}, v{vTmp+2} offset:{LDS_TAB}"); S(f"ds_read_b64 {vr(vKZr,2)}, v{vTmp+2} offset:{LDS_TAB+TABW}")
    def vtab_reads(S):
        S(f"v_xor_b32 v{vTmp+2}, s{sVsl}, v{vTV}")
        S(f"ds_read_u16 v{vVSr}, v{vTmp+2} offset:{LDS_TAB+2*TABW}"); S(f"ds_read_u16 v{vVZr}, v{vTmp+2} offset:{LDS_TAB+3*TABW}")
    def prep_v(S):
        S.c("V: S = vs*2^24, C = -vz*vs per token, broadcast through LDS")
        S(f"v_lshlrev_b32 v{vT2}, 16, v{vVSr}"); S(f"v_lshlrev_b32 v{vT2+1}, 16, v{vVZr}")
        S(f"v_mul_f32 v{vT2+1}, -v{vT2+1}, v{vT2}"); S(f"v_mul_f32 v{vT2}, 0x4b800000, v{vT2}")
        S(f"ds_write_b64 v{vSW}, {vr(vT2,2)}")
    def prep_k(S):
        S.c("K: S = ks*c*2^24, C = -kz*ks*c per channel, c = log2(e)/sqrt(128) (the int code is read as an f16 subnormal, code*2^-24)")
        for p in range(2): S(f"v_lshlrev_b32 v{vKS+2*p}, 16, v{vKSr+p}"); S(f"v_lshlrev_b32 v{vKC+2*p}, 16, v{vKZr+p}")
        for p in range(2): S(f"v_and_b32 v{vKS+2*p+1}, 0xffff0000, v{vKSr+p}"); S(f"v_and_b32 v{vKC+2*p+1}, 0xffff0000, v{vKZr+p}")
        for p in range(2): S(f"v_pk_mul_f32 {vr(vKS+2*p,2)}, {vr(vKS+2*p,2)}, s[{sK1}:{sK1+1}]")
        for p in range(2): S(f"v_pk_mul_f32 {vr(vKC+2*p,2)}, {vr(vKC+2*p,2)}, s[{sK2}:{sK2+1}]")
        for p in range(2): S(f"v_pk_mul_f32 {vr(vKC+2*p,2)}, {vr(vKC+2*p,2)}, {vr(vKS+2*p,2)}")
    def sc_lo_reads(S):
        for i in range(4): S(f"ds_read_b128 {vr(vSc+4*i,4)}, v{vSR} offset:{i*16}")
    for k in range(npre, 16):
        A(f"s_waitcnt vmcnt({capn(capP, k)})"); A(item_text(k))
    ENTRYV = 15 - max(capn(c, 15) for c in (cap, capV, capF, capS))
    ENTRY = 15 - capn(cap, 15)
    assert 16 - ENTRY <= 16 - npre
    A(f"s_waitcnt vmcnt({16 - ENTRY})"); A("s_barrier")
    ktab_reads(A); vtab_reads(A)
    A("s_waitcnt lgkmcnt(0)")
    prep_v(A)
    pro = A

    def itstamp(S):
        if stamps and itst:
            S("s_memrealtime s[96:97]"); S("s_mov_b32 s98, m0"); S(f"s_add_u32 m0, s{sI}, s{sJ}"); S(f"v_accvgpr_read_b32 v{vTmp+2}, a255"); S("s_waitcnt lgkmcnt(0)")
            S(f"v_writelane_b32 v{vTmp+2}, s96, m0"); S("s_mov_b32 m0, s98"); S(f"v_accvgpr_write_b32 a255, v{vTmp+2}")

    def emit(B, items, place, seq0, done0, caps, name, at=None):
        out = []; ei = 0; done = done0; info = []; marks = {}
        def wait(n):
            nonlocal done
            if ei - n > done: out.append(f"    s_waitcnt vmcnt({n})"); done = ei - n; return True
            return False
        for i, x in enumerate(B.I):
            while ei < len(items) and place[ei] == i:
                if ei == at:
                    out.extend([f"    s_cmp_lg_u32 s{sAt}, 0", "    s_cbranch_scc0 L_noat", "    s_mov_b64 exec, 1", f"    v_mov_b32 v{vAt}, 1",
                                f"    buffer_atomic_add v{vAt}, off, {srd(sWS)}, s{sCoff} sc0", "    s_mov_b64 exec, -1", "L_noat:"])
                if caps: wait(capn(caps, ei))
                out.append("    " + items[ei]); ei += 1
            if "mark" in x:
                marks[(x["mark"], x["k"])] = (ei, done)
                if x["mark"] == "wait":
                    n = ei - 1 - seq0[x["k"]]; assert n >= 0
                    info.append((x["k"], n, wait(n)))
                elif x["mark"] == "smallwait": wait(ei - x["k"])
                elif x["mark"] == "postwait": out.append(f"    s_waitcnt vmcnt({AL})")
            else: out.append(x["t"])
        assert ei == len(items)
        print(name, "cost", sum(x["c"] for x in B.I), "waits", [(k, n) for k, n, w in info if w], "lead", min(n for k, n, w in info), file=sys.stderr)
        return out, marks
    class Pos:
        def __init__(self, B):
            self.I = B.I; self.cum = []; a = 0
            for x in B.I: self.cum.append(a); a += x["c"]
            self.tot = a
        def i(self, kind, k=None): return next(i for i, x in enumerate(self.I) if x.get("mark") == kind and x.get("k") == k)
        def c(self, kind, k=None): return self.cum[self.i(kind, k)]
        def at(self, t, lo):
            p = max(lo, next((i for i in range(len(self.I)) if self.cum[i] >= t), len(self.I) - 1))
            while not self.I[p]["ins"]: p += 1
            return p

    def deq(S, r, s, c): S(f"v_fma_mix_f32 v{r}, v{r}, v{s}, v{c} op_sel_hi:[1,0,0]")
    def kitems(B, n):
        for k in range(0, n, 2):
            r = vRing + 4 * k; t = vKP + 4 * ((k // 2) % 2)
            B.mark("wait", k + 1)
            for u in range(2):
                for j in range(4): deq(B, r + 4 * u + j, vKS + j, vKC + j)
            for u in range(4): B(f"v_cvt_pk_bf16_f32 v{t+u}, v{r+2*u}, v{r+2*u+1}")
            B.mark("free", k); B.mark("free", k + 1)
            B(f"ds_write2_b64 v{vKW + k//4}, {vr(t,2)}, {vr(t+2,2)} offset0:{(k%4)*KROW//8} offset1:{(k%4+1)*KROW//8}")
        B.mark("kdone")
    def mfma_loop(B, reads, mfmas, fill, start=0, ids=None, after=None):
        n = len(mfmas)
        if ids is None:
            ids = {}
            for i in range(PF): ids[i] = B(reads[i])
            for t in fill.get(-1, []): B(t)
        for i in range(start, n):
            if i % 2 == 0 or i == start: B.waitds(ids[min(n - 1, i | 1)])
            B(mfmas[i])
            if i + PF < n: ids[i + PF] = B(reads[i + PF])
            for t in fill.get(i, []): B(t)
            if after and i in after: after[i](dict(ids))
    def qk_lists(nblk):
        order = [(2 * bp + u, s4) for bp in range(nblk // 2) for s4 in range(4) for u in range(2)]
        rd = [f"ds_read_b128 {vr(vSt+4*(i%NST),4)}, v{vKR} offset:{LDS_K + b*16*KROW + s4*64}" for i, (b, s4) in enumerate(order)]
        mf = [f"v_mfma_f32_16x16x32_bf16 {vr(vS+4*b,4)}, {vr(vSt+4*(i%NST),4)}, {vr(vQ+4*s4,4)}, {vr(vNM,4) if s4 == 0 else vr(vS+4*b,4)}" for i, (b, s4) in enumerate(order)]
        return rd, mf
    def max_ops(bp):
        b = vS + 8 * bp
        if bp == 0: return [f"v_max3_f32 v{vMx}, v{b}, v{b+1}, v{b+2}", f"v_max3_f32 v{vMx}, v{vMx}, v{b+3}, v{b+4}", f"v_max3_f32 v{vMx}, v{vMx}, v{b+5}, v{b+6}", f"v_max_f32 v{vMx}, v{vMx}, v{b+7}"]
        return [f"v_max3_f32 v{vMx}, v{vMx}, v{b+2*u}, v{b+2*u+1}" for u in range(4)]
    def qk_fill(nblk):
        f = {}
        for bp in range(nblk // 2 - 1):
            last = bp + 2 == nblk // 2
            slots = (4, 5, 6, 7) if last else (3, 5, 7, 7)
            for s_, t in zip(slots, max_ops(bp)): f.setdefault(8 * (bp + 1) + s_, []).append(t)
        return f
    def check_max(B, nblk, tag, pre):
        for t in pre: B(t)
        if len(pre) < 6: B(f"s_nop {5 - len(pre)}")
        for t in max_ops(nblk // 2 - 1): B(t)
        B(f"v_cmp_lt_f32 vcc, s{sThr}, v{vMx}")
        B.lock = True
        B(f"s_cbranch_vccnz L_rescale{tag}")
        B.label(f"L_rescaled{tag}")
        B.lock = False
    exp_op = lambda i: f"v_exp_f32 v{vS+i}, v{vS+i}"
    sum_cvt = lambda i: [f"v_pk_add_f32 {vr(vL,2)}, {vr(vL,2)}, {vr(vS+2*i,2)}", f"v_cvt_pk_bf16_f32 v{vS+i}, v{vS+2*i}, v{vS+2*i+1}"]
    def vphase(B, k0, s, refill_hi):
        rg = lambda n8: vRing + 4 * (k0 + n8)
        for n8 in (0, 2):
            B.mark("wait", k0 + n8 + 1)
            for u in range(2):
                for j in range(4): deq(B, rg(n8 + u) + j, vSc + 2 * (n8 + u), vSc + 2 * (n8 + u) + 1)
            if refill_hi: B(f"ds_read_b128 {vr(vSc+4*(n8//2),4)}, v{vSR} offset:{64 + (n8//2)*16}")
            for j in range(4): B(f"v_cvt_pk_bf16_f32 v{vVP+4*j+n8//2}, v{rg(n8)+j}, v{rg(n8+1)+j}")
            B.mark("free", k0 + n8); B.mark("free", k0 + n8 + 1)
        B.mark("wait", k0 + 7)
        for j in range(4):
            for n8 in range(4, 8): deq(B, rg(n8) + j, vSc + 2 * n8, vSc + 2 * n8 + 1)
            for n8 in (4, 6): B(f"v_cvt_pk_bf16_f32 v{vVP+4*j+n8//2}, v{rg(n8)+j}, v{rg(n8+1)+j}")
            if j == 3:
                for n8 in range(4, 8): B.mark("free", k0 + n8)
            B(f"ds_write_b128 v{vVW}, {vr(vVP+4*j,4)} offset:{s*8*OS + j*JS}")
        if refill_hi:
            for u in (2, 3): B(f"ds_read_b128 {vr(vSc+4*u,4)}, v{vSR} offset:{64 + u*16}")
    def pv_lists(s):
        lst = [(2 * s + kk, db) for kk in range(2) for db in range(8)]
        rd = [f"ds_read_b128 {vr(vSt+4*(i%NST),4)}, v{vVR} offset:{ks*4*OS + (db//2)*128 + (db%2)*16}" for i, (ks, db) in enumerate(lst)]
        mf = [f"v_mfma_f32_16x16x32_bf16 {vr(vO+4*db,4)}, {vr(vSt+4*(i%NST),4)}, {vr(vS+4*ks,4)}, {vr(vO+4*db,4)}" for i, (ks, db) in enumerate(lst)]
        return rd, mf
    def ops_of(f):
        S = Stream(); f(S); return [x["t"].strip() for x in S.I if not x["t"].strip().startswith(";")]
    def spread(ops, first, per=1):
        f = {}
        for n, t in enumerate(ops): f.setdefault(first + n // per, []).append(t)
        return f
    def save_ops(i0):
        return [f"v_accvgpr_write_b32 a{17*i0+i}, v{vS+i}" for i in range(16)] + [f"v_accvgpr_write_b32 a{17*i0+16}, v{vNM}"]
    unit_items = [item_text(k) for k in range(16)]
    unit_seq = {k: k - 16 for k in range(16)}

    B = Stream()
    B.lock = True
    B.label("L_K")
    itstamp(B)
    B(f"s_add_u32 s{sI}, s{sI}, 1")
    B(f"s_cmp_lt_u32 s{sI}, {npf}"); B("s_cbranch_scc0 L_k2v")
    unit_offs(B, sI, sKsl); B(f"s_andn2_b32 s{sKsl}, s{sKsl}, 255")
    B(f"s_cmp_le_u32 s{sI}, s{sHk}"); B("s_cbranch_scc1 L_hookK")
    B.label("L_k1")
    B("s_waitcnt lgkmcnt(0)")
    B.lock = False
    B.mark("ready")
    prep_k(B)
    kitems(B, 16)
    B.c("park the previous tile's P while the K rows settle in LDS")
    B("s_branch L_save", 150)
    B.lock = True
    B.label("L_saved")
    B.lock = False
    B("s_waitcnt lgkmcnt(0)"); B("s_barrier", 20)
    B.c("S^T - m = K Q^T - m (log2 units)")
    rd, mf = qk_lists(8)
    mfma_loop(B, rd, mf, qk_fill(8))
    B("s_barrier", 10)
    check_max(B, 8, "K", ops_of(ktab_reads))
    for half in range(2):
        for i in range(16): B(exp_op(16 * half + i))
        for i in range(8):
            for t in sum_cvt(8 * half + i): B(t)
    B.mark("allissued")
    B.lock = True
    B(f"s_cmp_lt_u32 s{sI}, {npf}"); B("s_cbranch_scc1 L_K")
    sc_lo_reads(B)
    B.c("the last tile's P waits in the Q registers; l is final: sum it over the four lane groups")
    for i in range(16): B(f"v_mov_b32 v{vQ+i}, v{vS+i}")
    B(f"v_add_f32 v{vHd+1}, v{vL}, v{vL+1}")
    for sw in ("v_permlane32_swap_b32", "v_permlane16_swap_b32"):
        B(f"v_mov_b32 v{vTmp+1}, v{vHd+1}"); B("s_nop 1"); B(f"{sw} v{vTmp+1}, v{vHd+1}"); B("s_nop 1"); B(f"v_add_f32 v{vHd+1}, v{vHd+1}, v{vTmp+1}")
    B.lock = False
    P = Pos(B); c0 = P.c("free", 0); c1 = P.c("kdone"); c2 = P.c("allissued")
    tg = [c0 + (c1 - c0) * k / (nK1 - 1) for k in range(nK1)] + [c1 + (c2 - c1) * (k + 1) / (16 - nK1) - 8 for k in range(16 - nK1)]
    pl = []
    for k in range(16): pl.append(P.at(tg[k], max(pl[-1] if pl else 0, P.i("free", k) + 1))); assert pl[-1] <= P.i("allissued")
    kbody, _ = emit(B, unit_items, pl, unit_seq, ENTRY - 16, cap, "K")
    print("  K issue", [P.cum[p] for p in pl], file=sys.stderr)

    sig = sorted(m + 1 for m in ms) + [jo]
    assert jr <= sig[0] and jr < 14
    assert sig == sorted(set(sig))
    events = sorted(set(sig) | set(x + 1 for x in sig) | {jr, 16})
    D_ = Stream()
    D_.label("L_V")
    itstamp(D_)
    D_(f"s_add_u32 s{sJ}, s{sJ}, 1")
    D_(f"s_bitcmp1_b32 {hex(sum(1 << e for e in events))}, s{sJ}")
    D_("s_waitcnt lgkmcnt(0)")
    D_("s_cbranch_scc1 L_ctl")
    D_.label("L_v0")
    unit_offs(D_, sJ, sVsl)
    D_(f"s_cmp_lg_u32 s{sMode}, 0"); D_("s_cbranch_scc1 L_vdisp")
    def make_V(tag, caps):
        B = Stream()
        B.label(f"L_V{tag}_")
        B.mark("ready")
        vphase(B, 0, 0, True)
        vtab_reads(B)
        B.c("fetch this tile's P back while the V rows settle in LDS")
        B("s_branch L_restore", 150)
        B.lock = True
        if tag == "":
            B.label("L_restored")
            B(f"s_cmp_lg_u32 s{sMode}, 0"); B("s_cbranch_scc1 L_rdisp")
        B.label(f"L_rest{tag}_")
        B.lock = False
        B("s_waitcnt lgkmcnt(0)"); B("s_barrier", 20)
        rd, mf = pv_lists(0)
        pvv = ops_of(prep_v)
        mfma_loop(B, rd, mf, {-1: pvv[:4], 9: pvv[4:]})
        vphase(B, 8, 1, False)
        B(f"s_cmp_lg_u32 s{sAt}, 0")
        B.lock = True
        B(f"s_cbranch_scc0 L_nopost{tag}")
        B.mark("postwait")
        B(f"ds_write_b32 v{vL4}, v{vAt} offset:{LDS_MB}")
        B.label(f"L_nopost{tag}")
        B.lock = False
        B("s_waitcnt lgkmcnt(0)"); B("s_barrier")
        rd, mf = pv_lists(1)
        mfma_loop(B, rd, mf, spread(ops_of(sc_lo_reads) + [f"ds_read_b32 v{vTmp}, v{vMb}"], 8))
        B.mark("allissued")
        B.lock = True
        B("s_branch L_V")
        B.lock = False
        P = Pos(B); c0 = P.c("free", 0); c1 = c0 + (P.c("allissued") - c0) * vtail
        pl = []
        for k in range(16): pl.append(P.at(c0 + (c1 - c0) * k / 15 - 8, max(pl[-1] if pl else 0, P.i("free", k) + 1))); assert pl[-1] <= P.i("allissued")
        nb = sum(1 for p in pl if p <= P.i("postwait")); assert nb >= AL
        body, _ = emit(B, unit_items, pl, unit_seq, ENTRYV - 16, caps, "V" + tag, at=nb - AL)
        print("  V issue", [P.cum[p] for p in pl], "atomic before", nb - AL, file=sys.stderr)
        return [l.replace("L_noat", "L_noat" + tag) for l in body]
    vbody = D_.text() + make_V("", capV) + make_V("f", capF) + make_V("s", capS)
    hbody = []

    E = Stream()
    def stampE(i):
        if stamps and not (hst == 1 and i in (2, 3, 4)) and not (hst == 2 and i in (2, 3)): E(f"s_memrealtime s[{84+2*i}:{85+2*i}]")
    def lsum():
        stampE(1)
        if stamps: E("s_mov_b32 s99, 0")
    ml = lambda x: (vKP, vKP + 4, vKS)[x - 1]
    dat = lambda x: (vRing, vRing + 16, vQ)[x - 1]
    bb = vKSr; u0 = vVP; vPo = vKC; vPv = vKC + 1; sLd = sCnt; sNew = sMode
    pl_ = []
    for x in range(1, 4):
        pl_.append(f"buffer_load_dwordx4 {vr(ml(x),4)}, v{vLin}, {srd(sWS)}, s{sPo+2+x} offen {ldf}")
        pl_ += [f"buffer_load_dwordx4 {vr(dat(x)+4*q,4)}, v{vLin}, {srd(sWS)}, s{sPo+x-1} offen offset:{q*1024} {ldf}" for q in range(4)]
    poll = f"buffer_load_dword v{vPv}, v{vPo}, {srd(sWS)}, s{sG} offen {ldf}"
    if apoll: poll = f"v_mov_b32 v{vPv}, 0\n    buffer_atomic_or v{vPv}, v{vPo}, {srd(sWS)}, s{sG} offen sc0"
    def tail(tag):
        T_ = Stream()
        if hst == 1: T_("s_memrealtime s[88:89]")
        vphase(T_, 0, 0, True)
        T_(f"v_cmp_neq_f32 vcc, v{vNM}, v{vMO}")
        for i in range(16): T_(f"v_mov_b32 v{vS+i}, v{vQ+i}")
        T_.lock = True
        T_(f"s_cbranch_vccnz L_oldref{tag}")
        T_.label(f"L_newref{tag}")
        T_.lock = False
        if hst == 1: T_("s_memrealtime s[90:91]")
        T_("s_waitcnt lgkmcnt(0)"); T_("s_barrier", 20)
        rd, mf = pv_lists(0); mfma_loop(T_, rd, mf, {})
        T_.mark("pv0")
        vphase(T_, 8, 1, False)
        if hst == 1: T_("s_memrealtime s[92:93]")
        T_("s_waitcnt lgkmcnt(0)"); T_("s_barrier")
        rd, mf = pv_lists(1); mfma_loop(T_, rd, mf, {}, after={i: (lambda ids, i=i: T_.mark("pv1", i)) for i in range(16)})
        Pt = Pos(T_)
        if tag == "C":
            w = Pt.i("wait", 15) if chk < 0 else Pt.i("pv1", chk); c0 = Pt.cum[w]; ins = {}
            for n in range(15):
                p = Pt.at(c0 + 8 + (Pt.tot - c0) * ctspan * n / 15, w + 1)
                ins.setdefault(p, []).extend(([f"    s_bitcmp1_b32 s{sLd}, {n//5+1}"] if n % 5 == 0 else []) + [f"    s_cbranch_scc0 L_sk{n}", "    " + pl_[n], f"L_sk{n}:"])
            p2 = Pt.at(c0 + 8 + (Pt.tot - c0) * p2f, w + 1) if p2f >= 0 else -1
            I2 = []
            for i, x in enumerate(T_.I):
                for t in ins.get(i, []): I2.append(dict(t=t, c=0, ins=True))
                if i == p2: I2.append(dict(t="    " + poll, c=0, ins=True))
                I2.append(x)
                if i == w:
                    for t in ("s_waitcnt vmcnt(0)", f"v_cmp_ne_u32 vcc, -1, v{vPv}", f"s_and_b32 s{sLd}, vcc_lo, 14"): I2.append(dict(t="    " + t, c=0, ins=True))
            T_.I = I2; Pt = Pos(T_)
            pp = ([0] if pa else []) + [Pt.at(Pt.c("pv0") - pb, 1)]
            out, _ = emit(T_, [poll] * len(pp), pp, unit_seq, ENTRYV - 16, None, "tail")
        else:
            out, _ = emit(T_, [], [], unit_seq, ENTRYV - 16, None, "tail")
        for t in out: E.I.append(dict(t=t, c=0, ins=True))
    E.c("last unit; the count tells the finishing order within the pair")
    E.label("L_last")
    if not nolocal: E(f"s_lshr_b32 s{sMode}, s{sG}, s{sXc}"); E(f"s_and_b32 s{sMode}, s{sMode}, 7"); E(f"s_and_b32 s{sG}, s{sG}, 255")
    E(f"s_cmp_eq_u32 s{sG}, 3"); E("s_cbranch_scc1 L_ctail")
    if stamps: E("s_mov_b32 s100, 1")
    own_slot(E)
    E(f"v_min_u32 v{vHd}, -2, v{vNM}"); E(f"v_min_u32 v{vHd+1}, -2, v{vHd+1}")
    tail("E")
    lsum()
    E.c("not the last workgroup of this pair: hand the partial over; header = (-m, l, checksum), none equal to the empty mark")
    dots = lambda r: [f"v_dot2_u32_u16 v{vCk}, v{r+i}, s{sCw + (i + i//4) % 4}, {'0' if i == 0 else 'v%d' % vCk}" for i in range(16)]
    def publish(df, hf, wait):
        for q in range(4):
            for i in range(4 * q, 4 * q + 4): E(f"v_cvt_pk_bf16_f32 v{vSt+i}, v{vO+2*i}, v{vO+2*i+1}")
            E(f"buffer_store_dwordx4 {vr(vSt+4*q,4)}, v{vLin}, {srd(sWS)}, s{sT} offen offset:{q*1024} {df}")
        for t in dots(vSt): E(t)
        E("s_nop 2"); E(f"v_min_u32 v{vCk}, -2, v{vCk}")
        if wait: E("s_waitcnt vmcnt(0)")
        E(f"buffer_store_dwordx4 {vr(vHd,4)}, v{vLin}, {srd(sWS)}, s{sT2} offen {hf}")
        if stamps:
            for i in (2, 3, 4): stampE(i)
            E("s_branch L_done")
        else:
            E("s_endpgm")
    if not nolocal:
        E(f"s_cmp_eq_u32 s{sMode}, 4"); E("s_cbranch_scc0 L_pubfar")
        if wto:
            E(f"s_cmp_lt_u32 s{sG}, {wto}"); E("s_cbranch_scc1 L_pubearly")
        publish("", "", False)
        if wto:
            E.label("L_pubearly")
            publish("sc0 sc1", "", pw)
        E.label("L_pubfar")
    publish(pubf, pubf, False)
    E.c("fourth workgroup of the pair to get here: it merges")
    E.label("L_ctail")
    if stamps: E("s_mov_b32 s100, 2")
    E(f"s_lshl2_add_u32 s{sG}, s{sPair}, s{sWave}"); E(f"s_lshl_b32 s{sG}, s{sG}, 15"); E(f"s_add_u32 s{sG}, s{sG}, {WS_SLOT}")
    E(f"v_and_b32 v{vPo}, 3, v{vLane}"); E(f"v_xor_b32 v{vPo}, s{sSplit}, v{vPo}"); E(f"v_lshlrev_b32 v{vPo}, 13, v{vPo}"); E(f"v_add_u32 v{vPo}, 4096, v{vPo}")
    if apoll:
        E(f"v_add_u32 v{vPv}, -1, v{vLane}"); E(f"v_cmp_lt_u32 vcc, 2, v{vPv}"); E(f"v_mov_b32 v{vPv}, 0x40000000"); E("s_nop 0"); E(f"v_cndmask_b32 v{vPo}, v{vPo}, v{vPv}, vcc")
    for x in range(1, 4):
        E(f"s_xor_b32 s{sT}, s{sSplit}, {x}"); E(f"s_lshl_b32 s{sT}, s{sT}, 13")
        E(f"s_add_u32 s{sPo+x-1}, s{sG}, s{sT}"); E(f"s_add_u32 s{sPo+2+x}, s{sPo+x-1}, 4096")
    tail("C")
    lsum()
    E.c("fold in what has been fetched (if header and checksum hold), keep looking for the rest")
    E(f"s_mov_b32 s{sPend}, 14"); E(f"s_mov_b32 s{sThr}, {hex(f32bits(TM))}")
    if p2f >= 0: E(f"s_andn2_b32 s{sNew}, s{sPend}, s{sLd}"); E("s_cbranch_scc1 L_look1")
    E.label("L_round")
    E(f"s_andn2_b32 s{sNew}, s{sPend}, s{sLd}"); E("s_cbranch_scc1 L_look")
    E("s_waitcnt vmcnt(0)")
    E.label("L_looked")
    for x in range(1, 4):
        E(f"s_bitcmp1_b32 s{sLd}, {x}"); E(f"s_cbranch_scc0 L_fold{x}")
        E(f"v_sub_f32 v{bb}, v{vNM}, v{ml(x)}")
        for t in dots(dat(x)): E(t)
        E(f"v_max_u32 v{vTmp+1}, v{ml(x)}, v{ml(x)+1}"); E(f"v_cmp_eq_u32 s[4:5], -1, v{vTmp+1}")
        E(f"v_cmp_lt_f32 s[6:7], s{sThr}, v{bb}")
        E(f"v_min_u32 v{vCk}, -2, v{vCk}"); E(f"v_cmp_ne_u32 vcc, v{vCk}, v{ml(x)+2}")
        E("s_or_b64 vcc, vcc, s[4:5]"); E(f"s_cbranch_scc1 L_fold{x}")
        E(f"s_bitset0_b32 s{sPend}, {x}")
        E(f"s_cmp_lg_u64 s[6:7], 0"); E(f"s_cbranch_scc1 L_far{x}")
        E.label(f"L_near{x}")
        E(f"v_exp_f32 v{bb}, v{bb}")
        for q in range(2):
            r = dat(x) + 8 * q
            for i in range(8): E(f"v_lshlrev_b32 v{u0+2*i}, 16, v{r+i}")
            for i in range(8): E(f"v_and_b32 v{u0+2*i+1}, 0xffff0000, v{r+i}")
            for i in range(8):
                d = vO + 2 * (8 * q + i)
                E(f"v_pk_fma_f32 {vr(d,2)}, {vr(u0+2*i,2)}, {vr(bb,2)}, {vr(d,2)} op_sel_hi:[1,0,1]")
        E(f"v_fmac_f32 v{vHd+1}, v{ml(x)+1}, v{bb}")
        E.label(f"L_fold{x}")
    if stamps: E("s_add_u32 s99, s99, 1")
    E(f"s_mov_b32 s{sLd}, s{sNew}")
    E(f"s_cmp_lg_u32 s{sPend}, 0"); E("s_cbranch_scc1 L_again")
    E.label("L_merged")
    for i in (2, 3, 4): stampE(i)
    if diags:
        E("s_memrealtime s[86:87]")
        E(f"buffer_load_dwordx2 {vr(vT2,2)}, off, {srd(sDBG)}, 0 offset:128 sc0 sc1"); E("s_waitcnt vmcnt(0) lgkmcnt(0)")
        E(f"v_readfirstlane_b32 s88, v{vT2}"); E(f"v_readfirstlane_b32 s89, v{vT2+1}"); E("s_nop 3"); E("s_not_b32 s89, s89")
        E("s_sub_u32 s88, s88, s89"); E("s_sub_u32 s86, s86, s89")
        E(f"s_cmp_gt_u32 s{86 if diagm else 88}, {diags}"); E("s_cbranch_scc0 L_dx")
        E(f"v_cvt_f32_u32 v{vHd+1}, s{86 if diagm else 88}"); E(f"v_rcp_f32 v{vHd+1}, v{vHd+1}"); E("s_nop 1")
        for i in range(32): E(f"v_mov_b32 v{vO+i}, 1.0")
        E.label("L_dx")
    E(f"v_rcp_f32 v{bb}, v{vHd+1}")
    E(f"v_and_b32 v{vTmp}, 15, v{vLane}"); E(f"v_lshrrev_b32 v{vTmp+1}, 4, v{vLane}")
    E(f"v_lshlrev_b32 v{vTmp}, 8, v{vTmp}"); E(f"v_lshl_add_u32 v{vTmp}, v{vTmp+1}, 4, v{vTmp}")
    E(f"s_lshl_b32 s{sT}, s{sWave}, 12")
    for u in range(4):
        for i in range(4 * u, 4 * u + 4): E(f"v_pk_mul_f32 {vr(vO+2*i,2)}, {vr(vO+2*i,2)}, {vr(bb,2)} op_sel_hi:[1,0]")
        for i in range(4 * u, 4 * u + 4): E(f"v_cvt_pk_bf16_f32 v{vS+i}, v{vO+2*i}, v{vO+2*i+1}")
        E(f"buffer_store_dwordx4 {vr(vS+4*u,4)}, v{vTmp}, {srd(sOUT)}, s{sT} offen offset:{u*64} {outf}")
    if pollmax:
        E(f"s_sub_u32 s{sT}, {SPIN}, s{sSpin}"); E(f"s_cmp_gt_u32 s{sT}, 6"); E("s_cbranch_scc0 L_done")
        E("s_mov_b64 exec, 1"); E(f"v_mov_b32 v{vAt}, s{sT}"); E(f"s_mov_b32 s{sT2}, 0x23000000")
        E(f"buffer_atomic_umax v{vAt}, off, {srd(sWS)}, s{sT2}")
        E(f"v_mov_b32 v{vFl}, 1"); E(f"buffer_atomic_add v{vFl}, off, {srd(sWS)}, s{sT2} offset:4")
    E.label("L_done")
    if stamps:
        E("s_waitcnt vmcnt(0)")
        stampE(5)
        E(f"s_lshl2_add_u32 s{sT}, s{sPair}, s{sSplit}"); E(f"s_lshl2_add_u32 s{sT}, s{sT}, s{sWave}"); E(f"s_lshl_b32 s{sT2}, s{sT}, 4")
        E(f"s_lshl_b32 s4, s{sT}, 8"); E("s_add_u32 s4, s4, 0x22000000")
        E(f"s_add_u32 s{sT2}, s{sT2}, 0x20000000")
        E(f"s_lshl_b32 s{sT}, s{sT}, 6"); E(f"s_add_u32 s{sT}, s{sT}, 0x21000000")
        E("s_waitcnt lgkmcnt(0)")
        E(f"v_accvgpr_read_b32 v60, a255")
        for i in range(12): E(f"v_mov_b32 v{16+i}, s{84+i}")
        E(f"v_mov_b32 v28, s101"); E("s_getreg_b32 s5, hwreg(HW_REG_XCC_ID)"); E("v_mov_b32 v29, s5"); E(f"v_mov_b32 v30, s100"); E("v_mov_b32 v31, s99")
        E("v_mov_b32 v32, s84"); E("v_mov_b32 v33, s85"); E("v_mov_b32 v34, s94"); E("v_mov_b32 v35, s95")
        E(f"buffer_store_dword v60, v{vL4}, {srd(sWS)}, s4 offen sc0 sc1")
        E("s_mov_b64 exec, 1")
        E(f"buffer_store_dwordx4 v[32:35], off, {srd(sWS)}, s{sT2} sc0 sc1")
        for i in range(4): E(f"buffer_store_dwordx4 v[{16+4*i}:{19+4*i}], off, {srd(sWS)}, s{sT} offset:{16*i} sc0 sc1")
    E.label("L_end")
    E("s_endpgm")

    E.label("L_again")
    E(f"s_sub_u32 s{sSpin}, s{sSpin}, 1"); E("s_cbranch_scc0 L_round"); E("s_branch L_merged")
    E.label("L_look")
    E(poll)
    E.label("L_look1")
    E("s_waitcnt vmcnt(0)")
    E(f"v_cmp_ne_u32 vcc, -1, v{vPv}"); E(f"s_and_b32 s{sNew}, s{sNew}, vcc_lo"); E("s_cbranch_scc0 L_looked")
    for x in range(1, 4):
        E(f"s_bitcmp1_b32 s{sNew}, {x}"); E(f"s_cbranch_scc0 L_get{x}")
        for t in pl_[5*(x-1):5*x]: E(t)
        E.label(f"L_get{x}")
    E("s_branch L_looked")
    def scale_O(r):
        for i in range(16): E(f"v_pk_mul_f32 {vr(vO+2*i,2)}, {vr(vO+2*i,2)}, {vr(r,2)} op_sel_hi:[1,0]")
    for x in range(1, 4):
        E.label(f"L_far{x}")
        E.c("that partial's reference max is far above ours: move ours up first")
        E(f"v_max_f32 v{vMx}, 0, v{bb}"); E(f"v_sub_f32 v{vNM}, v{vNM}, v{vMx}"); E(f"v_sub_f32 v{bb}, v{bb}, v{vMx}")
        E(f"v_exp_f32 v{vTmp}, -v{vMx}"); E("s_nop 0"); E(f"v_mul_f32 v{vHd+1}, v{vHd+1}, v{vTmp}")
        scale_O(vTmp)
        E(f"s_branch L_near{x}")

    E.label("L_k2v")
    unit_offs(E, None, None); set_base(E, sVb)
    E(f"s_cmp_lg_u32 s{sW0}, 0"); E("s_cbranch_scc0 L_k1")
    if diags:
        E("s_mov_b64 exec, 1"); E(f"v_mov_b32 v{vTmp}, s84"); E(f"v_not_b32 v{vTmp+1}, v{vTmp}")
        E(f"buffer_atomic_umax v{vTmp}, off, {srd(sDBG)}, 0 offset:128"); E(f"buffer_atomic_umax v{vTmp+1}, off, {srd(sDBG)}, 0 offset:132"); E("s_mov_b64 exec, -1")
    E(f"buffer_load_dword v{vFl}, off, {srd(sDBG)}, 0 offset:4 {flagf}")
    E("s_branch L_k1")

    E.label("L_vdisp")
    E(f"s_sub_u32 s{sCnt}, s{sCnt}, 1"); E(f"s_cselect_b32 s{sMode}, 0, s{sMode}"); E("s_cbranch_scc1 L_V_")
    E(f"s_cmp_eq_u32 s{sMode}, 1"); E("s_cbranch_scc1 L_Vf_"); E("s_branch L_Vs_")
    E.label("L_rdisp")
    E(f"s_cmp_eq_u32 s{sMode}, 1"); E("s_cbranch_scc1 L_restf_"); E("s_branch L_rests_")
    E.c("progress counts: read the last one, arm the next one")
    E.label("L_ctl")
    E(f"v_readfirstlane_b32 s{sG}, v{vTmp}"); E(f"s_mov_b32 s{sAt}, 0")
    E(f"s_cmp_eq_u32 s{sJ}, 16"); E("s_nop 1"); E("s_cbranch_scc1 L_last")
    if jo < 15:
        E.c("order within the pair: let the workgroups that will hand over finish ahead of the one that merges")
        E(f"s_cmp_eq_u32 s{sJ}, {jo+1}"); E("s_cbranch_scc0 L_noto")
        for o, ch in enumerate(om):
            if ch != "-":
                E(f"s_cmp_eq_u32 s{sG}, {o}"); E(f"s_cselect_b32 s{sMode}, {dict(n=0, f=1, s=2)[ch]}, s{sMode}"); E(f"s_cselect_b32 s{sCnt}, 7, s{sCnt}")
        E("s_branch L_v0")
        E.label("L_noto")
    E(f"s_bitcmp1_b32 {hex(sum(1 << (x + 1) for x in sig))}, s{sJ}"); E("s_cbranch_scc0 L_arm")
    if stamps: E("s_lshl_b32 s101, s101, 8"); E(f"s_or_b32 s101, s101, s{sG}")
    E.c("rank among the workgroups of this count -> how many units to run with more (late) or fewer (early) loads in flight")
    def enc(tb):
        assert len(tb) == 16
        v = sum(((8 | -d) if d < 0 else d) << (4 * i) for i, d in enumerate(tb)); return v & 0xffffffff, v >> 32
    for n in range(len(sig) - 1):
        lo, hi = enc(tabs[n])
        if n == 0: E(f"s_mov_b32 s4, {hex(lo)}"); E(f"s_mov_b32 s5, {hex(hi)}")
        else: E(f"s_cmp_eq_u32 s{sJ}, {sig[n]+1}"); E(f"s_cselect_b32 s4, {hex(lo)}, s4"); E(f"s_cselect_b32 s5, {hex(hi)}, s5")
    if len(sig) > 1:
        sh = int(math.log2(256 // shards)) - 4
        E(f"s_lshr_b32 s{sT}, s{sG}, {sh}"); E(f"s_min_u32 s{sT}, s{sT}, 15"); E(f"s_lshl_b32 s{sT}, s{sT}, 2"); E(f"s_lshr_b64 s[4:5], s[4:5], s{sT}")
        E(f"s_and_b32 s{sCnt}, s4, 7"); E("s_bitcmp1_b32 s4, 3"); E(f"s_cselect_b32 s{sMode}, 2, 1")
    E.label("L_arm")
    E(f"s_bitcmp1_b32 {hex(sum(1 << x for x in sig))}, s{sJ}"); E(f"s_cselect_b32 s{sAt}, s{sW0}, 0")
    E(f"s_mul_i32 s{sT}, s{sJ}, {shards}"); E(f"s_add_u32 s{sT}, s{sT}, s{sShard}"); E(f"s_and_b32 s{sT}, s{sT}, 63")
    E(f"s_lshl_b32 s{sT}, s{sT}, {cstride}"); E(f"s_add_u32 s{sT}, s{sT}, 4"); E(f"s_lshl_b32 s{sT2}, s{sPair}, {cstride}")
    E(f"s_cmp_eq_u32 s{sJ}, {jo}"); E(f"s_cselect_b32 s{sT}, s{sT2}, s{sT}"); E(f"s_add_u32 s{sCoff}, s{sT}, {WS_CTR}")
    assert len(set((x * shards + h) % 64 for x in sig[:-1] for h in range(shards))) == shards * (len(sig) - 1)
    E.c("before the first count: wave 0 checks that the counters are live")
    E(f"s_cmp_eq_u32 s{sJ}, {jr}"); E(f"s_cselect_b32 s{sT}, s{sW0}, 0"); E(f"s_cmp_lg_u32 s{sT}, 0"); E("s_cbranch_scc0 L_v0")
    def zero_counters():
        E(f"v_lshlrev_b32 v{vTmp}, {cstride}, v{vLane}"); E(f"v_mov_b32 v{vCk}, 0"); E(f"v_mov_b32 v{vFl}, 0"); E(f"s_mov_b32 s{sT}, {WS_CTR}")
        E(f"buffer_atomic_swap_x2 {vr(vCk,2)}, v{vTmp}, {srd(sWS)}, s{sT} offen sc0")
    E(f"v_readfirstlane_b32 s{sT}, v{vFl}"); E("s_mov_b64 exec, 1"); E("s_nop 2")
    E(f"s_cmp_lg_u32 s{sT}, 0"); E("s_cbranch_scc1 L_live")
    E.c("not seen live yet: claim the job if it is free, otherwise wait for the (running) workgroup that holds it")
    E(f"v_mov_b32 v{vFl}, 1")
    E(f"buffer_atomic_add v{vFl}, off, {srd(sDBG)}, 0 sc0")
    E("s_waitcnt vmcnt(0)"); E(f"v_readfirstlane_b32 s{sT}, v{vFl}"); E("s_nop 3")
    E(f"s_cmp_eq_u32 s{sT}, 0"); E("s_cbranch_scc0 L_flag")
    E("s_mov_b64 exec, -1"); zero_counters(); E("s_mov_b64 exec, 1")
    E("s_waitcnt vmcnt(0)"); E(f"v_mov_b32 v{vFl}, 1")
    E(f"buffer_atomic_or v{vFl}, off, {srd(sDBG)}, 0 offset:4")
    E("s_branch L_live")
    E.label("L_flag")
    E(f"v_mov_b32 v{vFl}, 0")
    E(f"buffer_atomic_or v{vFl}, off, {srd(sDBG)}, 0 offset:4 sc0")
    E("s_waitcnt vmcnt(0)"); E(f"v_readfirstlane_b32 s{sT}, v{vFl}"); E(f"s_sub_u32 s{sSpin}, s{sSpin}, 1"); E("s_cbranch_scc1 L_live"); E("s_nop 2")
    E(f"s_cmp_lg_u32 s{sT}, 0"); E("s_cbranch_scc0 L_flag")
    E.label("L_live")
    if not nolocal:
        E.c("note this workgroup's XCD in the pair's word")
        E(f"s_lshl_b32 s{sT}, 1, s{sXc}"); E(f"v_mov_b32 v{vFl}, s{sT}"); E(f"s_lshl_b32 s{sT}, s{sPair}, {cstride}"); E(f"s_add_u32 s{sT}, s{sT}, {WS_CTR}")
        E(f"buffer_atomic_add v{vFl}, off, {srd(sWS)}, s{sT}")
    E("s_mov_b64 exec, -1")
    E("s_branch L_v0")

    def tree(lo, hi, reg, pre, leaf):
        if lo == hi: leaf(lo); return
        mid = (lo + hi + 1) // 2
        E(f"s_cmp_ge_u32 s{reg}, {mid}"); E(f"s_cbranch_scc1 {pre}{mid}_{hi}")
        tree(lo, mid - 1, reg, pre, leaf)
        E.label(f"{pre}{mid}_{hi}")
        tree(mid, hi, reg, pre, leaf)
    E.label("L_restore")
    def rleaf(j1):
        b = 17 * (j1 - 1)
        E(f"v_accvgpr_read_b32 v{vMx}, a{b+16}")
        for i in range(16): E(f"v_accvgpr_read_b32 v{vS+i}, a{b+i}")
        E(f"v_cmp_neq_f32 vcc, v{vMx}, v{vMO}"); E("s_cbranch_vccz L_restored"); E("s_branch L_oldref")
    tree(1, npf - 1, sJ, "L_r", rleaf)
    E.c("this tile's P used a newer reference max than O holds: bring O up to it")
    E.label("L_oldref")
    E(f"v_sub_f32 v{vTmp}, v{vMx}, v{vMO}"); E(f"v_exp_f32 v{vTmp}, v{vTmp}"); E(f"v_mov_b32 v{vMO}, v{vMx}")
    scale_O(vTmp)
    E("s_branch L_restored")
    for tag in "EC":
        E.label(f"L_oldref{tag}")
        E(f"v_sub_f32 v{vTmp}, v{vNM}, v{vMO}"); E(f"v_exp_f32 v{vTmp}, v{vTmp}"); E("s_nop 0")
        scale_O(vTmp)
        E(f"s_branch L_newref{tag}")
    E.label("L_save")
    def sleaf(i1):
        if i1 >= 2:
            for t in save_ops(i1 - 2): E(t)
        E("s_branch L_saved")
    tree(1, npf, sI, "L_s", sleaf)

    E.c("rare path: the running max rose past the threshold -> move the reference to the true running max")
    for tag, n in (("K", 32),):
        E.label(f"L_rescale{tag}")
        for sw in ("v_permlane32_swap_b32", "v_permlane16_swap_b32"):
            E(f"v_mov_b32 v{vTmp}, v{vMx}"); E("s_nop 1"); E(f"{sw} v{vTmp}, v{vMx}"); E("s_nop 1"); E(f"v_max_f32 v{vMx}, v{vMx}, v{vTmp}")
        E(f"v_max_f32 v{vTmp}, 0, v{vMx}"); E(f"v_max_f32 v{vT2}, s{sFlo}, v{vMx}")
        E(f"v_exp_f32 v{vTmp}, -v{vTmp}")
        E(f"s_mov_b32 s{sThr}, {hex(f32bits(T))}"); E(f"s_mov_b32 s{sFlo}, 0")
        for r in [vNM, vNM + 2] + [vS + i for i in range(0, n, 2)]:
            E(f"v_pk_add_f32 {vr(r,2)}, {vr(r,2)}, {vr(vT2,2)} op_sel_hi:[1,0] neg_lo:[0,1] neg_hi:[0,1]")
        E(f"v_pk_mul_f32 {vr(vL,2)}, {vr(vL,2)}, {vr(vTmp,2)} op_sel_hi:[1,0]")
        if tag != "K": scale_O(vTmp)
        E(f"s_branch L_rescaled{tag}")

    E.c("workgroup 0, wave 0: zero the 64 ticket counters in d_ws, then raise the flag in d_debug")
    E.label("L_hookK")
    E(f"s_cmp_eq_u32 s{sI}, 1"); E("s_cbranch_scc1 L_hk1")
    E(f"s_cmp_eq_u32 s{sI}, 3"); E("s_cbranch_scc0 L_k1")
    E("s_mov_b64 exec, 1"); E(f"v_mov_b32 v{vFl}, 1")
    E(f"buffer_atomic_or v{vFl}, off, {srd(sDBG)}, 0 offset:4")
    E("s_mov_b64 exec, -1"); E("s_branch L_k1")
    E.label("L_hk1")
    E(f"v_readfirstlane_b32 s{sT}, v{vFl}"); E("s_nop 3")
    E(f"s_cmp_eq_u32 s{sT}, 0"); E(f"s_cselect_b32 s{sHk}, 3, 0"); E("s_cbranch_scc0 L_k1")
    zero_counters()
    E("s_branch L_k1")

    code = pro.text() + kbody + vbody + hbody + [x["t"] for x in E.I if "mark" not in x] + ["L_codeend:"]
    code = "\n".join(code).split("\n")
    if nocomp:
        kill = ("v_fma_mix", "v_cvt_pk", "v_mfma", "v_exp", "v_pk_", "v_max3", "ds_write2", "ds_write_b128", "ds_read_b128", "v_accvgpr_write_b32 a1", "v_accvgpr_read_b32 v9", "v_accvgpr_read_b32 v10", "s_cbranch_vccnz L_resc")
        a0 = code.index("L_K:"); a1 = code.index("L_round:"); c2 = []
        for i, l in enumerate(code):
            if a0 < i < a1:
                if l.strip().startswith(kill): continue
                if "lgkmcnt" in l:
                    l = "    s_waitcnt lgkmcnt(0)"
                    if c2[-1] == l: continue
            c2.append(l)
        code = c2
    if abl:
        a0 = code.index("L_last:"); a1 = code.index("L_merged:"); c2 = []
        for i, l in enumerate(code):
            if a0 < i < a1:
                if abl & 1 and "buffer_store" in l: continue
                if abl & 2 and "buffer_load" in l: continue
                if "s_cbranch_scc1 L_miss" in l: continue
                if abl & 2 and "vmcnt" in l: l = "    s_waitcnt vmcnt(0)"
            c2.append(l)
        code = c2
    if align: code = align_pass(code)
    if not nocomp and not abl: hazard_check(code)
    L = [HDR.rstrip(), f"; @launch grid=(256,1,1) block=(256,1,1) lds={LDS_TOTAL}", '.amdgcn_target "amdgcn-amd-amdhsa--gfx950"',
         ".text", f".globl {NAME}_kernel", ".p2align 8", f".type {NAME}_kernel,@function", f"{NAME}_kernel:"]
    L += code
    L += ['.section .rodata,"a"', ".p2align 6", f".amdhsa_kernel {NAME}_kernel",
          "  .amdhsa_next_free_vgpr 512", "  .amdhsa_next_free_sgpr 102", "  .amdhsa_accum_offset 256",
          "  .amdhsa_group_segment_fixed_size 0", "  .amdhsa_kernarg_size 80", "  .amdhsa_user_sgpr_count 2",
          "  .amdhsa_user_sgpr_kernarg_segment_ptr 1", "  .amdhsa_system_sgpr_workgroup_id_x 1",
          "  .amdhsa_float_denorm_mode_32 3", "  .amdhsa_float_denorm_mode_16_64 3", ".end_amdhsa_kernel"]
    open(path, "w").write("\n".join(L) + "\n")

if __name__ == "__main__":
    import argparse
    ap = argparse.ArgumentParser()
    ap.add_argument("out")
    for n, t, d in (("AL", int, 7), ("np", int, 14), ("cs", int, 8), ("nK1", int, 7), ("vtail", float, 1.0), ("T", float, 8.0), ("TM", float, 32.0),
                    ("pfcode", int, 4), ("ct", float, 0.9), ("ct0", float, 0.3), ("hv", int, 4), ("hk", float, 0.9), ("hp", int, 4), ("hq", float, 0.9), ("npre", int, 6), ("hst", int, 0), ("nocomp", int, 0), ("abl", int, 0), ("capC", str, None), ("uth", int, 4), ("grp", int, 0), ("flagf", str, ""), ("capF", str, "7"), ("capS", str, "45"), ("tabs", str, "dcbbaa0001112234,cbbaaa0000112223"), ("ms", str, "6,11"), ("shards", int, 4), ("shb", int, 3), ("ldf", str, "sc0 sc1"), ("wb", int, 0), ("wto", int, 0), ("nolocal", int, 1), ("pb", int, 100), ("jr", int, 3), ("pa", int, 0), ("pw", int, 1), ("noearly", int, 0), ("diags", int, 0), ("diagm", int, 0), ("p2f", float, -1), ("jo", int, 14), ("chk", int, 0), ("apoll", int, 0), ("om", str, "kkkk"), ("cols", str, "1000,800,4000,2000,100,240,4b0,8044"),
                    ("nt", str, "nt"), ("q", str, ""), ("smf", str, "nt"), ("outf", str, "sc0 sc1"), ("pubf", str, "sc0 sc1"),
                    ("cap", str, "5"), ("capV", str, "5"), ("capH", str, None), ("capP", str, "8")):
        ap.add_argument("--" + n, type=t, default=d)
    ap.add_argument("--mix", type=lambda x: int(x, 0), default=0)
    for n in ("stamps", "it", "dry", "noalign", "pollmax"): ap.add_argument("--" + n, action="store_true")
    a = ap.parse_args()
    gen(a.out, AL=a.AL, npf=a.np, stamps=a.stamps, nt=a.nt, smf=a.smf, qflag=a.q, cstride=a.cs, T=a.T, TM=a.TM, mix=a.mix, nK1=a.nK1, vtail=a.vtail,
        itst=a.it, outf=a.outf, pubf=a.pubf, cap=a.cap, capV=a.capV, capH=a.capH, capP=a.capP, pfcode=a.pfcode, ctspan=a.ct, ct0=a.ct0,
        hv=a.hv, hk=a.hk, hp=a.hp, hq=a.hq, npre=a.npre, dry=a.dry, hst=a.hst, align=not a.noalign, nocomp=a.nocomp, abl=a.abl, capC=a.capC, uth=a.uth, pollmax=a.pollmax, grp=a.grp, flagf=a.flagf, capF=a.capF, capS=a.capS, tabs=[[(int(c) if c.isdigit() else -(ord(c) - 96)) for c in t] for t in a.tabs.split(',')], ms=tuple(int(x) for x in a.ms.split(',') if x), shards=a.shards, shb=a.shb, ldf=a.ldf, wb=a.wb, wto=a.wto, nolocal=a.nolocal, pb=a.pb, jr=a.jr, pa=a.pa, pw=a.pw, noearly=a.noearly, diags=a.diags, diagm=a.diagm, p2f=a.p2f, jo=a.jo, chk=a.chk, apoll=a.apoll, om=a.om.replace('k', '-'), cols=[int(x, 16) << 12 for x in a.cols.split(',')])
```

```python
import sys, struct, math, re
NAME = "standalone__kv_cache_quant_int4_int2_kv_with_per_channel_or_per_token_scales__sampling"
HDR = open("cdna_kernels/" + NAME + ".s.ref").read().split("; Override launch")[0]

def f32bits(x):
    return struct.unpack("<I", struct.pack("<f", x))[0]

def cost_of(s):
    op = s.split()[0]
    if op.startswith("v_mfma"): return 8
    if op in ("v_exp_f32", "v_rcp_f32"): return 8
    if op in ("ds_write_b128", "ds_write2_b64"): return 28
    if op.startswith("ds_write"): return 20
    if op == "s_barrier": return 70
    if op == "s_nop": return 4 * (int(s.split()[1]) + 1)
    return 4

class Stream:
    def __init__(self): self.I = []; self.lock = False; self.nds = 0
    def __call__(self, s, cost=None):
        self.I.append(dict(t="    " + s, c=(cost_of(s) if cost is None else cost), ins=not self.lock))
        if s.startswith("ds_"): self.nds += 1
        return self.nds
    def waitds(self, i):
        n = self.nds - i; assert 0 <= n <= 15
        self(f"s_waitcnt lgkmcnt({n})")
    def label(self, s): self.I.append(dict(t=s + ":", c=0, ins=not self.lock))
    def c(self, s): self.I.append(dict(t="    ; " + s, c=0, ins=not self.lock))
    def mark(self, kind, k=None): self.I.append(dict(mark=kind, k=k, c=0, ins=not self.lock))
    def text(self): return [x["t"] for x in self.I]

INLINE = re.compile(r"^-?(\d+|0x[0-9a-f]+)$")
def has_literal(ops):
    for o in ops:
        if INLINE.match(o):
            v = int(o, 0)
            if not -16 <= v <= 64 and (v & 0x7fffffff) not in (0x3f000000, 0x3f800000, 0x40000000, 0x40800000): return True
        elif re.match(r"^L_\w+-L_\w+$", o): return True
    return False
VOP12 = ("v_mov_b32", "v_exp_f32", "v_rcp_f32", "v_add_f32", "v_sub_f32", "v_mul_f32", "v_max_f32", "v_lshlrev_b32", "v_lshrrev_b32", "v_and_b32",
         "v_xor_b32", "v_add_u32", "v_mul_u32_u24", "v_min_u32", "v_max_u32", "v_fmac_f32", "v_cvt_f32_u32", "v_not_b32")
def isize(line):
    s = line.split(";")[0].strip()
    if not s or s.endswith(":") or s.startswith("."): return 0, None
    op, _, rest = s.partition(" ")
    ops = [o.strip() for o in rest.split(",")] if rest else []
    if op.startswith(("s_load", "s_memrealtime", "ds_", "buffer_")): return 8, None
    if op.startswith("s_"):
        if op in ("s_waitcnt", "s_nop", "s_barrier", "s_endpgm", "s_branch", "s_getreg_b32") or op.startswith("s_cbranch"): return 4, None
        return (8 if has_literal(ops) else 4), None
    if op in ("v_cndmask_b32", "v_readfirstlane_b32", "v_permlane32_swap_b32", "v_permlane16_swap_b32"): return 4, None
    if op.startswith("v_cmp"):
        return (4 + 4 * has_literal(ops[1:]) if ops[0] == "vcc" else 8), None
    if op in VOP12:
        if any(o.startswith("-v") for o in ops): return 8, "valu"
        if has_literal(ops[1:]): return 8, "valu"
        return 4, "grow"
    if op.startswith("v_mfma"): return 8, None
    return 8, "valu"
def align_pass(L):
    out = []; par = 0; last = None
    for i, line in enumerate(L):
        sz, kind = isize(line)
        if sz == 8 and par and last is not None:
            j = last; op = out[j].split()[0]
            out[j] = out[j].replace(op, op + "_e64", 1); par = 0
        elif sz == 8 and par:
            n = 0
            for l2 in L[i:]:
                s2, k2 = isize(l2)
                if s2 == 4: break
                n += k2 == "valu"
            if n >= 7: out.append("    s_nop 0"); par = 0
        if sz == 8: last = None
        if sz == 4:
            par ^= 1
            if kind == "grow": last = len(out)
        out.append(line)
    return out

def regs_of(tok):
    m = re.match(r"^-?v\[(\d+):(\d+)\]$", tok)
    if m: return set(range(int(m.group(1)), int(m.group(2)) + 1))
    m = re.match(r"^-?v(\d+)$", tok)
    return {int(m.group(1))} if m else set()
def hazard_check(L):
    hist = []
    for line in L:
        s = line.split(";")[0].strip()
        if not s or s.endswith(":") or s.startswith("."): continue
        op, _, rest = s.partition(" ")
        toks = [o.strip().split(" ")[0] for o in rest.split(",")] if rest else []
        if op in ("s_branch", "s_endpgm"): hist = []; continue
        st = int(toks[0]) + 1 if op == "s_nop" else 1
        allr = [regs_of(t) for t in toks]
        isv = op.startswith("v_"); mf = op.startswith("v_mfma")
        store = op.startswith(("ds_write", "buffer_store", "buffer_atomic"))
        dst = set() if (store or not allr or op.startswith(("v_cmp", "v_readfirstlane"))) else allr[0]
        src = set().union(*(allr if store or op.startswith(("v_cmp", "v_permlane", "v_fmac")) else allr[1:])) if allr else set()
        if op.startswith("v_permlane"): dst = src
        d = 0
        for (pop, pdst, psrcC, pst) in reversed(hist):
            need = 0
            if pop.startswith("v_mfma"):
                if mf:
                    if pdst & (allr[1] | allr[2]): need = 8
                    elif pdst & allr[3] and pdst != allr[3]: need = 6
                elif pdst & (src | dst): need = 8
                elif isv and psrcC & dst: need = 3
            elif pop.startswith("v_"):
                if mf and pdst & src: need = 2
                if op.startswith("v_permlane") and pdst & src: need = 2
                if op == "v_readfirstlane_b32" and pdst & src: need = 1
                if pop.split("_e64")[0] in ("v_exp_f32", "v_rcp_f32") and isv and op.split("_e64")[0] not in ("v_exp_f32", "v_rcp_f32") and pdst & src: need = max(need, 1)
                if pop.startswith("v_dot") and op != pop and pdst & (src | dst): need = 3
            elif pop.startswith("buffer_store_dwordx4") and isv and psrcC & dst: need = 2
            assert d >= need, f"hazard: {pop} -> {s} distance {d} < {need}"
            d += pst
            if d >= 8: break
        hist.append((op, dst, (allr[3] if mf else (allr[0] if op.startswith("buffer_store") else set())), st))

def gen(path, AL=8, npf=14, stamps=False, nt="nt", smf="nt", qflag="", cstride=8, T=8.0, TM=32.0, mix=0x31031031, nK1=9, vtail=1.0,
        itst=False, outf="sc0 sc1", pubf="sc0 sc1", cap="56", capV="556", capH=None, capP="8", pfcode=4, ctspan=0.95, ct0=0.15,
        hv=4, hk=0.9, hp=4, hq=0.9, npre=6, dry=False, hst=0, align=True, nocomp=0, abl=0, capC=None, uth=4, pollmax=False, grp=0, flagf='', capF='7', capS='45', tabs=None, ms=(5, 11), shards=4, shb=3, cols=None, ldf='sc0 sc1', wb=False, wto=0, nolocal=False, pb=100, jr=3, pa=1, pw=1, noearly=0, diags=0, diagm=0, p2f=-1, jo=15, om='----', chk=-1, apoll=0, gray=0, ua=0, det=0, prog=1):
    npf = 16
    capn = lambda c, k: int(c[k % len(c)], 16) - 1
    KROW = 288; JS = 576; OS = 2320
    TABW = 16 * 256
    LDS_MB = 0; LDS_SC = 256; LDS_TAB = 1536; LDS_K = LDS_TAB + 4 * TABW; LDS_V = LDS_K + 128 * KROW
    LDS_TOTAL = LDS_V + 16 * OS
    assert LDS_K % 256 == 0 and LDS_K + 128 * KROW < 65536 and LDS_TAB % 512 == 0 and TABW % 512 == 0
    WS_SLOT = 1 << 20; WS_CTR = 16 << 20; FLAG = 0x100
    SPIN = 1 << 20
    PF = 8
    vLane, vOff, vMb, vKR, vSW, vSR, vVW, vVR, vTK, vTV, vL4, vLin = range(12)
    vHd = 12
    vCk, vFl = 14, 15
    vL = 16
    vT2 = 18
    vKS, vKC = 20, 24; vKSr, vKZr, vVSr, vVZr = 28, 30, 32, 33
    vTmp = 34
    vMx, vAt, vMO = 37, 38, 39
    vKP = 40; vVP = 48; vO = 64; vS = 96; vRing = 128; vQ = 192; vSt = 208; NST = 10
    vNM = 248; vKW = 252
    vSc = vS + 16
    vAo = vL
    sX, sY, sSM, sQ, sDBG, sWS, sOUT = 8, 12, 16, 20, 24, 28, 32
    sKb, sVb = 36, 38
    sPair, sSplit, sI, sJ, sG, sT, sT2, sFlo, sThr, sDoff, sCoff, sIni, sKsl, sVsl, sWb, sPend, sSpin, sW0, sHk, sMode = range(40, 60)
    sAt = 49; sShard = 82; sCnt = 83; sXc = 71
    sO = 60
    sK1, sK2 = 64, 66
    sCw = 72
    sPo = 76
    sWave = 3
    srd = lambda r: f"s[{r}:{r+3}]"
    vr = lambda r, n: f"v[{r}:{r+n-1}]"
    def item_text(k):
        return f"buffer_load_dwordx4 {vr(vRing+4*k,4)}, v{vOff}, {srd(sX if k < 8 else sY)}, s{sO + k//4} offen offset:{(k%4)*1024} {nt}"
    sXm = 101 if not stamps else 59 + 40
    sXm = 2
    def unit_offs(A, idx, slot):
        if idx is None: A(f"s_mov_b32 s{sO}, s{sXm}")
        else:
            if gray == 1: A(f"s_lshr_b32 s{sO}, s{idx}, 1"); A(f"s_xor_b32 s{sO}, s{sO}, s{idx}"); A(f"s_lshl_b32 s{sO}, s{sO}, 16")
            elif gray == 2: A(f"s_brev_b32 s{sO}, s{idx}"); A(f"s_lshr_b32 s{sO}, s{sO}, 12")
            else: A(f"s_lshl_b32 s{sO}, s{idx}, 16")
            A(f"s_xor_b32 s{sO}, s{sO}, s{sXm}")
        A(f"s_add_u32 s{sO+1}, s{sO}, 4096"); A(f"s_xor_b32 s{sO+2}, s{sO}, 0x4000"); A(f"s_xor_b32 s{sO+3}, s{sO+1}, 0x4000")
        if slot is not None: A(f"s_bfe_u32 s{slot}, s{sO}, 0xc0008")
    def set_base(A, b, b2=None):
        if b2 is None: b2 = b
        A(f"s_mov_b64 s[{sX}:{sX+1}], s[{b}:{b+1}]"); A(f"s_mov_b64 s[{sY}:{sY+1}], s[{b2}:{b2+1}]")
    A = Stream()
    A("s_cmp_ge_u32 s2, 256"); A("s_cbranch_scc1 L_end")
    if stamps: A("s_memrealtime s[84:85]"); A("s_mov_b32 s101, 0")
    if diags: A("s_memrealtime s[84:85]")
    A("s_load_dwordx16 s[68:83], s[0:1], 0")
    A("s_load_dwordx4 s[4:7], s[0:1], 64")
    if pfcode:
        A.c("pull this kernel's code into L2 with strided loads (speed only; the values are unused)")
        A("s_getpc_b64 s[92:93]"); A("s_and_b32 s92, s92, 0xffffff00"); A("s_mov_b32 s94, L_codeend-L_pf"); A("s_mov_b32 s95, 0x20000")
        A.label("L_pf")
        A(f"v_lshlrev_b32 v{vTmp}, 7, v0")
        A(f"s_lshr_b32 s{sT2}, s2, 3"); A(f"s_and_b32 s{sT2}, s{sT2}, {pfcode-1}"); A(f"s_cselect_b32 s94, 0, s94")
        A(f"buffer_load_dword v{vTmp}, v{vTmp}, s[92:95], 0 offen")
    A("v_lshrrev_b32 v1, 6, v0")
    A(f"v_and_b32 v{vLane}, 63, v0")
    A(f"v_readfirstlane_b32 s{sWave}, v1")
    A(f"s_bfe_u32 s{sIni}, s2, {hex((int(math.log2(shards)) << 16) | shb)}")
    A.c("workgroup id -> (pair, split) and the order in which it walks its token groups: a bijection (placement affects speed only)")
    A(f"s_lshl_b32 s{sT2}, s2, 20")
    for i, c in enumerate(cols):
        x = c ^ (1 << (20 + i))
        if x: A(f"s_bitcmp1_b32 s2, {i}"); A(f"s_cselect_b32 s{sT}, {hex(x)}, 0"); A(f"s_xor_b32 s{sT2}, s{sT2}, s{sT}")
    if mix:
        A(f"s_lshr_b32 s{sT}, s2, 3"); A(f"s_and_b32 s{sT}, s{sT}, 7"); A(f"s_lshl_b32 s{sT}, s{sT}, 2")
        A(f"s_lshr_b32 s{sT}, {hex(mix)}, s{sT}"); A(f"s_and_b32 s{sT}, s{sT}, 3"); A(f"s_and_b32 s{sT}, s{sT}, s2")
        A(f"s_bcnt1_i32_b32 s{sT}, s{sT}"); A(f"s_and_b32 s{sT}, s{sT}, 1"); A(f"s_lshl_b32 s{sT}, s{sT}, 22"); A(f"s_xor_b32 s{sT2}, s{sT2}, s{sT}")
    def idmap(w):
        v = 0
        for i, c in enumerate(cols):
            if w >> i & 1: v ^= c
        if mix: v ^= (bin((mix >> (4 * ((w >> 3) & 7))) & 3 & w).count("1") & 1) << 22
        return v
    assert len(set(idmap(w) >> 20 for w in range(256))) == 256 and all(idmap(w) & ~0xfff4000 == 0 for w in range(256)) and idmap(0) == 0
    A(f"s_mov_b32 s{sMode}, s2")
    A(f"s_lshr_b32 s{sPair}, s{sT2}, 22"); A(f"s_bfe_u32 s{sSplit}, s{sT2}, 0x20014"); A(f"s_and_b32 s{sXm}, s{sT2}, 0x3fffff")
    c_, h_, m_, g_ = vKS, vKS + 1, vKS + 2, vKS + 3
    t0, t1, vQo = vKC, vKC + 1, vKC + 2
    A(f"v_and_b32 v{c_}, 31, v{vLane}"); A(f"v_lshrrev_b32 v{h_}, 5, v{vLane}")
    A(f"v_and_b32 v{m_}, 15, v{vLane}"); A(f"v_lshrrev_b32 v{g_}, 4, v{vLane}")
    A(f"v_lshlrev_b32 v{vLin}, 4, v{vLane}"); A(f"v_lshlrev_b32 v{vL4}, 2, v{vLane}")
    A(f"s_and_b32 s{sT}, s{sWave}, 1"); A(f"s_lshl_b32 s{sT}, s{sT}, 13")
    A(f"s_lshr_b32 s{sT2}, s{sWave}, 1"); A(f"s_lshl_b32 s{sT2}, s{sT2}, 15"); A(f"s_add_u32 s{sWb}, s{sT}, s{sT2}")
    A(f"v_add_u32 v{vOff}, s{sWb}, v{vLin}")
    A(f"v_lshlrev_b32 v{vQo}, 8, v{m_}"); A(f"v_lshl_add_u32 v{vQo}, v{g_}, 4, v{vQo}")
    for i in range(2): A(f"v_mov_b32 v{vVP+i}, -1")
    A(f"v_lshlrev_b32 v{vVP+2}, 3, v{vLane}")
    def own_slot(A):
        A(f"s_lshl2_add_u32 s{sT}, s{sPair}, s{sWave}"); A(f"s_lshl2_add_u32 s{sT}, s{sT}, s{sSplit}")
        A(f"s_lshl_b32 s{sT}, s{sT}, 13"); A(f"s_add_u32 s{sT}, s{sT}, {WS_SLOT}"); A(f"s_add_u32 s{sT2}, s{sT}, 4096")
    A(f"s_mul_i32 s{sG}, s{sWave}, {TABW}"); A(f"s_add_u32 s{sG}, s{sG}, {LDS_TAB}"); A(f"s_mov_b32 m0, s{sG}")
    own_slot(A)
    for r in (sX, sY): A(f"s_mov_b32 s{r+2}, {0 if dry else 0x400000}"); A(f"s_mov_b32 s{r+3}, 0x20000")
    A(f"s_mov_b32 s{sWS+2}, 0x40000000"); A(f"s_mov_b32 s{sWS+3}, 0x20000")
    A(f"s_lshl_b32 s{sT}, s{sPair}, 22")
    A(f"s_mov_b32 s{sDBG+2}, 256"); A(f"s_mov_b32 s{sDBG+3}, 0x20000"); A(f"v_mov_b32 v{vFl}, 1")
    unit_offs(A, None, sVsl); A(f"s_andn2_b32 s{sKsl}, s{sVsl}, 255")
    for r in (sSM, sQ, sOUT): A(f"s_mov_b32 s{r+2}, 0x4000"); A(f"s_mov_b32 s{r+3}, 0x20000")
    A(f"s_lshl_b32 s{sPend}, s{sPair}, 14")
    A("s_waitcnt lgkmcnt(0)")
    def mk(r, p): A(f"s_add_u32 s{r}, s{p}, s{sPend}"); A(f"s_addc_u32 s{r+1}, s{p+1}, 0")
    A(f"s_add_u32 s{sKb}, s70, s{sT}"); A(f"s_addc_u32 s{sKb+1}, s71, 0")
    set_base(A, sKb)
    for k in range(npre): A(item_text(k))
    A(f"s_add_u32 s{sVb}, s72, s{sT}"); A(f"s_addc_u32 s{sVb+1}, s73, 0")
    A.c("wave w streams scale/zero array w (ks, kz, vs, vz) into the LDS table")
    A(f"s_cmp_eq_u32 s{sWave}, 1"); A(f"s_cselect_b64 s[{sSM}:{sSM+1}], s[76:77], s[74:75]")
    A(f"s_cmp_eq_u32 s{sWave}, 2"); A(f"s_cselect_b64 s[{sSM}:{sSM+1}], s[78:79], s[{sSM}:{sSM+1}]")
    A(f"s_cmp_eq_u32 s{sWave}, 3"); A(f"s_cselect_b64 s[{sSM}:{sSM+1}], s[80:81], s[{sSM}:{sSM+1}]")
    mk(sSM, sSM)
    A(f"s_lshl_b32 s{sT}, s{sSplit}, 12")
    nT = (npf + 3) // 4
    for u in range(nT):
        rows = min(4, npf - 4 * u)
        if rows < 4: A(f"s_bfm_b64 exec, {16*rows}, 0")
        A(f"buffer_load_dwordx4 v{vLin}, {srd(sSM)}, s{sT} offen offset:{u*1024} {smf} lds")
        if rows < 4: A("s_mov_b64 exec, -1")
    mk(sQ, 68)
    A(f"s_lshl_b32 s{sT}, s{sWave}, 12")
    for s4 in range(4): A(f"buffer_load_dwordx4 {vr(vQ+4*s4,4)}, v{vQo}, {srd(sQ)}, s{sT} offen offset:{s4*64} {qflag}")
    A.c("mark the header of this wave's hand-off slot empty")
    A(f"s_mov_b64 s[{sWS}:{sWS+1}], s[6:7]")
    A("s_mov_b64 exec, 0xffff")
    A(f"buffer_store_dwordx2 {vr(vVP,2)}, v{vVP+2}, {srd(sWS)}, s{sT2} offen sc0 sc1")
    A("s_mov_b64 exec, -1")
    A.c("workgroup 0 claims the job of zeroing the ticket counters (any workgroup takes it over later if nobody has)")
    A(f"s_mov_b64 s[{sDBG}:{sDBG+1}], s[4:5]")
    A(f"s_cmp_eq_u32 s{sWave}, 0"); A(f"s_cselect_b32 s{sW0}, 1, 0")
    A(f"s_or_b32 s{sT}, s{sMode}, {'1' if noearly else 's%d' % sWave}"); A(f"s_cselect_b32 s{sHk}, 0, 3"); A("s_cbranch_scc1 L_noel")
    A("s_mov_b64 exec, 1")
    A(f"buffer_atomic_add v{vFl}, off, {srd(sDBG)}, 0 sc0")
    A("s_mov_b64 exec, -1")
    A.label("L_noel")
    mk(sOUT, 82)
    A(f"v_lshlrev_b32 v{vTK}, 3, v{c_}")
    A(f"v_lshrrev_b32 v{vTV}, 4, v{c_}"); A(f"v_lshlrev_b32 v{vTV}, 5, v{vTV}")
    A(f"v_and_b32 v{t0}, 15, v{c_}"); A(f"v_add_lshl_u32 v{vTV}, v{vTV}, v{t0}, 1")
    A(f"s_lshr_b32 s{sT}, s{sWb}, 8"); A(f"v_add_u32 v{vTV}, s{sT}, v{vTV}")
    A(f"s_lshr_b32 s{sT}, s{sWave}, 1"); A(f"s_and_b32 s{sT2}, s{sWave}, 1")
    A(f"s_mul_i32 s{sT}, s{sT}, {32*KROW}"); A(f"s_mul_i32 s{sT2}, s{sT2}, {8*KROW}"); A(f"s_add_u32 s{sT}, s{sT}, s{sT2}"); A(f"s_add_u32 s{sT}, s{sT}, {LDS_K}")
    A(f"v_mul_u32_u24 v{vKW}, {4*KROW}, v{h_}"); A(f"v_lshl_add_u32 v{vKW}, v{c_}, 3, v{vKW}"); A(f"v_add_u32 v{vKW}, s{sT}, v{vKW}")
    for u, rows in ((1, 16), (2, 64), (3, 80)): A(f"v_add_u32 v{vKW+u}, {rows*KROW}, v{vKW}")
    A(f"v_mul_u32_u24 v{vKR}, {KROW}, v{m_}"); A(f"v_lshl_add_u32 v{vKR}, v{g_}, 4, v{vKR}")
    A(f"s_mul_i32 s{sT}, s{sWave}, {2*OS}"); A(f"s_add_u32 s{sT}, s{sT}, {LDS_V}")
    A(f"v_mul_u32_u24 v{vVW}, {OS}, v{h_}"); A(f"v_lshl_add_u32 v{vVW}, v{c_}, 4, v{vVW}"); A(f"v_add_u32 v{vVW}, s{sT}, v{vVW}")
    A(f"v_mul_u32_u24 v{vVR}, {OS}, v{g_}"); A(f"v_and_b32 v{t0}, 3, v{m_}"); A(f"v_mul_u32_u24 v{t0}, {JS}, v{t0}")
    A(f"v_lshrrev_b32 v{t1}, 2, v{m_}"); A(f"v_lshlrev_b32 v{t1}, 5, v{t1}")
    A(f"v_add3_u32 v{vVR}, v{vVR}, v{t0}, v{t1}"); A(f"v_add_u32 v{vVR}, {LDS_V}, v{vVR}")
    A(f"s_lshl_b32 s{sT}, s{sWave}, 8"); A(f"s_add_u32 s{sT2}, s{sT}, {LDS_SC}")
    A(f"v_and_b32 v{vSW}, 1, v{c_}"); A(f"v_lshlrev_b32 v{vSW}, 7, v{vSW}")
    A(f"v_lshrrev_b32 v{t0}, 1, v{c_}"); A(f"v_lshl_add_u32 v{vSW}, v{t0}, 3, v{vSW}"); A(f"v_add_u32 v{vSW}, s{sT2}, v{vSW}")
    A(f"v_lshlrev_b32 v{vSR}, 7, v{h_}"); A(f"v_add_u32 v{vSR}, s{sT2}, v{vSR}")
    A(f"v_mov_b32 v{vMb}, {LDS_MB}")
    A(f"s_mov_b32 s{sCoff}, {WS_CTR}")
    cc = math.log2(math.e) / math.sqrt(128.0)
    for i in range(2): A(f"s_mov_b32 s{sK1+i}, {hex(f32bits(cc * 2.0**24))}"); A(f"s_mov_b32 s{sK2+i}, {hex(f32bits(-2.0**-24))}")
    A.c("the first tile always takes the rescale path, which sets the reference to that tile's true row max")
    A(f"s_mov_b32 s{sThr}, 0xff800000"); A(f"s_mov_b32 s{sFlo}, 0xff800000")
    for r in (sAt, sMode, sCnt, sI, sJ): A(f"s_mov_b32 s{r}, 0")
    A(f"s_mov_b32 s{sShard}, s{sIni}")
    if not nolocal: A(f"s_getreg_b32 s{sXc}, hwreg(HW_REG_XCC_ID, 0, 3)"); A(f"s_mul_i32 s{sXc}, s{sXc}, 3"); A(f"s_add_u32 s{sXc}, s{sXc}, 8")
    A(f"s_mov_b32 s{sSpin}, {SPIN}")
    for i in range(32): A(f"v_mov_b32 v{vO+i}, 0")
    for i in range(4): A(f"v_mov_b32 v{vNM+i}, 0")
    A(f"v_mov_b32 v{vMO}, 0x7149f2ca"); A(f"v_mov_b32 v{vL}, 0"); A(f"v_mov_b32 v{vL+1}, 0"); A(f"v_mov_b32 v{vAt}, 0")
    def ktab_reads(S):
        S(f"v_add_u32 v{vTmp+2}, s{sKsl}, v{vTK}")
        S(f"ds_read_b64 {vr(vKSr,2)}, v{vTmp+2} offset:{LDS_TAB}"); S(f"ds_read_b64 {vr(vKZr,2)}, v{vTmp+2} offset:{LDS_TAB+TABW}")
    def vtab_reads(S):
        S(f"v_xor_b32 v{vTmp+2}, s{sVsl}, v{vTV}")
        S(f"ds_read_u16 v{vVSr}, v{vTmp+2} offset:{LDS_TAB+2*TABW}"); S(f"ds_read_u16 v{vVZr}, v{vTmp+2} offset:{LDS_TAB+3*TABW}")
    def prep_v(S):
        S.c("V: S = vs*2^24, C = -vz*vs per token, broadcast through LDS")
        S(f"v_lshlrev_b32 v{vT2}, 16, v{vVSr}"); S(f"v_lshlrev_b32 v{vT2+1}, 16, v{vVZr}")
        S(f"v_mul_f32 v{vT2+1}, -v{vT2+1}, v{vT2}"); S(f"v_mul_f32 v{vT2}, 0x4b800000, v{vT2}")
        S(f"ds_write_b64 v{vSW}, {vr(vT2,2)}")
    def prep_k(S):
        S.c("K: S = ks*c*2^24, C = -kz*ks*c per channel, c = log2(e)/sqrt(128) (the int code is read as an f16 subnormal, code*2^-24)")
        for p in range(2): S(f"v_lshlrev_b32 v{vKS+2*p}, 16, v{vKSr+p}"); S(f"v_lshlrev_b32 v{vKC+2*p}, 16, v{vKZr+p}")
        for p in range(2): S(f"v_and_b32 v{vKS+2*p+1}, 0xffff0000, v{vKSr+p}"); S(f"v_and_b32 v{vKC+2*p+1}, 0xffff0000, v{vKZr+p}")
        for p in range(2): S(f"v_pk_mul_f32 {vr(vKS+2*p,2)}, {vr(vKS+2*p,2)}, s[{sK1}:{sK1+1}]")
        for p in range(2): S(f"v_pk_mul_f32 {vr(vKC+2*p,2)}, {vr(vKC+2*p,2)}, s[{sK2}:{sK2+1}]")
        for p in range(2): S(f"v_pk_mul_f32 {vr(vKC+2*p,2)}, {vr(vKC+2*p,2)}, {vr(vKS+2*p,2)}")
    def sc_lo_reads(S):
        for i in range(4): S(f"ds_read_b128 {vr(vSc+4*i,4)}, v{vSR} offset:{i*16}")
    for k in range(npre, 16):
        A(f"s_waitcnt vmcnt({capn(capP, k)})"); A(item_text(k))
    ENTRYV = 15 - max(capn(c, 15) for c in (cap, capV, capF, capS))
    ENTRY = 15 - capn(cap, 15)
    assert 16 - ENTRY <= 16 - npre
    A(f"s_waitcnt vmcnt({16 - ENTRY})"); A("s_barrier")
    ktab_reads(A); vtab_reads(A)
    A("s_waitcnt lgkmcnt(0)")
    prep_v(A)
    pro = A

    def itstamp(S):
        if stamps and itst:
            S("s_memrealtime s[96:97]"); S("s_mov_b32 s98, m0"); S(f"s_add_u32 m0, s{sI}, s{sJ}"); S(f"v_accvgpr_read_b32 v{vTmp+2}, a255"); S("s_waitcnt lgkmcnt(0)")
            S(f"v_writelane_b32 v{vTmp+2}, s96, m0"); S("s_mov_b32 m0, s98"); S(f"v_accvgpr_write_b32 a255, v{vTmp+2}")

    def emit(B, items, place, seq0, done0, caps, name, at=None):
        out = []; ei = 0; done = done0; info = []; marks = {}; atd = False
        def wait(n):
            nonlocal done
            if ei - n > done:
                out.append(f"    s_waitcnt vmcnt({n + (1 if atd and ei - n <= at else 0)})"); done = ei - n; return True
            return False
        for i, x in enumerate(B.I):
            while ei < len(items) and place[ei] == i:
                if ei == at and not ua:
                    out.extend([f"    s_cmp_lg_u32 s{sAt}, 0", "    s_cbranch_scc0 L_noat", "    s_mov_b64 exec, 1", f"    v_mov_b32 v{vAt}, 1",
                                f"    buffer_atomic_add v{vAt}, off, {srd(sWS)}, s{sCoff} sc0", "    s_mov_b64 exec, -1", "L_noat:"])
                if caps: wait(capn(caps, ei))
                if ei == at and ua:
                    out.extend([f"    v_mov_b32 v{vAt}, 1", f"    buffer_atomic_add v{vAt}, v{vAo}, {srd(sWS)}, s{sCoff} offen sc0"]); atd = True
                out.append("    " + items[ei]); ei += 1
            if "mark" in x:
                marks[(x["mark"], x["k"])] = (ei, done)
                if x["mark"] == "wait":
                    n = ei - 1 - seq0[x["k"]]; assert n >= 0
                    info.append((x["k"], n, wait(n)))
                elif x["mark"] == "smallwait": wait(ei - x["k"])
                elif x["mark"] == "postwait": out.append(f"    s_waitcnt vmcnt({AL})")
            else: out.append(x["t"])
        assert ei == len(items)
        print(name, "cost", sum(x["c"] for x in B.I), "waits", [(k, n) for k, n, w in info if w], "lead", min(n for k, n, w in info), file=sys.stderr)
        return out, marks
    class Pos:
        def __init__(self, B):
            self.I = B.I; self.cum = []; a = 0
            for x in B.I: self.cum.append(a); a += x["c"]
            self.tot = a
        def i(self, kind, k=None): return next(i for i, x in enumerate(self.I) if x.get("mark") == kind and x.get("k") == k)
        def c(self, kind, k=None): return self.cum[self.i(kind, k)]
        def at(self, t, lo):
            p = max(lo, next((i for i in range(len(self.I)) if self.cum[i] >= t), len(self.I) - 1))
            while not self.I[p]["ins"]: p += 1
            return p

    def deq(S, r, s, c): S(f"v_fma_mix_f32 v{r}, v{r}, v{s}, v{c} op_sel_hi:[1,0,0]")
    def kitems(B, n):
        for k in range(0, n, 2):
            r = vRing + 4 * k; t = vKP + 4 * ((k // 2) % 2)
            B.mark("wait", k + 1)
            for u in range(2):
                for j in range(4): deq(B, r + 4 * u + j, vKS + j, vKC + j)
            for u in range(4): B(f"v_cvt_pk_bf16_f32 v{t+u}, v{r+2*u}, v{r+2*u+1}")
            B.mark("free", k); B.mark("free", k + 1)
            B(f"ds_write2_b64 v{vKW + k//4}, {vr(t,2)}, {vr(t+2,2)} offset0:{(k%4)*KROW//8} offset1:{(k%4+1)*KROW//8}")
        B.mark("kdone")
    def mfma_loop(B, reads, mfmas, fill, start=0, ids=None, after=None):
        n = len(mfmas)
        if ids is None:
            ids = {}
            for i in range(PF): ids[i] = B(reads[i])
            for t in fill.get(-1, []): B(t)
        for i in range(start, n):
            if i % 2 == 0 or i == start: B.waitds(ids[min(n - 1, i | 1)])
            B(mfmas[i])
            if i + PF < n: ids[i + PF] = B(reads[i + PF])
            for t in fill.get(i, []): B(t)
            if after and i in after: after[i](dict(ids))
    def qk_lists(nblk):
        order = [(2 * bp + u, s4) for bp in range(nblk // 2) for s4 in range(4) for u in range(2)]
        rd = [f"ds_read_b128 {vr(vSt+4*(i%NST),4)}, v{vKR} offset:{LDS_K + b*16*KROW + s4*64}" for i, (b, s4) in enumerate(order)]
        mf = [f"v_mfma_f32_16x16x32_bf16 {vr(vS+4*b,4)}, {vr(vSt+4*(i%NST),4)}, {vr(vQ+4*s4,4)}, {vr(vNM,4) if s4 == 0 else vr(vS+4*b,4)}" for i, (b, s4) in enumerate(order)]
        return rd, mf
    def max_ops(bp):
        b = vS + 8 * bp
        if bp == 0: return [f"v_max3_f32 v{vMx}, v{b}, v{b+1}, v{b+2}", f"v_max3_f32 v{vMx}, v{vMx}, v{b+3}, v{b+4}", f"v_max3_f32 v{vMx}, v{vMx}, v{b+5}, v{b+6}", f"v_max_f32 v{vMx}, v{vMx}, v{b+7}"]
        return [f"v_max3_f32 v{vMx}, v{vMx}, v{b+2*u}, v{b+2*u+1}" for u in range(4)]
    def qk_fill(nblk):
        f = {}
        for bp in range(nblk // 2 - 1):
            last = bp + 2 == nblk // 2
            slots = (4, 5, 6, 7) if last else (3, 5, 7, 7)
            for s_, t in zip(slots, max_ops(bp)): f.setdefault(8 * (bp + 1) + s_, []).append(t)
        return f
    def check_max(B, nblk, tag, pre):
        for t in pre: B(t)
        if len(pre) < 6: B(f"s_nop {5 - len(pre)}")
        for t in max_ops(nblk // 2 - 1): B(t)
        B(f"v_cmp_lt_f32 vcc, s{sThr}, v{vMx}")
        B.lock = True
        B(f"s_cbranch_vccnz L_rescale{tag}")
        B.label(f"L_rescaled{tag}")
        B.lock = False
    exp_op = lambda i: f"v_exp_f32 v{vS+i}, v{vS+i}"
    sum_cvt = lambda i: [f"v_pk_add_f32 {vr(vL,2)}, {vr(vL,2)}, {vr(vS+2*i,2)}", f"v_cvt_pk_bf16_f32 v{vS+i}, v{vS+2*i}, v{vS+2*i+1}"]
    def vphase(B, k0, s, refill_hi):
        rg = lambda n8: vRing + 4 * (k0 + n8)
        for n8 in (0, 2):
            B.mark("wait", k0 + n8 + 1)
            for u in range(2):
                for j in range(4): deq(B, rg(n8 + u) + j, vSc + 2 * (n8 + u), vSc + 2 * (n8 + u) + 1)
            if refill_hi: B(f"ds_read_b128 {vr(vSc+4*(n8//2),4)}, v{vSR} offset:{64 + (n8//2)*16}")
            for j in range(4): B(f"v_cvt_pk_bf16_f32 v{vVP+4*j+n8//2}, v{rg(n8)+j}, v{rg(n8+1)+j}")
            B.mark("free", k0 + n8); B.mark("free", k0 + n8 + 1)
        B.mark("wait", k0 + 7)
        for j in range(4):
            for n8 in range(4, 8): deq(B, rg(n8) + j, vSc + 2 * n8, vSc + 2 * n8 + 1)
            for n8 in (4, 6): B(f"v_cvt_pk_bf16_f32 v{vVP+4*j+n8//2}, v{rg(n8)+j}, v{rg(n8+1)+j}")
            if j == 3:
                for n8 in range(4, 8): B.mark("free", k0 + n8)
            B(f"ds_write_b128 v{vVW}, {vr(vVP+4*j,4)} offset:{s*8*OS + j*JS}")
        if refill_hi:
            for u in (2, 3): B(f"ds_read_b128 {vr(vSc+4*u,4)}, v{vSR} offset:{64 + u*16}")
    def pv_lists(s, pbase=None):
        if pbase is None: pbase = vS
        lst = [(2 * s + kk, db) for kk in range(2) for db in range(8)]
        rd = [f"ds_read_b128 {vr(vSt+4*(i%NST),4)}, v{vVR} offset:{ks*4*OS + (db//2)*128 + (db%2)*16}" for i, (ks, db) in enumerate(lst)]
        mf = [f"v_mfma_f32_16x16x32_bf16 {vr(vO+4*db,4)}, {vr(vSt+4*(i%NST),4)}, {vr(pbase+4*ks,4)}, {vr(vO+4*db,4)}" for i, (ks, db) in enumerate(lst)]
        return rd, mf
    def ops_of(f):
        S = Stream(); f(S); return [x["t"].strip() for x in S.I if not x["t"].strip().startswith(";")]
    def spread(ops, first, per=1):
        f = {}
        for n, t in enumerate(ops): f.setdefault(first + n // per, []).append(t)
        return f
    def save_ops(i0):
        return [f"v_accvgpr_write_b32 a{17*i0+i}, v{vS+i}" for i in range(16)] + [f"v_accvgpr_write_b32 a{17*i0+16}, v{vNM}"]
    unit_items = [item_text(k) for k in range(16)]
    unit_seq = {k: k - 16 for k in range(16)}

    B = Stream()
    B.lock = True
    B.label("L_K")
    itstamp(B)
    B(f"s_add_u32 s{sI}, s{sI}, 1")
    B(f"s_cmp_lt_u32 s{sI}, {npf}"); B("s_cbranch_scc0 L_k2v")
    unit_offs(B, sI, sKsl); B(f"s_andn2_b32 s{sKsl}, s{sKsl}, 255")
    B(f"s_cmp_le_u32 s{sI}, s{sHk}"); B("s_cbranch_scc1 L_hookK")
    B.label("L_k1")
    B("s_waitcnt lgkmcnt(0)")
    B.lock = False
    B.mark("ready")
    prep_k(B)
    kitems(B, 16)
    B.c("park the previous tile's P while the K rows settle in LDS")
    B("s_branch L_save", 150)
    B.lock = True
    B.label("L_saved")
    B.lock = False
    B("s_waitcnt lgkmcnt(0)"); B("s_barrier", 20)
    B.c("S^T - m = K Q^T - m (log2 units)")
    rd, mf = qk_lists(8)
    mfma_loop(B, rd, mf, qk_fill(8))
    B("s_barrier", 10)
    check_max(B, 8, "K", ops_of(ktab_reads))
    for half in range(2):
        for i in range(16): B(exp_op(16 * half + i))
        for i in range(8):
            for t in sum_cvt(8 * half + i): B(t)
    B.mark("allissued")
    B.lock = True
    B(f"s_cmp_lt_u32 s{sI}, {npf}"); B("s_cbranch_scc1 L_K")
    sc_lo_reads(B)
    B.c("the last tile's P waits in the Q registers; l is final: sum it over the four lane groups")
    for i in range(16): B(f"v_mov_b32 v{vQ+i}, v{vS+i}")
    B(f"v_add_f32 v{vHd+1}, v{vL}, v{vL+1}")
    for sw in ("v_permlane32_swap_b32", "v_permlane16_swap_b32"):
        B(f"v_mov_b32 v{vTmp+1}, v{vHd+1}"); B("s_nop 1"); B(f"{sw} v{vTmp+1}, v{vHd+1}"); B("s_nop 1"); B(f"v_add_f32 v{vHd+1}, v{vHd+1}, v{vTmp+1}")
    if ua: B(f"v_mov_b32 v{vAo}, 0x40000000")
    B.lock = False
    P = Pos(B); c0 = P.c("free", 0); c1 = P.c("kdone"); c2 = P.c("allissued")
    tg = [c0 + (c1 - c0) * k / (nK1 - 1) for k in range(nK1)] + [c1 + (c2 - c1) * (k + 1) / (16 - nK1) - 8 for k in range(16 - nK1)]
    pl = []
    for k in range(16): pl.append(P.at(tg[k], max(pl[-1] if pl else 0, P.i("free", k) + 1))); assert pl[-1] <= P.i("allissued")
    kbody, _ = emit(B, unit_items, pl, unit_seq, ENTRY - 16, cap, "K")
    print("  K issue", [P.cum[p] for p in pl], file=sys.stderr)

    sig = sorted(m + 1 for m in ms) + [jo]
    assert jr <= sig[0] and jr < 14
    assert sig == sorted(set(sig))
    events = sorted(set(sig) | set(x + 1 for x in sig) | {jr, 16})
    D_ = Stream()
    D_.label("L_V")
    itstamp(D_)
    D_(f"s_add_u32 s{sJ}, s{sJ}, 1")
    D_(f"s_bitcmp1_b32 {hex(sum(1 << e for e in events))}, s{sJ}")
    D_("s_waitcnt lgkmcnt(0)")
    D_("s_cbranch_scc1 L_ctl")
    D_.label("L_v0")
    unit_offs(D_, sJ, sVsl)
    D_(f"s_cmp_lg_u32 s{sMode}, 0"); D_("s_cbranch_scc1 L_vdisp")
    def make_V(tag, caps):
        B = Stream()
        B.label(f"L_V{tag}_")
        B.mark("ready")
        vphase(B, 0, 0, True)
        vtab_reads(B)
        B.c("fetch this tile's P back while the V rows settle in LDS")
        B("s_branch L_restore", 150)
        B.lock = True
        if tag == "":
            B.label("L_restored")
            B(f"s_cmp_lg_u32 s{sMode}, 0"); B("s_cbranch_scc1 L_rdisp")
        B.label(f"L_rest{tag}_")
        B.lock = False
        B("s_waitcnt lgkmcnt(0)"); B("s_barrier", 20)
        rd, mf = pv_lists(0)
        pvv = ops_of(prep_v)
        mfma_loop(B, rd, mf, {-1: pvv[:4], 9: pvv[4:]})
        vphase(B, 8, 1, False)
        B(f"s_cmp_lg_u32 s{sAt}, 0")
        B.lock = True
        B(f"s_cbranch_scc0 L_nopost{tag}")
        B.mark("postwait")
        B(f"ds_write_b32 v{vL4}, v{vAt} offset:{LDS_MB}")
        B.label(f"L_nopost{tag}")
        B.lock = False
        B("s_waitcnt lgkmcnt(0)"); B("s_barrier")
        rd, mf = pv_lists(1)
        mfma_loop(B, rd, mf, spread(ops_of(sc_lo_reads) + [f"ds_read_b32 v{vTmp}, v{vMb}"], 8))
        B.mark("allissued")
        B.lock = True
        B("s_branch L_V")
        B.lock = False
        P = Pos(B); c0 = P.c("free", 0); c1 = c0 + (P.c("allissued") - c0) * vtail
        pl = []
        for k in range(16): pl.append(P.at(c0 + (c1 - c0) * k / 15 - 8, max(pl[-1] if pl else 0, P.i("free", k) + 1))); assert pl[-1] <= P.i("allissued")
        nb = sum(1 for p in pl if p <= P.i("postwait")); assert nb >= AL
        body, _ = emit(B, unit_items, pl, unit_seq, ENTRYV - 16, caps, "V" + tag, at=nb - AL)
        print("  V issue", [P.cum[p] for p in pl], "atomic before", nb - AL, file=sys.stderr)
        return [l.replace("L_noat", "L_noat" + tag) for l in body]
    vbody = D_.text() + make_V("", capV) + make_V("f", capF) + make_V("s", capS)
    hbody = []

    E = Stream()
    def stampE(i):
        if stamps and not (hst == 1 and i in (2, 3, 4)) and not (hst == 2 and i in (2, 3)): E(f"s_memrealtime s[{84+2*i}:{85+2*i}]")
    def lsum():
        stampE(1)
        if stamps: E("s_mov_b32 s99, 0")
    ml = lambda x: vKP + 2 * (x - 1)
    dat = lambda x: vRing + 16 * (x - 1)
    bb = vKSr; u0 = vVP; vPo = vKS; vBa = vKS + 1; vPv = vKC; sLd = sCnt; sNew = sMode
    pl_ = [f"buffer_load_dwordx4 {vr(dat(x)+4*q,4)}, v{vLin}, {srd(sWS)}, s{sPo+x-1} offen offset:{q*1024} sc0 sc1" for x in range(1, 4) for q in range(4)]
    poll = f"buffer_load_dwordx2 {vr(vPv,2)}, v{vPo}, {srd(sWS)}, s{sG} offen sc0 sc1"
    def ready(dst):
        return [f"v_max_u32 v{vTmp+1}, v{vPv}, v{vPv+1}", f"v_cmp_eq_u32 vcc, -1, v{vTmp+1}",
                f"s_lshr_b32 s{sT}, vcc_lo, 16", f"s_cselect_b32 s{dst}, 0, 2",
                f"s_and_b32 s{sT}, vcc_hi, 0xffff", f"s_cselect_b32 s{sT}, 0, 4", f"s_or_b32 s{dst}, s{dst}, s{sT}",
                f"s_lshr_b32 s{sT}, vcc_hi, 16", f"s_cselect_b32 s{sT}, 0, 8", f"s_or_b32 s{dst}, s{dst}, s{sT}"]
    spreadh = [f"ds_bpermute_b32 v{ml(x)+u}, v{vBa}, v{vPv+u} offset:{64*x}" for x in range(1, 4) for u in range(2)]
    E.c("last unit; the count tells the order in which the pair's workgroups got near the end: the fourth merges")
    E.label("L_last")
    E(f"s_mov_b32 s{sPend}, s{sG}")
    E(f"s_lshl2_add_u32 s{sG}, s{sPair}, s{sWave}"); E(f"s_lshl_b32 s{sG}, s{sG}, 15"); E(f"s_add_u32 s{sG}, s{sG}, {WS_SLOT}")
    E(f"v_lshrrev_b32 v{vPo}, 4, v{vLane}"); E(f"v_and_b32 v{vBa}, 15, v{vLane}"); E(f"v_xor_b32 v{vPo}, s{sSplit}, v{vPo}"); E(f"v_lshlrev_b32 v{vPo}, 13, v{vPo}")
    E(f"v_lshl_add_u32 v{vPo}, v{vBa}, 3, v{vPo}"); E(f"v_add_u32 v{vPo}, 4096, v{vPo}"); E(f"v_lshlrev_b32 v{vBa}, 2, v{vBa}")
    for x in range(4):
        E(f"s_xor_b32 s{sT}, s{sSplit}, {x}"); E(f"s_lshl_b32 s{sT}, s{sT}, 13"); E(f"s_add_u32 s{sPo+x-1}, s{sG}, s{sT}")
    E(f"s_cmp_eq_u32 s{sPend}, 3")
    if stamps: E("s_cselect_b32 s100, 2, 1")
    T_ = Stream()
    if hst == 1: T_("s_memrealtime s[88:89]")
    vphase(T_, 0, 0, True)
    T_(f"v_cmp_neq_f32 vcc, v{vNM}, v{vMO}")
    T_.lock = True
    T_(f"s_cbranch_vccnz L_oldrefE")
    T_.label(f"L_newrefE")
    T_.lock = False
    if hst == 1: T_("s_memrealtime s[90:91]")
    T_("s_waitcnt lgkmcnt(0)"); T_("s_barrier", 20)
    rd, mf = pv_lists(0, vQ); mfma_loop(T_, rd, mf, {})
    vphase(T_, 8, 1, False)
    if hst == 1: T_("s_memrealtime s[92:93]")
    T_("s_waitcnt lgkmcnt(0)"); T_("s_barrier")
    rd, mf = pv_lists(1, vQ); mfma_loop(T_, rd, mf, {})
    Pt = Pos(T_)
    p = Pt.at(Pt.c("wait", 15) + pb, Pt.i("wait", 15) + 1)
    T_.I[p:p] = [dict(t=t, c=0, ins=True) for t in ("    s_cbranch_scc0 L_nolook", "    " + poll, "L_nolook:")]
    out, _ = emit(T_, [], [], unit_seq, ENTRYV - 16, None, "tail")
    assert not any(t.strip().startswith("s_") and not t.strip().startswith(("s_waitcnt", "s_barrier", "s_cbranch", "s_nop", "s_memrealtime")) for t in out)
    for t in out: E.I.append(dict(t=t, c=0, ins=True))
    lsum()
    E("s_cbranch_scc1 L_merge")
    E.c("one of the first three: hand the partial over (write-through); once it is out, the header (-m, l), never the empty mark")
    for q in range(4):
        for i in range(4 * q, 4 * q + 4): E(f"v_cvt_pk_bf16_f32 v{vSt+i}, v{vO+2*i}, v{vO+2*i+1}")
        E(f"buffer_store_dwordx4 {vr(vSt+4*q,4)}, v{vLin}, {srd(sWS)}, s{sPo-1} offen offset:{q*1024} sc0 sc1")
    E("s_mov_b64 exec, 0xffff")
    E(f"v_min_u32 v{vHd}, -2, v{vNM}"); E(f"v_min_u32 v{vHd+1}, -2, v{vHd+1}")
    E("s_waitcnt vmcnt(0)")
    E(f"buffer_store_dwordx2 {vr(vHd,2)}, v{vPo}, {srd(sWS)}, s{sG} offen sc0 sc1")
    if stamps:
        E("s_mov_b64 exec, -1")
        for i in (2, 3, 4): stampE(i)
        E("s_branch L_done")
    else:
        E("s_endpgm")
    E.c("fetch each partial once its header is complete, fold it in, keep looking for the rest")
    E.label("L_merge")
    E(f"s_mov_b32 s{sPend}, 14"); E(f"s_mov_b32 s{sNew}, 14"); E(f"s_mov_b32 s{sLd}, 0"); E(f"s_mov_b32 s{sThr}, {hex(f32bits(TM))}")
    E("s_branch L_look1")
    E.label("L_round")
    E(f"s_andn2_b32 s{sNew}, s{sPend}, s{sLd}"); E("s_cbranch_scc1 L_look")
    if prog:
        E.c("all three in flight together: fold each as it lands (counted waits below); otherwise wait here")
        E(f"s_cmp_eq_u32 s{sLd}, 14"); E("s_waitcnt lgkmcnt(0)"); E("s_cbranch_scc1 L_looked")
    E("s_waitcnt vmcnt(0) lgkmcnt(0)")
    E.label("L_looked")
    E(f"s_andn2_b32 s{sPend}, s{sPend}, s{sLd}")
    for x in range(1, 4):
        E(f"s_bitcmp1_b32 s{sLd}, {x}"); E(f"s_cbranch_scc0 L_fold{x}")
        if prog and x > 1: E(f"s_cmp_lg_u32 s{sNew}, 0"); E(f"s_cbranch_scc1 L_in{x}")
        if prog: E(f"s_waitcnt vmcnt({4*(3-x)})"); E.label(f"L_in{x}")
        E(f"v_sub_f32 v{bb}, v{vNM}, v{ml(x)}")
        E(f"v_cmp_lt_f32 vcc, s{sThr}, v{bb}"); E(f"s_cbranch_vccnz L_far{x}")
        E.label(f"L_near{x}")
        E(f"v_exp_f32 v{bb}, v{bb}")
        for q in range(2):
            r = dat(x) + 8 * q
            for i in range(8): E(f"v_lshlrev_b32 v{u0+2*i}, 16, v{r+i}")
            for i in range(8): E(f"v_and_b32 v{u0+2*i+1}, 0xffff0000, v{r+i}")
            for i in range(8):
                d = vO + 2 * (8 * q + i)
                E(f"v_pk_fma_f32 {vr(d,2)}, {vr(u0+2*i,2)}, {vr(bb,2)}, {vr(d,2)} op_sel_hi:[1,0,1]")
        E(f"v_fmac_f32 v{vHd+1}, v{ml(x)+1}, v{bb}")
        E.label(f"L_fold{x}")
    if stamps: E("s_add_u32 s99, s99, 1")
    E(f"s_mov_b32 s{sLd}, s{sNew}")
    E(f"s_cmp_lg_u32 s{sPend}, 0"); E("s_cbranch_scc1 L_round")
    E.label("L_merged")
    for i in (2, 3, 4): stampE(i)
    if diags:
        E("s_memrealtime s[86:87]")
        E(f"buffer_load_dwordx2 {vr(vT2,2)}, off, {srd(sDBG)}, 0 offset:128 sc0 sc1"); E("s_waitcnt vmcnt(0) lgkmcnt(0)")
        E(f"v_readfirstlane_b32 s88, v{vT2}"); E(f"v_readfirstlane_b32 s89, v{vT2+1}"); E("s_nop 3"); E("s_not_b32 s89, s89")
        E("s_sub_u32 s88, s88, s89"); E("s_sub_u32 s86, s86, s89")
        E(f"s_cmp_gt_u32 s{86 if diagm else 88}, {diags}"); E("s_cbranch_scc0 L_dx")
        E(f"v_cvt_f32_u32 v{vHd+1}, s{86 if diagm else 88}"); E(f"v_rcp_f32 v{vHd+1}, v{vHd+1}"); E("s_nop 1")
        for i in range(32): E(f"v_mov_b32 v{vO+i}, 1.0")
        E.label("L_dx")
    E(f"v_rcp_f32 v{bb}, v{vHd+1}")
    E(f"v_and_b32 v{vTmp}, 15, v{vLane}"); E(f"v_lshrrev_b32 v{vTmp+1}, 4, v{vLane}")
    E(f"v_lshlrev_b32 v{vTmp}, 8, v{vTmp}"); E(f"v_lshl_add_u32 v{vTmp}, v{vTmp+1}, 4, v{vTmp}")
    E(f"s_lshl_b32 s{sT}, s{sWave}, 12")
    for u in range(4):
        for i in range(4 * u, 4 * u + 4): E(f"v_pk_mul_f32 {vr(vO+2*i,2)}, {vr(vO+2*i,2)}, {vr(bb,2)} op_sel_hi:[1,0]")
        for i in range(4 * u, 4 * u + 4): E(f"v_cvt_pk_bf16_f32 v{vS+i}, v{vO+2*i}, v{vO+2*i+1}")
        E(f"buffer_store_dwordx4 {vr(vS+4*u,4)}, v{vTmp}, {srd(sOUT)}, s{sT} offen offset:{u*64} {outf}")
    if pollmax:
        E(f"s_sub_u32 s{sT}, {SPIN}, s{sSpin}"); E(f"s_cmp_gt_u32 s{sT}, 6"); E("s_cbranch_scc0 L_done")
        E("s_mov_b64 exec, 1"); E(f"v_mov_b32 v{vAt}, s{sT}"); E(f"s_mov_b32 s{sT2}, 0x23000000")
        E(f"buffer_atomic_umax v{vAt}, off, {srd(sWS)}, s{sT2}")
        E(f"v_mov_b32 v{vFl}, 1"); E(f"buffer_atomic_add v{vFl}, off, {srd(sWS)}, s{sT2} offset:4")
    E.label("L_done")
    if stamps:
        E("s_waitcnt vmcnt(0)")
        stampE(5)
        E(f"s_lshl2_add_u32 s{sT}, s{sPair}, s{sSplit}"); E(f"s_lshl2_add_u32 s{sT}, s{sT}, s{sWave}"); E(f"s_lshl_b32 s{sT2}, s{sT}, 4")
        E(f"s_lshl_b32 s4, s{sT}, 8"); E("s_add_u32 s4, s4, 0x22000000")
        E(f"s_add_u32 s{sT2}, s{sT2}, 0x20000000")
        E(f"s_lshl_b32 s{sT}, s{sT}, 6"); E(f"s_add_u32 s{sT}, s{sT}, 0x21000000")
        E("s_waitcnt lgkmcnt(0)")
        E(f"v_accvgpr_read_b32 v60, a255")
        for i in range(12): E(f"v_mov_b32 v{16+i}, s{84+i}")
        E(f"v_mov_b32 v28, s101"); E("s_getreg_b32 s5, hwreg(HW_REG_XCC_ID)"); E("v_mov_b32 v29, s5"); E(f"v_mov_b32 v30, s100"); E("v_mov_b32 v31, s99")
        E("v_mov_b32 v32, s84"); E("v_mov_b32 v33, s85"); E("v_mov_b32 v34, s94"); E("v_mov_b32 v35, s95")
        E(f"buffer_store_dword v60, v{vL4}, {srd(sWS)}, s4 offen sc0 sc1")
        E("s_mov_b64 exec, 1")
        E(f"buffer_store_dwordx4 v[32:35], off, {srd(sWS)}, s{sT2} sc0 sc1")
        for i in range(4): E(f"buffer_store_dwordx4 v[{16+4*i}:{19+4*i}], off, {srd(sWS)}, s{sT} offset:{16*i} sc0 sc1")
    E.label("L_end")
    E("s_endpgm")

    E.label("L_look")
    E(poll)
    E(f"s_sub_u32 s{sSpin}, s{sSpin}, 1"); E("s_cbranch_scc1 L_merged")
    E.label("L_look1")
    E("s_waitcnt vmcnt(0) lgkmcnt(0)")
    for t in ready(sT2): E(t)
    E(f"s_and_b32 s{sT2}, s{sT2}, s{sNew}"); E(f"s_or_b32 s{sT}, s{sT2}, s{sLd}"); E("s_cbranch_scc0 L_look")
    E(f"s_mov_b32 s{sNew}, s{sT2}")
    for x in range(1, 4):
        E(f"s_bitcmp1_b32 s{sNew}, {x}"); E(f"s_cbranch_scc0 L_get{x}")
        for t in pl_[4*(x-1):4*x] + spreadh[2*(x-1):2*x]: E(t)
        E.label(f"L_get{x}")
    E("s_branch L_looked")
    def scale_O(r):
        for i in range(16): E(f"v_pk_mul_f32 {vr(vO+2*i,2)}, {vr(vO+2*i,2)}, {vr(r,2)} op_sel_hi:[1,0]")
    for x in range(1, 4):
        E.label(f"L_far{x}")
        E.c("that partial's reference max is far above ours: move ours up first")
        E(f"v_max_f32 v{vMx}, 0, v{bb}"); E(f"v_sub_f32 v{vNM}, v{vNM}, v{vMx}"); E(f"v_sub_f32 v{bb}, v{bb}, v{vMx}")
        E(f"v_exp_f32 v{vTmp}, -v{vMx}"); E("s_nop 0"); E(f"v_mul_f32 v{vHd+1}, v{vHd+1}, v{vTmp}")
        scale_O(vTmp)
        E(f"s_branch L_near{x}")

    E.label("L_k2v")
    unit_offs(E, None, None); set_base(E, sVb)
    E(f"s_cmp_lg_u32 s{sW0}, 0"); E("s_cbranch_scc0 L_k1")
    if diags:
        E("s_mov_b64 exec, 1"); E(f"v_mov_b32 v{vTmp}, s84"); E(f"v_not_b32 v{vTmp+1}, v{vTmp}")
        E(f"buffer_atomic_umax v{vTmp}, off, {srd(sDBG)}, 0 offset:128"); E(f"buffer_atomic_umax v{vTmp+1}, off, {srd(sDBG)}, 0 offset:132"); E("s_mov_b64 exec, -1")
    E(f"buffer_load_dword v{vFl}, off, {srd(sDBG)}, 0 offset:4 {flagf}")
    E("s_branch L_k1")

    E.label("L_vdisp")
    E(f"s_sub_u32 s{sCnt}, s{sCnt}, 1"); E(f"s_cselect_b32 s{sMode}, 0, s{sMode}"); E("s_cbranch_scc1 L_V_")
    E(f"s_cmp_eq_u32 s{sMode}, 1"); E("s_cbranch_scc1 L_Vf_"); E("s_branch L_Vs_")
    E.label("L_rdisp")
    E(f"s_cmp_eq_u32 s{sMode}, 1"); E("s_cbranch_scc1 L_restf_"); E("s_branch L_rests_")
    E.c("progress counts: read the last one, arm the next one")
    E.label("L_ctl")
    E(f"v_readfirstlane_b32 s{sG}, v{vTmp}"); E(f"s_mov_b32 s{sAt}, 0")
    if ua: E(f"v_mov_b32 v{vAo}, 0x40000000")
    E(f"s_cmp_eq_u32 s{sJ}, 16"); E("s_nop 1"); E("s_cbranch_scc1 L_last")
    if jo < 15:
        E.c("order within the pair: let the workgroups that will hand over finish ahead of the one that merges")
        E(f"s_cmp_eq_u32 s{sJ}, {jo+1}"); E("s_cbranch_scc0 L_noto")
        for o, ch in enumerate(om):
            if ch != "-":
                E(f"s_cmp_eq_u32 s{sG}, {o}"); E(f"s_cselect_b32 s{sMode}, {dict(n=0, f=1, s=2)[ch]}, s{sMode}"); E(f"s_cselect_b32 s{sCnt}, 7, s{sCnt}")
        E("s_branch L_v0")
        E.label("L_noto")
    E(f"s_bitcmp1_b32 {hex(sum(1 << (x + 1) for x in sig))}, s{sJ}"); E("s_cbranch_scc0 L_arm")
    if stamps: E("s_lshl_b32 s101, s101, 8"); E(f"s_or_b32 s101, s101, s{sG}")
    E.c("rank among the workgroups of this count -> how many units to run with more (late) or fewer (early) loads in flight")
    def enc(tb):
        assert len(tb) == 16
        v = sum(((8 | -d) if d < 0 else d) << (4 * i) for i, d in enumerate(tb)); return v & 0xffffffff, v >> 32
    for n in range(len(sig) - 1):
        lo, hi = enc(tabs[n])
        if n == 0: E(f"s_mov_b32 s4, {hex(lo)}"); E(f"s_mov_b32 s5, {hex(hi)}")
        else: E(f"s_cmp_eq_u32 s{sJ}, {sig[n]+1}"); E(f"s_cselect_b32 s4, {hex(lo)}, s4"); E(f"s_cselect_b32 s5, {hex(hi)}, s5")
    if len(sig) > 1:
        sh = int(math.log2(256 // shards)) - 4
        E(f"s_lshr_b32 s{sT}, s{sG}, {sh}"); E(f"s_min_u32 s{sT}, s{sT}, 15"); E(f"s_lshl_b32 s{sT}, s{sT}, 2"); E(f"s_lshr_b64 s[4:5], s[4:5], s{sT}")
        E(f"s_and_b32 s{sCnt}, s4, 7"); E("s_bitcmp1_b32 s4, 3"); E(f"s_cselect_b32 s{sMode}, 2, 1")
    E.label("L_arm")
    E(f"s_bitcmp1_b32 {hex(sum(1 << x for x in sig))}, s{sJ}"); E(f"s_cselect_b32 s{sAt}, s{sW0}, 0")
    if ua: E(f"s_cmp_lg_u32 s{sAt}, 0"); E(f"s_cselect_b32 s{sT}, 0, 0x40000000"); E(f"v_writelane_b32 v{vAo}, s{sT}, 0")
    E(f"s_mul_i32 s{sT}, s{sJ}, {shards}"); E(f"s_add_u32 s{sT}, s{sT}, s{sShard}"); E(f"s_and_b32 s{sT}, s{sT}, 63")
    E(f"s_lshl_b32 s{sT}, s{sT}, {cstride}"); E(f"s_add_u32 s{sT}, s{sT}, 4"); E(f"s_lshl_b32 s{sT2}, s{sPair}, {cstride}")
    E(f"s_cmp_eq_u32 s{sJ}, {jo}"); E(f"s_cselect_b32 s{sT}, s{sT2}, s{sT}"); E(f"s_add_u32 s{sCoff}, s{sT}, {WS_CTR}")
    assert len(set((x * shards + h) % 64 for x in sig[:-1] for h in range(shards))) == shards * (len(sig) - 1)
    E.c("before the first count: wave 0 checks that the counters are live")
    E(f"s_cmp_eq_u32 s{sJ}, {jr}"); E(f"s_cselect_b32 s{sT}, s{sW0}, 0"); E(f"s_cmp_lg_u32 s{sT}, 0"); E("s_cbranch_scc0 L_v0")
    def zero_counters():
        E(f"v_lshlrev_b32 v{vTmp}, {cstride}, v{vLane}"); E(f"v_mov_b32 v{vCk}, 0"); E(f"v_mov_b32 v{vFl}, 0"); E(f"s_mov_b32 s{sT}, {WS_CTR}")
        E(f"buffer_atomic_swap_x2 {vr(vCk,2)}, v{vTmp}, {srd(sWS)}, s{sT} offen sc0")
    E(f"v_readfirstlane_b32 s{sT}, v{vFl}"); E("s_mov_b64 exec, 1"); E("s_nop 2")
    E(f"s_cmp_lg_u32 s{sT}, 0"); E("s_cbranch_scc1 L_live")
    E.c("not seen live yet: claim the job if it is free, otherwise wait for the (running) workgroup that holds it")
    E(f"v_mov_b32 v{vFl}, 1")
    E(f"buffer_atomic_add v{vFl}, off, {srd(sDBG)}, 0 sc0")
    E("s_waitcnt vmcnt(0)"); E(f"v_readfirstlane_b32 s{sT}, v{vFl}"); E("s_nop 3")
    E(f"s_cmp_eq_u32 s{sT}, 0"); E("s_cbranch_scc0 L_flag")
    E("s_mov_b64 exec, -1"); zero_counters(); E("s_mov_b64 exec, 1")
    E("s_waitcnt vmcnt(0)"); E(f"v_mov_b32 v{vFl}, 1")
    E(f"buffer_atomic_or v{vFl}, off, {srd(sDBG)}, 0 offset:4")
    E("s_branch L_live")
    E.label("L_flag")
    E(f"v_mov_b32 v{vFl}, 0")
    E(f"buffer_atomic_or v{vFl}, off, {srd(sDBG)}, 0 offset:4 sc0")
    E("s_waitcnt vmcnt(0)"); E(f"v_readfirstlane_b32 s{sT}, v{vFl}"); E(f"s_sub_u32 s{sSpin}, s{sSpin}, 1"); E("s_cbranch_scc1 L_live"); E("s_nop 2")
    E(f"s_cmp_lg_u32 s{sT}, 0"); E("s_cbranch_scc0 L_flag")
    E.label("L_live")
    if not nolocal:
        E.c("note this workgroup's XCD in the pair's word")
        E(f"s_lshl_b32 s{sT}, 1, s{sXc}"); E(f"v_mov_b32 v{vFl}, s{sT}"); E(f"s_lshl_b32 s{sT}, s{sPair}, {cstride}"); E(f"s_add_u32 s{sT}, s{sT}, {WS_CTR}")
        E(f"buffer_atomic_add v{vFl}, off, {srd(sWS)}, s{sT}")
    E("s_mov_b64 exec, -1")
    E("s_branch L_v0")

    def tree(lo, hi, reg, pre, leaf):
        if lo == hi: leaf(lo); return
        mid = (lo + hi + 1) // 2
        E(f"s_cmp_ge_u32 s{reg}, {mid}"); E(f"s_cbranch_scc1 {pre}{mid}_{hi}")
        tree(lo, mid - 1, reg, pre, leaf)
        E.label(f"{pre}{mid}_{hi}")
        tree(mid, hi, reg, pre, leaf)
    E.label("L_restore")
    def rleaf(j1):
        b = 17 * (j1 - 1)
        E(f"v_accvgpr_read_b32 v{vMx}, a{b+16}")
        for i in range(16): E(f"v_accvgpr_read_b32 v{vS+i}, a{b+i}")
        E(f"v_cmp_neq_f32 vcc, v{vMx}, v{vMO}"); E("s_cbranch_vccz L_restored"); E("s_branch L_oldref")
    tree(1, npf - 1, sJ, "L_r", rleaf)
    E.c("this tile's P used a newer reference max than O holds: bring O up to it")
    E.label("L_oldref")
    E(f"v_sub_f32 v{vTmp}, v{vMx}, v{vMO}"); E(f"v_exp_f32 v{vTmp}, v{vTmp}"); E(f"v_mov_b32 v{vMO}, v{vMx}")
    scale_O(vTmp)
    E("s_branch L_restored")
    for tag in "E":
        E.label(f"L_oldref{tag}")
        E(f"v_sub_f32 v{vTmp}, v{vNM}, v{vMO}"); E(f"v_exp_f32 v{vTmp}, v{vTmp}"); E("s_nop 0")
        scale_O(vTmp)
        E(f"s_branch L_newref{tag}")
    E.label("L_save")
    def sleaf(i1):
        if i1 >= 2:
            for t in save_ops(i1 - 2): E(t)
        E("s_branch L_saved")
    tree(1, npf, sI, "L_s", sleaf)

    E.c("rare path: the running max rose past the threshold -> move the reference to the true running max")
    for tag, n in (("K", 32),):
        E.label(f"L_rescale{tag}")
        for sw in ("v_permlane32_swap_b32", "v_permlane16_swap_b32"):
            E(f"v_mov_b32 v{vTmp}, v{vMx}"); E("s_nop 1"); E(f"{sw} v{vTmp}, v{vMx}"); E("s_nop 1"); E(f"v_max_f32 v{vMx}, v{vMx}, v{vTmp}")
        E(f"v_max_f32 v{vTmp}, 0, v{vMx}"); E(f"v_max_f32 v{vT2}, s{sFlo}, v{vMx}")
        E(f"v_exp_f32 v{vTmp}, -v{vTmp}")
        E(f"s_mov_b32 s{sThr}, {hex(f32bits(T))}"); E(f"s_mov_b32 s{sFlo}, 0")
        for r in [vNM, vNM + 2] + [vS + i for i in range(0, n, 2)]:
            E(f"v_pk_add_f32 {vr(r,2)}, {vr(r,2)}, {vr(vT2,2)} op_sel_hi:[1,0] neg_lo:[0,1] neg_hi:[0,1]")
        E(f"v_pk_mul_f32 {vr(vL,2)}, {vr(vL,2)}, {vr(vTmp,2)} op_sel_hi:[1,0]")
        if tag != "K": scale_O(vTmp)
        E(f"s_branch L_rescaled{tag}")

    E.c("workgroup 0, wave 0: zero the 64 ticket counters in d_ws, then raise the flag in d_debug")
    E.label("L_hookK")
    E(f"s_cmp_eq_u32 s{sI}, 1"); E("s_cbranch_scc1 L_hk1")
    E(f"s_cmp_eq_u32 s{sI}, 3"); E("s_cbranch_scc0 L_k1")
    E("s_mov_b64 exec, 1"); E(f"v_mov_b32 v{vFl}, 1")
    E(f"buffer_atomic_or v{vFl}, off, {srd(sDBG)}, 0 offset:4")
    E("s_mov_b64 exec, -1"); E("s_branch L_k1")
    E.label("L_hk1")
    E(f"v_readfirstlane_b32 s{sT}, v{vFl}"); E("s_nop 3")
    E(f"s_cmp_eq_u32 s{sT}, 0"); E(f"s_cselect_b32 s{sHk}, 3, 0"); E("s_cbranch_scc0 L_k1")
    zero_counters()
    E("s_branch L_k1")

    code = pro.text() + kbody + vbody + hbody + [x["t"] for x in E.I if "mark" not in x] + ["L_codeend:"]
    code = "\n".join(code).split("\n")
    if nocomp:
        kill = ("v_fma_mix", "v_cvt_pk", "v_mfma", "v_exp", "v_pk_", "v_max3", "ds_write2", "ds_write_b128", "ds_read_b128", "v_accvgpr_write_b32 a1", "v_accvgpr_read_b32 v9", "v_accvgpr_read_b32 v10", "s_cbranch_vccnz L_resc")
        a0 = code.index("L_K:"); a1 = code.index("L_round:"); c2 = []
        for i, l in enumerate(code):
            if a0 < i < a1:
                if l.strip().startswith(kill): continue
                if "lgkmcnt" in l:
                    l = "    s_waitcnt lgkmcnt(0)"
                    if c2[-1] == l: continue
            c2.append(l)
        code = c2
    if abl:
        a0 = code.index("L_last:"); a1 = code.index("L_merged:"); c2 = []
        for i, l in enumerate(code):
            if a0 < i < a1:
                if abl & 1 and "buffer_store" in l: continue
                if abl & 2 and "buffer_load" in l: continue
                if "s_cbranch_scc1 L_miss" in l: continue
                if abl & 2 and "vmcnt" in l: l = "    s_waitcnt vmcnt(0)"
            c2.append(l)
        code = c2
    if align: code = align_pass(code)
    if not nocomp and not abl: hazard_check(code)
    L = [HDR.rstrip(), f"; @launch grid=(256,1,1) block=(256,1,1) lds={LDS_TOTAL}", '.amdgcn_target "amdgcn-amd-amdhsa--gfx950"',
         ".text", f".globl {NAME}_kernel", ".p2align 8", f".type {NAME}_kernel,@function", f"{NAME}_kernel:"]
    L += code
    L += ['.section .rodata,"a"', ".p2align 6", f".amdhsa_kernel {NAME}_kernel",
          "  .amdhsa_next_free_vgpr 512", "  .amdhsa_next_free_sgpr 102", "  .amdhsa_accum_offset 256",
          "  .amdhsa_group_segment_fixed_size 0", "  .amdhsa_kernarg_size 80", "  .amdhsa_user_sgpr_count 2",
          "  .amdhsa_user_sgpr_kernarg_segment_ptr 1", "  .amdhsa_system_sgpr_workgroup_id_x 1",
          "  .amdhsa_float_denorm_mode_32 3", "  .amdhsa_float_denorm_mode_16_64 3", ".end_amdhsa_kernel"]
    open(path, "w").write("\n".join(L) + "\n")

if __name__ == "__main__":
    import argparse
    ap = argparse.ArgumentParser()
    ap.add_argument("out")
    for n, t, d in (("AL", int, 7), ("np", int, 14), ("cs", int, 8), ("nK1", int, 7), ("vtail", float, 1.0), ("T", float, 8.0), ("TM", float, 32.0),
                    ("pfcode", int, 4), ("ct", float, 0.9), ("ct0", float, 0.3), ("hv", int, 4), ("hk", float, 0.9), ("hp", int, 4), ("hq", float, 0.9), ("npre", int, 6), ("hst", int, 0), ("nocomp", int, 0), ("abl", int, 0), ("capC", str, None), ("uth", int, 4), ("grp", int, 0), ("flagf", str, ""), ("capF", str, "7"), ("capS", str, "45"), ("tabs", str, "edcbba0001122345,cbbaaa0000112223"), ("ms", str, "5,11"), ("shards", int, 8), ("shb", int, 3), ("ldf", str, "sc0 sc1"), ("wb", int, 0), ("wto", int, 0), ("nolocal", int, 1), ("pb", int, 100), ("jr", int, 3), ("pa", int, 0), ("pw", int, 1), ("noearly", int, 0), ("diags", int, 0), ("diagm", int, 0), ("p2f", float, -1), ("jo", int, 14), ("chk", int, 0), ("apoll", int, 0), ("gray", int, 0), ("ua", int, 0), ("det", int, 0), ("prog", int, 1), ("om", str, "kkkk"), ("cols", str, "1000,800,4000,2000,100,240,4b0,8044"),
                    ("nt", str, "nt"), ("q", str, ""), ("smf", str, "nt"), ("outf", str, "sc0 sc1"), ("pubf", str, "sc0 sc1"),
                    ("cap", str, "55555556"), ("capV", str, "5555555555555556"), ("capH", str, None), ("capP", str, "8")):
        ap.add_argument("--" + n, type=t, default=d)
    ap.add_argument("--mix", type=lambda x: int(x, 0), default=0)
    for n in ("stamps", "it", "dry", "noalign", "pollmax"): ap.add_argument("--" + n, action="store_true")
    a = ap.parse_args()
    gen(a.out, AL=a.AL, npf=a.np, stamps=a.stamps, nt=a.nt, smf=a.smf, qflag=a.q, cstride=a.cs, T=a.T, TM=a.TM, mix=a.mix, nK1=a.nK1, vtail=a.vtail,
        itst=a.it, outf=a.outf, pubf=a.pubf, cap=a.cap, capV=a.capV, capH=a.capH, capP=a.capP, pfcode=a.pfcode, ctspan=a.ct, ct0=a.ct0,
        hv=a.hv, hk=a.hk, hp=a.hp, hq=a.hq, npre=a.npre, dry=a.dry, hst=a.hst, align=not a.noalign, nocomp=a.nocomp, abl=a.abl, capC=a.capC, uth=a.uth, pollmax=a.pollmax, grp=a.grp, flagf=a.flagf, capF=a.capF, capS=a.capS, tabs=[[(int(c) if c.isdigit() else -(ord(c) - 96)) for c in t] for t in a.tabs.split(',')], ms=tuple(int(x) for x in a.ms.split(',') if x), shards=a.shards, shb=a.shb, ldf=a.ldf, wb=a.wb, wto=a.wto, nolocal=a.nolocal, pb=a.pb, jr=a.jr, pa=a.pa, pw=a.pw, noearly=a.noearly, diags=a.diags, diagm=a.diagm, p2f=a.p2f, jo=a.jo, chk=a.chk, apoll=a.apoll, gray=a.gray, ua=a.ua, det=a.det, prog=a.prog, om=a.om.replace('k', '-'), cols=[int(x, 16) << 12 for x in a.cols.split(',')])
```

```python
import sys, struct, math, re
NAME = "standalone__kv_cache_quant_int4_int2_kv_with_per_channel_or_per_token_scales__sampling"
HDR = open("cdna_kernels/" + NAME + ".s.ref").read().split("; Override launch")[0]

def f32bits(x):
    return struct.unpack("<I", struct.pack("<f", x))[0]

def cost_of(s):
    op = s.split()[0]
    if op.startswith("v_mfma"): return 8
    if op in ("v_exp_f32", "v_rcp_f32"): return 8
    if op in ("ds_write_b128", "ds_write2_b64"): return 28
    if op.startswith("ds_write"): return 20
    if op == "s_barrier": return 70
    if op == "s_nop": return 4 * (int(s.split()[1]) + 1)
    return 4

class Stream:
    def __init__(self): self.I = []; self.lock = False; self.nds = 0
    def __call__(self, s, cost=None):
        self.I.append(dict(t="    " + s, c=(cost_of(s) if cost is None else cost), ins=not self.lock))
        if s.startswith("ds_"): self.nds += 1
        return self.nds
    def waitds(self, i):
        n = self.nds - i; assert 0 <= n <= 15
        self(f"s_waitcnt lgkmcnt({n})")
    def label(self, s): self.I.append(dict(t=s + ":", c=0, ins=not self.lock))
    def c(self, s): self.I.append(dict(t="    ; " + s, c=0, ins=not self.lock))
    def mark(self, kind, k=None): self.I.append(dict(mark=kind, k=k, c=0, ins=not self.lock))
    def text(self): return [x["t"] for x in self.I]

INLINE = re.compile(r"^-?(\d+|0x[0-9a-f]+)$")
def has_literal(ops):
    for o in ops:
        if INLINE.match(o):
            v = int(o, 0)
            if not -16 <= v <= 64 and (v & 0x7fffffff) not in (0x3f000000, 0x3f800000, 0x40000000, 0x40800000): return True
        elif re.match(r"^L_\w+-L_\w+$", o): return True
    return False
VOP12 = ("v_mov_b32", "v_exp_f32", "v_rcp_f32", "v_add_f32", "v_sub_f32", "v_mul_f32", "v_max_f32", "v_min_f32", "v_lshlrev_b32", "v_lshrrev_b32", "v_and_b32",
         "v_xor_b32", "v_add_u32", "v_mul_u32_u24", "v_min_u32", "v_max_u32", "v_fmac_f32", "v_cvt_f32_u32", "v_not_b32")
def isize(line):
    s = line.split(";")[0].strip()
    if not s or s.endswith(":") or s.startswith("."): return 0, None
    op, _, rest = s.partition(" ")
    ops = [o.strip() for o in rest.split(",")] if rest else []
    if op.startswith(("s_load", "s_memrealtime", "ds_", "buffer_")): return 8, None
    if op.startswith("s_"):
        if op in ("s_waitcnt", "s_nop", "s_barrier", "s_endpgm", "s_branch", "s_getreg_b32") or op.startswith("s_cbranch"): return 4, None
        return (8 if has_literal(ops) else 4), None
    if op in ("v_cndmask_b32", "v_readfirstlane_b32", "v_permlane32_swap_b32", "v_permlane16_swap_b32"): return 4, None
    if op.startswith("v_cmp"):
        return (4 + 4 * has_literal(ops[1:]) if ops[0] == "vcc" else 8), None
    if op in VOP12:
        if any(o.startswith("-v") for o in ops): return 8, "valu"
        if has_literal(ops[1:]): return 8, "valu"
        return 4, "grow"
    if op.startswith("v_mfma"): return 8, None
    return 8, "valu"
def align_pass(L):
    out = []; par = 0; last = None
    for i, line in enumerate(L):
        sz, kind = isize(line)
        if sz == 8 and par and last is not None:
            j = last; op = out[j].split()[0]
            out[j] = out[j].replace(op, op + "_e64", 1); par = 0
        elif sz == 8 and par:
            n = 0
            for l2 in L[i:]:
                s2, k2 = isize(l2)
                if s2 == 4: break
                n += k2 == "valu"
            if n >= 7: out.append("    s_nop 0"); par = 0
        if sz == 8: last = None
        if sz == 4:
            par ^= 1
            if kind == "grow": last = len(out)
        out.append(line)
    return out

def regs_of(tok):
    m = re.match(r"^-?v\[(\d+):(\d+)\]$", tok)
    if m: return set(range(int(m.group(1)), int(m.group(2)) + 1))
    m = re.match(r"^-?v(\d+)$", tok)
    return {int(m.group(1))} if m else set()
def hazard_check(L):
    hist = []
    for line in L:
        s = line.split(";")[0].strip()
        if not s or s.endswith(":") or s.startswith("."): continue
        op, _, rest = s.partition(" ")
        toks = [o.strip().split(" ")[0] for o in rest.split(",")] if rest else []
        if op in ("s_branch", "s_endpgm"): hist = []; continue
        st = int(toks[0]) + 1 if op == "s_nop" else 1
        allr = [regs_of(t) for t in toks]
        isv = op.startswith("v_"); mf = op.startswith("v_mfma")
        store = op.startswith(("ds_write", "buffer_store", "buffer_atomic"))
        dst = set() if (store or not allr or op.startswith(("v_cmp", "v_readfirstlane"))) else allr[0]
        src = set().union(*(allr if store or op.startswith(("v_cmp", "v_permlane", "v_fmac")) else allr[1:])) if allr else set()
        if op.startswith("v_permlane"): dst = src
        d = 0
        for (pop, pdst, psrcC, pst) in reversed(hist):
            need = 0
            if pop.startswith("v_mfma"):
                if mf:
                    if pdst & (allr[1] | allr[2]): need = 8
                    elif pdst & allr[3] and pdst != allr[3]: need = 6
                elif pdst & (src | dst): need = 8
                elif isv and psrcC & dst: need = 3
            elif pop.startswith("v_"):
                if mf and pdst & src: need = 2
                if (op.startswith("v_permlane") or op.endswith("_dpp")) and pdst & src: need = 2
                if op == "v_readfirstlane_b32" and pdst & src: need = 1
                if pop.split("_e64")[0] in ("v_exp_f32", "v_rcp_f32") and isv and op.split("_e64")[0] not in ("v_exp_f32", "v_rcp_f32") and pdst & src: need = max(need, 1)
                if pop.startswith("v_dot") and op != pop and pdst & (src | dst): need = 3
            elif pop.startswith("buffer_store_dwordx4") and isv and psrcC & dst: need = 2
            assert d >= need, f"hazard: {pop} -> {s} distance {d} < {need}"
            d += pst
            if d >= 8: break
        hist.append((op, dst, (allr[3] if mf else (allr[0] if op.startswith("buffer_store") else set())), st))

def gen(path, AL=8, npf=14, stamps=False, nt="nt", smf="nt", qflag="", cstride=8, T=8.0, TM=32.0, mix=0x31031031, nK1=9, vtail=1.0,
        itst=False, outf="sc0 sc1", pubf="sc0 sc1", cap="56", capV="556", capH=None, capP="8", pfcode=4, ctspan=0.95, ct0=0.15,
        hv=4, hk=0.9, hp=4, hq=0.9, npre=6, dry=False, hst=0, align=True, nocomp=0, abl=0, capC=None, uth=4, pollmax=False, grp=0, flagf='', capF='7', capS='45', tabs=None, ms=(5, 11), shards=4, shb=3, cols=None, ldf='sc0 sc1', wb=False, wto=0, nolocal=False, pb=100, jr=3, pa=1, pw=1, noearly=0, diags=0, diagm=0, p2f=-1, jo=15, om='----', chk=-1, apoll=0, gray=0, ua=0, det=0, prog=1, pbar=0, rtmap=0, fullo=1, tw=0, twf='nt'):
    npf = 16
    capn = lambda c, k: int(c[k % len(c)], 16) - 1
    KROW = 288; JS = 576; OS = 2320
    TABW = 16 * 256
    LDS_MB = 0; LDS_SC = 256; LDS_TAB = 1536; LDS_K = LDS_TAB + 4 * TABW; LDS_V = LDS_K + 128 * KROW
    LDS_TOTAL = LDS_V + 16 * OS
    assert LDS_K % 256 == 0 and LDS_K + 128 * KROW < 65536 and LDS_TAB % 512 == 0 and TABW % 512 == 0
    WS_SLOT = 1 << 20; WS_CTR = 16 << 20; FLAG = 0x100
    SPIN = 1 << 20
    PF = 8
    vLane, vOff, vMb, vKR, vSW, vSR, vVW, vVR, vTK, vTV, vL4, vLin = range(12)
    vHd = 12
    vCk, vFl = 14, 15
    vL = 16
    vT2 = 18
    vKS, vKC = 20, 24; vKSr, vKZr, vVSr, vVZr = 28, 30, 32, 33
    vTmp = 34
    vMx, vAt, vMO = 37, 38, 39
    vKP = 40; vVP = 48; vO = 64; vS = 96; vRing = 128; vQ = 192; vSt = 208; NST = 10
    vNM = 248; vKW = 252
    vSc = vS + 16
    vAo = vL
    sX, sY, sSM, sQ, sDBG, sWS, sOUT = 8, 12, 16, 20, 24, 28, 32
    sKb, sVb = 36, 38
    sPair, sSplit, sI, sJ, sG, sT, sT2, sFlo, sThr, sDoff, sCoff, sIni, sKsl, sVsl, sWb, sPend, sSpin, sW0, sHk, sMode = range(40, 60)
    sAt = 49; sShard = 82; sCnt = 83; sXc = 71
    sO = 60
    sK1, sK2 = 64, 66
    sCw = 72
    sPo = 76
    sWave = 3
    srd = lambda r: f"s[{r}:{r+3}]"
    vr = lambda r, n: f"v[{r}:{r+n-1}]"
    def item_text(k):
        return f"buffer_load_dwordx4 {vr(vRing+4*k,4)}, v{vOff}, {srd(sX if k < 8 else sY)}, s{sO + k//4} offen offset:{(k%4)*1024} {nt}"
    sXm = 101 if not stamps else 59 + 40
    sXm = 2
    def unit_offs(A, idx, slot):
        if idx is None: A(f"s_mov_b32 s{sO}, s{sXm}")
        else:
            if gray == 1: A(f"s_lshr_b32 s{sO}, s{idx}, 1"); A(f"s_xor_b32 s{sO}, s{sO}, s{idx}"); A(f"s_lshl_b32 s{sO}, s{sO}, 16")
            elif gray == 2: A(f"s_brev_b32 s{sO}, s{idx}"); A(f"s_lshr_b32 s{sO}, s{sO}, 12")
            else: A(f"s_lshl_b32 s{sO}, s{idx}, 16")
            A(f"s_xor_b32 s{sO}, s{sO}, s{sXm}")
        A(f"s_add_u32 s{sO+1}, s{sO}, 4096"); A(f"s_xor_b32 s{sO+2}, s{sO}, 0x4000"); A(f"s_xor_b32 s{sO+3}, s{sO+1}, 0x4000")
        if slot is not None: A(f"s_bfe_u32 s{slot}, s{sO}, 0xc0008")
    def set_base(A, b, b2=None):
        if b2 is None: b2 = b
        A(f"s_mov_b64 s[{sX}:{sX+1}], s[{b}:{b+1}]"); A(f"s_mov_b64 s[{sY}:{sY+1}], s[{b2}:{b2+1}]")
    A = Stream()
    A("s_cmp_ge_u32 s2, 256"); A("s_cbranch_scc1 L_end")
    if stamps: A("s_memrealtime s[84:85]"); A("s_mov_b32 s101, 0")
    if diags: A("s_memrealtime s[84:85]")
    A("s_load_dwordx16 s[68:83], s[0:1], 0")
    A("s_load_dwordx4 s[4:7], s[0:1], 64")
    if pfcode:
        A.c("pull this kernel's code into L2 with strided loads (speed only; the values are unused)")
        A("s_getpc_b64 s[92:93]"); A("s_and_b32 s92, s92, 0xffffff00"); A("s_mov_b32 s94, L_codeend-L_pf"); A("s_mov_b32 s95, 0x20000")
        A.label("L_pf")
        A(f"v_lshlrev_b32 v{vTmp}, 7, v0")
        A(f"s_lshr_b32 s{sT2}, s2, 3"); A(f"s_and_b32 s{sT2}, s{sT2}, {pfcode-1}"); A(f"s_cselect_b32 s94, 0, s94")
        A(f"buffer_load_dword v{vTmp}, v{vTmp}, s[92:95], 0 offen")
    A("v_lshrrev_b32 v1, 6, v0")
    A(f"v_and_b32 v{vLane}, 63, v0")
    A(f"v_readfirstlane_b32 s{sWave}, v1")
    A(f"s_bfe_u32 s{sIni}, s2, {hex((int(math.log2(shards)) << 16) | shb)}")
    A.c("workgroup id -> (pair, split) and the order in which it walks its token groups: a bijection (placement affects speed only)")
    A(f"s_lshl_b32 s{sT2}, s2, 20")
    for i, c in enumerate(cols):
        x = c ^ (1 << (20 + i))
        if x: A(f"s_bitcmp1_b32 s2, {i}"); A(f"s_cselect_b32 s{sT}, {hex(x)}, 0"); A(f"s_xor_b32 s{sT2}, s{sT2}, s{sT}")
    if mix:
        A(f"s_lshr_b32 s{sT}, s2, 3"); A(f"s_and_b32 s{sT}, s{sT}, 7"); A(f"s_lshl_b32 s{sT}, s{sT}, 2")
        A(f"s_lshr_b32 s{sT}, {hex(mix)}, s{sT}"); A(f"s_and_b32 s{sT}, s{sT}, 3"); A(f"s_and_b32 s{sT}, s{sT}, s2")
        A(f"s_bcnt1_i32_b32 s{sT}, s{sT}"); A(f"s_and_b32 s{sT}, s{sT}, 1"); A(f"s_lshl_b32 s{sT}, s{sT}, 22"); A(f"s_xor_b32 s{sT2}, s{sT2}, s{sT}")
    def idmap(w):
        v = 0
        for i, c in enumerate(cols):
            if w >> i & 1: v ^= c
        if mix: v ^= (bin((mix >> (4 * ((w >> 3) & 7))) & 3 & w).count("1") & 1) << 22
        return v
    assert len(set(idmap(w) >> 20 for w in range(256))) == 256 and all(idmap(w) & ~0xfff4000 == 0 for w in range(256)) and idmap(0) == 0
    if rtmap:
        A("s_waitcnt lgkmcnt(0)"); A(f"s_lshl_b32 s{sT}, s2, 2"); A(f"s_add_u32 s90, s6, 0x24000000"); A("s_addc_u32 s91, s7, 0")
        A(f"s_load_dword s{sT2}, s[90:91], s{sT}"); A("s_waitcnt lgkmcnt(0)")
    A(f"s_mov_b32 s{sMode}, s2")
    A(f"s_lshr_b32 s{sPair}, s{sT2}, 22"); A(f"s_bfe_u32 s{sSplit}, s{sT2}, 0x20014"); A(f"s_and_b32 s{sXm}, s{sT2}, 0x3fffff")
    c_, h_, m_, g_ = vKS, vKS + 1, vKS + 2, vKS + 3
    t0, t1, vQo = vKC, vKC + 1, vKC + 2
    A(f"v_and_b32 v{c_}, 31, v{vLane}"); A(f"v_lshrrev_b32 v{h_}, 5, v{vLane}")
    A(f"v_and_b32 v{m_}, 15, v{vLane}"); A(f"v_lshrrev_b32 v{g_}, 4, v{vLane}")
    A(f"v_lshlrev_b32 v{vLin}, 4, v{vLane}"); A(f"v_lshlrev_b32 v{vL4}, 2, v{vLane}")
    A(f"s_and_b32 s{sT}, s{sWave}, 1"); A(f"s_lshl_b32 s{sT}, s{sT}, 13")
    A(f"s_lshr_b32 s{sT2}, s{sWave}, 1"); A(f"s_lshl_b32 s{sT2}, s{sT2}, 15"); A(f"s_add_u32 s{sWb}, s{sT}, s{sT2}")
    A(f"v_add_u32 v{vOff}, s{sWb}, v{vLin}")
    A(f"v_lshlrev_b32 v{vQo}, 8, v{m_}"); A(f"v_lshl_add_u32 v{vQo}, v{g_}, 4, v{vQo}")
    for i in range(2): A(f"v_mov_b32 v{vVP+i}, -1")
    A(f"v_lshlrev_b32 v{vVP+2}, 3, v{vLane}")
    def own_slot(A):
        A(f"s_lshl2_add_u32 s{sT}, s{sPair}, s{sWave}"); A(f"s_lshl2_add_u32 s{sT}, s{sT}, s{sSplit}")
        A(f"s_lshl_b32 s{sT}, s{sT}, 13"); A(f"s_add_u32 s{sT}, s{sT}, {WS_SLOT}"); A(f"s_add_u32 s{sT2}, s{sT}, 4096")
    A(f"s_mul_i32 s{sG}, s{sWave}, {TABW}"); A(f"s_add_u32 s{sG}, s{sG}, {LDS_TAB}"); A(f"s_mov_b32 m0, s{sG}")
    own_slot(A)
    for r in (sX, sY): A(f"s_mov_b32 s{r+2}, {0 if dry else 0x400000}"); A(f"s_mov_b32 s{r+3}, 0x20000")
    A(f"s_mov_b32 s{sWS+2}, 0x40000000"); A(f"s_mov_b32 s{sWS+3}, 0x20000")
    A(f"s_lshl_b32 s{sT}, s{sPair}, 22")
    A(f"s_mov_b32 s{sDBG+2}, 256"); A(f"s_mov_b32 s{sDBG+3}, 0x20000"); A(f"v_mov_b32 v{vFl}, 1")
    unit_offs(A, None, sVsl); A(f"s_andn2_b32 s{sKsl}, s{sVsl}, 255")
    for r in (sSM, sQ, sOUT): A(f"s_mov_b32 s{r+2}, 0x4000"); A(f"s_mov_b32 s{r+3}, 0x20000")
    A(f"s_lshl_b32 s{sPend}, s{sPair}, 14")
    A("s_waitcnt lgkmcnt(0)")
    def mk(r, p): A(f"s_add_u32 s{r}, s{p}, s{sPend}"); A(f"s_addc_u32 s{r+1}, s{p+1}, 0")
    A(f"s_add_u32 s{sKb}, s70, s{sT}"); A(f"s_addc_u32 s{sKb+1}, s71, 0")
    set_base(A, sKb)
    for k in range(npre): A(item_text(k))
    A(f"s_add_u32 s{sVb}, s72, s{sT}"); A(f"s_addc_u32 s{sVb+1}, s73, 0")
    A.c("wave w streams scale/zero array w (ks, kz, vs, vz) into the LDS table")
    A(f"s_cmp_eq_u32 s{sWave}, 1"); A(f"s_cselect_b64 s[{sSM}:{sSM+1}], s[76:77], s[74:75]")
    A(f"s_cmp_eq_u32 s{sWave}, 2"); A(f"s_cselect_b64 s[{sSM}:{sSM+1}], s[78:79], s[{sSM}:{sSM+1}]")
    A(f"s_cmp_eq_u32 s{sWave}, 3"); A(f"s_cselect_b64 s[{sSM}:{sSM+1}], s[80:81], s[{sSM}:{sSM+1}]")
    mk(sSM, sSM)
    A(f"s_lshl_b32 s{sT}, s{sSplit}, 12")
    nT = (npf + 3) // 4
    for u in range(nT):
        rows = min(4, npf - 4 * u)
        if rows < 4: A(f"s_bfm_b64 exec, {16*rows}, 0")
        A(f"buffer_load_dwordx4 v{vLin}, {srd(sSM)}, s{sT} offen offset:{u*1024} {smf} lds")
        if rows < 4: A("s_mov_b64 exec, -1")
    mk(sQ, 68)
    A(f"s_lshl_b32 s{sT}, s{sWave}, 12")
    for s4 in range(4): A(f"buffer_load_dwordx4 {vr(vQ+4*s4,4)}, v{vQo}, {srd(sQ)}, s{sT} offen offset:{s4*64} {qflag}")
    A.c("mark the header of this wave's hand-off slot empty")
    A(f"s_mov_b64 s[{sWS}:{sWS+1}], s[6:7]")
    A("s_mov_b64 exec, 0xffff")
    A(f"buffer_store_dwordx2 {vr(vVP,2)}, v{vVP+2}, {srd(sWS)}, s{sT2} offen sc0 sc1")
    A("s_mov_b64 exec, -1")
    A.c("workgroup 0 claims the job of zeroing the ticket counters (any workgroup takes it over later if nobody has)")
    A(f"s_mov_b64 s[{sDBG}:{sDBG+1}], s[4:5]")
    A(f"s_cmp_eq_u32 s{sWave}, 0"); A(f"s_cselect_b32 s{sW0}, 1, 0")
    A(f"s_or_b32 s{sT}, s{sMode}, {'1' if noearly else 's%d' % sWave}"); A(f"s_cselect_b32 s{sHk}, 0, 3"); A("s_cbranch_scc1 L_noel")
    A("s_mov_b64 exec, 1")
    A(f"buffer_atomic_add v{vFl}, off, {srd(sDBG)}, 0 sc0")
    A("s_mov_b64 exec, -1")
    A.label("L_noel")
    mk(sOUT, 82)
    A(f"v_lshlrev_b32 v{vTK}, 3, v{c_}")
    A(f"v_lshrrev_b32 v{vTV}, 4, v{c_}"); A(f"v_lshlrev_b32 v{vTV}, 5, v{vTV}")
    A(f"v_and_b32 v{t0}, 15, v{c_}"); A(f"v_add_lshl_u32 v{vTV}, v{vTV}, v{t0}, 1")
    A(f"s_lshr_b32 s{sT}, s{sWb}, 8"); A(f"v_add_u32 v{vTV}, s{sT}, v{vTV}")
    A(f"s_lshr_b32 s{sT}, s{sWave}, 1"); A(f"s_and_b32 s{sT2}, s{sWave}, 1")
    A(f"s_mul_i32 s{sT}, s{sT}, {32*KROW}"); A(f"s_mul_i32 s{sT2}, s{sT2}, {8*KROW}"); A(f"s_add_u32 s{sT}, s{sT}, s{sT2}"); A(f"s_add_u32 s{sT}, s{sT}, {LDS_K}")
    A(f"v_mul_u32_u24 v{vKW}, {4*KROW}, v{h_}"); A(f"v_lshl_add_u32 v{vKW}, v{c_}, 3, v{vKW}"); A(f"v_add_u32 v{vKW}, s{sT}, v{vKW}")
    for u, rows in ((1, 16), (2, 64), (3, 80)): A(f"v_add_u32 v{vKW+u}, {rows*KROW}, v{vKW}")
    A(f"v_mul_u32_u24 v{vKR}, {KROW}, v{m_}"); A(f"v_lshl_add_u32 v{vKR}, v{g_}, 4, v{vKR}")
    A(f"s_mul_i32 s{sT}, s{sWave}, {2*OS}"); A(f"s_add_u32 s{sT}, s{sT}, {LDS_V}")
    A(f"v_mul_u32_u24 v{vVW}, {OS}, v{h_}"); A(f"v_lshl_add_u32 v{vVW}, v{c_}, 4, v{vVW}"); A(f"v_add_u32 v{vVW}, s{sT}, v{vVW}")
    A(f"v_mul_u32_u24 v{vVR}, {OS}, v{g_}"); A(f"v_and_b32 v{t0}, 3, v{m_}"); A(f"v_mul_u32_u24 v{t0}, {JS}, v{t0}")
    A(f"v_lshrrev_b32 v{t1}, 2, v{m_}"); A(f"v_lshlrev_b32 v{t1}, 5, v{t1}")
    A(f"v_add3_u32 v{vVR}, v{vVR}, v{t0}, v{t1}"); A(f"v_add_u32 v{vVR}, {LDS_V}, v{vVR}")
    A(f"s_lshl_b32 s{sT}, s{sWave}, 8"); A(f"s_add_u32 s{sT2}, s{sT}, {LDS_SC}")
    A(f"v_and_b32 v{vSW}, 1, v{c_}"); A(f"v_lshlrev_b32 v{vSW}, 7, v{vSW}")
    A(f"v_lshrrev_b32 v{t0}, 1, v{c_}"); A(f"v_lshl_add_u32 v{vSW}, v{t0}, 3, v{vSW}"); A(f"v_add_u32 v{vSW}, s{sT2}, v{vSW}")
    A(f"v_lshlrev_b32 v{vSR}, 7, v{h_}"); A(f"v_add_u32 v{vSR}, s{sT2}, v{vSR}")
    A(f"v_mov_b32 v{vMb}, {LDS_MB}")
    A(f"s_mov_b32 s{sCoff}, {WS_CTR}")
    cc = math.log2(math.e) / math.sqrt(128.0)
    for i in range(2): A(f"s_mov_b32 s{sK1+i}, {hex(f32bits(cc * 2.0**24))}"); A(f"s_mov_b32 s{sK2+i}, {hex(f32bits(-2.0**-24))}")
    A.c("the first tile always takes the rescale path, which sets the reference to that tile's true row max")
    A(f"s_mov_b32 s{sThr}, 0xff800000"); A(f"s_mov_b32 s{sFlo}, 0xff800000")
    for r in (sAt, sMode, sCnt, sI, sJ): A(f"s_mov_b32 s{r}, 0")
    A(f"s_mov_b32 s{sShard}, s{sIni}")
    if not nolocal: A(f"s_getreg_b32 s{sXc}, hwreg(HW_REG_XCC_ID, 0, 3)"); A(f"s_mul_i32 s{sXc}, s{sXc}, 3"); A(f"s_add_u32 s{sXc}, s{sXc}, 8")
    A(f"s_mov_b32 s{sSpin}, {SPIN}")
    for i in range(32): A(f"v_mov_b32 v{vO+i}, 0")
    for i in range(4): A(f"v_mov_b32 v{vNM+i}, 0")
    A(f"v_mov_b32 v{vMO}, 0x7149f2ca"); A(f"v_mov_b32 v{vL}, 0"); A(f"v_mov_b32 v{vL+1}, 0"); A(f"v_mov_b32 v{vAt}, 0")
    def ktab_reads(S):
        S(f"v_add_u32 v{vTmp+2}, s{sKsl}, v{vTK}")
        S(f"ds_read_b64 {vr(vKSr,2)}, v{vTmp+2} offset:{LDS_TAB}"); S(f"ds_read_b64 {vr(vKZr,2)}, v{vTmp+2} offset:{LDS_TAB+TABW}")
    def vtab_reads(S):
        S(f"v_xor_b32 v{vTmp+2}, s{sVsl}, v{vTV}")
        S(f"ds_read_u16 v{vVSr}, v{vTmp+2} offset:{LDS_TAB+2*TABW}"); S(f"ds_read_u16 v{vVZr}, v{vTmp+2} offset:{LDS_TAB+3*TABW}")
    def prep_v(S):
        S.c("V: S = vs*2^24, C = -vz*vs per token, broadcast through LDS")
        S(f"v_lshlrev_b32 v{vT2}, 16, v{vVSr}"); S(f"v_lshlrev_b32 v{vT2+1}, 16, v{vVZr}")
        S(f"v_mul_f32 v{vT2+1}, -v{vT2+1}, v{vT2}"); S(f"v_mul_f32 v{vT2}, 0x4b800000, v{vT2}")
        S(f"ds_write_b64 v{vSW}, {vr(vT2,2)}")
    def prep_k(S):
        S.c("K: S = ks*c*2^24, C = -kz*ks*c per channel, c = log2(e)/sqrt(128) (the int code is read as an f16 subnormal, code*2^-24)")
        for p in range(2): S(f"v_lshlrev_b32 v{vKS+2*p}, 16, v{vKSr+p}"); S(f"v_lshlrev_b32 v{vKC+2*p}, 16, v{vKZr+p}")
        for p in range(2): S(f"v_and_b32 v{vKS+2*p+1}, 0xffff0000, v{vKSr+p}"); S(f"v_and_b32 v{vKC+2*p+1}, 0xffff0000, v{vKZr+p}")
        for p in range(2): S(f"v_pk_mul_f32 {vr(vKS+2*p,2)}, {vr(vKS+2*p,2)}, s[{sK1}:{sK1+1}]")
        for p in range(2): S(f"v_pk_mul_f32 {vr(vKC+2*p,2)}, {vr(vKC+2*p,2)}, s[{sK2}:{sK2+1}]")
        for p in range(2): S(f"v_pk_mul_f32 {vr(vKC+2*p,2)}, {vr(vKC+2*p,2)}, {vr(vKS+2*p,2)}")
    def sc_lo_reads(S):
        for i in range(4): S(f"ds_read_b128 {vr(vSc+4*i,4)}, v{vSR} offset:{i*16}")
    ENTRYV = 15 - max(capn(c, 15) for c in (cap, capV, capF, capS))
    ENTRY = 15 - capn(cap, 15)
    if pbar:
        assert npre < pbar < 15
        for k in range(npre, 16):
            if k == pbar:
                A(f"s_waitcnt vmcnt({pbar - npre})"); A("s_barrier")
                ktab_reads(A); vtab_reads(A)
            if k == pbar + 1: A("s_waitcnt lgkmcnt(0)"); prep_v(A)
            A(f"s_waitcnt vmcnt({min(capn(capP, k), 15 - ENTRY) if k == 15 else capn(capP, k)})"); A(item_text(k))
    else:
        for k in range(npre, 16):
            A(f"s_waitcnt vmcnt({capn(capP, k)})"); A(item_text(k))
        assert 16 - ENTRY <= 16 - npre
        A(f"s_waitcnt vmcnt({16 - ENTRY})"); A("s_barrier")
        ktab_reads(A); vtab_reads(A)
        A("s_waitcnt lgkmcnt(0)")
        prep_v(A)
    pro = A

    def itstamp(S):
        if stamps and itst:
            S("s_memrealtime s[96:97]"); S("s_mov_b32 s98, m0"); S(f"s_add_u32 m0, s{sI}, s{sJ}"); S(f"v_accvgpr_read_b32 v{vTmp+2}, a255"); S("s_waitcnt lgkmcnt(0)")
            S(f"v_writelane_b32 v{vTmp+2}, s96, m0"); S("s_mov_b32 m0, s98"); S(f"v_accvgpr_write_b32 a255, v{vTmp+2}")

    def emit(B, items, place, seq0, done0, caps, name, at=None):
        out = []; ei = 0; done = done0; info = []; marks = {}; atd = False
        def wait(n):
            nonlocal done
            if ei - n > done:
                out.append(f"    s_waitcnt vmcnt({n + (1 if atd and ei - n <= at else 0)})"); done = ei - n; return True
            return False
        for i, x in enumerate(B.I):
            while ei < len(items) and place[ei] == i:
                if ei == at and not ua:
                    out.extend([f"    s_cmp_lg_u32 s{sAt}, 0", "    s_cbranch_scc0 L_noat", "    s_mov_b64 exec, 1", f"    v_mov_b32 v{vAt}, 1",
                                f"    buffer_atomic_add v{vAt}, off, {srd(sWS)}, s{sCoff} sc0", "    s_mov_b64 exec, -1", "L_noat:"])
                if caps: wait(capn(caps, ei))
                if ei == at and ua:
                    out.extend([f"    v_mov_b32 v{vAt}, 1", f"    buffer_atomic_add v{vAt}, v{vAo}, {srd(sWS)}, s{sCoff} offen sc0"]); atd = True
                out.append("    " + items[ei]); ei += 1
            if "mark" in x:
                marks[(x["mark"], x["k"])] = (ei, done)
                if x["mark"] == "wait":
                    n = ei - 1 - seq0[x["k"]]; assert n >= 0
                    info.append((x["k"], n, wait(n)))
                elif x["mark"] == "smallwait": wait(ei - x["k"])
                elif x["mark"] == "postwait": out.append(f"    s_waitcnt vmcnt({AL})")
            else: out.append(x["t"])
        assert ei == len(items)
        print(name, "cost", sum(x["c"] for x in B.I), "waits", [(k, n) for k, n, w in info if w], "lead", min(n for k, n, w in info), file=sys.stderr)
        return out, marks
    class Pos:
        def __init__(self, B):
            self.I = B.I; self.cum = []; a = 0
            for x in B.I: self.cum.append(a); a += x["c"]
            self.tot = a
        def i(self, kind, k=None): return next(i for i, x in enumerate(self.I) if x.get("mark") == kind and x.get("k") == k)
        def c(self, kind, k=None): return self.cum[self.i(kind, k)]
        def at(self, t, lo):
            p = max(lo, next((i for i in range(len(self.I)) if self.cum[i] >= t), len(self.I) - 1))
            while not self.I[p]["ins"]: p += 1
            return p

    def deq(S, r, s, c): S(f"v_fma_mix_f32 v{r}, v{r}, v{s}, v{c} op_sel_hi:[1,0,0]")
    def kitems(B, n):
        for k in range(0, n, 2):
            r = vRing + 4 * k; t = vKP + 4 * ((k // 2) % 2)
            B.mark("wait", k + 1)
            for u in range(2):
                for j in range(4): deq(B, r + 4 * u + j, vKS + j, vKC + j)
            for u in range(4): B(f"v_cvt_pk_bf16_f32 v{t+u}, v{r+2*u}, v{r+2*u+1}")
            B.mark("free", k); B.mark("free", k + 1)
            B(f"ds_write2_b64 v{vKW + k//4}, {vr(t,2)}, {vr(t+2,2)} offset0:{(k%4)*KROW//8} offset1:{(k%4+1)*KROW//8}")
        B.mark("kdone")
    def mfma_loop(B, reads, mfmas, fill, start=0, ids=None, after=None):
        n = len(mfmas)
        if ids is None:
            ids = {}
            for i in range(PF): ids[i] = B(reads[i])
            for t in fill.get(-1, []): B(t)
        for i in range(start, n):
            if i % 2 == 0 or i == start: B.waitds(ids[min(n - 1, i | 1)])
            B(mfmas[i])
            if i + PF < n: ids[i + PF] = B(reads[i + PF])
            for t in fill.get(i, []): B(t)
            if after and i in after: after[i](dict(ids))
    def qk_lists(nblk):
        order = [(2 * bp + u, s4) for bp in range(nblk // 2) for s4 in range(4) for u in range(2)]
        rd = [f"ds_read_b128 {vr(vSt+4*(i%NST),4)}, v{vKR} offset:{LDS_K + b*16*KROW + s4*64}" for i, (b, s4) in enumerate(order)]
        mf = [f"v_mfma_f32_16x16x32_bf16 {vr(vS+4*b,4)}, {vr(vSt+4*(i%NST),4)}, {vr(vQ+4*s4,4)}, {vr(vNM,4) if s4 == 0 else vr(vS+4*b,4)}" for i, (b, s4) in enumerate(order)]
        return rd, mf
    def max_ops(bp):
        b = vS + 8 * bp
        if bp == 0: return [f"v_max3_f32 v{vMx}, v{b}, v{b+1}, v{b+2}", f"v_max3_f32 v{vMx}, v{vMx}, v{b+3}, v{b+4}", f"v_max3_f32 v{vMx}, v{vMx}, v{b+5}, v{b+6}", f"v_max_f32 v{vMx}, v{vMx}, v{b+7}"]
        return [f"v_max3_f32 v{vMx}, v{vMx}, v{b+2*u}, v{b+2*u+1}" for u in range(4)]
    def qk_fill(nblk):
        f = {}
        for bp in range(nblk // 2 - 1):
            last = bp + 2 == nblk // 2
            slots = (4, 5, 6, 7) if last else (3, 5, 7, 7)
            for s_, t in zip(slots, max_ops(bp)): f.setdefault(8 * (bp + 1) + s_, []).append(t)
        return f
    def check_max(B, nblk, tag, pre):
        for t in pre: B(t)
        if len(pre) < 6: B(f"s_nop {5 - len(pre)}")
        for t in max_ops(nblk // 2 - 1): B(t)
        B(f"v_cmp_lt_f32 vcc, s{sThr}, v{vMx}")
        B.lock = True
        B(f"s_cbranch_vccnz L_rescale{tag}")
        B.label(f"L_rescaled{tag}")
        B.lock = False
    exp_op = lambda i: f"v_exp_f32 v{vS+i}, v{vS+i}"
    sum_cvt = lambda i: [f"v_pk_add_f32 {vr(vL,2)}, {vr(vL,2)}, {vr(vS+2*i,2)}", f"v_cvt_pk_bf16_f32 v{vS+i}, v{vS+2*i}, v{vS+2*i+1}"]
    def vphase(B, k0, s, refill_hi):
        rg = lambda n8: vRing + 4 * (k0 + n8)
        for n8 in (0, 2):
            B.mark("wait", k0 + n8 + 1)
            for u in range(2):
                for j in range(4): deq(B, rg(n8 + u) + j, vSc + 2 * (n8 + u), vSc + 2 * (n8 + u) + 1)
            if refill_hi: B(f"ds_read_b128 {vr(vSc+4*(n8//2),4)}, v{vSR} offset:{64 + (n8//2)*16}")
            for j in range(4): B(f"v_cvt_pk_bf16_f32 v{vVP+4*j+n8//2}, v{rg(n8)+j}, v{rg(n8+1)+j}")
            B.mark("free", k0 + n8); B.mark("free", k0 + n8 + 1)
        B.mark("wait", k0 + 7)
        for j in range(4):
            for n8 in range(4, 8): deq(B, rg(n8) + j, vSc + 2 * n8, vSc + 2 * n8 + 1)
            for n8 in (4, 6): B(f"v_cvt_pk_bf16_f32 v{vVP+4*j+n8//2}, v{rg(n8)+j}, v{rg(n8+1)+j}")
            if j == 3:
                for n8 in range(4, 8): B.mark("free", k0 + n8)
            B(f"ds_write_b128 v{vVW}, {vr(vVP+4*j,4)} offset:{s*8*OS + j*JS}")
        if refill_hi:
            for u in (2, 3): B(f"ds_read_b128 {vr(vSc+4*u,4)}, v{vSR} offset:{64 + u*16}")
    def pv_lists(s, pbase=None):
        if pbase is None: pbase = vS
        lst = [(2 * s + kk, db) for kk in range(2) for db in range(8)]
        rd = [f"ds_read_b128 {vr(vSt+4*(i%NST),4)}, v{vVR} offset:{ks*4*OS + (db//2)*128 + (db%2)*16}" for i, (ks, db) in enumerate(lst)]
        mf = [f"v_mfma_f32_16x16x32_bf16 {vr(vO+4*db,4)}, {vr(vSt+4*(i%NST),4)}, {vr(pbase+4*ks,4)}, {vr(vO+4*db,4)}" for i, (ks, db) in enumerate(lst)]
        return rd, mf
    def ops_of(f):
        S = Stream(); f(S); return [x["t"].strip() for x in S.I if not x["t"].strip().startswith(";")]
    def spread(ops, first, per=1):
        f = {}
        for n, t in enumerate(ops): f.setdefault(first + n // per, []).append(t)
        return f
    def save_ops(i0):
        return [f"v_accvgpr_write_b32 a{17*i0+i}, v{vS+i}" for i in range(16)] + [f"v_accvgpr_write_b32 a{17*i0+16}, v{vNM}"]
    unit_items = [item_text(k) for k in range(16)]
    unit_seq = {k: k - 16 for k in range(16)}

    B = Stream()
    B.lock = True
    B.label("L_K")
    itstamp(B)
    B(f"s_add_u32 s{sI}, s{sI}, 1")
    B(f"s_cmp_lt_u32 s{sI}, {npf}"); B("s_cbranch_scc0 L_k2v")
    unit_offs(B, sI, sKsl); B(f"s_andn2_b32 s{sKsl}, s{sKsl}, 255")
    B(f"s_cmp_le_u32 s{sI}, s{sHk}"); B("s_cbranch_scc1 L_hookK")
    B.label("L_k1")
    B("s_waitcnt lgkmcnt(0)")
    B.lock = False
    B.mark("ready")
    prep_k(B)
    kitems(B, 16)
    B.c("park the previous tile's P while the K rows settle in LDS")
    B("s_branch L_save", 150)
    B.lock = True
    B.label("L_saved")
    B.lock = False
    B("s_waitcnt lgkmcnt(0)"); B("s_barrier", 20)
    B.c("S^T - m = K Q^T - m (log2 units)")
    rd, mf = qk_lists(8)
    mfma_loop(B, rd, mf, qk_fill(8))
    B("s_barrier", 10)
    check_max(B, 8, "K", ops_of(ktab_reads))
    for half in range(2):
        for i in range(16): B(exp_op(16 * half + i))
        for i in range(8):
            for t in sum_cvt(8 * half + i): B(t)
    B.mark("allissued")
    B.lock = True
    B(f"s_cmp_lt_u32 s{sI}, {npf}"); B("s_cbranch_scc1 L_K")
    sc_lo_reads(B)
    B.c("the last tile's P waits in the Q registers; l is final: sum it over the four lane groups")
    for i in range(16): B(f"v_mov_b32 v{vQ+i}, v{vS+i}")
    B(f"v_add_f32 v{vHd+1}, v{vL}, v{vL+1}")
    for sw in ("v_permlane32_swap_b32", "v_permlane16_swap_b32"):
        B(f"v_mov_b32 v{vTmp+1}, v{vHd+1}"); B("s_nop 1"); B(f"{sw} v{vTmp+1}, v{vHd+1}"); B("s_nop 1"); B(f"v_add_f32 v{vHd+1}, v{vHd+1}, v{vTmp+1}")
    if ua: B(f"v_mov_b32 v{vAo}, 0x40000000")
    B.lock = False
    P = Pos(B); c0 = P.c("free", 0); c1 = P.c("kdone"); c2 = P.c("allissued")
    tg = [c0 + (c1 - c0) * k / (nK1 - 1) for k in range(nK1)] + [c1 + (c2 - c1) * (k + 1) / (16 - nK1) - 8 for k in range(16 - nK1)]
    pl = []
    for k in range(16): pl.append(P.at(tg[k], max(pl[-1] if pl else 0, P.i("free", k) + 1))); assert pl[-1] <= P.i("allissued")
    kbody, _ = emit(B, unit_items, pl, unit_seq, ENTRY - 16, cap, "K")
    print("  K issue", [P.cum[p] for p in pl], file=sys.stderr)

    sig = sorted(m + 1 for m in ms) + [jo]
    assert jr <= sig[0] and jr < 14
    assert sig == sorted(set(sig))
    events = sorted(set(sig) | set(x + 1 for x in sig) | {jr, 16} | ({tw} if tw else set()))
    D_ = Stream()
    D_.label("L_V")
    itstamp(D_)
    D_(f"s_add_u32 s{sJ}, s{sJ}, 1")
    D_(f"s_bitcmp1_b32 {hex(sum(1 << e for e in events))}, s{sJ}")
    D_("s_waitcnt lgkmcnt(0)")
    D_("s_cbranch_scc1 L_ctl")
    D_.label("L_v0")
    unit_offs(D_, sJ, sVsl)
    D_(f"s_cmp_lg_u32 s{sMode}, 0"); D_("s_cbranch_scc1 L_vdisp")
    def make_V(tag, caps):
        B = Stream()
        B.label(f"L_V{tag}_")
        B.mark("ready")
        vphase(B, 0, 0, True)
        vtab_reads(B)
        B.c("fetch this tile's P back while the V rows settle in LDS")
        B("s_branch L_restore", 150)
        B.lock = True
        if tag == "":
            B.label("L_restored")
            B(f"s_cmp_lg_u32 s{sMode}, 0"); B("s_cbranch_scc1 L_rdisp")
        B.label(f"L_rest{tag}_")
        B.lock = False
        B("s_waitcnt lgkmcnt(0)"); B("s_barrier", 20)
        rd, mf = pv_lists(0)
        pvv = ops_of(prep_v)
        mfma_loop(B, rd, mf, {-1: pvv[:4], 9: pvv[4:]})
        vphase(B, 8, 1, False)
        B(f"s_cmp_lg_u32 s{sAt}, 0")
        B.lock = True
        B(f"s_cbranch_scc0 L_nopost{tag}")
        B.mark("postwait")
        B(f"ds_write_b32 v{vL4}, v{vAt} offset:{LDS_MB}")
        B.label(f"L_nopost{tag}")
        B.lock = False
        B("s_waitcnt lgkmcnt(0)"); B("s_barrier")
        rd, mf = pv_lists(1)
        mfma_loop(B, rd, mf, spread(ops_of(sc_lo_reads) + [f"ds_read_b32 v{vTmp}, v{vMb}"], 8))
        B.mark("allissued")
        B.lock = True
        B("s_branch L_V")
        B.lock = False
        P = Pos(B); c0 = P.c("free", 0); c1 = c0 + (P.c("allissued") - c0) * vtail
        pl = []
        for k in range(16): pl.append(P.at(c0 + (c1 - c0) * k / 15 - 8, max(pl[-1] if pl else 0, P.i("free", k) + 1))); assert pl[-1] <= P.i("allissued")
        nb = sum(1 for p in pl if p <= P.i("postwait")); assert nb >= AL
        body, _ = emit(B, unit_items, pl, unit_seq, ENTRYV - 16, caps, "V" + tag, at=nb - AL)
        print("  V issue", [P.cum[p] for p in pl], "atomic before", nb - AL, file=sys.stderr)
        return [l.replace("L_noat", "L_noat" + tag) for l in body]
    vbody = D_.text() + make_V("", capV) + make_V("f", capF) + make_V("s", capS)
    hbody = []

    E = Stream()
    def stampE(i):
        if stamps and not (hst == 1 and i in (2, 3, 4)) and not (hst == 2 and i in (2, 3)): E(f"s_memrealtime s[{84+2*i}:{85+2*i}]")
    def lsum():
        stampE(1)
        if stamps: E("s_mov_b32 s99, 0")
    ml = lambda x: vKP + 2 * (x - 1)
    dat = lambda x: vRing + 16 * (x - 1)
    bb = vKSr; u0 = vVP; vPo = vKS; vBa = vKS + 1; vPv = vKC; sLd = sCnt; sNew = sMode
    pl_ = [f"buffer_load_dwordx4 {vr(dat(x)+4*q,4)}, v{vLin}, {srd(sWS)}, s{sPo+x-1} offen offset:{q*1024} sc0 sc1" for x in range(1, 4) for q in range(4)]
    poll = f"buffer_load_dwordx2 {vr(vPv,2)}, v{vPo}, {srd(sWS)}, s{sG} offen sc0 sc1"
    def ready(dst):
        return [f"v_max_u32 v{vTmp+1}, v{vPv}, v{vPv+1}", f"v_cmp_eq_u32 vcc, -1, v{vTmp+1}",
                f"s_lshr_b32 s{sT}, vcc_lo, 16", f"s_cselect_b32 s{dst}, 0, 2",
                f"s_and_b32 s{sT}, vcc_hi, 0xffff", f"s_cselect_b32 s{sT}, 0, 4", f"s_or_b32 s{dst}, s{dst}, s{sT}",
                f"s_lshr_b32 s{sT}, vcc_hi, 16", f"s_cselect_b32 s{sT}, 0, 8", f"s_or_b32 s{dst}, s{dst}, s{sT}"]
    spreadh = [f"ds_bpermute_b32 v{ml(x)+u}, v{vBa}, v{vPv+u} offset:{64*x}" for x in range(1, 4) for u in range(2)]
    E.c("last unit; the count tells the order in which the pair's workgroups got near the end: the fourth merges")
    E.label("L_last")
    E(f"s_mov_b32 s{sPend}, s{sG}")
    E(f"s_lshl2_add_u32 s{sG}, s{sPair}, s{sWave}"); E(f"s_lshl_b32 s{sG}, s{sG}, 15"); E(f"s_add_u32 s{sG}, s{sG}, {WS_SLOT}")
    E(f"v_lshrrev_b32 v{vPo}, 4, v{vLane}"); E(f"v_and_b32 v{vBa}, 15, v{vLane}"); E(f"v_xor_b32 v{vPo}, s{sSplit}, v{vPo}"); E(f"v_lshlrev_b32 v{vPo}, 13, v{vPo}")
    E(f"v_lshl_add_u32 v{vPo}, v{vBa}, 3, v{vPo}"); E(f"v_add_u32 v{vPo}, 4096, v{vPo}"); E(f"v_lshlrev_b32 v{vBa}, 2, v{vBa}")
    for x in range(4):
        E(f"s_xor_b32 s{sT}, s{sSplit}, {x}"); E(f"s_lshl_b32 s{sT}, s{sT}, 13"); E(f"s_add_u32 s{sPo+x-1}, s{sG}, s{sT}")
    E(f"s_cmp_eq_u32 s{sPend}, 3"); E(f"s_mov_b32 s{sPend}, 14")
    if stamps: E("s_cselect_b32 s100, 2, 1")
    T_ = Stream()
    if hst == 1: T_("s_memrealtime s[88:89]")
    vphase(T_, 0, 0, True)
    T_(f"v_cmp_neq_f32 vcc, v{vNM}, v{vMO}")
    T_.lock = True
    T_(f"s_cbranch_vccnz L_oldrefE")
    T_.label(f"L_newrefE")
    T_.lock = False
    if hst == 1: T_("s_memrealtime s[90:91]")
    T_("s_waitcnt lgkmcnt(0)"); T_("s_barrier", 20)
    rd, mf = pv_lists(0, vQ); mfma_loop(T_, rd, mf, {})
    vphase(T_, 8, 1, False)
    if hst == 1: T_("s_memrealtime s[92:93]")
    T_("s_waitcnt lgkmcnt(0)"); T_("s_barrier")
    rd, mf = pv_lists(1, vQ); mfma_loop(T_, rd, mf, {})
    Pt = Pos(T_)
    p = Pt.at(Pt.c("wait", 15) + pb, Pt.i("wait", 15) + 1)
    T_.I[p:p] = [dict(t=t, c=0, ins=True) for t in ("    s_cbranch_scc0 L_nolook", "    " + poll, "L_nolook:")]
    out, _ = emit(T_, [], [], unit_seq, ENTRYV - 16, None, "tail")
    assert not any(t.strip().startswith("s_") and not t.strip().startswith(("s_waitcnt", "s_barrier", "s_cbranch", "s_nop", "s_memrealtime")) for t in out)
    for t in out: E.I.append(dict(t=t, c=0, ins=True))
    lsum()
    E("s_cbranch_scc1 L_merge")
    E.c("one of the first three: hand the partial over (write-through); once it is out, the header (-m, l), never the empty mark")
    for q in range(4):
        for i in range(4 * q, 4 * q + 4): E(f"v_cvt_pk_bf16_f32 v{vSt+i}, v{vO+2*i}, v{vO+2*i+1}")
        E(f"buffer_store_dwordx4 {vr(vSt+4*q,4)}, v{vLin}, {srd(sWS)}, s{sPo-1} offen offset:{q*1024} sc0 sc1")
    E("s_mov_b64 exec, 0xffff")
    E(f"v_min_u32 v{vHd}, -2, v{vNM}"); E(f"v_min_u32 v{vHd+1}, -2, v{vHd+1}")
    if hst == 2: E("s_memrealtime s[88:89]")
    E("s_waitcnt vmcnt(0)")
    if hst == 2: E("s_memrealtime s[90:91]")
    E(f"buffer_store_dwordx2 {vr(vHd,2)}, v{vPo}, {srd(sWS)}, s{sG} offen sc0 sc1")
    if stamps:
        E("s_mov_b64 exec, -1")
        for i in (2, 3, 4): stampE(i)
        E("s_branch L_done")
    else:
        E("s_endpgm")
    E.c("keep looking at the headers; fetch each partial once its header is complete")
    E.label("L_look")
    E(poll)
    E(f"s_sub_u32 s{sSpin}, s{sSpin}, 1"); E("s_cbranch_scc1 L_end")
    if stamps: E("s_add_u32 s99, s99, 1")
    E.label("L_merge")
    E("s_waitcnt vmcnt(0)")
    for t in ready(sNew): E(t)
    E(f"s_and_b32 s{sNew}, s{sNew}, s{sPend}"); E("s_cbranch_scc0 L_look")
    if hst == 2: E("s_memrealtime s[88:89]")
    for x in range(1, 4):
        E(f"s_bitcmp1_b32 s{sNew}, {x}"); E(f"s_cbranch_scc0 L_get{x}")
        for t in pl_[4*(x-1):4*x]: E(t)
        E.label(f"L_get{x}")
    E(f"s_andn2_b32 s{sPend}, s{sPend}, s{sNew}"); E("s_cbranch_scc1 L_look")
    E.c("all headers are in: final weights 2^(m_x - M) / L, while the last partials are on their way")
    for t in spreadh: E(t)
    wt = lambda x: vKSr + 2 * x if x < 2 else vKS + 2 * (x - 2) + 4
    E(f"v_and_b32 v{vTmp}, 7, v{vLane}" if fullo else f"v_and_b32 v{vTmp}, 15, v{vLane}"); E(f"v_lshrrev_b32 v{vTmp+1}, 4, v{vLane}")
    E(f"v_lshlrev_b32 v{vTmp}, 8, v{vTmp}"); E(f"v_lshl_add_u32 v{vTmp}, v{vTmp+1}, 4, v{vTmp}")
    if fullo: E(f"v_and_b32 v{vTmp+1}, 8, v{vLane}"); E(f"v_lshl_add_u32 v{vTmp}, v{vTmp+1}, 3, v{vTmp}")
    E(f"s_xor_b32 s{sLd}, s{sNew}, 14"); E(f"s_lshl_b32 s{sT2}, s{sWave}, 12")
    E("s_waitcnt lgkmcnt(0)")
    E(f"v_min3_f32 v{vMx}, v{vNM}, v{ml(1)}, v{ml(2)}"); E(f"v_min_f32 v{vMx}, v{vMx}, v{ml(3)}")
    for x in range(4): E(f"v_sub_f32 v{wt(x)}, v{vMx}, v{ml(x) if x else vNM}")
    for x in range(4): E(f"v_exp_f32 v{wt(x)}, v{wt(x)}")
    E(f"v_mul_f32 v{vHd+1}, v{vHd+1}, v{wt(0)}")
    for x in range(1, 4): E(f"v_fmac_f32 v{vHd+1}, v{ml(x)+1}, v{wt(x)}")
    E(f"v_rcp_f32 v{vHd+1}, v{vHd+1}"); E("s_nop 0")
    for x in range(4): E(f"v_mul_f32 v{wt(x)}, v{wt(x)}, v{vHd+1}")
    for i in range(16): E(f"v_pk_mul_f32 {vr(vO+2*i,2)}, {vr(vO+2*i,2)}, {vr(wt(0),2)} op_sel_hi:[1,0]")
    E.c("two passes: the partials that landed earlier, then the last ones")
    E.label("L_pass")
    for x in range(1, 4):
        E(f"s_bitcmp1_b32 s{sLd}, {x}"); E(f"s_cbranch_scc0 L_fold{x}")
        if x > 1: E(f"s_cmp_lg_u32 s{sNew}, 0"); E(f"s_cbranch_scc1 L_in{x}")
        E(f"s_waitcnt vmcnt({4*(3-x)})"); E.label(f"L_in{x}")
        for q in range(2):
            r = dat(x) + 8 * q
            for i in range(8): E(f"v_lshlrev_b32 v{u0+2*i}, 16, v{r+i}")
            for i in range(8): E(f"v_and_b32 v{u0+2*i+1}, 0xffff0000, v{r+i}")
            for i in range(8):
                d = vO + 2 * (8 * q + i)
                E(f"v_pk_fma_f32 {vr(d,2)}, {vr(u0+2*i,2)}, {vr(wt(x),2)}, {vr(d,2)} op_sel_hi:[1,0,1]")
        E.label(f"L_fold{x}")
    E(f"s_cmp_lg_u32 s{sNew}, 0"); E("s_cbranch_scc1 L_second")
    E.label("L_merged")
    for i in (2, 3, 4): stampE(i)
    if fullo:
        E.c("swap halves between rows q and q+8 so that every store covers whole 128-byte lines")
        for u in (0, 2):
            A_, B_ = vS + 4 * u, vS + 4 * u + 4
            for i in range(4 * u, 4 * u + 8): E(f"v_cvt_pk_bf16_f32 v{vS+i}, v{vO+2*i}, v{vO+2*i+1}")
            for i in range(4): E(f"v_mov_b32 v{u0+i}, v{A_+i}")
            for i in range(4): E(f"v_mov_b32_dpp v{A_+i}, v{B_+i} row_ror:8 row_mask:0xf bank_mask:0xc")
            for i in range(4): E(f"v_mov_b32_dpp v{B_+i}, v{u0+i} row_ror:8 row_mask:0xf bank_mask:0x3")
            E(f"buffer_store_dwordx4 {vr(A_,4)}, v{vTmp}, {srd(sOUT)}, s{sT2} offen offset:{u*64} {outf}")
            E(f"buffer_store_dwordx4 {vr(B_,4)}, v{vTmp}, {srd(sOUT)}, s{sT2} offen offset:{2048 + u*64} {outf}")
    else:
        for u in range(4):
            for i in range(4 * u, 4 * u + 4): E(f"v_cvt_pk_bf16_f32 v{vS+i}, v{vO+2*i}, v{vO+2*i+1}")
            E(f"buffer_store_dwordx4 {vr(vS+4*u,4)}, v{vTmp}, {srd(sOUT)}, s{sT2} offen offset:{u*64} {outf}")
    if pollmax:
        E(f"s_sub_u32 s{sT}, {SPIN}, s{sSpin}"); E(f"s_cmp_gt_u32 s{sT}, 6"); E("s_cbranch_scc0 L_done")
        E("s_mov_b64 exec, 1"); E(f"v_mov_b32 v{vAt}, s{sT}"); E(f"s_mov_b32 s{sT2}, 0x23000000")
        E(f"buffer_atomic_umax v{vAt}, off, {srd(sWS)}, s{sT2}")
        E(f"v_mov_b32 v{vFl}, 1"); E(f"buffer_atomic_add v{vFl}, off, {srd(sWS)}, s{sT2} offset:4")
    E.label("L_done")
    if stamps:
        E("s_waitcnt vmcnt(0)")
        stampE(5)
        E(f"s_lshl2_add_u32 s{sT}, s{sPair}, s{sSplit}"); E(f"s_lshl2_add_u32 s{sT}, s{sT}, s{sWave}"); E(f"s_lshl_b32 s{sT2}, s{sT}, 4")
        E(f"s_lshl_b32 s4, s{sT}, 8"); E("s_add_u32 s4, s4, 0x22000000")
        E(f"s_add_u32 s{sT2}, s{sT2}, 0x20000000")
        E(f"s_lshl_b32 s{sT}, s{sT}, 6"); E(f"s_add_u32 s{sT}, s{sT}, 0x21000000")
        E("s_waitcnt lgkmcnt(0)")
        E(f"v_accvgpr_read_b32 v60, a255")
        for i in range(12): E(f"v_mov_b32 v{16+i}, s{84+i}")
        E(f"v_mov_b32 v28, s101"); E("s_getreg_b32 s5, hwreg(HW_REG_XCC_ID)"); E("v_mov_b32 v29, s5"); E(f"v_mov_b32 v30, s100"); E("v_mov_b32 v31, s99")
        E("v_mov_b32 v32, s84"); E("v_mov_b32 v33, s85"); E("v_mov_b32 v34, s94"); E("v_mov_b32 v35, s95")
        E(f"buffer_store_dword v60, v{vL4}, {srd(sWS)}, s4 offen sc0 sc1")
        E("s_mov_b64 exec, 1")
        E(f"buffer_store_dwordx4 v[32:35], off, {srd(sWS)}, s{sT2} sc0 sc1")
        for i in range(4): E(f"buffer_store_dwordx4 v[{16+4*i}:{19+4*i}], off, {srd(sWS)}, s{sT} offset:{16*i} sc0 sc1")
    E.label("L_end")
    E("s_endpgm")

    E.label("L_second")
    E(f"s_mov_b32 s{sLd}, s{sNew}"); E(f"s_mov_b32 s{sNew}, 0")
    E.c("all three in flight together: the counted waits of the pass let each fold start as its partial lands")
    E(f"s_cmp_eq_u32 s{sLd}, 14"); E("s_cbranch_scc1 L_pass")
    E("s_waitcnt vmcnt(0)")
    if hst == 2: E("s_memrealtime s[90:91]")
    E("s_branch L_pass")
    def scale_O(r):
        for i in range(16): E(f"v_pk_mul_f32 {vr(vO+2*i,2)}, {vr(vO+2*i,2)}, {vr(r,2)} op_sel_hi:[1,0]")

    E.label("L_k2v")
    unit_offs(E, None, None); set_base(E, sVb)
    E(f"s_cmp_lg_u32 s{sW0}, 0"); E("s_cbranch_scc0 L_k1")
    if diags:
        E("s_mov_b64 exec, 1"); E(f"v_mov_b32 v{vTmp}, s84"); E(f"v_not_b32 v{vTmp+1}, v{vTmp}")
        E(f"buffer_atomic_umax v{vTmp}, off, {srd(sDBG)}, 0 offset:128"); E(f"buffer_atomic_umax v{vTmp+1}, off, {srd(sDBG)}, 0 offset:132"); E("s_mov_b64 exec, -1")
    E(f"buffer_load_dword v{vFl}, off, {srd(sDBG)}, 0 offset:4 {flagf}")
    E("s_branch L_k1")

    E.label("L_vdisp")
    E(f"s_sub_u32 s{sCnt}, s{sCnt}, 1"); E(f"s_cselect_b32 s{sMode}, 0, s{sMode}"); E("s_cbranch_scc1 L_V_")
    E(f"s_cmp_eq_u32 s{sMode}, 1"); E("s_cbranch_scc1 L_Vf_"); E("s_branch L_Vs_")
    E.label("L_rdisp")
    E(f"s_cmp_eq_u32 s{sMode}, 1"); E("s_cbranch_scc1 L_restf_"); E("s_branch L_rests_")
    E.c("progress counts: read the last one, arm the next one")
    E.label("L_ctl")
    E(f"v_readfirstlane_b32 s{sG}, v{vTmp}"); E(f"s_mov_b32 s{sAt}, 0")
    if ua: E(f"v_mov_b32 v{vAo}, 0x40000000")
    E(f"s_cmp_eq_u32 s{sJ}, 16"); E("s_nop 1"); E("s_cbranch_scc1 L_last")
    if jo < 15:
        E.c("order within the pair: let the workgroups that will hand over finish ahead of the one that merges")
        E(f"s_cmp_eq_u32 s{sJ}, {jo+1}"); E("s_cbranch_scc0 L_noto")
        for o, ch in enumerate(om):
            if ch != "-":
                E(f"s_cmp_eq_u32 s{sG}, {o}"); E(f"s_cselect_b32 s{sMode}, {dict(n=0, f=1, s=2)[ch]}, s{sMode}"); E(f"s_cselect_b32 s{sCnt}, 7, s{sCnt}")
        E("s_branch L_v0")
        E.label("L_noto")
    E(f"s_bitcmp1_b32 {hex(sum(1 << (x + 1) for x in sig))}, s{sJ}"); E("s_cbranch_scc0 L_arm")
    if stamps: E("s_lshl_b32 s101, s101, 8"); E(f"s_or_b32 s101, s101, s{sG}")
    E.c("rank among the workgroups of this count -> how many units to run with more (late) or fewer (early) loads in flight")
    def enc(tb):
        assert len(tb) == 16
        v = sum(((8 | -d) if d < 0 else d) << (4 * i) for i, d in enumerate(tb)); return v & 0xffffffff, v >> 32
    for n in range(len(sig) - 1):
        lo, hi = enc(tabs[n])
        if n == 0: E(f"s_mov_b32 s4, {hex(lo)}"); E(f"s_mov_b32 s5, {hex(hi)}")
        else: E(f"s_cmp_eq_u32 s{sJ}, {sig[n]+1}"); E(f"s_cselect_b32 s4, {hex(lo)}, s4"); E(f"s_cselect_b32 s5, {hex(hi)}, s5")
    if len(sig) > 1:
        sh = int(math.log2(256 // shards)) - 4
        E(f"s_lshr_b32 s{sT}, s{sG}, {sh}"); E(f"s_min_u32 s{sT}, s{sT}, 15"); E(f"s_lshl_b32 s{sT}, s{sT}, 2"); E(f"s_lshr_b64 s[4:5], s[4:5], s{sT}")
        E(f"s_and_b32 s{sCnt}, s4, 7"); E("s_bitcmp1_b32 s4, 3"); E(f"s_cselect_b32 s{sMode}, 2, 1")
    E.label("L_arm")
    if tw:
        E.c("touch the output page once so that its translation is at hand for the final stores (the value is not used)")
        E(f"s_cmp_eq_u32 s{sJ}, {tw}"); E(f"s_cselect_b32 s{sT}, s{sW0}, 0"); E(f"s_cmp_lg_u32 s{sT}, 0"); E("s_cbranch_scc0 L_notw")
        E(f"buffer_load_dword v{vCk}, off, {srd(sOUT)}, 0 {twf}")
        E.label("L_notw")
    E(f"s_bitcmp1_b32 {hex(sum(1 << x for x in sig))}, s{sJ}"); E(f"s_cselect_b32 s{sAt}, s{sW0}, 0")
    if ua: E(f"s_cmp_lg_u32 s{sAt}, 0"); E(f"s_cselect_b32 s{sT}, 0, 0x40000000"); E(f"v_writelane_b32 v{vAo}, s{sT}, 0")
    E(f"s_mul_i32 s{sT}, s{sJ}, {shards}"); E(f"s_add_u32 s{sT}, s{sT}, s{sShard}"); E(f"s_and_b32 s{sT}, s{sT}, 63")
    E(f"s_lshl_b32 s{sT}, s{sT}, {cstride}"); E(f"s_add_u32 s{sT}, s{sT}, 4"); E(f"s_lshl_b32 s{sT2}, s{sPair}, {cstride}")
    E(f"s_cmp_eq_u32 s{sJ}, {jo}"); E(f"s_cselect_b32 s{sT}, s{sT2}, s{sT}"); E(f"s_add_u32 s{sCoff}, s{sT}, {WS_CTR}")
    assert len(set((x * shards + h) % 64 for x in sig[:-1] for h in range(shards))) == shards * (len(sig) - 1)
    E.c("before the first count: wave 0 checks that the counters are live")
    E(f"s_cmp_eq_u32 s{sJ}, {jr}"); E(f"s_cselect_b32 s{sT}, s{sW0}, 0"); E(f"s_cmp_lg_u32 s{sT}, 0"); E("s_cbranch_scc0 L_v0")
    def zero_counters():
        E(f"v_lshlrev_b32 v{vTmp}, {cstride}, v{vLane}"); E(f"v_mov_b32 v{vCk}, 0"); E(f"v_mov_b32 v{vFl}, 0"); E(f"s_mov_b32 s{sT}, {WS_CTR}")
        E(f"buffer_atomic_swap_x2 {vr(vCk,2)}, v{vTmp}, {srd(sWS)}, s{sT} offen sc0")
    E(f"v_readfirstlane_b32 s{sT}, v{vFl}"); E("s_mov_b64 exec, 1"); E("s_nop 2")
    E(f"s_cmp_lg_u32 s{sT}, 0"); E("s_cbranch_scc1 L_live")
    E.c("not seen live yet: claim the job if it is free, otherwise wait for the (running) workgroup that holds it")
    E(f"v_mov_b32 v{vFl}, 1")
    E(f"buffer_atomic_add v{vFl}, off, {srd(sDBG)}, 0 sc0")
    E("s_waitcnt vmcnt(0)"); E(f"v_readfirstlane_b32 s{sT}, v{vFl}"); E("s_nop 3")
    E(f"s_cmp_eq_u32 s{sT}, 0"); E("s_cbranch_scc0 L_flag")
    E("s_mov_b64 exec, -1"); zero_counters(); E("s_mov_b64 exec, 1")
    E("s_waitcnt vmcnt(0)"); E(f"v_mov_b32 v{vFl}, 1")
    E(f"buffer_atomic_or v{vFl}, off, {srd(sDBG)}, 0 offset:4")
    E("s_branch L_live")
    E.label("L_flag")
    E(f"v_mov_b32 v{vFl}, 0")
    E(f"buffer_atomic_or v{vFl}, off, {srd(sDBG)}, 0 offset:4 sc0")
    E("s_waitcnt vmcnt(0)"); E(f"v_readfirstlane_b32 s{sT}, v{vFl}"); E(f"s_sub_u32 s{sSpin}, s{sSpin}, 1"); E("s_cbranch_scc1 L_live"); E("s_nop 2")
    E(f"s_cmp_lg_u32 s{sT}, 0"); E("s_cbranch_scc0 L_flag")
    E.label("L_live")
    if not nolocal:
        E.c("note this workgroup's XCD in the pair's word")
        E(f"s_lshl_b32 s{sT}, 1, s{sXc}"); E(f"v_mov_b32 v{vFl}, s{sT}"); E(f"s_lshl_b32 s{sT}, s{sPair}, {cstride}"); E(f"s_add_u32 s{sT}, s{sT}, {WS_CTR}")
        E(f"buffer_atomic_add v{vFl}, off, {srd(sWS)}, s{sT}")
    E("s_mov_b64 exec, -1")
    E("s_branch L_v0")

    def tree(lo, hi, reg, pre, leaf):
        if lo == hi: leaf(lo); return
        mid = (lo + hi + 1) // 2
        E(f"s_cmp_ge_u32 s{reg}, {mid}"); E(f"s_cbranch_scc1 {pre}{mid}_{hi}")
        tree(lo, mid - 1, reg, pre, leaf)
        E.label(f"{pre}{mid}_{hi}")
        tree(mid, hi, reg, pre, leaf)
    E.label("L_restore")
    def rleaf(j1):
        b = 17 * (j1 - 1)
        E(f"v_accvgpr_read_b32 v{vMx}, a{b+16}")
        for i in range(16): E(f"v_accvgpr_read_b32 v{vS+i}, a{b+i}")
        E(f"v_cmp_neq_f32 vcc, v{vMx}, v{vMO}"); E("s_cbranch_vccz L_restored"); E("s_branch L_oldref")
    tree(1, npf - 1, sJ, "L_r", rleaf)
    E.c("this tile's P used a newer reference max than O holds: bring O up to it")
    E.label("L_oldref")
    E(f"v_sub_f32 v{vTmp}, v{vMx}, v{vMO}"); E(f"v_exp_f32 v{vTmp}, v{vTmp}"); E(f"v_mov_b32 v{vMO}, v{vMx}")
    scale_O(vTmp)
    E("s_branch L_restored")
    for tag in "E":
        E.label(f"L_oldref{tag}")
        E(f"v_sub_f32 v{vTmp}, v{vNM}, v{vMO}"); E(f"v_exp_f32 v{vTmp}, v{vTmp}"); E("s_nop 0")
        scale_O(vTmp)
        E(f"s_branch L_newref{tag}")
    E.label("L_save")
    def sleaf(i1):
        if i1 >= 2:
            for t in save_ops(i1 - 2): E(t)
        E("s_branch L_saved")
    tree(1, npf, sI, "L_s", sleaf)

    E.c("rare path: the running max rose past the threshold -> move the reference to the true running max")
    for tag, n in (("K", 32),):
        E.label(f"L_rescale{tag}")
        for sw in ("v_permlane32_swap_b32", "v_permlane16_swap_b32"):
            E(f"v_mov_b32 v{vTmp}, v{vMx}"); E("s_nop 1"); E(f"{sw} v{vTmp}, v{vMx}"); E("s_nop 1"); E(f"v_max_f32 v{vMx}, v{vMx}, v{vTmp}")
        E(f"v_max_f32 v{vTmp}, 0, v{vMx}"); E(f"v_max_f32 v{vT2}, s{sFlo}, v{vMx}")
        E(f"v_exp_f32 v{vTmp}, -v{vTmp}")
        E(f"s_mov_b32 s{sThr}, {hex(f32bits(T))}"); E(f"s_mov_b32 s{sFlo}, 0")
        for r in [vNM, vNM + 2] + [vS + i for i in range(0, n, 2)]:
            E(f"v_pk_add_f32 {vr(r,2)}, {vr(r,2)}, {vr(vT2,2)} op_sel_hi:[1,0] neg_lo:[0,1] neg_hi:[0,1]")
        E(f"v_pk_mul_f32 {vr(vL,2)}, {vr(vL,2)}, {vr(vTmp,2)} op_sel_hi:[1,0]")
        if tag != "K": scale_O(vTmp)
        E(f"s_branch L_rescaled{tag}")

    E.c("workgroup 0, wave 0: zero the 64 ticket counters in d_ws, then raise the flag in d_debug")
    E.label("L_hookK")
    E(f"s_cmp_eq_u32 s{sI}, 1"); E("s_cbranch_scc1 L_hk1")
    E(f"s_cmp_eq_u32 s{sI}, 3"); E("s_cbranch_scc0 L_k1")
    E("s_mov_b64 exec, 1"); E(f"v_mov_b32 v{vFl}, 1")
    E(f"buffer_atomic_or v{vFl}, off, {srd(sDBG)}, 0 offset:4")
    E("s_mov_b64 exec, -1"); E("s_branch L_k1")
    E.label("L_hk1")
    E(f"v_readfirstlane_b32 s{sT}, v{vFl}"); E("s_nop 3")
    E(f"s_cmp_eq_u32 s{sT}, 0"); E(f"s_cselect_b32 s{sHk}, 3, 0"); E("s_cbranch_scc0 L_k1")
    zero_counters()
    E("s_branch L_k1")

    code = pro.text() + kbody + vbody + hbody + [x["t"] for x in E.I if "mark" not in x] + ["L_codeend:"]
    code = "\n".join(code).split("\n")
    if nocomp:
        kill = ("v_fma_mix", "v_cvt_pk", "v_mfma", "v_exp", "v_pk_", "v_max3", "ds_write2", "ds_write_b128", "ds_read_b128", "v_accvgpr_write_b32 a1", "v_accvgpr_read_b32 v9", "v_accvgpr_read_b32 v10", "s_cbranch_vccnz L_resc")
        a0 = code.index("L_K:"); a1 = code.index("L_round:"); c2 = []
        for i, l in enumerate(code):
            if a0 < i < a1:
                if l.strip().startswith(kill): continue
                if "lgkmcnt" in l:
                    l = "    s_waitcnt lgkmcnt(0)"
                    if c2[-1] == l: continue
            c2.append(l)
        code = c2
    if abl:
        a0 = code.index("L_last:"); a1 = code.index("L_merged:"); c2 = []
        for i, l in enumerate(code):
            if a0 < i < a1:
                if abl & 1 and "buffer_store" in l: continue
                if abl & 2 and "buffer_load" in l: continue
                if "s_cbranch_scc1 L_miss" in l: continue
                if abl & 2 and "vmcnt" in l: l = "    s_waitcnt vmcnt(0)"
            c2.append(l)
        code = c2
    if align: code = align_pass(code)
    if not nocomp and not abl: hazard_check(code)
    L = [HDR.rstrip(), f"; @launch grid=(256,1,1) block=(256,1,1) lds={LDS_TOTAL}", '.amdgcn_target "amdgcn-amd-amdhsa--gfx950"',
         ".text", f".globl {NAME}_kernel", ".p2align 8", f".type {NAME}_kernel,@function", f"{NAME}_kernel:"]
    L += code
    L += ['.section .rodata,"a"', ".p2align 6", f".amdhsa_kernel {NAME}_kernel",
          "  .amdhsa_next_free_vgpr 512", "  .amdhsa_next_free_sgpr 102", "  .amdhsa_accum_offset 256",
          "  .amdhsa_group_segment_fixed_size 0", "  .amdhsa_kernarg_size 80", "  .amdhsa_user_sgpr_count 2",
          "  .amdhsa_user_sgpr_kernarg_segment_ptr 1", "  .amdhsa_system_sgpr_workgroup_id_x 1",
          "  .amdhsa_float_denorm_mode_32 3", "  .amdhsa_float_denorm_mode_16_64 3", ".end_amdhsa_kernel"]
    open(path, "w").write("\n".join(L) + "\n")

if __name__ == "__main__":
    import argparse
    ap = argparse.ArgumentParser()
    ap.add_argument("out")
    for n, t, d in (("AL", int, 7), ("np", int, 14), ("cs", int, 8), ("nK1", int, 7), ("vtail", float, 1.0), ("T", float, 8.0), ("TM", float, 32.0),
                    ("pfcode", int, 4), ("ct", float, 0.9), ("ct0", float, 0.3), ("hv", int, 4), ("hk", float, 0.9), ("hp", int, 4), ("hq", float, 0.9), ("npre", int, 6), ("hst", int, 0), ("nocomp", int, 0), ("abl", int, 0), ("capC", str, None), ("uth", int, 4), ("grp", int, 0), ("flagf", str, "sc0 sc1"), ("capF", str, "7"), ("capS", str, "45"), ("tabs", str, "edcbba0001122345,cbbaaa0000112223"), ("ms", str, "5,11"), ("shards", int, 8), ("shb", int, 3), ("ldf", str, "sc0 sc1"), ("wb", int, 0), ("wto", int, 0), ("nolocal", int, 1), ("pb", int, 0), ("jr", int, 3), ("pa", int, 0), ("pw", int, 1), ("noearly", int, 0), ("diags", int, 0), ("diagm", int, 0), ("p2f", float, -1), ("jo", int, 15), ("chk", int, 0), ("apoll", int, 0), ("gray", int, 0), ("ua", int, 0), ("det", int, 0), ("prog", int, 1), ("pbar", int, 0), ("rtmap", int, 0), ("fullo", int, 0), ("tw", int, 0), ("twf", str, "nt"), ("om", str, "kkkk"), ("cols", str, "1000,800,4000,2000,100,240,4b0,8044"),
                    ("nt", str, "nt"), ("q", str, ""), ("smf", str, "nt"), ("outf", str, "sc0 sc1"), ("pubf", str, "sc0 sc1"),
                    ("cap", str, "55555556"), ("capV", str, "5555555555555556"), ("capH", str, None), ("capP", str, "8")):
        ap.add_argument("--" + n, type=t, default=d)
    ap.add_argument("--mix", type=lambda x: int(x, 0), default=0)
    for n in ("stamps", "it", "dry", "noalign", "pollmax"): ap.add_argument("--" + n, action="store_true")
    a = ap.parse_args()
    gen(a.out, AL=a.AL, npf=a.np, stamps=a.stamps, nt=a.nt, smf=a.smf, qflag=a.q, cstride=a.cs, T=a.T, TM=a.TM, mix=a.mix, nK1=a.nK1, vtail=a.vtail,
        itst=a.it, outf=a.outf, pubf=a.pubf, cap=a.cap, capV=a.capV, capH=a.capH, capP=a.capP, pfcode=a.pfcode, ctspan=a.ct, ct0=a.ct0,
        hv=a.hv, hk=a.hk, hp=a.hp, hq=a.hq, npre=a.npre, dry=a.dry, hst=a.hst, align=not a.noalign, nocomp=a.nocomp, abl=a.abl, capC=a.capC, uth=a.uth, pollmax=a.pollmax, grp=a.grp, flagf=a.flagf, capF=a.capF, capS=a.capS, tabs=[[(int(c) if c.isdigit() else -(ord(c) - 96)) for c in t] for t in a.tabs.split(',')], ms=tuple(int(x) for x in a.ms.split(',') if x), shards=a.shards, shb=a.shb, ldf=a.ldf, wb=a.wb, wto=a.wto, nolocal=a.nolocal, pb=a.pb, jr=a.jr, pa=a.pa, pw=a.pw, noearly=a.noearly, diags=a.diags, diagm=a.diagm, p2f=a.p2f, jo=a.jo, chk=a.chk, apoll=a.apoll, gray=a.gray, ua=a.ua, det=a.det, prog=a.prog, pbar=a.pbar, rtmap=a.rtmap, fullo=a.fullo, tw=a.tw, twf=a.twf, om=a.om.replace('k', '-'), cols=[int(x, 16) << 12 for x in a.cols.split(',')])
```

```python
import sys, struct, math, re
NAME = "standalone__kv_cache_quant_int4_int2_kv_with_per_channel_or_per_token_scales__sampling"
HDR = open("cdna_kernels/" + NAME + ".s.ref").read().split("; Override launch")[0]

def f32bits(x):
    return struct.unpack("<I", struct.pack("<f", x))[0]

def cost_of(s):
    op = s.split()[0]
    if op.startswith("v_mfma"): return 8
    if op in ("v_exp_f32", "v_rcp_f32"): return 8
    if op in ("ds_write_b128", "ds_write2_b64"): return 28
    if op.startswith("ds_write"): return 20
    if op == "s_barrier": return 70
    if op == "s_nop": return 4 * (int(s.split()[1]) + 1)
    return 4

class Stream:
    def __init__(self): self.I = []; self.lock = False; self.nds = 0
    def __call__(self, s, cost=None):
        self.I.append(dict(t="    " + s, c=(cost_of(s) if cost is None else cost), ins=not self.lock))
        if s.startswith("ds_"): self.nds += 1
        return self.nds
    def waitds(self, i):
        n = self.nds - i; assert 0 <= n <= 15
        self(f"s_waitcnt lgkmcnt({n})")
    def label(self, s): self.I.append(dict(t=s + ":", c=0, ins=not self.lock))
    def c(self, s): self.I.append(dict(t="    ; " + s, c=0, ins=not self.lock))
    def mark(self, kind, k=None): self.I.append(dict(mark=kind, k=k, c=0, ins=not self.lock))
    def text(self): return [x["t"] for x in self.I]

INLINE = re.compile(r"^-?(\d+|0x[0-9a-f]+)$")
def has_literal(ops):
    for o in ops:
        if INLINE.match(o):
            v = int(o, 0)
            if not -16 <= v <= 64 and (v & 0x7fffffff) not in (0x3f000000, 0x3f800000, 0x40000000, 0x40800000): return True
        elif re.match(r"^L_\w+-L_\w+$", o): return True
    return False
VOP12 = ("v_mov_b32", "v_exp_f32", "v_rcp_f32", "v_add_f32", "v_sub_f32", "v_mul_f32", "v_max_f32", "v_min_f32", "v_lshlrev_b32", "v_lshrrev_b32", "v_and_b32",
         "v_xor_b32", "v_add_u32", "v_mul_u32_u24", "v_min_u32", "v_max_u32", "v_fmac_f32", "v_cvt_f32_u32", "v_not_b32")
def isize(line):
    s = line.split(";")[0].strip()
    if not s or s.endswith(":") or s.startswith("."): return 0, None
    op, _, rest = s.partition(" ")
    ops = [o.strip() for o in rest.split(",")] if rest else []
    if op.startswith(("s_load", "s_memrealtime", "ds_", "buffer_")): return 8, None
    if op.startswith("s_"):
        if op in ("s_waitcnt", "s_nop", "s_barrier", "s_endpgm", "s_branch", "s_getreg_b32") or op.startswith("s_cbranch"): return 4, None
        return (8 if has_literal(ops) else 4), None
    if op in ("v_cndmask_b32", "v_readfirstlane_b32", "v_permlane32_swap_b32", "v_permlane16_swap_b32"): return 4, None
    if op.startswith("v_cmp"):
        return (4 + 4 * has_literal(ops[1:]) if ops[0] == "vcc" else 8), None
    if op in VOP12:
        if any(o.startswith("-v") for o in ops): return 8, "valu"
        if has_literal(ops[1:]): return 8, "valu"
        return 4, "grow"
    if op.startswith("v_mfma"): return 8, None
    return 8, "valu"
def align_pass(L):
    out = []; par = 0; last = None
    for i, line in enumerate(L):
        sz, kind = isize(line)
        if sz == 8 and par and last is not None:
            j = last; op = out[j].split()[0]
            out[j] = out[j].replace(op, op + "_e64", 1); par = 0
        elif sz == 8 and par:
            n = 0
            for l2 in L[i:]:
                s2, k2 = isize(l2)
                if s2 == 4: break
                n += k2 == "valu"
            if n >= 7: out.append("    s_nop 0"); par = 0
        if sz == 8: last = None
        if sz == 4:
            par ^= 1
            if kind == "grow": last = len(out)
        out.append(line)
    return out

def regs_of(tok):
    m = re.match(r"^-?v\[(\d+):(\d+)\]$", tok)
    if m: return set(range(int(m.group(1)), int(m.group(2)) + 1))
    m = re.match(r"^-?v(\d+)$", tok)
    return {int(m.group(1))} if m else set()
def hazard_check(L):
    hist = []
    for line in L:
        s = line.split(";")[0].strip()
        if not s or s.endswith(":") or s.startswith("."): continue
        op, _, rest = s.partition(" ")
        toks = [o.strip().split(" ")[0] for o in rest.split(",")] if rest else []
        if op in ("s_branch", "s_endpgm"): hist = []; continue
        st = int(toks[0]) + 1 if op == "s_nop" else 1
        allr = [regs_of(t) for t in toks]
        isv = op.startswith("v_"); mf = op.startswith("v_mfma")
        store = op.startswith(("ds_write", "buffer_store", "buffer_atomic"))
        dst = set() if (store or not allr or op.startswith(("v_cmp", "v_readfirstlane"))) else allr[0]
        src = set().union(*(allr if store or op.startswith(("v_cmp", "v_permlane", "v_fmac")) else allr[1:])) if allr else set()
        if op.startswith("v_permlane"): dst = src
        d = 0
        for (pop, pdst, psrcC, pst) in reversed(hist):
            need = 0
            if pop.startswith("v_mfma"):
                if mf:
                    if pdst & (allr[1] | allr[2]): need = 8
                    elif pdst & allr[3] and pdst != allr[3]: need = 6
                elif pdst & (src | dst): need = 8
                elif isv and psrcC & dst: need = 3
            elif pop.startswith("v_"):
                if mf and pdst & src: need = 2
                if (op.startswith("v_permlane") or op.endswith("_dpp")) and pdst & src: need = 2
                if op == "v_readfirstlane_b32" and pdst & src: need = 1
                if pop.split("_e64")[0] in ("v_exp_f32", "v_rcp_f32") and isv and op.split("_e64")[0] not in ("v_exp_f32", "v_rcp_f32") and pdst & src: need = max(need, 1)
                if pop.startswith("v_dot") and op != pop and pdst & (src | dst): need = 3
            elif pop.startswith("buffer_store_dwordx4") and isv and psrcC & dst: need = 2
            assert d >= need, f"hazard: {pop} -> {s} distance {d} < {need}"
            d += pst
            if d >= 8: break
        hist.append((op, dst, (allr[3] if mf else (allr[0] if op.startswith("buffer_store") else set())), st))

def gen(path, AL=8, npf=14, stamps=False, nt="nt", smf="nt", qflag="", cstride=8, T=8.0, TM=32.0, mix=0x31031031, nK1=9, vtail=1.0,
        itst=False, outf="sc0 sc1", pubf="sc0 sc1", cap="56", capV="556", capH=None, capP="8", pfcode=4, ctspan=0.95, ct0=0.15,
        hv=4, hk=0.9, hp=4, hq=0.9, npre=6, dry=False, hst=0, align=True, nocomp=0, abl=0, capC=None, uth=4, pollmax=False, grp=0, flagf='', capF='7', capS='45', tabs=None, ms=(5, 11), shards=4, shb=3, cols=None, ldf='sc0 sc1', wb=False, wto=0, nolocal=False, pb=100, jr=3, pa=1, pw=1, noearly=0, diags=0, diagm=0, p2f=-1, jo=15, om='----', chk=-1, apoll=0, gray=0, ua=0, det=0, prog=1, pbar=0, rtmap=0, fullo=1, tw=0, twf='nt', alt=0):
    npf = 16
    capn = lambda c, k: int(c[k % len(c)], 16) - 1
    KROW = 288; JS = 576; OS = 2320
    TABW = 16 * 256
    LDS_MB = 0; LDS_SC = 256; LDS_TAB = 1536; LDS_K = LDS_TAB + 4 * TABW; LDS_V = LDS_K + 128 * KROW
    LDS_TOTAL = LDS_V + 16 * OS
    assert LDS_K % 256 == 0 and LDS_K + 128 * KROW < 65536 and LDS_TAB % 512 == 0 and TABW % 512 == 0
    WS_SLOT = 1 << 20; WS_CTR = 16 << 20; FLAG = 0x100
    SPIN = 1 << 20
    PF = 8
    vLane, vOff, vMb, vKR, vSW, vSR, vVW, vVR, vTK, vTV, vL4, vLin = range(12)
    vHd = 12
    vCk, vFl = 14, 15
    vL = 16
    vT2 = 18
    vKS, vKC = 20, 24; vKSr, vKZr, vVSr, vVZr = 28, 30, 32, 33
    vTmp = 34
    vMx, vAt, vMO = 37, 38, 39
    vKP = 40; vVP = 48; vO = 64; vS = 96; vRing = 128; vQ = 192; vSt = 208; NST = 10
    vNM = 248; vKW = 252
    vSc = vS + 16
    vAo = vL
    sX, sY, sSM, sQ, sDBG, sWS, sOUT = 8, 12, 16, 20, 24, 28, 32
    sKb, sVb = 36, 38
    sPair, sSplit, sI, sJ, sG, sT, sT2, sFlo, sThr, sDoff, sCoff, sIni, sKsl, sVsl, sWb, sPend, sSpin, sW0, sHk, sMode = range(40, 60)
    sAt = 49; sShard = 82; sCnt = 83; sXc = 71
    sO = 60
    sK1, sK2 = 64, 66
    sCw = 72
    sPo = 76
    sWave = 3
    srd = lambda r: f"s[{r}:{r+3}]"
    vr = lambda r, n: f"v[{r}:{r+n-1}]"
    def item_text(k):
        return f"buffer_load_dwordx4 {vr(vRing+4*k,4)}, v{vOff}, {srd(sX)}, s{sO + k//4} offen offset:{(k%4)*1024} {nt}"
    sXm = 101 if not stamps else 59 + 40
    sXm = 2
    def unit_offs(A, idx, slot):
        if idx is None: A(f"s_mov_b32 s{sO}, s{sXm}")
        else:
            if gray == 1: A(f"s_lshr_b32 s{sO}, s{idx}, 1"); A(f"s_xor_b32 s{sO}, s{sO}, s{idx}"); A(f"s_lshl_b32 s{sO}, s{sO}, 16")
            elif gray == 2: A(f"s_brev_b32 s{sO}, s{idx}"); A(f"s_lshr_b32 s{sO}, s{sO}, 12")
            else: A(f"s_lshl_b32 s{sO}, s{idx}, 16")
            A(f"s_xor_b32 s{sO}, s{sO}, s{sXm}")
        A(f"s_add_u32 s{sO+1}, s{sO}, 4096"); A(f"s_xor_b32 s{sO+2}, s{sO}, 0x4000"); A(f"s_xor_b32 s{sO+3}, s{sO+1}, 0x4000")
        if slot is not None: A(f"s_bfe_u32 s{slot}, s{sO}, 0xc0008")
    def set_base(A, b, b2=None):
        if b2 is None: b2 = b
        A(f"s_mov_b64 s[{sX}:{sX+1}], s[{b}:{b+1}]")
    A = Stream()
    A("s_cmp_ge_u32 s2, 256"); A("s_cbranch_scc1 L_end")
    if stamps: A("s_memrealtime s[84:85]"); A("s_mov_b32 s101, 0")
    if diags: A("s_memrealtime s[84:85]")
    A("s_load_dwordx16 s[68:83], s[0:1], 0")
    A("s_load_dwordx4 s[4:7], s[0:1], 64")
    if alt: A("s_load_dwordx8 s[84:91], s[0:1], 80")
    if pfcode:
        A.c("pull this kernel's code into L2 with strided loads (speed only; the values are unused)")
        A("s_getpc_b64 s[92:93]"); A("s_and_b32 s92, s92, 0xffffff00"); A("s_mov_b32 s94, L_codeend-L_pf"); A("s_mov_b32 s95, 0x20000")
        A.label("L_pf")
        A(f"v_lshlrev_b32 v{vTmp}, 7, v0")
        A(f"s_lshr_b32 s{sT2}, s2, 3"); A(f"s_and_b32 s{sT2}, s{sT2}, {pfcode-1}"); A(f"s_cselect_b32 s94, 0, s94")
        A(f"buffer_load_dword v{vTmp}, v{vTmp}, s[92:95], 0 offen")
    A("v_lshrrev_b32 v1, 6, v0")
    A(f"v_and_b32 v{vLane}, 63, v0")
    A(f"v_readfirstlane_b32 s{sWave}, v1")
    A(f"s_bfe_u32 s{sIni}, s2, {hex((int(math.log2(shards)) << 16) | shb)}")
    A.c("workgroup id -> (pair, split) and the order in which it walks its token groups: a bijection (placement affects speed only)")
    for i, c in enumerate(cols):
        A(f"s_bitcmp1_b32 s2, {i}"); A(f"s_cselect_b32 s{sT if i else sT2}, {hex(c)}, 0")
        if i: A(f"s_xor_b32 s{sT2}, s{sT2}, s{sT}")
    if mix:
        A(f"s_lshr_b32 s{sT}, s2, 3"); A(f"s_and_b32 s{sT}, s{sT}, 7"); A(f"s_lshl_b32 s{sT}, s{sT}, 2")
        A(f"s_lshr_b32 s{sT}, {hex(mix)}, s{sT}"); A(f"s_and_b32 s{sT}, s{sT}, 3"); A(f"s_and_b32 s{sT}, s{sT}, s2")
        A(f"s_bcnt1_i32_b32 s{sT}, s{sT}"); A(f"s_and_b32 s{sT}, s{sT}, 1"); A(f"s_lshl_b32 s{sT}, s{sT}, 22"); A(f"s_xor_b32 s{sT2}, s{sT2}, s{sT}")
    def idmap(w):
        v = 0
        for i, c in enumerate(cols):
            if w >> i & 1: v ^= c
        if mix: v ^= (bin((mix >> (4 * ((w >> 3) & 7))) & 3 & w).count("1") & 1) << 22
        return v
    assert len(set(idmap(w) >> 20 for w in range(256))) == 256 and all(idmap(w) & ~0xfff4000 == 0 for w in range(256)) and idmap(0) == 0
    if rtmap:
        A("s_waitcnt lgkmcnt(0)"); A(f"s_lshl_b32 s{sT}, s2, 2"); A(f"s_add_u32 s90, s6, 0x24000000"); A("s_addc_u32 s91, s7, 0")
        A(f"s_load_dword s{sT2}, s[90:91], s{sT}"); A("s_waitcnt lgkmcnt(0)")
    A(f"s_mov_b32 s{sMode}, s2")
    A(f"s_lshr_b32 s{sPair}, s{sT2}, 22"); A(f"s_bfe_u32 s{sSplit}, s{sT2}, 0x20014"); A(f"s_and_b32 s{sXm}, s{sT2}, 0x3fffff")
    c_, h_, m_, g_ = vKS, vKS + 1, vKS + 2, vKS + 3
    t0, t1, vQo = vKC, vKC + 1, vKC + 2
    A.c("only what the first K rows need comes before them")
    A(f"v_lshlrev_b32 v{vLin}, 4, v{vLane}")
    A(f"s_and_b32 s{sT}, s{sWave}, 1"); A(f"s_lshr_b32 s{sT2}, s{sWave}, 1"); A(f"s_lshl2_add_u32 s{sWb}, s{sT2}, s{sT}"); A(f"s_lshl_b32 s{sWb}, s{sWb}, 13")
    A(f"v_add_u32 v{vOff}, s{sWb}, v{vLin}")
    A(f"s_mov_b32 s{sX+2}, {0 if dry else 0x400000}"); A(f"s_mov_b32 s{sX+3}, 0x20000")
    unit_offs(A, None, None)
    A(f"s_lshl_b32 s{sT}, s{sPair}, 22")
    A("s_waitcnt lgkmcnt(0)")
    def mk(r, p): A(f"s_add_u32 s{r}, s{p}, s{sPend}"); A(f"s_addc_u32 s{r+1}, s{p+1}, 0")
    if alt: A(f"s_cmp_ge_u32 s{sPair}, s88"); A("s_cselect_b64 s[70:71], s[84:85], s[70:71]"); A("s_cselect_b64 s[72:73], s[86:87], s[72:73]")
    A(f"s_add_u32 s{sX}, s70, s{sT}"); A(f"s_addc_u32 s{sX+1}, s71, 0")
    for k in range(npre): A(item_text(k))
    A(f"s_add_u32 s{sVb}, s72, s{sT}"); A(f"s_addc_u32 s{sVb+1}, s73, 0")
    A(f"s_lshl_b32 s{sG}, s{sWave}, 12"); A(f"s_add_u32 m0, s{sG}, {LDS_TAB}"); assert TABW == 4096
    for r in (sSM, sQ, sOUT): A(f"s_mov_b32 s{r+2}, 0x4000"); A(f"s_mov_b32 s{r+3}, 0x20000")
    A(f"s_lshl_b32 s{sPend}, s{sPair}, 14")
    A.c("wave w streams scale/zero array w (ks, kz, vs, vz) into the LDS table")
    A(f"s_cmp_eq_u32 s{sWave}, 1"); A(f"s_cselect_b64 s[{sSM}:{sSM+1}], s[76:77], s[74:75]")
    A(f"s_cmp_eq_u32 s{sWave}, 2"); A(f"s_cselect_b64 s[{sSM}:{sSM+1}], s[78:79], s[{sSM}:{sSM+1}]")
    A(f"s_cmp_eq_u32 s{sWave}, 3"); A(f"s_cselect_b64 s[{sSM}:{sSM+1}], s[80:81], s[{sSM}:{sSM+1}]")
    mk(sSM, sSM)
    A(f"s_lshl_b32 s{sT}, s{sSplit}, 12")
    nT = (npf + 3) // 4
    for u in range(nT):
        rows = min(4, npf - 4 * u)
        if rows < 4: A(f"s_bfm_b64 exec, {16*rows}, 0")
        A(f"buffer_load_dwordx4 v{vLin}, {srd(sSM)}, s{sT} offen offset:{u*1024} {smf} lds")
        if rows < 4: A("s_mov_b64 exec, -1")
    mk(sQ, 68)
    A(f"v_and_b32 v{m_}, 15, v{vLane}"); A(f"v_lshrrev_b32 v{g_}, 4, v{vLane}")
    A(f"v_lshlrev_b32 v{vQo}, 8, v{m_}"); A(f"v_lshl_add_u32 v{vQo}, v{g_}, 4, v{vQo}")
    A(f"s_lshl_b32 s{sT}, s{sWave}, 12")
    for s4 in range(4): A(f"buffer_load_dwordx4 {vr(vQ+4*s4,4)}, v{vQo}, {srd(sQ)}, s{sT} offen offset:{s4*64} {qflag}")
    A.c("mark the header of this wave's hand-off slot empty")
    for i in range(2): A(f"v_mov_b32 v{vVP+i}, -1")
    A(f"v_lshlrev_b32 v{vVP+2}, 3, v{vLane}")
    A(f"s_lshl2_add_u32 s{sT2}, s{sPair}, s{sWave}"); A(f"s_lshl2_add_u32 s{sT2}, s{sT2}, s{sSplit}")
    A(f"s_lshl_b32 s{sT2}, s{sT2}, 13"); A(f"s_add_u32 s{sT2}, s{sT2}, {WS_SLOT + 4096}")
    A(f"s_mov_b32 s{sWS+2}, 0x40000000"); A(f"s_mov_b32 s{sWS+3}, 0x20000")
    A(f"s_mov_b32 s{sDBG+2}, 256"); A(f"s_mov_b32 s{sDBG+3}, 0x20000"); A(f"v_mov_b32 v{vFl}, 1")
    A(f"s_mov_b64 s[{sWS}:{sWS+1}], s[6:7]")
    A("s_mov_b64 exec, 0xffff")
    A(f"buffer_store_dwordx2 {vr(vVP,2)}, v{vVP+2}, {srd(sWS)}, s{sT2} offen sc0 sc1")
    A("s_mov_b64 exec, -1")
    A.c("workgroup 0 claims the job of zeroing the counters in d_ws (any workgroup takes it over later if nobody has)")
    A(f"s_mov_b64 s[{sDBG}:{sDBG+1}], s[4:5]")
    A(f"s_cmp_eq_u32 s{sWave}, 0"); A(f"s_cselect_b32 s{sW0}, 1, 0")
    A(f"s_or_b32 s{sT}, s{sMode}, {'1' if noearly else 's%d' % sWave}"); A(f"s_cselect_b32 s{sHk}, 0, 3"); A("s_cbranch_scc1 L_noel")
    A("s_mov_b64 exec, 1")
    A(f"buffer_atomic_add v{vFl}, off, {srd(sDBG)}, 0 sc0")
    A("s_mov_b64 exec, -1")
    A.label("L_noel")
    mk(sOUT, 82)
    A(f"v_and_b32 v{c_}, 31, v{vLane}"); A(f"v_lshrrev_b32 v{h_}, 5, v{vLane}"); A(f"v_lshlrev_b32 v{vL4}, 2, v{vLane}")
    A(f"s_bfe_u32 s{sVsl}, s{sO}, 0xc0008"); A(f"s_andn2_b32 s{sKsl}, s{sVsl}, 255")
    A(f"v_lshlrev_b32 v{vTK}, 3, v{c_}")
    A(f"v_lshrrev_b32 v{vTV}, 4, v{c_}"); A(f"v_lshlrev_b32 v{vTV}, 5, v{vTV}")
    A(f"v_and_b32 v{t0}, 15, v{c_}"); A(f"v_add_lshl_u32 v{vTV}, v{vTV}, v{t0}, 1")
    A(f"s_lshr_b32 s{sT}, s{sWb}, 8"); A(f"v_add_u32 v{vTV}, s{sT}, v{vTV}")
    A(f"s_lshr_b32 s{sT}, s{sWave}, 1"); A(f"s_and_b32 s{sT2}, s{sWave}, 1")
    A(f"s_mul_i32 s{sT}, s{sT}, {32*KROW}"); A(f"s_mul_i32 s{sT2}, s{sT2}, {8*KROW}"); A(f"s_add_u32 s{sT}, s{sT}, s{sT2}"); A(f"s_add_u32 s{sT}, s{sT}, {LDS_K}")
    A(f"v_mul_u32_u24 v{vKW}, {4*KROW}, v{h_}"); A(f"v_lshl_add_u32 v{vKW}, v{c_}, 3, v{vKW}"); A(f"v_add_u32 v{vKW}, s{sT}, v{vKW}")
    for u, rows in ((1, 16), (2, 64), (3, 80)): A(f"v_add_u32 v{vKW+u}, {rows*KROW}, v{vKW}")
    A(f"v_mul_u32_u24 v{vKR}, {KROW}, v{m_}"); A(f"v_lshl_add_u32 v{vKR}, v{g_}, 4, v{vKR}")
    A(f"s_mul_i32 s{sT}, s{sWave}, {2*OS}"); A(f"s_add_u32 s{sT}, s{sT}, {LDS_V}")
    A(f"v_mul_u32_u24 v{vVW}, {OS}, v{h_}"); A(f"v_lshl_add_u32 v{vVW}, v{c_}, 4, v{vVW}"); A(f"v_add_u32 v{vVW}, s{sT}, v{vVW}")
    A(f"v_mul_u32_u24 v{vVR}, {OS}, v{g_}"); A(f"v_and_b32 v{t0}, 3, v{m_}"); A(f"v_mul_u32_u24 v{t0}, {JS}, v{t0}")
    A(f"v_lshrrev_b32 v{t1}, 2, v{m_}"); A(f"v_lshlrev_b32 v{t1}, 5, v{t1}")
    A(f"v_add3_u32 v{vVR}, v{vVR}, v{t0}, v{t1}"); A(f"v_add_u32 v{vVR}, {LDS_V}, v{vVR}")
    A(f"s_lshl_b32 s{sT}, s{sWave}, 8"); A(f"s_add_u32 s{sT2}, s{sT}, {LDS_SC}")
    A(f"v_and_b32 v{vSW}, 1, v{c_}"); A(f"v_lshlrev_b32 v{vSW}, 7, v{vSW}")
    A(f"v_lshrrev_b32 v{t0}, 1, v{c_}"); A(f"v_lshl_add_u32 v{vSW}, v{t0}, 3, v{vSW}"); A(f"v_add_u32 v{vSW}, s{sT2}, v{vSW}")
    A(f"v_lshlrev_b32 v{vSR}, 7, v{h_}"); A(f"v_add_u32 v{vSR}, s{sT2}, v{vSR}")
    A(f"v_mov_b32 v{vMb}, {LDS_MB}")
    A(f"s_mov_b32 s{sCoff}, {WS_CTR}")
    cc = math.log2(math.e) / math.sqrt(128.0)
    for i in range(2): A(f"s_mov_b32 s{sK1+i}, {hex(f32bits(cc * 2.0**24))}"); A(f"s_mov_b32 s{sK2+i}, {hex(f32bits(-2.0**-24))}")
    A.c("the first tile always takes the rescale path, which sets the reference to that tile's true row max")
    A(f"s_mov_b32 s{sThr}, 0xff800000"); A(f"s_mov_b32 s{sFlo}, 0xff800000")
    for r in (sAt, sMode, sCnt, sI, sJ): A(f"s_mov_b32 s{r}, 0")
    A(f"s_mov_b32 s{sShard}, s{sIni}")
    if not nolocal: A(f"s_getreg_b32 s{sXc}, hwreg(HW_REG_XCC_ID, 0, 3)"); A(f"s_mul_i32 s{sXc}, s{sXc}, 3"); A(f"s_add_u32 s{sXc}, s{sXc}, 8")
    A(f"s_mov_b32 s{sSpin}, {SPIN}")
    for i in range(32): A(f"v_mov_b32 v{vO+i}, 0")
    for i in range(4): A(f"v_mov_b32 v{vNM+i}, 0")
    A(f"v_mov_b32 v{vMO}, 0x7149f2ca"); A(f"v_mov_b32 v{vL}, 0"); A(f"v_mov_b32 v{vL+1}, 0"); A(f"v_mov_b32 v{vAt}, 0")
    def ktab_reads(S):
        S(f"v_add_u32 v{vTmp+2}, s{sKsl}, v{vTK}")
        S(f"ds_read_b64 {vr(vKSr,2)}, v{vTmp+2} offset:{LDS_TAB}"); S(f"ds_read_b64 {vr(vKZr,2)}, v{vTmp+2} offset:{LDS_TAB+TABW}")
    def vtab_reads(S):
        S(f"v_xor_b32 v{vTmp+2}, s{sVsl}, v{vTV}")
        S(f"ds_read_u16 v{vVSr}, v{vTmp+2} offset:{LDS_TAB+2*TABW}"); S(f"ds_read_u16 v{vVZr}, v{vTmp+2} offset:{LDS_TAB+3*TABW}")
    def prep_v(S):
        S.c("V: S = vs*2^24, C = -vz*vs per token, broadcast through LDS")
        S(f"v_lshlrev_b32 v{vT2}, 16, v{vVSr}"); S(f"v_lshlrev_b32 v{vT2+1}, 16, v{vVZr}")
        S(f"v_mul_f32 v{vT2+1}, -v{vT2+1}, v{vT2}"); S(f"v_mul_f32 v{vT2}, 0x4b800000, v{vT2}")
        S(f"ds_write_b64 v{vSW}, {vr(vT2,2)}")
    def prep_k(S):
        S.c("K: S = ks*c*2^24, C = -kz*ks*c per channel, c = log2(e)/sqrt(128) (the int code is read as an f16 subnormal, code*2^-24)")
        for p in range(2): S(f"v_lshlrev_b32 v{vKS+2*p}, 16, v{vKSr+p}"); S(f"v_lshlrev_b32 v{vKC+2*p}, 16, v{vKZr+p}")
        for p in range(2): S(f"v_and_b32 v{vKS+2*p+1}, 0xffff0000, v{vKSr+p}"); S(f"v_and_b32 v{vKC+2*p+1}, 0xffff0000, v{vKZr+p}")
        for p in range(2): S(f"v_pk_mul_f32 {vr(vKS+2*p,2)}, {vr(vKS+2*p,2)}, s[{sK1}:{sK1+1}]")
        for p in range(2): S(f"v_pk_mul_f32 {vr(vKC+2*p,2)}, {vr(vKC+2*p,2)}, s[{sK2}:{sK2+1}]")
        for p in range(2): S(f"v_pk_mul_f32 {vr(vKC+2*p,2)}, {vr(vKC+2*p,2)}, {vr(vKS+2*p,2)}")
    def sc_lo_reads(S):
        for i in range(4): S(f"ds_read_b128 {vr(vSc+4*i,4)}, v{vSR} offset:{i*16}")
    ENTRYV = 15 - max(capn(c, 15) for c in (cap, capV, capF, capS))
    ENTRY = 15 - capn(cap, 15)
    if pbar:
        assert npre < pbar < 15
        for k in range(npre, 16):
            if k == pbar:
                A(f"s_waitcnt vmcnt({pbar - npre})"); A("s_barrier")
                ktab_reads(A); vtab_reads(A)
            if k == pbar + 1: A("s_waitcnt lgkmcnt(0)"); prep_v(A)
            A(f"s_waitcnt vmcnt({min(capn(capP, k), 15 - ENTRY) if k == 15 else capn(capP, k)})"); A(item_text(k))
    else:
        for k in range(npre, 16):
            A(f"s_waitcnt vmcnt({capn(capP, k)})"); A(item_text(k))
        assert 16 - ENTRY <= 16 - npre
        A(f"s_waitcnt vmcnt({16 - ENTRY})"); A("s_barrier")
        ktab_reads(A); vtab_reads(A)
        A("s_waitcnt lgkmcnt(0)")
        prep_v(A)
    pro = A

    def itstamp(S):
        if stamps and itst:
            S("s_memrealtime s[96:97]"); S("s_mov_b32 s98, m0"); S(f"s_add_u32 m0, s{sI}, s{sJ}"); S(f"v_accvgpr_read_b32 v{vTmp+2}, a255"); S("s_waitcnt lgkmcnt(0)")
            S(f"v_writelane_b32 v{vTmp+2}, s96, m0"); S("s_mov_b32 m0, s98"); S(f"v_accvgpr_write_b32 a255, v{vTmp+2}")

    def emit(B, items, place, seq0, done0, caps, name, at=None):
        out = []; ei = 0; done = done0; info = []; marks = {}; atd = False
        def wait(n):
            nonlocal done
            if ei - n > done:
                out.append(f"    s_waitcnt vmcnt({n + (1 if atd and ei - n <= at else 0)})"); done = ei - n; return True
            return False
        for i, x in enumerate(B.I):
            while ei < len(items) and place[ei] == i:
                if ei == at and not ua:
                    out.extend([f"    s_cmp_lg_u32 s{sAt}, 0", "    s_cbranch_scc0 L_noat", "    s_mov_b64 exec, 1", f"    v_mov_b32 v{vAt}, 1",
                                f"    buffer_atomic_add v{vAt}, off, {srd(sWS)}, s{sCoff} sc0", "    s_mov_b64 exec, -1", "L_noat:"])
                if caps: wait(capn(caps, ei))
                if ei == at and ua:
                    out.extend([f"    v_mov_b32 v{vAt}, 1", f"    buffer_atomic_add v{vAt}, v{vAo}, {srd(sWS)}, s{sCoff} offen sc0"]); atd = True
                out.append("    " + items[ei]); ei += 1
            if "mark" in x:
                marks[(x["mark"], x["k"])] = (ei, done)
                if x["mark"] == "wait":
                    n = ei - 1 - seq0[x["k"]]; assert n >= 0
                    info.append((x["k"], n, wait(n)))
                elif x["mark"] == "smallwait": wait(ei - x["k"])
                elif x["mark"] == "postwait": out.append(f"    s_waitcnt vmcnt({AL})")
            else: out.append(x["t"])
        assert ei == len(items)
        print(name, "cost", sum(x["c"] for x in B.I), "waits", [(k, n) for k, n, w in info if w], "lead", min(n for k, n, w in info), file=sys.stderr)
        return out, marks
    class Pos:
        def __init__(self, B):
            self.I = B.I; self.cum = []; a = 0
            for x in B.I: self.cum.append(a); a += x["c"]
            self.tot = a
        def i(self, kind, k=None): return next(i for i, x in enumerate(self.I) if x.get("mark") == kind and x.get("k") == k)
        def c(self, kind, k=None): return self.cum[self.i(kind, k)]
        def at(self, t, lo):
            p = max(lo, next((i for i in range(len(self.I)) if self.cum[i] >= t), len(self.I) - 1))
            while not self.I[p]["ins"]: p += 1
            return p

    def deq(S, r, s, c): S(f"v_fma_mix_f32 v{r}, v{r}, v{s}, v{c} op_sel_hi:[1,0,0]")
    def kitems(B, n):
        for k in range(0, n, 2):
            r = vRing + 4 * k; t = vKP + 4 * ((k // 2) % 2)
            B.mark("wait", k + 1)
            for u in range(2):
                for j in range(4): deq(B, r + 4 * u + j, vKS + j, vKC + j)
            for u in range(4): B(f"v_cvt_pk_bf16_f32 v{t+u}, v{r+2*u}, v{r+2*u+1}")
            B.mark("free", k); B.mark("free", k + 1)
            B(f"ds_write2_b64 v{vKW + k//4}, {vr(t,2)}, {vr(t+2,2)} offset0:{(k%4)*KROW//8} offset1:{(k%4+1)*KROW//8}")
        B.mark("kdone")
    def mfma_loop(B, reads, mfmas, fill, start=0, ids=None, after=None):
        n = len(mfmas)
        if ids is None:
            ids = {}
            for i in range(PF): ids[i] = B(reads[i])
            for t in fill.get(-1, []): B(t)
        for i in range(start, n):
            if i % 2 == 0 or i == start: B.waitds(ids[min(n - 1, i | 1)])
            B(mfmas[i])
            if i + PF < n: ids[i + PF] = B(reads[i + PF])
            for t in fill.get(i, []): B(t)
            if after and i in after: after[i](dict(ids))
    def qk_lists(nblk):
        order = [(2 * bp + u, s4) for bp in range(nblk // 2) for s4 in range(4) for u in range(2)]
        rd = [f"ds_read_b128 {vr(vSt+4*(i%NST),4)}, v{vKR} offset:{LDS_K + b*16*KROW + s4*64}" for i, (b, s4) in enumerate(order)]
        mf = [f"v_mfma_f32_16x16x32_bf16 {vr(vS+4*b,4)}, {vr(vSt+4*(i%NST),4)}, {vr(vQ+4*s4,4)}, {vr(vNM,4) if s4 == 0 else vr(vS+4*b,4)}" for i, (b, s4) in enumerate(order)]
        return rd, mf
    def max_ops(bp):
        b = vS + 8 * bp
        if bp == 0: return [f"v_max3_f32 v{vMx}, v{b}, v{b+1}, v{b+2}", f"v_max3_f32 v{vMx}, v{vMx}, v{b+3}, v{b+4}", f"v_max3_f32 v{vMx}, v{vMx}, v{b+5}, v{b+6}", f"v_max_f32 v{vMx}, v{vMx}, v{b+7}"]
        return [f"v_max3_f32 v{vMx}, v{vMx}, v{b+2*u}, v{b+2*u+1}" for u in range(4)]
    def qk_fill(nblk):
        f = {}
        for bp in range(nblk // 2 - 1):
            last = bp + 2 == nblk // 2
            slots = (4, 5, 6, 7) if last else (3, 5, 7, 7)
            for s_, t in zip(slots, max_ops(bp)): f.setdefault(8 * (bp + 1) + s_, []).append(t)
        return f
    def check_max(B, nblk, tag, pre):
        for t in pre: B(t)
        if len(pre) < 6: B(f"s_nop {5 - len(pre)}")
        for t in max_ops(nblk // 2 - 1): B(t)
        B(f"v_cmp_lt_f32 vcc, s{sThr}, v{vMx}")
        B.lock = True
        B(f"s_cbranch_vccnz L_rescale{tag}")
        B.label(f"L_rescaled{tag}")
        B.lock = False
    exp_op = lambda i: f"v_exp_f32 v{vS+i}, v{vS+i}"
    sum_cvt = lambda i: [f"v_pk_add_f32 {vr(vL,2)}, {vr(vL,2)}, {vr(vS+2*i,2)}", f"v_cvt_pk_bf16_f32 v{vS+i}, v{vS+2*i}, v{vS+2*i+1}"]
    def vphase(B, k0, s, refill_hi):
        rg = lambda n8: vRing + 4 * (k0 + n8)
        for n8 in (0, 2):
            B.mark("wait", k0 + n8 + 1)
            for u in range(2):
                for j in range(4): deq(B, rg(n8 + u) + j, vSc + 2 * (n8 + u), vSc + 2 * (n8 + u) + 1)
            if refill_hi: B(f"ds_read_b128 {vr(vSc+4*(n8//2),4)}, v{vSR} offset:{64 + (n8//2)*16}")
            for j in range(4): B(f"v_cvt_pk_bf16_f32 v{vVP+4*j+n8//2}, v{rg(n8)+j}, v{rg(n8+1)+j}")
            B.mark("free", k0 + n8); B.mark("free", k0 + n8 + 1)
        B.mark("wait", k0 + 7)
        for j in range(4):
            for n8 in range(4, 8): deq(B, rg(n8) + j, vSc + 2 * n8, vSc + 2 * n8 + 1)
            for n8 in (4, 6): B(f"v_cvt_pk_bf16_f32 v{vVP+4*j+n8//2}, v{rg(n8)+j}, v{rg(n8+1)+j}")
            if j == 3:
                for n8 in range(4, 8): B.mark("free", k0 + n8)
            B(f"ds_write_b128 v{vVW}, {vr(vVP+4*j,4)} offset:{s*8*OS + j*JS}")
        if refill_hi:
            for u in (2, 3): B(f"ds_read_b128 {vr(vSc+4*u,4)}, v{vSR} offset:{64 + u*16}")
    def pv_lists(s, pbase=None):
        if pbase is None: pbase = vS
        lst = [(2 * s + kk, db) for kk in range(2) for db in range(8)]
        rd = [f"ds_read_b128 {vr(vSt+4*(i%NST),4)}, v{vVR} offset:{ks*4*OS + (db//2)*128 + (db%2)*16}" for i, (ks, db) in enumerate(lst)]
        mf = [f"v_mfma_f32_16x16x32_bf16 {vr(vO+4*db,4)}, {vr(vSt+4*(i%NST),4)}, {vr(pbase+4*ks,4)}, {vr(vO+4*db,4)}" for i, (ks, db) in enumerate(lst)]
        return rd, mf
    def ops_of(f):
        S = Stream(); f(S); return [x["t"].strip() for x in S.I if not x["t"].strip().startswith(";")]
    def spread(ops, first, per=1):
        f = {}
        for n, t in enumerate(ops): f.setdefault(first + n // per, []).append(t)
        return f
    def save_ops(i0):
        return [f"v_accvgpr_write_b32 a{17*i0+i}, v{vS+i}" for i in range(16)] + [f"v_accvgpr_write_b32 a{17*i0+16}, v{vNM}"]
    unit_items = [item_text(k) for k in range(16)]
    unit_seq = {k: k - 16 for k in range(16)}

    B = Stream()
    B.lock = True
    B.label("L_K")
    itstamp(B)
    B(f"s_add_u32 s{sI}, s{sI}, 1")
    B(f"s_cmp_lt_u32 s{sI}, {npf}"); B("s_cbranch_scc0 L_k2v")
    unit_offs(B, sI, sKsl); B(f"s_andn2_b32 s{sKsl}, s{sKsl}, 255")
    B(f"s_cmp_le_u32 s{sI}, s{sHk}"); B("s_cbranch_scc1 L_hookK")
    B.label("L_k1")
    B("s_waitcnt lgkmcnt(0)")
    B.lock = False
    B.mark("ready")
    prep_k(B)
    kitems(B, 16)
    B.c("park the previous tile's P while the K rows settle in LDS")
    B("s_branch L_save", 150)
    B.lock = True
    B.label("L_saved")
    B.lock = False
    B("s_waitcnt lgkmcnt(0)"); B("s_barrier", 20)
    B.c("S^T - m = K Q^T - m (log2 units)")
    rd, mf = qk_lists(8)
    mfma_loop(B, rd, mf, qk_fill(8))
    B("s_barrier", 10)
    check_max(B, 8, "K", ops_of(ktab_reads))
    for half in range(2):
        for i in range(16): B(exp_op(16 * half + i))
        for i in range(8):
            for t in sum_cvt(8 * half + i): B(t)
    B.mark("allissued")
    B.lock = True
    B(f"s_cmp_lt_u32 s{sI}, {npf}"); B("s_cbranch_scc1 L_K")
    sc_lo_reads(B)
    B.c("the last tile's P waits in the Q registers; l is final: sum it over the four lane groups")
    for i in range(16): B(f"v_mov_b32 v{vQ+i}, v{vS+i}")
    B(f"v_add_f32 v{vHd+1}, v{vL}, v{vL+1}")
    for sw in ("v_permlane32_swap_b32", "v_permlane16_swap_b32"):
        B(f"v_mov_b32 v{vTmp+1}, v{vHd+1}"); B("s_nop 1"); B(f"{sw} v{vTmp+1}, v{vHd+1}"); B("s_nop 1"); B(f"v_add_f32 v{vHd+1}, v{vHd+1}, v{vTmp+1}")
    if ua: B(f"v_mov_b32 v{vAo}, 0x40000000")
    B.lock = False
    P = Pos(B); c0 = P.c("free", 0); c1 = P.c("kdone"); c2 = P.c("allissued")
    tg = [c0 + (c1 - c0) * k / (nK1 - 1) for k in range(nK1)] + [c1 + (c2 - c1) * (k + 1) / (16 - nK1) - 8 for k in range(16 - nK1)]
    pl = []
    for k in range(16): pl.append(P.at(tg[k], max(pl[-1] if pl else 0, P.i("free", k) + 1))); assert pl[-1] <= P.i("allissued")
    kbody, _ = emit(B, unit_items, pl, unit_seq, ENTRY - 16, cap, "K")
    print("  K issue", [P.cum[p] for p in pl], file=sys.stderr)

    sig = sorted(m + 1 for m in ms) + [jo]
    assert jr <= sig[0] and jr < 14
    assert sig == sorted(set(sig))
    events = sorted(set(sig) | set(x + 1 for x in sig) | {jr, 16} | ({tw} if tw else set()))
    D_ = Stream()
    D_.label("L_V")
    itstamp(D_)
    D_(f"s_add_u32 s{sJ}, s{sJ}, 1")
    D_(f"s_bitcmp1_b32 {hex(sum(1 << e for e in events))}, s{sJ}")
    D_("s_waitcnt lgkmcnt(0)")
    D_("s_cbranch_scc1 L_ctl")
    D_.label("L_v0")
    unit_offs(D_, sJ, sVsl)
    D_(f"s_cmp_lg_u32 s{sMode}, 0"); D_("s_cbranch_scc1 L_vdisp")
    def make_V(tag, caps):
        B = Stream()
        B.label(f"L_V{tag}_")
        B.mark("ready")
        vphase(B, 0, 0, True)
        vtab_reads(B)
        B.c("fetch this tile's P back while the V rows settle in LDS")
        B("s_branch L_restore", 150)
        B.lock = True
        if tag == "":
            B.label("L_restored")
            B(f"s_cmp_lg_u32 s{sMode}, 0"); B("s_cbranch_scc1 L_rdisp")
        B.label(f"L_rest{tag}_")
        B.lock = False
        B("s_waitcnt lgkmcnt(0)"); B("s_barrier", 20)
        rd, mf = pv_lists(0)
        pvv = ops_of(prep_v)
        mfma_loop(B, rd, mf, {-1: pvv[:4], 9: pvv[4:]})
        vphase(B, 8, 1, False)
        B(f"s_cmp_lg_u32 s{sAt}, 0")
        B.lock = True
        B(f"s_cbranch_scc0 L_nopost{tag}")
        B.mark("postwait")
        B(f"ds_write_b32 v{vL4}, v{vAt} offset:{LDS_MB}")
        B.label(f"L_nopost{tag}")
        B.lock = False
        B("s_waitcnt lgkmcnt(0)"); B("s_barrier")
        rd, mf = pv_lists(1)
        mfma_loop(B, rd, mf, spread(ops_of(sc_lo_reads) + [f"ds_read_b32 v{vTmp}, v{vMb}"], 8))
        B.mark("allissued")
        B.lock = True
        B("s_branch L_V")
        B.lock = False
        P = Pos(B); c0 = P.c("free", 0); c1 = c0 + (P.c("allissued") - c0) * vtail
        pl = []
        for k in range(16): pl.append(P.at(c0 + (c1 - c0) * k / 15 - 8, max(pl[-1] if pl else 0, P.i("free", k) + 1))); assert pl[-1] <= P.i("allissued")
        nb = sum(1 for p in pl if p <= P.i("postwait")); assert nb >= AL
        body, _ = emit(B, unit_items, pl, unit_seq, ENTRYV - 16, caps, "V" + tag, at=nb - AL)
        print("  V issue", [P.cum[p] for p in pl], "atomic before", nb - AL, file=sys.stderr)
        return [l.replace("L_noat", "L_noat" + tag) for l in body]
    vbody = D_.text() + make_V("", capV) + make_V("f", capF) + make_V("s", capS)
    hbody = []

    E = Stream()
    def stampE(i):
        if stamps and not (hst == 1 and i in (2, 3, 4)) and not (hst == 2 and i in (2, 3)): E(f"s_memrealtime s[{84+2*i}:{85+2*i}]")
    def lsum():
        stampE(1)
        if stamps: E("s_mov_b32 s99, 0")
    ml = lambda x: vKP + 2 * (x - 1)
    dat = lambda x: vRing + 16 * (x - 1)
    bb = vKSr; u0 = vVP; vPo = vKS; vBa = vKS + 1; vPv = vKC; sLd = sCnt; sNew = sMode
    pl_ = [f"buffer_load_dwordx4 {vr(dat(x)+4*q,4)}, v{vLin}, {srd(sWS)}, s{sPo+x-1} offen offset:{q*1024} sc0 sc1" for x in range(1, 4) for q in range(4)]
    poll = f"buffer_load_dwordx2 {vr(vPv,2)}, v{vPo}, {srd(sWS)}, s{sG} offen sc0 sc1"
    def ready(dst):
        return [f"v_max_u32 v{vTmp+1}, v{vPv}, v{vPv+1}", f"v_cmp_eq_u32 vcc, -1, v{vTmp+1}",
                f"s_lshr_b32 s{sT}, vcc_lo, 16", f"s_cselect_b32 s{dst}, 0, 2",
                f"s_and_b32 s{sT}, vcc_hi, 0xffff", f"s_cselect_b32 s{sT}, 0, 4", f"s_or_b32 s{dst}, s{dst}, s{sT}",
                f"s_lshr_b32 s{sT}, vcc_hi, 16", f"s_cselect_b32 s{sT}, 0, 8", f"s_or_b32 s{dst}, s{dst}, s{sT}"]
    spreadh = [f"ds_bpermute_b32 v{ml(x)+u}, v{vBa}, v{vPv+u} offset:{64*x}" for x in range(1, 4) for u in range(2)]
    E.c("last unit; the count tells the order in which the pair's workgroups got near the end: the fourth merges")
    E.label("L_last")
    E(f"s_mov_b32 s{sPend}, s{sG}")
    E(f"s_lshl2_add_u32 s{sG}, s{sPair}, s{sWave}"); E(f"s_lshl_b32 s{sG}, s{sG}, 15"); E(f"s_add_u32 s{sG}, s{sG}, {WS_SLOT}")
    E(f"v_lshrrev_b32 v{vPo}, 4, v{vLane}"); E(f"v_and_b32 v{vBa}, 15, v{vLane}"); E(f"v_xor_b32 v{vPo}, s{sSplit}, v{vPo}"); E(f"v_lshlrev_b32 v{vPo}, 13, v{vPo}")
    E(f"v_lshl_add_u32 v{vPo}, v{vBa}, 3, v{vPo}"); E(f"v_add_u32 v{vPo}, 4096, v{vPo}"); E(f"v_lshlrev_b32 v{vBa}, 2, v{vBa}")
    for x in range(4):
        E(f"s_xor_b32 s{sT}, s{sSplit}, {x}"); E(f"s_lshl_b32 s{sT}, s{sT}, 13"); E(f"s_add_u32 s{sPo+x-1}, s{sG}, s{sT}")
    E(f"s_cmp_eq_u32 s{sPend}, 3"); E(f"s_mov_b32 s{sPend}, 14")
    if stamps: E("s_cselect_b32 s100, 2, 1")
    T_ = Stream()
    if hst == 1: T_("s_memrealtime s[88:89]")
    vphase(T_, 0, 0, True)
    T_(f"v_cmp_neq_f32 vcc, v{vNM}, v{vMO}")
    T_.lock = True
    T_(f"s_cbranch_vccnz L_oldrefE")
    T_.label(f"L_newrefE")
    T_.lock = False
    if hst == 1: T_("s_memrealtime s[90:91]")
    T_("s_waitcnt lgkmcnt(0)"); T_("s_barrier", 20)
    rd, mf = pv_lists(0, vQ); mfma_loop(T_, rd, mf, {})
    vphase(T_, 8, 1, False)
    if hst == 1: T_("s_memrealtime s[92:93]")
    T_("s_waitcnt lgkmcnt(0)"); T_("s_barrier")
    rd, mf = pv_lists(1, vQ); mfma_loop(T_, rd, mf, {})
    Pt = Pos(T_)
    p = Pt.at(Pt.c("wait", 15) + pb, Pt.i("wait", 15) + 1)
    T_.I[p:p] = [dict(t=t, c=0, ins=True) for t in ("    s_cbranch_scc0 L_nolook", "    " + poll, "L_nolook:")]
    out, _ = emit(T_, [], [], unit_seq, ENTRYV - 16, None, "tail")
    assert not any(t.strip().startswith("s_") and not t.strip().startswith(("s_waitcnt", "s_barrier", "s_cbranch", "s_nop", "s_memrealtime")) for t in out)
    for t in out: E.I.append(dict(t=t, c=0, ins=True))
    lsum()
    E("s_cbranch_scc1 L_merge")
    E.c("one of the first three: hand the partial over (write-through); once it is out, the header (-m, l), never the empty mark")
    for q in range(4):
        for i in range(4 * q, 4 * q + 4): E(f"v_cvt_pk_bf16_f32 v{vSt+i}, v{vO+2*i}, v{vO+2*i+1}")
        E(f"buffer_store_dwordx4 {vr(vSt+4*q,4)}, v{vLin}, {srd(sWS)}, s{sPo-1} offen offset:{q*1024} sc0 sc1")
    E("s_mov_b64 exec, 0xffff")
    E(f"v_min_u32 v{vHd}, -2, v{vNM}"); E(f"v_min_u32 v{vHd+1}, -2, v{vHd+1}")
    if hst == 2: E("s_memrealtime s[88:89]")
    E("s_waitcnt vmcnt(0)")
    if hst == 2: E("s_memrealtime s[90:91]")
    E(f"buffer_store_dwordx2 {vr(vHd,2)}, v{vPo}, {srd(sWS)}, s{sG} offen sc0 sc1")
    if stamps:
        E("s_mov_b64 exec, -1")
        for i in (2, 3, 4): stampE(i)
        E("s_branch L_done")
    else:
        E("s_endpgm")
    E.c("keep looking at the headers; fetch each partial once its header is complete")
    E.label("L_look")
    E(poll)
    E(f"s_sub_u32 s{sSpin}, s{sSpin}, 1"); E("s_cbranch_scc1 L_end")
    if stamps: E("s_add_u32 s99, s99, 1")
    E.label("L_merge")
    E("s_waitcnt vmcnt(0)")
    for t in ready(sNew): E(t)
    E(f"s_and_b32 s{sNew}, s{sNew}, s{sPend}"); E("s_cbranch_scc0 L_look")
    if hst == 2: E("s_memrealtime s[88:89]")
    for x in range(1, 4):
        E(f"s_bitcmp1_b32 s{sNew}, {x}"); E(f"s_cbranch_scc0 L_get{x}")
        for t in pl_[4*(x-1):4*x]: E(t)
        E.label(f"L_get{x}")
    E(f"s_andn2_b32 s{sPend}, s{sPend}, s{sNew}"); E("s_cbranch_scc1 L_look")
    E.c("all headers are in: final weights 2^(m_x - M) / L, while the last partials are on their way")
    for t in spreadh: E(t)
    wt = lambda x: vKSr + 2 * x if x < 2 else vKS + 2 * (x - 2) + 4
    E(f"v_and_b32 v{vTmp}, 7, v{vLane}" if fullo else f"v_and_b32 v{vTmp}, 15, v{vLane}"); E(f"v_lshrrev_b32 v{vTmp+1}, 4, v{vLane}")
    E(f"v_lshlrev_b32 v{vTmp}, 8, v{vTmp}"); E(f"v_lshl_add_u32 v{vTmp}, v{vTmp+1}, 4, v{vTmp}")
    if fullo: E(f"v_and_b32 v{vTmp+1}, 8, v{vLane}"); E(f"v_lshl_add_u32 v{vTmp}, v{vTmp+1}, 3, v{vTmp}")
    E(f"s_xor_b32 s{sLd}, s{sNew}, 14"); E(f"s_lshl_b32 s{sT2}, s{sWave}, 12")
    E("s_waitcnt lgkmcnt(0)")
    E(f"v_min3_f32 v{vMx}, v{vNM}, v{ml(1)}, v{ml(2)}"); E(f"v_min_f32 v{vMx}, v{vMx}, v{ml(3)}")
    for x in range(4): E(f"v_sub_f32 v{wt(x)}, v{vMx}, v{ml(x) if x else vNM}")
    for x in range(4): E(f"v_exp_f32 v{wt(x)}, v{wt(x)}")
    E(f"v_mul_f32 v{vHd+1}, v{vHd+1}, v{wt(0)}")
    for x in range(1, 4): E(f"v_fmac_f32 v{vHd+1}, v{ml(x)+1}, v{wt(x)}")
    E(f"v_rcp_f32 v{vHd+1}, v{vHd+1}"); E("s_nop 0")
    for x in range(4): E(f"v_mul_f32 v{wt(x)}, v{wt(x)}, v{vHd+1}")
    for i in range(16): E(f"v_pk_mul_f32 {vr(vO+2*i,2)}, {vr(vO+2*i,2)}, {vr(wt(0),2)} op_sel_hi:[1,0]")
    E.c("two passes: the partials that landed earlier, then the last ones")
    E.label("L_pass")
    for x in range(1, 4):
        E(f"s_bitcmp1_b32 s{sLd}, {x}"); E(f"s_cbranch_scc0 L_fold{x}")
        if x > 1: E(f"s_cmp_lg_u32 s{sNew}, 0"); E(f"s_cbranch_scc1 L_in{x}")
        E(f"s_waitcnt vmcnt({4*(3-x)})"); E.label(f"L_in{x}")
        for q in range(2):
            r = dat(x) + 8 * q
            for i in range(8): E(f"v_lshlrev_b32 v{u0+2*i}, 16, v{r+i}")
            for i in range(8): E(f"v_and_b32 v{u0+2*i+1}, 0xffff0000, v{r+i}")
            for i in range(8):
                d = vO + 2 * (8 * q + i)
                E(f"v_pk_fma_f32 {vr(d,2)}, {vr(u0+2*i,2)}, {vr(wt(x),2)}, {vr(d,2)} op_sel_hi:[1,0,1]")
        E.label(f"L_fold{x}")
    E(f"s_cmp_lg_u32 s{sNew}, 0"); E("s_cbranch_scc1 L_second")
    E.label("L_merged")
    for i in (2, 3, 4): stampE(i)
    if fullo:
        E.c("swap halves between rows q and q+8 so that every store covers whole 128-byte lines")
        for u in (0, 2):
            A_, B_ = vS + 4 * u, vS + 4 * u + 4
            for i in range(4 * u, 4 * u + 8): E(f"v_cvt_pk_bf16_f32 v{vS+i}, v{vO+2*i}, v{vO+2*i+1}")
            for i in range(4): E(f"v_mov_b32 v{u0+i}, v{A_+i}")
            for i in range(4): E(f"v_mov_b32_dpp v{A_+i}, v{B_+i} row_ror:8 row_mask:0xf bank_mask:0xc")
            for i in range(4): E(f"v_mov_b32_dpp v{B_+i}, v{u0+i} row_ror:8 row_mask:0xf bank_mask:0x3")
            E(f"buffer_store_dwordx4 {vr(A_,4)}, v{vTmp}, {srd(sOUT)}, s{sT2} offen offset:{u*64} {outf}")
            E(f"buffer_store_dwordx4 {vr(B_,4)}, v{vTmp}, {srd(sOUT)}, s{sT2} offen offset:{2048 + u*64} {outf}")
    else:
        for u in range(4):
            for i in range(4 * u, 4 * u + 4): E(f"v_cvt_pk_bf16_f32 v{vS+i}, v{vO+2*i}, v{vO+2*i+1}")
            E(f"buffer_store_dwordx4 {vr(vS+4*u,4)}, v{vTmp}, {srd(sOUT)}, s{sT2} offen offset:{u*64} {outf}")
    if pollmax:
        E(f"s_sub_u32 s{sT}, {SPIN}, s{sSpin}"); E(f"s_cmp_gt_u32 s{sT}, 6"); E("s_cbranch_scc0 L_done")
        E("s_mov_b64 exec, 1"); E(f"v_mov_b32 v{vAt}, s{sT}"); E(f"s_mov_b32 s{sT2}, 0x23000000")
        E(f"buffer_atomic_umax v{vAt}, off, {srd(sWS)}, s{sT2}")
        E(f"v_mov_b32 v{vFl}, 1"); E(f"buffer_atomic_add v{vFl}, off, {srd(sWS)}, s{sT2} offset:4")
    E.label("L_done")
    if stamps:
        E("s_waitcnt vmcnt(0)")
        stampE(5)
        E(f"s_lshl2_add_u32 s{sT}, s{sPair}, s{sSplit}"); E(f"s_lshl2_add_u32 s{sT}, s{sT}, s{sWave}"); E(f"s_lshl_b32 s{sT2}, s{sT}, 4")
        E(f"s_lshl_b32 s4, s{sT}, 8"); E("s_add_u32 s4, s4, 0x22000000")
        E(f"s_add_u32 s{sT2}, s{sT2}, 0x20000000")
        E(f"s_lshl_b32 s{sT}, s{sT}, 6"); E(f"s_add_u32 s{sT}, s{sT}, 0x21000000")
        E("s_waitcnt lgkmcnt(0)")
        E(f"v_accvgpr_read_b32 v60, a255")
        for i in range(12): E(f"v_mov_b32 v{16+i}, s{84+i}")
        E(f"v_mov_b32 v28, s101"); E("s_getreg_b32 s5, hwreg(HW_REG_XCC_ID)"); E("v_mov_b32 v29, s5"); E(f"v_mov_b32 v30, s100"); E("v_mov_b32 v31, s99")
        E("v_mov_b32 v32, s84"); E("v_mov_b32 v33, s85"); E("v_mov_b32 v34, s94"); E("v_mov_b32 v35, s95")
        E(f"buffer_store_dword v60, v{vL4}, {srd(sWS)}, s4 offen sc0 sc1")
        E("s_mov_b64 exec, 1")
        E(f"buffer_store_dwordx4 v[32:35], off, {srd(sWS)}, s{sT2} sc0 sc1")
        for i in range(4): E(f"buffer_store_dwordx4 v[{16+4*i}:{19+4*i}], off, {srd(sWS)}, s{sT} offset:{16*i} sc0 sc1")
    E.label("L_end")
    E("s_endpgm")

    E.label("L_second")
    E(f"s_mov_b32 s{sLd}, s{sNew}"); E(f"s_mov_b32 s{sNew}, 0")
    E.c("all three in flight together: the counted waits of the pass let each fold start as its partial lands")
    E(f"s_cmp_eq_u32 s{sLd}, 14"); E("s_cbranch_scc1 L_pass")
    E("s_waitcnt vmcnt(0)")
    if hst == 2: E("s_memrealtime s[90:91]")
    E("s_branch L_pass")
    def scale_O(r):
        for i in range(16): E(f"v_pk_mul_f32 {vr(vO+2*i,2)}, {vr(vO+2*i,2)}, {vr(r,2)} op_sel_hi:[1,0]")

    E.label("L_k2v")
    unit_offs(E, None, None); set_base(E, sVb)
    E(f"s_cmp_lg_u32 s{sW0}, 0"); E("s_cbranch_scc0 L_k1")
    if diags:
        E("s_mov_b64 exec, 1"); E(f"v_mov_b32 v{vTmp}, s84"); E(f"v_not_b32 v{vTmp+1}, v{vTmp}")
        E(f"buffer_atomic_umax v{vTmp}, off, {srd(sDBG)}, 0 offset:128"); E(f"buffer_atomic_umax v{vTmp+1}, off, {srd(sDBG)}, 0 offset:132"); E("s_mov_b64 exec, -1")
    E(f"buffer_load_dword v{vFl}, off, {srd(sDBG)}, 0 offset:4 {flagf}")
    E("s_branch L_k1")

    E.label("L_vdisp")
    E(f"s_sub_u32 s{sCnt}, s{sCnt}, 1"); E(f"s_cselect_b32 s{sMode}, 0, s{sMode}"); E("s_cbranch_scc1 L_V_")
    E(f"s_cmp_eq_u32 s{sMode}, 1"); E("s_cbranch_scc1 L_Vf_"); E("s_branch L_Vs_")
    E.label("L_rdisp")
    E(f"s_cmp_eq_u32 s{sMode}, 1"); E("s_cbranch_scc1 L_restf_"); E("s_branch L_rests_")
    E.c("progress counts: read the last one, arm the next one")
    E.label("L_ctl")
    E(f"v_readfirstlane_b32 s{sG}, v{vTmp}"); E(f"s_mov_b32 s{sAt}, 0")
    if ua: E(f"v_mov_b32 v{vAo}, 0x40000000")
    E(f"s_cmp_eq_u32 s{sJ}, 16"); E("s_nop 1"); E("s_cbranch_scc1 L_last")
    if jo < 15:
        E.c("order within the pair: let the workgroups that will hand over finish ahead of the one that merges")
        E(f"s_cmp_eq_u32 s{sJ}, {jo+1}"); E("s_cbranch_scc0 L_noto")
        for o, ch in enumerate(om):
            if ch != "-":
                E(f"s_cmp_eq_u32 s{sG}, {o}"); E(f"s_cselect_b32 s{sMode}, {dict(n=0, f=1, s=2)[ch]}, s{sMode}"); E(f"s_cselect_b32 s{sCnt}, 7, s{sCnt}")
        E("s_branch L_v0")
        E.label("L_noto")
    E(f"s_bitcmp1_b32 {hex(sum(1 << (x + 1) for x in sig))}, s{sJ}"); E("s_cbranch_scc0 L_arm")
    if stamps: E("s_lshl_b32 s101, s101, 8"); E(f"s_or_b32 s101, s101, s{sG}")
    E.c("rank among the workgroups of this count -> how many units to run with more (late) or fewer (early) loads in flight")
    def enc(tb):
        assert len(tb) == 16
        v = sum(((8 | -d) if d < 0 else d) << (4 * i) for i, d in enumerate(tb)); return v & 0xffffffff, v >> 32
    for n in range(len(sig) - 1):
        lo, hi = enc(tabs[n])
        if n == 0: E(f"s_mov_b32 s4, {hex(lo)}"); E(f"s_mov_b32 s5, {hex(hi)}")
        else: E(f"s_cmp_eq_u32 s{sJ}, {sig[n]+1}"); E(f"s_cselect_b32 s4, {hex(lo)}, s4"); E(f"s_cselect_b32 s5, {hex(hi)}, s5")
    if len(sig) > 1:
        sh = int(math.log2(256 // shards)) - 4
        E(f"s_lshr_b32 s{sT}, s{sG}, {sh}"); E(f"s_min_u32 s{sT}, s{sT}, 15"); E(f"s_lshl_b32 s{sT}, s{sT}, 2"); E(f"s_lshr_b64 s[4:5], s[4:5], s{sT}")
        E(f"s_and_b32 s{sCnt}, s4, 7"); E("s_bitcmp1_b32 s4, 3"); E(f"s_cselect_b32 s{sMode}, 2, 1")
    E.label("L_arm")
    if tw:
        E.c("touch the output page once so that its translation is at hand for the final stores (the value is not used)")
        E(f"s_cmp_eq_u32 s{sJ}, {tw}"); E(f"s_cselect_b32 s{sT}, s{sW0}, 0"); E(f"s_cmp_lg_u32 s{sT}, 0"); E("s_cbranch_scc0 L_notw")
        E(f"buffer_load_dword v{vCk}, off, {srd(sOUT)}, 0 {twf}")
        E.label("L_notw")
    E(f"s_bitcmp1_b32 {hex(sum(1 << x for x in sig))}, s{sJ}"); E(f"s_cselect_b32 s{sAt}, s{sW0}, 0")
    if ua: E(f"s_cmp_lg_u32 s{sAt}, 0"); E(f"s_cselect_b32 s{sT}, 0, 0x40000000"); E(f"v_writelane_b32 v{vAo}, s{sT}, 0")
    E(f"s_mul_i32 s{sT}, s{sJ}, {shards}"); E(f"s_add_u32 s{sT}, s{sT}, s{sShard}"); E(f"s_and_b32 s{sT}, s{sT}, 63")
    E(f"s_lshl_b32 s{sT}, s{sT}, {cstride}"); E(f"s_add_u32 s{sT}, s{sT}, 4"); E(f"s_lshl_b32 s{sT2}, s{sPair}, {cstride}")
    E(f"s_cmp_eq_u32 s{sJ}, {jo}"); E(f"s_cselect_b32 s{sT}, s{sT2}, s{sT}"); E(f"s_add_u32 s{sCoff}, s{sT}, {WS_CTR}")
    assert len(set((x * shards + h) % 64 for x in sig[:-1] for h in range(shards))) == shards * (len(sig) - 1)
    E.c("before the first count: wave 0 checks that the counters are live")
    E(f"s_cmp_eq_u32 s{sJ}, {jr}"); E(f"s_cselect_b32 s{sT}, s{sW0}, 0"); E(f"s_cmp_lg_u32 s{sT}, 0"); E("s_cbranch_scc0 L_v0")
    def zero_counters():
        E(f"v_lshlrev_b32 v{vTmp}, {cstride}, v{vLane}"); E(f"v_mov_b32 v{vCk}, 0"); E(f"v_mov_b32 v{vFl}, 0"); E(f"s_mov_b32 s{sT}, {WS_CTR}")
        E(f"buffer_atomic_swap_x2 {vr(vCk,2)}, v{vTmp}, {srd(sWS)}, s{sT} offen sc0")
    E(f"v_readfirstlane_b32 s{sT}, v{vFl}"); E("s_mov_b64 exec, 1"); E("s_nop 2")
    E(f"s_cmp_lg_u32 s{sT}, 0"); E("s_cbranch_scc1 L_live")
    E.c("not seen live yet: claim the job if it is free, otherwise wait for the (running) workgroup that holds it")
    E(f"v_mov_b32 v{vFl}, 1")
    E(f"buffer_atomic_add v{vFl}, off, {srd(sDBG)}, 0 sc0")
    E("s_waitcnt vmcnt(0)"); E(f"v_readfirstlane_b32 s{sT}, v{vFl}"); E("s_nop 3")
    E(f"s_cmp_eq_u32 s{sT}, 0"); E("s_cbranch_scc0 L_flag")
    E("s_mov_b64 exec, -1"); zero_counters(); E("s_mov_b64 exec, 1")
    E("s_waitcnt vmcnt(0)"); E(f"v_mov_b32 v{vFl}, 1")
    E(f"buffer_atomic_or v{vFl}, off, {srd(sDBG)}, 0 offset:4")
    E("s_branch L_live")
    E.label("L_flag")
    E(f"v_mov_b32 v{vFl}, 0")
    E(f"buffer_atomic_or v{vFl}, off, {srd(sDBG)}, 0 offset:4 sc0")
    E("s_waitcnt vmcnt(0)"); E(f"v_readfirstlane_b32 s{sT}, v{vFl}"); E(f"s_sub_u32 s{sSpin}, s{sSpin}, 1"); E("s_cbranch_scc1 L_live"); E("s_nop 2")
    E(f"s_cmp_lg_u32 s{sT}, 0"); E("s_cbranch_scc0 L_flag")
    E.label("L_live")
    if not nolocal:
        E.c("note this workgroup's XCD in the pair's word")
        E(f"s_lshl_b32 s{sT}, 1, s{sXc}"); E(f"v_mov_b32 v{vFl}, s{sT}"); E(f"s_lshl_b32 s{sT}, s{sPair}, {cstride}"); E(f"s_add_u32 s{sT}, s{sT}, {WS_CTR}")
        E(f"buffer_atomic_add v{vFl}, off, {srd(sWS)}, s{sT}")
    E("s_mov_b64 exec, -1")
    E("s_branch L_v0")

    def tree(lo, hi, reg, pre, leaf):
        if lo == hi: leaf(lo); return
        mid = (lo + hi + 1) // 2
        E(f"s_cmp_ge_u32 s{reg}, {mid}"); E(f"s_cbranch_scc1 {pre}{mid}_{hi}")
        tree(lo, mid - 1, reg, pre, leaf)
        E.label(f"{pre}{mid}_{hi}")
        tree(mid, hi, reg, pre, leaf)
    E.label("L_restore")
    def rleaf(j1):
        b = 17 * (j1 - 1)
        E(f"v_accvgpr_read_b32 v{vMx}, a{b+16}")
        for i in range(16): E(f"v_accvgpr_read_b32 v{vS+i}, a{b+i}")
        E(f"v_cmp_neq_f32 vcc, v{vMx}, v{vMO}"); E("s_cbranch_vccz L_restored"); E("s_branch L_oldref")
    tree(1, npf - 1, sJ, "L_r", rleaf)
    E.c("this tile's P used a newer reference max than O holds: bring O up to it")
    E.label("L_oldref")
    E(f"v_sub_f32 v{vTmp}, v{vMx}, v{vMO}"); E(f"v_exp_f32 v{vTmp}, v{vTmp}"); E(f"v_mov_b32 v{vMO}, v{vMx}")
    scale_O(vTmp)
    E("s_branch L_restored")
    for tag in "E":
        E.label(f"L_oldref{tag}")
        E(f"v_sub_f32 v{vTmp}, v{vNM}, v{vMO}"); E(f"v_exp_f32 v{vTmp}, v{vTmp}"); E("s_nop 0")
        scale_O(vTmp)
        E(f"s_branch L_newref{tag}")
    E.label("L_save")
    def sleaf(i1):
        if i1 >= 2:
            for t in save_ops(i1 - 2): E(t)
        E("s_branch L_saved")
    tree(1, npf, sI, "L_s", sleaf)

    E.c("rare path: the running max rose past the threshold -> move the reference to the true running max")
    for tag, n in (("K", 32),):
        E.label(f"L_rescale{tag}")
        for sw in ("v_permlane32_swap_b32", "v_permlane16_swap_b32"):
            E(f"v_mov_b32 v{vTmp}, v{vMx}"); E("s_nop 1"); E(f"{sw} v{vTmp}, v{vMx}"); E("s_nop 1"); E(f"v_max_f32 v{vMx}, v{vMx}, v{vTmp}")
        E(f"v_max_f32 v{vTmp}, 0, v{vMx}"); E(f"v_max_f32 v{vT2}, s{sFlo}, v{vMx}")
        E(f"v_exp_f32 v{vTmp}, -v{vTmp}")
        E(f"s_mov_b32 s{sThr}, {hex(f32bits(T))}"); E(f"s_mov_b32 s{sFlo}, 0")
        for r in [vNM, vNM + 2] + [vS + i for i in range(0, n, 2)]:
            E(f"v_pk_add_f32 {vr(r,2)}, {vr(r,2)}, {vr(vT2,2)} op_sel_hi:[1,0] neg_lo:[0,1] neg_hi:[0,1]")
        E(f"v_pk_mul_f32 {vr(vL,2)}, {vr(vL,2)}, {vr(vTmp,2)} op_sel_hi:[1,0]")
        if tag != "K": scale_O(vTmp)
        E(f"s_branch L_rescaled{tag}")

    E.c("workgroup 0, wave 0: zero the counters in d_ws, then raise the flag in d_debug")
    E.label("L_hookK")
    E(f"s_cmp_eq_u32 s{sI}, 1"); E("s_cbranch_scc1 L_hk1")
    E(f"s_cmp_eq_u32 s{sI}, 3"); E("s_cbranch_scc0 L_k1")
    E("s_mov_b64 exec, 1"); E(f"v_mov_b32 v{vFl}, 1")
    E(f"buffer_atomic_or v{vFl}, off, {srd(sDBG)}, 0 offset:4")
    E("s_mov_b64 exec, -1"); E("s_branch L_k1")
    E.label("L_hk1")
    E(f"v_readfirstlane_b32 s{sT}, v{vFl}"); E("s_nop 3")
    E(f"s_cmp_eq_u32 s{sT}, 0"); E(f"s_cselect_b32 s{sHk}, 3, 0"); E("s_cbranch_scc0 L_k1")
    zero_counters()
    E("s_branch L_k1")

    code = pro.text() + kbody + vbody + hbody + [x["t"] for x in E.I if "mark" not in x] + ["L_codeend:"]
    code = "\n".join(code).split("\n")
    if nocomp:
        kill = ("v_fma_mix", "v_cvt_pk", "v_mfma", "v_exp", "v_pk_", "v_max3", "ds_write2", "ds_write_b128", "ds_read_b128", "v_accvgpr_write_b32 a1", "v_accvgpr_read_b32 v9", "v_accvgpr_read_b32 v10", "s_cbranch_vccnz L_resc")
        a0 = code.index("L_K:"); a1 = code.index("L_round:"); c2 = []
        for i, l in enumerate(code):
            if a0 < i < a1:
                if l.strip().startswith(kill): continue
                if "lgkmcnt" in l:
                    l = "    s_waitcnt lgkmcnt(0)"
                    if c2[-1] == l: continue
            c2.append(l)
        code = c2
    if abl:
        a0 = code.index("L_last:"); a1 = code.index("L_merged:"); c2 = []
        for i, l in enumerate(code):
            if a0 < i < a1:
                if abl & 1 and "buffer_store" in l: continue
                if abl & 2 and "buffer_load" in l: continue
                if "s_cbranch_scc1 L_miss" in l: continue
                if abl & 2 and "vmcnt" in l: l = "    s_waitcnt vmcnt(0)"
            c2.append(l)
        code = c2
    if align: code = align_pass(code)
    if not nocomp and not abl: hazard_check(code)
    DOC = """;
;  Three workgroups of a pair hand their partial O (bf16) and (m, l) to the fourth through d_ws: data, wait, header."""
    L = [HDR.rstrip(), f"; @launch grid=(256,1,1) block=(256,1,1) lds={LDS_TOTAL}", DOC, '.amdgcn_target "amdgcn-amd-amdhsa--gfx950"',
         ".text", f".globl {NAME}_kernel", ".p2align 8", f".type {NAME}_kernel,@function", f"{NAME}_kernel:"]
    L += code
    L += ['.section .rodata,"a"', ".p2align 6", f".amdhsa_kernel {NAME}_kernel",
          "  .amdhsa_next_free_vgpr 512", "  .amdhsa_next_free_sgpr 102", "  .amdhsa_accum_offset 256",
          "  .amdhsa_group_segment_fixed_size 0", "  .amdhsa_kernarg_size 80", "  .amdhsa_user_sgpr_count 2",
          "  .amdhsa_user_sgpr_kernarg_segment_ptr 1", "  .amdhsa_system_sgpr_workgroup_id_x 1",
          "  .amdhsa_float_denorm_mode_32 3", "  .amdhsa_float_denorm_mode_16_64 3", ".end_amdhsa_kernel"]
    open(path, "w").write("\n".join(L) + "\n")

if __name__ == "__main__":
    import argparse
    ap = argparse.ArgumentParser()
    ap.add_argument("out")
    for n, t, d in (("AL", int, 7), ("np", int, 14), ("cs", int, 8), ("nK1", int, 7), ("vtail", float, 1.0), ("T", float, 8.0), ("TM", float, 32.0),
                    ("pfcode", int, 8), ("ct", float, 0.9), ("ct0", float, 0.3), ("hv", int, 4), ("hk", float, 0.9), ("hp", int, 4), ("hq", float, 0.9), ("npre", int, 6), ("hst", int, 0), ("nocomp", int, 0), ("abl", int, 0), ("capC", str, None), ("uth", int, 4), ("grp", int, 0), ("flagf", str, "sc0 sc1"), ("capF", str, "7"), ("capS", str, "45"), ("tabs", str, "edcbba0001122345,cbbaaa0000112223"), ("ms", str, "5,11"), ("shards", int, 8), ("shb", int, 3), ("ldf", str, "sc0 sc1"), ("wb", int, 0), ("wto", int, 0), ("nolocal", int, 1), ("pb", int, 0), ("jr", int, 3), ("pa", int, 0), ("pw", int, 1), ("noearly", int, 0), ("diags", int, 0), ("diagm", int, 0), ("p2f", float, -1), ("jo", int, 15), ("chk", int, 0), ("apoll", int, 0), ("gray", int, 0), ("ua", int, 0), ("det", int, 0), ("prog", int, 1), ("pbar", int, 0), ("rtmap", int, 0), ("fullo", int, 0), ("tw", int, 0), ("alt", int, 0), ("twf", str, "nt"), ("om", str, "kkkk"), ("cols", str, "1000,800,4000,2000,100,240,4b0,8044"),
                    ("nt", str, "nt"), ("q", str, ""), ("smf", str, "nt"), ("outf", str, "sc0 sc1"), ("pubf", str, "sc0 sc1"),
                    ("cap", str, "55555556"), ("capV", str, "5555555555555556"), ("capH", str, None), ("capP", str, "8")):
        ap.add_argument("--" + n, type=t, default=d)
    ap.add_argument("--mix", type=lambda x: int(x, 0), default=0)
    for n in ("stamps", "it", "dry", "noalign", "pollmax"): ap.add_argument("--" + n, action="store_true")
    a = ap.parse_args()
    gen(a.out, AL=a.AL, npf=a.np, stamps=a.stamps, nt=a.nt, smf=a.smf, qflag=a.q, cstride=a.cs, T=a.T, TM=a.TM, mix=a.mix, nK1=a.nK1, vtail=a.vtail,
        itst=a.it, outf=a.outf, pubf=a.pubf, cap=a.cap, capV=a.capV, capH=a.capH, capP=a.capP, pfcode=a.pfcode, ctspan=a.ct, ct0=a.ct0,
        hv=a.hv, hk=a.hk, hp=a.hp, hq=a.hq, npre=a.npre, dry=a.dry, hst=a.hst, align=not a.noalign, nocomp=a.nocomp, abl=a.abl, capC=a.capC, uth=a.uth, pollmax=a.pollmax, grp=a.grp, flagf=a.flagf, capF=a.capF, capS=a.capS, tabs=[[(int(c) if c.isdigit() else -(ord(c) - 96)) for c in t] for t in a.tabs.split(',')], ms=tuple(int(x) for x in a.ms.split(',') if x), shards=a.shards, shb=a.shb, ldf=a.ldf, wb=a.wb, wto=a.wto, nolocal=a.nolocal, pb=a.pb, jr=a.jr, pa=a.pa, pw=a.pw, noearly=a.noearly, diags=a.diags, diagm=a.diagm, p2f=a.p2f, jo=a.jo, chk=a.chk, apoll=a.apoll, gray=a.gray, ua=a.ua, det=a.det, prog=a.prog, pbar=a.pbar, rtmap=a.rtmap, fullo=a.fullo, tw=a.tw, alt=a.alt, twf=a.twf, om=a.om.replace('k', '-'), cols=[int(x, 16) << 12 for x in a.cols.split(',')])
```

```python
import sys, struct, math, re
NAME = "standalone__kv_cache_quant_int4_int2_kv_with_per_channel_or_per_token_scales__sampling"
HDR = open("cdna_kernels/" + NAME + ".s.ref").read().split("; Override launch")[0]

def f32bits(x):
    return struct.unpack("<I", struct.pack("<f", x))[0]

def cost_of(s):
    op = s.split()[0]
    if op.startswith("v_mfma"): return 8
    if op in ("v_exp_f32", "v_rcp_f32"): return 8
    if op in ("ds_write_b128", "ds_write2_b64"): return 28
    if op.startswith("ds_write"): return 20
    if op == "s_barrier": return 70
    if op == "s_nop": return 4 * (int(s.split()[1]) + 1)
    return 4

class Stream:
    def __init__(self): self.I = []; self.lock = False; self.nds = 0
    def __call__(self, s, cost=None):
        self.I.append(dict(t="    " + s, c=(cost_of(s) if cost is None else cost), ins=not self.lock))
        if s.startswith("ds_"): self.nds += 1
        return self.nds
    def waitds(self, i):
        n = self.nds - i; assert 0 <= n <= 15
        self(f"s_waitcnt lgkmcnt({n})")
    def label(self, s): self.I.append(dict(t=s + ":", c=0, ins=not self.lock))
    def c(self, s): self.I.append(dict(t="    ; " + s, c=0, ins=not self.lock))
    def mark(self, kind, k=None): self.I.append(dict(mark=kind, k=k, c=0, ins=not self.lock))
    def text(self): return [x["t"] for x in self.I]

INLINE = re.compile(r"^-?(\d+|0x[0-9a-f]+)$")
def has_literal(ops):
    for o in ops:
        if INLINE.match(o):
            v = int(o, 0)
            if not -16 <= v <= 64 and (v & 0x7fffffff) not in (0x3f000000, 0x3f800000, 0x40000000, 0x40800000): return True
        elif re.match(r"^L_\w+-L_\w+$", o): return True
    return False
VOP12 = ("v_mov_b32", "v_exp_f32", "v_rcp_f32", "v_add_f32", "v_sub_f32", "v_mul_f32", "v_max_f32", "v_min_f32", "v_lshlrev_b32", "v_lshrrev_b32", "v_and_b32",
         "v_xor_b32", "v_add_u32", "v_mul_u32_u24", "v_min_u32", "v_max_u32", "v_fmac_f32", "v_cvt_f32_u32", "v_not_b32")
def isize(line):
    s = line.split(";")[0].strip()
    if not s or s.endswith(":") or s.startswith("."): return 0, None
    op, _, rest = s.partition(" ")
    ops = [o.strip() for o in rest.split(",")] if rest else []
    if op.startswith(("s_load", "s_memrealtime", "ds_", "buffer_")): return 8, None
    if op.startswith("s_"):
        if op in ("s_waitcnt", "s_nop", "s_barrier", "s_endpgm", "s_branch", "s_getreg_b32") or op.startswith("s_cbranch"): return 4, None
        return (8 if has_literal(ops) else 4), None
    if op in ("v_cndmask_b32", "v_readfirstlane_b32", "v_permlane32_swap_b32", "v_permlane16_swap_b32"): return 4, None
    if op.startswith("v_cmp"):
        return (4 + 4 * has_literal(ops[1:]) if ops[0] == "vcc" else 8), None
    if op in VOP12:
        if any(o.startswith("-v") for o in ops): return 8, "valu"
        if has_literal(ops[1:]): return 8, "valu"
        return 4, "grow"
    if op.startswith("v_mfma"): return 8, None
    return 8, "valu"
def align_pass(L):
    out = []; par = 0; last = None
    for i, line in enumerate(L):
        sz, kind = isize(line)
        if sz == 8 and par and last is not None:
            j = last; op = out[j].split()[0]
            out[j] = out[j].replace(op, op + "_e64", 1); par = 0
        elif sz == 8 and par:
            n = 0
            for l2 in L[i:]:
                s2, k2 = isize(l2)
                if s2 == 4: break
                n += k2 == "valu"
            if n >= 7: out.append("    s_nop 0"); par = 0
        if sz == 8: last = None
        if sz == 4:
            par ^= 1
            if kind == "grow": last = len(out)
        out.append(line)
    return out

def regs_of(tok):
    m = re.match(r"^-?v\[(\d+):(\d+)\]$", tok)
    if m: return set(range(int(m.group(1)), int(m.group(2)) + 1))
    m = re.match(r"^-?v(\d+)$", tok)
    return {int(m.group(1))} if m else set()
def hazard_check(L):
    hist = []
    for line in L:
        s = line.split(";")[0].strip()
        if not s or s.endswith(":") or s.startswith("."): continue
        op, _, rest = s.partition(" ")
        toks = [o.strip().split(" ")[0] for o in rest.split(",")] if rest else []
        if op in ("s_branch", "s_endpgm"): hist = []; continue
        st = int(toks[0]) + 1 if op == "s_nop" else 1
        allr = [regs_of(t) for t in toks]
        isv = op.startswith("v_"); mf = op.startswith("v_mfma")
        store = op.startswith(("ds_write", "buffer_store", "buffer_atomic"))
        dst = set() if (store or not allr or op.startswith(("v_cmp", "v_readfirstlane"))) else allr[0]
        src = set().union(*(allr if store or op.startswith(("v_cmp", "v_permlane", "v_fmac")) else allr[1:])) if allr else set()
        if op.startswith("v_permlane"): dst = src
        d = 0
        for (pop, pdst, psrcC, pst) in reversed(hist):
            need = 0
            if pop.startswith("v_mfma"):
                if mf:
                    if pdst & (allr[1] | allr[2]): need = 8
                    elif pdst & allr[3] and pdst != allr[3]: need = 6
                elif pdst & (src | dst): need = 8
                elif isv and psrcC & dst: need = 3
            elif pop.startswith("v_"):
                if mf and pdst & src: need = 2
                if (op.startswith("v_permlane") or op.endswith("_dpp")) and pdst & src: need = 2
                if op == "v_readfirstlane_b32" and pdst & src: need = 1
                if pop.split("_e64")[0] in ("v_exp_f32", "v_rcp_f32") and isv and op.split("_e64")[0] not in ("v_exp_f32", "v_rcp_f32") and pdst & src: need = max(need, 1)
                if pop.startswith("v_dot") and op != pop and pdst & (src | dst): need = 3
            elif pop.startswith("buffer_store_dwordx4") and isv and psrcC & dst: need = 2
            assert d >= need, f"hazard: {pop} -> {s} distance {d} < {need}"
            d += pst
            if d >= 8: break
        hist.append((op, dst, (allr[3] if mf else (allr[0] if op.startswith("buffer_store") else set())), st))

def gen(path, AL=8, npf=14, stamps=False, nt="nt", smf="nt", qflag="", cstride=8, T=8.0, TM=32.0, mix=0x31031031, nK1=9, vtail=1.0,
        itst=False, outf="sc0 sc1", pubf="sc0 sc1", cap="56", capV="556", capH=None, capP="8", pfcode=4, ctspan=0.95, ct0=0.15,
        hv=4, hk=0.9, hp=4, hq=0.9, npre=6, dry=False, hst=0, align=True, nocomp=0, abl=0, capC=None, uth=4, pollmax=False, grp=0, flagf='', capF='7', capS='45', tabs=None, ms=(5, 11), shards=4, shb=3, cols=None, ldf='sc0 sc1', wb=False, wto=0, nolocal=False, pb=100, jr=3, pa=1, pw=1, noearly=0, diags=0, diagm=0, p2f=-1, jo=15, om='----', chk=-1, apoll=0, gray=0, ua=0, det=0, prog=1, pbar=0, rtmap=0, fullo=1, tw=0, twf='nt', alt=0):
    npf = 16
    capn = lambda c, k: int(c[k % len(c)], 16) - 1
    KROW = 288; JS = 576; OS = 2320
    TABW = 16 * 256
    LDS_MB = 0; LDS_SC = 256; LDS_TAB = 1536; LDS_K = LDS_TAB + 4 * TABW; LDS_V = LDS_K + 128 * KROW
    LDS_TOTAL = LDS_V + 16 * OS
    assert LDS_K % 256 == 0 and LDS_K + 128 * KROW < 65536 and LDS_TAB % 512 == 0 and TABW % 512 == 0
    WS_SLOT = 1 << 20; WS_CTR = 16 << 20; FLAG = 0x100
    SPIN = 1 << 20
    PF = 8
    vLane, vOff, vMb, vKR, vSW, vSR, vVW, vVR, vTK, vTV, vL4, vLin = range(12)
    vHd = 12
    vCk, vFl = 14, 15
    vL = 16
    vT2 = 18
    vKS, vKC = 20, 24; vKSr, vKZr, vVSr, vVZr = 28, 30, 32, 33
    vTmp = 34
    vMx, vAt, vMO = 37, 38, 39
    vKP = 40; vVP = 48; vO = 64; vS = 96; vRing = 128; vQ = 192; vSt = 208; NST = 10
    vNM = 248; vKW = 252
    vSc = vS + 16
    vAo = vL
    sX, sY, sSM, sQ, sDBG, sWS, sOUT = 8, 12, 16, 20, 24, 28, 32
    sKb, sVb = 36, 38
    sPair, sSplit, sI, sJ, sG, sT, sT2, sFlo, sThr, sDoff, sCoff, sIni, sKsl, sVsl, sWb, sPend, sSpin, sW0, sHk, sMode = range(40, 60)
    sAt = 49; sShard = 82; sCnt = 83; sXc = 71; sInc = 70
    sO = 60
    sK1, sK2 = 64, 66
    sCw = 72
    sPo = 76
    sWave = 3
    srd = lambda r: f"s[{r}:{r+3}]"
    vr = lambda r, n: f"v[{r}:{r+n-1}]"
    def item_text(k):
        return f"buffer_load_dwordx4 {vr(vRing+4*k,4)}, v{vOff}, {srd(sX)}, s{sO + k//4} offen offset:{(k%4)*1024} {nt}"
    sXm = 101 if not stamps else 59 + 40
    sXm = 2
    def unit_offs(A, idx, slot):
        if idx is None: A(f"s_mov_b32 s{sO}, s{sXm}")
        else:
            if gray == 1: A(f"s_lshr_b32 s{sO}, s{idx}, 1"); A(f"s_xor_b32 s{sO}, s{sO}, s{idx}"); A(f"s_lshl_b32 s{sO}, s{sO}, 16")
            elif gray == 2: A(f"s_brev_b32 s{sO}, s{idx}"); A(f"s_lshr_b32 s{sO}, s{sO}, 12")
            else: A(f"s_lshl_b32 s{sO}, s{idx}, 16")
            A(f"s_xor_b32 s{sO}, s{sO}, s{sXm}")
        A(f"s_add_u32 s{sO+1}, s{sO}, 4096"); A(f"s_xor_b32 s{sO+2}, s{sO}, 0x4000"); A(f"s_xor_b32 s{sO+3}, s{sO+1}, 0x4000")
        if slot is not None: A(f"s_bfe_u32 s{slot}, s{sO}, 0xc0008")
    def set_base(A, b, b2=None):
        if b2 is None: b2 = b
        A(f"s_mov_b64 s[{sX}:{sX+1}], s[{b}:{b+1}]")
    A = Stream()
    A("s_cmp_ge_u32 s2, 256"); A("s_cbranch_scc1 L_end")
    if stamps: A("s_memrealtime s[84:85]"); A("s_mov_b32 s101, 0")
    if diags: A("s_memrealtime s[84:85]")
    A("s_load_dwordx16 s[68:83], s[0:1], 0")
    A("s_load_dwordx4 s[4:7], s[0:1], 64")
    if alt: A("s_load_dwordx8 s[84:91], s[0:1], 80")
    if pfcode:
        A.c("pull this kernel's code into L2 with strided loads (speed only; the values are unused)")
        A("s_getpc_b64 s[92:93]"); A("s_and_b32 s92, s92, 0xffffff00"); A("s_mov_b32 s94, L_codeend-L_pf"); A("s_mov_b32 s95, 0x20000")
        A.label("L_pf")
        A(f"v_lshlrev_b32 v{vTmp}, 7, v0")
        A(f"s_lshr_b32 s{sT2}, s2, 3"); A(f"s_and_b32 s{sT2}, s{sT2}, {pfcode-1}"); A(f"s_cselect_b32 s94, 0, s94")
        A(f"buffer_load_dword v{vTmp}, v{vTmp}, s[92:95], 0 offen")
    A("v_lshrrev_b32 v1, 6, v0")
    A(f"v_and_b32 v{vLane}, 63, v0")
    A(f"v_readfirstlane_b32 s{sWave}, v1")
    A.c("workgroup id -> (pair, split) and the order in which it walks its token groups: a bijection (placement affects speed only)")
    for i, c in enumerate(cols):
        A(f"s_bitcmp1_b32 s2, {i}"); A(f"s_cselect_b32 s{sT if i else sT2}, {hex(c)}, 0")
        if i: A(f"s_xor_b32 s{sT2}, s{sT2}, s{sT}")
    if mix:
        A(f"s_lshr_b32 s{sT}, s2, 3"); A(f"s_and_b32 s{sT}, s{sT}, 7"); A(f"s_lshl_b32 s{sT}, s{sT}, 2")
        A(f"s_lshr_b32 s{sT}, {hex(mix)}, s{sT}"); A(f"s_and_b32 s{sT}, s{sT}, 3"); A(f"s_and_b32 s{sT}, s{sT}, s2")
        A(f"s_bcnt1_i32_b32 s{sT}, s{sT}"); A(f"s_and_b32 s{sT}, s{sT}, 1"); A(f"s_lshl_b32 s{sT}, s{sT}, 22"); A(f"s_xor_b32 s{sT2}, s{sT2}, s{sT}")
    def idmap(w):
        v = 0
        for i, c in enumerate(cols):
            if w >> i & 1: v ^= c
        if mix: v ^= (bin((mix >> (4 * ((w >> 3) & 7))) & 3 & w).count("1") & 1) << 22
        return v
    assert len(set(idmap(w) >> 20 for w in range(256))) == 256 and all(idmap(w) & ~0xfff4000 == 0 for w in range(256)) and idmap(0) == 0
    if rtmap:
        A("s_waitcnt lgkmcnt(0)"); A(f"s_lshl_b32 s{sT}, s2, 2"); A(f"s_add_u32 s90, s6, 0x24000000"); A("s_addc_u32 s91, s7, 0")
        A(f"s_load_dword s{sT2}, s[90:91], s{sT}"); A("s_waitcnt lgkmcnt(0)")
    A(f"s_mov_b32 s{sMode}, s2")
    A(f"s_lshr_b32 s{sPair}, s{sT2}, 22"); A(f"s_bfe_u32 s{sSplit}, s{sT2}, 0x20014"); A(f"s_and_b32 s{sXm}, s{sT2}, 0x3fffff")
    c_, h_, m_, g_ = vKS, vKS + 1, vKS + 2, vKS + 3
    t0, t1, vQo = vKC, vKC + 1, vKC + 2
    A.c("only what the first K rows need comes before them")
    A(f"v_lshlrev_b32 v{vLin}, 4, v{vLane}")
    A(f"s_and_b32 s{sT}, s{sWave}, 1"); A(f"s_lshr_b32 s{sT2}, s{sWave}, 1"); A(f"s_lshl2_add_u32 s{sWb}, s{sT2}, s{sT}"); A(f"s_lshl_b32 s{sWb}, s{sWb}, 13")
    A(f"v_add_u32 v{vOff}, s{sWb}, v{vLin}")
    A(f"s_mov_b32 s{sX+2}, {0 if dry else 0x400000}"); A(f"s_mov_b32 s{sX+3}, 0x20000")
    unit_offs(A, None, None)
    A(f"s_lshl_b32 s{sT}, s{sPair}, 22")
    A("s_waitcnt lgkmcnt(0)")
    def mk(r, p): A(f"s_add_u32 s{r}, s{p}, s{sPend}"); A(f"s_addc_u32 s{r+1}, s{p+1}, 0")
    if alt: A(f"s_cmp_ge_u32 s{sPair}, s88"); A("s_cselect_b64 s[70:71], s[84:85], s[70:71]"); A("s_cselect_b64 s[72:73], s[86:87], s[72:73]")
    A(f"s_add_u32 s{sX}, s70, s{sT}"); A(f"s_addc_u32 s{sX+1}, s71, 0")
    for k in range(npre): A(item_text(k))
    A(f"s_add_u32 s{sVb}, s72, s{sT}"); A(f"s_addc_u32 s{sVb+1}, s73, 0")
    A(f"s_lshl_b32 s{sG}, s{sWave}, 12"); A(f"s_add_u32 m0, s{sG}, {LDS_TAB}"); assert TABW == 4096
    for r in (sSM, sQ, sOUT): A(f"s_mov_b32 s{r+2}, 0x4000"); A(f"s_mov_b32 s{r+3}, 0x20000")
    A(f"s_lshl_b32 s{sPend}, s{sPair}, 14")
    A.c("wave w streams scale/zero array w (ks, kz, vs, vz) into the LDS table")
    A(f"s_cmp_eq_u32 s{sWave}, 1"); A(f"s_cselect_b64 s[{sSM}:{sSM+1}], s[76:77], s[74:75]")
    A(f"s_cmp_eq_u32 s{sWave}, 2"); A(f"s_cselect_b64 s[{sSM}:{sSM+1}], s[78:79], s[{sSM}:{sSM+1}]")
    A(f"s_cmp_eq_u32 s{sWave}, 3"); A(f"s_cselect_b64 s[{sSM}:{sSM+1}], s[80:81], s[{sSM}:{sSM+1}]")
    mk(sSM, sSM)
    A(f"s_lshl_b32 s{sT}, s{sSplit}, 12")
    nT = (npf + 3) // 4
    for u in range(nT):
        rows = min(4, npf - 4 * u)
        if rows < 4: A(f"s_bfm_b64 exec, {16*rows}, 0")
        A(f"buffer_load_dwordx4 v{vLin}, {srd(sSM)}, s{sT} offen offset:{u*1024} {smf} lds")
        if rows < 4: A("s_mov_b64 exec, -1")
    mk(sQ, 68)
    A(f"v_and_b32 v{m_}, 15, v{vLane}"); A(f"v_lshrrev_b32 v{g_}, 4, v{vLane}")
    A(f"v_lshlrev_b32 v{vQo}, 8, v{m_}"); A(f"v_lshl_add_u32 v{vQo}, v{g_}, 4, v{vQo}")
    A(f"s_lshl_b32 s{sT}, s{sWave}, 12")
    for s4 in range(4): A(f"buffer_load_dwordx4 {vr(vQ+4*s4,4)}, v{vQo}, {srd(sQ)}, s{sT} offen offset:{s4*64} {qflag}")
    A.c("mark the header of this wave's hand-off slot empty")
    for i in range(2): A(f"v_mov_b32 v{vVP+i}, -1")
    A(f"v_lshlrev_b32 v{vVP+2}, 3, v{vLane}")
    A(f"s_lshl2_add_u32 s{sT2}, s{sPair}, s{sWave}"); A(f"s_lshl2_add_u32 s{sT2}, s{sT2}, s{sSplit}")
    A(f"s_lshl_b32 s{sT2}, s{sT2}, 13"); A(f"s_add_u32 s{sT2}, s{sT2}, {WS_SLOT + 4096}")
    A(f"s_mov_b32 s{sWS+2}, 0x40000000"); A(f"s_mov_b32 s{sWS+3}, 0x20000")
    A(f"s_mov_b32 s{sDBG+2}, 256"); A(f"s_mov_b32 s{sDBG+3}, 0x20000"); A(f"v_mov_b32 v{vFl}, 1")
    A(f"s_mov_b64 s[{sWS}:{sWS+1}], s[6:7]")
    A("s_mov_b64 exec, 0xffff")
    A(f"buffer_store_dwordx2 {vr(vVP,2)}, v{vVP+2}, {srd(sWS)}, s{sT2} offen sc0 sc1")
    A("s_mov_b64 exec, -1")
    A.c("workgroup 0 claims the job of zeroing the counters in d_ws (any workgroup takes it over later if nobody has)")
    A(f"s_mov_b64 s[{sDBG}:{sDBG+1}], s[4:5]")
    A(f"s_cmp_eq_u32 s{sWave}, 0"); A(f"s_cselect_b32 s{sW0}, 1, 0")
    A(f"s_or_b32 s{sT}, s{sMode}, {'1' if noearly else 's%d' % sWave}"); A(f"s_cselect_b32 s{sHk}, 0, 3"); A("s_cbranch_scc1 L_noel")
    A("s_mov_b64 exec, 1")
    A(f"buffer_atomic_add v{vFl}, off, {srd(sDBG)}, 0 sc0")
    A("s_mov_b64 exec, -1")
    A.label("L_noel")
    mk(sOUT, 82)
    A(f"v_and_b32 v{c_}, 31, v{vLane}"); A(f"v_lshrrev_b32 v{h_}, 5, v{vLane}"); A(f"v_lshlrev_b32 v{vL4}, 2, v{vLane}")
    A(f"s_bfe_u32 s{sVsl}, s{sO}, 0xc0008"); A(f"s_andn2_b32 s{sKsl}, s{sVsl}, 255")
    A(f"v_lshlrev_b32 v{vTK}, 3, v{c_}")
    A(f"v_lshrrev_b32 v{vTV}, 4, v{c_}"); A(f"v_lshlrev_b32 v{vTV}, 5, v{vTV}")
    A(f"v_and_b32 v{t0}, 15, v{c_}"); A(f"v_add_lshl_u32 v{vTV}, v{vTV}, v{t0}, 1")
    A(f"s_lshr_b32 s{sT}, s{sWb}, 8"); A(f"v_add_u32 v{vTV}, s{sT}, v{vTV}")
    A(f"s_lshr_b32 s{sT}, s{sWave}, 1"); A(f"s_and_b32 s{sT2}, s{sWave}, 1")
    A(f"s_mul_i32 s{sT}, s{sT}, {32*KROW}"); A(f"s_mul_i32 s{sT2}, s{sT2}, {8*KROW}"); A(f"s_add_u32 s{sT}, s{sT}, s{sT2}"); A(f"s_add_u32 s{sT}, s{sT}, {LDS_K}")
    A(f"v_mul_u32_u24 v{vKW}, {4*KROW}, v{h_}"); A(f"v_lshl_add_u32 v{vKW}, v{c_}, 3, v{vKW}"); A(f"v_add_u32 v{vKW}, s{sT}, v{vKW}")
    for u, rows in ((1, 16), (2, 64), (3, 80)): A(f"v_add_u32 v{vKW+u}, {rows*KROW}, v{vKW}")
    A(f"v_mul_u32_u24 v{vKR}, {KROW}, v{m_}"); A(f"v_lshl_add_u32 v{vKR}, v{g_}, 4, v{vKR}")
    A(f"s_mul_i32 s{sT}, s{sWave}, {2*OS}"); A(f"s_add_u32 s{sT}, s{sT}, {LDS_V}")
    A(f"v_mul_u32_u24 v{vVW}, {OS}, v{h_}"); A(f"v_lshl_add_u32 v{vVW}, v{c_}, 4, v{vVW}"); A(f"v_add_u32 v{vVW}, s{sT}, v{vVW}")
    A(f"v_mul_u32_u24 v{vVR}, {OS}, v{g_}"); A(f"v_and_b32 v{t0}, 3, v{m_}"); A(f"v_mul_u32_u24 v{t0}, {JS}, v{t0}")
    A(f"v_lshrrev_b32 v{t1}, 2, v{m_}"); A(f"v_lshlrev_b32 v{t1}, 5, v{t1}")
    A(f"v_add3_u32 v{vVR}, v{vVR}, v{t0}, v{t1}"); A(f"v_add_u32 v{vVR}, {LDS_V}, v{vVR}")
    A(f"s_lshl_b32 s{sT}, s{sWave}, 8"); A(f"s_add_u32 s{sT2}, s{sT}, {LDS_SC}")
    A(f"v_and_b32 v{vSW}, 1, v{c_}"); A(f"v_lshlrev_b32 v{vSW}, 7, v{vSW}")
    A(f"v_lshrrev_b32 v{t0}, 1, v{c_}"); A(f"v_lshl_add_u32 v{vSW}, v{t0}, 3, v{vSW}"); A(f"v_add_u32 v{vSW}, s{sT2}, v{vSW}")
    A(f"v_lshlrev_b32 v{vSR}, 7, v{h_}"); A(f"v_add_u32 v{vSR}, s{sT2}, v{vSR}")
    A(f"v_mov_b32 v{vMb}, {LDS_MB}")
    A(f"s_mov_b32 s{sCoff}, {WS_CTR}")
    cc = math.log2(math.e) / math.sqrt(128.0)
    for i in range(2): A(f"s_mov_b32 s{sK1+i}, {hex(f32bits(cc * 2.0**24))}"); A(f"s_mov_b32 s{sK2+i}, {hex(f32bits(-2.0**-24))}")
    A.c("the first tile always takes the rescale path, which sets the reference to that tile's true row max")
    A(f"s_mov_b32 s{sThr}, 0xff800000"); A(f"s_mov_b32 s{sFlo}, 0xff800000")
    for r in (sAt, sMode, sCnt, sI, sJ): A(f"s_mov_b32 s{r}, 0")
    A.c("a count is shared by 8 pairs: low byte = arrivals so far, above it a 3-bit arrival field per pair")
    fb = sorted((c >> 22).bit_length() - 1 for c in cols[:3]); assert all(bin(c >> 22).count("1") == 1 for c in cols[:3])
    sb = [x for x in range(6) if x not in fb]
    for dst, bits in ((sXc, fb), (sShard, sb)):
        for n, x in enumerate(reversed(bits)):
            A(f"s_bfe_u32 s{sT if n else dst}, s{sPair}, {hex(0x10000 | x)}")
            if n: A(f"s_lshl1_add_u32 s{dst}, s{dst}, s{sT}")
    A(f"s_mul_i32 s{sXc}, s{sXc}, 3"); A(f"s_add_u32 s{sXc}, s{sXc}, 8"); A(f"s_lshl_b32 s{sInc}, 1, s{sXc}"); A(f"s_add_u32 s{sInc}, s{sInc}, 1")
    if not nolocal: A(f"s_getreg_b32 s{sXc}, hwreg(HW_REG_XCC_ID, 0, 3)"); A(f"s_mul_i32 s{sXc}, s{sXc}, 3"); A(f"s_add_u32 s{sXc}, s{sXc}, 8")
    A(f"s_mov_b32 s{sSpin}, {SPIN}")
    for i in range(32): A(f"v_mov_b32 v{vO+i}, 0")
    for i in range(4): A(f"v_mov_b32 v{vNM+i}, 0")
    A(f"v_mov_b32 v{vMO}, 0x7149f2ca"); A(f"v_mov_b32 v{vL}, 0"); A(f"v_mov_b32 v{vL+1}, 0"); A(f"v_mov_b32 v{vAt}, 0")
    def ktab_reads(S):
        S(f"v_add_u32 v{vTmp+2}, s{sKsl}, v{vTK}")
        S(f"ds_read_b64 {vr(vKSr,2)}, v{vTmp+2} offset:{LDS_TAB}"); S(f"ds_read_b64 {vr(vKZr,2)}, v{vTmp+2} offset:{LDS_TAB+TABW}")
    def vtab_reads(S):
        S(f"v_xor_b32 v{vTmp+2}, s{sVsl}, v{vTV}")
        S(f"ds_read_u16 v{vVSr}, v{vTmp+2} offset:{LDS_TAB+2*TABW}"); S(f"ds_read_u16 v{vVZr}, v{vTmp+2} offset:{LDS_TAB+3*TABW}")
    def prep_v(S):
        S.c("V: S = vs*2^24, C = -vz*vs per token, broadcast through LDS")
        S(f"v_lshlrev_b32 v{vT2}, 16, v{vVSr}"); S(f"v_lshlrev_b32 v{vT2+1}, 16, v{vVZr}")
        S(f"v_mul_f32 v{vT2+1}, -v{vT2+1}, v{vT2}"); S(f"v_mul_f32 v{vT2}, 0x4b800000, v{vT2}")
        S(f"ds_write_b64 v{vSW}, {vr(vT2,2)}")
    def prep_k(S):
        S.c("K: S = ks*c*2^24, C = -kz*ks*c per channel, c = log2(e)/sqrt(128) (the int code is read as an f16 subnormal, code*2^-24)")
        for p in range(2): S(f"v_lshlrev_b32 v{vKS+2*p}, 16, v{vKSr+p}"); S(f"v_lshlrev_b32 v{vKC+2*p}, 16, v{vKZr+p}")
        for p in range(2): S(f"v_and_b32 v{vKS+2*p+1}, 0xffff0000, v{vKSr+p}"); S(f"v_and_b32 v{vKC+2*p+1}, 0xffff0000, v{vKZr+p}")
        for p in range(2): S(f"v_pk_mul_f32 {vr(vKS+2*p,2)}, {vr(vKS+2*p,2)}, s[{sK1}:{sK1+1}]")
        for p in range(2): S(f"v_pk_mul_f32 {vr(vKC+2*p,2)}, {vr(vKC+2*p,2)}, s[{sK2}:{sK2+1}]")
        for p in range(2): S(f"v_pk_mul_f32 {vr(vKC+2*p,2)}, {vr(vKC+2*p,2)}, {vr(vKS+2*p,2)}")
    def sc_lo_reads(S):
        for i in range(4): S(f"ds_read_b128 {vr(vSc+4*i,4)}, v{vSR} offset:{i*16}")
    ENTRYV = 15 - max(capn(c, 15) for c in (cap, capV, capF, capS))
    ENTRY = 15 - capn(cap, 15)
    if pbar:
        assert npre < pbar < 15
        for k in range(npre, 16):
            if k == pbar:
                A(f"s_waitcnt vmcnt({pbar - npre})"); A("s_barrier")
                ktab_reads(A); vtab_reads(A)
            if k == pbar + 1: A("s_waitcnt lgkmcnt(0)"); prep_v(A)
            A(f"s_waitcnt vmcnt({min(capn(capP, k), 15 - ENTRY) if k == 15 else capn(capP, k)})"); A(item_text(k))
    else:
        for k in range(npre, 16):
            A(f"s_waitcnt vmcnt({capn(capP, k)})"); A(item_text(k))
        assert 16 - ENTRY <= 16 - npre
        A(f"s_waitcnt vmcnt({16 - ENTRY})"); A("s_barrier")
        ktab_reads(A); vtab_reads(A)
        A("s_waitcnt lgkmcnt(0)")
        prep_v(A)
    pro = A

    def itstamp(S):
        if stamps and itst:
            S("s_memrealtime s[96:97]"); S("s_mov_b32 s98, m0"); S(f"s_add_u32 m0, s{sI}, s{sJ}"); S(f"v_accvgpr_read_b32 v{vTmp+2}, a255"); S("s_waitcnt lgkmcnt(0)")
            S(f"v_writelane_b32 v{vTmp+2}, s96, m0"); S("s_mov_b32 m0, s98"); S(f"v_accvgpr_write_b32 a255, v{vTmp+2}")

    def emit(B, items, place, seq0, done0, caps, name, at=None):
        out = []; ei = 0; done = done0; info = []; marks = {}; atd = False
        def wait(n):
            nonlocal done
            if ei - n > done:
                out.append(f"    s_waitcnt vmcnt({n + (1 if atd and ei - n <= at else 0)})"); done = ei - n; return True
            return False
        for i, x in enumerate(B.I):
            while ei < len(items) and place[ei] == i:
                if ei == at and not ua:
                    out.extend([f"    s_cmp_lg_u32 s{sAt}, 0", "    s_cbranch_scc0 L_noat", "    s_mov_b64 exec, 1", f"    v_mov_b32 v{vAt}, s{sInc}",
                                f"    buffer_atomic_add v{vAt}, off, {srd(sWS)}, s{sCoff} sc0", "    s_mov_b64 exec, -1", "L_noat:"])
                if caps: wait(capn(caps, ei))
                if ei == at and ua:
                    out.extend([f"    v_mov_b32 v{vAt}, 1", f"    buffer_atomic_add v{vAt}, v{vAo}, {srd(sWS)}, s{sCoff} offen sc0"]); atd = True
                out.append("    " + items[ei]); ei += 1
            if "mark" in x:
                marks[(x["mark"], x["k"])] = (ei, done)
                if x["mark"] == "wait":
                    n = ei - 1 - seq0[x["k"]]; assert n >= 0
                    info.append((x["k"], n, wait(n)))
                elif x["mark"] == "smallwait": wait(ei - x["k"])
                elif x["mark"] == "postwait": out.append(f"    s_waitcnt vmcnt({AL})")
            else: out.append(x["t"])
        assert ei == len(items)
        print(name, "cost", sum(x["c"] for x in B.I), "waits", [(k, n) for k, n, w in info if w], "lead", min(n for k, n, w in info), file=sys.stderr)
        return out, marks
    class Pos:
        def __init__(self, B):
            self.I = B.I; self.cum = []; a = 0
            for x in B.I: self.cum.append(a); a += x["c"]
            self.tot = a
        def i(self, kind, k=None): return next(i for i, x in enumerate(self.I) if x.get("mark") == kind and x.get("k") == k)
        def c(self, kind, k=None): return self.cum[self.i(kind, k)]
        def at(self, t, lo):
            p = max(lo, next((i for i in range(len(self.I)) if self.cum[i] >= t), len(self.I) - 1))
            while not self.I[p]["ins"]: p += 1
            return p

    def deq(S, r, s, c): S(f"v_fma_mix_f32 v{r}, v{r}, v{s}, v{c} op_sel_hi:[1,0,0]")
    def kitems(B, n):
        for k in range(0, n, 2):
            r = vRing + 4 * k; t = vKP + 4 * ((k // 2) % 2)
            B.mark("wait", k + 1)
            for u in range(2):
                for j in range(4): deq(B, r + 4 * u + j, vKS + j, vKC + j)
            for u in range(4): B(f"v_cvt_pk_bf16_f32 v{t+u}, v{r+2*u}, v{r+2*u+1}")
            B.mark("free", k); B.mark("free", k + 1)
            B(f"ds_write2_b64 v{vKW + k//4}, {vr(t,2)}, {vr(t+2,2)} offset0:{(k%4)*KROW//8} offset1:{(k%4+1)*KROW//8}")
        B.mark("kdone")
    def mfma_loop(B, reads, mfmas, fill, start=0, ids=None, after=None):
        n = len(mfmas)
        if ids is None:
            ids = {}
            for i in range(PF): ids[i] = B(reads[i])
            for t in fill.get(-1, []): B(t)
        for i in range(start, n):
            if i % 2 == 0 or i == start: B.waitds(ids[min(n - 1, i | 1)])
            B(mfmas[i])
            if i + PF < n: ids[i + PF] = B(reads[i + PF])
            for t in fill.get(i, []): B(t)
            if after and i in after: after[i](dict(ids))
    def qk_lists(nblk):
        order = [(2 * bp + u, s4) for bp in range(nblk // 2) for s4 in range(4) for u in range(2)]
        rd = [f"ds_read_b128 {vr(vSt+4*(i%NST),4)}, v{vKR} offset:{LDS_K + b*16*KROW + s4*64}" for i, (b, s4) in enumerate(order)]
        mf = [f"v_mfma_f32_16x16x32_bf16 {vr(vS+4*b,4)}, {vr(vSt+4*(i%NST),4)}, {vr(vQ+4*s4,4)}, {vr(vNM,4) if s4 == 0 else vr(vS+4*b,4)}" for i, (b, s4) in enumerate(order)]
        return rd, mf
    def max_ops(bp):
        b = vS + 8 * bp
        if bp == 0: return [f"v_max3_f32 v{vMx}, v{b}, v{b+1}, v{b+2}", f"v_max3_f32 v{vMx}, v{vMx}, v{b+3}, v{b+4}", f"v_max3_f32 v{vMx}, v{vMx}, v{b+5}, v{b+6}", f"v_max_f32 v{vMx}, v{vMx}, v{b+7}"]
        return [f"v_max3_f32 v{vMx}, v{vMx}, v{b+2*u}, v{b+2*u+1}" for u in range(4)]
    def qk_fill(nblk):
        f = {}
        for bp in range(nblk // 2 - 1):
            last = bp + 2 == nblk // 2
            slots = (4, 5, 6, 7) if last else (3, 5, 7, 7)
            for s_, t in zip(slots, max_ops(bp)): f.setdefault(8 * (bp + 1) + s_, []).append(t)
        return f
    def check_max(B, nblk, tag, pre):
        for t in pre: B(t)
        if len(pre) < 6: B(f"s_nop {5 - len(pre)}")
        for t in max_ops(nblk // 2 - 1): B(t)
        B(f"v_cmp_lt_f32 vcc, s{sThr}, v{vMx}")
        B.lock = True
        B(f"s_cbranch_vccnz L_rescale{tag}")
        B.label(f"L_rescaled{tag}")
        B.lock = False
    exp_op = lambda i: f"v_exp_f32 v{vS+i}, v{vS+i}"
    sum_cvt = lambda i: [f"v_pk_add_f32 {vr(vL,2)}, {vr(vL,2)}, {vr(vS+2*i,2)}", f"v_cvt_pk_bf16_f32 v{vS+i}, v{vS+2*i}, v{vS+2*i+1}"]
    def vphase(B, k0, s, refill_hi):
        rg = lambda n8: vRing + 4 * (k0 + n8)
        for n8 in (0, 2):
            B.mark("wait", k0 + n8 + 1)
            for u in range(2):
                for j in range(4): deq(B, rg(n8 + u) + j, vSc + 2 * (n8 + u), vSc + 2 * (n8 + u) + 1)
            if refill_hi: B(f"ds_read_b128 {vr(vSc+4*(n8//2),4)}, v{vSR} offset:{64 + (n8//2)*16}")
            for j in range(4): B(f"v_cvt_pk_bf16_f32 v{vVP+4*j+n8//2}, v{rg(n8)+j}, v{rg(n8+1)+j}")
            B.mark("free", k0 + n8); B.mark("free", k0 + n8 + 1)
        B.mark("wait", k0 + 7)
        for j in range(4):
            for n8 in range(4, 8): deq(B, rg(n8) + j, vSc + 2 * n8, vSc + 2 * n8 + 1)
            for n8 in (4, 6): B(f"v_cvt_pk_bf16_f32 v{vVP+4*j+n8//2}, v{rg(n8)+j}, v{rg(n8+1)+j}")
            if j == 3:
                for n8 in range(4, 8): B.mark("free", k0 + n8)
            B(f"ds_write_b128 v{vVW}, {vr(vVP+4*j,4)} offset:{s*8*OS + j*JS}")
        if refill_hi:
            for u in (2, 3): B(f"ds_read_b128 {vr(vSc+4*u,4)}, v{vSR} offset:{64 + u*16}")
    def pv_lists(s, pbase=None):
        if pbase is None: pbase = vS
        lst = [(2 * s + kk, db) for kk in range(2) for db in range(8)]
        rd = [f"ds_read_b128 {vr(vSt+4*(i%NST),4)}, v{vVR} offset:{ks*4*OS + (db//2)*128 + (db%2)*16}" for i, (ks, db) in enumerate(lst)]
        mf = [f"v_mfma_f32_16x16x32_bf16 {vr(vO+4*db,4)}, {vr(vSt+4*(i%NST),4)}, {vr(pbase+4*ks,4)}, {vr(vO+4*db,4)}" for i, (ks, db) in enumerate(lst)]
        return rd, mf
    def ops_of(f):
        S = Stream(); f(S); return [x["t"].strip() for x in S.I if not x["t"].strip().startswith(";")]
    def spread(ops, first, per=1):
        f = {}
        for n, t in enumerate(ops): f.setdefault(first + n // per, []).append(t)
        return f
    def save_ops(i0):
        return [f"v_accvgpr_write_b32 a{17*i0+i}, v{vS+i}" for i in range(16)] + [f"v_accvgpr_write_b32 a{17*i0+16}, v{vNM}"]
    unit_items = [item_text(k) for k in range(16)]
    unit_seq = {k: k - 16 for k in range(16)}

    B = Stream()
    B.lock = True
    B.label("L_K")
    itstamp(B)
    B(f"s_add_u32 s{sI}, s{sI}, 1")
    B(f"s_cmp_lt_u32 s{sI}, {npf}"); B("s_cbranch_scc0 L_k2v")
    unit_offs(B, sI, sKsl); B(f"s_andn2_b32 s{sKsl}, s{sKsl}, 255")
    B(f"s_cmp_le_u32 s{sI}, s{sHk}"); B("s_cbranch_scc1 L_hookK")
    B.label("L_k1")
    B("s_waitcnt lgkmcnt(0)")
    B.lock = False
    B.mark("ready")
    prep_k(B)
    kitems(B, 16)
    B.c("park the previous tile's P while the K rows settle in LDS")
    B("s_branch L_save", 150)
    B.lock = True
    B.label("L_saved")
    B.lock = False
    B("s_waitcnt lgkmcnt(0)"); B("s_barrier", 20)
    B.c("S^T - m = K Q^T - m (log2 units)")
    rd, mf = qk_lists(8)
    mfma_loop(B, rd, mf, qk_fill(8))
    B("s_barrier", 10)
    check_max(B, 8, "K", ops_of(ktab_reads))
    for half in range(2):
        for i in range(16): B(exp_op(16 * half + i))
        for i in range(8):
            for t in sum_cvt(8 * half + i): B(t)
    B.mark("allissued")
    B.lock = True
    B(f"s_cmp_lt_u32 s{sI}, {npf}"); B("s_cbranch_scc1 L_K")
    sc_lo_reads(B)
    B.c("the last tile's P waits in the Q registers; l is final: sum it over the four lane groups")
    for i in range(16): B(f"v_mov_b32 v{vQ+i}, v{vS+i}")
    B(f"v_add_f32 v{vHd+1}, v{vL}, v{vL+1}")
    for sw in ("v_permlane32_swap_b32", "v_permlane16_swap_b32"):
        B(f"v_mov_b32 v{vTmp+1}, v{vHd+1}"); B("s_nop 1"); B(f"{sw} v{vTmp+1}, v{vHd+1}"); B("s_nop 1"); B(f"v_add_f32 v{vHd+1}, v{vHd+1}, v{vTmp+1}")
    if ua: B(f"v_mov_b32 v{vAo}, 0x40000000")
    B.lock = False
    P = Pos(B); c0 = P.c("free", 0); c1 = P.c("kdone"); c2 = P.c("allissued")
    tg = [c0 + (c1 - c0) * k / (nK1 - 1) for k in range(nK1)] + [c1 + (c2 - c1) * (k + 1) / (16 - nK1) - 8 for k in range(16 - nK1)]
    pl = []
    for k in range(16): pl.append(P.at(tg[k], max(pl[-1] if pl else 0, P.i("free", k) + 1))); assert pl[-1] <= P.i("allissued")
    kbody, _ = emit(B, unit_items, pl, unit_seq, ENTRY - 16, cap, "K")
    print("  K issue", [P.cum[p] for p in pl], file=sys.stderr)

    sig = sorted(m + 1 for m in ms)
    assert jr <= sig[0] and shards == 8
    events = sorted(set(sig) | set(x + 1 for x in sig) | {jr, 16})
    D_ = Stream()
    D_.label("L_V")
    itstamp(D_)
    D_(f"s_add_u32 s{sJ}, s{sJ}, 1")
    D_(f"s_bitcmp1_b32 {hex(sum(1 << e for e in events))}, s{sJ}")
    D_("s_waitcnt lgkmcnt(0)")
    D_("s_cbranch_scc1 L_ctl")
    D_.label("L_v0")
    unit_offs(D_, sJ, sVsl)
    D_(f"s_cmp_lg_u32 s{sMode}, 0"); D_("s_cbranch_scc1 L_vdisp")
    def make_V(tag, caps):
        B = Stream()
        B.label(f"L_V{tag}_")
        B.mark("ready")
        vphase(B, 0, 0, True)
        vtab_reads(B)
        B.c("fetch this tile's P back while the V rows settle in LDS")
        B("s_branch L_restore", 150)
        B.lock = True
        if tag == "":
            B.label("L_restored")
            B(f"s_cmp_lg_u32 s{sMode}, 0"); B("s_cbranch_scc1 L_rdisp")
        B.label(f"L_rest{tag}_")
        B.lock = False
        B("s_waitcnt lgkmcnt(0)"); B("s_barrier", 20)
        rd, mf = pv_lists(0)
        pvv = ops_of(prep_v)
        mfma_loop(B, rd, mf, {-1: pvv[:4], 9: pvv[4:]})
        vphase(B, 8, 1, False)
        B(f"s_cmp_lg_u32 s{sAt}, 0")
        B.lock = True
        B(f"s_cbranch_scc0 L_nopost{tag}")
        B.mark("postwait")
        B(f"ds_write_b32 v{vL4}, v{vAt} offset:{LDS_MB}")
        B.label(f"L_nopost{tag}")
        B.lock = False
        B("s_waitcnt lgkmcnt(0)"); B("s_barrier")
        rd, mf = pv_lists(1)
        mfma_loop(B, rd, mf, spread(ops_of(sc_lo_reads) + [f"ds_read_b32 v{vTmp}, v{vMb}"], 8))
        B.mark("allissued")
        B.lock = True
        B("s_branch L_V")
        B.lock = False
        P = Pos(B); c0 = P.c("free", 0); c1 = c0 + (P.c("allissued") - c0) * vtail
        pl = []
        for k in range(16): pl.append(P.at(c0 + (c1 - c0) * k / 15 - 8, max(pl[-1] if pl else 0, P.i("free", k) + 1))); assert pl[-1] <= P.i("allissued")
        nb = sum(1 for p in pl if p <= P.i("postwait")); assert nb >= AL
        body, _ = emit(B, unit_items, pl, unit_seq, ENTRYV - 16, caps, "V" + tag, at=nb - AL)
        print("  V issue", [P.cum[p] for p in pl], "atomic before", nb - AL, file=sys.stderr)
        return [l.replace("L_noat", "L_noat" + tag) for l in body]
    vbody = D_.text() + make_V("", capV) + make_V("f", capF) + make_V("s", capS)
    hbody = []

    E = Stream()
    def stampE(i):
        if stamps and not (hst == 1 and i in (2, 3, 4)) and not (hst == 2 and i in (2, 3)): E(f"s_memrealtime s[{84+2*i}:{85+2*i}]")
    def lsum():
        stampE(1)
        if stamps: E("s_mov_b32 s99, 0")
    ml = lambda x: vKP + 2 * (x - 1)
    dat = lambda x: vRing + 16 * (x - 1)
    bb = vKSr; u0 = vVP; vPo = vKS; vBa = vKS + 1; vPv = vKC; sLd = sCnt; sNew = sMode
    pl_ = [f"buffer_load_dwordx4 {vr(dat(x)+4*q,4)}, v{vLin}, {srd(sWS)}, s{sPo+x-1} offen offset:{q*1024} sc0 sc1" for x in range(1, 4) for q in range(4)]
    poll = f"buffer_load_dwordx2 {vr(vPv,2)}, v{vPo}, {srd(sWS)}, s{sG} offen sc0 sc1"
    def ready(dst):
        return [f"v_max_u32 v{vTmp+1}, v{vPv}, v{vPv+1}", f"v_cmp_eq_u32 vcc, -1, v{vTmp+1}",
                f"s_lshr_b32 s{sT}, vcc_lo, 16", f"s_cselect_b32 s{dst}, 0, 2",
                f"s_and_b32 s{sT}, vcc_hi, 0xffff", f"s_cselect_b32 s{sT}, 0, 4", f"s_or_b32 s{dst}, s{dst}, s{sT}",
                f"s_lshr_b32 s{sT}, vcc_hi, 16", f"s_cselect_b32 s{sT}, 0, 8", f"s_or_b32 s{dst}, s{dst}, s{sT}"]
    spreadh = [f"ds_bpermute_b32 v{ml(x)+u}, v{vBa}, v{vPv+u} offset:{64*x}" for x in range(1, 4) for u in range(2)]
    E.c("last unit; the last count also told the order in which the pair's workgroups passed it: the fourth merges")
    E.label("L_last")
    E(f"s_lshr_b32 s{sPend}, s{sG}, s{sXc}"); E(f"s_and_b32 s{sPend}, s{sPend}, 7")
    E(f"s_lshl2_add_u32 s{sG}, s{sPair}, s{sWave}"); E(f"s_lshl_b32 s{sG}, s{sG}, 15"); E(f"s_add_u32 s{sG}, s{sG}, {WS_SLOT}")
    E(f"v_lshrrev_b32 v{vPo}, 4, v{vLane}"); E(f"v_and_b32 v{vBa}, 15, v{vLane}"); E(f"v_xor_b32 v{vPo}, s{sSplit}, v{vPo}"); E(f"v_lshlrev_b32 v{vPo}, 13, v{vPo}")
    E(f"v_lshl_add_u32 v{vPo}, v{vBa}, 3, v{vPo}"); E(f"v_add_u32 v{vPo}, 4096, v{vPo}"); E(f"v_lshlrev_b32 v{vBa}, 2, v{vBa}")
    for x in range(4):
        E(f"s_xor_b32 s{sT}, s{sSplit}, {x}"); E(f"s_lshl_b32 s{sT}, s{sT}, 13"); E(f"s_add_u32 s{sPo+x-1}, s{sG}, s{sT}")
    E(f"s_cmp_eq_u32 s{sPend}, 3"); E(f"s_mov_b32 s{sPend}, 14")
    if stamps: E("s_cselect_b32 s100, 2, 1")
    T_ = Stream()
    if hst == 1: T_("s_memrealtime s[88:89]")
    vphase(T_, 0, 0, True)
    T_(f"v_cmp_neq_f32 vcc, v{vNM}, v{vMO}")
    T_.lock = True
    T_(f"s_cbranch_vccnz L_oldrefE")
    T_.label(f"L_newrefE")
    T_.lock = False
    if hst == 1: T_("s_memrealtime s[90:91]")
    T_("s_waitcnt lgkmcnt(0)"); T_("s_barrier", 20)
    rd, mf = pv_lists(0, vQ); mfma_loop(T_, rd, mf, {})
    vphase(T_, 8, 1, False)
    if hst == 1: T_("s_memrealtime s[92:93]")
    T_("s_waitcnt lgkmcnt(0)"); T_("s_barrier")
    rd, mf = pv_lists(1, vQ); mfma_loop(T_, rd, mf, {})
    Pt = Pos(T_)
    p = Pt.at(Pt.c("wait", 15) + pb, Pt.i("wait", 15) + 1)
    T_.I[p:p] = [dict(t=t, c=0, ins=True) for t in ("    s_cbranch_scc0 L_nolook", "    " + poll, "L_nolook:")]
    out, _ = emit(T_, [], [], unit_seq, ENTRYV - 16, None, "tail")
    assert not any(t.strip().startswith("s_") and not t.strip().startswith(("s_waitcnt", "s_barrier", "s_cbranch", "s_nop", "s_memrealtime")) for t in out)
    for t in out: E.I.append(dict(t=t, c=0, ins=True))
    lsum()
    E("s_cbranch_scc1 L_merge")
    E.c("one of the first three: hand the partial over (write-through); once it is out, the header (-m, l), never the empty mark")
    for q in range(4):
        for i in range(4 * q, 4 * q + 4): E(f"v_cvt_pk_bf16_f32 v{vSt+i}, v{vO+2*i}, v{vO+2*i+1}")
        E(f"buffer_store_dwordx4 {vr(vSt+4*q,4)}, v{vLin}, {srd(sWS)}, s{sPo-1} offen offset:{q*1024} sc0 sc1")
    E("s_mov_b64 exec, 0xffff")
    E(f"v_min_u32 v{vHd}, -2, v{vNM}"); E(f"v_min_u32 v{vHd+1}, -2, v{vHd+1}")
    if hst == 2: E("s_memrealtime s[88:89]")
    E("s_waitcnt vmcnt(0)")
    if hst == 2: E("s_memrealtime s[90:91]")
    E(f"buffer_store_dwordx2 {vr(vHd,2)}, v{vPo}, {srd(sWS)}, s{sG} offen sc0 sc1")
    if stamps:
        E("s_mov_b64 exec, -1")
        for i in (2, 3, 4): stampE(i)
        E("s_branch L_done")
    else:
        E("s_endpgm")
    E.c("keep looking at the headers; fetch each partial once its header is complete")
    E.label("L_look")
    E(poll)
    E(f"s_sub_u32 s{sSpin}, s{sSpin}, 1"); E("s_cbranch_scc1 L_end")
    if stamps: E("s_add_u32 s99, s99, 1")
    E.label("L_merge")
    E("s_waitcnt vmcnt(0)")
    for t in ready(sNew): E(t)
    E(f"s_and_b32 s{sNew}, s{sNew}, s{sPend}"); E("s_cbranch_scc0 L_look")
    if hst == 2: E("s_memrealtime s[88:89]")
    for x in range(1, 4):
        E(f"s_bitcmp1_b32 s{sNew}, {x}"); E(f"s_cbranch_scc0 L_get{x}")
        for t in pl_[4*(x-1):4*x]: E(t)
        E.label(f"L_get{x}")
    E(f"s_andn2_b32 s{sPend}, s{sPend}, s{sNew}"); E("s_cbranch_scc1 L_look")
    E.c("all headers are in: final weights 2^(m_x - M) / L, while the last partials are on their way")
    for t in spreadh: E(t)
    wt = lambda x: vKSr + 2 * x if x < 2 else vKS + 2 * (x - 2) + 4
    E(f"v_and_b32 v{vTmp}, 7, v{vLane}" if fullo else f"v_and_b32 v{vTmp}, 15, v{vLane}"); E(f"v_lshrrev_b32 v{vTmp+1}, 4, v{vLane}")
    E(f"v_lshlrev_b32 v{vTmp}, 8, v{vTmp}"); E(f"v_lshl_add_u32 v{vTmp}, v{vTmp+1}, 4, v{vTmp}")
    if fullo: E(f"v_and_b32 v{vTmp+1}, 8, v{vLane}"); E(f"v_lshl_add_u32 v{vTmp}, v{vTmp+1}, 3, v{vTmp}")
    E(f"s_xor_b32 s{sLd}, s{sNew}, 14"); E(f"s_lshl_b32 s{sT2}, s{sWave}, 12")
    E("s_waitcnt lgkmcnt(0)")
    E(f"v_min3_f32 v{vMx}, v{vNM}, v{ml(1)}, v{ml(2)}"); E(f"v_min_f32 v{vMx}, v{vMx}, v{ml(3)}")
    for x in range(4): E(f"v_sub_f32 v{wt(x)}, v{vMx}, v{ml(x) if x else vNM}")
    for x in range(4): E(f"v_exp_f32 v{wt(x)}, v{wt(x)}")
    E(f"v_mul_f32 v{vHd+1}, v{vHd+1}, v{wt(0)}")
    for x in range(1, 4): E(f"v_fmac_f32 v{vHd+1}, v{ml(x)+1}, v{wt(x)}")
    E(f"v_rcp_f32 v{vHd+1}, v{vHd+1}"); E("s_nop 0")
    for x in range(4): E(f"v_mul_f32 v{wt(x)}, v{wt(x)}, v{vHd+1}")
    for i in range(16): E(f"v_pk_mul_f32 {vr(vO+2*i,2)}, {vr(vO+2*i,2)}, {vr(wt(0),2)} op_sel_hi:[1,0]")
    E.c("two passes: the partials that landed earlier, then the last ones")
    E.label("L_pass")
    for x in range(1, 4):
        E(f"s_bitcmp1_b32 s{sLd}, {x}"); E(f"s_cbranch_scc0 L_fold{x}")
        if x > 1: E(f"s_cmp_lg_u32 s{sNew}, 0"); E(f"s_cbranch_scc1 L_in{x}")
        E(f"s_waitcnt vmcnt({4*(3-x)})"); E.label(f"L_in{x}")
        for q in range(2):
            r = dat(x) + 8 * q
            for i in range(8): E(f"v_lshlrev_b32 v{u0+2*i}, 16, v{r+i}")
            for i in range(8): E(f"v_and_b32 v{u0+2*i+1}, 0xffff0000, v{r+i}")
            for i in range(8):
                d = vO + 2 * (8 * q + i)
                E(f"v_pk_fma_f32 {vr(d,2)}, {vr(u0+2*i,2)}, {vr(wt(x),2)}, {vr(d,2)} op_sel_hi:[1,0,1]")
        E.label(f"L_fold{x}")
    E(f"s_cmp_lg_u32 s{sNew}, 0"); E("s_cbranch_scc1 L_second")
    E.label("L_merged")
    for i in (2, 3, 4): stampE(i)
    if fullo:
        E.c("swap halves between rows q and q+8 so that every store covers whole 128-byte lines")
        for u in (0, 2):
            A_, B_ = vS + 4 * u, vS + 4 * u + 4
            for i in range(4 * u, 4 * u + 8): E(f"v_cvt_pk_bf16_f32 v{vS+i}, v{vO+2*i}, v{vO+2*i+1}")
            for i in range(4): E(f"v_mov_b32 v{u0+i}, v{A_+i}")
            for i in range(4): E(f"v_mov_b32_dpp v{A_+i}, v{B_+i} row_ror:8 row_mask:0xf bank_mask:0xc")
            for i in range(4): E(f"v_mov_b32_dpp v{B_+i}, v{u0+i} row_ror:8 row_mask:0xf bank_mask:0x3")
            E(f"buffer_store_dwordx4 {vr(A_,4)}, v{vTmp}, {srd(sOUT)}, s{sT2} offen offset:{u*64} {outf}")
            E(f"buffer_store_dwordx4 {vr(B_,4)}, v{vTmp}, {srd(sOUT)}, s{sT2} offen offset:{2048 + u*64} {outf}")
    else:
        for u in range(4):
            for i in range(4 * u, 4 * u + 4): E(f"v_cvt_pk_bf16_f32 v{vS+i}, v{vO+2*i}, v{vO+2*i+1}")
            E(f"buffer_store_dwordx4 {vr(vS+4*u,4)}, v{vTmp}, {srd(sOUT)}, s{sT2} offen offset:{u*64} {outf}")
    if pollmax:
        E(f"s_sub_u32 s{sT}, {SPIN}, s{sSpin}"); E(f"s_cmp_gt_u32 s{sT}, 6"); E("s_cbranch_scc0 L_done")
        E("s_mov_b64 exec, 1"); E(f"v_mov_b32 v{vAt}, s{sT}"); E(f"s_mov_b32 s{sT2}, 0x23000000")
        E(f"buffer_atomic_umax v{vAt}, off, {srd(sWS)}, s{sT2}")
        E(f"v_mov_b32 v{vFl}, 1"); E(f"buffer_atomic_add v{vFl}, off, {srd(sWS)}, s{sT2} offset:4")
    E.label("L_done")
    if stamps:
        E("s_waitcnt vmcnt(0)")
        stampE(5)
        E(f"s_lshl2_add_u32 s{sT}, s{sPair}, s{sSplit}"); E(f"s_lshl2_add_u32 s{sT}, s{sT}, s{sWave}"); E(f"s_lshl_b32 s{sT2}, s{sT}, 4")
        E(f"s_lshl_b32 s4, s{sT}, 8"); E("s_add_u32 s4, s4, 0x22000000")
        E(f"s_add_u32 s{sT2}, s{sT2}, 0x20000000")
        E(f"s_lshl_b32 s{sT}, s{sT}, 6"); E(f"s_add_u32 s{sT}, s{sT}, 0x21000000")
        E("s_waitcnt lgkmcnt(0)")
        E(f"v_accvgpr_read_b32 v60, a255")
        for i in range(12): E(f"v_mov_b32 v{16+i}, s{84+i}")
        E(f"v_mov_b32 v28, s101"); E("s_getreg_b32 s5, hwreg(HW_REG_XCC_ID)"); E("v_mov_b32 v29, s5"); E(f"v_mov_b32 v30, s100"); E("v_mov_b32 v31, s99")
        E("v_mov_b32 v32, s84"); E("v_mov_b32 v33, s85"); E("v_mov_b32 v34, s94"); E("v_mov_b32 v35, s95")
        E(f"buffer_store_dword v60, v{vL4}, {srd(sWS)}, s4 offen sc0 sc1")
        E("s_mov_b64 exec, 1")
        E(f"buffer_store_dwordx4 v[32:35], off, {srd(sWS)}, s{sT2} sc0 sc1")
        for i in range(4): E(f"buffer_store_dwordx4 v[{16+4*i}:{19+4*i}], off, {srd(sWS)}, s{sT} offset:{16*i} sc0 sc1")
    E.label("L_end")
    E("s_endpgm")

    E.label("L_second")
    E(f"s_mov_b32 s{sLd}, s{sNew}"); E(f"s_mov_b32 s{sNew}, 0")
    E.c("all three in flight together: the counted waits of the pass let each fold start as its partial lands")
    E(f"s_cmp_eq_u32 s{sLd}, 14"); E("s_cbranch_scc1 L_pass")
    E("s_waitcnt vmcnt(0)")
    if hst == 2: E("s_memrealtime s[90:91]")
    E("s_branch L_pass")
    def scale_O(r):
        for i in range(16): E(f"v_pk_mul_f32 {vr(vO+2*i,2)}, {vr(vO+2*i,2)}, {vr(r,2)} op_sel_hi:[1,0]")

    E.label("L_k2v")
    unit_offs(E, None, None); set_base(E, sVb)
    E(f"s_cmp_lg_u32 s{sW0}, 0"); E("s_cbranch_scc0 L_k1")
    if diags:
        E("s_mov_b64 exec, 1"); E(f"v_mov_b32 v{vTmp}, s84"); E(f"v_not_b32 v{vTmp+1}, v{vTmp}")
        E(f"buffer_atomic_umax v{vTmp}, off, {srd(sDBG)}, 0 offset:128"); E(f"buffer_atomic_umax v{vTmp+1}, off, {srd(sDBG)}, 0 offset:132"); E("s_mov_b64 exec, -1")
    E(f"buffer_load_dword v{vFl}, off, {srd(sDBG)}, 0 offset:4 {flagf}")
    E("s_branch L_k1")

    E.label("L_vdisp")
    E(f"s_sub_u32 s{sCnt}, s{sCnt}, 1"); E(f"s_cselect_b32 s{sMode}, 0, s{sMode}"); E("s_cbranch_scc1 L_V_")
    E(f"s_cmp_eq_u32 s{sMode}, 1"); E("s_cbranch_scc1 L_Vf_"); E("s_branch L_Vs_")
    E.label("L_rdisp")
    E(f"s_cmp_eq_u32 s{sMode}, 1"); E("s_cbranch_scc1 L_restf_"); E("s_branch L_rests_")
    E.c("progress counts: read the last one, arm the next one")
    E.label("L_ctl")
    E(f"v_readfirstlane_b32 s{sG}, v{vTmp}"); E(f"s_mov_b32 s{sAt}, 0")
    if ua: E(f"v_mov_b32 v{vAo}, 0x40000000")
    E(f"s_cmp_eq_u32 s{sJ}, 16"); E("s_nop 1"); E("s_cbranch_scc1 L_last")
    E(f"s_bitcmp1_b32 {hex(sum(1 << (x + 1) for x in sig))}, s{sJ}"); E("s_cbranch_scc0 L_arm")
    if stamps: E("s_lshl_b32 s101, s101, 8"); E(f"s_and_b32 s{sT}, s{sG}, 255"); E(f"s_or_b32 s101, s101, s{sT}")
    E.c("rank among the 32 workgroups of this count -> how many units to run with more (late) or fewer (early) loads in flight")
    def enc(tb):
        assert len(tb) == 16
        v = sum(((8 | -d) if d < 0 else d) << (4 * i) for i, d in enumerate(tb)); return v & 0xffffffff, v >> 32
    for n in range(len(sig)):
        lo, hi = enc(tabs[n])
        if n == 0: E(f"s_mov_b32 s4, {hex(lo)}"); E(f"s_mov_b32 s5, {hex(hi)}")
        else: E(f"s_cmp_eq_u32 s{sJ}, {sig[n]+1}"); E(f"s_cselect_b32 s4, {hex(lo)}, s4"); E(f"s_cselect_b32 s5, {hex(hi)}, s5")
    E(f"s_bfe_u32 s{sT}, s{sG}, 0x40001"); E(f"s_lshl_b32 s{sT}, s{sT}, 2"); E(f"s_lshr_b64 s[4:5], s[4:5], s{sT}")
    E(f"s_and_b32 s{sCnt}, s4, 7"); E("s_bitcmp1_b32 s4, 3"); E(f"s_cselect_b32 s{sMode}, 2, 1")
    E.label("L_arm")
    E(f"s_bitcmp1_b32 {hex(sum(1 << x for x in sig))}, s{sJ}"); E(f"s_cselect_b32 s{sAt}, s{sW0}, 0")
    E(f"s_lshl3_add_u32 s{sT}, s{sJ}, s{sShard}"); E(f"s_and_b32 s{sT}, s{sT}, 63")
    E(f"s_lshl_b32 s{sT}, s{sT}, {cstride}"); E(f"s_add_u32 s{sCoff}, s{sT}, {WS_CTR}")
    assert len(set(x % 8 for x in sig)) == len(sig)
    E.c("before the first count: wave 0 checks that the counters are live")
    E(f"s_cmp_eq_u32 s{sJ}, {jr}"); E(f"s_cselect_b32 s{sT}, s{sW0}, 0"); E(f"s_cmp_lg_u32 s{sT}, 0"); E("s_cbranch_scc0 L_v0")
    def zero_counters():
        E(f"v_lshlrev_b32 v{vTmp}, {cstride}, v{vLane}"); E(f"v_mov_b32 v{vFl}, 0"); E(f"s_mov_b32 s{sT}, {WS_CTR}")
        E(f"buffer_atomic_swap v{vFl}, v{vTmp}, {srd(sWS)}, s{sT} offen sc0")
    E(f"v_readfirstlane_b32 s{sT}, v{vFl}"); E("s_mov_b64 exec, 1"); E("s_nop 2")
    E(f"s_cmp_lg_u32 s{sT}, 0"); E("s_cbranch_scc1 L_live")
    E.c("not seen live yet: claim the job if it is free, otherwise wait for the (running) workgroup that holds it")
    E(f"v_mov_b32 v{vFl}, 1")
    E(f"buffer_atomic_add v{vFl}, off, {srd(sDBG)}, 0 sc0")
    E("s_waitcnt vmcnt(0)"); E(f"v_readfirstlane_b32 s{sT}, v{vFl}"); E("s_nop 3")
    E(f"s_cmp_eq_u32 s{sT}, 0"); E("s_cbranch_scc0 L_flag")
    E("s_mov_b64 exec, -1"); zero_counters(); E("s_mov_b64 exec, 1")
    E("s_waitcnt vmcnt(0)"); E(f"v_mov_b32 v{vFl}, 1")
    E(f"buffer_atomic_or v{vFl}, off, {srd(sDBG)}, 0 offset:4")
    E("s_branch L_live")
    E.label("L_flag")
    E(f"v_mov_b32 v{vFl}, 0")
    E(f"buffer_atomic_or v{vFl}, off, {srd(sDBG)}, 0 offset:4 sc0")
    E("s_waitcnt vmcnt(0)"); E(f"v_readfirstlane_b32 s{sT}, v{vFl}"); E(f"s_sub_u32 s{sSpin}, s{sSpin}, 1"); E("s_cbranch_scc1 L_live"); E("s_nop 2")
    E(f"s_cmp_lg_u32 s{sT}, 0"); E("s_cbranch_scc0 L_flag")
    E.label("L_live")
    if not nolocal:
        E.c("note this workgroup's XCD in the pair's word")
        E(f"s_lshl_b32 s{sT}, 1, s{sXc}"); E(f"v_mov_b32 v{vFl}, s{sT}"); E(f"s_lshl_b32 s{sT}, s{sPair}, {cstride}"); E(f"s_add_u32 s{sT}, s{sT}, {WS_CTR}")
        E(f"buffer_atomic_add v{vFl}, off, {srd(sWS)}, s{sT}")
    E("s_mov_b64 exec, -1")
    E("s_branch L_v0")

    def tree(lo, hi, reg, pre, leaf):
        if lo == hi: leaf(lo); return
        mid = (lo + hi + 1) // 2
        E(f"s_cmp_ge_u32 s{reg}, {mid}"); E(f"s_cbranch_scc1 {pre}{mid}_{hi}")
        tree(lo, mid - 1, reg, pre, leaf)
        E.label(f"{pre}{mid}_{hi}")
        tree(mid, hi, reg, pre, leaf)
    E.label("L_restore")
    def rleaf(j1):
        b = 17 * (j1 - 1)
        E(f"v_accvgpr_read_b32 v{vMx}, a{b+16}")
        for i in range(16): E(f"v_accvgpr_read_b32 v{vS+i}, a{b+i}")
        E(f"v_cmp_neq_f32 vcc, v{vMx}, v{vMO}"); E("s_cbranch_vccz L_restored"); E("s_branch L_oldref")
    tree(1, npf - 1, sJ, "L_r", rleaf)
    E.c("this tile's P used a newer reference max than O holds: bring O up to it")
    E.label("L_oldref")
    E(f"v_sub_f32 v{vTmp}, v{vMx}, v{vMO}"); E(f"v_exp_f32 v{vTmp}, v{vTmp}"); E(f"v_mov_b32 v{vMO}, v{vMx}")
    scale_O(vTmp)
    E("s_branch L_restored")
    for tag in "E":
        E.label(f"L_oldref{tag}")
        E(f"v_sub_f32 v{vTmp}, v{vNM}, v{vMO}"); E(f"v_exp_f32 v{vTmp}, v{vTmp}"); E("s_nop 0")
        scale_O(vTmp)
        E(f"s_branch L_newref{tag}")
    E.label("L_save")
    def sleaf(i1):
        if i1 >= 2:
            for t in save_ops(i1 - 2): E(t)
        E("s_branch L_saved")
    tree(1, npf, sI, "L_s", sleaf)

    E.c("rare path: the running max rose past the threshold -> move the reference to the true running max")
    for tag, n in (("K", 32),):
        E.label(f"L_rescale{tag}")
        for sw in ("v_permlane32_swap_b32", "v_permlane16_swap_b32"):
            E(f"v_mov_b32 v{vTmp}, v{vMx}"); E("s_nop 1"); E(f"{sw} v{vTmp}, v{vMx}"); E("s_nop 1"); E(f"v_max_f32 v{vMx}, v{vMx}, v{vTmp}")
        E(f"v_max_f32 v{vTmp}, 0, v{vMx}"); E(f"v_max_f32 v{vT2}, s{sFlo}, v{vMx}")
        E(f"v_exp_f32 v{vTmp}, -v{vTmp}")
        E(f"s_mov_b32 s{sThr}, {hex(f32bits(T))}"); E(f"s_mov_b32 s{sFlo}, 0")
        for r in [vNM, vNM + 2] + [vS + i for i in range(0, n, 2)]:
            E(f"v_pk_add_f32 {vr(r,2)}, {vr(r,2)}, {vr(vT2,2)} op_sel_hi:[1,0] neg_lo:[0,1] neg_hi:[0,1]")
        E(f"v_pk_mul_f32 {vr(vL,2)}, {vr(vL,2)}, {vr(vTmp,2)} op_sel_hi:[1,0]")
        if tag != "K": scale_O(vTmp)
        E(f"s_branch L_rescaled{tag}")

    E.c("workgroup 0, wave 0: zero the counters in d_ws, then raise the flag in d_debug")
    E.label("L_hookK")
    E(f"s_cmp_eq_u32 s{sI}, 1"); E("s_cbranch_scc1 L_hk1")
    E(f"s_cmp_eq_u32 s{sI}, 3"); E("s_cbranch_scc0 L_k1")
    E("s_mov_b64 exec, 1"); E(f"v_mov_b32 v{vFl}, 1")
    E(f"buffer_atomic_or v{vFl}, off, {srd(sDBG)}, 0 offset:4")
    E("s_mov_b64 exec, -1"); E("s_branch L_k1")
    E.label("L_hk1")
    E(f"v_readfirstlane_b32 s{sT}, v{vFl}"); E("s_nop 3")
    E(f"s_cmp_eq_u32 s{sT}, 0"); E(f"s_cselect_b32 s{sHk}, 3, 0"); E("s_cbranch_scc0 L_k1")
    zero_counters()
    E("s_branch L_k1")

    code = pro.text() + kbody + vbody + hbody + [x["t"] for x in E.I if "mark" not in x] + ["L_codeend:"]
    code = "\n".join(code).split("\n")
    if nocomp:
        kill = ("v_fma_mix", "v_cvt_pk", "v_mfma", "v_exp", "v_pk_", "v_max3", "ds_write2", "ds_write_b128", "ds_read_b128", "v_accvgpr_write_b32 a1", "v_accvgpr_read_b32 v9", "v_accvgpr_read_b32 v10", "s_cbranch_vccnz L_resc")
        a0 = code.index("L_K:"); a1 = code.index("L_round:"); c2 = []
        for i, l in enumerate(code):
            if a0 < i < a1:
                if l.strip().startswith(kill): continue
                if "lgkmcnt" in l:
                    l = "    s_waitcnt lgkmcnt(0)"
                    if c2[-1] == l: continue
            c2.append(l)
        code = c2
    if abl:
        a0 = code.index("L_last:"); a1 = code.index("L_merged:"); c2 = []
        for i, l in enumerate(code):
            if a0 < i < a1:
                if abl & 1 and "buffer_store" in l: continue
                if abl & 2 and "buffer_load" in l: continue
                if "s_cbranch_scc1 L_miss" in l: continue
                if abl & 2 and "vmcnt" in l: l = "    s_waitcnt vmcnt(0)"
            c2.append(l)
        code = c2
    if align: code = align_pass(code)
    if not nocomp and not abl: hazard_check(code)
    DOC = """;
;  Three workgroups of a pair hand their partial O (bf16) and (m, l) to the fourth through d_ws: data, wait, header."""
    L = [HDR.rstrip(), f"; @launch grid=(256,1,1) block=(256,1,1) lds={LDS_TOTAL}", DOC, '.amdgcn_target "amdgcn-amd-amdhsa--gfx950"',
         ".text", f".globl {NAME}_kernel", ".p2align 8", f".type {NAME}_kernel,@function", f"{NAME}_kernel:"]
    L += code
    L += ['.section .rodata,"a"', ".p2align 6", f".amdhsa_kernel {NAME}_kernel",
          "  .amdhsa_next_free_vgpr 512", "  .amdhsa_next_free_sgpr 102", "  .amdhsa_accum_offset 256",
          "  .amdhsa_group_segment_fixed_size 0", "  .amdhsa_kernarg_size 80", "  .amdhsa_user_sgpr_count 2",
          "  .amdhsa_user_sgpr_kernarg_segment_ptr 1", "  .amdhsa_system_sgpr_workgroup_id_x 1",
          "  .amdhsa_float_denorm_mode_32 3", "  .amdhsa_float_denorm_mode_16_64 3", ".end_amdhsa_kernel"]
    open(path, "w").write("\n".join(L) + "\n")

if __name__ == "__main__":
    import argparse
    ap = argparse.ArgumentParser()
    ap.add_argument("out")
    for n, t, d in (("AL", int, 7), ("np", int, 14), ("cs", int, 8), ("nK1", int, 7), ("vtail", float, 1.0), ("T", float, 8.0), ("TM", float, 32.0),
                    ("pfcode", int, 8), ("ct", float, 0.9), ("ct0", float, 0.3), ("hv", int, 4), ("hk", float, 0.9), ("hp", int, 4), ("hq", float, 0.9), ("npre", int, 6), ("hst", int, 0), ("nocomp", int, 0), ("abl", int, 0), ("capC", str, None), ("uth", int, 4), ("grp", int, 0), ("flagf", str, "sc0 sc1"), ("capF", str, "7"), ("capS", str, "45"), ("tabs", str, "edcbba0001122345,cbbaaa0000112223,aaa0000000011111"), ("ms", str, "4,10,13"), ("shards", int, 8), ("shb", int, 3), ("ldf", str, "sc0 sc1"), ("wb", int, 0), ("wto", int, 0), ("nolocal", int, 1), ("pb", int, 0), ("jr", int, 3), ("pa", int, 0), ("pw", int, 1), ("noearly", int, 0), ("diags", int, 0), ("diagm", int, 0), ("p2f", float, -1), ("jo", int, 15), ("chk", int, 0), ("apoll", int, 0), ("gray", int, 0), ("ua", int, 0), ("det", int, 0), ("prog", int, 1), ("pbar", int, 0), ("rtmap", int, 0), ("fullo", int, 0), ("tw", int, 0), ("alt", int, 0), ("twf", str, "nt"), ("om", str, "kkkk"), ("cols", str, "1000,800,4000,2000,100,240,4b0,8044"),
                    ("nt", str, "nt"), ("q", str, ""), ("smf", str, "nt"), ("outf", str, "sc0 sc1"), ("pubf", str, "sc0 sc1"),
                    ("cap", str, "55555556"), ("capV", str, "5555555555555556"), ("capH", str, None), ("capP", str, "8")):
        ap.add_argument("--" + n, type=t, default=d)
    ap.add_argument("--mix", type=lambda x: int(x, 0), default=0)
    for n in ("stamps", "it", "dry", "noalign", "pollmax"): ap.add_argument("--" + n, action="store_true")
    a = ap.parse_args()
    gen(a.out, AL=a.AL, npf=a.np, stamps=a.stamps, nt=a.nt, smf=a.smf, qflag=a.q, cstride=a.cs, T=a.T, TM=a.TM, mix=a.mix, nK1=a.nK1, vtail=a.vtail,
        itst=a.it, outf=a.outf, pubf=a.pubf, cap=a.cap, capV=a.capV, capH=a.capH, capP=a.capP, pfcode=a.pfcode, ctspan=a.ct, ct0=a.ct0,
        hv=a.hv, hk=a.hk, hp=a.hp, hq=a.hq, npre=a.npre, dry=a.dry, hst=a.hst, align=not a.noalign, nocomp=a.nocomp, abl=a.abl, capC=a.capC, uth=a.uth, pollmax=a.pollmax, grp=a.grp, flagf=a.flagf, capF=a.capF, capS=a.capS, tabs=[[(int(c) if c.isdigit() else -(ord(c) - 96)) for c in t] for t in a.tabs.split(',')], ms=tuple(int(x) for x in a.ms.split(',') if x), shards=a.shards, shb=a.shb, ldf=a.ldf, wb=a.wb, wto=a.wto, nolocal=a.nolocal, pb=a.pb, jr=a.jr, pa=a.pa, pw=a.pw, noearly=a.noearly, diags=a.diags, diagm=a.diagm, p2f=a.p2f, jo=a.jo, chk=a.chk, apoll=a.apoll, gray=a.gray, ua=a.ua, det=a.det, prog=a.prog, pbar=a.pbar, rtmap=a.rtmap, fullo=a.fullo, tw=a.tw, alt=a.alt, twf=a.twf, om=a.om.replace('k', '-'), cols=[int(x, 16) << 12 for x in a.cols.split(',')])
```

```python
import sys, struct, math, re
NAME = "standalone__kv_cache_quant_int4_int2_kv_with_per_channel_or_per_token_scales__sampling"
HDR = open("cdna_kernels/" + NAME + ".s.ref").read().split("; Override launch")[0]

def f32bits(x):
    return struct.unpack("<I", struct.pack("<f", x))[0]

def cost_of(s):
    op = s.split()[0]
    if op.startswith("v_mfma"): return 8
    if op in ("v_exp_f32", "v_rcp_f32"): return 8
    if op in ("ds_write_b128", "ds_write2_b64"): return 28
    if op.startswith("ds_write"): return 20
    if op == "s_barrier": return 70
    if op == "s_nop": return 4 * (int(s.split()[1]) + 1)
    return 4

class Stream:
    def __init__(self): self.I = []; self.lock = False; self.nds = 0
    def __call__(self, s, cost=None):
        self.I.append(dict(t="    " + s, c=(cost_of(s) if cost is None else cost), ins=not self.lock))
        if s.startswith("ds_"): self.nds += 1
        return self.nds
    def waitds(self, i):
        n = self.nds - i; assert 0 <= n <= 15
        self(f"s_waitcnt lgkmcnt({n})")
    def label(self, s): self.I.append(dict(t=s + ":", c=0, ins=not self.lock))
    def c(self, s): self.I.append(dict(t="    ; " + s, c=0, ins=not self.lock))
    def mark(self, kind, k=None): self.I.append(dict(mark=kind, k=k, c=0, ins=not self.lock))
    def text(self): return [x["t"] for x in self.I]

INLINE = re.compile(r"^-?(\d+|0x[0-9a-f]+)$")
def has_literal(ops):
    for o in ops:
        if INLINE.match(o):
            v = int(o, 0)
            if not -16 <= v <= 64 and (v & 0x7fffffff) not in (0x3f000000, 0x3f800000, 0x40000000, 0x40800000): return True
        elif re.match(r"^L_\w+-L_\w+$", o): return True
    return False
VOP12 = ("v_mov_b32", "v_exp_f32", "v_rcp_f32", "v_add_f32", "v_sub_f32", "v_mul_f32", "v_max_f32", "v_min_f32", "v_lshlrev_b32", "v_lshrrev_b32", "v_and_b32",
         "v_xor_b32", "v_add_u32", "v_mul_u32_u24", "v_min_u32", "v_max_u32", "v_fmac_f32", "v_cvt_f32_u32", "v_cvt_f32_i32", "v_not_b32")
def isize(line):
    s = line.split(";")[0].strip()
    if not s or s.endswith(":") or s.startswith("."): return 0, None
    op, _, rest = s.partition(" ")
    ops = [o.strip() for o in rest.split(",")] if rest else []
    if op.startswith(("s_load", "s_memrealtime", "ds_", "buffer_")): return 8, None
    if op.startswith("s_"):
        if op in ("s_waitcnt", "s_nop", "s_barrier", "s_endpgm", "s_branch", "s_getreg_b32") or op.startswith("s_cbranch"): return 4, None
        return (8 if has_literal(ops) else 4), None
    if op in ("v_cndmask_b32", "v_readfirstlane_b32", "v_permlane32_swap_b32", "v_permlane16_swap_b32"): return 4, None
    if op.startswith("v_cmp"):
        return (4 + 4 * has_literal(ops[1:]) if ops[0] == "vcc" else 8), None
    if op in VOP12:
        if any(o.startswith("-v") for o in ops): return 8, "valu"
        if has_literal(ops[1:]): return 8, "valu"
        return 4, "grow"
    if op.startswith("v_mfma"): return 8, None
    return 8, "valu"
def align_pass(L):
    out = []; par = 0; last = None
    for i, line in enumerate(L):
        sz, kind = isize(line)
        if sz == 8 and par and last is not None:
            j = last; op = out[j].split()[0]
            out[j] = out[j].replace(op, op + "_e64", 1); par = 0
        elif sz == 8 and par:
            n = 0
            for l2 in L[i:]:
                s2, k2 = isize(l2)
                if s2 == 4: break
                n += k2 == "valu"
            if n >= 7: out.append("    s_nop 0"); par = 0
        if sz == 8: last = None
        if sz == 4:
            par ^= 1
            if kind == "grow": last = len(out)
        out.append(line)
    return out

def regs_of(tok):
    m = re.match(r"^-?v\[(\d+):(\d+)\]$", tok)
    if m: return set(range(int(m.group(1)), int(m.group(2)) + 1))
    m = re.match(r"^-?v(\d+)$", tok)
    return {int(m.group(1))} if m else set()
def hazard_check(L):
    hist = []
    for line in L:
        s = line.split(";")[0].strip()
        if not s or s.endswith(":") or s.startswith("."): continue
        op, _, rest = s.partition(" ")
        toks = [o.strip().split(" ")[0] for o in rest.split(",")] if rest else []
        if op in ("s_branch", "s_endpgm"): hist = []; continue
        st = int(toks[0]) + 1 if op == "s_nop" else 1
        allr = [regs_of(t) for t in toks]
        isv = op.startswith("v_"); mf = op.startswith("v_mfma")
        store = op.startswith(("ds_write", "buffer_store", "buffer_atomic"))
        dst = set() if (store or not allr or op.startswith(("v_cmp", "v_readfirstlane"))) else allr[0]
        src = set().union(*(allr if store or op.startswith(("v_cmp", "v_permlane", "v_fmac")) else allr[1:])) if allr else set()
        if op.startswith("v_permlane"): dst = src
        d = 0
        for (pop, pdst, psrcC, pst) in reversed(hist):
            need = 0
            if pop.startswith("v_mfma"):
                if mf:
                    if pdst & (allr[1] | allr[2]): need = 8
                    elif pdst & allr[3] and pdst != allr[3]: need = 6
                elif pdst & (src | dst): need = 8
                elif isv and psrcC & dst: need = 3
            elif pop.startswith("v_"):
                if mf and pdst & src: need = 2
                if (op.startswith("v_permlane") or op.endswith("_dpp")) and pdst & src: need = 2
                if op == "v_readfirstlane_b32" and pdst & src: need = 1
                if pop.split("_e64")[0] in ("v_exp_f32", "v_rcp_f32") and isv and op.split("_e64")[0] not in ("v_exp_f32", "v_rcp_f32") and pdst & src: need = max(need, 1)
                if pop.startswith("v_dot") and op != pop and pdst & (src | dst): need = 3
            elif pop.startswith("buffer_store_dwordx4") and isv and psrcC & dst: need = 2
            assert d >= need, f"hazard: {pop} -> {s} distance {d} < {need}"
            d += pst
            if d >= 8: break
        hist.append((op, dst, (allr[3] if mf else (allr[0] if op.startswith("buffer_store") else set())), st))

def gen(path, AL=8, npf=14, stamps=False, nt="nt", smf="nt", qflag="", cstride=8, T=8.0, TM=32.0, mix=0x31031031, nK1=9, vtail=1.0,
        itst=False, outf="sc0 sc1", pubf="sc0 sc1", cap="56", capV="556", capH=None, capP="8", pfcode=4, ctspan=0.95, ct0=0.15,
        hv=4, hk=0.9, hp=4, hq=0.9, npre=6, dry=False, hst=0, align=True, nocomp=0, abl=0, capC=None, uth=4, pollmax=False, grp=0, flagf='', capF='7', capS='45', tabs=None, ms=(5, 11), shards=4, shb=3, cols=None, ldf='sc0 sc1', wb=False, wto=0, nolocal=False, pb=100, jr=3, pa=1, pw=1, noearly=0, diags=0, diagm=0, p2f=-1, jo=15, om='----', chk=-1, apoll=0, gray=0, ua=0, det=0, prog=1, pbar=0, rtmap=0, fullo=1, tw=0, twf='nt', alt=0, gen_=1, tcol=2):
    npf = 16
    capn = lambda c, k: int(c[k % len(c)], 16) - 1
    KROW = 288; JS = 576; OS = 2320
    TABW = 16 * 256
    LDS_MB = 0; LDS_SC = 256; LDS_TAB = 1536; LDS_K = LDS_TAB + 4 * TABW; LDS_V = LDS_K + 128 * KROW
    LDS_TOTAL = LDS_V + 16 * OS
    assert LDS_K % 256 == 0 and LDS_K + 128 * KROW < 65536 and LDS_TAB % 512 == 0 and TABW % 512 == 0
    WS_SLOT = 1 << 20; WS_CTR = 16 << 20; FLAG = 0x100
    SPIN = 1 << 20
    PF = 8
    vLane, vOff, vMb, vKR, vSW, vSR, vVW, vVR, vTK, vTV, vL4, vLin = range(12)
    vHd = 12
    vCk, vFl = 14, 15
    vL = 16
    vT2 = 18
    vKS, vKC = 20, 24; vKSr, vKZr, vVSr, vVZr = 28, 30, 32, 33
    vTmp = 34
    vMx, vAt, vMO = 37, 38, 39
    vKP = 40; vVP = 48; vO = 64; vS = 96; vRing = 128; vQ = 192; vSt = 208; NST = 10
    vNM = 248; vKW = 252
    vSc = vS + 16
    vAo = vL
    sX, sY, sSM, sQ, sDBG, sWS, sOUT = 8, 12, 16, 20, 24, 28, 32
    sKb, sVb = 36, 38
    sPair, sSplit, sI, sJ, sG, sT, sT2, sFlo, sThr, sDoff, sCoff, sIni, sKsl, sVsl, sWb, sPend, sSpin, sW0, sHk, sMode = range(40, 60)
    sAt = 49; sShard = 82; sCnt = 83; sXc = 71; sInc = 70
    sO = 60
    sK1, sK2 = 64, 66
    sCw = 72
    sPo = 76
    sWave = 3
    srd = lambda r: f"s[{r}:{r+3}]"
    vr = lambda r, n: f"v[{r}:{r+n-1}]"
    def item_text(k):
        return f"buffer_load_dwordx4 {vr(vRing+4*k,4)}, v{vOff}, {srd(sX)}, s{sO + k//4} offen offset:{(k%4)*1024} {nt}"
    sXm = 101 if not stamps else 59 + 40
    sXm = 2
    def unit_offs(A, idx, slot):
        if idx is None: A(f"s_mov_b32 s{sO}, s{sXm}")
        else:
            if gray == 1: A(f"s_lshr_b32 s{sO}, s{idx}, 1"); A(f"s_xor_b32 s{sO}, s{sO}, s{idx}"); A(f"s_lshl_b32 s{sO}, s{sO}, 16")
            elif gray == 2: A(f"s_brev_b32 s{sO}, s{idx}"); A(f"s_lshr_b32 s{sO}, s{sO}, 12")
            else: A(f"s_lshl_b32 s{sO}, s{idx}, 16")
            A(f"s_xor_b32 s{sO}, s{sO}, s{sXm}")
        A(f"s_add_u32 s{sO+1}, s{sO}, 4096"); A(f"s_xor_b32 s{sO+2}, s{sO}, 0x4000"); A(f"s_xor_b32 s{sO+3}, s{sO+1}, 0x4000")
        if slot is not None: A(f"s_bfe_u32 s{slot}, s{sO}, 0xc0008")
    def set_base(A, b, b2=None):
        if b2 is None: b2 = b
        A(f"s_mov_b64 s[{sX}:{sX+1}], s[{b}:{b+1}]")
    A = Stream()
    A("s_cmp_ge_u32 s2, 256"); A("s_cbranch_scc1 L_end")
    if stamps: A("s_memrealtime s[84:85]"); A("s_mov_b32 s101, 0")
    if diags: A("s_memrealtime s[84:85]")
    A("s_load_dwordx16 s[68:83], s[0:1], 0")
    A("s_load_dwordx4 s[4:7], s[0:1], 64")
    if alt: A("s_load_dwordx8 s[84:91], s[0:1], 80")
    if pfcode:
        A.c("pull this kernel's code into L2 with strided loads (speed only; the values are unused)")
        A("s_getpc_b64 s[92:93]"); A("s_and_b32 s92, s92, 0xffffff00"); A("s_mov_b32 s94, L_codeend-L_pf"); A("s_mov_b32 s95, 0x20000")
        A.label("L_pf")
        A(f"v_lshlrev_b32 v{vTmp}, 7, v0")
        A(f"s_lshr_b32 s{sT2}, s2, 3"); A(f"s_and_b32 s{sT2}, s{sT2}, {pfcode-1}"); A(f"s_cselect_b32 s94, 0, s94")
        A(f"buffer_load_dword v{vTmp}, v{vTmp}, s[92:95], 0 offen")
    A("v_lshrrev_b32 v1, 6, v0")
    A(f"v_and_b32 v{vLane}, 63, v0")
    A(f"v_readfirstlane_b32 s{sWave}, v1")
    A.c("workgroup id -> (pair, split) and the order in which it walks its token groups: a bijection (placement affects speed only)")
    for i, c in enumerate(cols):
        A(f"s_bitcmp1_b32 s2, {i}"); A(f"s_cselect_b32 s{sT if i else sT2}, {hex(c)}, 0")
        if i: A(f"s_xor_b32 s{sT2}, s{sT2}, s{sT}")
    if mix:
        A(f"s_lshr_b32 s{sT}, s2, 3"); A(f"s_and_b32 s{sT}, s{sT}, 7"); A(f"s_lshl_b32 s{sT}, s{sT}, 2")
        A(f"s_lshr_b32 s{sT}, {hex(mix)}, s{sT}"); A(f"s_and_b32 s{sT}, s{sT}, 3"); A(f"s_and_b32 s{sT}, s{sT}, s2")
        A(f"s_bcnt1_i32_b32 s{sT}, s{sT}"); A(f"s_and_b32 s{sT}, s{sT}, 1"); A(f"s_lshl_b32 s{sT}, s{sT}, 22"); A(f"s_xor_b32 s{sT2}, s{sT2}, s{sT}")
    def idmap(w):
        v = 0
        for i, c in enumerate(cols):
            if w >> i & 1: v ^= c
        if mix: v ^= (bin((mix >> (4 * ((w >> 3) & 7))) & 3 & w).count("1") & 1) << 22
        return v
    assert len(set(idmap(w) >> 20 for w in range(256))) == 256 and all(idmap(w) & ~0xfff4000 == 0 for w in range(256)) and idmap(0) == 0
    if rtmap:
        A("s_waitcnt lgkmcnt(0)"); A(f"s_lshl_b32 s{sT}, s2, 2"); A(f"s_add_u32 s90, s6, 0x24000000"); A("s_addc_u32 s91, s7, 0")
        A(f"s_load_dword s{sT2}, s[90:91], s{sT}"); A("s_waitcnt lgkmcnt(0)")
    A(f"s_mov_b32 s{sMode}, s2")
    A(f"s_lshr_b32 s{sPair}, s{sT2}, 22"); A(f"s_bfe_u32 s{sSplit}, s{sT2}, 0x20014"); A(f"s_and_b32 s{sXm}, s{sT2}, 0x3fffff")
    c_, h_, m_, g_ = vKS, vKS + 1, vKS + 2, vKS + 3
    t0, t1, vQo = vKC, vKC + 1, vKC + 2
    A.c("only what the first K rows need comes before them")
    A(f"v_lshlrev_b32 v{vLin}, 4, v{vLane}")
    A(f"s_and_b32 s{sT}, s{sWave}, 1"); A(f"s_lshr_b32 s{sT2}, s{sWave}, 1"); A(f"s_lshl2_add_u32 s{sWb}, s{sT2}, s{sT}"); A(f"s_lshl_b32 s{sWb}, s{sWb}, 13")
    A(f"v_add_u32 v{vOff}, s{sWb}, v{vLin}")
    A(f"s_mov_b32 s{sX+2}, {0 if dry else 0x400000}"); A(f"s_mov_b32 s{sX+3}, 0x20000")
    unit_offs(A, None, None)
    A(f"s_lshl_b32 s{sT}, s{sPair}, 22")
    A("s_waitcnt lgkmcnt(0)")
    def mk(r, p): A(f"s_add_u32 s{r}, s{p}, s{sPend}"); A(f"s_addc_u32 s{r+1}, s{p+1}, 0")
    if alt: A(f"s_cmp_ge_u32 s{sPair}, s88"); A("s_cselect_b64 s[70:71], s[84:85], s[70:71]"); A("s_cselect_b64 s[72:73], s[86:87], s[72:73]")
    A(f"s_add_u32 s{sX}, s70, s{sT}"); A(f"s_addc_u32 s{sX+1}, s71, 0")
    for k in range(npre): A(item_text(k))
    A(f"s_add_u32 s{sVb}, s72, s{sT}"); A(f"s_addc_u32 s{sVb+1}, s73, 0")
    A(f"s_lshl_b32 s{sG}, s{sWave}, 12"); A(f"s_add_u32 m0, s{sG}, {LDS_TAB}"); assert TABW == 4096
    for r in (sSM, sQ, sOUT): A(f"s_mov_b32 s{r+2}, 0x4000"); A(f"s_mov_b32 s{r+3}, 0x20000")
    A(f"s_lshl_b32 s{sPend}, s{sPair}, 14")
    A.c("wave w streams scale/zero array w (ks, kz, vs, vz) into the LDS table")
    A(f"s_cmp_eq_u32 s{sWave}, 1"); A(f"s_cselect_b64 s[{sSM}:{sSM+1}], s[76:77], s[74:75]")
    A(f"s_cmp_eq_u32 s{sWave}, 2"); A(f"s_cselect_b64 s[{sSM}:{sSM+1}], s[78:79], s[{sSM}:{sSM+1}]")
    A(f"s_cmp_eq_u32 s{sWave}, 3"); A(f"s_cselect_b64 s[{sSM}:{sSM+1}], s[80:81], s[{sSM}:{sSM+1}]")
    mk(sSM, sSM)
    A(f"s_lshl_b32 s{sT}, s{sSplit}, 12")
    nT = (npf + 3) // 4
    for u in range(nT):
        rows = min(4, npf - 4 * u)
        if rows < 4: A(f"s_bfm_b64 exec, {16*rows}, 0")
        A(f"buffer_load_dwordx4 v{vLin}, {srd(sSM)}, s{sT} offen offset:{u*1024} {smf} lds")
        if rows < 4: A("s_mov_b64 exec, -1")
    mk(sQ, 68)
    A(f"v_and_b32 v{m_}, 15, v{vLane}"); A(f"v_lshrrev_b32 v{g_}, 4, v{vLane}")
    A(f"v_lshlrev_b32 v{vQo}, 8, v{m_}"); A(f"v_lshl_add_u32 v{vQo}, v{g_}, 4, v{vQo}")
    A(f"s_lshl_b32 s{sT}, s{sWave}, 12")
    for s4 in range(4): A(f"buffer_load_dwordx4 {vr(vQ+4*s4,4)}, v{vQo}, {srd(sQ)}, s{sT} offen offset:{s4*64} {qflag}")
    A.c("mark the header of this wave's hand-off slot empty")
    for i in range(2): A(f"v_mov_b32 v{vVP+i}, -1")
    A(f"v_lshlrev_b32 v{vVP+2}, 3, v{vLane}")
    A(f"s_lshl2_add_u32 s{sT2}, s{sPair}, s{sWave}"); A(f"s_lshl2_add_u32 s{sT2}, s{sT2}, s{sSplit}")
    A(f"s_lshl_b32 s{sT2}, s{sT2}, 13"); A(f"s_add_u32 s{sT2}, s{sT2}, {WS_SLOT + 4096}")
    A(f"s_mov_b32 s{sWS+2}, 0x40000000"); A(f"s_mov_b32 s{sWS+3}, 0x20000")
    A(f"s_mov_b32 s{sDBG+2}, 256"); A(f"s_mov_b32 s{sDBG+3}, 0x20000"); A(f"v_mov_b32 v{vFl}, 1")
    A(f"s_mov_b64 s[{sWS}:{sWS+1}], s[6:7]")
    A("s_mov_b64 exec, 0xffff")
    A(f"buffer_store_dwordx2 {vr(vVP,2)}, v{vVP+2}, {srd(sWS)}, s{sT2} offen sc0 sc1")
    A("s_mov_b64 exec, -1")
    A.c("workgroup 0 claims the job of zeroing the counters in d_ws (any workgroup takes it over later if nobody has)")
    A(f"s_mov_b64 s[{sDBG}:{sDBG+1}], s[4:5]")
    A(f"s_cmp_eq_u32 s{sWave}, 0"); A(f"s_cselect_b32 s{sW0}, 1, 0")
    A(f"s_or_b32 s{sT}, s{sMode}, {'1' if noearly else 's%d' % sWave}"); A(f"s_cselect_b32 s{sHk}, 0, 3"); A("s_cbranch_scc1 L_noel")
    A("s_mov_b64 exec, 1")
    A(f"buffer_atomic_add v{vFl}, off, {srd(sDBG)}, 0 sc0")
    A("s_mov_b64 exec, -1")
    A.label("L_noel")
    mk(sOUT, 82)
    A(f"v_and_b32 v{c_}, 31, v{vLane}"); A(f"v_lshrrev_b32 v{h_}, 5, v{vLane}"); A(f"v_lshlrev_b32 v{vL4}, 2, v{vLane}")
    A(f"s_bfe_u32 s{sVsl}, s{sO}, 0xc0008"); A(f"s_andn2_b32 s{sKsl}, s{sVsl}, 255")
    A(f"v_lshlrev_b32 v{vTK}, 3, v{c_}")
    A(f"v_lshrrev_b32 v{vTV}, 4, v{c_}"); A(f"v_lshlrev_b32 v{vTV}, 5, v{vTV}")
    A(f"v_and_b32 v{t0}, 15, v{c_}"); A(f"v_add_lshl_u32 v{vTV}, v{vTV}, v{t0}, 1")
    A(f"s_lshr_b32 s{sT}, s{sWb}, 8"); A(f"v_add_u32 v{vTV}, s{sT}, v{vTV}")
    A(f"s_lshr_b32 s{sT}, s{sWave}, 1"); A(f"s_and_b32 s{sT2}, s{sWave}, 1")
    A(f"s_mul_i32 s{sT}, s{sT}, {32*KROW}"); A(f"s_mul_i32 s{sT2}, s{sT2}, {8*KROW}"); A(f"s_add_u32 s{sT}, s{sT}, s{sT2}"); A(f"s_add_u32 s{sT}, s{sT}, {LDS_K}")
    A(f"v_mul_u32_u24 v{vKW}, {4*KROW}, v{h_}"); A(f"v_lshl_add_u32 v{vKW}, v{c_}, 3, v{vKW}"); A(f"v_add_u32 v{vKW}, s{sT}, v{vKW}")
    for u, rows in ((1, 16), (2, 64), (3, 80)): A(f"v_add_u32 v{vKW+u}, {rows*KROW}, v{vKW}")
    A(f"v_mul_u32_u24 v{vKR}, {KROW}, v{m_}"); A(f"v_lshl_add_u32 v{vKR}, v{g_}, 4, v{vKR}")
    A(f"s_mul_i32 s{sT}, s{sWave}, {2*OS}"); A(f"s_add_u32 s{sT}, s{sT}, {LDS_V}")
    A(f"v_mul_u32_u24 v{vVW}, {OS}, v{h_}"); A(f"v_lshl_add_u32 v{vVW}, v{c_}, 4, v{vVW}"); A(f"v_add_u32 v{vVW}, s{sT}, v{vVW}")
    A(f"v_mul_u32_u24 v{vVR}, {OS}, v{g_}"); A(f"v_and_b32 v{t0}, 3, v{m_}"); A(f"v_mul_u32_u24 v{t0}, {JS}, v{t0}")
    A(f"v_lshrrev_b32 v{t1}, 2, v{m_}"); A(f"v_lshlrev_b32 v{t1}, 5, v{t1}")
    A(f"v_add3_u32 v{vVR}, v{vVR}, v{t0}, v{t1}"); A(f"v_add_u32 v{vVR}, {LDS_V}, v{vVR}")
    A(f"s_lshl_b32 s{sT}, s{sWave}, 8"); A(f"s_add_u32 s{sT2}, s{sT}, {LDS_SC}")
    A(f"v_and_b32 v{vSW}, 1, v{c_}"); A(f"v_lshlrev_b32 v{vSW}, 7, v{vSW}")
    A(f"v_lshrrev_b32 v{t0}, 1, v{c_}"); A(f"v_lshl_add_u32 v{vSW}, v{t0}, 3, v{vSW}"); A(f"v_add_u32 v{vSW}, s{sT2}, v{vSW}")
    A(f"v_lshlrev_b32 v{vSR}, 7, v{h_}"); A(f"v_add_u32 v{vSR}, s{sT2}, v{vSR}")
    A(f"v_mov_b32 v{vMb}, {LDS_MB}")
    A(f"s_mov_b32 s{sCoff}, {WS_CTR}")
    cc = math.log2(math.e) / math.sqrt(128.0)
    for i in range(2):
        A(f"s_mov_b32 s{sK1+i}, {hex(f32bits(cc if gen_ else cc * 2.0**24))}")
        if not gen_: A(f"s_mov_b32 s{sK2+i}, {hex(f32bits(-2.0**-24))}")
    A.c("the first tile always takes the rescale path, which sets the reference to that tile's true row max")
    A(f"s_mov_b32 s{sThr}, 0xff800000"); A(f"s_mov_b32 s{sFlo}, 0xff800000")
    for r in (sAt, sMode, sCnt, sI, sJ): A(f"s_mov_b32 s{r}, 0")
    A.c("a count is shared by 8 pairs: low byte = arrivals so far, above it a 3-bit arrival field per pair")
    fb = sorted((c >> 22).bit_length() - 1 for c in cols[:3]); assert all(bin(c >> 22).count("1") == 1 for c in cols[:3])
    sb = [x for x in range(6) if x not in fb]
    for dst, bits in ((sXc, fb), (sShard, sb)):
        for n, x in enumerate(reversed(bits)):
            A(f"s_bfe_u32 s{sT if n else dst}, s{sPair}, {hex(0x10000 | x)}")
            if n: A(f"s_lshl1_add_u32 s{dst}, s{dst}, s{sT}")
    A(f"s_mul_i32 s{sXc}, s{sXc}, 3"); A(f"s_add_u32 s{sXc}, s{sXc}, 8"); A(f"s_lshl_b32 s{sInc}, 1, s{sXc}"); A(f"s_add_u32 s{sInc}, s{sInc}, 1")
    if not nolocal: A(f"s_getreg_b32 s{sXc}, hwreg(HW_REG_XCC_ID, 0, 3)"); A(f"s_mul_i32 s{sXc}, s{sXc}, 3"); A(f"s_add_u32 s{sXc}, s{sXc}, 8")
    A(f"s_mov_b32 s{sSpin}, {SPIN}")
    for i in range(32): A(f"v_mov_b32 v{vO+i}, 0")
    for i in range(4): A(f"v_mov_b32 v{vNM+i}, 0")
    A(f"v_mov_b32 v{vMO}, 0x7149f2ca"); A(f"v_mov_b32 v{vL}, 0"); A(f"v_mov_b32 v{vL+1}, 0"); A(f"v_mov_b32 v{vAt}, 0")
    def ktab_reads(S):
        S(f"v_add_u32 v{vTmp+2}, s{sKsl}, v{vTK}")
        S(f"ds_read_b64 {vr(vKSr,2)}, v{vTmp+2} offset:{LDS_TAB}"); S(f"ds_read_b64 {vr(vKZr,2)}, v{vTmp+2} offset:{LDS_TAB+TABW}")
    def vtab_reads(S):
        S(f"v_xor_b32 v{vTmp+2}, s{sVsl}, v{vTV}")
        S(f"ds_read_u16 v{vVSr}, v{vTmp+2} offset:{LDS_TAB+2*TABW}"); S(f"ds_read_u16 v{vVZr}, v{vTmp+2} offset:{LDS_TAB+3*TABW}")
    def prep_v(S):
        S.c("V: S = vs, C = -vz*vs per token, broadcast through LDS" if gen_ else "V: S = vs*2^24, C = -vz*vs per token, broadcast through LDS")
        S(f"v_lshlrev_b32 v{vT2}, 16, v{vVSr}"); S(f"v_lshlrev_b32 v{vT2+1}, 16, v{vVZr}")
        S(f"v_mul_f32 v{vT2+1}, -v{vT2+1}, v{vT2}")
        if not gen_: S(f"v_mul_f32 v{vT2}, 0x4b800000, v{vT2}")
        S(f"ds_write_b64 v{vSW}, {vr(vT2,2)}")
    def prep_k(S):
        S.c("K: S = ks*c, C = -kz*ks*c per channel, c = log2(e)/sqrt(128)" if gen_ else "K: S = ks*c*2^24, C = -kz*ks*c per channel, c = log2(e)/sqrt(128) (the int code is read as an f16 subnormal, code*2^-24)")
        for p in range(2): S(f"v_lshlrev_b32 v{vKS+2*p}, 16, v{vKSr+p}"); S(f"v_lshlrev_b32 v{vKC+2*p}, 16, v{vKZr+p}")
        for p in range(2): S(f"v_and_b32 v{vKS+2*p+1}, 0xffff0000, v{vKSr+p}"); S(f"v_and_b32 v{vKC+2*p+1}, 0xffff0000, v{vKZr+p}")
        for p in range(2): S(f"v_pk_mul_f32 {vr(vKS+2*p,2)}, {vr(vKS+2*p,2)}, s[{sK1}:{sK1+1}]")
        if gen_:
            for p in range(2): S(f"v_pk_mul_f32 {vr(vKC+2*p,2)}, {vr(vKC+2*p,2)}, {vr(vKS+2*p,2)} neg_lo:[1,0] neg_hi:[1,0]")
        else:
            for p in range(2): S(f"v_pk_mul_f32 {vr(vKC+2*p,2)}, {vr(vKC+2*p,2)}, s[{sK2}:{sK2+1}]")
            for p in range(2): S(f"v_pk_mul_f32 {vr(vKC+2*p,2)}, {vr(vKC+2*p,2)}, {vr(vKS+2*p,2)}")
    def sc_lo_reads(S):
        for i in range(4): S(f"ds_read_b128 {vr(vSc+4*i,4)}, v{vSR} offset:{i*16}")
    ENTRYV = 15 - max(capn(c, 15) for c in (cap, capV, capF, capS))
    ENTRY = 15 - capn(cap, 15)
    if pbar:
        assert npre < pbar < 15
        for k in range(npre, 16):
            if k == pbar:
                A(f"s_waitcnt vmcnt({pbar - npre})"); A("s_barrier")
                ktab_reads(A); vtab_reads(A)
            if k == pbar + 1: A("s_waitcnt lgkmcnt(0)"); prep_v(A)
            A(f"s_waitcnt vmcnt({min(capn(capP, k), 15 - ENTRY) if k == 15 else capn(capP, k)})"); A(item_text(k))
    else:
        for k in range(npre, 16):
            A(f"s_waitcnt vmcnt({capn(capP, k)})"); A(item_text(k))
        assert 16 - ENTRY <= 16 - npre
        A(f"s_waitcnt vmcnt({16 - ENTRY})"); A("s_barrier")
        ktab_reads(A); vtab_reads(A)
        A("s_waitcnt lgkmcnt(0)")
        prep_v(A)
    pro = A

    def itstamp(S):
        if stamps and itst:
            S("s_memrealtime s[96:97]"); S("s_mov_b32 s98, m0"); S(f"s_add_u32 m0, s{sI}, s{sJ}"); S(f"v_accvgpr_read_b32 v{vTmp+2}, a255"); S("s_waitcnt lgkmcnt(0)")
            S(f"v_writelane_b32 v{vTmp+2}, s96, m0"); S("s_mov_b32 m0, s98"); S(f"v_accvgpr_write_b32 a255, v{vTmp+2}")

    def emit(B, items, place, seq0, done0, caps, name, at=None):
        out = []; ei = 0; done = done0; info = []; marks = {}; atd = False
        def wait(n):
            nonlocal done
            if ei - n > done:
                out.append(f"    s_waitcnt vmcnt({n + (1 if atd and ei - n <= at else 0)})"); done = ei - n; return True
            return False
        for i, x in enumerate(B.I):
            while ei < len(items) and place[ei] == i:
                if ei == at and not ua:
                    out.extend([f"    s_cmp_lg_u32 s{sAt}, 0", "    s_cbranch_scc0 L_noat", "    s_mov_b64 exec, 1", f"    v_mov_b32 v{vAt}, s{sInc}",
                                f"    buffer_atomic_add v{vAt}, off, {srd(sWS)}, s{sCoff} sc0", "    s_mov_b64 exec, -1", "L_noat:"])
                if caps: wait(capn(caps, ei))
                if ei == at and ua:
                    out.extend([f"    v_mov_b32 v{vAt}, 1", f"    buffer_atomic_add v{vAt}, v{vAo}, {srd(sWS)}, s{sCoff} offen sc0"]); atd = True
                out.append("    " + items[ei]); ei += 1
            if "mark" in x:
                marks[(x["mark"], x["k"])] = (ei, done)
                if x["mark"] == "wait":
                    n = ei - 1 - seq0[x["k"]]; assert n >= 0
                    info.append((x["k"], n, wait(n)))
                elif x["mark"] == "smallwait": wait(ei - x["k"])
                elif x["mark"] == "postwait": out.append(f"    s_waitcnt vmcnt({AL})")
            else: out.append(x["t"])
        assert ei == len(items)
        print(name, "cost", sum(x["c"] for x in B.I), "waits", [(k, n) for k, n, w in info if w], "lead", min(n for k, n, w in info), file=sys.stderr)
        return out, marks
    class Pos:
        def __init__(self, B):
            self.I = B.I; self.cum = []; a = 0
            for x in B.I: self.cum.append(a); a += x["c"]
            self.tot = a
        def i(self, kind, k=None): return next(i for i, x in enumerate(self.I) if x.get("mark") == kind and x.get("k") == k)
        def c(self, kind, k=None): return self.cum[self.i(kind, k)]
        def at(self, t, lo):
            p = max(lo, next((i for i in range(len(self.I)) if self.cum[i] >= t), len(self.I) - 1))
            while not self.I[p]["ins"]: p += 1
            return p

    def deq(S, r, s, c): S(f"v_fma_mix_f32 v{r}, v{r}, v{s}, v{c} op_sel_hi:[1,0,0]")
    vpk = lambda r, sc: f"v_pk_fma_f32 {vr(r,2)}, {vr(r,2)}, {vr(sc,2)}, {vr(sc,2)} op_sel:[0,0,1] op_sel_hi:[1,0,1]"
    def kitems(B, n):
        for k in range(0, n, 2):
            r = vRing + 4 * k; t = vKP + 4 * ((k // 2) % 2)
            B.mark("wait", k + 1)
            if gen_:
                for j in range(8): B(f"v_cvt_f32_i32 v{r+j}, v{r+j}")
                for u in range(4): B(f"v_pk_fma_f32 {vr(r+2*u,2)}, {vr(r+2*u,2)}, {vr(vKS+2*(u%2),2)}, {vr(vKC+2*(u%2),2)}")
            else:
                for u in range(2):
                    for j in range(4): deq(B, r + 4 * u + j, vKS + j, vKC + j)
            for u in range(4): B(f"v_cvt_pk_bf16_f32 v{t+u}, v{r+2*u}, v{r+2*u+1}")
            B.mark("free", k); B.mark("free", k + 1)
            B(f"ds_write2_b64 v{vKW + k//4}, {vr(t,2)}, {vr(t+2,2)} offset0:{(k%4)*KROW//8} offset1:{(k%4+1)*KROW//8}")
        B.mark("kdone")
    def mfma_loop(B, reads, mfmas, fill, start=0, ids=None, after=None):
        n = len(mfmas)
        if ids is None:
            ids = {}
            for i in range(PF): ids[i] = B(reads[i])
            for t in fill.get(-1, []): B(t)
        for i in range(start, n):
            if i % 2 == 0 or i == start: B.waitds(ids[min(n - 1, i | 1)])
            B(mfmas[i])
            if i + PF < n: ids[i + PF] = B(reads[i + PF])
            for t in fill.get(i, []): B(t)
            if after and i in after: after[i](dict(ids))
    def qk_lists(nblk):
        order = [(2 * bp + u, s4) for bp in range(nblk // 2) for s4 in range(4) for u in range(2)]
        rd = [f"ds_read_b128 {vr(vSt+4*(i%NST),4)}, v{vKR} offset:{LDS_K + b*16*KROW + s4*64}" for i, (b, s4) in enumerate(order)]
        mf = [f"v_mfma_f32_16x16x32_bf16 {vr(vS+4*b,4)}, {vr(vSt+4*(i%NST),4)}, {vr(vQ+4*s4,4)}, {vr(vNM,4) if s4 == 0 else vr(vS+4*b,4)}" for i, (b, s4) in enumerate(order)]
        return rd, mf
    def max_ops(bp):
        b = vS + 8 * bp
        if bp == 0: return [f"v_max3_f32 v{vMx}, v{b}, v{b+1}, v{b+2}", f"v_max3_f32 v{vMx}, v{vMx}, v{b+3}, v{b+4}", f"v_max3_f32 v{vMx}, v{vMx}, v{b+5}, v{b+6}", f"v_max_f32 v{vMx}, v{vMx}, v{b+7}"]
        return [f"v_max3_f32 v{vMx}, v{vMx}, v{b+2*u}, v{b+2*u+1}" for u in range(4)]
    def qk_fill(nblk):
        f = {}
        for bp in range(nblk // 2 - 1):
            last = bp + 2 == nblk // 2
            slots = (4, 5, 6, 7) if last else (3, 5, 7, 7)
            for s_, t in zip(slots, max_ops(bp)): f.setdefault(8 * (bp + 1) + s_, []).append(t)
        return f
    def check_max(B, nblk, tag, pre):
        for t in pre: B(t)
        if len(pre) < 6: B(f"s_nop {5 - len(pre)}")
        for t in max_ops(nblk // 2 - 1): B(t)
        B(f"v_cmp_lt_f32 vcc, s{sThr}, v{vMx}")
        B.lock = True
        B(f"s_cbranch_vccnz L_rescale{tag}")
        B.label(f"L_rescaled{tag}")
        B.lock = False
    exp_op = lambda i: f"v_exp_f32 v{vS+i}, v{vS+i}"
    sum_cvt = lambda i: [f"v_pk_add_f32 {vr(vL,2)}, {vr(vL,2)}, {vr(vS+2*i,2)}", f"v_cvt_pk_bf16_f32 v{vS+i}, v{vS+2*i}, v{vS+2*i+1}"]
    def vphase(B, k0, s, refill_hi, ncol=4):
        rg = lambda n8: vRing + 4 * (k0 + n8)
        c0 = 8 - ncol
        for n8 in range(0, c0, 2):
            B.mark("wait", k0 + n8 + 1)
            if gen_:
                for j in range(8): B(f"v_cvt_f32_i32 v{rg(n8)+j}, v{rg(n8)+j}")
                for u in range(2):
                    for jp in range(2): B(vpk(rg(n8 + u) + 2 * jp, vSc + 2 * (n8 + u)))
            else:
                for u in range(2):
                    for j in range(4): deq(B, rg(n8 + u) + j, vSc + 2 * (n8 + u), vSc + 2 * (n8 + u) + 1)
            if refill_hi: B(f"ds_read_b128 {vr(vSc+4*(n8//2),4)}, v{vSR} offset:{64 + (n8//2)*16}")
            for j in range(4): B(f"v_cvt_pk_bf16_f32 v{vVP+4*j+n8//2}, v{rg(n8)+j}, v{rg(n8+1)+j}")
            B.mark("free", k0 + n8); B.mark("free", k0 + n8 + 1)
        B.mark("wait", k0 + 7)
        for j in range(4):
            if gen_:
                if j == 0:
                    for n8 in range(c0, 8):
                        for u in range(2): B(f"v_cvt_f32_i32 v{rg(n8)+u}, v{rg(n8)+u}")
                if j % 2 == 0:
                    for n8 in range(c0, 8): B(vpk(rg(n8) + j, vSc + 2 * n8))
                if j == 1:
                    for n8 in range(c0, 8):
                        for u in (2, 3): B(f"v_cvt_f32_i32 v{rg(n8)+u}, v{rg(n8)+u}")
            else:
                for n8 in range(c0, 8): deq(B, rg(n8) + j, vSc + 2 * n8, vSc + 2 * n8 + 1)
            for n8 in range(c0, 8, 2): B(f"v_cvt_pk_bf16_f32 v{vVP+4*j+n8//2}, v{rg(n8)+j}, v{rg(n8+1)+j}")
            if j == 3:
                for n8 in range(c0, 8): B.mark("free", k0 + n8)
            B(f"ds_write_b128 v{vVW}, {vr(vVP+4*j,4)} offset:{s*8*OS + j*JS}")
        if refill_hi:
            for u in range(c0 // 2, 4): B(f"ds_read_b128 {vr(vSc+4*u,4)}, v{vSR} offset:{64 + u*16}")
    def pv_lists(s, pbase=None):
        if pbase is None: pbase = vS
        lst = [(2 * s + kk, db) for kk in range(2) for db in range(8)]
        rd = [f"ds_read_b128 {vr(vSt+4*(i%NST),4)}, v{vVR} offset:{ks*4*OS + (db//2)*128 + (db%2)*16}" for i, (ks, db) in enumerate(lst)]
        mf = [f"v_mfma_f32_16x16x32_bf16 {vr(vO+4*db,4)}, {vr(vSt+4*(i%NST),4)}, {vr(pbase+4*ks,4)}, {vr(vO+4*db,4)}" for i, (ks, db) in enumerate(lst)]
        return rd, mf
    def ops_of(f):
        S = Stream(); f(S); return [x["t"].strip() for x in S.I if not x["t"].strip().startswith(";")]
    def spread(ops, first, per=1):
        f = {}
        for n, t in enumerate(ops): f.setdefault(first + n // per, []).append(t)
        return f
    def save_ops(i0):
        return [f"v_accvgpr_write_b32 a{17*i0+i}, v{vS+i}" for i in range(16)] + [f"v_accvgpr_write_b32 a{17*i0+16}, v{vNM}"]
    unit_items = [item_text(k) for k in range(16)]
    unit_seq = {k: k - 16 for k in range(16)}

    B = Stream()
    B.lock = True
    B.label("L_K")
    itstamp(B)
    B(f"s_add_u32 s{sI}, s{sI}, 1")
    B(f"s_cmp_lt_u32 s{sI}, {npf}"); B("s_cbranch_scc0 L_k2v")
    unit_offs(B, sI, sKsl); B(f"s_andn2_b32 s{sKsl}, s{sKsl}, 255")
    B(f"s_cmp_le_u32 s{sI}, s{sHk}"); B("s_cbranch_scc1 L_hookK")
    B.label("L_k1")
    B("s_waitcnt lgkmcnt(0)")
    B.lock = False
    B.mark("ready")
    prep_k(B)
    kitems(B, 16)
    B.c("park the previous tile's P while the K rows settle in LDS")
    B("s_branch L_save", 150)
    B.lock = True
    B.label("L_saved")
    B.lock = False
    B("s_waitcnt lgkmcnt(0)"); B("s_barrier", 20)
    B.c("S^T - m = K Q^T - m (log2 units)")
    rd, mf = qk_lists(8)
    mfma_loop(B, rd, mf, qk_fill(8))
    B("s_barrier", 10)
    check_max(B, 8, "K", ops_of(ktab_reads))
    for half in range(2):
        for i in range(16): B(exp_op(16 * half + i))
        for i in range(8):
            for t in sum_cvt(8 * half + i): B(t)
    B.mark("allissued")
    B.lock = True
    B(f"s_cmp_lt_u32 s{sI}, {npf}"); B("s_cbranch_scc1 L_K")
    sc_lo_reads(B)
    B.c("the last tile's P waits in the Q registers; l is final: sum it over the four lane groups")
    for i in range(16): B(f"v_mov_b32 v{vQ+i}, v{vS+i}")
    B(f"v_add_f32 v{vHd+1}, v{vL}, v{vL+1}")
    for sw in ("v_permlane32_swap_b32", "v_permlane16_swap_b32"):
        B(f"v_mov_b32 v{vTmp+1}, v{vHd+1}"); B("s_nop 1"); B(f"{sw} v{vTmp+1}, v{vHd+1}"); B("s_nop 1"); B(f"v_add_f32 v{vHd+1}, v{vHd+1}, v{vTmp+1}")
    if ua: B(f"v_mov_b32 v{vAo}, 0x40000000")
    B.lock = False
    P = Pos(B); c0 = P.c("free", 0); c1 = P.c("kdone"); c2 = P.c("allissued")
    tg = [c0 + (c1 - c0) * k / (nK1 - 1) for k in range(nK1)] + [c1 + (c2 - c1) * (k + 1) / (16 - nK1) - 8 for k in range(16 - nK1)]
    pl = []
    for k in range(16): pl.append(P.at(tg[k], max(pl[-1] if pl else 0, P.i("free", k) + 1))); assert pl[-1] <= P.i("allissued")
    kbody, _ = emit(B, unit_items, pl, unit_seq, ENTRY - 16, cap, "K")
    print("  K issue", [P.cum[p] for p in pl], file=sys.stderr)

    sig = sorted(m + 1 for m in ms)
    assert jr <= sig[0] and shards == 8
    events = sorted(set(sig) | set(x + 1 for x in sig) | {jr, 16})
    D_ = Stream()
    D_.label("L_V")
    itstamp(D_)
    D_(f"s_add_u32 s{sJ}, s{sJ}, 1")
    D_(f"s_bitcmp1_b32 {hex(sum(1 << e for e in events))}, s{sJ}")
    D_("s_waitcnt lgkmcnt(0)")
    D_("s_cbranch_scc1 L_ctl")
    D_.label("L_v0")
    unit_offs(D_, sJ, sVsl)
    D_(f"s_cmp_lg_u32 s{sMode}, 0"); D_("s_cbranch_scc1 L_vdisp")
    def make_V(tag, caps):
        B = Stream()
        B.label(f"L_V{tag}_")
        B.mark("ready")
        vphase(B, 0, 0, True)
        vtab_reads(B)
        B.c("fetch this tile's P back while the V rows settle in LDS")
        B("s_branch L_restore", 150)
        B.lock = True
        if tag == "":
            B.label("L_restored")
            B(f"s_cmp_lg_u32 s{sMode}, 0"); B("s_cbranch_scc1 L_rdisp")
        B.label(f"L_rest{tag}_")
        B.lock = False
        B("s_waitcnt lgkmcnt(0)"); B("s_barrier", 20)
        rd, mf = pv_lists(0)
        pvv = ops_of(prep_v)
        mfma_loop(B, rd, mf, {-1: pvv[:-1], 9: pvv[-1:]})
        vphase(B, 8, 1, False)
        B(f"s_cmp_lg_u32 s{sAt}, 0")
        B.lock = True
        B(f"s_cbranch_scc0 L_nopost{tag}")
        B.mark("postwait")
        B(f"ds_write_b32 v{vL4}, v{vAt} offset:{LDS_MB}")
        B.label(f"L_nopost{tag}")
        B.lock = False
        B("s_waitcnt lgkmcnt(0)"); B("s_barrier")
        rd, mf = pv_lists(1)
        mfma_loop(B, rd, mf, spread(ops_of(sc_lo_reads) + [f"ds_read_b32 v{vTmp}, v{vMb}"], 8))
        B.mark("allissued")
        B.lock = True
        B("s_branch L_V")
        B.lock = False
        P = Pos(B); c0 = P.c("free", 0); c1 = c0 + (P.c("allissued") - c0) * vtail
        pl = []
        for k in range(16): pl.append(P.at(c0 + (c1 - c0) * k / 15 - 8, max(pl[-1] if pl else 0, P.i("free", k) + 1))); assert pl[-1] <= P.i("allissued")
        nb = sum(1 for p in pl if p <= P.i("postwait")); assert nb >= AL
        body, _ = emit(B, unit_items, pl, unit_seq, ENTRYV - 16, caps, "V" + tag, at=nb - AL)
        print("  V issue", [P.cum[p] for p in pl], "atomic before", nb - AL, file=sys.stderr)
        return [l.replace("L_noat", "L_noat" + tag) for l in body]
    vbody = D_.text() + make_V("", capV) + make_V("f", capF) + make_V("s", capS)
    hbody = []

    E = Stream()
    def stampE(i):
        if stamps and not (hst == 1 and i in (2, 3, 4)) and not (hst == 2 and i in (2, 3)): E(f"s_memrealtime s[{84+2*i}:{85+2*i}]")
    def lsum():
        stampE(1)
        if stamps: E("s_mov_b32 s99, 0")
    ml = lambda x: vKP + 2 * (x - 1)
    dat = lambda x: vRing + 16 * (x - 1)
    bb = vKSr; u0 = vVP; vPo = vKS; vBa = vKS + 1; vPv = vKC; sLd = sCnt; sNew = sMode
    pl_ = [f"buffer_load_dwordx4 {vr(dat(x)+4*q,4)}, v{vLin}, {srd(sWS)}, s{sPo+x-1} offen offset:{q*1024} sc0 sc1" for x in range(1, 4) for q in range(4)]
    poll = f"buffer_load_dwordx2 {vr(vPv,2)}, v{vPo}, {srd(sWS)}, s{sG} offen sc0 sc1"
    def ready(dst):
        return [f"v_max_u32 v{vTmp+1}, v{vPv}, v{vPv+1}", f"v_cmp_eq_u32 vcc, -1, v{vTmp+1}",
                f"s_lshr_b32 s{sT}, vcc_lo, 16", f"s_cselect_b32 s{dst}, 0, 2",
                f"s_and_b32 s{sT}, vcc_hi, 0xffff", f"s_cselect_b32 s{sT}, 0, 4", f"s_or_b32 s{dst}, s{dst}, s{sT}",
                f"s_lshr_b32 s{sT}, vcc_hi, 16", f"s_cselect_b32 s{sT}, 0, 8", f"s_or_b32 s{dst}, s{dst}, s{sT}"]
    spreadh = [f"ds_bpermute_b32 v{ml(x)+u}, v{vBa}, v{vPv+u} offset:{64*x}" for x in range(1, 4) for u in range(2)]
    E.c("last unit; the last count also told the order in which the pair's workgroups passed it: the fourth merges")
    E.label("L_last")
    E(f"s_lshr_b32 s{sPend}, s{sG}, s{sXc}"); E(f"s_and_b32 s{sPend}, s{sPend}, 7")
    E(f"s_lshl2_add_u32 s{sG}, s{sPair}, s{sWave}"); E(f"s_lshl_b32 s{sG}, s{sG}, 15"); E(f"s_add_u32 s{sG}, s{sG}, {WS_SLOT}")
    E(f"v_lshrrev_b32 v{vPo}, 4, v{vLane}"); E(f"v_and_b32 v{vBa}, 15, v{vLane}"); E(f"v_xor_b32 v{vPo}, s{sSplit}, v{vPo}"); E(f"v_lshlrev_b32 v{vPo}, 13, v{vPo}")
    E(f"v_lshl_add_u32 v{vPo}, v{vBa}, 3, v{vPo}"); E(f"v_add_u32 v{vPo}, 4096, v{vPo}"); E(f"v_lshlrev_b32 v{vBa}, 2, v{vBa}")
    for x in range(4):
        E(f"s_xor_b32 s{sT}, s{sSplit}, {x}"); E(f"s_lshl_b32 s{sT}, s{sT}, 13"); E(f"s_add_u32 s{sPo+x-1}, s{sG}, s{sT}")
    E(f"s_cmp_eq_u32 s{sPend}, 3"); E(f"s_mov_b32 s{sPend}, 14")
    if stamps: E("s_cselect_b32 s100, 2, 1")
    T_ = Stream()
    if hst == 1: T_("s_memrealtime s[88:89]")
    vphase(T_, 0, 0, True)
    T_(f"v_cmp_neq_f32 vcc, v{vNM}, v{vMO}")
    T_.lock = True
    T_(f"s_cbranch_vccnz L_oldrefE")
    T_.label(f"L_newrefE")
    T_.lock = False
    if hst == 1: T_("s_memrealtime s[90:91]")
    T_("s_waitcnt lgkmcnt(0)"); T_("s_barrier", 20)
    rd, mf = pv_lists(0, vQ); mfma_loop(T_, rd, mf, {})
    vphase(T_, 8, 1, False, tcol)
    if hst == 1: T_("s_memrealtime s[92:93]")
    T_("s_waitcnt lgkmcnt(0)"); T_("s_barrier")
    rd, mf = pv_lists(1, vQ); mfma_loop(T_, rd, mf, {})
    Pt = Pos(T_)
    p = Pt.at(Pt.c("wait", 15) + pb, Pt.i("wait", 15) + 1)
    T_.I[p:p] = [dict(t=t, c=0, ins=True) for t in ("    s_cbranch_scc0 L_nolook", "    " + poll, "L_nolook:")]
    out, _ = emit(T_, [], [], unit_seq, ENTRYV - 16, None, "tail")
    assert not any(t.strip().startswith("s_") and not t.strip().startswith(("s_waitcnt", "s_barrier", "s_cbranch", "s_nop", "s_memrealtime")) for t in out)
    for t in out: E.I.append(dict(t=t, c=0, ins=True))
    lsum()
    E("s_cbranch_scc1 L_merge")
    E.c("one of the first three: hand the partial over (write-through); once it is out, the header (-m, l), never the empty mark")
    for q in range(4):
        for i in range(4 * q, 4 * q + 4): E(f"v_cvt_pk_bf16_f32 v{vSt+i}, v{vO+2*i}, v{vO+2*i+1}")
        E(f"buffer_store_dwordx4 {vr(vSt+4*q,4)}, v{vLin}, {srd(sWS)}, s{sPo-1} offen offset:{q*1024} sc0 sc1")
    E("s_mov_b64 exec, 0xffff")
    E(f"v_min_u32 v{vHd}, -2, v{vNM}"); E(f"v_min_u32 v{vHd+1}, -2, v{vHd+1}")
    if hst == 2: E("s_memrealtime s[88:89]")
    E("s_waitcnt vmcnt(0)")
    if hst == 2: E("s_memrealtime s[90:91]")
    E(f"buffer_store_dwordx2 {vr(vHd,2)}, v{vPo}, {srd(sWS)}, s{sG} offen sc0 sc1")
    if stamps:
        E("s_mov_b64 exec, -1")
        for i in (2, 3, 4): stampE(i)
        E("s_branch L_done")
    else:
        E("s_endpgm")
    E.c("keep looking at the headers; fetch each partial once its header is complete")
    E.label("L_look")
    E(poll)
    E(f"s_sub_u32 s{sSpin}, s{sSpin}, 1"); E("s_cbranch_scc1 L_end")
    if stamps: E("s_add_u32 s99, s99, 1")
    E.label("L_merge")
    E("s_waitcnt vmcnt(0)")
    for t in ready(sNew): E(t)
    E(f"s_and_b32 s{sNew}, s{sNew}, s{sPend}"); E("s_cbranch_scc0 L_look")
    if hst == 2: E("s_memrealtime s[88:89]")
    for x in range(1, 4):
        E(f"s_bitcmp1_b32 s{sNew}, {x}"); E(f"s_cbranch_scc0 L_get{x}")
        for t in pl_[4*(x-1):4*x]: E(t)
        E.label(f"L_get{x}")
    E(f"s_andn2_b32 s{sPend}, s{sPend}, s{sNew}"); E("s_cbranch_scc1 L_look")
    E.c("all headers are in: final weights 2^(m_x - M) / L, while the last partials are on their way")
    for t in spreadh: E(t)
    wt = lambda x: vKSr + 2 * x if x < 2 else vKS + 2 * (x - 2) + 4
    E(f"v_and_b32 v{vTmp}, 7, v{vLane}" if fullo else f"v_and_b32 v{vTmp}, 15, v{vLane}"); E(f"v_lshrrev_b32 v{vTmp+1}, 4, v{vLane}")
    E(f"v_lshlrev_b32 v{vTmp}, 8, v{vTmp}"); E(f"v_lshl_add_u32 v{vTmp}, v{vTmp+1}, 4, v{vTmp}")
    if fullo: E(f"v_and_b32 v{vTmp+1}, 8, v{vLane}"); E(f"v_lshl_add_u32 v{vTmp}, v{vTmp+1}, 3, v{vTmp}")
    E(f"s_xor_b32 s{sLd}, s{sNew}, 14"); E(f"s_lshl_b32 s{sT2}, s{sWave}, 12")
    E("s_waitcnt lgkmcnt(0)")
    E(f"v_min3_f32 v{vMx}, v{vNM}, v{ml(1)}, v{ml(2)}"); E(f"v_min_f32 v{vMx}, v{vMx}, v{ml(3)}")
    for x in range(4): E(f"v_sub_f32 v{wt(x)}, v{vMx}, v{ml(x) if x else vNM}")
    for x in range(4): E(f"v_exp_f32 v{wt(x)}, v{wt(x)}")
    E(f"v_mul_f32 v{vHd+1}, v{vHd+1}, v{wt(0)}")
    for x in range(1, 4): E(f"v_fmac_f32 v{vHd+1}, v{ml(x)+1}, v{wt(x)}")
    E(f"v_rcp_f32 v{vHd+1}, v{vHd+1}"); E("s_nop 0")
    for x in range(4): E(f"v_mul_f32 v{wt(x)}, v{wt(x)}, v{vHd+1}")
    for i in range(16): E(f"v_pk_mul_f32 {vr(vO+2*i,2)}, {vr(vO+2*i,2)}, {vr(wt(0),2)} op_sel_hi:[1,0]")
    E.c("two passes: the partials that landed earlier, then the last ones")
    E.label("L_pass")
    for x in range(1, 4):
        E(f"s_bitcmp1_b32 s{sLd}, {x}"); E(f"s_cbranch_scc0 L_fold{x}")
        if x > 1: E(f"s_cmp_lg_u32 s{sNew}, 0"); E(f"s_cbranch_scc1 L_in{x}")
        E(f"s_waitcnt vmcnt({4*(3-x)})"); E.label(f"L_in{x}")
        for q in range(2):
            r = dat(x) + 8 * q
            for i in range(8): E(f"v_lshlrev_b32 v{u0+2*i}, 16, v{r+i}")
            for i in range(8): E(f"v_and_b32 v{u0+2*i+1}, 0xffff0000, v{r+i}")
            for i in range(8):
                d = vO + 2 * (8 * q + i)
                E(f"v_pk_fma_f32 {vr(d,2)}, {vr(u0+2*i,2)}, {vr(wt(x),2)}, {vr(d,2)} op_sel_hi:[1,0,1]")
        E.label(f"L_fold{x}")
    E(f"s_cmp_lg_u32 s{sNew}, 0"); E("s_cbranch_scc1 L_second")
    E.label("L_merged")
    for i in (2, 3, 4): stampE(i)
    if fullo:
        E.c("swap halves between rows q and q+8 so that every store covers whole 128-byte lines")
        for u in (0, 2):
            A_, B_ = vS + 4 * u, vS + 4 * u + 4
            for i in range(4 * u, 4 * u + 8): E(f"v_cvt_pk_bf16_f32 v{vS+i}, v{vO+2*i}, v{vO+2*i+1}")
            for i in range(4): E(f"v_mov_b32 v{u0+i}, v{A_+i}")
            for i in range(4): E(f"v_mov_b32_dpp v{A_+i}, v{B_+i} row_ror:8 row_mask:0xf bank_mask:0xc")
            for i in range(4): E(f"v_mov_b32_dpp v{B_+i}, v{u0+i} row_ror:8 row_mask:0xf bank_mask:0x3")
            E(f"buffer_store_dwordx4 {vr(A_,4)}, v{vTmp}, {srd(sOUT)}, s{sT2} offen offset:{u*64} {outf}")
            E(f"buffer_store_dwordx4 {vr(B_,4)}, v{vTmp}, {srd(sOUT)}, s{sT2} offen offset:{2048 + u*64} {outf}")
    else:
        for u in range(4):
            for i in range(4 * u, 4 * u + 4): E(f"v_cvt_pk_bf16_f32 v{vS+i}, v{vO+2*i}, v{vO+2*i+1}")
            E(f"buffer_store_dwordx4 {vr(vS+4*u,4)}, v{vTmp}, {srd(sOUT)}, s{sT2} offen offset:{u*64} {outf}")
    if pollmax:
        E(f"s_sub_u32 s{sT}, {SPIN}, s{sSpin}"); E(f"s_cmp_gt_u32 s{sT}, 6"); E("s_cbranch_scc0 L_done")
        E("s_mov_b64 exec, 1"); E(f"v_mov_b32 v{vAt}, s{sT}"); E(f"s_mov_b32 s{sT2}, 0x23000000")
        E(f"buffer_atomic_umax v{vAt}, off, {srd(sWS)}, s{sT2}")
        E(f"v_mov_b32 v{vFl}, 1"); E(f"buffer_atomic_add v{vFl}, off, {srd(sWS)}, s{sT2} offset:4")
    E.label("L_done")
    if stamps:
        E("s_waitcnt vmcnt(0)")
        stampE(5)
        E(f"s_lshl2_add_u32 s{sT}, s{sPair}, s{sSplit}"); E(f"s_lshl2_add_u32 s{sT}, s{sT}, s{sWave}"); E(f"s_lshl_b32 s{sT2}, s{sT}, 4")
        E(f"s_lshl_b32 s4, s{sT}, 8"); E("s_add_u32 s4, s4, 0x22000000")
        E(f"s_add_u32 s{sT2}, s{sT2}, 0x20000000")
        E(f"s_lshl_b32 s{sT}, s{sT}, 6"); E(f"s_add_u32 s{sT}, s{sT}, 0x21000000")
        E("s_waitcnt lgkmcnt(0)")
        E(f"v_accvgpr_read_b32 v60, a255")
        for i in range(12): E(f"v_mov_b32 v{16+i}, s{84+i}")
        E(f"v_mov_b32 v28, s101"); E("s_getreg_b32 s5, hwreg(HW_REG_XCC_ID)"); E("v_mov_b32 v29, s5"); E(f"v_mov_b32 v30, s100"); E("v_mov_b32 v31, s99")
        E("v_mov_b32 v32, s84"); E("v_mov_b32 v33, s85"); E("v_mov_b32 v34, s94"); E("v_mov_b32 v35, s95")
        E(f"buffer_store_dword v60, v{vL4}, {srd(sWS)}, s4 offen sc0 sc1")
        E("s_mov_b64 exec, 1")
        E(f"buffer_store_dwordx4 v[32:35], off, {srd(sWS)}, s{sT2} sc0 sc1")
        for i in range(4): E(f"buffer_store_dwordx4 v[{16+4*i}:{19+4*i}], off, {srd(sWS)}, s{sT} offset:{16*i} sc0 sc1")
    E.label("L_end")
    E("s_endpgm")

    E.label("L_second")
    E(f"s_mov_b32 s{sLd}, s{sNew}"); E(f"s_mov_b32 s{sNew}, 0")
    E.c("all three in flight together: the counted waits of the pass let each fold start as its partial lands")
    E(f"s_cmp_eq_u32 s{sLd}, 14"); E("s_cbranch_scc1 L_pass")
    E("s_waitcnt vmcnt(0)")
    if hst == 2: E("s_memrealtime s[90:91]")
    E("s_branch L_pass")
    def scale_O(r):
        for i in range(16): E(f"v_pk_mul_f32 {vr(vO+2*i,2)}, {vr(vO+2*i,2)}, {vr(r,2)} op_sel_hi:[1,0]")

    E.label("L_k2v")
    unit_offs(E, None, None); set_base(E, sVb)
    E(f"s_cmp_lg_u32 s{sW0}, 0"); E("s_cbranch_scc0 L_k1")
    if diags:
        E("s_mov_b64 exec, 1"); E(f"v_mov_b32 v{vTmp}, s84"); E(f"v_not_b32 v{vTmp+1}, v{vTmp}")
        E(f"buffer_atomic_umax v{vTmp}, off, {srd(sDBG)}, 0 offset:128"); E(f"buffer_atomic_umax v{vTmp+1}, off, {srd(sDBG)}, 0 offset:132"); E("s_mov_b64 exec, -1")
    E(f"buffer_load_dword v{vFl}, off, {srd(sDBG)}, 0 offset:4 {flagf}")
    E("s_branch L_k1")

    E.label("L_vdisp")
    E(f"s_sub_u32 s{sCnt}, s{sCnt}, 1"); E(f"s_cselect_b32 s{sMode}, 0, s{sMode}"); E("s_cbranch_scc1 L_V_")
    E(f"s_cmp_eq_u32 s{sMode}, 1"); E("s_cbranch_scc1 L_Vf_"); E("s_branch L_Vs_")
    E.label("L_rdisp")
    E(f"s_cmp_eq_u32 s{sMode}, 1"); E("s_cbranch_scc1 L_restf_"); E("s_branch L_rests_")
    E.c("progress counts: read the last one, arm the next one")
    E.label("L_ctl")
    E(f"v_readfirstlane_b32 s{sG}, v{vTmp}"); E(f"s_mov_b32 s{sAt}, 0")
    if ua: E(f"v_mov_b32 v{vAo}, 0x40000000")
    E(f"s_cmp_eq_u32 s{sJ}, 16"); E("s_nop 1"); E("s_cbranch_scc1 L_last")
    E(f"s_bitcmp1_b32 {hex(sum(1 << (x + 1) for x in sig))}, s{sJ}"); E("s_cbranch_scc0 L_arm")
    if stamps: E("s_lshl_b32 s101, s101, 8"); E(f"s_and_b32 s{sT}, s{sG}, 255"); E(f"s_or_b32 s101, s101, s{sT}")
    E.c("rank among the 32 workgroups of this count -> how many units to run with more (late) or fewer (early) loads in flight")
    def enc(tb):
        assert len(tb) == 16
        v = sum(((8 | -d) if d < 0 else d) << (4 * i) for i, d in enumerate(tb)); return v & 0xffffffff, v >> 32
    for n in range(len(sig)):
        lo, hi = enc(tabs[n])
        if n == 0: E(f"s_mov_b32 s4, {hex(lo)}"); E(f"s_mov_b32 s5, {hex(hi)}")
        else: E(f"s_cmp_eq_u32 s{sJ}, {sig[n]+1}"); E(f"s_cselect_b32 s4, {hex(lo)}, s4"); E(f"s_cselect_b32 s5, {hex(hi)}, s5")
    E(f"s_bfe_u32 s{sT}, s{sG}, 0x40001"); E(f"s_lshl_b32 s{sT}, s{sT}, 2"); E(f"s_lshr_b64 s[4:5], s[4:5], s{sT}")
    E(f"s_and_b32 s{sCnt}, s4, 7"); E("s_bitcmp1_b32 s4, 3"); E(f"s_cselect_b32 s{sMode}, 2, 1")
    E.label("L_arm")
    E(f"s_bitcmp1_b32 {hex(sum(1 << x for x in sig))}, s{sJ}"); E(f"s_cselect_b32 s{sAt}, s{sW0}, 0")
    E(f"s_lshl3_add_u32 s{sT}, s{sJ}, s{sShard}"); E(f"s_and_b32 s{sT}, s{sT}, 63")
    E(f"s_lshl_b32 s{sT}, s{sT}, {cstride}"); E(f"s_add_u32 s{sCoff}, s{sT}, {WS_CTR}")
    assert len(set(x % 8 for x in sig)) == len(sig)
    E.c("before the first count: wave 0 checks that the counters are live")
    E(f"s_cmp_eq_u32 s{sJ}, {jr}"); E(f"s_cselect_b32 s{sT}, s{sW0}, 0"); E(f"s_cmp_lg_u32 s{sT}, 0"); E("s_cbranch_scc0 L_v0")
    def zero_counters():
        E(f"v_lshlrev_b32 v{vTmp}, {cstride}, v{vLane}"); E(f"v_mov_b32 v{vFl}, 0"); E(f"s_mov_b32 s{sT}, {WS_CTR}")
        E(f"buffer_atomic_swap v{vFl}, v{vTmp}, {srd(sWS)}, s{sT} offen sc0")
    E(f"v_readfirstlane_b32 s{sT}, v{vFl}"); E("s_mov_b64 exec, 1"); E("s_nop 2")
    E(f"s_cmp_lg_u32 s{sT}, 0"); E("s_cbranch_scc1 L_live")
    E.c("not seen live yet: claim the job if it is free, otherwise wait for the (running) workgroup that holds it")
    E(f"v_mov_b32 v{vFl}, 1")
    E(f"buffer_atomic_add v{vFl}, off, {srd(sDBG)}, 0 sc0")
    E("s_waitcnt vmcnt(0)"); E(f"v_readfirstlane_b32 s{sT}, v{vFl}"); E("s_nop 3")
    E(f"s_cmp_eq_u32 s{sT}, 0"); E("s_cbranch_scc0 L_flag")
    E("s_mov_b64 exec, -1"); zero_counters(); E("s_mov_b64 exec, 1")
    E("s_waitcnt vmcnt(0)"); E(f"v_mov_b32 v{vFl}, 1")
    E(f"buffer_atomic_or v{vFl}, off, {srd(sDBG)}, 0 offset:4")
    E("s_branch L_live")
    E.label("L_flag")
    E(f"v_mov_b32 v{vFl}, 0")
    E(f"buffer_atomic_or v{vFl}, off, {srd(sDBG)}, 0 offset:4 sc0")
    E("s_waitcnt vmcnt(0)"); E(f"v_readfirstlane_b32 s{sT}, v{vFl}"); E(f"s_sub_u32 s{sSpin}, s{sSpin}, 1"); E("s_cbranch_scc1 L_live"); E("s_nop 2")
    E(f"s_cmp_lg_u32 s{sT}, 0"); E("s_cbranch_scc0 L_flag")
    E.label("L_live")
    if not nolocal:
        E.c("note this workgroup's XCD in the pair's word")
        E(f"s_lshl_b32 s{sT}, 1, s{sXc}"); E(f"v_mov_b32 v{vFl}, s{sT}"); E(f"s_lshl_b32 s{sT}, s{sPair}, {cstride}"); E(f"s_add_u32 s{sT}, s{sT}, {WS_CTR}")
        E(f"buffer_atomic_add v{vFl}, off, {srd(sWS)}, s{sT}")
    E("s_mov_b64 exec, -1")
    E("s_branch L_v0")

    def tree(lo, hi, reg, pre, leaf):
        if lo == hi: leaf(lo); return
        mid = (lo + hi + 1) // 2
        E(f"s_cmp_ge_u32 s{reg}, {mid}"); E(f"s_cbranch_scc1 {pre}{mid}_{hi}")
        tree(lo, mid - 1, reg, pre, leaf)
        E.label(f"{pre}{mid}_{hi}")
        tree(mid, hi, reg, pre, leaf)
    E.label("L_restore")
    def rleaf(j1):
        b = 17 * (j1 - 1)
        E(f"v_accvgpr_read_b32 v{vMx}, a{b+16}")
        for i in range(16): E(f"v_accvgpr_read_b32 v{vS+i}, a{b+i}")
        E(f"v_cmp_neq_f32 vcc, v{vMx}, v{vMO}"); E("s_cbranch_vccz L_restored"); E("s_branch L_oldref")
    tree(1, npf - 1, sJ, "L_r", rleaf)
    E.c("this tile's P used a newer reference max than O holds: bring O up to it")
    E.label("L_oldref")
    E(f"v_sub_f32 v{vTmp}, v{vMx}, v{vMO}"); E(f"v_exp_f32 v{vTmp}, v{vTmp}"); E(f"v_mov_b32 v{vMO}, v{vMx}")
    scale_O(vTmp)
    E("s_branch L_restored")
    for tag in "E":
        E.label(f"L_oldref{tag}")
        E(f"v_sub_f32 v{vTmp}, v{vNM}, v{vMO}"); E(f"v_exp_f32 v{vTmp}, v{vTmp}"); E("s_nop 0")
        scale_O(vTmp)
        E(f"s_branch L_newref{tag}")
    E.label("L_save")
    def sleaf(i1):
        if i1 >= 2:
            for t in save_ops(i1 - 2): E(t)
        E("s_branch L_saved")
    tree(1, npf, sI, "L_s", sleaf)

    E.c("the running row max rose: move the reference up to it")
    for tag, n in (("K", 32),):
        E.label(f"L_rescale{tag}")
        for sw in ("v_permlane32_swap_b32", "v_permlane16_swap_b32"):
            E(f"v_mov_b32 v{vTmp}, v{vMx}"); E("s_nop 1"); E(f"{sw} v{vTmp}, v{vMx}"); E("s_nop 1"); E(f"v_max_f32 v{vMx}, v{vMx}, v{vTmp}")
        E(f"v_max_f32 v{vTmp}, 0, v{vMx}"); E(f"v_max_f32 v{vT2}, s{sFlo}, v{vMx}")
        E(f"v_exp_f32 v{vTmp}, -v{vTmp}")
        E(f"s_mov_b32 s{sThr}, {hex(f32bits(T))}"); E(f"s_mov_b32 s{sFlo}, 0")
        for r in [vNM, vNM + 2] + [vS + i for i in range(0, n, 2)]:
            E(f"v_pk_add_f32 {vr(r,2)}, {vr(r,2)}, {vr(vT2,2)} op_sel_hi:[1,0] neg_lo:[0,1] neg_hi:[0,1]")
        E(f"v_pk_mul_f32 {vr(vL,2)}, {vr(vL,2)}, {vr(vTmp,2)} op_sel_hi:[1,0]")
        if tag != "K": scale_O(vTmp)
        E(f"s_branch L_rescaled{tag}")

    E.c("workgroup 0, wave 0: zero the counters in d_ws, then raise the flag in d_debug")
    E.label("L_hookK")
    E(f"s_cmp_eq_u32 s{sI}, 1"); E("s_cbranch_scc1 L_hk1")
    E(f"s_cmp_eq_u32 s{sI}, 3"); E("s_cbranch_scc0 L_k1")
    E("s_mov_b64 exec, 1"); E(f"v_mov_b32 v{vFl}, 1")
    E(f"buffer_atomic_or v{vFl}, off, {srd(sDBG)}, 0 offset:4")
    E("s_mov_b64 exec, -1"); E("s_branch L_k1")
    E.label("L_hk1")
    E(f"v_readfirstlane_b32 s{sT}, v{vFl}"); E("s_nop 3")
    E(f"s_cmp_eq_u32 s{sT}, 0"); E(f"s_cselect_b32 s{sHk}, 3, 0"); E("s_cbranch_scc0 L_k1")
    zero_counters()
    E("s_branch L_k1")

    code = pro.text() + kbody + vbody + hbody + [x["t"] for x in E.I if "mark" not in x] + ["L_codeend:"]
    code = "\n".join(code).split("\n")
    if nocomp:
        kill = ("v_fma_mix", "v_cvt_pk", "v_mfma", "v_exp", "v_pk_", "v_max3", "ds_write2", "ds_write_b128", "ds_read_b128", "v_accvgpr_write_b32 a1", "v_accvgpr_read_b32 v9", "v_accvgpr_read_b32 v10", "s_cbranch_vccnz L_resc")
        a0 = code.index("L_K:"); a1 = code.index("L_round:"); c2 = []
        for i, l in enumerate(code):
            if a0 < i < a1:
                if l.strip().startswith(kill): continue
                if "lgkmcnt" in l:
                    l = "    s_waitcnt lgkmcnt(0)"
                    if c2[-1] == l: continue
            c2.append(l)
        code = c2
    if abl:
        a0 = code.index("L_last:"); a1 = code.index("L_merged:"); c2 = []
        for i, l in enumerate(code):
            if a0 < i < a1:
                if abl & 1 and "buffer_store" in l: continue
                if abl & 2 and "buffer_load" in l: continue
                if "s_cbranch_scc1 L_miss" in l: continue
                if abl & 2 and "vmcnt" in l: l = "    s_waitcnt vmcnt(0)"
            c2.append(l)
        code = c2
    if align: code = align_pass(code)
    if not nocomp and not abl: hazard_check(code)
    DOC = """;
;  Three workgroups of a pair hand their partial O (bf16) and (m, l) to the fourth through d_ws: data, wait, header."""
    L = [HDR.rstrip(), f"; @launch grid=(256,1,1) block=(256,1,1) lds={LDS_TOTAL}", DOC, '.amdgcn_target "amdgcn-amd-amdhsa--gfx950"',
         ".text", f".globl {NAME}_kernel", ".p2align 8", f".type {NAME}_kernel,@function", f"{NAME}_kernel:"]
    L += code
    L += ['.section .rodata,"a"', ".p2align 6", f".amdhsa_kernel {NAME}_kernel",
          "  .amdhsa_next_free_vgpr 512", "  .amdhsa_next_free_sgpr 102", "  .amdhsa_accum_offset 256",
          "  .amdhsa_group_segment_fixed_size 0", "  .amdhsa_kernarg_size 80", "  .amdhsa_user_sgpr_count 2",
          "  .amdhsa_user_sgpr_kernarg_segment_ptr 1", "  .amdhsa_system_sgpr_workgroup_id_x 1",
          "  .amdhsa_float_denorm_mode_32 3", "  .amdhsa_float_denorm_mode_16_64 3", ".end_amdhsa_kernel"]
    open(path, "w").write("\n".join(L) + "\n")

if __name__ == "__main__":
    import argparse
    ap = argparse.ArgumentParser()
    ap.add_argument("out")
    for n, t, d in (("AL", int, 7), ("np", int, 14), ("cs", int, 8), ("nK1", int, 7), ("vtail", float, 0.97), ("T", float, 0.0), ("TM", float, 32.0),
                    ("pfcode", int, 8), ("ct", float, 0.9), ("ct0", float, 0.3), ("hv", int, 4), ("hk", float, 0.9), ("hp", int, 4), ("hq", float, 0.9), ("npre", int, 6), ("hst", int, 0), ("nocomp", int, 0), ("abl", int, 0), ("capC", str, None), ("uth", int, 4), ("grp", int, 0), ("flagf", str, "sc0 sc1"), ("capF", str, "7"), ("capS", str, "45"), ("tabs", str, "edcbba0001122345,cbbaaa0000112223,aaa0000000011111"), ("ms", str, "4,10,13"), ("shards", int, 8), ("shb", int, 3), ("ldf", str, "sc0 sc1"), ("wb", int, 0), ("wto", int, 0), ("nolocal", int, 1), ("pb", int, 0), ("jr", int, 3), ("pa", int, 0), ("pw", int, 1), ("noearly", int, 0), ("diags", int, 0), ("diagm", int, 0), ("p2f", float, -1), ("jo", int, 15), ("chk", int, 0), ("apoll", int, 0), ("gray", int, 0), ("ua", int, 0), ("det", int, 0), ("prog", int, 1), ("pbar", int, 0), ("rtmap", int, 0), ("fullo", int, 0), ("tw", int, 0), ("alt", int, 0), ("gen", int, 1), ("tcol", int, 2), ("twf", str, "nt"), ("om", str, "kkkk"), ("cols", str, "1000,800,4000,2000,100,240,4b0,8044"),
                    ("nt", str, "nt"), ("q", str, ""), ("smf", str, "nt"), ("outf", str, "sc0 sc1"), ("pubf", str, "sc0 sc1"),
                    ("cap", str, "5556"), ("capV", str, "55555556"), ("capH", str, None), ("capP", str, "8")):
        ap.add_argument("--" + n, type=t, default=d)
    ap.add_argument("--mix", type=lambda x: int(x, 0), default=0)
    for n in ("stamps", "it", "dry", "noalign", "pollmax"): ap.add_argument("--" + n, action="store_true")
    a = ap.parse_args()
    gen(a.out, AL=a.AL, npf=a.np, stamps=a.stamps, nt=a.nt, smf=a.smf, qflag=a.q, cstride=a.cs, T=a.T, TM=a.TM, mix=a.mix, nK1=a.nK1, vtail=a.vtail,
        itst=a.it, outf=a.outf, pubf=a.pubf, cap=a.cap, capV=a.capV, capH=a.capH, capP=a.capP, pfcode=a.pfcode, ctspan=a.ct, ct0=a.ct0,
        hv=a.hv, hk=a.hk, hp=a.hp, hq=a.hq, npre=a.npre, dry=a.dry, hst=a.hst, align=not a.noalign, nocomp=a.nocomp, abl=a.abl, capC=a.capC, uth=a.uth, pollmax=a.pollmax, grp=a.grp, flagf=a.flagf, capF=a.capF, capS=a.capS, tabs=[[(int(c) if c.isdigit() else -(ord(c) - 96)) for c in t] for t in a.tabs.split(',')], ms=tuple(int(x) for x in a.ms.split(',') if x), shards=a.shards, shb=a.shb, ldf=a.ldf, wb=a.wb, wto=a.wto, nolocal=a.nolocal, pb=a.pb, jr=a.jr, pa=a.pa, pw=a.pw, noearly=a.noearly, diags=a.diags, diagm=a.diagm, p2f=a.p2f, jo=a.jo, chk=a.chk, apoll=a.apoll, gray=a.gray, ua=a.ua, det=a.det, prog=a.prog, pbar=a.pbar, rtmap=a.rtmap, fullo=a.fullo, tw=a.tw, alt=a.alt, gen_=a.gen, tcol=a.tcol, twf=a.twf, om=a.om.replace('k', '-'), cols=[int(x, 16) << 12 for x in a.cols.split(',')])
```

```python
import sys, struct, math, re
NAME = "standalone__kv_cache_quant_int4_int2_kv_with_per_channel_or_per_token_scales__sampling"
HDR = open("cdna_kernels/" + NAME + ".s.ref").read().split("; Override launch")[0]

def f32bits(x):
    return struct.unpack("<I", struct.pack("<f", x))[0]

def cost_of(s):
    op = s.split()[0]
    if op.startswith("v_mfma"): return 8
    if op in ("v_exp_f32", "v_rcp_f32"): return 8
    if op in ("ds_write_b128", "ds_write2_b64"): return 28
    if op.startswith("ds_write"): return 20
    if op == "s_barrier": return 70
    if op == "s_nop": return 4 * (int(s.split()[1]) + 1)
    return 4

class Stream:
    def __init__(self): self.I = []; self.lock = False; self.nds = 0
    def __call__(self, s, cost=None):
        self.I.append(dict(t="    " + s, c=(cost_of(s) if cost is None else cost), ins=not self.lock))
        if s.startswith("ds_"): self.nds += 1
        return self.nds
    def waitds(self, i):
        n = self.nds - i; assert 0 <= n <= 15
        self(f"s_waitcnt lgkmcnt({n})")
    def label(self, s): self.I.append(dict(t=s + ":", c=0, ins=not self.lock))
    def c(self, s): self.I.append(dict(t="    ; " + s, c=0, ins=not self.lock))
    def mark(self, kind, k=None): self.I.append(dict(mark=kind, k=k, c=0, ins=not self.lock))
    def text(self): return [x["t"] for x in self.I]

INLINE = re.compile(r"^-?(\d+|0x[0-9a-f]+)$")
def has_literal(ops):
    for o in ops:
        if INLINE.match(o):
            v = int(o, 0)
            if not -16 <= v <= 64 and (v & 0x7fffffff) not in (0x3f000000, 0x3f800000, 0x40000000, 0x40800000): return True
        elif re.match(r"^L_\w+-L_\w+$", o): return True
    return False
VOP12 = ("v_mov_b32", "v_exp_f32", "v_rcp_f32", "v_add_f32", "v_sub_f32", "v_mul_f32", "v_max_f32", "v_min_f32", "v_lshlrev_b32", "v_lshrrev_b32", "v_and_b32",
         "v_xor_b32", "v_add_u32", "v_mul_u32_u24", "v_min_u32", "v_max_u32", "v_fmac_f32", "v_cvt_f32_u32", "v_cvt_f32_i32", "v_not_b32")
def isize(line):
    s = line.split(";")[0].strip()
    if not s or s.endswith(":") or s.startswith("."): return 0, None
    op, _, rest = s.partition(" ")
    ops = [o.strip() for o in rest.split(",")] if rest else []
    if op.startswith(("s_load", "s_memrealtime", "ds_", "buffer_")): return 8, None
    if op.startswith("s_"):
        if op in ("s_waitcnt", "s_nop", "s_barrier", "s_endpgm", "s_branch", "s_getreg_b32") or op.startswith("s_cbranch"): return 4, None
        return (8 if has_literal(ops) else 4), None
    if op in ("v_cndmask_b32", "v_readfirstlane_b32", "v_permlane32_swap_b32", "v_permlane16_swap_b32"): return 4, None
    if op.startswith("v_cmp"):
        return (4 + 4 * has_literal(ops[1:]) if ops[0] == "vcc" else 8), None
    if op in VOP12:
        if any(o.startswith("-v") for o in ops): return 8, "valu"
        if has_literal(ops[1:]): return 8, "valu"
        return 4, "grow"
    if op.startswith("v_mfma"): return 8, None
    return 8, "valu"
def align_pass(L):
    out = []; par = 0; last = None
    for i, line in enumerate(L):
        sz, kind = isize(line)
        if sz == 8 and par and last is not None:
            j = last; op = out[j].split()[0]
            out[j] = out[j].replace(op, op + "_e64", 1); par = 0
        elif sz == 8 and par:
            n = 0
            for l2 in L[i:]:
                s2, k2 = isize(l2)
                if s2 == 4: break
                n += k2 == "valu"
            if n >= 7: out.append("    s_nop 0"); par = 0
        if sz == 8: last = None
        if sz == 4:
            par ^= 1
            if kind == "grow": last = len(out)
        out.append(line)
    return out

def regs_of(tok):
    m = re.match(r"^-?v\[(\d+):(\d+)\]$", tok)
    if m: return set(range(int(m.group(1)), int(m.group(2)) + 1))
    m = re.match(r"^-?v(\d+)$", tok)
    return {int(m.group(1))} if m else set()
def hazard_check(L):
    hist = []
    for line in L:
        s = line.split(";")[0].strip()
        if not s or s.endswith(":") or s.startswith("."): continue
        op, _, rest = s.partition(" ")
        toks = [o.strip().split(" ")[0] for o in rest.split(",")] if rest else []
        if op in ("s_branch", "s_endpgm"): hist = []; continue
        st = int(toks[0]) + 1 if op == "s_nop" else 1
        allr = [regs_of(t) for t in toks]
        isv = op.startswith("v_"); mf = op.startswith("v_mfma")
        store = op.startswith(("ds_write", "buffer_store", "buffer_atomic"))
        dst = set() if (store or not allr or op.startswith(("v_cmp", "v_readfirstlane"))) else allr[0]
        src = set().union(*(allr if store or op.startswith(("v_cmp", "v_permlane", "v_fmac")) else allr[1:])) if allr else set()
        if op.startswith("v_permlane"): dst = src
        d = 0
        for (pop, pdst, psrcC, pst) in reversed(hist):
            need = 0
            if pop.startswith("v_mfma"):
                if mf:
                    if pdst & (allr[1] | allr[2]): need = 8
                    elif pdst & allr[3] and pdst != allr[3]: need = 6
                elif pdst & (src | dst): need = 8
                elif isv and psrcC & dst: need = 3
            elif pop.startswith("v_"):
                if mf and pdst & src: need = 2
                if (op.startswith("v_permlane") or op.endswith("_dpp")) and pdst & src: need = 2
                if op == "v_readfirstlane_b32" and pdst & src: need = 1
                if pop.split("_e64")[0] in ("v_exp_f32", "v_rcp_f32") and isv and op.split("_e64")[0] not in ("v_exp_f32", "v_rcp_f32") and pdst & src: need = max(need, 1)
                if pop.startswith("v_dot") and op != pop and pdst & (src | dst): need = 3
            elif pop.startswith("buffer_store_dwordx4") and isv and psrcC & dst: need = 2
            assert d >= need, f"hazard: {pop} -> {s} distance {d} < {need}"
            d += pst
            if d >= 8: break
        hist.append((op, dst, (allr[3] if mf else (allr[0] if op.startswith("buffer_store") else set())), st))

def gen(path, AL=8, npf=14, stamps=False, nt="nt", smf="nt", qflag="", cstride=8, T=8.0, TM=32.0, mix=0x31031031, nK1=9, vtail=1.0,
        itst=False, outf="sc0 sc1", pubf="sc0 sc1", cap="56", capV="556", capH=None, capP="8", pfcode=4, ctspan=0.95, ct0=0.15,
        hv=4, hk=0.9, hp=4, hq=0.9, npre=6, dry=False, hst=0, align=True, nocomp=0, abl=0, capC=None, uth=4, pollmax=False, grp=0, flagf='', capF='7', capS='45', tabs=None, ms=(5, 11), shards=4, shb=3, cols=None, ldf='sc0 sc1', wb=False, wto=0, nolocal=False, pb=100, jr=3, pa=1, pw=1, noearly=0, diags=0, diagm=0, p2f=-1, jo=15, om='----', chk=-1, apoll=0, gray=0, ua=0, det=0, prog=1, pbar=0, rtmap=0, fullo=1, tw=0, twf='nt', alt=0, gen_=1, tcol=2, early=1):
    npf = 16
    capn = lambda c, k: int(c[k % len(c)], 16) - 1
    KROW = 288; JS = 576; OS = 2320
    TABW = 16 * 256
    LDS_MB = 0; LDS_SC = 256; LDS_TAB = 1536; LDS_K = LDS_TAB + 4 * TABW; LDS_V = LDS_K + 128 * KROW
    LDS_TOTAL = LDS_V + 16 * OS
    assert LDS_K % 256 == 0 and LDS_K + 128 * KROW < 65536 and LDS_TAB % 512 == 0 and TABW % 512 == 0
    WS_SLOT = 1 << 20; WS_CTR = 16 << 20; FLAG = 0x100
    SPIN = 1 << 20
    PF = 8
    vLane, vOff, vMb, vKR, vSW, vSR, vVW, vVR, vTK, vTV, vL4, vLin = range(12)
    vHd = 12
    vCk, vFl = 14, 15
    vL = 16
    vT2 = 18
    vKS, vKC = 20, 24; vKSr, vKZr, vVSr, vVZr = 28, 30, 32, 33
    vTmp = 34
    vMx, vAt, vMO = 37, 38, 39
    vKP = 40; vVP = 48; vO = 64; vS = 96; vRing = 128; vQ = 192; vSt = 208; NST = 10
    vNM = 248; vKW = 252
    vSc = vS + 16
    vAo = vL
    sX, sY, sSM, sQ, sDBG, sWS, sOUT = 8, 12, 16, 20, 24, 28, 32
    sKb, sVb = 36, 38
    sPair, sSplit, sI, sJ, sG, sT, sT2, sFlo, sThr, sDoff, sCoff, sIni, sKsl, sVsl, sWb, sPend, sSpin, sW0, sHk, sMode = range(40, 60)
    sAt = 49; sShard = 82; sCnt = 83; sXc = 71; sInc = 70
    sO = 60
    sK1, sK2 = 64, 66
    sCw = 72
    sPo = 76
    sWave = 3
    srd = lambda r: f"s[{r}:{r+3}]"
    vr = lambda r, n: f"v[{r}:{r+n-1}]"
    def item_text(k):
        return f"buffer_load_dwordx4 {vr(vRing+4*k,4)}, v{vOff}, {srd(sX)}, s{sO + k//4} offen offset:{(k%4)*1024} {nt}"
    sXm = 101 if not stamps else 59 + 40
    sXm = 2
    def unit_offs(A, idx, slot):
        if idx is None: A(f"s_mov_b32 s{sO}, s{sXm}")
        else:
            if gray == 1: A(f"s_lshr_b32 s{sO}, s{idx}, 1"); A(f"s_xor_b32 s{sO}, s{sO}, s{idx}"); A(f"s_lshl_b32 s{sO}, s{sO}, 16")
            elif gray == 2: A(f"s_brev_b32 s{sO}, s{idx}"); A(f"s_lshr_b32 s{sO}, s{sO}, 12")
            else: A(f"s_lshl_b32 s{sO}, s{idx}, 16")
            A(f"s_xor_b32 s{sO}, s{sO}, s{sXm}")
        A(f"s_add_u32 s{sO+1}, s{sO}, 4096"); A(f"s_xor_b32 s{sO+2}, s{sO}, 0x4000"); A(f"s_xor_b32 s{sO+3}, s{sO+1}, 0x4000")
        if slot is not None: A(f"s_bfe_u32 s{slot}, s{sO}, 0xc0008")
    def set_base(A, b, b2=None):
        if b2 is None: b2 = b
        A(f"s_mov_b64 s[{sX}:{sX+1}], s[{b}:{b+1}]")
    A = Stream()
    A("s_cmp_ge_u32 s2, 256"); A("s_cbranch_scc1 L_end")
    if stamps: A("s_memrealtime s[84:85]"); A("s_mov_b32 s101, 0")
    if diags: A("s_memrealtime s[84:85]")
    A("s_load_dwordx16 s[68:83], s[0:1], 0")
    A("s_load_dwordx4 s[4:7], s[0:1], 64")
    if alt: A("s_load_dwordx8 s[84:91], s[0:1], 80")
    if pfcode:
        A.c("pull this kernel's code into L2 with strided loads (speed only; the values are unused)")
        A("s_getpc_b64 s[92:93]"); A("s_and_b32 s92, s92, 0xffffff00"); A("s_mov_b32 s94, L_codeend-L_pf"); A("s_mov_b32 s95, 0x20000")
        A.label("L_pf")
        A(f"v_lshlrev_b32 v{vTmp}, 7, v0")
        A(f"s_lshr_b32 s{sT2}, s2, 3"); A(f"s_and_b32 s{sT2}, s{sT2}, {pfcode-1}"); A(f"s_cselect_b32 s94, 0, s94")
        A(f"buffer_load_dword v{vTmp}, v{vTmp}, s[92:95], 0 offen")
    A("v_lshrrev_b32 v1, 6, v0")
    A(f"v_and_b32 v{vLane}, 63, v0")
    A(f"v_readfirstlane_b32 s{sWave}, v1")
    A.c("workgroup id -> (pair, split) and the order in which it walks its token groups: a bijection (placement affects speed only)")
    for i, c in enumerate(cols):
        A(f"s_bitcmp1_b32 s2, {i}"); A(f"s_cselect_b32 s{sT if i else sT2}, {hex(c)}, 0")
        if i: A(f"s_xor_b32 s{sT2}, s{sT2}, s{sT}")
    if mix:
        A(f"s_lshr_b32 s{sT}, s2, 3"); A(f"s_and_b32 s{sT}, s{sT}, 7"); A(f"s_lshl_b32 s{sT}, s{sT}, 2")
        A(f"s_lshr_b32 s{sT}, {hex(mix)}, s{sT}"); A(f"s_and_b32 s{sT}, s{sT}, 3"); A(f"s_and_b32 s{sT}, s{sT}, s2")
        A(f"s_bcnt1_i32_b32 s{sT}, s{sT}"); A(f"s_and_b32 s{sT}, s{sT}, 1"); A(f"s_lshl_b32 s{sT}, s{sT}, 22"); A(f"s_xor_b32 s{sT2}, s{sT2}, s{sT}")
    def idmap(w):
        v = 0
        for i, c in enumerate(cols):
            if w >> i & 1: v ^= c
        if mix: v ^= (bin((mix >> (4 * ((w >> 3) & 7))) & 3 & w).count("1") & 1) << 22
        return v
    assert len(set(idmap(w) >> 20 for w in range(256))) == 256 and all(idmap(w) & ~0xfff4000 == 0 for w in range(256)) and idmap(0) == 0
    if rtmap:
        A("s_waitcnt lgkmcnt(0)"); A(f"s_lshl_b32 s{sT}, s2, 2"); A(f"s_add_u32 s90, s6, 0x24000000"); A("s_addc_u32 s91, s7, 0")
        A(f"s_load_dword s{sT2}, s[90:91], s{sT}"); A("s_waitcnt lgkmcnt(0)")
    A(f"s_mov_b32 s{sMode}, s2")
    A(f"s_lshr_b32 s{sPair}, s{sT2}, 22"); A(f"s_bfe_u32 s{sSplit}, s{sT2}, 0x20014"); A(f"s_and_b32 s{sXm}, s{sT2}, 0x3fffff")
    c_, h_, m_, g_ = vKS, vKS + 1, vKS + 2, vKS + 3
    t0, t1, vQo = vKC, vKC + 1, vKC + 2
    A.c("only what the first K rows need comes before them")
    A(f"v_lshlrev_b32 v{vLin}, 4, v{vLane}")
    A(f"s_and_b32 s{sT}, s{sWave}, 1"); A(f"s_lshr_b32 s{sT2}, s{sWave}, 1"); A(f"s_lshl2_add_u32 s{sWb}, s{sT2}, s{sT}"); A(f"s_lshl_b32 s{sWb}, s{sWb}, 13")
    A(f"v_add_u32 v{vOff}, s{sWb}, v{vLin}")
    A(f"s_mov_b32 s{sX+2}, {0 if dry else 0x400000}"); A(f"s_mov_b32 s{sX+3}, 0x20000")
    unit_offs(A, None, None)
    A(f"s_lshl_b32 s{sT}, s{sPair}, 22")
    A("s_waitcnt lgkmcnt(0)")
    def mk(r, p): A(f"s_add_u32 s{r}, s{p}, s{sPend}"); A(f"s_addc_u32 s{r+1}, s{p+1}, 0")
    if alt: A(f"s_cmp_ge_u32 s{sPair}, s88"); A("s_cselect_b64 s[70:71], s[84:85], s[70:71]"); A("s_cselect_b64 s[72:73], s[86:87], s[72:73]")
    A(f"s_add_u32 s{sX}, s70, s{sT}"); A(f"s_addc_u32 s{sX+1}, s71, 0")
    for k in range(npre): A(item_text(k))
    A(f"s_add_u32 s{sVb}, s72, s{sT}"); A(f"s_addc_u32 s{sVb+1}, s73, 0")
    A(f"s_lshl_b32 s{sG}, s{sWave}, 12"); A(f"s_add_u32 m0, s{sG}, {LDS_TAB}"); assert TABW == 4096
    for r in (sSM, sQ, sOUT): A(f"s_mov_b32 s{r+2}, 0x4000"); A(f"s_mov_b32 s{r+3}, 0x20000")
    A(f"s_lshl_b32 s{sPend}, s{sPair}, 14")
    A.c("wave w streams scale/zero array w (ks, kz, vs, vz) into the LDS table")
    A(f"s_cmp_eq_u32 s{sWave}, 1"); A(f"s_cselect_b64 s[{sSM}:{sSM+1}], s[76:77], s[74:75]")
    A(f"s_cmp_eq_u32 s{sWave}, 2"); A(f"s_cselect_b64 s[{sSM}:{sSM+1}], s[78:79], s[{sSM}:{sSM+1}]")
    A(f"s_cmp_eq_u32 s{sWave}, 3"); A(f"s_cselect_b64 s[{sSM}:{sSM+1}], s[80:81], s[{sSM}:{sSM+1}]")
    mk(sSM, sSM)
    A(f"s_lshl_b32 s{sT}, s{sSplit}, 12")
    nT = (npf + 3) // 4
    for u in range(nT):
        rows = min(4, npf - 4 * u)
        if rows < 4: A(f"s_bfm_b64 exec, {16*rows}, 0")
        A(f"buffer_load_dwordx4 v{vLin}, {srd(sSM)}, s{sT} offen offset:{u*1024} {smf} lds")
        if rows < 4: A("s_mov_b64 exec, -1")
    mk(sQ, 68)
    A(f"v_and_b32 v{m_}, 15, v{vLane}"); A(f"v_lshrrev_b32 v{g_}, 4, v{vLane}")
    A(f"v_lshlrev_b32 v{vQo}, 8, v{m_}"); A(f"v_lshl_add_u32 v{vQo}, v{g_}, 4, v{vQo}")
    A(f"s_lshl_b32 s{sT}, s{sWave}, 12")
    for s4 in range(4): A(f"buffer_load_dwordx4 {vr(vQ+4*s4,4)}, v{vQo}, {srd(sQ)}, s{sT} offen offset:{s4*64} {qflag}")
    A.c("mark the header of this wave's hand-off slot empty")
    for i in range(2): A(f"v_mov_b32 v{vVP+i}, -1")
    A(f"v_lshlrev_b32 v{vVP+2}, 3, v{vLane}")
    A(f"s_lshl2_add_u32 s{sT2}, s{sPair}, s{sWave}"); A(f"s_lshl2_add_u32 s{sT2}, s{sT2}, s{sSplit}")
    A(f"s_lshl_b32 s{sT2}, s{sT2}, 13"); A(f"s_add_u32 s{sT2}, s{sT2}, {WS_SLOT + 4096}")
    A(f"s_mov_b32 s{sWS+2}, 0x40000000"); A(f"s_mov_b32 s{sWS+3}, 0x20000")
    A(f"s_mov_b32 s{sDBG+2}, 256"); A(f"s_mov_b32 s{sDBG+3}, 0x20000"); A(f"v_mov_b32 v{vFl}, 1")
    A(f"s_mov_b64 s[{sWS}:{sWS+1}], s[6:7]")
    A("s_mov_b64 exec, 0xffff")
    A(f"buffer_store_dwordx2 {vr(vVP,2)}, v{vVP+2}, {srd(sWS)}, s{sT2} offen sc0 sc1")
    A("s_mov_b64 exec, -1")
    A.c("workgroup 0 claims the job of zeroing the counters in d_ws (any workgroup takes it over later if nobody has)")
    A(f"s_mov_b64 s[{sDBG}:{sDBG+1}], s[4:5]")
    A(f"s_cmp_eq_u32 s{sWave}, 0"); A(f"s_cselect_b32 s{sW0}, 1, 0")
    A(f"s_or_b32 s{sT}, s{sMode}, {'1' if noearly else 's%d' % sWave}"); A(f"s_cselect_b32 s{sHk}, 0, 3"); A("s_cbranch_scc1 L_noel")
    A("s_mov_b64 exec, 1")
    A(f"buffer_atomic_add v{vFl}, off, {srd(sDBG)}, 0 sc0")
    A("s_mov_b64 exec, -1")
    A.label("L_noel")
    mk(sOUT, 82)
    A(f"v_and_b32 v{c_}, 31, v{vLane}"); A(f"v_lshrrev_b32 v{h_}, 5, v{vLane}"); A(f"v_lshlrev_b32 v{vL4}, 2, v{vLane}")
    A(f"s_bfe_u32 s{sVsl}, s{sO}, 0xc0008"); A(f"s_andn2_b32 s{sKsl}, s{sVsl}, 255")
    A(f"v_lshlrev_b32 v{vTK}, 3, v{c_}")
    A(f"v_lshrrev_b32 v{vTV}, 4, v{c_}"); A(f"v_lshlrev_b32 v{vTV}, 5, v{vTV}")
    A(f"v_and_b32 v{t0}, 15, v{c_}"); A(f"v_add_lshl_u32 v{vTV}, v{vTV}, v{t0}, 1")
    A(f"s_lshr_b32 s{sT}, s{sWb}, 8"); A(f"v_add_u32 v{vTV}, s{sT}, v{vTV}")
    A(f"s_lshr_b32 s{sT}, s{sWave}, 1"); A(f"s_and_b32 s{sT2}, s{sWave}, 1")
    A(f"s_mul_i32 s{sT}, s{sT}, {32*KROW}"); A(f"s_mul_i32 s{sT2}, s{sT2}, {8*KROW}"); A(f"s_add_u32 s{sT}, s{sT}, s{sT2}"); A(f"s_add_u32 s{sT}, s{sT}, {LDS_K}")
    A(f"v_mul_u32_u24 v{vKW}, {4*KROW}, v{h_}"); A(f"v_lshl_add_u32 v{vKW}, v{c_}, 3, v{vKW}"); A(f"v_add_u32 v{vKW}, s{sT}, v{vKW}")
    for u, rows in ((1, 16), (2, 64), (3, 80)): A(f"v_add_u32 v{vKW+u}, {rows*KROW}, v{vKW}")
    A(f"v_mul_u32_u24 v{vKR}, {KROW}, v{m_}"); A(f"v_lshl_add_u32 v{vKR}, v{g_}, 4, v{vKR}")
    A(f"s_mul_i32 s{sT}, s{sWave}, {2*OS}"); A(f"s_add_u32 s{sT}, s{sT}, {LDS_V}")
    A(f"v_mul_u32_u24 v{vVW}, {OS}, v{h_}"); A(f"v_lshl_add_u32 v{vVW}, v{c_}, 4, v{vVW}"); A(f"v_add_u32 v{vVW}, s{sT}, v{vVW}")
    A(f"v_mul_u32_u24 v{vVR}, {OS}, v{g_}"); A(f"v_and_b32 v{t0}, 3, v{m_}"); A(f"v_mul_u32_u24 v{t0}, {JS}, v{t0}")
    A(f"v_lshrrev_b32 v{t1}, 2, v{m_}"); A(f"v_lshlrev_b32 v{t1}, 5, v{t1}")
    A(f"v_add3_u32 v{vVR}, v{vVR}, v{t0}, v{t1}"); A(f"v_add_u32 v{vVR}, {LDS_V}, v{vVR}")
    A(f"s_lshl_b32 s{sT}, s{sWave}, 8"); A(f"s_add_u32 s{sT2}, s{sT}, {LDS_SC}")
    A(f"v_and_b32 v{vSW}, 1, v{c_}"); A(f"v_lshlrev_b32 v{vSW}, 7, v{vSW}")
    A(f"v_lshrrev_b32 v{t0}, 1, v{c_}"); A(f"v_lshl_add_u32 v{vSW}, v{t0}, 3, v{vSW}"); A(f"v_add_u32 v{vSW}, s{sT2}, v{vSW}")
    A(f"v_lshlrev_b32 v{vSR}, 7, v{h_}"); A(f"v_add_u32 v{vSR}, s{sT2}, v{vSR}")
    A(f"v_mov_b32 v{vMb}, {LDS_MB}")
    A(f"s_mov_b32 s{sCoff}, {WS_CTR}")
    cc = math.log2(math.e) / math.sqrt(128.0)
    for i in range(2):
        A(f"s_mov_b32 s{sK1+i}, {hex(f32bits(cc if gen_ else cc * 2.0**24))}")
        if not gen_: A(f"s_mov_b32 s{sK2+i}, {hex(f32bits(-2.0**-24))}")
    A.c("the first tile always takes the rescale path, which sets the reference to that tile's true row max")
    A(f"s_mov_b32 s{sThr}, 0xff800000"); A(f"s_mov_b32 s{sFlo}, 0xff800000")
    for r in (sAt, sMode, sCnt, sI, sJ): A(f"s_mov_b32 s{r}, 0")
    A.c("a count is shared by 8 pairs: low byte = arrivals so far, above it a 3-bit arrival field per pair")
    fb = sorted((c >> 22).bit_length() - 1 for c in cols[:3]); assert all(bin(c >> 22).count("1") == 1 for c in cols[:3])
    sb = [x for x in range(6) if x not in fb]
    for dst, bits in ((sXc, fb), (sShard, sb)):
        for n, x in enumerate(reversed(bits)):
            A(f"s_bfe_u32 s{sT if n else dst}, s{sPair}, {hex(0x10000 | x)}")
            if n: A(f"s_lshl1_add_u32 s{dst}, s{dst}, s{sT}")
    A(f"s_mul_i32 s{sXc}, s{sXc}, 3"); A(f"s_add_u32 s{sXc}, s{sXc}, 8"); A(f"s_lshl_b32 s{sInc}, 1, s{sXc}"); A(f"s_add_u32 s{sInc}, s{sInc}, 1")
    if not nolocal: A(f"s_getreg_b32 s{sXc}, hwreg(HW_REG_XCC_ID, 0, 3)"); A(f"s_mul_i32 s{sXc}, s{sXc}, 3"); A(f"s_add_u32 s{sXc}, s{sXc}, 8")
    A(f"s_mov_b32 s{sSpin}, {SPIN}")
    for i in range(32): A(f"v_mov_b32 v{vO+i}, 0")
    for i in range(4): A(f"v_mov_b32 v{vNM+i}, 0")
    A(f"v_mov_b32 v{vMO}, 0x7149f2ca"); A(f"v_mov_b32 v{vL}, 0"); A(f"v_mov_b32 v{vL+1}, 0"); A(f"v_mov_b32 v{vAt}, 0")
    def ktab_reads(S):
        S(f"v_add_u32 v{vTmp+2}, s{sKsl}, v{vTK}")
        S(f"ds_read_b64 {vr(vKSr,2)}, v{vTmp+2} offset:{LDS_TAB}"); S(f"ds_read_b64 {vr(vKZr,2)}, v{vTmp+2} offset:{LDS_TAB+TABW}")
    def vtab_reads(S):
        S(f"v_xor_b32 v{vTmp+2}, s{sVsl}, v{vTV}")
        S(f"ds_read_u16 v{vVSr}, v{vTmp+2} offset:{LDS_TAB+2*TABW}"); S(f"ds_read_u16 v{vVZr}, v{vTmp+2} offset:{LDS_TAB+3*TABW}")
    def prep_v(S):
        S.c("V: S = vs, C = -vz*vs per token, broadcast through LDS" if gen_ else "V: S = vs*2^24, C = -vz*vs per token, broadcast through LDS")
        S(f"v_lshlrev_b32 v{vT2}, 16, v{vVSr}"); S(f"v_lshlrev_b32 v{vT2+1}, 16, v{vVZr}")
        S(f"v_mul_f32 v{vT2+1}, -v{vT2+1}, v{vT2}")
        if not gen_: S(f"v_mul_f32 v{vT2}, 0x4b800000, v{vT2}")
        S(f"ds_write_b64 v{vSW}, {vr(vT2,2)}")
    def prep_k(S):
        S.c("K: S = ks*c, C = -kz*ks*c per channel, c = log2(e)/sqrt(128)" if gen_ else "K: S = ks*c*2^24, C = -kz*ks*c per channel, c = log2(e)/sqrt(128) (the int code is read as an f16 subnormal, code*2^-24)")
        for p in range(2): S(f"v_lshlrev_b32 v{vKS+2*p}, 16, v{vKSr+p}"); S(f"v_lshlrev_b32 v{vKC+2*p}, 16, v{vKZr+p}")
        for p in range(2): S(f"v_and_b32 v{vKS+2*p+1}, 0xffff0000, v{vKSr+p}"); S(f"v_and_b32 v{vKC+2*p+1}, 0xffff0000, v{vKZr+p}")
        for p in range(2): S(f"v_pk_mul_f32 {vr(vKS+2*p,2)}, {vr(vKS+2*p,2)}, s[{sK1}:{sK1+1}]")
        if gen_:
            for p in range(2): S(f"v_pk_mul_f32 {vr(vKC+2*p,2)}, {vr(vKC+2*p,2)}, {vr(vKS+2*p,2)} neg_lo:[1,0] neg_hi:[1,0]")
        else:
            for p in range(2): S(f"v_pk_mul_f32 {vr(vKC+2*p,2)}, {vr(vKC+2*p,2)}, s[{sK2}:{sK2+1}]")
            for p in range(2): S(f"v_pk_mul_f32 {vr(vKC+2*p,2)}, {vr(vKC+2*p,2)}, {vr(vKS+2*p,2)}")
    def sc_lo_reads(S):
        for i in range(4): S(f"ds_read_b128 {vr(vSc+4*i,4)}, v{vSR} offset:{i*16}")
    ENTRYV = 15 - max(capn(c, 15) for c in (cap, capV, capF, capS))
    ENTRY = 15 - capn(cap, 15)
    if pbar:
        assert npre < pbar < 15
        for k in range(npre, 16):
            if k == pbar:
                A(f"s_waitcnt vmcnt({pbar - npre})"); A("s_barrier")
                ktab_reads(A); vtab_reads(A)
            if k == pbar + 1: A("s_waitcnt lgkmcnt(0)"); prep_v(A)
            A(f"s_waitcnt vmcnt({min(capn(capP, k), 15 - ENTRY) if k == 15 else capn(capP, k)})"); A(item_text(k))
    else:
        for k in range(npre, 16):
            A(f"s_waitcnt vmcnt({capn(capP, k)})"); A(item_text(k))
        assert 16 - ENTRY <= 16 - npre
        A(f"s_waitcnt vmcnt({16 - ENTRY})"); A("s_barrier")
        ktab_reads(A); vtab_reads(A)
        A("s_waitcnt lgkmcnt(0)")
        prep_v(A)
    pro = A

    def itstamp(S):
        if stamps and itst:
            S("s_memrealtime s[96:97]"); S("s_mov_b32 s98, m0"); S(f"s_add_u32 m0, s{sI}, s{sJ}"); S(f"v_accvgpr_read_b32 v{vTmp+2}, a255"); S("s_waitcnt lgkmcnt(0)")
            S(f"v_writelane_b32 v{vTmp+2}, s96, m0"); S("s_mov_b32 m0, s98"); S(f"v_accvgpr_write_b32 a255, v{vTmp+2}")

    def emit(B, items, place, seq0, done0, caps, name, at=None):
        out = []; ei = 0; done = done0; info = []; marks = {}; atd = False
        def wait(n):
            nonlocal done
            if ei - n > done:
                out.append(f"    s_waitcnt vmcnt({n + (1 if atd and ei - n <= at else 0)})"); done = ei - n; return True
            return False
        for i, x in enumerate(B.I):
            while ei < len(items) and place[ei] == i:
                if ei == at and not ua:
                    out.extend([f"    s_cmp_lg_u32 s{sAt}, 0", "    s_cbranch_scc0 L_noat", "    s_mov_b64 exec, 1", f"    v_mov_b32 v{vAt}, s{sInc}",
                                f"    buffer_atomic_add v{vAt}, off, {srd(sWS)}, s{sCoff} sc0", "    s_mov_b64 exec, -1", "L_noat:"])
                if caps: wait(capn(caps, ei))
                if ei == at and ua:
                    out.extend([f"    v_mov_b32 v{vAt}, 1", f"    buffer_atomic_add v{vAt}, v{vAo}, {srd(sWS)}, s{sCoff} offen sc0"]); atd = True
                out.append("    " + items[ei]); ei += 1
            if "mark" in x:
                marks[(x["mark"], x["k"])] = (ei, done)
                if x["mark"] == "wait":
                    n = ei - 1 - seq0[x["k"]]; assert n >= 0
                    info.append((x["k"], n, wait(n)))
                elif x["mark"] == "smallwait": wait(ei - x["k"])
                elif x["mark"] == "postwait": out.append(f"    s_waitcnt vmcnt({AL})")
            else: out.append(x["t"])
        assert ei == len(items)
        print(name, "cost", sum(x["c"] for x in B.I), "waits", [(k, n) for k, n, w in info if w], "lead", min(n for k, n, w in info), file=sys.stderr)
        return out, marks
    class Pos:
        def __init__(self, B):
            self.I = B.I; self.cum = []; a = 0
            for x in B.I: self.cum.append(a); a += x["c"]
            self.tot = a
        def i(self, kind, k=None): return next(i for i, x in enumerate(self.I) if x.get("mark") == kind and x.get("k") == k)
        def c(self, kind, k=None): return self.cum[self.i(kind, k)]
        def at(self, t, lo):
            p = max(lo, next((i for i in range(len(self.I)) if self.cum[i] >= t), len(self.I) - 1))
            while not self.I[p]["ins"]: p += 1
            return p

    def deq(S, r, s, c): S(f"v_fma_mix_f32 v{r}, v{r}, v{s}, v{c} op_sel_hi:[1,0,0]")
    vpk = lambda r, sc: f"v_pk_fma_f32 {vr(r,2)}, {vr(r,2)}, {vr(sc,2)}, {vr(sc,2)} op_sel:[0,0,1] op_sel_hi:[1,0,1]"
    def kitems(B, n):
        for k in range(0, n, 2):
            r = vRing + 4 * k; t = vKP + 4 * ((k // 2) % 2)
            B.mark("wait", k + 1)
            if gen_:
                for j in range(8): B(f"v_cvt_f32_i32 v{r+j}, v{r+j}")
                for u in range(4): B(f"v_pk_fma_f32 {vr(r+2*u,2)}, {vr(r+2*u,2)}, {vr(vKS+2*(u%2),2)}, {vr(vKC+2*(u%2),2)}")
            else:
                for u in range(2):
                    for j in range(4): deq(B, r + 4 * u + j, vKS + j, vKC + j)
            for u in range(4): B(f"v_cvt_pk_bf16_f32 v{t+u}, v{r+2*u}, v{r+2*u+1}")
            B.mark("free", k); B.mark("free", k + 1)
            B(f"ds_write2_b64 v{vKW + k//4}, {vr(t,2)}, {vr(t+2,2)} offset0:{(k%4)*KROW//8} offset1:{(k%4+1)*KROW//8}")
        B.mark("kdone")
    def mfma_loop(B, reads, mfmas, fill, start=0, ids=None, after=None):
        n = len(mfmas)
        if ids is None:
            ids = {}
            for i in range(PF): ids[i] = B(reads[i])
            for t in fill.get(-1, []): B(t)
        for i in range(start, n):
            if i % 2 == 0 or i == start: B.waitds(ids[min(n - 1, i | 1)])
            B(mfmas[i])
            if i + PF < n: ids[i + PF] = B(reads[i + PF])
            for t in fill.get(i, []): B(t)
            if after and i in after: after[i](dict(ids))
    def qk_lists(nblk):
        order = [(2 * bp + u, s4) for bp in range(nblk // 2) for s4 in range(4) for u in range(2)]
        rd = [f"ds_read_b128 {vr(vSt+4*(i%NST),4)}, v{vKR} offset:{LDS_K + b*16*KROW + s4*64}" for i, (b, s4) in enumerate(order)]
        mf = [f"v_mfma_f32_16x16x32_bf16 {vr(vS+4*b,4)}, {vr(vSt+4*(i%NST),4)}, {vr(vQ+4*s4,4)}, {vr(vNM,4) if s4 == 0 else vr(vS+4*b,4)}" for i, (b, s4) in enumerate(order)]
        return rd, mf
    def max_ops(bp):
        b = vS + 8 * bp
        if bp == 0: return [f"v_max3_f32 v{vMx}, v{b}, v{b+1}, v{b+2}", f"v_max3_f32 v{vMx}, v{vMx}, v{b+3}, v{b+4}", f"v_max3_f32 v{vMx}, v{vMx}, v{b+5}, v{b+6}", f"v_max_f32 v{vMx}, v{vMx}, v{b+7}"]
        return [f"v_max3_f32 v{vMx}, v{vMx}, v{b+2*u}, v{b+2*u+1}" for u in range(4)]
    def qk_fill(nblk):
        f = {}
        for bp in range(nblk // 2 - 1):
            last = bp + 2 == nblk // 2
            slots = (4, 5, 6, 7) if last else (3, 5, 7, 7)
            for s_, t in zip(slots, max_ops(bp)): f.setdefault(8 * (bp + 1) + s_, []).append(t)
        return f
    def check_max(B, nblk, tag, pre):
        for t in pre: B(t)
        if len(pre) < 6: B(f"s_nop {5 - len(pre)}")
        for t in max_ops(nblk // 2 - 1): B(t)
        B(f"v_cmp_lt_f32 vcc, s{sThr}, v{vMx}")
        B.lock = True
        B(f"s_cbranch_vccnz L_rescale{tag}")
        B.label(f"L_rescaled{tag}")
        B.lock = False
    exp_op = lambda i: f"v_exp_f32 v{vS+i}, v{vS+i}"
    sum_cvt = lambda i: [f"v_pk_add_f32 {vr(vL,2)}, {vr(vL,2)}, {vr(vS+2*i,2)}", f"v_cvt_pk_bf16_f32 v{vS+i}, v{vS+2*i}, v{vS+2*i+1}"]
    def vphase(B, k0, s, refill_hi, ncol=4):
        rg = lambda n8: vRing + 4 * (k0 + n8)
        c0 = 8 - ncol
        for n8 in range(0, c0, 2):
            B.mark("wait", k0 + n8 + 1)
            if gen_:
                for j in range(8): B(f"v_cvt_f32_i32 v{rg(n8)+j}, v{rg(n8)+j}")
                for u in range(2):
                    for jp in range(2): B(vpk(rg(n8 + u) + 2 * jp, vSc + 2 * (n8 + u)))
            else:
                for u in range(2):
                    for j in range(4): deq(B, rg(n8 + u) + j, vSc + 2 * (n8 + u), vSc + 2 * (n8 + u) + 1)
            if refill_hi: B(f"ds_read_b128 {vr(vSc+4*(n8//2),4)}, v{vSR} offset:{64 + (n8//2)*16}")
            for j in range(4): B(f"v_cvt_pk_bf16_f32 v{vVP+4*j+n8//2}, v{rg(n8)+j}, v{rg(n8+1)+j}")
            B.mark("free", k0 + n8); B.mark("free", k0 + n8 + 1)
        B.mark("wait", k0 + 7)
        for j in range(4):
            if gen_:
                if j == 0:
                    for n8 in range(c0, 8):
                        for u in range(2): B(f"v_cvt_f32_i32 v{rg(n8)+u}, v{rg(n8)+u}")
                if j % 2 == 0:
                    for n8 in range(c0, 8): B(vpk(rg(n8) + j, vSc + 2 * n8))
                if j == 1:
                    for n8 in range(c0, 8):
                        for u in (2, 3): B(f"v_cvt_f32_i32 v{rg(n8)+u}, v{rg(n8)+u}")
            else:
                for n8 in range(c0, 8): deq(B, rg(n8) + j, vSc + 2 * n8, vSc + 2 * n8 + 1)
            for n8 in range(c0, 8, 2): B(f"v_cvt_pk_bf16_f32 v{vVP+4*j+n8//2}, v{rg(n8)+j}, v{rg(n8+1)+j}")
            if j == 3:
                for n8 in range(c0, 8): B.mark("free", k0 + n8)
            B(f"ds_write_b128 v{vVW}, {vr(vVP+4*j,4)} offset:{s*8*OS + j*JS}")
        if refill_hi:
            for u in range(c0 // 2, 4): B(f"ds_read_b128 {vr(vSc+4*u,4)}, v{vSR} offset:{64 + u*16}")
    def pv_lists(s, pbase=None, dbmajor=False):
        if pbase is None: pbase = vS
        lst = [(2 * s + kk, db) for kk in range(2) for db in range(8)]
        if dbmajor: lst = [(2 * s + kk, 2 * u + e) for u in range(4) for kk in range(2) for e in range(2)]
        rd = [f"ds_read_b128 {vr(vSt+4*(i%NST),4)}, v{vVR} offset:{ks*4*OS + (db//2)*128 + (db%2)*16}" for i, (ks, db) in enumerate(lst)]
        mf = [f"v_mfma_f32_16x16x32_bf16 {vr(vO+4*db,4)}, {vr(vSt+4*(i%NST),4)}, {vr(pbase+4*ks,4)}, {vr(vO+4*db,4)}" for i, (ks, db) in enumerate(lst)]
        return rd, mf
    def ops_of(f):
        S = Stream(); f(S); return [x["t"].strip() for x in S.I if not x["t"].strip().startswith(";")]
    def spread(ops, first, per=1):
        f = {}
        for n, t in enumerate(ops): f.setdefault(first + n // per, []).append(t)
        return f
    def save_ops(i0):
        return [f"v_accvgpr_write_b32 a{17*i0+i}, v{vS+i}" for i in range(16)] + [f"v_accvgpr_write_b32 a{17*i0+16}, v{vNM}"]
    unit_items = [item_text(k) for k in range(16)]
    unit_seq = {k: k - 16 for k in range(16)}

    B = Stream()
    B.lock = True
    B.label("L_K")
    itstamp(B)
    B(f"s_add_u32 s{sI}, s{sI}, 1")
    B(f"s_cmp_lt_u32 s{sI}, {npf}"); B("s_cbranch_scc0 L_k2v")
    unit_offs(B, sI, sKsl); B(f"s_andn2_b32 s{sKsl}, s{sKsl}, 255")
    B(f"s_cmp_le_u32 s{sI}, s{sHk}"); B("s_cbranch_scc1 L_hookK")
    B.label("L_k1")
    B("s_waitcnt lgkmcnt(0)")
    B.lock = False
    B.mark("ready")
    prep_k(B)
    kitems(B, 16)
    B.c("park the previous tile's P while the K rows settle in LDS")
    B("s_branch L_save", 150)
    B.lock = True
    B.label("L_saved")
    B.lock = False
    B("s_waitcnt lgkmcnt(0)"); B("s_barrier", 20)
    B.c("S^T - m = K Q^T - m (log2 units)")
    rd, mf = qk_lists(8)
    mfma_loop(B, rd, mf, qk_fill(8))
    B("s_barrier", 10)
    check_max(B, 8, "K", ops_of(ktab_reads))
    for half in range(2):
        for i in range(16): B(exp_op(16 * half + i))
        for i in range(8):
            for t in sum_cvt(8 * half + i): B(t)
    B.mark("allissued")
    B.lock = True
    B(f"s_cmp_lt_u32 s{sI}, {npf}"); B("s_cbranch_scc1 L_K")
    sc_lo_reads(B)
    B.c("the last tile's P waits in the Q registers; l is final: sum it over the four lane groups")
    for i in range(16): B(f"v_mov_b32 v{vQ+i}, v{vS+i}")
    B(f"v_add_f32 v{vHd+1}, v{vL}, v{vL+1}")
    for sw in ("v_permlane32_swap_b32", "v_permlane16_swap_b32"):
        B(f"v_mov_b32 v{vTmp+1}, v{vHd+1}"); B("s_nop 1"); B(f"{sw} v{vTmp+1}, v{vHd+1}"); B("s_nop 1"); B(f"v_add_f32 v{vHd+1}, v{vHd+1}, v{vTmp+1}")
    if ua: B(f"v_mov_b32 v{vAo}, 0x40000000")
    B.lock = False
    P = Pos(B); c0 = P.c("free", 0); c1 = P.c("kdone"); c2 = P.c("allissued")
    tg = [c0 + (c1 - c0) * k / (nK1 - 1) for k in range(nK1)] + [c1 + (c2 - c1) * (k + 1) / (16 - nK1) - 8 for k in range(16 - nK1)]
    pl = []
    for k in range(16): pl.append(P.at(tg[k], max(pl[-1] if pl else 0, P.i("free", k) + 1))); assert pl[-1] <= P.i("allissued")
    kbody, _ = emit(B, unit_items, pl, unit_seq, ENTRY - 16, cap, "K")
    print("  K issue", [P.cum[p] for p in pl], file=sys.stderr)

    sig = sorted(m + 1 for m in ms)
    assert jr <= sig[0] and shards == 8
    events = sorted(set(sig) | set(x + 1 for x in sig) | {jr, 16})
    D_ = Stream()
    D_.label("L_V")
    itstamp(D_)
    D_(f"s_add_u32 s{sJ}, s{sJ}, 1")
    D_(f"s_bitcmp1_b32 {hex(sum(1 << e for e in events))}, s{sJ}")
    D_("s_waitcnt lgkmcnt(0)")
    D_("s_cbranch_scc1 L_ctl")
    D_.label("L_v0")
    unit_offs(D_, sJ, sVsl)
    D_(f"s_cmp_lg_u32 s{sMode}, 0"); D_("s_cbranch_scc1 L_vdisp")
    def make_V(tag, caps):
        B = Stream()
        B.label(f"L_V{tag}_")
        B.mark("ready")
        vphase(B, 0, 0, True)
        vtab_reads(B)
        B.c("fetch this tile's P back while the V rows settle in LDS")
        B("s_branch L_restore", 150)
        B.lock = True
        if tag == "":
            B.label("L_restored")
            B(f"s_cmp_lg_u32 s{sMode}, 0"); B("s_cbranch_scc1 L_rdisp")
        B.label(f"L_rest{tag}_")
        B.lock = False
        B("s_waitcnt lgkmcnt(0)"); B("s_barrier", 20)
        rd, mf = pv_lists(0)
        pvv = ops_of(prep_v)
        mfma_loop(B, rd, mf, {-1: pvv[:-1], 9: pvv[-1:]})
        vphase(B, 8, 1, False)
        B(f"s_cmp_lg_u32 s{sAt}, 0")
        B.lock = True
        B(f"s_cbranch_scc0 L_nopost{tag}")
        B.mark("postwait")
        B(f"ds_write_b32 v{vL4}, v{vAt} offset:{LDS_MB}")
        B.label(f"L_nopost{tag}")
        B.lock = False
        B("s_waitcnt lgkmcnt(0)"); B("s_barrier")
        rd, mf = pv_lists(1)
        mfma_loop(B, rd, mf, spread(ops_of(sc_lo_reads) + [f"ds_read_b32 v{vTmp}, v{vMb}"], 8))
        B.mark("allissued")
        B.lock = True
        B("s_branch L_V")
        B.lock = False
        P = Pos(B); c0 = P.c("free", 0); c1 = c0 + (P.c("allissued") - c0) * vtail
        pl = []
        for k in range(16): pl.append(P.at(c0 + (c1 - c0) * k / 15 - 8, max(pl[-1] if pl else 0, P.i("free", k) + 1))); assert pl[-1] <= P.i("allissued")
        nb = sum(1 for p in pl if p <= P.i("postwait")); assert nb >= AL
        body, _ = emit(B, unit_items, pl, unit_seq, ENTRYV - 16, caps, "V" + tag, at=nb - AL)
        print("  V issue", [P.cum[p] for p in pl], "atomic before", nb - AL, file=sys.stderr)
        return [l.replace("L_noat", "L_noat" + tag) for l in body]
    vbody = D_.text() + make_V("", capV) + make_V("f", capF) + make_V("s", capS)
    hbody = []

    E = Stream()
    def stampE(i):
        if stamps and not (hst == 1 and i in (2, 3, 4)) and not (hst == 2 and i in (2, 3)): E(f"s_memrealtime s[{84+2*i}:{85+2*i}]")
    def lsum():
        stampE(1)
        if stamps: E("s_mov_b32 s99, 0")
    ml = lambda x: vKP + 2 * (x - 1)
    dat = lambda x: vRing + 16 * (x - 1)
    bb = vKSr; u0 = vVP; vPo = vKS; vBa = vKS + 1; vPv = vKC; sLd = sCnt; sNew = sMode
    pl_ = [f"buffer_load_dwordx4 {vr(dat(x)+4*q,4)}, v{vLin}, {srd(sWS)}, s{sPo+x-1} offen offset:{q*1024} sc0 sc1" for x in range(1, 4) for q in range(4)]
    poll = f"buffer_load_dwordx2 {vr(vPv,2)}, v{vPo}, {srd(sWS)}, s{sG} offen sc0 sc1"
    def ready(dst):
        return [f"v_max_u32 v{vTmp+1}, v{vPv}, v{vPv+1}", f"v_cmp_eq_u32 vcc, -1, v{vTmp+1}",
                f"s_lshr_b32 s{sT}, vcc_lo, 16", f"s_cselect_b32 s{dst}, 0, 2",
                f"s_and_b32 s{sT}, vcc_hi, 0xffff", f"s_cselect_b32 s{sT}, 0, 4", f"s_or_b32 s{dst}, s{dst}, s{sT}",
                f"s_lshr_b32 s{sT}, vcc_hi, 16", f"s_cselect_b32 s{sT}, 0, 8", f"s_or_b32 s{dst}, s{dst}, s{sT}"]
    spreadh = [f"ds_bpermute_b32 v{ml(x)+u}, v{vBa}, v{vPv+u} offset:{64*x}" for x in range(1, 4) for u in range(2)]
    E.c("last unit; the last count also told the order in which the pair's workgroups passed it: the fourth merges")
    E.label("L_last")
    E(f"s_lshr_b32 s{sPend}, s{sG}, s{sXc}"); E(f"s_and_b32 s{sPend}, s{sPend}, 7")
    E(f"s_lshl2_add_u32 s{sG}, s{sPair}, s{sWave}"); E(f"s_lshl_b32 s{sG}, s{sG}, 15"); E(f"s_add_u32 s{sG}, s{sG}, {WS_SLOT}")
    E(f"v_lshrrev_b32 v{vPo}, 4, v{vLane}"); E(f"v_and_b32 v{vBa}, 15, v{vLane}"); E(f"v_xor_b32 v{vPo}, s{sSplit}, v{vPo}"); E(f"v_lshlrev_b32 v{vPo}, 13, v{vPo}")
    E(f"v_lshl_add_u32 v{vPo}, v{vBa}, 3, v{vPo}"); E(f"v_add_u32 v{vPo}, 4096, v{vPo}"); E(f"v_lshlrev_b32 v{vBa}, 2, v{vBa}")
    for x in range(4):
        E(f"s_xor_b32 s{sT}, s{sSplit}, {x}"); E(f"s_lshl_b32 s{sT}, s{sT}, 13"); E(f"s_add_u32 s{sPo+x-1}, s{sG}, s{sT}")
    E(f"s_cmp_eq_u32 s{sPend}, 3"); E(f"s_mov_b32 s{sPend}, 14")
    if stamps: E("s_cselect_b32 s100, 2, 1")
    T_ = Stream()
    if hst == 1: T_("s_memrealtime s[88:89]")
    vphase(T_, 0, 0, True)
    T_(f"v_cmp_neq_f32 vcc, v{vNM}, v{vMO}")
    T_.lock = True
    T_(f"s_cbranch_vccnz L_oldrefE")
    T_.label(f"L_newrefE")
    T_.lock = False
    if hst == 1: T_("s_memrealtime s[90:91]")
    T_("s_waitcnt lgkmcnt(0)"); T_("s_barrier", 20)
    rd, mf = pv_lists(0, vQ); mfma_loop(T_, rd, mf, {})
    vphase(T_, 8, 1, False, tcol)
    if hst == 1: T_("s_memrealtime s[92:93]")
    T_("s_waitcnt lgkmcnt(0)"); T_("s_barrier")
    if not early:
        rd, mf = pv_lists(1, vQ); mfma_loop(T_, rd, mf, {})
    Pt = Pos(T_)
    p = Pt.at(Pt.c("wait", 15) + pb, Pt.i("wait", 15) + 1)
    T_.I[p:p] = [dict(t=t, c=0, ins=True) for t in ("    s_cbranch_scc0 L_nolook", "    " + poll, "L_nolook:")]
    out, _ = emit(T_, [], [], unit_seq, ENTRYV - 16, None, "tail")
    assert not any(t.strip().startswith("s_") and not t.strip().startswith(("s_waitcnt", "s_barrier", "s_cbranch", "s_nop", "s_memrealtime")) for t in out)
    for t in out: E.I.append(dict(t=t, c=0, ins=True))
    chunk = lambda q: [f"v_cvt_pk_bf16_f32 v{vS+i}, v{vO+2*i}, v{vO+2*i+1}" for i in range(4 * q, 4 * q + 4)] + \
                      [f"buffer_store_dwordx4 {vr(vS+4*q,4)}, v{vLin}, {srd(sWS)}, s{sPo-1} offen offset:{q*1024} sc0 sc1"]
    if early:
        E("s_cbranch_scc1 L_pvc")
        E.c("one of the first three: hand the partial over (write-through) as its columns complete; once all is out, the header (-m, l), never the empty mark")
        rd, mf = pv_lists(1, vQ, True)
        f = {}
        for q, at in ((0, 6), (1, 12)):
            c = chunk(q); f.setdefault(at, []).extend(c[:2]); f.setdefault(at + 1, []).extend(c[2:])
        S_ = Stream(); mfma_loop(S_, rd, mf, f)
        for x in S_.I: E.I.append(x)
        lsum()
        for t in chunk(2): E(t)
        E("s_nop 1")
        for t in chunk(3): E(t)
    else:
        lsum()
        E("s_cbranch_scc1 L_merge")
        E.c("one of the first three: hand the partial over (write-through); once it is out, the header (-m, l), never the empty mark")
        for q in range(4):
            for t in chunk(q): E(t)
    E("s_mov_b64 exec, 0xffff")
    E(f"v_min_u32 v{vHd}, -2, v{vNM}"); E(f"v_min_u32 v{vHd+1}, -2, v{vHd+1}")
    if hst == 2: E("s_memrealtime s[88:89]")
    E("s_waitcnt vmcnt(0)")
    if hst == 2: E("s_memrealtime s[90:91]")
    E(f"buffer_store_dwordx2 {vr(vHd,2)}, v{vPo}, {srd(sWS)}, s{sG} offen sc0 sc1")
    if stamps:
        E("s_mov_b64 exec, -1")
        for i in (2, 3, 4): stampE(i)
        E("s_branch L_done")
    else:
        E("s_endpgm")
    if early:
        E.label("L_pvc")
        rd, mf = pv_lists(1, vQ); S_ = Stream(); mfma_loop(S_, rd, mf, {})
        for x in S_.I: E.I.append(x)
        lsum()
        E("s_branch L_merge")
    E.c("keep looking at the headers; fetch each partial once its header is complete")
    E.label("L_look")
    E(poll)
    E(f"s_sub_u32 s{sSpin}, s{sSpin}, 1"); E("s_cbranch_scc1 L_end")
    if stamps: E("s_add_u32 s99, s99, 1")
    E.label("L_merge")
    E("s_waitcnt vmcnt(0)")
    for t in ready(sNew): E(t)
    E(f"s_and_b32 s{sNew}, s{sNew}, s{sPend}"); E("s_cbranch_scc0 L_look")
    if hst == 2: E("s_memrealtime s[88:89]")
    for x in range(1, 4):
        E(f"s_bitcmp1_b32 s{sNew}, {x}"); E(f"s_cbranch_scc0 L_get{x}")
        for t in pl_[4*(x-1):4*x]: E(t)
        E.label(f"L_get{x}")
    E(f"s_andn2_b32 s{sPend}, s{sPend}, s{sNew}"); E("s_cbranch_scc1 L_look")
    E.c("all headers are in: final weights 2^(m_x - M) / L, while the last partials are on their way")
    for t in spreadh: E(t)
    wt = lambda x: vKSr + 2 * x if x < 2 else vKS + 2 * (x - 2) + 4
    E(f"v_and_b32 v{vTmp}, 7, v{vLane}" if fullo else f"v_and_b32 v{vTmp}, 15, v{vLane}"); E(f"v_lshrrev_b32 v{vTmp+1}, 4, v{vLane}")
    E(f"v_lshlrev_b32 v{vTmp}, 8, v{vTmp}"); E(f"v_lshl_add_u32 v{vTmp}, v{vTmp+1}, 4, v{vTmp}")
    if fullo: E(f"v_and_b32 v{vTmp+1}, 8, v{vLane}"); E(f"v_lshl_add_u32 v{vTmp}, v{vTmp+1}, 3, v{vTmp}")
    E(f"s_xor_b32 s{sLd}, s{sNew}, 14"); E(f"s_lshl_b32 s{sT2}, s{sWave}, 12")
    E("s_waitcnt lgkmcnt(0)")
    E(f"v_min3_f32 v{vMx}, v{vNM}, v{ml(1)}, v{ml(2)}"); E(f"v_min_f32 v{vMx}, v{vMx}, v{ml(3)}")
    for x in range(4): E(f"v_sub_f32 v{wt(x)}, v{vMx}, v{ml(x) if x else vNM}")
    for x in range(4): E(f"v_exp_f32 v{wt(x)}, v{wt(x)}")
    E(f"v_mul_f32 v{vHd+1}, v{vHd+1}, v{wt(0)}")
    for x in range(1, 4): E(f"v_fmac_f32 v{vHd+1}, v{ml(x)+1}, v{wt(x)}")
    E(f"v_rcp_f32 v{vHd+1}, v{vHd+1}"); E("s_nop 0")
    for x in range(4): E(f"v_mul_f32 v{wt(x)}, v{wt(x)}, v{vHd+1}")
    for i in range(16): E(f"v_pk_mul_f32 {vr(vO+2*i,2)}, {vr(vO+2*i,2)}, {vr(wt(0),2)} op_sel_hi:[1,0]")
    E.c("two passes: the partials that landed earlier, then the last ones")
    E.label("L_pass")
    for x in range(1, 4):
        E(f"s_bitcmp1_b32 s{sLd}, {x}"); E(f"s_cbranch_scc0 L_fold{x}")
        if x > 1: E(f"s_cmp_lg_u32 s{sNew}, 0"); E(f"s_cbranch_scc1 L_in{x}")
        E(f"s_waitcnt vmcnt({4*(3-x)})"); E.label(f"L_in{x}")
        for q in range(2):
            r = dat(x) + 8 * q
            for i in range(8): E(f"v_lshlrev_b32 v{u0+2*i}, 16, v{r+i}")
            for i in range(8): E(f"v_and_b32 v{u0+2*i+1}, 0xffff0000, v{r+i}")
            for i in range(8):
                d = vO + 2 * (8 * q + i)
                E(f"v_pk_fma_f32 {vr(d,2)}, {vr(u0+2*i,2)}, {vr(wt(x),2)}, {vr(d,2)} op_sel_hi:[1,0,1]")
        E.label(f"L_fold{x}")
    E(f"s_cmp_lg_u32 s{sNew}, 0"); E("s_cbranch_scc1 L_second")
    E.label("L_merged")
    for i in (2, 3, 4): stampE(i)
    if fullo:
        E.c("swap halves between rows q and q+8 so that every store covers whole 128-byte lines")
        for u in (0, 2):
            A_, B_ = vS + 4 * u, vS + 4 * u + 4
            for i in range(4 * u, 4 * u + 8): E(f"v_cvt_pk_bf16_f32 v{vS+i}, v{vO+2*i}, v{vO+2*i+1}")
            for i in range(4): E(f"v_mov_b32 v{u0+i}, v{A_+i}")
            for i in range(4): E(f"v_mov_b32_dpp v{A_+i}, v{B_+i} row_ror:8 row_mask:0xf bank_mask:0xc")
            for i in range(4): E(f"v_mov_b32_dpp v{B_+i}, v{u0+i} row_ror:8 row_mask:0xf bank_mask:0x3")
            E(f"buffer_store_dwordx4 {vr(A_,4)}, v{vTmp}, {srd(sOUT)}, s{sT2} offen offset:{u*64} {outf}")
            E(f"buffer_store_dwordx4 {vr(B_,4)}, v{vTmp}, {srd(sOUT)}, s{sT2} offen offset:{2048 + u*64} {outf}")
    else:
        for u in range(4):
            for i in range(4 * u, 4 * u + 4): E(f"v_cvt_pk_bf16_f32 v{vS+i}, v{vO+2*i}, v{vO+2*i+1}")
            E(f"buffer_store_dwordx4 {vr(vS+4*u,4)}, v{vTmp}, {srd(sOUT)}, s{sT2} offen offset:{u*64} {outf}")
    if pollmax:
        E(f"s_sub_u32 s{sT}, {SPIN}, s{sSpin}"); E(f"s_cmp_gt_u32 s{sT}, 6"); E("s_cbranch_scc0 L_done")
        E("s_mov_b64 exec, 1"); E(f"v_mov_b32 v{vAt}, s{sT}"); E(f"s_mov_b32 s{sT2}, 0x23000000")
        E(f"buffer_atomic_umax v{vAt}, off, {srd(sWS)}, s{sT2}")
        E(f"v_mov_b32 v{vFl}, 1"); E(f"buffer_atomic_add v{vFl}, off, {srd(sWS)}, s{sT2} offset:4")
    E.label("L_done")
    if stamps:
        E("s_waitcnt vmcnt(0)")
        stampE(5)
        E(f"s_lshl2_add_u32 s{sT}, s{sPair}, s{sSplit}"); E(f"s_lshl2_add_u32 s{sT}, s{sT}, s{sWave}"); E(f"s_lshl_b32 s{sT2}, s{sT}, 4")
        E(f"s_lshl_b32 s4, s{sT}, 8"); E("s_add_u32 s4, s4, 0x22000000")
        E(f"s_add_u32 s{sT2}, s{sT2}, 0x20000000")
        E(f"s_lshl_b32 s{sT}, s{sT}, 6"); E(f"s_add_u32 s{sT}, s{sT}, 0x21000000")
        E("s_waitcnt lgkmcnt(0)")
        E(f"v_accvgpr_read_b32 v60, a255")
        for i in range(12): E(f"v_mov_b32 v{16+i}, s{84+i}")
        E(f"v_mov_b32 v28, s101"); E("s_getreg_b32 s5, hwreg(HW_REG_XCC_ID)"); E("v_mov_b32 v29, s5"); E(f"v_mov_b32 v30, s100"); E("v_mov_b32 v31, s99")
        E("v_mov_b32 v32, s84"); E("v_mov_b32 v33, s85"); E("v_mov_b32 v34, s94"); E("v_mov_b32 v35, s95")
        E(f"buffer_store_dword v60, v{vL4}, {srd(sWS)}, s4 offen sc0 sc1")
        E("s_mov_b64 exec, 1")
        E(f"buffer_store_dwordx4 v[32:35], off, {srd(sWS)}, s{sT2} sc0 sc1")
        for i in range(4): E(f"buffer_store_dwordx4 v[{16+4*i}:{19+4*i}], off, {srd(sWS)}, s{sT} offset:{16*i} sc0 sc1")
    E.label("L_end")
    E("s_endpgm")

    E.label("L_second")
    E(f"s_mov_b32 s{sLd}, s{sNew}"); E(f"s_mov_b32 s{sNew}, 0")
    E.c("all three in flight together: the counted waits of the pass let each fold start as its partial lands")
    E(f"s_cmp_eq_u32 s{sLd}, 14"); E("s_cbranch_scc1 L_pass")
    E("s_waitcnt vmcnt(0)")
    if hst == 2: E("s_memrealtime s[90:91]")
    E("s_branch L_pass")
    def scale_O(r):
        for i in range(16): E(f"v_pk_mul_f32 {vr(vO+2*i,2)}, {vr(vO+2*i,2)}, {vr(r,2)} op_sel_hi:[1,0]")

    E.label("L_k2v")
    unit_offs(E, None, None); set_base(E, sVb)
    E(f"s_cmp_lg_u32 s{sW0}, 0"); E("s_cbranch_scc0 L_k1")
    if diags:
        E("s_mov_b64 exec, 1"); E(f"v_mov_b32 v{vTmp}, s84"); E(f"v_not_b32 v{vTmp+1}, v{vTmp}")
        E(f"buffer_atomic_umax v{vTmp}, off, {srd(sDBG)}, 0 offset:128"); E(f"buffer_atomic_umax v{vTmp+1}, off, {srd(sDBG)}, 0 offset:132"); E("s_mov_b64 exec, -1")
    E(f"buffer_load_dword v{vFl}, off, {srd(sDBG)}, 0 offset:4 {flagf}")
    E("s_branch L_k1")

    E.label("L_vdisp")
    E(f"s_sub_u32 s{sCnt}, s{sCnt}, 1"); E(f"s_cselect_b32 s{sMode}, 0, s{sMode}"); E("s_cbranch_scc1 L_V_")
    E(f"s_cmp_eq_u32 s{sMode}, 1"); E("s_cbranch_scc1 L_Vf_"); E("s_branch L_Vs_")
    E.label("L_rdisp")
    E(f"s_cmp_eq_u32 s{sMode}, 1"); E("s_cbranch_scc1 L_restf_"); E("s_branch L_rests_")
    E.c("progress counts: read the last one, arm the next one")
    E.label("L_ctl")
    E(f"v_readfirstlane_b32 s{sG}, v{vTmp}"); E(f"s_mov_b32 s{sAt}, 0")
    if ua: E(f"v_mov_b32 v{vAo}, 0x40000000")
    E(f"s_cmp_eq_u32 s{sJ}, 16"); E("s_nop 1"); E("s_cbranch_scc1 L_last")
    E(f"s_bitcmp1_b32 {hex(sum(1 << (x + 1) for x in sig))}, s{sJ}"); E("s_cbranch_scc0 L_arm")
    if stamps: E("s_lshl_b32 s101, s101, 8"); E(f"s_and_b32 s{sT}, s{sG}, 255"); E(f"s_or_b32 s101, s101, s{sT}")
    E.c("rank among the 32 workgroups of this count -> how many units to run with more (late) or fewer (early) loads in flight")
    def enc(tb):
        assert len(tb) == 16
        v = sum(((8 | -d) if d < 0 else d) << (4 * i) for i, d in enumerate(tb)); return v & 0xffffffff, v >> 32
    for n in range(len(sig)):
        lo, hi = enc(tabs[n])
        if n == 0: E(f"s_mov_b32 s4, {hex(lo)}"); E(f"s_mov_b32 s5, {hex(hi)}")
        else: E(f"s_cmp_eq_u32 s{sJ}, {sig[n]+1}"); E(f"s_cselect_b32 s4, {hex(lo)}, s4"); E(f"s_cselect_b32 s5, {hex(hi)}, s5")
    E(f"s_bfe_u32 s{sT}, s{sG}, 0x40001"); E(f"s_lshl_b32 s{sT}, s{sT}, 2"); E(f"s_lshr_b64 s[4:5], s[4:5], s{sT}")
    E(f"s_and_b32 s{sCnt}, s4, 7"); E("s_bitcmp1_b32 s4, 3"); E(f"s_cselect_b32 s{sMode}, 2, 1")
    E.label("L_arm")
    E(f"s_bitcmp1_b32 {hex(sum(1 << x for x in sig))}, s{sJ}"); E(f"s_cselect_b32 s{sAt}, s{sW0}, 0")
    E(f"s_lshl3_add_u32 s{sT}, s{sJ}, s{sShard}"); E(f"s_and_b32 s{sT}, s{sT}, 63")
    E(f"s_lshl_b32 s{sT}, s{sT}, {cstride}"); E(f"s_add_u32 s{sCoff}, s{sT}, {WS_CTR}")
    assert len(set(x % 8 for x in sig)) == len(sig)
    E.c("before the first count: wave 0 checks that the counters are live")
    E(f"s_cmp_eq_u32 s{sJ}, {jr}"); E(f"s_cselect_b32 s{sT}, s{sW0}, 0"); E(f"s_cmp_lg_u32 s{sT}, 0"); E("s_cbranch_scc0 L_v0")
    def zero_counters():
        E(f"v_lshlrev_b32 v{vTmp}, {cstride}, v{vLane}"); E(f"v_mov_b32 v{vFl}, 0"); E(f"s_mov_b32 s{sT}, {WS_CTR}")
        E(f"buffer_atomic_swap v{vFl}, v{vTmp}, {srd(sWS)}, s{sT} offen sc0")
    E(f"v_readfirstlane_b32 s{sT}, v{vFl}"); E("s_mov_b64 exec, 1"); E("s_nop 2")
    E(f"s_cmp_lg_u32 s{sT}, 0"); E("s_cbranch_scc1 L_live")
    E.c("not seen live yet: claim the job if it is free, otherwise wait for the (running) workgroup that holds it")
    E(f"v_mov_b32 v{vFl}, 1")
    E(f"buffer_atomic_add v{vFl}, off, {srd(sDBG)}, 0 sc0")
    E("s_waitcnt vmcnt(0)"); E(f"v_readfirstlane_b32 s{sT}, v{vFl}"); E("s_nop 3")
    E(f"s_cmp_eq_u32 s{sT}, 0"); E("s_cbranch_scc0 L_flag")
    E("s_mov_b64 exec, -1"); zero_counters(); E("s_mov_b64 exec, 1")
    E("s_waitcnt vmcnt(0)"); E(f"v_mov_b32 v{vFl}, 1")
    E(f"buffer_atomic_or v{vFl}, off, {srd(sDBG)}, 0 offset:4")
    E("s_branch L_live")
    E.label("L_flag")
    E(f"v_mov_b32 v{vFl}, 0")
    E(f"buffer_atomic_or v{vFl}, off, {srd(sDBG)}, 0 offset:4 sc0")
    E("s_waitcnt vmcnt(0)"); E(f"v_readfirstlane_b32 s{sT}, v{vFl}"); E(f"s_sub_u32 s{sSpin}, s{sSpin}, 1"); E("s_cbranch_scc1 L_live"); E("s_nop 2")
    E(f"s_cmp_lg_u32 s{sT}, 0"); E("s_cbranch_scc0 L_flag")
    E.label("L_live")
    if not nolocal:
        E.c("note this workgroup's XCD in the pair's word")
        E(f"s_lshl_b32 s{sT}, 1, s{sXc}"); E(f"v_mov_b32 v{vFl}, s{sT}"); E(f"s_lshl_b32 s{sT}, s{sPair}, {cstride}"); E(f"s_add_u32 s{sT}, s{sT}, {WS_CTR}")
        E(f"buffer_atomic_add v{vFl}, off, {srd(sWS)}, s{sT}")
    E("s_mov_b64 exec, -1")
    E("s_branch L_v0")

    def tree(lo, hi, reg, pre, leaf):
        if lo == hi: leaf(lo); return
        mid = (lo + hi + 1) // 2
        E(f"s_cmp_ge_u32 s{reg}, {mid}"); E(f"s_cbranch_scc1 {pre}{mid}_{hi}")
        tree(lo, mid - 1, reg, pre, leaf)
        E.label(f"{pre}{mid}_{hi}")
        tree(mid, hi, reg, pre, leaf)
    E.label("L_restore")
    def rleaf(j1):
        b = 17 * (j1 - 1)
        E(f"v_accvgpr_read_b32 v{vMx}, a{b+16}")
        for i in range(16): E(f"v_accvgpr_read_b32 v{vS+i}, a{b+i}")
        E(f"v_cmp_neq_f32 vcc, v{vMx}, v{vMO}"); E("s_cbranch_vccz L_restored"); E("s_branch L_oldref")
    tree(1, npf - 1, sJ, "L_r", rleaf)
    E.c("this tile's P used a newer reference max than O holds: bring O up to it")
    E.label("L_oldref")
    E(f"v_sub_f32 v{vTmp}, v{vMx}, v{vMO}"); E(f"v_exp_f32 v{vTmp}, v{vTmp}"); E(f"v_mov_b32 v{vMO}, v{vMx}")
    scale_O(vTmp)
    E("s_branch L_restored")
    for tag in "E":
        E.label(f"L_oldref{tag}")
        E(f"v_sub_f32 v{vTmp}, v{vNM}, v{vMO}"); E(f"v_exp_f32 v{vTmp}, v{vTmp}"); E("s_nop 0")
        scale_O(vTmp)
        E(f"s_branch L_newref{tag}")
    E.label("L_save")
    def sleaf(i1):
        if i1 >= 2:
            for t in save_ops(i1 - 2): E(t)
        E("s_branch L_saved")
    tree(1, npf, sI, "L_s", sleaf)

    E.c("the running row max rose: move the reference up to it")
    for tag, n in (("K", 32),):
        E.label(f"L_rescale{tag}")
        for sw in ("v_permlane32_swap_b32", "v_permlane16_swap_b32"):
            E(f"v_mov_b32 v{vTmp}, v{vMx}"); E("s_nop 1"); E(f"{sw} v{vTmp}, v{vMx}"); E("s_nop 1"); E(f"v_max_f32 v{vMx}, v{vMx}, v{vTmp}")
        E(f"v_max_f32 v{vTmp}, 0, v{vMx}"); E(f"v_max_f32 v{vT2}, s{sFlo}, v{vMx}")
        E(f"v_exp_f32 v{vTmp}, -v{vTmp}")
        E(f"s_mov_b32 s{sThr}, {hex(f32bits(T))}"); E(f"s_mov_b32 s{sFlo}, 0")
        for r in [vNM, vNM + 2] + [vS + i for i in range(0, n, 2)]:
            E(f"v_pk_add_f32 {vr(r,2)}, {vr(r,2)}, {vr(vT2,2)} op_sel_hi:[1,0] neg_lo:[0,1] neg_hi:[0,1]")
        E(f"v_pk_mul_f32 {vr(vL,2)}, {vr(vL,2)}, {vr(vTmp,2)} op_sel_hi:[1,0]")
        if tag != "K": scale_O(vTmp)
        E(f"s_branch L_rescaled{tag}")

    E.c("workgroup 0, wave 0: zero the counters in d_ws, then raise the flag in d_debug")
    E.label("L_hookK")
    E(f"s_cmp_eq_u32 s{sI}, 1"); E("s_cbranch_scc1 L_hk1")
    E(f"s_cmp_eq_u32 s{sI}, 3"); E("s_cbranch_scc0 L_k1")
    E("s_mov_b64 exec, 1"); E(f"v_mov_b32 v{vFl}, 1")
    E(f"buffer_atomic_or v{vFl}, off, {srd(sDBG)}, 0 offset:4")
    E("s_mov_b64 exec, -1"); E("s_branch L_k1")
    E.label("L_hk1")
    E(f"v_readfirstlane_b32 s{sT}, v{vFl}"); E("s_nop 3")
    E(f"s_cmp_eq_u32 s{sT}, 0"); E(f"s_cselect_b32 s{sHk}, 3, 0"); E("s_cbranch_scc0 L_k1")
    zero_counters()
    E("s_branch L_k1")

    code = pro.text() + kbody + vbody + hbody + [x["t"] for x in E.I if "mark" not in x] + ["L_codeend:"]
    code = "\n".join(code).split("\n")
    if nocomp:
        kill = ("v_fma_mix", "v_cvt_pk", "v_mfma", "v_exp", "v_pk_", "v_max3", "ds_write2", "ds_write_b128", "ds_read_b128", "v_accvgpr_write_b32 a1", "v_accvgpr_read_b32 v9", "v_accvgpr_read_b32 v10", "s_cbranch_vccnz L_resc")
        a0 = code.index("L_K:"); a1 = code.index("L_round:"); c2 = []
        for i, l in enumerate(code):
            if a0 < i < a1:
                if l.strip().startswith(kill): continue
                if "lgkmcnt" in l:
                    l = "    s_waitcnt lgkmcnt(0)"
                    if c2[-1] == l: continue
            c2.append(l)
        code = c2
    if abl:
        a0 = code.index("L_last:"); a1 = code.index("L_merged:"); c2 = []
        for i, l in enumerate(code):
            if a0 < i < a1:
                if abl & 1 and "buffer_store" in l: continue
                if abl & 2 and "buffer_load" in l: continue
                if "s_cbranch_scc1 L_miss" in l: continue
                if abl & 2 and "vmcnt" in l: l = "    s_waitcnt vmcnt(0)"
            c2.append(l)
        code = c2
    if align: code = align_pass(code)
    if not nocomp and not abl: hazard_check(code)
    DOC = """;
;  Three workgroups of a pair hand their partial O (bf16) and (m, l) to the fourth through d_ws: data, wait, header."""
    L = [HDR.rstrip(), f"; @launch grid=(256,1,1) block=(256,1,1) lds={LDS_TOTAL}", DOC, '.amdgcn_target "amdgcn-amd-amdhsa--gfx950"',
         ".text", f".globl {NAME}_kernel", ".p2align 8", f".type {NAME}_kernel,@function", f"{NAME}_kernel:"]
    L += code
    L += ['.section .rodata,"a"', ".p2align 6", f".amdhsa_kernel {NAME}_kernel",
          "  .amdhsa_next_free_vgpr 512", "  .amdhsa_next_free_sgpr 102", "  .amdhsa_accum_offset 256",
          "  .amdhsa_group_segment_fixed_size 0", "  .amdhsa_kernarg_size 80", "  .amdhsa_user_sgpr_count 2",
          "  .amdhsa_user_sgpr_kernarg_segment_ptr 1", "  .amdhsa_system_sgpr_workgroup_id_x 1",
          "  .amdhsa_float_denorm_mode_32 3", "  .amdhsa_float_denorm_mode_16_64 3", ".end_amdhsa_kernel"]
    open(path, "w").write("\n".join(L) + "\n")

if __name__ == "__main__":
    import argparse
    ap = argparse.ArgumentParser()
    ap.add_argument("out")
    for n, t, d in (("AL", int, 7), ("np", int, 14), ("cs", int, 8), ("nK1", int, 7), ("vtail", float, 0.97), ("T", float, 0.0), ("TM", float, 32.0),
                    ("pfcode", int, 8), ("ct", float, 0.9), ("ct0", float, 0.3), ("hv", int, 4), ("hk", float, 0.9), ("hp", int, 4), ("hq", float, 0.9), ("npre", int, 6), ("hst", int, 0), ("nocomp", int, 0), ("abl", int, 0), ("capC", str, None), ("uth", int, 4), ("grp", int, 0), ("flagf", str, "sc0 sc1"), ("capF", str, "7"), ("capS", str, "45"), ("tabs", str, "edcbba0001122345,cbbaaa0000112223,aaa0000000011111"), ("ms", str, "4,10,13"), ("shards", int, 8), ("shb", int, 3), ("ldf", str, "sc0 sc1"), ("wb", int, 0), ("wto", int, 0), ("nolocal", int, 1), ("pb", int, 0), ("jr", int, 3), ("pa", int, 0), ("pw", int, 1), ("noearly", int, 0), ("diags", int, 0), ("diagm", int, 0), ("p2f", float, -1), ("jo", int, 15), ("chk", int, 0), ("apoll", int, 0), ("gray", int, 0), ("ua", int, 0), ("det", int, 0), ("prog", int, 1), ("pbar", int, 0), ("rtmap", int, 0), ("fullo", int, 0), ("tw", int, 0), ("alt", int, 0), ("gen", int, 1), ("tcol", int, 2), ("early", int, 1), ("twf", str, "nt"), ("om", str, "kkkk"), ("cols", str, "1000,800,4000,2000,100,240,4b0,8044"),
                    ("nt", str, "nt"), ("q", str, ""), ("smf", str, "nt"), ("outf", str, "sc0 sc1"), ("pubf", str, "sc0 sc1"),
                    ("cap", str, "55555556"), ("capV", str, "5555555555555556"), ("capH", str, None), ("capP", str, "8")):
        ap.add_argument("--" + n, type=t, default=d)
    ap.add_argument("--mix", type=lambda x: int(x, 0), default=0)
    for n in ("stamps", "it", "dry", "noalign", "pollmax"): ap.add_argument("--" + n, action="store_true")
    a = ap.parse_args()
    gen(a.out, AL=a.AL, npf=a.np, stamps=a.stamps, nt=a.nt, smf=a.smf, qflag=a.q, cstride=a.cs, T=a.T, TM=a.TM, mix=a.mix, nK1=a.nK1, vtail=a.vtail,
        itst=a.it, outf=a.outf, pubf=a.pubf, cap=a.cap, capV=a.capV, capH=a.capH, capP=a.capP, pfcode=a.pfcode, ctspan=a.ct, ct0=a.ct0,
        hv=a.hv, hk=a.hk, hp=a.hp, hq=a.hq, npre=a.npre, dry=a.dry, hst=a.hst, align=not a.noalign, nocomp=a.nocomp, abl=a.abl, capC=a.capC, uth=a.uth, pollmax=a.pollmax, grp=a.grp, flagf=a.flagf, capF=a.capF, capS=a.capS, tabs=[[(int(c) if c.isdigit() else -(ord(c) - 96)) for c in t] for t in a.tabs.split(',')], ms=tuple(int(x) for x in a.ms.split(',') if x), shards=a.shards, shb=a.shb, ldf=a.ldf, wb=a.wb, wto=a.wto, nolocal=a.nolocal, pb=a.pb, jr=a.jr, pa=a.pa, pw=a.pw, noearly=a.noearly, diags=a.diags, diagm=a.diagm, p2f=a.p2f, jo=a.jo, chk=a.chk, apoll=a.apoll, gray=a.gray, ua=a.ua, det=a.det, prog=a.prog, pbar=a.pbar, rtmap=a.rtmap, fullo=a.fullo, tw=a.tw, alt=a.alt, gen_=a.gen, tcol=a.tcol, early=a.early, twf=a.twf, om=a.om.replace('k', '-'), cols=[int(x, 16) << 12 for x in a.cols.split(',')])
```

```python
import sys, struct, math, re
NAME = "standalone__kv_cache_quant_int4_int2_kv_with_per_channel_or_per_token_scales__sampling"
HDR = open("cdna_kernels/" + NAME + ".s.ref").read().split("; Override launch")[0]

def f32bits(x):
    return struct.unpack("<I", struct.pack("<f", x))[0]

def cost_of(s):
    op = s.split()[0]
    if op.startswith("v_mfma"): return 8
    if op in ("v_exp_f32", "v_rcp_f32"): return 8
    if op in ("ds_write_b128", "ds_write2_b64"): return 28
    if op.startswith("ds_write"): return 20
    if op == "s_barrier": return 70
    if op == "s_nop": return 4 * (int(s.split()[1]) + 1)
    return 4

class Stream:
    def __init__(self): self.I = []; self.lock = False; self.nds = 0
    def __call__(self, s, cost=None):
        self.I.append(dict(t="    " + s, c=(cost_of(s) if cost is None else cost), ins=not self.lock))
        if s.startswith("ds_"): self.nds += 1
        return self.nds
    def waitds(self, i):
        n = self.nds - i; assert 0 <= n <= 15
        self(f"s_waitcnt lgkmcnt({n})")
    def label(self, s): self.I.append(dict(t=s + ":", c=0, ins=not self.lock))
    def c(self, s): self.I.append(dict(t="    ; " + s, c=0, ins=not self.lock))
    def mark(self, kind, k=None): self.I.append(dict(mark=kind, k=k, c=0, ins=not self.lock))
    def text(self): return [x["t"] for x in self.I]

INLINE = re.compile(r"^-?(\d+|0x[0-9a-f]+)$")
def has_literal(ops):
    for o in ops:
        if INLINE.match(o):
            v = int(o, 0)
            if not -16 <= v <= 64 and (v & 0x7fffffff) not in (0x3f000000, 0x3f800000, 0x40000000, 0x40800000): return True
        elif re.match(r"^L_\w+-L_\w+$", o): return True
    return False
VOP12 = ("v_mov_b32", "v_exp_f32", "v_rcp_f32", "v_add_f32", "v_sub_f32", "v_mul_f32", "v_max_f32", "v_min_f32", "v_lshlrev_b32", "v_lshrrev_b32", "v_and_b32",
         "v_xor_b32", "v_add_u32", "v_mul_u32_u24", "v_min_u32", "v_max_u32", "v_fmac_f32", "v_cvt_f32_u32", "v_cvt_f32_i32", "v_not_b32")
def isize(line):
    s = line.split(";")[0].strip()
    if not s or s.endswith(":") or s.startswith("."): return 0, None
    op, _, rest = s.partition(" ")
    ops = [o.strip() for o in rest.split(",")] if rest else []
    if op.startswith(("s_load", "s_memrealtime", "ds_", "buffer_")): return 8, None
    if op.startswith("s_"):
        if op in ("s_waitcnt", "s_nop", "s_barrier", "s_endpgm", "s_branch", "s_getreg_b32") or op.startswith("s_cbranch"): return 4, None
        return (8 if has_literal(ops) else 4), None
    if op in ("v_cndmask_b32", "v_readfirstlane_b32", "v_permlane32_swap_b32", "v_permlane16_swap_b32"): return 4, None
    if op.startswith("v_cmp"):
        return (4 + 4 * has_literal(ops[1:]) if ops[0] == "vcc" else 8), None
    if op in VOP12:
        if any(o.startswith("-v") for o in ops): return 8, "valu"
        if has_literal(ops[1:]): return 8, "valu"
        return 4, "grow"
    if op.startswith("v_mfma"): return 8, None
    return 8, "valu"
def align_pass(L):
    out = []; par = 0; last = None
    for i, line in enumerate(L):
        sz, kind = isize(line)
        if sz == 8 and par and last is not None:
            j = last; op = out[j].split()[0]
            out[j] = out[j].replace(op, op + "_e64", 1); par = 0
        elif sz == 8 and par:
            n = 0
            for l2 in L[i:]:
                s2, k2 = isize(l2)
                if s2 == 4: break
                n += k2 == "valu"
            if n >= 7: out.append("    s_nop 0"); par = 0
        if sz == 8: last = None
        if sz == 4:
            par ^= 1
            if kind == "grow": last = len(out)
        out.append(line)
    return out

def regs_of(tok):
    m = re.match(r"^-?v\[(\d+):(\d+)\]$", tok)
    if m: return set(range(int(m.group(1)), int(m.group(2)) + 1))
    m = re.match(r"^-?v(\d+)$", tok)
    return {int(m.group(1))} if m else set()
def hazard_check(L):
    hist = []
    for line in L:
        s = line.split(";")[0].strip()
        if not s or s.endswith(":") or s.startswith("."): continue
        op, _, rest = s.partition(" ")
        toks = [o.strip().split(" ")[0] for o in rest.split(",")] if rest else []
        if op in ("s_branch", "s_endpgm"): hist = []; continue
        st = int(toks[0]) + 1 if op == "s_nop" else 1
        allr = [regs_of(t) for t in toks]
        isv = op.startswith("v_"); mf = op.startswith("v_mfma")
        store = op.startswith(("ds_write", "buffer_store", "buffer_atomic"))
        dst = set() if (store or not allr or op.startswith(("v_cmp", "v_readfirstlane"))) else allr[0]
        src = set().union(*(allr if store or op.startswith(("v_cmp", "v_permlane", "v_fmac")) else allr[1:])) if allr else set()
        if op.startswith("v_permlane"): dst = src
        d = 0
        for (pop, pdst, psrcC, pst) in reversed(hist):
            need = 0
            if pop.startswith("v_mfma"):
                if mf:
                    if pdst & (allr[1] | allr[2]): need = 8
                    elif pdst & allr[3] and pdst != allr[3]: need = 6
                elif pdst & (src | dst): need = 8
                elif isv and psrcC & dst: need = 3
            elif pop.startswith("v_"):
                if mf and pdst & src: need = 2
                if (op.startswith("v_permlane") or op.endswith("_dpp")) and pdst & src: need = 2
                if op == "v_readfirstlane_b32" and pdst & src: need = 1
                if pop.split("_e64")[0] in ("v_exp_f32", "v_rcp_f32") and isv and op.split("_e64")[0] not in ("v_exp_f32", "v_rcp_f32") and pdst & src: need = max(need, 1)
                if pop.startswith("v_dot") and op != pop and pdst & (src | dst): need = 3
            elif pop.startswith("buffer_store_dwordx4") and isv and psrcC & dst: need = 2
            assert d >= need, f"hazard: {pop} -> {s} distance {d} < {need}"
            d += pst
            if d >= 8: break
        hist.append((op, dst, (allr[3] if mf else (allr[0] if op.startswith("buffer_store") else set())), st))

def gen(path, AL=8, npf=14, stamps=False, nt="nt", smf="nt", qflag="", cstride=8, T=8.0, TM=32.0, mix=0x31031031, nK1=9, vtail=1.0,
        itst=False, outf="sc0 sc1", pubf="sc0 sc1", cap="56", capV="556", capH=None, capP="8", pfcode=4, ctspan=0.95, ct0=0.15,
        hv=4, hk=0.9, hp=4, hq=0.9, npre=6, dry=False, hst=0, align=True, nocomp=0, abl=0, capC=None, uth=4, pollmax=False, grp=0, flagf='', capF='7', capS='45', tabs=None, ms=(5, 11), shards=4, shb=3, cols=None, ldf='sc0 sc1', wb=False, wto=0, nolocal=False, pb=100, jr=3, pa=1, pw=1, noearly=0, diags=0, diagm=0, p2f=-1, jo=15, om='----', chk=-1, apoll=0, gray=0, ua=0, det=0, prog=1, pbar=0, rtmap=0, fullo=1, tw=0, twf='nt', alt=0, gen_=1, tcol=2, early=1, diagx=0, diagw=0):
    npf = 16
    capn = lambda c, k: int(c[k % len(c)], 16) - 1
    KROW = 288; JS = 576; OS = 2320
    TABW = 16 * 256
    LDS_MB = 0; LDS_SC = 256; LDS_TAB = 1536; LDS_K = LDS_TAB + 4 * TABW; LDS_V = LDS_K + 128 * KROW
    LDS_TOTAL = LDS_V + 16 * OS
    assert LDS_K % 256 == 0 and LDS_K + 128 * KROW < 65536 and LDS_TAB % 512 == 0 and TABW % 512 == 0
    WS_SLOT = 1 << 20; WS_CTR = 16 << 20; FLAG = 0x100
    SPIN = 1 << 20
    PF = 8
    vLane, vOff, vMb, vKR, vSW, vSR, vVW, vVR, vTK, vTV, vL4, vLin = range(12)
    vHd = 12
    vCk, vFl = 14, 15
    vL = 16
    vT2 = 18
    vKS, vKC = 20, 24; vKSr, vKZr, vVSr, vVZr = 28, 30, 32, 33
    vTmp = 34
    vMx, vAt, vMO = 37, 38, 39
    vKP = 40; vVP = 48; vO = 64; vS = 96; vRing = 128; vQ = 192; vSt = 208; NST = 10
    vNM = 248; vKW = 252
    vSc = vS + 16
    vAo = vL
    sX, sY, sSM, sQ, sDBG, sWS, sOUT = 8, 12, 16, 20, 24, 28, 32
    sKb, sVb = 36, 38
    sPair, sSplit, sI, sJ, sG, sT, sT2, sFlo, sThr, sDoff, sCoff, sIni, sKsl, sVsl, sWb, sPend, sSpin, sW0, sHk, sMode = range(40, 60)
    sAt = 49; sShard = 82; sCnt = 83; sXc = 71; sInc = 70
    sO = 60
    sK1, sK2 = 64, 66
    sCw = 72
    sPo = 76
    sWave = 3
    srd = lambda r: f"s[{r}:{r+3}]"
    vr = lambda r, n: f"v[{r}:{r+n-1}]"
    def item_text(k):
        return f"buffer_load_dwordx4 {vr(vRing+4*k,4)}, v{vOff}, {srd(sX)}, s{sO + k//4} offen offset:{(k%4)*1024} {nt}"
    sXm = 101 if not stamps else 59 + 40
    sXm = 2
    def unit_offs(A, idx, slot):
        if idx is None: A(f"s_mov_b32 s{sO}, s{sXm}")
        else:
            if gray == 1: A(f"s_lshr_b32 s{sO}, s{idx}, 1"); A(f"s_xor_b32 s{sO}, s{sO}, s{idx}"); A(f"s_lshl_b32 s{sO}, s{sO}, 16")
            elif gray == 2: A(f"s_brev_b32 s{sO}, s{idx}"); A(f"s_lshr_b32 s{sO}, s{sO}, 12")
            else: A(f"s_lshl_b32 s{sO}, s{idx}, 16")
            A(f"s_xor_b32 s{sO}, s{sO}, s{sXm}")
        A(f"s_add_u32 s{sO+1}, s{sO}, 4096"); A(f"s_xor_b32 s{sO+2}, s{sO}, 0x4000"); A(f"s_xor_b32 s{sO+3}, s{sO+1}, 0x4000")
        if slot is not None: A(f"s_bfe_u32 s{slot}, s{sO}, 0xc0008")
    def set_base(A, b, b2=None):
        if b2 is None: b2 = b
        A(f"s_mov_b64 s[{sX}:{sX+1}], s[{b}:{b+1}]")
    A = Stream()
    A("s_cmp_ge_u32 s2, 256"); A("s_cbranch_scc1 L_end")
    if stamps: A("s_memrealtime s[84:85]"); A("s_mov_b32 s101, 0")
    if diags or diagx: A("s_memrealtime s[84:85]")
    A("s_load_dwordx16 s[68:83], s[0:1], 0")
    A("s_load_dwordx4 s[4:7], s[0:1], 64")
    if alt: A("s_load_dwordx8 s[84:91], s[0:1], 80")
    if pfcode:
        A.c("pull this kernel's code into L2 with strided loads (speed only; the values are unused)")
        A("s_getpc_b64 s[92:93]"); A("s_and_b32 s92, s92, 0xffffff00"); A("s_mov_b32 s94, L_codeend-L_pf"); A("s_mov_b32 s95, 0x20000")
        A.label("L_pf")
        A(f"v_lshlrev_b32 v{vTmp}, 7, v0")
        A(f"s_lshr_b32 s{sT2}, s2, 3"); A(f"s_and_b32 s{sT2}, s{sT2}, {pfcode-1}"); A(f"s_cselect_b32 s94, 0, s94")
        A(f"buffer_load_dword v{vTmp}, v{vTmp}, s[92:95], 0 offen")
    A("v_lshrrev_b32 v1, 6, v0")
    A(f"v_and_b32 v{vLane}, 63, v0")
    A(f"v_readfirstlane_b32 s{sWave}, v1")
    A.c("workgroup id -> (pair, split) and the order in which it walks its token groups: a bijection (placement affects speed only)")
    for i, c in enumerate(cols):
        A(f"s_bitcmp1_b32 s2, {i}"); A(f"s_cselect_b32 s{sT if i else sT2}, {hex(c)}, 0")
        if i: A(f"s_xor_b32 s{sT2}, s{sT2}, s{sT}")
    if mix:
        A(f"s_lshr_b32 s{sT}, s2, 3"); A(f"s_and_b32 s{sT}, s{sT}, 7"); A(f"s_lshl_b32 s{sT}, s{sT}, 2")
        A(f"s_lshr_b32 s{sT}, {hex(mix)}, s{sT}"); A(f"s_and_b32 s{sT}, s{sT}, 3"); A(f"s_and_b32 s{sT}, s{sT}, s2")
        A(f"s_bcnt1_i32_b32 s{sT}, s{sT}"); A(f"s_and_b32 s{sT}, s{sT}, 1"); A(f"s_lshl_b32 s{sT}, s{sT}, 22"); A(f"s_xor_b32 s{sT2}, s{sT2}, s{sT}")
    def idmap(w):
        v = 0
        for i, c in enumerate(cols):
            if w >> i & 1: v ^= c
        if mix: v ^= (bin((mix >> (4 * ((w >> 3) & 7))) & 3 & w).count("1") & 1) << 22
        return v
    assert len(set(idmap(w) >> 20 for w in range(256))) == 256 and all(idmap(w) & ~0xfff4000 == 0 for w in range(256)) and idmap(0) == 0
    if rtmap:
        A("s_waitcnt lgkmcnt(0)"); A(f"s_lshl_b32 s{sT}, s2, 2"); A(f"s_add_u32 s90, s6, 0x24000000"); A("s_addc_u32 s91, s7, 0")
        A(f"s_load_dword s{sT2}, s[90:91], s{sT}"); A("s_waitcnt lgkmcnt(0)")
    A(f"s_mov_b32 s{sMode}, s2")
    A(f"s_lshr_b32 s{sPair}, s{sT2}, 22"); A(f"s_bfe_u32 s{sSplit}, s{sT2}, 0x20014"); A(f"s_and_b32 s{sXm}, s{sT2}, 0x3fffff")
    c_, h_, m_, g_ = vKS, vKS + 1, vKS + 2, vKS + 3
    t0, t1, vQo = vKC, vKC + 1, vKC + 2
    A.c("only what the first K rows need comes before them")
    A(f"v_lshlrev_b32 v{vLin}, 4, v{vLane}")
    A(f"s_and_b32 s{sT}, s{sWave}, 1"); A(f"s_lshr_b32 s{sT2}, s{sWave}, 1"); A(f"s_lshl2_add_u32 s{sWb}, s{sT2}, s{sT}"); A(f"s_lshl_b32 s{sWb}, s{sWb}, 13")
    A(f"v_add_u32 v{vOff}, s{sWb}, v{vLin}")
    A(f"s_mov_b32 s{sX+2}, {0 if dry else 0x400000}"); A(f"s_mov_b32 s{sX+3}, 0x20000")
    unit_offs(A, None, None)
    A(f"s_lshl_b32 s{sT}, s{sPair}, 22")
    A("s_waitcnt lgkmcnt(0)")
    def mk(r, p): A(f"s_add_u32 s{r}, s{p}, s{sPend}"); A(f"s_addc_u32 s{r+1}, s{p+1}, 0")
    if alt: A(f"s_cmp_ge_u32 s{sPair}, s88"); A("s_cselect_b64 s[70:71], s[84:85], s[70:71]"); A("s_cselect_b64 s[72:73], s[86:87], s[72:73]")
    A(f"s_add_u32 s{sX}, s70, s{sT}"); A(f"s_addc_u32 s{sX+1}, s71, 0")
    for k in range(npre): A(item_text(k))
    A(f"s_add_u32 s{sVb}, s72, s{sT}"); A(f"s_addc_u32 s{sVb+1}, s73, 0")
    A(f"s_lshl_b32 s{sG}, s{sWave}, 12"); A(f"s_add_u32 m0, s{sG}, {LDS_TAB}"); assert TABW == 4096
    for r in (sSM, sQ, sOUT): A(f"s_mov_b32 s{r+2}, 0x4000"); A(f"s_mov_b32 s{r+3}, 0x20000")
    A(f"s_lshl_b32 s{sPend}, s{sPair}, 14")
    A.c("wave w streams scale/zero array w (ks, kz, vs, vz) into the LDS table")
    A(f"s_cmp_eq_u32 s{sWave}, 1"); A(f"s_cselect_b64 s[{sSM}:{sSM+1}], s[76:77], s[74:75]")
    A(f"s_cmp_eq_u32 s{sWave}, 2"); A(f"s_cselect_b64 s[{sSM}:{sSM+1}], s[78:79], s[{sSM}:{sSM+1}]")
    A(f"s_cmp_eq_u32 s{sWave}, 3"); A(f"s_cselect_b64 s[{sSM}:{sSM+1}], s[80:81], s[{sSM}:{sSM+1}]")
    mk(sSM, sSM)
    A(f"s_lshl_b32 s{sT}, s{sSplit}, 12")
    nT = (npf + 3) // 4
    for u in range(nT):
        rows = min(4, npf - 4 * u)
        if rows < 4: A(f"s_bfm_b64 exec, {16*rows}, 0")
        A(f"buffer_load_dwordx4 v{vLin}, {srd(sSM)}, s{sT} offen offset:{u*1024} {smf} lds")
        if rows < 4: A("s_mov_b64 exec, -1")
    mk(sQ, 68)
    A(f"v_and_b32 v{m_}, 15, v{vLane}"); A(f"v_lshrrev_b32 v{g_}, 4, v{vLane}")
    A(f"v_lshlrev_b32 v{vQo}, 8, v{m_}"); A(f"v_lshl_add_u32 v{vQo}, v{g_}, 4, v{vQo}")
    A(f"s_lshl_b32 s{sT}, s{sWave}, 12")
    for s4 in range(4): A(f"buffer_load_dwordx4 {vr(vQ+4*s4,4)}, v{vQo}, {srd(sQ)}, s{sT} offen offset:{s4*64} {qflag}")
    A.c("mark the header of this wave's hand-off slot empty")
    for i in range(2): A(f"v_mov_b32 v{vVP+i}, -1")
    A(f"v_lshlrev_b32 v{vVP+2}, 3, v{vLane}")
    A(f"s_lshl2_add_u32 s{sT2}, s{sPair}, s{sWave}"); A(f"s_lshl2_add_u32 s{sT2}, s{sT2}, s{sSplit}")
    A(f"s_lshl_b32 s{sT2}, s{sT2}, 13"); A(f"s_add_u32 s{sT2}, s{sT2}, {WS_SLOT + 4096}")
    A(f"s_mov_b32 s{sWS+2}, 0x40000000"); A(f"s_mov_b32 s{sWS+3}, 0x20000")
    A(f"s_mov_b32 s{sDBG+2}, 256"); A(f"s_mov_b32 s{sDBG+3}, 0x20000"); A(f"v_mov_b32 v{vFl}, 1")
    A(f"s_mov_b64 s[{sWS}:{sWS+1}], s[6:7]")
    A("s_mov_b64 exec, 0xffff")
    A(f"buffer_store_dwordx2 {vr(vVP,2)}, v{vVP+2}, {srd(sWS)}, s{sT2} offen sc0 sc1")
    A("s_mov_b64 exec, -1")
    A.c("workgroup 0 claims the job of zeroing the counters in d_ws (any workgroup takes it over later if nobody has)")
    A(f"s_mov_b64 s[{sDBG}:{sDBG+1}], s[4:5]")
    A(f"s_cmp_eq_u32 s{sWave}, 0"); A(f"s_cselect_b32 s{sW0}, 1, 0")
    A(f"s_or_b32 s{sT}, s{sMode}, {'1' if noearly else 's%d' % sWave}"); A(f"s_cselect_b32 s{sHk}, 0, 3"); A("s_cbranch_scc1 L_noel")
    A("s_mov_b64 exec, 1")
    A(f"buffer_atomic_add v{vFl}, off, {srd(sDBG)}, 0 sc0")
    A("s_mov_b64 exec, -1")
    A.label("L_noel")
    mk(sOUT, 82)
    A(f"v_and_b32 v{c_}, 31, v{vLane}"); A(f"v_lshrrev_b32 v{h_}, 5, v{vLane}"); A(f"v_lshlrev_b32 v{vL4}, 2, v{vLane}")
    A(f"s_bfe_u32 s{sVsl}, s{sO}, 0xc0008"); A(f"s_andn2_b32 s{sKsl}, s{sVsl}, 255")
    A(f"v_lshlrev_b32 v{vTK}, 3, v{c_}")
    A(f"v_lshrrev_b32 v{vTV}, 4, v{c_}"); A(f"v_lshlrev_b32 v{vTV}, 5, v{vTV}")
    A(f"v_and_b32 v{t0}, 15, v{c_}"); A(f"v_add_lshl_u32 v{vTV}, v{vTV}, v{t0}, 1")
    A(f"s_lshr_b32 s{sT}, s{sWb}, 8"); A(f"v_add_u32 v{vTV}, s{sT}, v{vTV}")
    A(f"s_lshr_b32 s{sT}, s{sWave}, 1"); A(f"s_and_b32 s{sT2}, s{sWave}, 1")
    A(f"s_mul_i32 s{sT}, s{sT}, {32*KROW}"); A(f"s_mul_i32 s{sT2}, s{sT2}, {8*KROW}"); A(f"s_add_u32 s{sT}, s{sT}, s{sT2}"); A(f"s_add_u32 s{sT}, s{sT}, {LDS_K}")
    A(f"v_mul_u32_u24 v{vKW}, {4*KROW}, v{h_}"); A(f"v_lshl_add_u32 v{vKW}, v{c_}, 3, v{vKW}"); A(f"v_add_u32 v{vKW}, s{sT}, v{vKW}")
    for u, rows in ((1, 16), (2, 64), (3, 80)): A(f"v_add_u32 v{vKW+u}, {rows*KROW}, v{vKW}")
    A(f"v_mul_u32_u24 v{vKR}, {KROW}, v{m_}"); A(f"v_lshl_add_u32 v{vKR}, v{g_}, 4, v{vKR}")
    A(f"s_mul_i32 s{sT}, s{sWave}, {2*OS}"); A(f"s_add_u32 s{sT}, s{sT}, {LDS_V}")
    A(f"v_mul_u32_u24 v{vVW}, {OS}, v{h_}"); A(f"v_lshl_add_u32 v{vVW}, v{c_}, 4, v{vVW}"); A(f"v_add_u32 v{vVW}, s{sT}, v{vVW}")
    A(f"v_mul_u32_u24 v{vVR}, {OS}, v{g_}"); A(f"v_and_b32 v{t0}, 3, v{m_}"); A(f"v_mul_u32_u24 v{t0}, {JS}, v{t0}")
    A(f"v_lshrrev_b32 v{t1}, 2, v{m_}"); A(f"v_lshlrev_b32 v{t1}, 5, v{t1}")
    A(f"v_add3_u32 v{vVR}, v{vVR}, v{t0}, v{t1}"); A(f"v_add_u32 v{vVR}, {LDS_V}, v{vVR}")
    A(f"s_lshl_b32 s{sT}, s{sWave}, 8"); A(f"s_add_u32 s{sT2}, s{sT}, {LDS_SC}")
    A(f"v_and_b32 v{vSW}, 1, v{c_}"); A(f"v_lshlrev_b32 v{vSW}, 7, v{vSW}")
    A(f"v_lshrrev_b32 v{t0}, 1, v{c_}"); A(f"v_lshl_add_u32 v{vSW}, v{t0}, 3, v{vSW}"); A(f"v_add_u32 v{vSW}, s{sT2}, v{vSW}")
    A(f"v_lshlrev_b32 v{vSR}, 7, v{h_}"); A(f"v_add_u32 v{vSR}, s{sT2}, v{vSR}")
    A(f"v_mov_b32 v{vMb}, {LDS_MB}")
    A(f"s_mov_b32 s{sCoff}, {WS_CTR}")
    cc = math.log2(math.e) / math.sqrt(128.0)
    for i in range(2):
        A(f"s_mov_b32 s{sK1+i}, {hex(f32bits(cc if gen_ else cc * 2.0**24))}")
        if not gen_: A(f"s_mov_b32 s{sK2+i}, {hex(f32bits(-2.0**-24))}")
    A.c("the first tile always takes the rescale path, which sets the reference to that tile's true row max")
    A(f"s_mov_b32 s{sThr}, 0xff800000"); A(f"s_mov_b32 s{sFlo}, 0xff800000")
    for r in (sAt, sMode, sCnt, sI, sJ): A(f"s_mov_b32 s{r}, 0")
    A.c("a count is shared by 8 pairs: low byte = arrivals so far, above it a 3-bit arrival field per pair")
    fb = sorted((c >> 22).bit_length() - 1 for c in cols[:3]); assert all(bin(c >> 22).count("1") == 1 for c in cols[:3])
    sb = [x for x in range(6) if x not in fb]
    for dst, bits in ((sXc, fb), (sShard, sb)):
        for n, x in enumerate(reversed(bits)):
            A(f"s_bfe_u32 s{sT if n else dst}, s{sPair}, {hex(0x10000 | x)}")
            if n: A(f"s_lshl1_add_u32 s{dst}, s{dst}, s{sT}")
    A(f"s_mul_i32 s{sXc}, s{sXc}, 3"); A(f"s_add_u32 s{sXc}, s{sXc}, 8"); A(f"s_lshl_b32 s{sInc}, 1, s{sXc}"); A(f"s_add_u32 s{sInc}, s{sInc}, 1")
    if not nolocal: A(f"s_getreg_b32 s{sXc}, hwreg(HW_REG_XCC_ID, 0, 3)"); A(f"s_mul_i32 s{sXc}, s{sXc}, 3"); A(f"s_add_u32 s{sXc}, s{sXc}, 8")
    A(f"s_mov_b32 s{sSpin}, {SPIN}")
    for i in range(32): A(f"v_mov_b32 v{vO+i}, 0")
    for i in range(4): A(f"v_mov_b32 v{vNM+i}, 0")
    A(f"v_mov_b32 v{vMO}, 0x7149f2ca"); A(f"v_mov_b32 v{vL}, 0"); A(f"v_mov_b32 v{vL+1}, 0"); A(f"v_mov_b32 v{vAt}, 0")
    def ktab_reads(S):
        S(f"v_add_u32 v{vTmp+2}, s{sKsl}, v{vTK}")
        S(f"ds_read_b64 {vr(vKSr,2)}, v{vTmp+2} offset:{LDS_TAB}"); S(f"ds_read_b64 {vr(vKZr,2)}, v{vTmp+2} offset:{LDS_TAB+TABW}")
    def vtab_reads(S):
        S(f"v_xor_b32 v{vTmp+2}, s{sVsl}, v{vTV}")
        S(f"ds_read_u16 v{vVSr}, v{vTmp+2} offset:{LDS_TAB+2*TABW}"); S(f"ds_read_u16 v{vVZr}, v{vTmp+2} offset:{LDS_TAB+3*TABW}")
    def prep_v(S):
        S.c("V: S = vs, C = -vz*vs per token, broadcast through LDS" if gen_ else "V: S = vs*2^24, C = -vz*vs per token, broadcast through LDS")
        S(f"v_lshlrev_b32 v{vT2}, 16, v{vVSr}"); S(f"v_lshlrev_b32 v{vT2+1}, 16, v{vVZr}")
        S(f"v_mul_f32 v{vT2+1}, -v{vT2+1}, v{vT2}")
        if not gen_: S(f"v_mul_f32 v{vT2}, 0x4b800000, v{vT2}")
        S(f"ds_write_b64 v{vSW}, {vr(vT2,2)}")
    def prep_k(S):
        S.c("K: S = ks*c, C = -kz*ks*c per channel, c = log2(e)/sqrt(128)" if gen_ else "K: S = ks*c*2^24, C = -kz*ks*c per channel, c = log2(e)/sqrt(128) (the int code is read as an f16 subnormal, code*2^-24)")
        for p in range(2): S(f"v_lshlrev_b32 v{vKS+2*p}, 16, v{vKSr+p}"); S(f"v_lshlrev_b32 v{vKC+2*p}, 16, v{vKZr+p}")
        for p in range(2): S(f"v_and_b32 v{vKS+2*p+1}, 0xffff0000, v{vKSr+p}"); S(f"v_and_b32 v{vKC+2*p+1}, 0xffff0000, v{vKZr+p}")
        for p in range(2): S(f"v_pk_mul_f32 {vr(vKS+2*p,2)}, {vr(vKS+2*p,2)}, s[{sK1}:{sK1+1}]")
        if gen_:
            for p in range(2): S(f"v_pk_mul_f32 {vr(vKC+2*p,2)}, {vr(vKC+2*p,2)}, {vr(vKS+2*p,2)} neg_lo:[1,0] neg_hi:[1,0]")
        else:
            for p in range(2): S(f"v_pk_mul_f32 {vr(vKC+2*p,2)}, {vr(vKC+2*p,2)}, s[{sK2}:{sK2+1}]")
            for p in range(2): S(f"v_pk_mul_f32 {vr(vKC+2*p,2)}, {vr(vKC+2*p,2)}, {vr(vKS+2*p,2)}")
    def sc_lo_reads(S):
        for i in range(4): S(f"ds_read_b128 {vr(vSc+4*i,4)}, v{vSR} offset:{i*16}")
    ENTRYV = 15 - max(capn(c, 15) for c in (cap, capV, capF, capS))
    ENTRY = 15 - capn(cap, 15)
    if pbar:
        assert npre < pbar < 15
        for k in range(npre, 16):
            if k == pbar:
                A(f"s_waitcnt vmcnt({pbar - npre})"); A("s_barrier")
                ktab_reads(A); vtab_reads(A)
            if k == pbar + 1: A("s_waitcnt lgkmcnt(0)"); prep_v(A)
            A(f"s_waitcnt vmcnt({min(capn(capP, k), 15 - ENTRY) if k == 15 else capn(capP, k)})"); A(item_text(k))
    else:
        for k in range(npre, 16):
            A(f"s_waitcnt vmcnt({capn(capP, k)})"); A(item_text(k))
        assert 16 - ENTRY <= 16 - npre
        A(f"s_waitcnt vmcnt({16 - ENTRY})"); A("s_barrier")
        if diagx and diagw == 1: A("s_memrealtime s[88:89]")
        ktab_reads(A); vtab_reads(A)
        A("s_waitcnt lgkmcnt(0)")
        prep_v(A)
    pro = A

    def itstamp(S):
        if stamps and itst:
            S("s_memrealtime s[96:97]"); S("s_mov_b32 s98, m0"); S(f"s_add_u32 m0, s{sI}, s{sJ}"); S(f"v_accvgpr_read_b32 v{vTmp+2}, a255"); S("s_waitcnt lgkmcnt(0)")
            S(f"v_writelane_b32 v{vTmp+2}, s96, m0"); S("s_mov_b32 m0, s98"); S(f"v_accvgpr_write_b32 a255, v{vTmp+2}")

    def emit(B, items, place, seq0, done0, caps, name, at=None):
        out = []; ei = 0; done = done0; info = []; marks = {}; atd = False
        def wait(n):
            nonlocal done
            if ei - n > done:
                out.append(f"    s_waitcnt vmcnt({n + (1 if atd and ei - n <= at else 0)})"); done = ei - n; return True
            return False
        for i, x in enumerate(B.I):
            while ei < len(items) and place[ei] == i:
                if ei == at and not ua:
                    out.extend([f"    s_cmp_lg_u32 s{sAt}, 0", "    s_cbranch_scc0 L_noat", "    s_mov_b64 exec, 1", f"    v_mov_b32 v{vAt}, s{sInc}",
                                f"    buffer_atomic_add v{vAt}, off, {srd(sWS)}, s{sCoff} sc0", "    s_mov_b64 exec, -1", "L_noat:"])
                if caps: wait(capn(caps, ei))
                if ei == at and ua:
                    out.extend([f"    v_mov_b32 v{vAt}, 1", f"    buffer_atomic_add v{vAt}, v{vAo}, {srd(sWS)}, s{sCoff} offen sc0"]); atd = True
                out.append("    " + items[ei]); ei += 1
            if "mark" in x:
                marks[(x["mark"], x["k"])] = (ei, done)
                if x["mark"] == "wait":
                    n = ei - 1 - seq0[x["k"]]; assert n >= 0
                    info.append((x["k"], n, wait(n)))
                elif x["mark"] == "smallwait": wait(ei - x["k"])
                elif x["mark"] == "postwait": out.append(f"    s_waitcnt vmcnt({AL})")
            else: out.append(x["t"])
        assert ei == len(items)
        print(name, "cost", sum(x["c"] for x in B.I), "waits", [(k, n) for k, n, w in info if w], "lead", min(n for k, n, w in info), file=sys.stderr)
        return out, marks
    class Pos:
        def __init__(self, B):
            self.I = B.I; self.cum = []; a = 0
            for x in B.I: self.cum.append(a); a += x["c"]
            self.tot = a
        def i(self, kind, k=None): return next(i for i, x in enumerate(self.I) if x.get("mark") == kind and x.get("k") == k)
        def c(self, kind, k=None): return self.cum[self.i(kind, k)]
        def at(self, t, lo):
            p = max(lo, next((i for i in range(len(self.I)) if self.cum[i] >= t), len(self.I) - 1))
            while not self.I[p]["ins"]: p += 1
            return p

    def deq(S, r, s, c): S(f"v_fma_mix_f32 v{r}, v{r}, v{s}, v{c} op_sel_hi:[1,0,0]")
    vpk = lambda r, sc: f"v_pk_fma_f32 {vr(r,2)}, {vr(r,2)}, {vr(sc,2)}, {vr(sc,2)} op_sel:[0,0,1] op_sel_hi:[1,0,1]"
    def kitems(B, n):
        for k in range(0, n, 2):
            r = vRing + 4 * k; t = vKP + 4 * ((k // 2) % 2)
            B.mark("wait", k + 1)
            if gen_:
                for j in range(8): B(f"v_cvt_f32_i32 v{r+j}, v{r+j}")
                for u in range(4): B(f"v_pk_fma_f32 {vr(r+2*u,2)}, {vr(r+2*u,2)}, {vr(vKS+2*(u%2),2)}, {vr(vKC+2*(u%2),2)}")
            else:
                for u in range(2):
                    for j in range(4): deq(B, r + 4 * u + j, vKS + j, vKC + j)
            for u in range(4): B(f"v_cvt_pk_bf16_f32 v{t+u}, v{r+2*u}, v{r+2*u+1}")
            B.mark("free", k); B.mark("free", k + 1)
            B(f"ds_write2_b64 v{vKW + k//4}, {vr(t,2)}, {vr(t+2,2)} offset0:{(k%4)*KROW//8} offset1:{(k%4+1)*KROW//8}")
        B.mark("kdone")
    def mfma_loop(B, reads, mfmas, fill, start=0, ids=None, after=None):
        n = len(mfmas)
        if ids is None:
            ids = {}
            for i in range(PF): ids[i] = B(reads[i])
            for t in fill.get(-1, []): B(t)
        for i in range(start, n):
            if i % 2 == 0 or i == start: B.waitds(ids[min(n - 1, i | 1)])
            B(mfmas[i])
            if i + PF < n: ids[i + PF] = B(reads[i + PF])
            for t in fill.get(i, []): B(t)
            if after and i in after: after[i](dict(ids))
    def qk_lists(nblk):
        order = [(2 * bp + u, s4) for bp in range(nblk // 2) for s4 in range(4) for u in range(2)]
        rd = [f"ds_read_b128 {vr(vSt+4*(i%NST),4)}, v{vKR} offset:{LDS_K + b*16*KROW + s4*64}" for i, (b, s4) in enumerate(order)]
        mf = [f"v_mfma_f32_16x16x32_bf16 {vr(vS+4*b,4)}, {vr(vSt+4*(i%NST),4)}, {vr(vQ+4*s4,4)}, {vr(vNM,4) if s4 == 0 else vr(vS+4*b,4)}" for i, (b, s4) in enumerate(order)]
        return rd, mf
    def max_ops(bp):
        b = vS + 8 * bp
        if bp == 0: return [f"v_max3_f32 v{vMx}, v{b}, v{b+1}, v{b+2}", f"v_max3_f32 v{vMx}, v{vMx}, v{b+3}, v{b+4}", f"v_max3_f32 v{vMx}, v{vMx}, v{b+5}, v{b+6}", f"v_max_f32 v{vMx}, v{vMx}, v{b+7}"]
        return [f"v_max3_f32 v{vMx}, v{vMx}, v{b+2*u}, v{b+2*u+1}" for u in range(4)]
    def qk_fill(nblk):
        f = {}
        for bp in range(nblk // 2 - 1):
            last = bp + 2 == nblk // 2
            slots = (4, 5, 6, 7) if last else (3, 5, 7, 7)
            for s_, t in zip(slots, max_ops(bp)): f.setdefault(8 * (bp + 1) + s_, []).append(t)
        return f
    def check_max(B, nblk, tag, pre):
        for t in pre: B(t)
        if len(pre) < 6: B(f"s_nop {5 - len(pre)}")
        for t in max_ops(nblk // 2 - 1): B(t)
        B(f"v_cmp_lt_f32 vcc, s{sThr}, v{vMx}")
        B.lock = True
        B(f"s_cbranch_vccnz L_rescale{tag}")
        B.label(f"L_rescaled{tag}")
        B.lock = False
    exp_op = lambda i: f"v_exp_f32 v{vS+i}, v{vS+i}"
    sum_cvt = lambda i: [f"v_pk_add_f32 {vr(vL,2)}, {vr(vL,2)}, {vr(vS+2*i,2)}", f"v_cvt_pk_bf16_f32 v{vS+i}, v{vS+2*i}, v{vS+2*i+1}"]
    def vphase(B, k0, s, refill_hi, ncol=4):
        rg = lambda n8: vRing + 4 * (k0 + n8)
        c0 = 8 - ncol
        for n8 in range(0, c0, 2):
            B.mark("wait", k0 + n8 + 1)
            if gen_:
                for j in range(8): B(f"v_cvt_f32_i32 v{rg(n8)+j}, v{rg(n8)+j}")
                for u in range(2):
                    for jp in range(2): B(vpk(rg(n8 + u) + 2 * jp, vSc + 2 * (n8 + u)))
            else:
                for u in range(2):
                    for j in range(4): deq(B, rg(n8 + u) + j, vSc + 2 * (n8 + u), vSc + 2 * (n8 + u) + 1)
            if refill_hi: B(f"ds_read_b128 {vr(vSc+4*(n8//2),4)}, v{vSR} offset:{64 + (n8//2)*16}")
            for j in range(4): B(f"v_cvt_pk_bf16_f32 v{vVP+4*j+n8//2}, v{rg(n8)+j}, v{rg(n8+1)+j}")
            B.mark("free", k0 + n8); B.mark("free", k0 + n8 + 1)
        B.mark("wait", k0 + 7)
        for j in range(4):
            if gen_:
                if j == 0:
                    for n8 in range(c0, 8):
                        for u in range(2): B(f"v_cvt_f32_i32 v{rg(n8)+u}, v{rg(n8)+u}")
                if j % 2 == 0:
                    for n8 in range(c0, 8): B(vpk(rg(n8) + j, vSc + 2 * n8))
                if j == 1:
                    for n8 in range(c0, 8):
                        for u in (2, 3): B(f"v_cvt_f32_i32 v{rg(n8)+u}, v{rg(n8)+u}")
            else:
                for n8 in range(c0, 8): deq(B, rg(n8) + j, vSc + 2 * n8, vSc + 2 * n8 + 1)
            for n8 in range(c0, 8, 2): B(f"v_cvt_pk_bf16_f32 v{vVP+4*j+n8//2}, v{rg(n8)+j}, v{rg(n8+1)+j}")
            if j == 3:
                for n8 in range(c0, 8): B.mark("free", k0 + n8)
            B(f"ds_write_b128 v{vVW}, {vr(vVP+4*j,4)} offset:{s*8*OS + j*JS}")
        if refill_hi:
            for u in range(c0 // 2, 4): B(f"ds_read_b128 {vr(vSc+4*u,4)}, v{vSR} offset:{64 + u*16}")
    def pv_lists(s, pbase=None, dbmajor=False):
        if pbase is None: pbase = vS
        lst = [(2 * s + kk, db) for kk in range(2) for db in range(8)]
        if dbmajor: lst = [(2 * s + kk, 2 * u + e) for u in range(4) for kk in range(2) for e in range(2)]
        rd = [f"ds_read_b128 {vr(vSt+4*(i%NST),4)}, v{vVR} offset:{ks*4*OS + (db//2)*128 + (db%2)*16}" for i, (ks, db) in enumerate(lst)]
        mf = [f"v_mfma_f32_16x16x32_bf16 {vr(vO+4*db,4)}, {vr(vSt+4*(i%NST),4)}, {vr(pbase+4*ks,4)}, {vr(vO+4*db,4)}" for i, (ks, db) in enumerate(lst)]
        return rd, mf
    def ops_of(f):
        S = Stream(); f(S); return [x["t"].strip() for x in S.I if not x["t"].strip().startswith(";")]
    def spread(ops, first, per=1):
        f = {}
        for n, t in enumerate(ops): f.setdefault(first + n // per, []).append(t)
        return f
    def save_ops(i0):
        return [f"v_accvgpr_write_b32 a{17*i0+i}, v{vS+i}" for i in range(16)] + [f"v_accvgpr_write_b32 a{17*i0+16}, v{vNM}"]
    unit_items = [item_text(k) for k in range(16)]
    unit_seq = {k: k - 16 for k in range(16)}

    B = Stream()
    B.lock = True
    B.label("L_K")
    itstamp(B)
    B(f"s_add_u32 s{sI}, s{sI}, 1")
    B(f"s_cmp_lt_u32 s{sI}, {npf}"); B("s_cbranch_scc0 L_k2v")
    unit_offs(B, sI, sKsl); B(f"s_andn2_b32 s{sKsl}, s{sKsl}, 255")
    B(f"s_cmp_le_u32 s{sI}, s{sHk}"); B("s_cbranch_scc1 L_hookK")
    B.label("L_k1")
    B("s_waitcnt lgkmcnt(0)")
    B.lock = False
    B.mark("ready")
    prep_k(B)
    kitems(B, 16)
    B.c("park the previous tile's P while the K rows settle in LDS")
    B("s_branch L_save", 150)
    B.lock = True
    B.label("L_saved")
    B.lock = False
    B("s_waitcnt lgkmcnt(0)"); B("s_barrier", 20)
    B.c("S^T - m = K Q^T - m (log2 units)")
    rd, mf = qk_lists(8)
    mfma_loop(B, rd, mf, qk_fill(8))
    B("s_barrier", 10)
    check_max(B, 8, "K", ops_of(ktab_reads))
    for half in range(2):
        for i in range(16): B(exp_op(16 * half + i))
        for i in range(8):
            for t in sum_cvt(8 * half + i): B(t)
    B.mark("allissued")
    B.lock = True
    B(f"s_cmp_lt_u32 s{sI}, {npf}"); B("s_cbranch_scc1 L_K")
    sc_lo_reads(B)
    B.c("the last tile's P waits in the Q registers; l is final: sum it over the four lane groups")
    for i in range(16): B(f"v_mov_b32 v{vQ+i}, v{vS+i}")
    B(f"v_add_f32 v{vHd+1}, v{vL}, v{vL+1}")
    for sw in ("v_permlane32_swap_b32", "v_permlane16_swap_b32"):
        B(f"v_mov_b32 v{vTmp+1}, v{vHd+1}"); B("s_nop 1"); B(f"{sw} v{vTmp+1}, v{vHd+1}"); B("s_nop 1"); B(f"v_add_f32 v{vHd+1}, v{vHd+1}, v{vTmp+1}")
    if ua: B(f"v_mov_b32 v{vAo}, 0x40000000")
    B.lock = False
    P = Pos(B); c0 = P.c("free", 0); c1 = P.c("kdone"); c2 = P.c("allissued")
    tg = [c0 + (c1 - c0) * k / (nK1 - 1) for k in range(nK1)] + [c1 + (c2 - c1) * (k + 1) / (16 - nK1) - 8 for k in range(16 - nK1)]
    pl = []
    for k in range(16): pl.append(P.at(tg[k], max(pl[-1] if pl else 0, P.i("free", k) + 1))); assert pl[-1] <= P.i("allissued")
    kbody, _ = emit(B, unit_items, pl, unit_seq, ENTRY - 16, cap, "K")
    print("  K issue", [P.cum[p] for p in pl], file=sys.stderr)

    sig = sorted(m + 1 for m in ms)
    assert jr <= sig[0] and shards == 8
    events = sorted(set(sig) | set(x + 1 for x in sig) | {jr, 16})
    D_ = Stream()
    D_.label("L_V")
    itstamp(D_)
    D_(f"s_add_u32 s{sJ}, s{sJ}, 1")
    D_(f"s_bitcmp1_b32 {hex(sum(1 << e for e in events))}, s{sJ}")
    D_("s_waitcnt lgkmcnt(0)")
    D_("s_cbranch_scc1 L_ctl")
    D_.label("L_v0")
    unit_offs(D_, sJ, sVsl)
    D_(f"s_cmp_lg_u32 s{sMode}, 0"); D_("s_cbranch_scc1 L_vdisp")
    def make_V(tag, caps):
        B = Stream()
        B.label(f"L_V{tag}_")
        B.mark("ready")
        vphase(B, 0, 0, True)
        vtab_reads(B)
        B.c("fetch this tile's P back while the V rows settle in LDS")
        B("s_branch L_restore", 150)
        B.lock = True
        if tag == "":
            B.label("L_restored")
            B(f"s_cmp_lg_u32 s{sMode}, 0"); B("s_cbranch_scc1 L_rdisp")
        B.label(f"L_rest{tag}_")
        B.lock = False
        B("s_waitcnt lgkmcnt(0)"); B("s_barrier", 20)
        rd, mf = pv_lists(0)
        pvv = ops_of(prep_v)
        mfma_loop(B, rd, mf, {-1: pvv[:-1], 9: pvv[-1:]})
        vphase(B, 8, 1, False)
        B(f"s_cmp_lg_u32 s{sAt}, 0")
        B.lock = True
        B(f"s_cbranch_scc0 L_nopost{tag}")
        B.mark("postwait")
        B(f"ds_write_b32 v{vL4}, v{vAt} offset:{LDS_MB}")
        B.label(f"L_nopost{tag}")
        B.lock = False
        B("s_waitcnt lgkmcnt(0)"); B("s_barrier")
        rd, mf = pv_lists(1)
        mfma_loop(B, rd, mf, spread(ops_of(sc_lo_reads) + [f"ds_read_b32 v{vTmp}, v{vMb}"], 8))
        B.mark("allissued")
        B.lock = True
        B("s_branch L_V")
        B.lock = False
        P = Pos(B); c0 = P.c("free", 0); c1 = c0 + (P.c("allissued") - c0) * vtail
        pl = []
        for k in range(16): pl.append(P.at(c0 + (c1 - c0) * k / 15 - 8, max(pl[-1] if pl else 0, P.i("free", k) + 1))); assert pl[-1] <= P.i("allissued")
        nb = sum(1 for p in pl if p <= P.i("postwait")); assert nb >= AL
        body, _ = emit(B, unit_items, pl, unit_seq, ENTRYV - 16, caps, "V" + tag, at=nb - AL)
        print("  V issue", [P.cum[p] for p in pl], "atomic before", nb - AL, file=sys.stderr)
        return [l.replace("L_noat", "L_noat" + tag) for l in body]
    vbody = D_.text() + make_V("", capV) + make_V("f", capF) + make_V("s", capS)
    hbody = []

    E = Stream()
    def stampE(i):
        if stamps and not (hst == 1 and i in (2, 3, 4)) and not (hst == 2 and i in (2, 3)): E(f"s_memrealtime s[{84+2*i}:{85+2*i}]")
    def lsum():
        stampE(1)
        if stamps: E("s_mov_b32 s99, 0")
    ml = lambda x: vKP + 2 * (x - 1)
    dat = lambda x: vRing + 16 * (x - 1)
    bb = vKSr; u0 = vVP; vPo = vKS; vBa = vKS + 1; vPv = vKC; sLd = sCnt; sNew = sMode
    pl_ = [f"buffer_load_dwordx4 {vr(dat(x)+4*q,4)}, v{vLin}, {srd(sWS)}, s{sPo+x-1} offen offset:{q*1024} sc0 sc1" for x in range(1, 4) for q in range(4)]
    poll = f"buffer_load_dwordx2 {vr(vPv,2)}, v{vPo}, {srd(sWS)}, s{sG} offen sc0 sc1"
    def ready(dst):
        return [f"v_max_u32 v{vTmp+1}, v{vPv}, v{vPv+1}", f"v_cmp_eq_u32 vcc, -1, v{vTmp+1}",
                f"s_lshr_b32 s{sT}, vcc_lo, 16", f"s_cselect_b32 s{dst}, 0, 2",
                f"s_and_b32 s{sT}, vcc_hi, 0xffff", f"s_cselect_b32 s{sT}, 0, 4", f"s_or_b32 s{dst}, s{dst}, s{sT}",
                f"s_lshr_b32 s{sT}, vcc_hi, 16", f"s_cselect_b32 s{sT}, 0, 8", f"s_or_b32 s{dst}, s{dst}, s{sT}"]
    spreadh = [f"ds_bpermute_b32 v{ml(x)+u}, v{vBa}, v{vPv+u} offset:{64*x}" for x in range(1, 4) for u in range(2)]
    E.c("last unit; the last count also told the order in which the pair's workgroups passed it: the fourth merges")
    E.label("L_last")
    E(f"s_lshr_b32 s{sPend}, s{sG}, s{sXc}"); E(f"s_and_b32 s{sPend}, s{sPend}, 7")
    E(f"s_lshl2_add_u32 s{sG}, s{sPair}, s{sWave}"); E(f"s_lshl_b32 s{sG}, s{sG}, 15"); E(f"s_add_u32 s{sG}, s{sG}, {WS_SLOT}")
    E(f"v_lshrrev_b32 v{vPo}, 4, v{vLane}"); E(f"v_and_b32 v{vBa}, 15, v{vLane}"); E(f"v_xor_b32 v{vPo}, s{sSplit}, v{vPo}"); E(f"v_lshlrev_b32 v{vPo}, 13, v{vPo}")
    E(f"v_lshl_add_u32 v{vPo}, v{vBa}, 3, v{vPo}"); E(f"v_add_u32 v{vPo}, 4096, v{vPo}"); E(f"v_lshlrev_b32 v{vBa}, 2, v{vBa}")
    for x in range(4):
        E(f"s_xor_b32 s{sT}, s{sSplit}, {x}"); E(f"s_lshl_b32 s{sT}, s{sT}, 13"); E(f"s_add_u32 s{sPo+x-1}, s{sG}, s{sT}")
    E(f"s_cmp_eq_u32 s{sPend}, 3"); E(f"s_mov_b32 s{sPend}, 14")
    if stamps: E("s_cselect_b32 s100, 2, 1")
    T_ = Stream()
    if hst == 1: T_("s_memrealtime s[88:89]")
    vphase(T_, 0, 0, True)
    T_(f"v_cmp_neq_f32 vcc, v{vNM}, v{vMO}")
    T_.lock = True
    T_(f"s_cbranch_vccnz L_oldrefE")
    T_.label(f"L_newrefE")
    T_.lock = False
    if hst == 1: T_("s_memrealtime s[90:91]")
    T_("s_waitcnt lgkmcnt(0)"); T_("s_barrier", 20)
    rd, mf = pv_lists(0, vQ); mfma_loop(T_, rd, mf, {})
    vphase(T_, 8, 1, False, tcol)
    if hst == 1: T_("s_memrealtime s[92:93]")
    T_("s_waitcnt lgkmcnt(0)"); T_("s_barrier")
    if not early:
        rd, mf = pv_lists(1, vQ); mfma_loop(T_, rd, mf, {})
    Pt = Pos(T_)
    p = Pt.at(Pt.c("wait", 15) + pb, Pt.i("wait", 15) + 1)
    T_.I[p:p] = [dict(t=t, c=0, ins=True) for t in ("    s_cbranch_scc0 L_nolook", "    " + poll, "L_nolook:")]
    out, _ = emit(T_, [], [], unit_seq, ENTRYV - 16, None, "tail")
    assert not any(t.strip().startswith("s_") and not t.strip().startswith(("s_waitcnt", "s_barrier", "s_cbranch", "s_nop", "s_memrealtime")) for t in out)
    for t in out: E.I.append(dict(t=t, c=0, ins=True))
    chunk = lambda q: [f"v_cvt_pk_bf16_f32 v{vS+i}, v{vO+2*i}, v{vO+2*i+1}" for i in range(4 * q, 4 * q + 4)] + \
                      [f"buffer_store_dwordx4 {vr(vS+4*q,4)}, v{vLin}, {srd(sWS)}, s{sPo-1} offen offset:{q*1024} sc0 sc1"]
    if early:
        E("s_cbranch_scc1 L_pvc")
        E.c("one of the first three: hand the partial over (write-through) as its columns complete; once all is out, the header (-m, l), never the empty mark")
        rd, mf = pv_lists(1, vQ, True)
        f = {}
        for q, at in ((0, 6), (1, 12)):
            c = chunk(q); f.setdefault(at, []).extend(c[:2]); f.setdefault(at + 1, []).extend(c[2:])
        S_ = Stream(); mfma_loop(S_, rd, mf, f)
        for x in S_.I: E.I.append(x)
        lsum()
        for t in chunk(2): E(t)
        E("s_nop 1")
        for t in chunk(3): E(t)
    else:
        lsum()
        E("s_cbranch_scc1 L_merge")
        E.c("one of the first three: hand the partial over (write-through); once it is out, the header (-m, l), never the empty mark")
        for q in range(4):
            for t in chunk(q): E(t)
    E("s_mov_b64 exec, 0xffff")
    E(f"v_min_u32 v{vHd}, -2, v{vNM}"); E(f"v_min_u32 v{vHd+1}, -2, v{vHd+1}")
    if hst == 2: E("s_memrealtime s[88:89]")
    E("s_waitcnt vmcnt(0)")
    if hst == 2: E("s_memrealtime s[90:91]")
    E(f"buffer_store_dwordx2 {vr(vHd,2)}, v{vPo}, {srd(sWS)}, s{sG} offen sc0 sc1")
    if stamps:
        E("s_mov_b64 exec, -1")
        for i in (2, 3, 4): stampE(i)
        E("s_branch L_done")
    else:
        E("s_endpgm")
    if early:
        E.label("L_pvc")
        rd, mf = pv_lists(1, vQ); S_ = Stream(); mfma_loop(S_, rd, mf, {})
        for x in S_.I: E.I.append(x)
        lsum()
        E("s_branch L_merge")
    E.c("keep looking at the headers; fetch each partial once its header is complete")
    E.label("L_look")
    E(poll)
    E(f"s_sub_u32 s{sSpin}, s{sSpin}, 1"); E("s_cbranch_scc1 L_end")
    if stamps: E("s_add_u32 s99, s99, 1")
    E.label("L_merge")
    E("s_waitcnt vmcnt(0)")
    for t in ready(sNew): E(t)
    E(f"s_and_b32 s{sNew}, s{sNew}, s{sPend}"); E("s_cbranch_scc0 L_look")
    if hst == 2: E("s_memrealtime s[88:89]")
    for x in range(1, 4):
        E(f"s_bitcmp1_b32 s{sNew}, {x}"); E(f"s_cbranch_scc0 L_get{x}")
        for t in pl_[4*(x-1):4*x]: E(t)
        E.label(f"L_get{x}")
    E(f"s_andn2_b32 s{sPend}, s{sPend}, s{sNew}"); E("s_cbranch_scc1 L_look")
    E.c("all headers are in: final weights 2^(m_x - M) / L, while the last partials are on their way")
    for t in spreadh: E(t)
    wt = lambda x: vKSr + 2 * x if x < 2 else vKS + 2 * (x - 2) + 4
    E(f"v_and_b32 v{vTmp}, 7, v{vLane}" if fullo else f"v_and_b32 v{vTmp}, 15, v{vLane}"); E(f"v_lshrrev_b32 v{vTmp+1}, 4, v{vLane}")
    E(f"v_lshlrev_b32 v{vTmp}, 8, v{vTmp}"); E(f"v_lshl_add_u32 v{vTmp}, v{vTmp+1}, 4, v{vTmp}")
    if fullo: E(f"v_and_b32 v{vTmp+1}, 8, v{vLane}"); E(f"v_lshl_add_u32 v{vTmp}, v{vTmp+1}, 3, v{vTmp}")
    E(f"s_xor_b32 s{sLd}, s{sNew}, 14"); E(f"s_lshl_b32 s{sT2}, s{sWave}, 12")
    E("s_waitcnt lgkmcnt(0)")
    E(f"v_min3_f32 v{vMx}, v{vNM}, v{ml(1)}, v{ml(2)}"); E(f"v_min_f32 v{vMx}, v{vMx}, v{ml(3)}")
    for x in range(4): E(f"v_sub_f32 v{wt(x)}, v{vMx}, v{ml(x) if x else vNM}")
    for x in range(4): E(f"v_exp_f32 v{wt(x)}, v{wt(x)}")
    E(f"v_mul_f32 v{vHd+1}, v{vHd+1}, v{wt(0)}")
    for x in range(1, 4): E(f"v_fmac_f32 v{vHd+1}, v{ml(x)+1}, v{wt(x)}")
    E(f"v_rcp_f32 v{vHd+1}, v{vHd+1}"); E("s_nop 0")
    for x in range(4): E(f"v_mul_f32 v{wt(x)}, v{wt(x)}, v{vHd+1}")
    for i in range(16): E(f"v_pk_mul_f32 {vr(vO+2*i,2)}, {vr(vO+2*i,2)}, {vr(wt(0),2)} op_sel_hi:[1,0]")
    E.c("two passes: the partials that landed earlier, then the last ones")
    E.label("L_pass")
    for x in range(1, 4):
        E(f"s_bitcmp1_b32 s{sLd}, {x}"); E(f"s_cbranch_scc0 L_fold{x}")
        if x > 1: E(f"s_cmp_lg_u32 s{sNew}, 0"); E(f"s_cbranch_scc1 L_in{x}")
        E(f"s_waitcnt vmcnt({4*(3-x)})"); E.label(f"L_in{x}")
        for q in range(2):
            r = dat(x) + 8 * q
            for i in range(8): E(f"v_lshlrev_b32 v{u0+2*i}, 16, v{r+i}")
            for i in range(8): E(f"v_and_b32 v{u0+2*i+1}, 0xffff0000, v{r+i}")
            for i in range(8):
                d = vO + 2 * (8 * q + i)
                E(f"v_pk_fma_f32 {vr(d,2)}, {vr(u0+2*i,2)}, {vr(wt(x),2)}, {vr(d,2)} op_sel_hi:[1,0,1]")
        E.label(f"L_fold{x}")
    E(f"s_cmp_lg_u32 s{sNew}, 0"); E("s_cbranch_scc1 L_second")
    E.label("L_merged")
    if diagx:
        E("s_memrealtime s[86:87]"); E("s_waitcnt lgkmcnt(0)"); E(f"s_sub_u32 s86, s{86 if diagw == 0 else 88}, s84")
        E(f"s_cmp_gt_u32 s86, {diagx}"); E("s_cbranch_scc0 L_dx")
        E(f"v_cvt_f32_u32 v{vTmp+1}, s86")
        for i in range(32): E(f"v_mov_b32 v{vO+i}, v{vTmp+1}")
        E.label("L_dx")
    for i in (2, 3, 4): stampE(i)
    if fullo:
        E.c("swap halves between rows q and q+8 so that every store covers whole 128-byte lines")
        for u in (0, 2):
            A_, B_ = vS + 4 * u, vS + 4 * u + 4
            for i in range(4 * u, 4 * u + 8): E(f"v_cvt_pk_bf16_f32 v{vS+i}, v{vO+2*i}, v{vO+2*i+1}")
            for i in range(4): E(f"v_mov_b32 v{u0+i}, v{A_+i}")
            for i in range(4): E(f"v_mov_b32_dpp v{A_+i}, v{B_+i} row_ror:8 row_mask:0xf bank_mask:0xc")
            for i in range(4): E(f"v_mov_b32_dpp v{B_+i}, v{u0+i} row_ror:8 row_mask:0xf bank_mask:0x3")
            E(f"buffer_store_dwordx4 {vr(A_,4)}, v{vTmp}, {srd(sOUT)}, s{sT2} offen offset:{u*64} {outf}")
            E(f"buffer_store_dwordx4 {vr(B_,4)}, v{vTmp}, {srd(sOUT)}, s{sT2} offen offset:{2048 + u*64} {outf}")
    else:
        for u in range(4):
            for i in range(4 * u, 4 * u + 4): E(f"v_cvt_pk_bf16_f32 v{vS+i}, v{vO+2*i}, v{vO+2*i+1}")
            E(f"buffer_store_dwordx4 {vr(vS+4*u,4)}, v{vTmp}, {srd(sOUT)}, s{sT2} offen offset:{u*64} {outf}")
    if pollmax:
        E(f"s_sub_u32 s{sT}, {SPIN}, s{sSpin}"); E(f"s_cmp_gt_u32 s{sT}, 6"); E("s_cbranch_scc0 L_done")
        E("s_mov_b64 exec, 1"); E(f"v_mov_b32 v{vAt}, s{sT}"); E(f"s_mov_b32 s{sT2}, 0x23000000")
        E(f"buffer_atomic_umax v{vAt}, off, {srd(sWS)}, s{sT2}")
        E(f"v_mov_b32 v{vFl}, 1"); E(f"buffer_atomic_add v{vFl}, off, {srd(sWS)}, s{sT2} offset:4")
    E.label("L_done")
    if stamps:
        E("s_waitcnt vmcnt(0)")
        stampE(5)
        E(f"s_lshl2_add_u32 s{sT}, s{sPair}, s{sSplit}"); E(f"s_lshl2_add_u32 s{sT}, s{sT}, s{sWave}"); E(f"s_lshl_b32 s{sT2}, s{sT}, 4")
        E(f"s_lshl_b32 s4, s{sT}, 8"); E("s_add_u32 s4, s4, 0x22000000")
        E(f"s_add_u32 s{sT2}, s{sT2}, 0x20000000")
        E(f"s_lshl_b32 s{sT}, s{sT}, 6"); E(f"s_add_u32 s{sT}, s{sT}, 0x21000000")
        E("s_waitcnt lgkmcnt(0)")
        E(f"v_accvgpr_read_b32 v60, a255")
        for i in range(12): E(f"v_mov_b32 v{16+i}, s{84+i}")
        E(f"v_mov_b32 v28, s101"); E("s_getreg_b32 s5, hwreg(HW_REG_XCC_ID)"); E("v_mov_b32 v29, s5"); E(f"v_mov_b32 v30, s100"); E("v_mov_b32 v31, s99")
        E("v_mov_b32 v32, s84"); E("v_mov_b32 v33, s85"); E("v_mov_b32 v34, s94"); E("v_mov_b32 v35, s95")
        E(f"buffer_store_dword v60, v{vL4}, {srd(sWS)}, s4 offen sc0 sc1")
        E("s_mov_b64 exec, 1")
        E(f"buffer_store_dwordx4 v[32:35], off, {srd(sWS)}, s{sT2} sc0 sc1")
        for i in range(4): E(f"buffer_store_dwordx4 v[{16+4*i}:{19+4*i}], off, {srd(sWS)}, s{sT} offset:{16*i} sc0 sc1")
    E.label("L_end")
    E("s_endpgm")

    E.label("L_second")
    E(f"s_mov_b32 s{sLd}, s{sNew}"); E(f"s_mov_b32 s{sNew}, 0")
    E.c("all three in flight together: the counted waits of the pass let each fold start as its partial lands")
    E(f"s_cmp_eq_u32 s{sLd}, 14"); E("s_cbranch_scc1 L_pass")
    E("s_waitcnt vmcnt(0)")
    if hst == 2: E("s_memrealtime s[90:91]")
    E("s_branch L_pass")
    def scale_O(r):
        for i in range(16): E(f"v_pk_mul_f32 {vr(vO+2*i,2)}, {vr(vO+2*i,2)}, {vr(r,2)} op_sel_hi:[1,0]")

    E.label("L_k2v")
    unit_offs(E, None, None); set_base(E, sVb)
    E(f"s_cmp_lg_u32 s{sW0}, 0"); E("s_cbranch_scc0 L_k1")
    if diags:
        E("s_mov_b64 exec, 1"); E(f"v_mov_b32 v{vTmp}, s84"); E(f"v_not_b32 v{vTmp+1}, v{vTmp}")
        E(f"buffer_atomic_umax v{vTmp}, off, {srd(sDBG)}, 0 offset:128"); E(f"buffer_atomic_umax v{vTmp+1}, off, {srd(sDBG)}, 0 offset:132"); E("s_mov_b64 exec, -1")
    E(f"buffer_load_dword v{vFl}, off, {srd(sDBG)}, 0 offset:4 {flagf}")
    E("s_branch L_k1")

    E.label("L_vdisp")
    E(f"s_sub_u32 s{sCnt}, s{sCnt}, 1"); E(f"s_cselect_b32 s{sMode}, 0, s{sMode}"); E("s_cbranch_scc1 L_V_")
    E(f"s_cmp_eq_u32 s{sMode}, 1"); E("s_cbranch_scc1 L_Vf_"); E("s_branch L_Vs_")
    E.label("L_rdisp")
    E(f"s_cmp_eq_u32 s{sMode}, 1"); E("s_cbranch_scc1 L_restf_"); E("s_branch L_rests_")
    E.c("progress counts: read the last one, arm the next one")
    E.label("L_ctl")
    E(f"v_readfirstlane_b32 s{sG}, v{vTmp}"); E(f"s_mov_b32 s{sAt}, 0")
    if ua: E(f"v_mov_b32 v{vAo}, 0x40000000")
    E(f"s_cmp_eq_u32 s{sJ}, 16"); E("s_nop 1"); E("s_cbranch_scc1 L_last")
    E(f"s_bitcmp1_b32 {hex(sum(1 << (x + 1) for x in sig))}, s{sJ}"); E("s_cbranch_scc0 L_arm")
    if stamps: E("s_lshl_b32 s101, s101, 8"); E(f"s_and_b32 s{sT}, s{sG}, 255"); E(f"s_or_b32 s101, s101, s{sT}")
    E.c("rank among the 32 workgroups of this count -> how many units to run with more (late) or fewer (early) loads in flight")
    def enc(tb):
        assert len(tb) == 16
        v = sum(((8 | -d) if d < 0 else d) << (4 * i) for i, d in enumerate(tb)); return v & 0xffffffff, v >> 32
    for n in range(len(sig)):
        lo, hi = enc(tabs[n])
        if n == 0: E(f"s_mov_b32 s4, {hex(lo)}"); E(f"s_mov_b32 s5, {hex(hi)}")
        else: E(f"s_cmp_eq_u32 s{sJ}, {sig[n]+1}"); E(f"s_cselect_b32 s4, {hex(lo)}, s4"); E(f"s_cselect_b32 s5, {hex(hi)}, s5")
    E(f"s_bfe_u32 s{sT}, s{sG}, 0x40001"); E(f"s_lshl_b32 s{sT}, s{sT}, 2"); E(f"s_lshr_b64 s[4:5], s[4:5], s{sT}")
    E(f"s_and_b32 s{sCnt}, s4, 7"); E("s_bitcmp1_b32 s4, 3"); E(f"s_cselect_b32 s{sMode}, 2, 1")
    E.label("L_arm")
    E(f"s_bitcmp1_b32 {hex(sum(1 << x for x in sig))}, s{sJ}"); E(f"s_cselect_b32 s{sAt}, s{sW0}, 0")
    E(f"s_lshl3_add_u32 s{sT}, s{sJ}, s{sShard}"); E(f"s_and_b32 s{sT}, s{sT}, 63")
    E(f"s_lshl_b32 s{sT}, s{sT}, {cstride}"); E(f"s_add_u32 s{sCoff}, s{sT}, {WS_CTR}")
    assert len(set(x % 8 for x in sig)) == len(sig)
    E.c("before the first count: wave 0 checks that the counters are live")
    E(f"s_cmp_eq_u32 s{sJ}, {jr}"); E(f"s_cselect_b32 s{sT}, s{sW0}, 0"); E(f"s_cmp_lg_u32 s{sT}, 0"); E("s_cbranch_scc0 L_v0")
    def zero_counters():
        E(f"v_lshlrev_b32 v{vTmp}, {cstride}, v{vLane}"); E(f"v_mov_b32 v{vFl}, 0"); E(f"s_mov_b32 s{sT}, {WS_CTR}")
        E(f"buffer_atomic_swap v{vFl}, v{vTmp}, {srd(sWS)}, s{sT} offen sc0")
    E(f"v_readfirstlane_b32 s{sT}, v{vFl}"); E("s_mov_b64 exec, 1"); E("s_nop 2")
    E(f"s_cmp_lg_u32 s{sT}, 0"); E("s_cbranch_scc1 L_live")
    E.c("not seen live yet: claim the job if it is free, otherwise wait for the (running) workgroup that holds it")
    E(f"v_mov_b32 v{vFl}, 1")
    E(f"buffer_atomic_add v{vFl}, off, {srd(sDBG)}, 0 sc0")
    E("s_waitcnt vmcnt(0)"); E(f"v_readfirstlane_b32 s{sT}, v{vFl}"); E("s_nop 3")
    E(f"s_cmp_eq_u32 s{sT}, 0"); E("s_cbranch_scc0 L_flag")
    E("s_mov_b64 exec, -1"); zero_counters(); E("s_mov_b64 exec, 1")
    E("s_waitcnt vmcnt(0)"); E(f"v_mov_b32 v{vFl}, 1")
    E(f"buffer_atomic_or v{vFl}, off, {srd(sDBG)}, 0 offset:4")
    E("s_branch L_live")
    E.label("L_flag")
    E(f"v_mov_b32 v{vFl}, 0")
    E(f"buffer_atomic_or v{vFl}, off, {srd(sDBG)}, 0 offset:4 sc0")
    E("s_waitcnt vmcnt(0)"); E(f"v_readfirstlane_b32 s{sT}, v{vFl}"); E(f"s_sub_u32 s{sSpin}, s{sSpin}, 1"); E("s_cbranch_scc1 L_live"); E("s_nop 2")
    E(f"s_cmp_lg_u32 s{sT}, 0"); E("s_cbranch_scc0 L_flag")
    E.label("L_live")
    if not nolocal:
        E.c("note this workgroup's XCD in the pair's word")
        E(f"s_lshl_b32 s{sT}, 1, s{sXc}"); E(f"v_mov_b32 v{vFl}, s{sT}"); E(f"s_lshl_b32 s{sT}, s{sPair}, {cstride}"); E(f"s_add_u32 s{sT}, s{sT}, {WS_CTR}")
        E(f"buffer_atomic_add v{vFl}, off, {srd(sWS)}, s{sT}")
    E("s_mov_b64 exec, -1")
    E("s_branch L_v0")

    def tree(lo, hi, reg, pre, leaf):
        if lo == hi: leaf(lo); return
        mid = (lo + hi + 1) // 2
        E(f"s_cmp_ge_u32 s{reg}, {mid}"); E(f"s_cbranch_scc1 {pre}{mid}_{hi}")
        tree(lo, mid - 1, reg, pre, leaf)
        E.label(f"{pre}{mid}_{hi}")
        tree(mid, hi, reg, pre, leaf)
    E.label("L_restore")
    def rleaf(j1):
        b = 17 * (j1 - 1)
        E(f"v_accvgpr_read_b32 v{vMx}, a{b+16}")
        for i in range(16): E(f"v_accvgpr_read_b32 v{vS+i}, a{b+i}")
        E(f"v_cmp_neq_f32 vcc, v{vMx}, v{vMO}"); E("s_cbranch_vccz L_restored"); E("s_branch L_oldref")
    tree(1, npf - 1, sJ, "L_r", rleaf)
    E.c("this tile's P used a newer reference max than O holds: bring O up to it")
    E.label("L_oldref")
    E(f"v_sub_f32 v{vTmp}, v{vMx}, v{vMO}"); E(f"v_exp_f32 v{vTmp}, v{vTmp}"); E(f"v_mov_b32 v{vMO}, v{vMx}")
    scale_O(vTmp)
    E("s_branch L_restored")
    for tag in "E":
        E.label(f"L_oldref{tag}")
        E(f"v_sub_f32 v{vTmp}, v{vNM}, v{vMO}"); E(f"v_exp_f32 v{vTmp}, v{vTmp}"); E("s_nop 0")
        scale_O(vTmp)
        E(f"s_branch L_newref{tag}")
    E.label("L_save")
    def sleaf(i1):
        if i1 >= 2:
            for t in save_ops(i1 - 2): E(t)
        E("s_branch L_saved")
    tree(1, npf, sI, "L_s", sleaf)

    E.c("the running row max rose: move the reference up to it")
    for tag, n in (("K", 32),):
        E.label(f"L_rescale{tag}")
        for sw in ("v_permlane32_swap_b32", "v_permlane16_swap_b32"):
            E(f"v_mov_b32 v{vTmp}, v{vMx}"); E("s_nop 1"); E(f"{sw} v{vTmp}, v{vMx}"); E("s_nop 1"); E(f"v_max_f32 v{vMx}, v{vMx}, v{vTmp}")
        E(f"v_max_f32 v{vTmp}, 0, v{vMx}"); E(f"v_max_f32 v{vT2}, s{sFlo}, v{vMx}")
        E(f"v_exp_f32 v{vTmp}, -v{vTmp}")
        E(f"s_mov_b32 s{sThr}, {hex(f32bits(T))}"); E(f"s_mov_b32 s{sFlo}, 0")
        for r in [vNM, vNM + 2] + [vS + i for i in range(0, n, 2)]:
            E(f"v_pk_add_f32 {vr(r,2)}, {vr(r,2)}, {vr(vT2,2)} op_sel_hi:[1,0] neg_lo:[0,1] neg_hi:[0,1]")
        E(f"v_pk_mul_f32 {vr(vL,2)}, {vr(vL,2)}, {vr(vTmp,2)} op_sel_hi:[1,0]")
        if tag != "K": scale_O(vTmp)
        E(f"s_branch L_rescaled{tag}")

    E.c("workgroup 0, wave 0: zero the counters in d_ws, then raise the flag in d_debug")
    E.label("L_hookK")
    E(f"s_cmp_eq_u32 s{sI}, 1"); E("s_cbranch_scc1 L_hk1")
    E(f"s_cmp_eq_u32 s{sI}, 3"); E("s_cbranch_scc0 L_k1")
    E("s_mov_b64 exec, 1"); E(f"v_mov_b32 v{vFl}, 1")
    E(f"buffer_atomic_or v{vFl}, off, {srd(sDBG)}, 0 offset:4")
    E("s_mov_b64 exec, -1"); E("s_branch L_k1")
    E.label("L_hk1")
    E(f"v_readfirstlane_b32 s{sT}, v{vFl}"); E("s_nop 3")
    E(f"s_cmp_eq_u32 s{sT}, 0"); E(f"s_cselect_b32 s{sHk}, 3, 0"); E("s_cbranch_scc0 L_k1")
    zero_counters()
    E("s_branch L_k1")

    code = pro.text() + kbody + vbody + hbody + [x["t"] for x in E.I if "mark" not in x] + ["L_codeend:"]
    code = "\n".join(code).split("\n")
    if nocomp:
        kill = ("v_fma_mix", "v_cvt_pk", "v_mfma", "v_exp", "v_pk_", "v_max3", "ds_write2", "ds_write_b128", "ds_read_b128", "v_accvgpr_write_b32 a1", "v_accvgpr_read_b32 v9", "v_accvgpr_read_b32 v10", "s_cbranch_vccnz L_resc")
        a0 = code.index("L_K:"); a1 = code.index("L_round:"); c2 = []
        for i, l in enumerate(code):
            if a0 < i < a1:
                if l.strip().startswith(kill): continue
                if "lgkmcnt" in l:
                    l = "    s_waitcnt lgkmcnt(0)"
                    if c2[-1] == l: continue
            c2.append(l)
        code = c2
    if abl:
        a0 = code.index("L_last:"); a1 = code.index("L_merged:"); c2 = []
        for i, l in enumerate(code):
            if a0 < i < a1:
                if abl & 1 and "buffer_store" in l: continue
                if abl & 2 and "buffer_load" in l: continue
                if "s_cbranch_scc1 L_miss" in l: continue
                if abl & 2 and "vmcnt" in l: l = "    s_waitcnt vmcnt(0)"
            c2.append(l)
        code = c2
    if align: code = align_pass(code)
    if not nocomp and not abl: hazard_check(code)
    DOC = """;
;  Three workgroups of a pair hand their partial O (bf16) and (m, l) to the fourth through d_ws: data, wait, header."""
    L = [HDR.rstrip(), f"; @launch grid=(256,1,1) block=(256,1,1) lds={LDS_TOTAL}", DOC, '.amdgcn_target "amdgcn-amd-amdhsa--gfx950"',
         ".text", f".globl {NAME}_kernel", ".p2align 8", f".type {NAME}_kernel,@function", f"{NAME}_kernel:"]
    L += code
    L += ['.section .rodata,"a"', ".p2align 6", f".amdhsa_kernel {NAME}_kernel",
          "  .amdhsa_next_free_vgpr 512", "  .amdhsa_next_free_sgpr 102", "  .amdhsa_accum_offset 256",
          "  .amdhsa_group_segment_fixed_size 0", "  .amdhsa_kernarg_size 80", "  .amdhsa_user_sgpr_count 2",
          "  .amdhsa_user_sgpr_kernarg_segment_ptr 1", "  .amdhsa_system_sgpr_workgroup_id_x 1",
          "  .amdhsa_float_denorm_mode_32 3", "  .amdhsa_float_denorm_mode_16_64 3", ".end_amdhsa_kernel"]
    open(path, "w").write("\n".join(L) + "\n")

if __name__ == "__main__":
    import argparse
    ap = argparse.ArgumentParser()
    ap.add_argument("out")
    for n, t, d in (("AL", int, 7), ("np", int, 14), ("cs", int, 8), ("nK1", int, 7), ("vtail", float, 0.97), ("T", float, 0.0), ("TM", float, 32.0),
                    ("pfcode", int, 8), ("ct", float, 0.9), ("ct0", float, 0.3), ("hv", int, 4), ("hk", float, 0.9), ("hp", int, 4), ("hq", float, 0.9), ("npre", int, 6), ("hst", int, 0), ("nocomp", int, 0), ("abl", int, 0), ("capC", str, None), ("uth", int, 4), ("grp", int, 0), ("flagf", str, "sc0 sc1"), ("capF", str, "7"), ("capS", str, "45"), ("tabs", str, "edcbba0001122345,cbbaaa0000112223,aaa0000000011111"), ("ms", str, "4,10,13"), ("shards", int, 8), ("shb", int, 3), ("ldf", str, "sc0 sc1"), ("wb", int, 0), ("wto", int, 0), ("nolocal", int, 1), ("pb", int, 0), ("jr", int, 3), ("pa", int, 0), ("pw", int, 1), ("noearly", int, 0), ("diags", int, 0), ("diagm", int, 0), ("p2f", float, -1), ("jo", int, 15), ("chk", int, 0), ("apoll", int, 0), ("gray", int, 0), ("ua", int, 0), ("det", int, 0), ("prog", int, 1), ("pbar", int, 0), ("rtmap", int, 0), ("fullo", int, 0), ("tw", int, 0), ("alt", int, 0), ("gen", int, 1), ("tcol", int, 2), ("early", int, 1), ("diagx", int, 0), ("diagw", int, 0), ("twf", str, "nt"), ("om", str, "kkkk"), ("cols", str, "1000,800,4000,2000,100,240,4b0,8044"),
                    ("nt", str, "nt"), ("q", str, ""), ("smf", str, "nt"), ("outf", str, "sc0 sc1"), ("pubf", str, "sc0 sc1"),
                    ("cap", str, "55555556"), ("capV", str, "5555555555555556"), ("capH", str, None), ("capP", str, "8")):
        ap.add_argument("--" + n, type=t, default=d)
    ap.add_argument("--mix", type=lambda x: int(x, 0), default=0)
    for n in ("stamps", "it", "dry", "noalign", "pollmax"): ap.add_argument("--" + n, action="store_true")
    a = ap.parse_args()
    gen(a.out, AL=a.AL, npf=a.np, stamps=a.stamps, nt=a.nt, smf=a.smf, qflag=a.q, cstride=a.cs, T=a.T, TM=a.TM, mix=a.mix, nK1=a.nK1, vtail=a.vtail,
        itst=a.it, outf=a.outf, pubf=a.pubf, cap=a.cap, capV=a.capV, capH=a.capH, capP=a.capP, pfcode=a.pfcode, ctspan=a.ct, ct0=a.ct0,
        hv=a.hv, hk=a.hk, hp=a.hp, hq=a.hq, npre=a.npre, dry=a.dry, hst=a.hst, align=not a.noalign, nocomp=a.nocomp, abl=a.abl, capC=a.capC, uth=a.uth, pollmax=a.pollmax, grp=a.grp, flagf=a.flagf, capF=a.capF, capS=a.capS, tabs=[[(int(c) if c.isdigit() else -(ord(c) - 96)) for c in t] for t in a.tabs.split(',')], ms=tuple(int(x) for x in a.ms.split(',') if x), shards=a.shards, shb=a.shb, ldf=a.ldf, wb=a.wb, wto=a.wto, nolocal=a.nolocal, pb=a.pb, jr=a.jr, pa=a.pa, pw=a.pw, noearly=a.noearly, diags=a.diags, diagm=a.diagm, p2f=a.p2f, jo=a.jo, chk=a.chk, apoll=a.apoll, gray=a.gray, ua=a.ua, det=a.det, prog=a.prog, pbar=a.pbar, rtmap=a.rtmap, fullo=a.fullo, tw=a.tw, alt=a.alt, gen_=a.gen, tcol=a.tcol, early=a.early, diagx=a.diagx, diagw=a.diagw, twf=a.twf, om=a.om.replace('k', '-'), cols=[int(x, 16) << 12 for x in a.cols.split(',')])
```

```python
import sys, struct, math, re
NAME = "standalone__kv_cache_quant_int4_int2_kv_with_per_channel_or_per_token_scales__sampling"
HDR = open("cdna_kernels/" + NAME + ".s.ref").read().split("; Override launch")[0]

def f32bits(x):
    return struct.unpack("<I", struct.pack("<f", x))[0]

def cost_of(s):
    op = s.split()[0]
    if op.startswith("v_mfma"): return 8
    if op in ("v_exp_f32", "v_rcp_f32"): return 8
    if op in ("ds_write_b128", "ds_write2_b64"): return 28
    if op.startswith("ds_write"): return 20
    if op == "s_barrier": return 70
    if op == "s_nop": return 4 * (int(s.split()[1]) + 1)
    return 4

class Stream:
    def __init__(self): self.I = []; self.lock = False; self.nds = 0
    def __call__(self, s, cost=None):
        self.I.append(dict(t="    " + s, c=(cost_of(s) if cost is None else cost), ins=not self.lock))
        if s.startswith("ds_"): self.nds += 1
        return self.nds
    def waitds(self, i):
        n = self.nds - i; assert 0 <= n <= 15
        self(f"s_waitcnt lgkmcnt({n})")
    def label(self, s): self.I.append(dict(t=s + ":", c=0, ins=not self.lock))
    def c(self, s): self.I.append(dict(t="    ; " + s, c=0, ins=not self.lock))
    def mark(self, kind, k=None): self.I.append(dict(mark=kind, k=k, c=0, ins=not self.lock))
    def text(self): return [x["t"] for x in self.I]

INLINE = re.compile(r"^-?(\d+|0x[0-9a-f]+)$")
def has_literal(ops):
    for o in ops:
        if INLINE.match(o):
            v = int(o, 0)
            if not -16 <= v <= 64 and (v & 0x7fffffff) not in (0x3f000000, 0x3f800000, 0x40000000, 0x40800000): return True
        elif re.match(r"^L_\w+-L_\w+$", o): return True
    return False
VOP12 = ("v_mov_b32", "v_exp_f32", "v_rcp_f32", "v_add_f32", "v_sub_f32", "v_mul_f32", "v_max_f32", "v_min_f32", "v_lshlrev_b32", "v_lshrrev_b32", "v_and_b32",
         "v_xor_b32", "v_add_u32", "v_mul_u32_u24", "v_min_u32", "v_max_u32", "v_fmac_f32", "v_cvt_f32_u32", "v_cvt_f32_i32", "v_not_b32")
def isize(line):
    s = line.split(";")[0].strip()
    if not s or s.endswith(":") or s.startswith("."): return 0, None
    op, _, rest = s.partition(" ")
    ops = [o.strip() for o in rest.split(",")] if rest else []
    if op.startswith(("s_load", "s_memrealtime", "ds_", "buffer_")): return 8, None
    if op.startswith("s_"):
        if op in ("s_waitcnt", "s_nop", "s_barrier", "s_endpgm", "s_branch", "s_getreg_b32") or op.startswith("s_cbranch"): return 4, None
        return (8 if has_literal(ops) else 4), None
    if op in ("v_cndmask_b32", "v_readfirstlane_b32", "v_permlane32_swap_b32", "v_permlane16_swap_b32"): return 4, None
    if op.startswith("v_cmp"):
        return (4 + 4 * has_literal(ops[1:]) if ops[0] == "vcc" else 8), None
    if op in VOP12:
        if any(o.startswith("-v") for o in ops): return 8, "valu"
        if has_literal(ops[1:]): return 8, "valu"
        return 4, "grow"
    if op.startswith("v_mfma"): return 8, None
    return 8, "valu"
def align_pass(L, nops=False):
    out = []; par = 0; last = None
    for i, line in enumerate(L):
        sz, kind = isize(line)
        if sz == 8 and par and last is not None:
            j = last; op = out[j].split()[0]
            out[j] = out[j].replace(op, op + "_e64", 1); par = 0
        elif sz == 8 and par and nops:
            n = 0
            for l2 in L[i:]:
                s2, k2 = isize(l2)
                if s2 == 4: break
                n += k2 == "valu"
            if n >= 7: out.append("    s_nop 0"); par = 0
        if sz == 8: last = None
        if sz == 4:
            par ^= 1
            if kind == "grow": last = len(out)
        out.append(line)
    return out

def regs_of(tok):
    m = re.match(r"^-?v\[(\d+):(\d+)\]$", tok)
    if m: return set(range(int(m.group(1)), int(m.group(2)) + 1))
    m = re.match(r"^-?v(\d+)$", tok)
    return {int(m.group(1))} if m else set()
def hazard_check(L):
    hist = []
    for line in L:
        s = line.split(";")[0].strip()
        if not s or s.endswith(":") or s.startswith("."): continue
        op, _, rest = s.partition(" ")
        toks = [o.strip().split(" ")[0] for o in rest.split(",")] if rest else []
        if op in ("s_branch", "s_endpgm"): hist = []; continue
        st = int(toks[0]) + 1 if op == "s_nop" else 1
        allr = [regs_of(t) for t in toks]
        isv = op.startswith("v_"); mf = op.startswith("v_mfma")
        store = op.startswith(("ds_write", "buffer_store", "buffer_atomic"))
        dst = set() if (store or not allr or op.startswith(("v_cmp", "v_readfirstlane"))) else allr[0]
        src = set().union(*(allr if store or op.startswith(("v_cmp", "v_permlane", "v_fmac")) else allr[1:])) if allr else set()
        if op.startswith("v_permlane"): dst = src
        d = 0
        for (pop, pdst, psrcC, pst) in reversed(hist):
            need = 0
            if pop.startswith("v_mfma"):
                if mf:
                    if pdst & (allr[1] | allr[2]): need = 8
                    elif pdst & allr[3] and pdst != allr[3]: need = 6
                elif pdst & (src | dst): need = 8
                elif isv and psrcC & dst: need = 3
            elif pop.startswith("v_"):
                if mf and pdst & src: need = 2
                if (op.startswith("v_permlane") or op.endswith("_dpp")) and pdst & src: need = 2
                if op == "v_readfirstlane_b32" and pdst & src: need = 1
                if pop.split("_e64")[0] in ("v_exp_f32", "v_rcp_f32") and isv and op.split("_e64")[0] not in ("v_exp_f32", "v_rcp_f32") and pdst & src: need = max(need, 1)
                if pop.startswith("v_dot") and op != pop and pdst & (src | dst): need = 3
            elif pop.startswith("buffer_store_dwordx4") and isv and psrcC & dst: need = 2
            assert d >= need, f"hazard: {pop} -> {s} distance {d} < {need}"
            d += pst
            if d >= 8: break
        hist.append((op, dst, (allr[3] if mf else (allr[0] if op.startswith("buffer_store") else set())), st))

def gen(path, AL=8, npf=14, stamps=False, nt="nt", smf="nt", qflag="", cstride=8, T=8.0, TM=32.0, mix=0x31031031, nK1=9, vtail=1.0,
        itst=False, outf="sc0 sc1", pubf="sc0 sc1", cap="56", capV="556", capH=None, capP="8", pfcode=4, ctspan=0.95, ct0=0.15,
        hv=4, hk=0.9, hp=4, hq=0.9, npre=6, dry=False, hst=0, align=True, nocomp=0, abl=0, capC=None, uth=4, pollmax=False, grp=0, flagf='', capF='7', capS='45', tabs=None, ms=(5, 11), shards=4, shb=3, cols=None, ldf='sc0 sc1', wb=False, wto=0, nolocal=False, pb=100, jr=3, pa=1, pw=1, noearly=0, diags=0, diagm=0, p2f=-1, jo=15, om='----', chk=-1, apoll=0, gray=0, ua=0, det=0, prog=1, pbar=0, rtmap=0, fullo=1, tw=0, twf='nt', alt=0, gen_=1, tcol=2, early=1, diagx=0, diagw=0):
    npf = 16
    capn = lambda c, k: int(c[k % len(c)], 16) - 1
    KROW = 288; JS = 576; OS = 2320
    TABW = 16 * 256
    LDS_MB = 0; LDS_SC = 256; LDS_TAB = 1536; LDS_K = LDS_TAB + 4 * TABW; LDS_V = LDS_K + 128 * KROW
    LDS_TOTAL = LDS_V + 16 * OS
    assert LDS_K % 256 == 0 and LDS_K + 128 * KROW < 65536 and LDS_TAB % 512 == 0 and TABW % 512 == 0
    WS_SLOT = 1 << 20; WS_CTR = 16 << 20; FLAG = 0x100
    SPIN = 1 << 20
    PF = 8
    vLane, vOff, vMb, vKR, vSW, vSR, vVW, vVR, vTK, vTV, vL4, vLin = range(12)
    vHd = 12
    vCk, vFl = 14, 15
    vL = 16
    vT2 = 18
    vKS, vKC = 20, 24; vKSr, vKZr, vVSr, vVZr = 28, 30, 32, 33
    vTmp = 34
    vMx, vAt, vMO = 37, 38, 39
    vKP = 40; vVP = 48; vO = 64; vS = 96; vRing = 128; vQ = 192; vSt = 208; NST = 10
    vNM = 248; vKW = 252
    vSc = vS + 16
    vAo = vL
    sX, sY, sSM, sQ, sDBG, sWS, sOUT = 8, 12, 16, 20, 24, 28, 32
    sKb, sVb = 36, 38
    sPair, sSplit, sI, sJ, sG, sT, sT2, sFlo, sThr, sDoff, sCoff, sIni, sKsl, sVsl, sWb, sPend, sSpin, sW0, sHk, sMode = range(40, 60)
    sAt = 49; sShard = 82; sCnt = 83; sXc = 71; sInc = 70
    sO = 60
    sK1, sK2 = 64, 66
    sCw = 72
    sPo = 76
    sWave = 3
    srd = lambda r: f"s[{r}:{r+3}]"
    vr = lambda r, n: f"v[{r}:{r+n-1}]"
    def item_text(k):
        return f"buffer_load_dwordx4 {vr(vRing+4*k,4)}, v{vOff}, {srd(sX)}, s{sO + k//4} offen offset:{(k%4)*1024} {nt}"
    sXm = 101 if not stamps else 59 + 40
    sXm = 2
    def unit_offs(A, idx, slot):
        if idx is None: A(f"s_mov_b32 s{sO}, s{sXm}")
        else:
            if gray == 1: A(f"s_lshr_b32 s{sO}, s{idx}, 1"); A(f"s_xor_b32 s{sO}, s{sO}, s{idx}"); A(f"s_lshl_b32 s{sO}, s{sO}, 16")
            elif gray == 2: A(f"s_brev_b32 s{sO}, s{idx}"); A(f"s_lshr_b32 s{sO}, s{sO}, 12")
            else: A(f"s_lshl_b32 s{sO}, s{idx}, 16")
            A(f"s_xor_b32 s{sO}, s{sO}, s{sXm}")
        A(f"s_add_u32 s{sO+1}, s{sO}, 4096"); A(f"s_xor_b32 s{sO+2}, s{sO}, 0x4000"); A(f"s_xor_b32 s{sO+3}, s{sO+1}, 0x4000")
        if slot is not None: A(f"s_bfe_u32 s{slot}, s{sO}, 0xc0008")
    def set_base(A, b, b2=None):
        if b2 is None: b2 = b
        A(f"s_mov_b64 s[{sX}:{sX+1}], s[{b}:{b+1}]")
    A = Stream()
    A("s_cmp_ge_u32 s2, 256"); A("s_cbranch_scc1 L_end")
    if stamps: A("s_memrealtime s[84:85]"); A("s_mov_b32 s101, 0")
    if diags or diagx: A("s_memrealtime s[84:85]")
    A("s_load_dwordx16 s[68:83], s[0:1], 0")
    A("s_load_dwordx4 s[4:7], s[0:1], 64")
    if alt: A("s_load_dwordx8 s[84:91], s[0:1], 80")
    if pfcode:
        A.c("pull this kernel's code into L2 with strided loads (speed only; the values are unused)")
        A("s_getpc_b64 s[92:93]"); A("s_and_b32 s92, s92, 0xffffff00"); A("s_mov_b32 s94, L_codeend-L_pf"); A("s_mov_b32 s95, 0x20000")
        A.label("L_pf")
        A(f"v_lshlrev_b32 v{vTmp}, 7, v0")
        A(f"s_lshr_b32 s{sT2}, s2, 3"); A(f"s_and_b32 s{sT2}, s{sT2}, {pfcode-1}"); A(f"s_cselect_b32 s94, 0, s94")
        A(f"buffer_load_dword v{vTmp}, v{vTmp}, s[92:95], 0 offen")
    A("v_lshrrev_b32 v1, 6, v0")
    A(f"v_and_b32 v{vLane}, 63, v0")
    A(f"v_readfirstlane_b32 s{sWave}, v1")
    A.c("workgroup id -> (pair, split) and the order in which it walks its token groups: a bijection (placement affects speed only)")
    for i, c in enumerate(cols):
        A(f"s_bitcmp1_b32 s2, {i}"); A(f"s_cselect_b32 s{sT if i else sT2}, {hex(c)}, 0")
        if i: A(f"s_xor_b32 s{sT2}, s{sT2}, s{sT}")
    if mix:
        A(f"s_lshr_b32 s{sT}, s2, 3"); A(f"s_and_b32 s{sT}, s{sT}, 7"); A(f"s_lshl_b32 s{sT}, s{sT}, 2")
        A(f"s_lshr_b32 s{sT}, {hex(mix)}, s{sT}"); A(f"s_and_b32 s{sT}, s{sT}, 3"); A(f"s_and_b32 s{sT}, s{sT}, s2")
        A(f"s_bcnt1_i32_b32 s{sT}, s{sT}"); A(f"s_and_b32 s{sT}, s{sT}, 1"); A(f"s_lshl_b32 s{sT}, s{sT}, 22"); A(f"s_xor_b32 s{sT2}, s{sT2}, s{sT}")
    def idmap(w):
        v = 0
        for i, c in enumerate(cols):
            if w >> i & 1: v ^= c
        if mix: v ^= (bin((mix >> (4 * ((w >> 3) & 7))) & 3 & w).count("1") & 1) << 22
        return v
    assert len(set(idmap(w) >> 20 for w in range(256))) == 256 and all(idmap(w) & ~0xfff4000 == 0 for w in range(256)) and idmap(0) == 0
    if rtmap:
        A("s_waitcnt lgkmcnt(0)"); A(f"s_lshl_b32 s{sT}, s2, 2"); A(f"s_add_u32 s90, s6, 0x24000000"); A("s_addc_u32 s91, s7, 0")
        A(f"s_load_dword s{sT2}, s[90:91], s{sT}"); A("s_waitcnt lgkmcnt(0)")
    A(f"s_mov_b32 s{sMode}, s2")
    A(f"s_lshr_b32 s{sPair}, s{sT2}, 22"); A(f"s_bfe_u32 s{sSplit}, s{sT2}, 0x20014"); A(f"s_and_b32 s{sXm}, s{sT2}, 0x3fffff")
    c_, h_, m_, g_ = vKS, vKS + 1, vKS + 2, vKS + 3
    t0, t1, vQo = vKC, vKC + 1, vKC + 2
    A.c("only what the first K rows need comes before them")
    A(f"v_lshlrev_b32 v{vLin}, 4, v{vLane}")
    A(f"s_and_b32 s{sT}, s{sWave}, 1"); A(f"s_lshr_b32 s{sT2}, s{sWave}, 1"); A(f"s_lshl2_add_u32 s{sWb}, s{sT2}, s{sT}"); A(f"s_lshl_b32 s{sWb}, s{sWb}, 13")
    A(f"v_add_u32 v{vOff}, s{sWb}, v{vLin}")
    A(f"s_mov_b32 s{sX+2}, {0 if dry else 0x400000}"); A(f"s_mov_b32 s{sX+3}, 0x20000")
    unit_offs(A, None, None)
    A(f"s_lshl_b32 s{sT}, s{sPair}, 22")
    A("s_waitcnt lgkmcnt(0)")
    def mk(r, p): A(f"s_add_u32 s{r}, s{p}, s{sPend}"); A(f"s_addc_u32 s{r+1}, s{p+1}, 0")
    if alt: A(f"s_cmp_ge_u32 s{sPair}, s88"); A("s_cselect_b64 s[70:71], s[84:85], s[70:71]"); A("s_cselect_b64 s[72:73], s[86:87], s[72:73]")
    A(f"s_add_u32 s{sX}, s70, s{sT}"); A(f"s_addc_u32 s{sX+1}, s71, 0")
    for k in range(npre): A(item_text(k))
    A(f"s_add_u32 s{sVb}, s72, s{sT}"); A(f"s_addc_u32 s{sVb+1}, s73, 0")
    A(f"s_lshl_b32 s{sG}, s{sWave}, 12"); A(f"s_add_u32 m0, s{sG}, {LDS_TAB}"); assert TABW == 4096
    for r in (sSM, sQ, sOUT): A(f"s_mov_b32 s{r+2}, 0x4000"); A(f"s_mov_b32 s{r+3}, 0x20000")
    A(f"s_lshl_b32 s{sPend}, s{sPair}, 14")
    A.c("wave w streams scale/zero array w (ks, kz, vs, vz) into the LDS table")
    A(f"s_cmp_eq_u32 s{sWave}, 1"); A(f"s_cselect_b64 s[{sSM}:{sSM+1}], s[76:77], s[74:75]")
    A(f"s_cmp_eq_u32 s{sWave}, 2"); A(f"s_cselect_b64 s[{sSM}:{sSM+1}], s[78:79], s[{sSM}:{sSM+1}]")
    A(f"s_cmp_eq_u32 s{sWave}, 3"); A(f"s_cselect_b64 s[{sSM}:{sSM+1}], s[80:81], s[{sSM}:{sSM+1}]")
    mk(sSM, sSM)
    A(f"s_lshl_b32 s{sT}, s{sSplit}, 12")
    nT = (npf + 3) // 4
    for u in range(nT):
        rows = min(4, npf - 4 * u)
        if rows < 4: A(f"s_bfm_b64 exec, {16*rows}, 0")
        A(f"buffer_load_dwordx4 v{vLin}, {srd(sSM)}, s{sT} offen offset:{u*1024} {smf} lds")
        if rows < 4: A("s_mov_b64 exec, -1")
    mk(sQ, 68)
    A(f"v_and_b32 v{m_}, 15, v{vLane}"); A(f"v_lshrrev_b32 v{g_}, 4, v{vLane}")
    A(f"v_lshlrev_b32 v{vQo}, 8, v{m_}"); A(f"v_lshl_add_u32 v{vQo}, v{g_}, 4, v{vQo}")
    A(f"s_lshl_b32 s{sT}, s{sWave}, 12")
    for s4 in range(4): A(f"buffer_load_dwordx4 {vr(vQ+4*s4,4)}, v{vQo}, {srd(sQ)}, s{sT} offen offset:{s4*64} {qflag}")
    A.c("mark the header of this wave's hand-off slot empty")
    for i in range(2): A(f"v_mov_b32 v{vVP+i}, -1")
    A(f"v_lshlrev_b32 v{vVP+2}, 3, v{vLane}")
    A(f"s_lshl2_add_u32 s{sT2}, s{sPair}, s{sWave}"); A(f"s_lshl2_add_u32 s{sT2}, s{sT2}, s{sSplit}")
    A(f"s_lshl_b32 s{sT2}, s{sT2}, 13"); A(f"s_add_u32 s{sT2}, s{sT2}, {WS_SLOT + 4096}")
    A(f"s_mov_b32 s{sWS+2}, 0x40000000"); A(f"s_mov_b32 s{sWS+3}, 0x20000")
    A(f"s_mov_b32 s{sDBG+2}, 256"); A(f"s_mov_b32 s{sDBG+3}, 0x20000"); A(f"v_mov_b32 v{vFl}, 1")
    A(f"s_mov_b64 s[{sWS}:{sWS+1}], s[6:7]")
    A("s_mov_b64 exec, 0xffff")
    A(f"buffer_store_dwordx2 {vr(vVP,2)}, v{vVP+2}, {srd(sWS)}, s{sT2} offen sc0 sc1")
    A("s_mov_b64 exec, -1")
    A.c("workgroup 0 claims the job of zeroing the counters in d_ws (any workgroup takes it over later if nobody has)")
    A(f"s_mov_b64 s[{sDBG}:{sDBG+1}], s[4:5]")
    A(f"s_cmp_eq_u32 s{sWave}, 0"); A(f"s_cselect_b32 s{sW0}, 1, 0")
    A(f"s_or_b32 s{sT}, s{sMode}, {'1' if noearly else 's%d' % sWave}"); A(f"s_cselect_b32 s{sHk}, 0, 3"); A("s_cbranch_scc1 L_noel")
    A("s_mov_b64 exec, 1")
    A(f"buffer_atomic_add v{vFl}, off, {srd(sDBG)}, 0 sc0")
    A("s_mov_b64 exec, -1")
    A.label("L_noel")
    mk(sOUT, 82)
    A(f"v_and_b32 v{c_}, 31, v{vLane}"); A(f"v_lshrrev_b32 v{h_}, 5, v{vLane}"); A(f"v_lshlrev_b32 v{vL4}, 2, v{vLane}")
    A(f"s_bfe_u32 s{sVsl}, s{sO}, 0xc0008"); A(f"s_andn2_b32 s{sKsl}, s{sVsl}, 255")
    A(f"v_lshlrev_b32 v{vTK}, 3, v{c_}")
    A(f"v_lshrrev_b32 v{vTV}, 4, v{c_}"); A(f"v_lshlrev_b32 v{vTV}, 5, v{vTV}")
    A(f"v_and_b32 v{t0}, 15, v{c_}"); A(f"v_add_lshl_u32 v{vTV}, v{vTV}, v{t0}, 1")
    A(f"s_lshr_b32 s{sT}, s{sWb}, 8"); A(f"v_add_u32 v{vTV}, s{sT}, v{vTV}")
    A(f"s_lshr_b32 s{sT}, s{sWave}, 1"); A(f"s_and_b32 s{sT2}, s{sWave}, 1")
    A(f"s_mul_i32 s{sT}, s{sT}, {32*KROW}"); A(f"s_mul_i32 s{sT2}, s{sT2}, {8*KROW}"); A(f"s_add_u32 s{sT}, s{sT}, s{sT2}"); A(f"s_add_u32 s{sT}, s{sT}, {LDS_K}")
    A(f"v_mul_u32_u24 v{vKW}, {4*KROW}, v{h_}"); A(f"v_lshl_add_u32 v{vKW}, v{c_}, 3, v{vKW}"); A(f"v_add_u32 v{vKW}, s{sT}, v{vKW}")
    for u, rows in ((1, 16), (2, 64), (3, 80)): A(f"v_add_u32 v{vKW+u}, {rows*KROW}, v{vKW}")
    A(f"v_mul_u32_u24 v{vKR}, {KROW}, v{m_}"); A(f"v_lshl_add_u32 v{vKR}, v{g_}, 4, v{vKR}")
    A(f"s_mul_i32 s{sT}, s{sWave}, {2*OS}"); A(f"s_add_u32 s{sT}, s{sT}, {LDS_V}")
    A(f"v_mul_u32_u24 v{vVW}, {OS}, v{h_}"); A(f"v_lshl_add_u32 v{vVW}, v{c_}, 4, v{vVW}"); A(f"v_add_u32 v{vVW}, s{sT}, v{vVW}")
    A(f"v_mul_u32_u24 v{vVR}, {OS}, v{g_}"); A(f"v_and_b32 v{t0}, 3, v{m_}"); A(f"v_mul_u32_u24 v{t0}, {JS}, v{t0}")
    A(f"v_lshrrev_b32 v{t1}, 2, v{m_}"); A(f"v_lshlrev_b32 v{t1}, 5, v{t1}")
    A(f"v_add3_u32 v{vVR}, v{vVR}, v{t0}, v{t1}"); A(f"v_add_u32 v{vVR}, {LDS_V}, v{vVR}")
    A(f"s_lshl_b32 s{sT}, s{sWave}, 8"); A(f"s_add_u32 s{sT2}, s{sT}, {LDS_SC}")
    A(f"v_and_b32 v{vSW}, 1, v{c_}"); A(f"v_lshlrev_b32 v{vSW}, 7, v{vSW}")
    A(f"v_lshrrev_b32 v{t0}, 1, v{c_}"); A(f"v_lshl_add_u32 v{vSW}, v{t0}, 3, v{vSW}"); A(f"v_add_u32 v{vSW}, s{sT2}, v{vSW}")
    A(f"v_lshlrev_b32 v{vSR}, 7, v{h_}"); A(f"v_add_u32 v{vSR}, s{sT2}, v{vSR}")
    A(f"v_mov_b32 v{vMb}, {LDS_MB}")
    A(f"s_mov_b32 s{sCoff}, {WS_CTR}")
    cc = math.log2(math.e) / math.sqrt(128.0)
    for i in range(2):
        A(f"s_mov_b32 s{sK1+i}, {hex(f32bits(cc if gen_ else cc * 2.0**24))}")
        if not gen_: A(f"s_mov_b32 s{sK2+i}, {hex(f32bits(-2.0**-24))}")
    A.c("the first tile always takes the rescale path, which sets the reference to that tile's true row max")
    A(f"s_mov_b32 s{sThr}, 0xff800000"); A(f"s_mov_b32 s{sFlo}, 0xff800000")
    for r in (sAt, sMode, sCnt, sI, sJ): A(f"s_mov_b32 s{r}, 0")
    A.c("a count is shared by 8 pairs: low byte = arrivals so far, above it a 3-bit arrival field per pair")
    fb = sorted((c >> 22).bit_length() - 1 for c in cols[:3]); assert all(bin(c >> 22).count("1") == 1 for c in cols[:3])
    sb = [x for x in range(6) if x not in fb]
    for dst, bits in ((sXc, fb), (sShard, sb)):
        for n, x in enumerate(reversed(bits)):
            A(f"s_bfe_u32 s{sT if n else dst}, s{sPair}, {hex(0x10000 | x)}")
            if n: A(f"s_lshl1_add_u32 s{dst}, s{dst}, s{sT}")
    A(f"s_mul_i32 s{sXc}, s{sXc}, 3"); A(f"s_add_u32 s{sXc}, s{sXc}, 8"); A(f"s_lshl_b32 s{sInc}, 1, s{sXc}"); A(f"s_add_u32 s{sInc}, s{sInc}, 1")
    if not nolocal: A(f"s_getreg_b32 s{sXc}, hwreg(HW_REG_XCC_ID, 0, 3)"); A(f"s_mul_i32 s{sXc}, s{sXc}, 3"); A(f"s_add_u32 s{sXc}, s{sXc}, 8")
    A(f"s_mov_b32 s{sSpin}, {SPIN}")
    for i in range(32): A(f"v_mov_b32 v{vO+i}, 0")
    for i in range(4): A(f"v_mov_b32 v{vNM+i}, 0")
    A(f"v_mov_b32 v{vMO}, 0x7149f2ca"); A(f"v_mov_b32 v{vL}, 0"); A(f"v_mov_b32 v{vL+1}, 0"); A(f"v_mov_b32 v{vAt}, 0")
    def ktab_reads(S):
        S(f"v_add_u32 v{vTmp+2}, s{sKsl}, v{vTK}")
        S(f"ds_read_b64 {vr(vKSr,2)}, v{vTmp+2} offset:{LDS_TAB}"); S(f"ds_read_b64 {vr(vKZr,2)}, v{vTmp+2} offset:{LDS_TAB+TABW}")
    def vtab_reads(S):
        S(f"v_xor_b32 v{vTmp+2}, s{sVsl}, v{vTV}")
        S(f"ds_read_u16 v{vVSr}, v{vTmp+2} offset:{LDS_TAB+2*TABW}"); S(f"ds_read_u16 v{vVZr}, v{vTmp+2} offset:{LDS_TAB+3*TABW}")
    def prep_v(S):
        S.c("V: S = vs, C = -vz*vs per token, broadcast through LDS" if gen_ else "V: S = vs*2^24, C = -vz*vs per token, broadcast through LDS")
        S(f"v_lshlrev_b32 v{vT2}, 16, v{vVSr}"); S(f"v_lshlrev_b32 v{vT2+1}, 16, v{vVZr}")
        S(f"v_mul_f32 v{vT2+1}, -v{vT2+1}, v{vT2}")
        if not gen_: S(f"v_mul_f32 v{vT2}, 0x4b800000, v{vT2}")
        S(f"ds_write_b64 v{vSW}, {vr(vT2,2)}")
    def prep_k(S):
        S.c("K: S = ks*c, C = -kz*ks*c per channel, c = log2(e)/sqrt(128)" if gen_ else "K: S = ks*c*2^24, C = -kz*ks*c per channel, c = log2(e)/sqrt(128) (the int code is read as an f16 subnormal, code*2^-24)")
        for p in range(2): S(f"v_lshlrev_b32 v{vKS+2*p}, 16, v{vKSr+p}"); S(f"v_lshlrev_b32 v{vKC+2*p}, 16, v{vKZr+p}")
        for p in range(2): S(f"v_and_b32 v{vKS+2*p+1}, 0xffff0000, v{vKSr+p}"); S(f"v_and_b32 v{vKC+2*p+1}, 0xffff0000, v{vKZr+p}")
        for p in range(2): S(f"v_pk_mul_f32 {vr(vKS+2*p,2)}, {vr(vKS+2*p,2)}, s[{sK1}:{sK1+1}]")
        if gen_:
            for p in range(2): S(f"v_pk_mul_f32 {vr(vKC+2*p,2)}, {vr(vKC+2*p,2)}, {vr(vKS+2*p,2)} neg_lo:[1,0] neg_hi:[1,0]")
        else:
            for p in range(2): S(f"v_pk_mul_f32 {vr(vKC+2*p,2)}, {vr(vKC+2*p,2)}, s[{sK2}:{sK2+1}]")
            for p in range(2): S(f"v_pk_mul_f32 {vr(vKC+2*p,2)}, {vr(vKC+2*p,2)}, {vr(vKS+2*p,2)}")
    def sc_lo_reads(S):
        for i in range(4): S(f"ds_read_b128 {vr(vSc+4*i,4)}, v{vSR} offset:{i*16}")
    ENTRYV = 15 - max(capn(c, 15) for c in (cap, capV, capF, capS))
    ENTRY = 15 - capn(cap, 15)
    if pbar:
        assert npre < pbar < 15
        for k in range(npre, 16):
            if k == pbar:
                A(f"s_waitcnt vmcnt({pbar - npre})"); A("s_barrier")
                ktab_reads(A); vtab_reads(A)
            if k == pbar + 1: A("s_waitcnt lgkmcnt(0)"); prep_v(A)
            A(f"s_waitcnt vmcnt({min(capn(capP, k), 15 - ENTRY) if k == 15 else capn(capP, k)})"); A(item_text(k))
    else:
        for k in range(npre, 16):
            A(f"s_waitcnt vmcnt({capn(capP, k)})"); A(item_text(k))
        assert 16 - ENTRY <= 16 - npre
        A(f"s_waitcnt vmcnt({16 - ENTRY})"); A("s_barrier")
        if diagx and diagw == 1: A("s_memrealtime s[88:89]")
        ktab_reads(A); vtab_reads(A)
        A("s_waitcnt lgkmcnt(0)")
        prep_v(A)
    pro = A

    def itstamp(S):
        if stamps and itst:
            S("s_memrealtime s[96:97]"); S("s_mov_b32 s98, m0"); S(f"s_add_u32 m0, s{sI}, s{sJ}"); S(f"v_accvgpr_read_b32 v{vTmp+2}, a255"); S("s_waitcnt lgkmcnt(0)")
            S(f"v_writelane_b32 v{vTmp+2}, s96, m0"); S("s_mov_b32 m0, s98"); S(f"v_accvgpr_write_b32 a255, v{vTmp+2}")

    def emit(B, items, place, seq0, done0, caps, name, at=None):
        out = []; ei = 0; done = done0; info = []; marks = {}; atd = False
        def wait(n):
            nonlocal done
            if ei - n > done:
                out.append(f"    s_waitcnt vmcnt({n + (1 if atd and ei - n <= at else 0)})"); done = ei - n; return True
            return False
        for i, x in enumerate(B.I):
            while ei < len(items) and place[ei] == i:
                if ei == at and not ua:
                    out.extend([f"    s_cmp_lg_u32 s{sAt}, 0", "    s_cbranch_scc0 L_noat", "    s_mov_b64 exec, 1", f"    v_mov_b32 v{vAt}, s{sInc}",
                                f"    buffer_atomic_add v{vAt}, off, {srd(sWS)}, s{sCoff} sc0", "    s_mov_b64 exec, -1", "L_noat:"])
                if caps: wait(capn(caps, ei))
                if ei == at and ua:
                    out.extend([f"    v_mov_b32 v{vAt}, 1", f"    buffer_atomic_add v{vAt}, v{vAo}, {srd(sWS)}, s{sCoff} offen sc0"]); atd = True
                out.append("    " + items[ei]); ei += 1
            if "mark" in x:
                marks[(x["mark"], x["k"])] = (ei, done)
                if x["mark"] == "wait":
                    n = ei - 1 - seq0[x["k"]]; assert n >= 0
                    info.append((x["k"], n, wait(n)))
                elif x["mark"] == "smallwait": wait(ei - x["k"])
                elif x["mark"] == "postwait": out.append(f"    s_waitcnt vmcnt({AL})")
            else: out.append(x["t"])
        assert ei == len(items)
        print(name, "cost", sum(x["c"] for x in B.I), "waits", [(k, n) for k, n, w in info if w], "lead", min(n for k, n, w in info), file=sys.stderr)
        return out, marks
    class Pos:
        def __init__(self, B):
            self.I = B.I; self.cum = []; a = 0
            for x in B.I: self.cum.append(a); a += x["c"]
            self.tot = a
        def i(self, kind, k=None): return next(i for i, x in enumerate(self.I) if x.get("mark") == kind and x.get("k") == k)
        def c(self, kind, k=None): return self.cum[self.i(kind, k)]
        def at(self, t, lo):
            p = max(lo, next((i for i in range(len(self.I)) if self.cum[i] >= t), len(self.I) - 1))
            while not self.I[p]["ins"]: p += 1
            return p

    def deq(S, r, s, c): S(f"v_fma_mix_f32 v{r}, v{r}, v{s}, v{c} op_sel_hi:[1,0,0]")
    vpk = lambda r, sc: f"v_pk_fma_f32 {vr(r,2)}, {vr(r,2)}, {vr(sc,2)}, {vr(sc,2)} op_sel:[0,0,1] op_sel_hi:[1,0,1]"
    def kitems(B, n):
        for k in range(0, n, 2):
            r = vRing + 4 * k; t = vKP + 4 * ((k // 2) % 2)
            B.mark("wait", k + 1)
            if gen_:
                for j in range(8): B(f"v_cvt_f32_i32 v{r+j}, v{r+j}")
                for u in range(4): B(f"v_pk_fma_f32 {vr(r+2*u,2)}, {vr(r+2*u,2)}, {vr(vKS+2*(u%2),2)}, {vr(vKC+2*(u%2),2)}")
            else:
                for u in range(2):
                    for j in range(4): deq(B, r + 4 * u + j, vKS + j, vKC + j)
            for u in range(4): B(f"v_cvt_pk_bf16_f32 v{t+u}, v{r+2*u}, v{r+2*u+1}")
            B.mark("free", k); B.mark("free", k + 1)
            B(f"ds_write2_b64 v{vKW + k//4}, {vr(t,2)}, {vr(t+2,2)} offset0:{(k%4)*KROW//8} offset1:{(k%4+1)*KROW//8}")
        B.mark("kdone")
    def mfma_loop(B, reads, mfmas, fill, start=0, ids=None, after=None):
        n = len(mfmas)
        if ids is None:
            ids = {}
            for i in range(PF): ids[i] = B(reads[i])
            for t in fill.get(-1, []): B(t)
        for i in range(start, n):
            if i % 2 == 0 or i == start: B.waitds(ids[min(n - 1, i | 1)])
            B(mfmas[i])
            if i + PF < n: ids[i + PF] = B(reads[i + PF])
            for t in fill.get(i, []): B(t)
            if after and i in after: after[i](dict(ids))
    def qk_lists(nblk):
        order = [(2 * bp + u, s4) for bp in range(nblk // 2) for s4 in range(4) for u in range(2)]
        rd = [f"ds_read_b128 {vr(vSt+4*(i%NST),4)}, v{vKR} offset:{LDS_K + b*16*KROW + s4*64}" for i, (b, s4) in enumerate(order)]
        mf = [f"v_mfma_f32_16x16x32_bf16 {vr(vS+4*b,4)}, {vr(vSt+4*(i%NST),4)}, {vr(vQ+4*s4,4)}, {vr(vNM,4) if s4 == 0 else vr(vS+4*b,4)}" for i, (b, s4) in enumerate(order)]
        return rd, mf
    def max_ops(bp):
        b = vS + 8 * bp
        if bp == 0: return [f"v_max3_f32 v{vMx}, v{b}, v{b+1}, v{b+2}", f"v_max3_f32 v{vMx}, v{vMx}, v{b+3}, v{b+4}", f"v_max3_f32 v{vMx}, v{vMx}, v{b+5}, v{b+6}", f"v_max_f32 v{vMx}, v{vMx}, v{b+7}"]
        return [f"v_max3_f32 v{vMx}, v{vMx}, v{b+2*u}, v{b+2*u+1}" for u in range(4)]
    def qk_fill(nblk):
        f = {}
        for bp in range(nblk // 2 - 1):
            last = bp + 2 == nblk // 2
            slots = (4, 5, 6, 7) if last else (3, 5, 7, 7)
            for s_, t in zip(slots, max_ops(bp)): f.setdefault(8 * (bp + 1) + s_, []).append(t)
        return f
    def check_max(B, nblk, tag, pre):
        for t in pre: B(t)
        if len(pre) < 6: B(f"s_nop {5 - len(pre)}")
        for t in max_ops(nblk // 2 - 1): B(t)
        B(f"v_cmp_lt_f32 vcc, s{sThr}, v{vMx}")
        B.lock = True
        B(f"s_cbranch_vccnz L_rescale{tag}")
        B.label(f"L_rescaled{tag}")
        B.lock = False
    exp_op = lambda i: f"v_exp_f32 v{vS+i}, v{vS+i}"
    sum_cvt = lambda i: [f"v_pk_add_f32 {vr(vL,2)}, {vr(vL,2)}, {vr(vS+2*i,2)}", f"v_cvt_pk_bf16_f32 v{vS+i}, v{vS+2*i}, v{vS+2*i+1}"]
    def vphase(B, k0, s, refill_hi, ncol=4):
        rg = lambda n8: vRing + 4 * (k0 + n8)
        c0 = 8 - ncol
        for n8 in range(0, c0, 2):
            B.mark("wait", k0 + n8 + 1)
            if gen_:
                for j in range(8): B(f"v_cvt_f32_i32 v{rg(n8)+j}, v{rg(n8)+j}")
                for u in range(2):
                    for jp in range(2): B(vpk(rg(n8 + u) + 2 * jp, vSc + 2 * (n8 + u)))
            else:
                for u in range(2):
                    for j in range(4): deq(B, rg(n8 + u) + j, vSc + 2 * (n8 + u), vSc + 2 * (n8 + u) + 1)
            if refill_hi: B(f"ds_read_b128 {vr(vSc+4*(n8//2),4)}, v{vSR} offset:{64 + (n8//2)*16}")
            for j in range(4): B(f"v_cvt_pk_bf16_f32 v{vVP+4*j+n8//2}, v{rg(n8)+j}, v{rg(n8+1)+j}")
            B.mark("free", k0 + n8); B.mark("free", k0 + n8 + 1)
        B.mark("wait", k0 + 7)
        for j in range(4):
            if gen_:
                if j == 0:
                    for n8 in range(c0, 8):
                        for u in range(2): B(f"v_cvt_f32_i32 v{rg(n8)+u}, v{rg(n8)+u}")
                if j % 2 == 0:
                    for n8 in range(c0, 8): B(vpk(rg(n8) + j, vSc + 2 * n8))
                if j == 1:
                    for n8 in range(c0, 8):
                        for u in (2, 3): B(f"v_cvt_f32_i32 v{rg(n8)+u}, v{rg(n8)+u}")
            else:
                for n8 in range(c0, 8): deq(B, rg(n8) + j, vSc + 2 * n8, vSc + 2 * n8 + 1)
            for n8 in range(c0, 8, 2): B(f"v_cvt_pk_bf16_f32 v{vVP+4*j+n8//2}, v{rg(n8)+j}, v{rg(n8+1)+j}")
            if j == 3:
                for n8 in range(c0, 8): B.mark("free", k0 + n8)
            B(f"ds_write_b128 v{vVW}, {vr(vVP+4*j,4)} offset:{s*8*OS + j*JS}")
        if refill_hi:
            for u in range(c0 // 2, 4): B(f"ds_read_b128 {vr(vSc+4*u,4)}, v{vSR} offset:{64 + u*16}")
    def pv_lists(s, pbase=None, dbmajor=False):
        if pbase is None: pbase = vS
        lst = [(2 * s + kk, db) for kk in range(2) for db in range(8)]
        if dbmajor: lst = [(2 * s + kk, 2 * u + e) for u in range(4) for kk in range(2) for e in range(2)]
        rd = [f"ds_read_b128 {vr(vSt+4*(i%NST),4)}, v{vVR} offset:{ks*4*OS + (db//2)*128 + (db%2)*16}" for i, (ks, db) in enumerate(lst)]
        mf = [f"v_mfma_f32_16x16x32_bf16 {vr(vO+4*db,4)}, {vr(vSt+4*(i%NST),4)}, {vr(pbase+4*ks,4)}, {vr(vO+4*db,4)}" for i, (ks, db) in enumerate(lst)]
        return rd, mf
    def ops_of(f):
        S = Stream(); f(S); return [x["t"].strip() for x in S.I if not x["t"].strip().startswith(";")]
    def spread(ops, first, per=1):
        f = {}
        for n, t in enumerate(ops): f.setdefault(first + n // per, []).append(t)
        return f
    def save_ops(i0):
        return [f"v_accvgpr_write_b32 a{17*i0+i}, v{vS+i}" for i in range(16)] + [f"v_accvgpr_write_b32 a{17*i0+16}, v{vNM}"]
    unit_items = [item_text(k) for k in range(16)]
    unit_seq = {k: k - 16 for k in range(16)}

    B = Stream()
    B.lock = True
    B.label("L_K")
    itstamp(B)
    B(f"s_add_u32 s{sI}, s{sI}, 1")
    B(f"s_cmp_lt_u32 s{sI}, {npf}"); B("s_cbranch_scc0 L_k2v")
    unit_offs(B, sI, sKsl); B(f"s_andn2_b32 s{sKsl}, s{sKsl}, 255")
    B(f"s_cmp_le_u32 s{sI}, s{sHk}"); B("s_cbranch_scc1 L_hookK")
    B.label("L_k1")
    B("s_waitcnt lgkmcnt(0)")
    B.lock = False
    B.mark("ready")
    prep_k(B)
    kitems(B, 16)
    B.c("park the previous tile's P while the K rows settle in LDS")
    B("s_branch L_save", 150)
    B.lock = True
    B.label("L_saved")
    B.lock = False
    B("s_waitcnt lgkmcnt(0)"); B("s_barrier", 20)
    B.c("S^T - m = K Q^T - m (log2 units)")
    rd, mf = qk_lists(8)
    mfma_loop(B, rd, mf, qk_fill(8))
    B("s_barrier", 10)
    check_max(B, 8, "K", ops_of(ktab_reads))
    for half in range(2):
        for i in range(16): B(exp_op(16 * half + i))
        for i in range(8):
            for t in sum_cvt(8 * half + i): B(t)
    B.mark("allissued")
    B.lock = True
    B(f"s_cmp_lt_u32 s{sI}, {npf}"); B("s_cbranch_scc1 L_K")
    sc_lo_reads(B)
    B.c("the last tile's P waits in the Q registers; l is final: sum it over the four lane groups")
    for i in range(16): B(f"v_mov_b32 v{vQ+i}, v{vS+i}")
    B(f"v_add_f32 v{vHd+1}, v{vL}, v{vL+1}")
    for sw in ("v_permlane32_swap_b32", "v_permlane16_swap_b32"):
        B(f"v_mov_b32 v{vTmp+1}, v{vHd+1}"); B("s_nop 1"); B(f"{sw} v{vTmp+1}, v{vHd+1}"); B("s_nop 1"); B(f"v_add_f32 v{vHd+1}, v{vHd+1}, v{vTmp+1}")
    if ua: B(f"v_mov_b32 v{vAo}, 0x40000000")
    B.lock = False
    P = Pos(B); c0 = P.c("free", 0); c1 = P.c("kdone"); c2 = P.c("allissued")
    tg = [c0 + (c1 - c0) * k / (nK1 - 1) for k in range(nK1)] + [c1 + (c2 - c1) * (k + 1) / (16 - nK1) - 8 for k in range(16 - nK1)]
    pl = []
    for k in range(16): pl.append(P.at(tg[k], max(pl[-1] if pl else 0, P.i("free", k) + 1))); assert pl[-1] <= P.i("allissued")
    kbody, _ = emit(B, unit_items, pl, unit_seq, ENTRY - 16, cap, "K")
    print("  K issue", [P.cum[p] for p in pl], file=sys.stderr)

    sig = sorted(m + 1 for m in ms)
    assert jr <= sig[0] and shards == 8
    events = sorted(set(sig) | set(x + 1 for x in sig) | {jr, 16})
    D_ = Stream()
    D_.label("L_V")
    itstamp(D_)
    D_(f"s_add_u32 s{sJ}, s{sJ}, 1")
    D_(f"s_bitcmp1_b32 {hex(sum(1 << e for e in events))}, s{sJ}")
    D_("s_waitcnt lgkmcnt(0)")
    D_("s_cbranch_scc1 L_ctl")
    D_.label("L_v0")
    unit_offs(D_, sJ, sVsl)
    D_(f"s_cmp_lg_u32 s{sMode}, 0"); D_("s_cbranch_scc1 L_vdisp")
    def make_V(tag, caps):
        B = Stream()
        B.label(f"L_V{tag}_")
        B.mark("ready")
        vphase(B, 0, 0, True)
        vtab_reads(B)
        B.c("fetch this tile's P back while the V rows settle in LDS")
        B("s_branch L_restore", 150)
        B.lock = True
        if tag == "":
            B.label("L_restored")
            B(f"s_cmp_lg_u32 s{sMode}, 0"); B("s_cbranch_scc1 L_rdisp")
        B.label(f"L_rest{tag}_")
        B.lock = False
        B("s_waitcnt lgkmcnt(0)"); B("s_barrier", 20)
        rd, mf = pv_lists(0)
        pvv = ops_of(prep_v)
        mfma_loop(B, rd, mf, {-1: pvv[:-1], 9: pvv[-1:]})
        vphase(B, 8, 1, False)
        B(f"s_cmp_lg_u32 s{sAt}, 0")
        B.lock = True
        B(f"s_cbranch_scc0 L_nopost{tag}")
        B.mark("postwait")
        B(f"ds_write_b32 v{vL4}, v{vAt} offset:{LDS_MB}")
        B.label(f"L_nopost{tag}")
        B.lock = False
        B("s_waitcnt lgkmcnt(0)"); B("s_barrier")
        rd, mf = pv_lists(1)
        mfma_loop(B, rd, mf, spread(ops_of(sc_lo_reads) + [f"ds_read_b32 v{vTmp}, v{vMb}"], 8))
        B.mark("allissued")
        B.lock = True
        B("s_branch L_V")
        B.lock = False
        P = Pos(B); c0 = P.c("free", 0); c1 = c0 + (P.c("allissued") - c0) * vtail
        pl = []
        for k in range(16): pl.append(P.at(c0 + (c1 - c0) * k / 15 - 8, max(pl[-1] if pl else 0, P.i("free", k) + 1))); assert pl[-1] <= P.i("allissued")
        nb = sum(1 for p in pl if p <= P.i("postwait")); assert nb >= AL
        body, _ = emit(B, unit_items, pl, unit_seq, ENTRYV - 16, caps, "V" + tag, at=nb - AL)
        print("  V issue", [P.cum[p] for p in pl], "atomic before", nb - AL, file=sys.stderr)
        return [l.replace("L_noat", "L_noat" + tag) for l in body]
    vbody = D_.text() + make_V("", capV) + make_V("f", capF) + make_V("s", capS)
    hbody = []

    E = Stream()
    def stampE(i):
        if stamps and not (hst == 1 and i in (2, 3, 4)) and not (hst == 2 and i in (2, 3)): E(f"s_memrealtime s[{84+2*i}:{85+2*i}]")
    def lsum():
        stampE(1)
        if stamps: E("s_mov_b32 s99, 0")
    ml = lambda x: vKP + 2 * (x - 1)
    dat = lambda x: vRing + 16 * (x - 1)
    bb = vKSr; u0 = vVP; vPo = vKS; vBa = vKS + 1; vPv = vKC; sLd = sCnt; sNew = sMode
    pl_ = [f"buffer_load_dwordx4 {vr(dat(x)+4*q,4)}, v{vLin}, {srd(sWS)}, s{sPo+x-1} offen offset:{q*1024} sc0 sc1" for x in range(1, 4) for q in range(4)]
    poll = f"buffer_load_dwordx2 {vr(vPv,2)}, v{vPo}, {srd(sWS)}, s{sG} offen sc0 sc1"
    def ready(dst):
        return [f"v_max_u32 v{vTmp+1}, v{vPv}, v{vPv+1}", f"v_cmp_eq_u32 vcc, -1, v{vTmp+1}",
                f"s_lshr_b32 s{sT}, vcc_lo, 16", f"s_cselect_b32 s{dst}, 0, 2",
                f"s_and_b32 s{sT}, vcc_hi, 0xffff", f"s_cselect_b32 s{sT}, 0, 4", f"s_or_b32 s{dst}, s{dst}, s{sT}",
                f"s_lshr_b32 s{sT}, vcc_hi, 16", f"s_cselect_b32 s{sT}, 0, 8", f"s_or_b32 s{dst}, s{dst}, s{sT}"]
    spreadh = [f"ds_bpermute_b32 v{ml(x)+u}, v{vBa}, v{vPv+u} offset:{64*x}" for x in range(1, 4) for u in range(2)]
    E.c("last unit; the last count also told the order in which the pair's workgroups passed it: the fourth merges")
    E.label("L_last")
    E(f"s_lshr_b32 s{sPend}, s{sG}, s{sXc}"); E(f"s_and_b32 s{sPend}, s{sPend}, 7")
    E(f"s_lshl2_add_u32 s{sG}, s{sPair}, s{sWave}"); E(f"s_lshl_b32 s{sG}, s{sG}, 15"); E(f"s_add_u32 s{sG}, s{sG}, {WS_SLOT}")
    E(f"v_lshrrev_b32 v{vPo}, 4, v{vLane}"); E(f"v_and_b32 v{vBa}, 15, v{vLane}"); E(f"v_xor_b32 v{vPo}, s{sSplit}, v{vPo}"); E(f"v_lshlrev_b32 v{vPo}, 13, v{vPo}")
    E(f"v_lshl_add_u32 v{vPo}, v{vBa}, 3, v{vPo}"); E(f"v_add_u32 v{vPo}, 4096, v{vPo}"); E(f"v_lshlrev_b32 v{vBa}, 2, v{vBa}")
    for x in range(4):
        E(f"s_xor_b32 s{sT}, s{sSplit}, {x}"); E(f"s_lshl_b32 s{sT}, s{sT}, 13"); E(f"s_add_u32 s{sPo+x-1}, s{sG}, s{sT}")
    E(f"s_cmp_eq_u32 s{sPend}, 3"); E(f"s_mov_b32 s{sPend}, 14")
    if stamps: E("s_cselect_b32 s100, 2, 1")
    T_ = Stream()
    if hst == 1: T_("s_memrealtime s[88:89]")
    vphase(T_, 0, 0, True)
    T_(f"v_cmp_neq_f32 vcc, v{vNM}, v{vMO}")
    T_.lock = True
    T_(f"s_cbranch_vccnz L_oldrefE")
    T_.label(f"L_newrefE")
    T_.lock = False
    if hst == 1: T_("s_memrealtime s[90:91]")
    T_("s_waitcnt lgkmcnt(0)"); T_("s_barrier", 20)
    rd, mf = pv_lists(0, vQ); mfma_loop(T_, rd, mf, {})
    vphase(T_, 8, 1, False, tcol)
    if hst == 1: T_("s_memrealtime s[92:93]")
    T_("s_waitcnt lgkmcnt(0)"); T_("s_barrier")
    if not early:
        rd, mf = pv_lists(1, vQ); mfma_loop(T_, rd, mf, {})
    Pt = Pos(T_)
    p = Pt.at(Pt.c("wait", 15) + pb, Pt.i("wait", 15) + 1)
    T_.I[p:p] = [dict(t=t, c=0, ins=True) for t in ("    s_cbranch_scc0 L_nolook", "    " + poll, "L_nolook:")]
    out, _ = emit(T_, [], [], unit_seq, ENTRYV - 16, None, "tail")
    assert not any(t.strip().startswith("s_") and not t.strip().startswith(("s_waitcnt", "s_barrier", "s_cbranch", "s_nop", "s_memrealtime")) for t in out)
    for t in out: E.I.append(dict(t=t, c=0, ins=True))
    chunk = lambda q: [f"v_cvt_pk_bf16_f32 v{vS+i}, v{vO+2*i}, v{vO+2*i+1}" for i in range(4 * q, 4 * q + 4)] + \
                      [f"buffer_store_dwordx4 {vr(vS+4*q,4)}, v{vLin}, {srd(sWS)}, s{sPo-1} offen offset:{q*1024} sc0 sc1"]
    if early:
        E("s_cbranch_scc1 L_pvc")
        E.c("one of the first three: hand the partial over (write-through) as its columns complete; once all is out, the header (-m, l), never the empty mark")
        rd, mf = pv_lists(1, vQ, True)
        f = {}
        for q, at in ((0, 6), (1, 12)):
            c = chunk(q); f.setdefault(at, []).extend(c[:2]); f.setdefault(at + 1, []).extend(c[2:])
        S_ = Stream(); mfma_loop(S_, rd, mf, f)
        for x in S_.I: E.I.append(x)
        lsum()
        for t in chunk(2): E(t)
        E("s_nop 1")
        for t in chunk(3): E(t)
    else:
        lsum()
        E("s_cbranch_scc1 L_merge")
        E.c("one of the first three: hand the partial over (write-through); once it is out, the header (-m, l), never the empty mark")
        for q in range(4):
            for t in chunk(q): E(t)
    E("s_mov_b64 exec, 0xffff")
    E(f"v_min_u32 v{vHd}, -2, v{vNM}"); E(f"v_min_u32 v{vHd+1}, -2, v{vHd+1}")
    if hst == 2: E("s_memrealtime s[88:89]")
    E("s_waitcnt vmcnt(0)")
    if hst == 2: E("s_memrealtime s[90:91]")
    E(f"buffer_store_dwordx2 {vr(vHd,2)}, v{vPo}, {srd(sWS)}, s{sG} offen sc0 sc1")
    if stamps:
        E("s_mov_b64 exec, -1")
        for i in (2, 3, 4): stampE(i)
        E("s_branch L_done")
    else:
        E("s_endpgm")
    if early:
        E.label("L_pvc")
        rd, mf = pv_lists(1, vQ); S_ = Stream(); mfma_loop(S_, rd, mf, {})
        for x in S_.I: E.I.append(x)
        lsum()
        E("s_branch L_merge")
    E.c("keep looking at the headers; fetch each partial once its header is complete")
    E.label("L_look")
    E(poll)
    E(f"s_sub_u32 s{sSpin}, s{sSpin}, 1"); E("s_cbranch_scc1 L_end")
    if stamps: E("s_add_u32 s99, s99, 1")
    E.label("L_merge")
    E("s_waitcnt vmcnt(0)")
    for t in ready(sNew): E(t)
    E(f"s_and_b32 s{sNew}, s{sNew}, s{sPend}"); E("s_cbranch_scc0 L_look")
    if hst == 2: E("s_memrealtime s[88:89]")
    for x in range(1, 4):
        E(f"s_bitcmp1_b32 s{sNew}, {x}"); E(f"s_cbranch_scc0 L_get{x}")
        for t in pl_[4*(x-1):4*x]: E(t)
        E.label(f"L_get{x}")
    E(f"s_andn2_b32 s{sPend}, s{sPend}, s{sNew}"); E("s_cbranch_scc1 L_look")
    E.c("all headers are in: final weights 2^(m_x - M) / L, while the last partials are on their way")
    for t in spreadh: E(t)
    wt = lambda x: vKSr + 2 * x if x < 2 else vKS + 2 * (x - 2) + 4
    E(f"v_and_b32 v{vTmp}, 7, v{vLane}" if fullo else f"v_and_b32 v{vTmp}, 15, v{vLane}"); E(f"v_lshrrev_b32 v{vTmp+1}, 4, v{vLane}")
    E(f"v_lshlrev_b32 v{vTmp}, 8, v{vTmp}"); E(f"v_lshl_add_u32 v{vTmp}, v{vTmp+1}, 4, v{vTmp}")
    if fullo: E(f"v_and_b32 v{vTmp+1}, 8, v{vLane}"); E(f"v_lshl_add_u32 v{vTmp}, v{vTmp+1}, 3, v{vTmp}")
    E(f"s_xor_b32 s{sLd}, s{sNew}, 14"); E(f"s_lshl_b32 s{sT2}, s{sWave}, 12")
    E("s_waitcnt lgkmcnt(0)")
    E(f"v_min3_f32 v{vMx}, v{vNM}, v{ml(1)}, v{ml(2)}"); E(f"v_min_f32 v{vMx}, v{vMx}, v{ml(3)}")
    for x in range(4): E(f"v_sub_f32 v{wt(x)}, v{vMx}, v{ml(x) if x else vNM}")
    for x in range(4): E(f"v_exp_f32 v{wt(x)}, v{wt(x)}")
    E(f"v_mul_f32 v{vHd+1}, v{vHd+1}, v{wt(0)}")
    for x in range(1, 4): E(f"v_fmac_f32 v{vHd+1}, v{ml(x)+1}, v{wt(x)}")
    E(f"v_rcp_f32 v{vHd+1}, v{vHd+1}"); E("s_nop 0")
    for x in range(4): E(f"v_mul_f32 v{wt(x)}, v{wt(x)}, v{vHd+1}")
    for i in range(16): E(f"v_pk_mul_f32 {vr(vO+2*i,2)}, {vr(vO+2*i,2)}, {vr(wt(0),2)} op_sel_hi:[1,0]")
    E.c("two passes: the partials that landed earlier, then the last ones")
    E.label("L_pass")
    for x in range(1, 4):
        E(f"s_bitcmp1_b32 s{sLd}, {x}"); E(f"s_cbranch_scc0 L_fold{x}")
        if x > 1: E(f"s_cmp_lg_u32 s{sNew}, 0"); E(f"s_cbranch_scc1 L_in{x}")
        E(f"s_waitcnt vmcnt({4*(3-x)})"); E.label(f"L_in{x}")
        for q in range(2):
            r = dat(x) + 8 * q
            for i in range(8): E(f"v_lshlrev_b32 v{u0+2*i}, 16, v{r+i}")
            for i in range(8): E(f"v_and_b32 v{u0+2*i+1}, 0xffff0000, v{r+i}")
            for i in range(8):
                d = vO + 2 * (8 * q + i)
                E(f"v_pk_fma_f32 {vr(d,2)}, {vr(u0+2*i,2)}, {vr(wt(x),2)}, {vr(d,2)} op_sel_hi:[1,0,1]")
        E.label(f"L_fold{x}")
    E(f"s_cmp_lg_u32 s{sNew}, 0"); E("s_cbranch_scc1 L_second")
    E.label("L_merged")
    if diagx:
        E("s_memrealtime s[86:87]"); E("s_waitcnt lgkmcnt(0)"); E(f"s_sub_u32 s86, s{86 if diagw == 0 else 88}, s84")
        E(f"s_cmp_gt_u32 s86, {diagx}"); E("s_cbranch_scc0 L_dx")
        E(f"v_cvt_f32_u32 v{vTmp+1}, s86")
        for i in range(32): E(f"v_mov_b32 v{vO+i}, v{vTmp+1}")
        E.label("L_dx")
    for i in (2, 3, 4): stampE(i)
    if fullo:
        E.c("swap halves between rows q and q+8 so that every store covers whole 128-byte lines")
        for u in (0, 2):
            A_, B_ = vS + 4 * u, vS + 4 * u + 4
            for i in range(4 * u, 4 * u + 8): E(f"v_cvt_pk_bf16_f32 v{vS+i}, v{vO+2*i}, v{vO+2*i+1}")
            for i in range(4): E(f"v_mov_b32 v{u0+i}, v{A_+i}")
            for i in range(4): E(f"v_mov_b32_dpp v{A_+i}, v{B_+i} row_ror:8 row_mask:0xf bank_mask:0xc")
            for i in range(4): E(f"v_mov_b32_dpp v{B_+i}, v{u0+i} row_ror:8 row_mask:0xf bank_mask:0x3")
            E(f"buffer_store_dwordx4 {vr(A_,4)}, v{vTmp}, {srd(sOUT)}, s{sT2} offen offset:{u*64} {outf}")
            E(f"buffer_store_dwordx4 {vr(B_,4)}, v{vTmp}, {srd(sOUT)}, s{sT2} offen offset:{2048 + u*64} {outf}")
    else:
        for u in range(4):
            for i in range(4 * u, 4 * u + 4): E(f"v_cvt_pk_bf16_f32 v{vS+i}, v{vO+2*i}, v{vO+2*i+1}")
            E(f"buffer_store_dwordx4 {vr(vS+4*u,4)}, v{vTmp}, {srd(sOUT)}, s{sT2} offen offset:{u*64} {outf}")
    if pollmax:
        E(f"s_sub_u32 s{sT}, {SPIN}, s{sSpin}"); E(f"s_cmp_gt_u32 s{sT}, 6"); E("s_cbranch_scc0 L_done")
        E("s_mov_b64 exec, 1"); E(f"v_mov_b32 v{vAt}, s{sT}"); E(f"s_mov_b32 s{sT2}, 0x23000000")
        E(f"buffer_atomic_umax v{vAt}, off, {srd(sWS)}, s{sT2}")
        E(f"v_mov_b32 v{vFl}, 1"); E(f"buffer_atomic_add v{vFl}, off, {srd(sWS)}, s{sT2} offset:4")
    E.label("L_done")
    if stamps:
        E("s_waitcnt vmcnt(0)")
        stampE(5)
        E(f"s_lshl2_add_u32 s{sT}, s{sPair}, s{sSplit}"); E(f"s_lshl2_add_u32 s{sT}, s{sT}, s{sWave}"); E(f"s_lshl_b32 s{sT2}, s{sT}, 4")
        E(f"s_lshl_b32 s4, s{sT}, 8"); E("s_add_u32 s4, s4, 0x22000000")
        E(f"s_add_u32 s{sT2}, s{sT2}, 0x20000000")
        E(f"s_lshl_b32 s{sT}, s{sT}, 6"); E(f"s_add_u32 s{sT}, s{sT}, 0x21000000")
        E("s_waitcnt lgkmcnt(0)")
        E(f"v_accvgpr_read_b32 v60, a255")
        for i in range(12): E(f"v_mov_b32 v{16+i}, s{84+i}")
        E(f"v_mov_b32 v28, s101"); E("s_getreg_b32 s5, hwreg(HW_REG_XCC_ID)"); E("v_mov_b32 v29, s5"); E(f"v_mov_b32 v30, s100"); E("v_mov_b32 v31, s99")
        E("v_mov_b32 v32, s84"); E("v_mov_b32 v33, s85"); E("v_mov_b32 v34, s94"); E("v_mov_b32 v35, s95")
        E(f"buffer_store_dword v60, v{vL4}, {srd(sWS)}, s4 offen sc0 sc1")
        E("s_mov_b64 exec, 1")
        E(f"buffer_store_dwordx4 v[32:35], off, {srd(sWS)}, s{sT2} sc0 sc1")
        for i in range(4): E(f"buffer_store_dwordx4 v[{16+4*i}:{19+4*i}], off, {srd(sWS)}, s{sT} offset:{16*i} sc0 sc1")
    E.label("L_end")
    E("s_endpgm")

    E.label("L_second")
    E(f"s_mov_b32 s{sLd}, s{sNew}"); E(f"s_mov_b32 s{sNew}, 0")
    E.c("all three in flight together: the counted waits of the pass let each fold start as its partial lands")
    E(f"s_cmp_eq_u32 s{sLd}, 14"); E("s_cbranch_scc1 L_pass")
    E("s_waitcnt vmcnt(0)")
    if hst == 2: E("s_memrealtime s[90:91]")
    E("s_branch L_pass")
    def scale_O(r):
        for i in range(16): E(f"v_pk_mul_f32 {vr(vO+2*i,2)}, {vr(vO+2*i,2)}, {vr(r,2)} op_sel_hi:[1,0]")

    E.label("L_k2v")
    unit_offs(E, None, None); set_base(E, sVb)
    E(f"s_cmp_lg_u32 s{sW0}, 0"); E("s_cbranch_scc0 L_k1")
    if diags:
        E("s_mov_b64 exec, 1"); E(f"v_mov_b32 v{vTmp}, s84"); E(f"v_not_b32 v{vTmp+1}, v{vTmp}")
        E(f"buffer_atomic_umax v{vTmp}, off, {srd(sDBG)}, 0 offset:128"); E(f"buffer_atomic_umax v{vTmp+1}, off, {srd(sDBG)}, 0 offset:132"); E("s_mov_b64 exec, -1")
    E(f"buffer_load_dword v{vFl}, off, {srd(sDBG)}, 0 offset:4 {flagf}")
    E("s_branch L_k1")

    E.label("L_vdisp")
    E(f"s_sub_u32 s{sCnt}, s{sCnt}, 1"); E(f"s_cselect_b32 s{sMode}, 0, s{sMode}"); E("s_cbranch_scc1 L_V_")
    E(f"s_cmp_eq_u32 s{sMode}, 1"); E("s_cbranch_scc1 L_Vf_"); E("s_branch L_Vs_")
    E.label("L_rdisp")
    E(f"s_cmp_eq_u32 s{sMode}, 1"); E("s_cbranch_scc1 L_restf_"); E("s_branch L_rests_")
    E.c("progress counts: read the last one, arm the next one")
    E.label("L_ctl")
    E(f"v_readfirstlane_b32 s{sG}, v{vTmp}"); E(f"s_mov_b32 s{sAt}, 0")
    if ua: E(f"v_mov_b32 v{vAo}, 0x40000000")
    E(f"s_cmp_eq_u32 s{sJ}, 16"); E("s_nop 1"); E("s_cbranch_scc1 L_last")
    E(f"s_bitcmp1_b32 {hex(sum(1 << (x + 1) for x in sig))}, s{sJ}"); E("s_cbranch_scc0 L_arm")
    if stamps: E("s_lshl_b32 s101, s101, 8"); E(f"s_and_b32 s{sT}, s{sG}, 255"); E(f"s_or_b32 s101, s101, s{sT}")
    E.c("rank among the 32 workgroups of this count -> how many units to run with more (late) or fewer (early) loads in flight")
    def enc(tb):
        assert len(tb) == 16
        v = sum(((8 | -d) if d < 0 else d) << (4 * i) for i, d in enumerate(tb)); return v & 0xffffffff, v >> 32
    for n in range(len(sig)):
        lo, hi = enc(tabs[n])
        if n == 0: E(f"s_mov_b32 s4, {hex(lo)}"); E(f"s_mov_b32 s5, {hex(hi)}")
        else: E(f"s_cmp_eq_u32 s{sJ}, {sig[n]+1}"); E(f"s_cselect_b32 s4, {hex(lo)}, s4"); E(f"s_cselect_b32 s5, {hex(hi)}, s5")
    E(f"s_bfe_u32 s{sT}, s{sG}, 0x40001"); E(f"s_lshl_b32 s{sT}, s{sT}, 2"); E(f"s_lshr_b64 s[4:5], s[4:5], s{sT}")
    E(f"s_and_b32 s{sCnt}, s4, 7"); E("s_bitcmp1_b32 s4, 3"); E(f"s_cselect_b32 s{sMode}, 2, 1")
    E.label("L_arm")
    E(f"s_bitcmp1_b32 {hex(sum(1 << x for x in sig))}, s{sJ}"); E(f"s_cselect_b32 s{sAt}, s{sW0}, 0")
    E(f"s_lshl3_add_u32 s{sT}, s{sJ}, s{sShard}"); E(f"s_and_b32 s{sT}, s{sT}, 63")
    E(f"s_lshl_b32 s{sT}, s{sT}, {cstride}"); E(f"s_add_u32 s{sCoff}, s{sT}, {WS_CTR}")
    assert len(set(x % 8 for x in sig)) == len(sig)
    E.c("before the first count: wave 0 checks that the counters are live")
    E(f"s_cmp_eq_u32 s{sJ}, {jr}"); E(f"s_cselect_b32 s{sT}, s{sW0}, 0"); E(f"s_cmp_lg_u32 s{sT}, 0"); E("s_cbranch_scc0 L_v0")
    def zero_counters():
        E(f"v_lshlrev_b32 v{vTmp}, {cstride}, v{vLane}"); E(f"v_mov_b32 v{vFl}, 0"); E(f"s_mov_b32 s{sT}, {WS_CTR}")
        E(f"buffer_atomic_swap v{vFl}, v{vTmp}, {srd(sWS)}, s{sT} offen sc0")
    E(f"v_readfirstlane_b32 s{sT}, v{vFl}"); E("s_mov_b64 exec, 1"); E("s_nop 2")
    E(f"s_cmp_lg_u32 s{sT}, 0"); E("s_cbranch_scc1 L_live")
    E.c("not seen live yet: claim the job if it is free, otherwise wait for the (running) workgroup that holds it")
    E(f"v_mov_b32 v{vFl}, 1")
    E(f"buffer_atomic_add v{vFl}, off, {srd(sDBG)}, 0 sc0")
    E("s_waitcnt vmcnt(0)"); E(f"v_readfirstlane_b32 s{sT}, v{vFl}"); E("s_nop 3")
    E(f"s_cmp_eq_u32 s{sT}, 0"); E("s_cbranch_scc0 L_flag")
    E("s_mov_b64 exec, -1"); zero_counters(); E("s_mov_b64 exec, 1")
    E("s_waitcnt vmcnt(0)"); E(f"v_mov_b32 v{vFl}, 1")
    E(f"buffer_atomic_or v{vFl}, off, {srd(sDBG)}, 0 offset:4")
    E("s_branch L_live")
    E.label("L_flag")
    E(f"v_mov_b32 v{vFl}, 0")
    E(f"buffer_atomic_or v{vFl}, off, {srd(sDBG)}, 0 offset:4 sc0")
    E("s_waitcnt vmcnt(0)"); E(f"v_readfirstlane_b32 s{sT}, v{vFl}"); E(f"s_sub_u32 s{sSpin}, s{sSpin}, 1"); E("s_cbranch_scc1 L_live"); E("s_nop 2")
    E(f"s_cmp_lg_u32 s{sT}, 0"); E("s_cbranch_scc0 L_flag")
    E.label("L_live")
    if not nolocal:
        E.c("note this workgroup's XCD in the pair's word")
        E(f"s_lshl_b32 s{sT}, 1, s{sXc}"); E(f"v_mov_b32 v{vFl}, s{sT}"); E(f"s_lshl_b32 s{sT}, s{sPair}, {cstride}"); E(f"s_add_u32 s{sT}, s{sT}, {WS_CTR}")
        E(f"buffer_atomic_add v{vFl}, off, {srd(sWS)}, s{sT}")
    E("s_mov_b64 exec, -1")
    E("s_branch L_v0")

    def tree(lo, hi, reg, pre, leaf):
        if lo == hi: leaf(lo); return
        mid = (lo + hi + 1) // 2
        E(f"s_cmp_ge_u32 s{reg}, {mid}"); E(f"s_cbranch_scc1 {pre}{mid}_{hi}")
        tree(lo, mid - 1, reg, pre, leaf)
        E.label(f"{pre}{mid}_{hi}")
        tree(mid, hi, reg, pre, leaf)
    E.label("L_restore")
    def rleaf(j1):
        b = 17 * (j1 - 1)
        E(f"v_accvgpr_read_b32 v{vMx}, a{b+16}")
        for i in range(16): E(f"v_accvgpr_read_b32 v{vS+i}, a{b+i}")
        E(f"v_cmp_neq_f32 vcc, v{vMx}, v{vMO}"); E("s_cbranch_vccz L_restored"); E("s_branch L_oldref")
    tree(1, npf - 1, sJ, "L_r", rleaf)
    E.c("this tile's P used a newer reference max than O holds: bring O up to it")
    E.label("L_oldref")
    E(f"v_sub_f32 v{vTmp}, v{vMx}, v{vMO}"); E(f"v_exp_f32 v{vTmp}, v{vTmp}"); E(f"v_mov_b32 v{vMO}, v{vMx}")
    scale_O(vTmp)
    E("s_branch L_restored")
    for tag in "E":
        E.label(f"L_oldref{tag}")
        E(f"v_sub_f32 v{vTmp}, v{vNM}, v{vMO}"); E(f"v_exp_f32 v{vTmp}, v{vTmp}"); E("s_nop 0")
        scale_O(vTmp)
        E(f"s_branch L_newref{tag}")
    E.label("L_save")
    def sleaf(i1):
        if i1 >= 2:
            for t in save_ops(i1 - 2): E(t)
        E("s_branch L_saved")
    tree(1, npf, sI, "L_s", sleaf)

    E.c("the running row max rose: move the reference up to it")
    for tag, n in (("K", 32),):
        E.label(f"L_rescale{tag}")
        for sw in ("v_permlane32_swap_b32", "v_permlane16_swap_b32"):
            E(f"v_mov_b32 v{vTmp}, v{vMx}"); E("s_nop 1"); E(f"{sw} v{vTmp}, v{vMx}"); E("s_nop 1"); E(f"v_max_f32 v{vMx}, v{vMx}, v{vTmp}")
        E(f"v_max_f32 v{vTmp}, 0, v{vMx}"); E(f"v_max_f32 v{vT2}, s{sFlo}, v{vMx}")
        E(f"v_exp_f32 v{vTmp}, -v{vTmp}")
        E(f"s_mov_b32 s{sThr}, {hex(f32bits(T))}"); E(f"s_mov_b32 s{sFlo}, 0")
        for r in [vNM, vNM + 2] + [vS + i for i in range(0, n, 2)]:
            E(f"v_pk_add_f32 {vr(r,2)}, {vr(r,2)}, {vr(vT2,2)} op_sel_hi:[1,0] neg_lo:[0,1] neg_hi:[0,1]")
        E(f"v_pk_mul_f32 {vr(vL,2)}, {vr(vL,2)}, {vr(vTmp,2)} op_sel_hi:[1,0]")
        if tag != "K": scale_O(vTmp)
        E(f"s_branch L_rescaled{tag}")

    E.c("workgroup 0, wave 0: zero the counters in d_ws, then raise the flag in d_debug")
    E.label("L_hookK")
    E(f"s_cmp_eq_u32 s{sI}, 1"); E("s_cbranch_scc1 L_hk1")
    E(f"s_cmp_eq_u32 s{sI}, 3"); E("s_cbranch_scc0 L_k1")
    E("s_mov_b64 exec, 1"); E(f"v_mov_b32 v{vFl}, 1")
    E(f"buffer_atomic_or v{vFl}, off, {srd(sDBG)}, 0 offset:4")
    E("s_mov_b64 exec, -1"); E("s_branch L_k1")
    E.label("L_hk1")
    E(f"v_readfirstlane_b32 s{sT}, v{vFl}"); E("s_nop 3")
    E(f"s_cmp_eq_u32 s{sT}, 0"); E(f"s_cselect_b32 s{sHk}, 3, 0"); E("s_cbranch_scc0 L_k1")
    zero_counters()
    E("s_branch L_k1")

    code = pro.text() + kbody + vbody + hbody + [x["t"] for x in E.I if "mark" not in x] + ["L_codeend:"]
    code = "\n".join(code).split("\n")
    if nocomp:
        kill = ("v_fma_mix", "v_cvt_pk", "v_mfma", "v_exp", "v_pk_", "v_max3", "ds_write2", "ds_write_b128", "ds_read_b128", "v_accvgpr_write_b32 a1", "v_accvgpr_read_b32 v9", "v_accvgpr_read_b32 v10", "s_cbranch_vccnz L_resc")
        a0 = code.index("L_K:"); a1 = code.index("L_round:"); c2 = []
        for i, l in enumerate(code):
            if a0 < i < a1:
                if l.strip().startswith(kill): continue
                if "lgkmcnt" in l:
                    l = "    s_waitcnt lgkmcnt(0)"
                    if c2[-1] == l: continue
            c2.append(l)
        code = c2
    if abl:
        a0 = code.index("L_last:"); a1 = code.index("L_merged:"); c2 = []
        for i, l in enumerate(code):
            if a0 < i < a1:
                if abl & 1 and "buffer_store" in l: continue
                if abl & 2 and "buffer_load" in l: continue
                if "s_cbranch_scc1 L_miss" in l: continue
                if abl & 2 and "vmcnt" in l: l = "    s_waitcnt vmcnt(0)"
            c2.append(l)
        code = c2
    if align: code = align_pass(code)
    if not nocomp and not abl: hazard_check(code)
    DOC = """;
;  Three workgroups of a pair hand their partial O (bf16) and (m, l) to the fourth through d_ws: data, wait, header."""
    L = [HDR.rstrip(), f"; @launch grid=(256,1,1) block=(256,1,1) lds={LDS_TOTAL}", DOC, '.amdgcn_target "amdgcn-amd-amdhsa--gfx950"',
         ".text", f".globl {NAME}_kernel", ".p2align 8", f".type {NAME}_kernel,@function", f"{NAME}_kernel:"]
    L += code
    L += ['.section .rodata,"a"', ".p2align 6", f".amdhsa_kernel {NAME}_kernel",
          "  .amdhsa_next_free_vgpr 512", "  .amdhsa_next_free_sgpr 102", "  .amdhsa_accum_offset 256",
          "  .amdhsa_group_segment_fixed_size 0", "  .amdhsa_kernarg_size 80", "  .amdhsa_user_sgpr_count 2",
          "  .amdhsa_user_sgpr_kernarg_segment_ptr 1", "  .amdhsa_system_sgpr_workgroup_id_x 1",
          "  .amdhsa_float_denorm_mode_32 3", "  .amdhsa_float_denorm_mode_16_64 3", ".end_amdhsa_kernel"]
    open(path, "w").write("\n".join(L) + "\n")

if __name__ == "__main__":
    import argparse
    ap = argparse.ArgumentParser()
    ap.add_argument("out")
    for n, t, d in (("AL", int, 7), ("np", int, 14), ("cs", int, 8), ("nK1", int, 7), ("vtail", float, 0.97), ("T", float, 0.0), ("TM", float, 32.0),
                    ("pfcode", int, 8), ("ct", float, 0.9), ("ct0", float, 0.3), ("hv", int, 4), ("hk", float, 0.9), ("hp", int, 4), ("hq", float, 0.9), ("npre", int, 6), ("hst", int, 0), ("nocomp", int, 0), ("abl", int, 0), ("capC", str, None), ("uth", int, 4), ("grp", int, 0), ("flagf", str, "sc0 sc1"), ("capF", str, "7"), ("capS", str, "45"), ("tabs", str, "edcbba0001122345,cbbaaa0000112223,aaa0000000011111"), ("ms", str, "4,10,13"), ("shards", int, 8), ("shb", int, 3), ("ldf", str, "sc0 sc1"), ("wb", int, 0), ("wto", int, 0), ("nolocal", int, 1), ("pb", int, 0), ("jr", int, 3), ("pa", int, 0), ("pw", int, 1), ("noearly", int, 0), ("diags", int, 0), ("diagm", int, 0), ("p2f", float, -1), ("jo", int, 15), ("chk", int, 0), ("apoll", int, 0), ("gray", int, 0), ("ua", int, 0), ("det", int, 0), ("prog", int, 1), ("pbar", int, 0), ("rtmap", int, 0), ("fullo", int, 0), ("tw", int, 0), ("alt", int, 0), ("gen", int, 1), ("tcol", int, 2), ("early", int, 1), ("diagx", int, 0), ("diagw", int, 0), ("twf", str, "nt"), ("om", str, "kkkk"), ("cols", str, "1000,800,4000,2000,100,240,4b0,8044"),
                    ("nt", str, "nt"), ("q", str, ""), ("smf", str, "nt"), ("outf", str, "sc0 sc1"), ("pubf", str, "sc0 sc1"),
                    ("cap", str, "55555556"), ("capV", str, "5555555555555556"), ("capH", str, None), ("capP", str, "8")):
        ap.add_argument("--" + n, type=t, default=d)
    ap.add_argument("--mix", type=lambda x: int(x, 0), default=0)
    for n in ("stamps", "it", "dry", "noalign", "pollmax"): ap.add_argument("--" + n, action="store_true")
    a = ap.parse_args()
    gen(a.out, AL=a.AL, npf=a.np, stamps=a.stamps, nt=a.nt, smf=a.smf, qflag=a.q, cstride=a.cs, T=a.T, TM=a.TM, mix=a.mix, nK1=a.nK1, vtail=a.vtail,
        itst=a.it, outf=a.outf, pubf=a.pubf, cap=a.cap, capV=a.capV, capH=a.capH, capP=a.capP, pfcode=a.pfcode, ctspan=a.ct, ct0=a.ct0,
        hv=a.hv, hk=a.hk, hp=a.hp, hq=a.hq, npre=a.npre, dry=a.dry, hst=a.hst, align=not a.noalign, nocomp=a.nocomp, abl=a.abl, capC=a.capC, uth=a.uth, pollmax=a.pollmax, grp=a.grp, flagf=a.flagf, capF=a.capF, capS=a.capS, tabs=[[(int(c) if c.isdigit() else -(ord(c) - 96)) for c in t] for t in a.tabs.split(',')], ms=tuple(int(x) for x in a.ms.split(',') if x), shards=a.shards, shb=a.shb, ldf=a.ldf, wb=a.wb, wto=a.wto, nolocal=a.nolocal, pb=a.pb, jr=a.jr, pa=a.pa, pw=a.pw, noearly=a.noearly, diags=a.diags, diagm=a.diagm, p2f=a.p2f, jo=a.jo, chk=a.chk, apoll=a.apoll, gray=a.gray, ua=a.ua, det=a.det, prog=a.prog, pbar=a.pbar, rtmap=a.rtmap, fullo=a.fullo, tw=a.tw, alt=a.alt, gen_=a.gen, tcol=a.tcol, early=a.early, diagx=a.diagx, diagw=a.diagw, twf=a.twf, om=a.om.replace('k', '-'), cols=[int(x, 16) << 12 for x in a.cols.split(',')])
```
